```python
import torch

def _softmax(x, axis=-1):
    return torch.softmax(x, dim=axis)

def _gelu(x):
    return torch.nn.functional.gelu(x, approximate='tanh')

def _silu(x):
    return torch.nn.functional.silu(x)

def _sigmoid(x):
    return torch.sigmoid(x)

def _layernorm(x, axis=-1, eps=1e-05):
    m = x.mean(dim=axis, keepdim=True)
    v = x.var(dim=axis, keepdim=True, unbiased=False)
    return (x - m) / torch.sqrt(v + eps)

def _scatter_add(tgt, idx, src, axis=0):
    return tgt.clone().index_add_(axis, idx, src)

def _segment_sum(src, seg, n):
    out = torch.zeros((n,) + src.shape[1:], dtype=src.dtype)
    return out.index_add_(0, seg, src)

def _pad(x, pw):
    flat = tuple((v for pair in reversed(pw) for v in pair))
    return torch.nn.functional.pad(x, flat)
kernel_name = 'gated_mix__memory_aug_recurrent_mem_tr__moe_arch_mod__prompt'

def setup_inputs():

    _w = lambda a: (lambda t: t.to(torch.bfloat16) if t.is_floating_point() else t)(torch.as_tensor(a))

    def _A_setup():
        B, S, Dm = (1, 2048, 1024)
        H, Dh = (32, 128)
        M, seg = (8, 32)
        seg = min(seg, S)
        S = S // seg * seg
        return {'x': _w((lambda *s: torch.randn(*s, dtype=torch.bfloat16) * 0.05)(B, S, Dm)), 'mem0': _w((lambda *s: torch.randn(*s, dtype=torch.bfloat16) * 0.8)(B, M, Dm)), 'Wq': _w((lambda *s: torch.randn(*s, dtype=torch.bfloat16) * 3.2)(Dm, H, Dh) * Dm ** (-0.5)), 'Wk': _w((lambda *s: torch.randn(*s, dtype=torch.bfloat16) * 3.2)(Dm, H, Dh) * Dm ** (-0.5)), 'Wv': _w((lambda *s: torch.randn(*s, dtype=torch.bfloat16) * 0.8)(Dm, H, Dh) * Dm ** (-0.5)), 'Wo': _w((lambda *s: torch.randn(*s, dtype=torch.bfloat16) * 0.8)(H, Dh, Dm) * (H * Dh) ** (-0.5)), 'seg_len': seg}
    _A_in = _A_setup()

    def _B_setup():
        B, S, D, F, C = (1, 2048, 1024, 3584, 2)
        return {'x': _w((lambda *s: torch.randn(*s, dtype=torch.bfloat16) * 0.05)(B, S, D)), 'w_r': _w((lambda *s: torch.randn(*s, dtype=torch.bfloat16) * 1.6)(D)), 'w_gate': _w((lambda *s: torch.randn(*s, dtype=torch.bfloat16) * 0.2)(D, F)), 'w_up': _w((lambda *s: torch.randn(*s, dtype=torch.bfloat16) * 0.2)(D, F)), 'w_down': _w((lambda *s: torch.randn(*s, dtype=torch.bfloat16) * 0.2)(F, D))}
    _B_in = _B_setup()
    return {'A_x': _A_in['x'], 'A_mem0': _A_in['mem0'], 'A_Wq': _A_in['Wq'], 'A_Wk': _A_in['Wk'], 'A_Wv': _A_in['Wv'], 'A_Wo': _A_in['Wo'], 'A_seg_len': _A_in['seg_len'], 'B_x': _B_in['x'], 'B_w_r': _B_in['w_r'], 'B_w_gate': _B_in['w_gate'], 'B_w_up': _B_in['w_up'], 'B_w_down': _B_in['w_down'], 'gate_w': _w((lambda *s: torch.randn(*s, dtype=torch.bfloat16) * 0.05)(1024) * 16.0)}

def reference(A_x, A_mem0, A_Wq, A_Wk, A_Wv, A_Wo, A_seg_len, B_x, B_w_r, B_w_gate, B_w_up, B_w_down, gate_w):

    def _A_ref(x, mem0, Wq, Wk, Wv, Wo, seg_len):
        B, S, Dm = x.shape
        H, Dh = (Wq.shape[1], Wq.shape[2])
        M = mem0.shape[1]
        scale = Dh ** (-0.5)
        n_seg = S // seg_len
        L = M + seg_len
        idx = torch.arange(L)
        mask = (idx[:, None] < M) | (idx[:, None] >= idx[None, :])
        mem = mem0
        outs = []
        for s in range(n_seg):
            xs = x[:, s * seg_len:(s + 1) * seg_len, :].clone()
            h = torch.concatenate([mem, xs], axis=1)
            q = torch.einsum('btd,dhe->bhte', h, Wq)
            k = torch.einsum('btd,dhe->bhte', h, Wk)
            v = torch.einsum('btd,dhe->bhte', h, Wv)
            scores = torch.einsum('bhqe,bhke->bhqk', q, k) * scale
            scores = torch.where(mask[None, None], scores, -1000000000.0)
            p = _softmax(scores, axis=-1)
            o = torch.einsum('bhqk,bhke->bhqe', p, v)
            o = torch.einsum('bhte,hed->btd', o, Wo)
            mem = o[:, :M, :].clone()
            outs.append(o[:, M:, :])
        return torch.concatenate(outs, axis=1)

    def _B_ref(x, w_r, w_gate, w_up, w_down):
        B, S, D = x.shape
        C = 2
        r = x @ w_r
        idx = torch.argsort(-r, axis=-1)[:, :C]
        idx_e = (lambda x, n, axis: torch.repeat_interleave(x, n, dim=axis))(idx.reshape(B, C, 1), D, axis=2)
        x_sel = (lambda x, i, axis: torch.take_along_dim(x, i, dim=axis))(x, idx_e, axis=1)
        g = _silu(x_sel @ w_gate)
        u = x_sel @ w_up
        y = g * u @ w_down
        r_sel = _sigmoid((lambda x, i, axis: torch.take_along_dim(x, i, dim=axis))(r, idx, axis=1))
        y = y * r_sel.reshape(B, C, 1)
        b_off = (torch.arange(B) * S).reshape(B, 1)
        flat_idx = (idx + b_off).reshape(B * C)
        zero = (x * 0.0).reshape(B * S, D)
        upd = _scatter_add(zero, flat_idx, y.reshape(B * C, D), axis=0)
        return x + upd.reshape(B, S, D)
    x = A_x
    g = _sigmoid((x * gate_w).sum(-1, keepdims=True))
    a = _A_ref(x, A_mem0, A_Wq, A_Wk, A_Wv, A_Wo, A_seg_len)
    b = _B_ref(x, B_w_r, B_w_gate, B_w_up, B_w_down)
    return g * a + (1 - g) * b
```

```python
import re

REG_RE = re.compile(r'\b([vas])(\d+)\b|\b([vas])\[(\d+):(\d+)\]|\b(vcc|exec|m0|scc)\b')

def regs_of(op):
    out = set()
    for m in REG_RE.finditer(op):
        if m.group(1):
            out.add((m.group(1), int(m.group(2))))
        elif m.group(3):
            for i in range(int(m.group(4)), int(m.group(5)) + 1):
                out.add((m.group(3), i))
        else:
            out.add((m.group(6), 0))
    return out

TRANS = ('v_exp_f32', 'v_log_f32', 'v_rcp_f32', 'v_rsq_f32', 'v_sqrt_f32', 'v_sin_f32', 'v_cos_f32')

def split_ops(s):
    ops, depth, cur = [], 0, ''
    for ch in s:
        if ch == '[': depth += 1
        if ch == ']': depth -= 1
        if ch == ',' and depth == 0:
            ops.append(cur.strip()); cur = ''
        else:
            cur += ch
    if cur.strip(): ops.append(cur.strip())
    return ops

class Ins:
    __slots__ = ('text', 'mn', 'cls', 'wr', 'rd', 'passes', 'srcc', 'srcab', 'dpp', 'perm', 'trans', 'states', 'stdata', 'dst0', 'rdl')
    def __init__(self, text):
        self.text = text
        t = text.split(';')[0].strip()
        parts = t.split(None, 1)
        mn = parts[0]; rest = parts[1] if len(parts) > 1 else ''
        self.mn = mn
        self.wr = set(); self.rd = set(); self.passes = 0; self.srcc = set(); self.srcab = set()
        self.dpp = False; self.perm = False; self.trans = False; self.states = 1; self.stdata = set(); self.dst0 = None; self.rdl = False
        ops = split_ops(rest)
        if mn.startswith('v_mfma'):
            self.cls = 'mfma'
            self.passes = 8 if '32x32' in mn else 4
            self.wr = regs_of(ops[0]); self.dst0 = ops[0]
            self.srcab = regs_of(ops[1]) | regs_of(ops[2])
            self.srcc = regs_of(ops[3].split()[0])
            self.rd = self.srcab | self.srcc
        elif mn.startswith('v_'):
            self.cls = 'valu'
            base = mn.replace('_e32', '').replace('_e64', '').replace('_dpp', '')
            self.trans = base in TRANS
            self.dpp = ('_dpp' in mn) or ('row_' in rest) or ('quad_perm' in rest)
            if base.startswith('v_permlane'):
                self.perm = True
                self.wr = regs_of(ops[0]) | regs_of(ops[1]); self.rd = set(self.wr)
            elif base.startswith('v_cmp'):
                self.wr = regs_of(ops[0])
                for o in ops[1:]: self.rd |= regs_of(o)
            elif base in ('v_readfirstlane_b32', 'v_readlane_b32'):
                self.rdl = True
                self.wr = regs_of(ops[0])
                for o in ops[1:]: self.rd |= regs_of(o)
            elif base in ('v_add_co_u32', 'v_sub_co_u32', 'v_addc_co_u32', 'v_subb_co_u32', 'v_mad_u64_u32'):
                self.wr = regs_of(ops[0]) | regs_of(ops[1])
                for o in ops[2:]: self.rd |= regs_of(o)
            else:
                self.wr = regs_of(ops[0])
                for o in ops[1:]:
                    self.rd |= regs_of(o)
                if base in ('v_fmac_f32', 'v_dot2c_f32_bf16', 'v_pk_fmac_f16') or self.dpp:
                    self.rd |= self.wr
                if base == 'v_cndmask_b32' and len(ops) == 3:
                    self.rd.add(('vcc', 0))
        elif mn.startswith('buffer_') or mn.startswith('global_'):
            self.cls = 'vmem'
            allr = set()
            for o in ops: allr |= regs_of(o)
            is_lds = re.search(r'\blds\b', rest) is not None
            if mn.startswith('buffer_load') or mn.startswith('global_load'):
                if is_lds:
                    self.rd = allr | {('m0', 0)}
                else:
                    self.wr = regs_of(ops[0]);
                    for o in ops[1:]: self.rd |= regs_of(o)
            elif 'atomic' in mn:
                self.rd = allr
                if 'sc0' in rest: self.wr = regs_of(ops[0])
            else:
                self.rd = allr
                if mn.endswith('x4') or mn.endswith('x3'):
                    self.stdata = regs_of(ops[0]) if mn.startswith('buffer') else regs_of(ops[1])
        elif mn.startswith('ds_'):
            self.cls = 'ds'
            if mn.startswith('ds_read') or mn.startswith('ds_bpermute') or mn.startswith('ds_permute') or mn.startswith('ds_swizzle') or '_rtn' in mn:
                self.wr = regs_of(ops[0])
                for o in ops[1:]: self.rd |= regs_of(o)
            else:
                for o in ops: self.rd |= regs_of(o)
        elif mn == 's_nop':
            self.cls = 'nop'; self.states = int(rest, 0) + 1
        else:
            self.cls = 'salu'
            if mn.startswith('s_cmp') or mn.startswith('s_cbranch') or mn in ('s_branch', 's_waitcnt', 's_barrier', 's_sleep', 's_setprio', 's_endpgm', 's_bitcmp1_b32', 's_bitcmp0_b32'):
                for o in ops: self.rd |= regs_of(o)
            elif ops:
                self.wr = regs_of(ops[0])
                for o in ops[1:]: self.rd |= regs_of(o)

def need_states(p, c):
    n = 0
    isv = lambda s: {r for r in s if r[0] in 'va'}
    iss = lambda s: {r for r in s if r[0] in ('s', 'vcc')}
    if p.cls == 'valu':
        pv = isv(p.wr); ps = iss(p.wr)
        if c.cls == 'mfma' and pv & c.rd: n = max(n, 2)
        if c.cls == 'valu':
            if c.dpp and pv & c.rd: n = max(n, 2)
            if c.perm and pv & c.rd: n = max(n, 2)
            if c.rdl and pv & c.rd: n = max(n, 1)
            if p.trans and not c.trans and pv & (c.rd | c.wr): n = max(n, 1)
            if ps & c.rd: n = max(n, 4 if c.rdl else 2)
        if c.cls == 'vmem' and ps & c.rd: n = max(n, 5)
        if p.trans and c.cls in ('vmem', 'ds') and pv & c.rd: n = max(n, 1)
    if p.cls == 'mfma':
        tab_ab = {4: 8, 8: 12}[p.passes]; tab_c = {4: 6, 8: 10}[p.passes]; war = {4: 3, 8: 7}[p.passes]
        if c.cls == 'mfma':
            if p.wr & c.srcab: n = max(n, tab_ab)
            if p.wr & c.srcc:
                if p.wr == c.srcc and p.mn == c.mn: pass
                else: n = max(n, tab_c)
            elif p.wr & c.wr: n = max(n, tab_c)
        elif c.cls in ('valu', 'vmem', 'ds'):
            if p.wr & (c.rd | c.wr): n = max(n, tab_ab)
            if c.cls == 'valu' and p.srcc & c.wr: n = max(n, war)
    if p.cls == 'vmem' and p.stdata:
        if c.cls in ('valu', 'mfma') and p.stdata & c.wr: n = max(n, 2)
        elif p.stdata & c.wr: n = max(n, 1)
    if p.cls == 'salu' and ('m0', 0) in p.wr and c.cls == 'vmem' and ('m0', 0) in c.rd: n = max(n, 1)
    return n

class Asm:
    GL = 0
    def __init__(self):
        self.out = []
        self.hist = []
        self.nlabel = 0
        self.nnop = 0
    def raw(self, s):
        self.out.append(s)
    def comment(self, s):
        self.out.append('    ; ' + s)
    def __call__(self, text):
        for line in text.strip().split('\n'):
            line = line.strip()
            if not line: continue
            if line.startswith(';'):
                self.out.append('    ' + line); continue
            self.emit(line)
    def emit(self, line):
        ins = Ins(line)
        dist = 0; need = 0
        for p in reversed(self.hist):
            r = need_states(p, ins)
            if r > dist: need = max(need, r - dist)
            dist += p.states
            if dist >= 20: break
        while need > 0:
            k = min(need, 16)
            nop = Ins('s_nop %d' % (k - 1))
            self.out.append('    s_nop %d' % (k - 1)); self.hist.append(nop); self.nnop += 1
            need -= k
        self.out.append('    ' + line)
        self.hist.append(ins)
        if len(self.hist) > 40: self.hist = self.hist[-40:]
    def fence(self, n=None):
        dist = 0; need = 0
        for p in reversed(self.hist):
            worst = 0
            if p.cls == 'mfma': worst = {4: 8, 8: 12}[p.passes]
            elif p.cls == 'valu': worst = 5 if any(r[0] in ('s', 'vcc') for r in p.wr) else 2
            elif p.cls == 'vmem' and p.stdata: worst = 2
            elif p.cls == 'salu' and ('m0', 0) in p.wr: worst = 1
            if worst > dist: need = max(need, worst - dist)
            dist += p.states
            if dist >= 20: break
        while need > 0:
            k = min(need, 16)
            self.out.append('    s_nop %d' % (k - 1)); self.hist.append(Ins('s_nop %d' % (k - 1)))
            need -= k
    def label(self, name, fence=True):
        if fence: self.fence()
        self.out.append(name + ':')
        if fence: self.hist = []
    def newlabel(self, base='L'):
        Asm.GL += 1
        return '%s_%d' % (base, Asm.GL)
    def branch(self, text):
        self.fence()
        self.emit(text)
    def text(self):
        return '\n'.join(self.out) + '\n'

def vr(b, n=1):
    return 'v%d' % b if n == 1 else 'v[%d:%d]' % (b, b + n - 1)
def ar(b, n=1):
    return 'a%d' % b if n == 1 else 'a[%d:%d]' % (b, b + n - 1)
def sr(b, n=1):
    return 's%d' % b if n == 1 else 's[%d:%d]' % (b, b + n - 1)
```

```python
from asmlib import *

MB = 1 << 20
QF_OFF = 0
KF_OFF = 16 * MB
VF_OFF = 32 * MB
OF_OFF = 48 * MB
KM_OFF = 64 * MB
VM_OFF = 68 * MB
MX_OFF = 72 * MB
QKX_OFF = MX_OFF + 256 * 1024
OX_OFF = QKX_OFF + 512 * 1024
PX_OFF = 74 * MB
MISC_OFF = 78 * MB
XF_OFF = 80 * MB
GL_OFF = 84 * MB
RR_OFF = GL_OFF + 8192
HB_OFF = RR_OFF + 8192
YP_OFF = HB_OFF + 32768
IDX_OFF = YP_OFF + 65536
WS_BYTES = 256 * MB

KA = dict(x=0, mem0=8, wq=16, wk=24, wv=32, wo=40, seg=48, bx=56, wr=64, wg=72, wu=80, wd=88, gw=96, out=104, dbg=112, ws=120)
SZ = dict(x=2048*1024*2, mem0=8*1024*2, wq=1024*4096*2, wk=1024*4096*2, wv=1024*4096*2, wo=4096*1024*2, wr=2048, wg=1024*3584*2,
          wu=1024*3584*2, wd=3584*1024*2, gw=2048, out=2048*1024*2, dbg=256, ws=WS_BYTES)

def build_srds(a, srds):
    for n, b in srds.items():
        a('s_load_dwordx2 s[%d:%d], s[0:1], %d' % (b, b + 1, KA[n]))
    a('s_waitcnt lgkmcnt(0)')
    for n, b in srds.items():
        a('s_and_b32 s%d, s%d, 0xffff' % (b + 1, b + 1))
        a('s_mov_b32 s%d, 0x%x' % (b + 2, SZ[n]))
        a('s_mov_b32 s%d, 0x20000' % (b + 3))

def kernel_header(name):
    return '''.globl %s
.p2align 8
.type %s,@function
%s:
''' % (name, name, name)

def kernel_desc(name, vgpr, accum, sgpr=102):
    return '''.p2align 6
.amdhsa_kernel %s
  .amdhsa_next_free_vgpr %d
  .amdhsa_next_free_sgpr %d
  .amdhsa_accum_offset %d
  .amdhsa_group_segment_fixed_size 0
  .amdhsa_kernarg_size 128
  .amdhsa_user_sgpr_count 2
  .amdhsa_user_sgpr_kernarg_segment_ptr 1
  .amdhsa_system_sgpr_workgroup_id_x 1
.end_amdhsa_kernel
''' % (name, vgpr, sgpr, accum)
```

```python
from common import *
import rrole as R
from rrole import sWS, sWQ, sWK, sWV, sDBG, sRX, sI, sW, sT0, sT1, sT2, sT3, sH, sJ, vL, vL16, vT, wq_frag

sX = 24
sSEG, sEND, sXO, sQO, sKO, sVO = 52, 53, 54, 55, 56, 57
vXA = 3
vXB = 16
vAC = 144
vRD = 192
vOUT = 224
LDSP = 0

def xf(buf, tt, T, b): return vXB + buf * 64 + ((tt * 4 + T) * 2 + b) * 4
def ac(tt, tile): return vAC + (tt * 6 + tile) * 4
def lp(buf, wv, tt, tile): return LDSP + buf * 49152 + ((wv * 2 + tt) * 6 + tile) * 1024

def xloads(buf, soff0, soff1):
    out = []
    for tt in range(2):
        for T in range(4):
            for b in range(2):
                r = xf(buf, tt, T, b)
                n = T * 2 + b
                out.append('buffer_load_dwordx4 v[%d:%d], v%d, s[%d:%d], s%d offen offset:%d' % (r, r + 3, vL16 if n < 4 else 5, sWS, sWS + 3, soff0 if tt == 0 else soff1, (n & 3) * 1024))
    return out

FRAGS = [('q', 0), ('q', 1), ('k', 0), ('k', 1), ('v', 0), ('v', 1)]
def frag_src(kind, idx):
    if kind == 'q': return [(idx, 0), (idx, 1)]
    if kind == 'k': return [(idx, 2), (idx, 3)]
    return [(0, 4 + idx), (1, 4 + idx)]
ASSIGN = [[[0, 1], [2, 3], [4], [5]], [[0], [1], [2, 3], [4, 5]]]

def reduce_ops(w, par, sc1):
    ops = []
    for n, f in enumerate(ASSIGN[par][w]):
        kind, idx = FRAGS[f]
        o = vOUT + 4 * n
        rd = []
        for h2, (tt, tile) in enumerate(frag_src(kind, idx)):
            for wv in range(4):
                r = vRD + (h2 * 4 + wv) * 4
                off = lp(par, wv, tt, tile)
                rd.append('ds_read_b128 v[%d:%d], v%d offset:%d' % (r, r + 3, vL16 if off < 65536 else 4, off if off < 65536 else off - 49152))
        ops.append(('rd', rd))
        ad = []
        for h2 in range(2):
            b0 = vRD + h2 * 16
            for x in (0, 2):
                ad.append('v_pk_add_f32 v[%d:%d], v[%d:%d], v[%d:%d]' % (b0 + x, b0 + x + 1, b0 + x, b0 + x + 1, b0 + 4 + x, b0 + 5 + x))
                ad.append('v_pk_add_f32 v[%d:%d], v[%d:%d], v[%d:%d]' % (b0 + 8 + x, b0 + 9 + x, b0 + 8 + x, b0 + 9 + x, b0 + 12 + x, b0 + 13 + x))
            for x in (0, 2):
                ad.append('v_pk_add_f32 v[%d:%d], v[%d:%d], v[%d:%d]' % (b0 + x, b0 + x + 1, b0 + x, b0 + x + 1, b0 + 8 + x, b0 + 9 + x))
            ad.append('v_cvt_pk_bf16_f32 v%d, v%d, v%d' % (o + 2 * h2, b0, b0 + 1))
            ad.append('v_cvt_pk_bf16_f32 v%d, v%d, v%d' % (o + 2 * h2 + 1, b0 + 2, b0 + 3))
        so = {'q': sQO, 'k': sKO, 'v': sVO}[kind]
        if kind == 'v':
            ad.append('buffer_store_dwordx4 v[%d:%d], v%d, s[%d:%d], s%d offen offset:%d%s' % (o, o + 3, vL16, sWS, sWS + 3, so, idx * 1024, ' sc1' if sc1 else ''))
        else:
            ad.append('buffer_store_dwordx4 v[%d:%d], v%d, s[%d:%d], s%d offen%s' % (o, o + 3, vL16 if idx == 0 else 5, sWS, sWS + 3, so, ' sc1' if (sc1 and kind == 'k') else ''))
        ops.append(('ad', ad))
    return ops

def seg_plan(w, par, first, cfg):
    sc1 = cfg.get('g1_sc1', 0)
    buf = par
    slots = [[] for _ in range(96)]
    nxt = xloads(1 - buf, sXO, sT0)
    for n, x in enumerate(nxt):
        tt = n // 8
        slots[tt * 48 + (n % 8) * 5 + 1].append(('x%d' % tt, x))
    tail = []
    for tt in range(2):
        for tile in range(6):
            off = lp(buf, w, tt, tile)
            ins = ('ds', 'ds_write_b128 v%d, v[%d:%d] offset:%d' % (vL16 if off < 65536 else 4, ac(tt, tile), ac(tt, tile) + 3, off if off < 65536 else off - 49152))
            p = (tt * 6 + tile) * 8 + 7 + 5
            if p < 96: slots[p].append(ins)
            else: tail.append(ins)
    if not first:
        p = 0
        for kind, lst in reduce_ops(w, 1 - par, sc1):
            if kind == 'rd':
                for x in lst:
                    while len(slots[p]) >= 1: p += 1
                    slots[p].append(('ds', x)); p += 1
                p += 5
            else:
                slots[p].append(('w', 's_waitcnt lgkmcnt(0)'))
                for x in lst:
                    while len(slots[p]) >= 2: p += 1
                    slots[p].append(('st' if x.startswith('buffer_store') else 'va', x))
                p += 1
    return slots, tail

def vm_seq(slots, upto=96, frm=0):
    return [t for sl in slots[frm:upto] for (t, x) in sl if t in ('x0', 'x1', 'st')]

def count_after(seq, tag):
    idx = max(i for i, t in enumerate(seq) if t == tag)
    return len(seq) - 1 - idx

def seg_body(a, w, par, first, cfg, preds):
    buf = par
    slots, tail = seg_plan(w, par, first, cfg)
    a('s_add_u32 s%d, s%d, 0x10000' % (sXO, sXO))
    a('s_add_u32 s%d, s%d, 0x8000' % (sT0, sXO))
    if preds is None:
        n0 = n1 = None
        a('s_waitcnt vmcnt(0)')
    else:
        n0 = min(count_after(vm_seq(seg_plan(w, *p, cfg)[0]), 'x0') for p in preds)
        n1 = min(count_after(vm_seq(seg_plan(w, *p, cfg)[0]), 'x1') for p in preds) + len(vm_seq(slots, 48))
        a('s_waitcnt vmcnt(%d)' % n0)
    n = 0
    for tt in range(2):
        if tt == 1 and n1 is not None: a('s_waitcnt vmcnt(%d)' % n1)
        for tile in range(6):
            for T in range(4):
                for b in range(2):
                    c = '0' if (T == 0 and b == 0) else vr(ac(tt, tile), 4)
                    W = ar(wq_frag(tile, T, b), 4); X = vr(xf(buf, tt, T, b), 4)
                    if tile < 4: a('v_mfma_f32_16x16x32_bf16 %s, %s, %s, %s' % (vr(ac(tt, tile), 4), W, X, c))
                    else: a('v_mfma_f32_16x16x32_bf16 %s, %s, %s, %s' % (vr(ac(tt, tile), 4), X, W, c))
                    for t, x in slots[n]: a(x)
                    n += 1
    for t, x in tail: a(x)
    if not first:
        for so in (sQO, sKO, sVO): a('s_add_u32 s%d, s%d, 0x40000' % (so, so))
    a('s_waitcnt lgkmcnt(0)')
    a('s_barrier')

def g1_wave(a, w, cfg, pre):
    a('v_and_b32 v%d, 15, v%d' % (vT, vL))
    a('v_lshrrev_b32 v%d, 4, v%d' % (vT + 1, vL))
    a('v_lshlrev_b32 v%d, 5, v%d' % (vT + 1, vT + 1))
    a('v_lshl_add_u32 v%d, v%d, 11, v%d' % (vXA, vT, vT + 1))
    a('v_add_u32 v4, 49152, v%d' % vL16)
    a('v_add_u32 v5, 4096, v%d' % vL16)
    a('s_lshl_b32 s%d, s%d, 16' % (sXO, sSEG))
    a('s_add_u32 s%d, s%d, 0x%x' % (sXO, sXO, XF_OFF + w * 8192))
    a('s_add_u32 s%d, s%d, 0x8000' % (sT0, sXO))
    for x in xloads(0, sXO, sT0): a(x)
    a('s_lshl_b32 s%d, s%d, 5' % (sT0, sSEG))
    a('s_add_u32 s%d, s%d, s%d' % (sT0, sT0, sH))
    a('s_lshl_b32 s%d, s%d, 13' % (sT0, sT0))
    a('s_lshl_b32 s%d, s%d, 10' % (sT1, sJ))
    a('s_add_u32 s%d, s%d, s%d' % (sT2, sT0, sT1))
    a('s_add_u32 s%d, s%d, 0x%x' % (sQO, sT2, QF_OFF))
    a('s_add_u32 s%d, s%d, 0x%x' % (sKO, sT2, KF_OFF))
    a('s_add_u32 s%d, s%d, s%d' % (sT2, sT2, sT1))
    a('s_add_u32 s%d, s%d, 0x%x' % (sVO, sT2, VF_OFF))
    R.transpose_weights(a, with_wo=False)
    a('s_barrier')
    a('s_memrealtime s[72:73]')
    seg_body(a, w, 0, True, cfg, None)
    L = pre + '_loop_w%d' % w; E = pre + '_done_w%d' % w
    p_after_even = len(ASSIGN[1][w])
    a.label(L)
    seg_body(a, w, 1, False, cfg, [(0, True), (0, False)])
    a('s_add_u32 s%d, s%d, 2' % (sSEG, sSEG))
    a('s_cmp_ge_u32 s%d, s%d' % (sSEG, sEND))
    a.branch('s_cbranch_scc1 %s' % E)
    seg_body(a, w, 0, False, cfg, [(1, False)])
    a.branch('s_branch %s' % L)
    a.label(E)
    for kind, lst in reduce_ops(w, 1, cfg.get('g1_sc1', 0)):
        if kind == 'ad': a('s_waitcnt lgkmcnt(0)')
        for x in lst: a(x)

def gen_g1_kernel(name, cfg):
    a = Asm()
    a.raw(kernel_header(name))
    a('s_cmp_ge_u32 s2, 256')
    a('s_cbranch_scc1 g1_exit')
    a('s_memrealtime s[70:71]')
    build_srds(a, dict(ws=sWS, wq=sWQ, wk=sWK, wv=sWV))
    a('v_and_b32 v%d, 63, v0' % vL)
    a('v_lshlrev_b32 v%d, 4, v%d' % (vL16, vL))
    a('v_lshrrev_b32 v%d, 6, v0' % vT)
    a('v_readfirstlane_b32 s%d, v%d' % (sW, vT))
    a('s_and_b32 s%d, s2, 127' % sT0)
    a('s_lshr_b32 s%d, s%d, 2' % (sH, sT0))
    a('s_and_b32 s%d, s%d, 3' % (sJ, sT0))
    a('s_lshr_b32 s%d, s2, 7' % sT0)
    a('s_lshl_b32 s%d, s%d, 5' % (sSEG, sT0))
    a('s_add_u32 s%d, s%d, 32' % (sEND, sSEG))
    R.load_weights(a, with_wo=False)
    for w in range(1, 4):
        a('s_cmp_eq_u32 s%d, %d' % (sW, w))
        a.branch('s_cbranch_scc1 g1_wave%d' % w)
    for w in range(4):
        a.label('g1_wave%d' % w)
        g1_wave(a, w, cfg, 'g1')
        if w == 0 and cfg.get('stamp'):
            a('s_memrealtime s[74:75]')
            a('s_waitcnt lgkmcnt(0)')
            a('v_mov_b32 v10, s70'); a('v_mov_b32 v11, s72'); a('v_mov_b32 v12, s74'); a('v_mov_b32 v13, 0')
            a('s_lshl_b32 s%d, s2, 4' % sT0)
            a('s_add_u32 s%d, s%d, 0x%x' % (sT0, sT0, MISC_OFF + 65536))
            a('v_mov_b32 v14, 0')
            a('s_mov_b64 exec, 1')
            a('buffer_store_dwordx4 v[10:13], v14, s[%d:%d], s%d offen' % (sWS, sWS + 3, sT0))
        a('s_endpgm')
    a.label('g1_exit')
    a('s_endpgm')
    return a.text()
```

```python
from common import *
import rrole as R

sWS = 8
sT0, sT1, sT2, sT3, sC, sTASK = 45, 46, 47, 48, 65, 41
sMK = 80
NEG = 0xff7fffff

class AV:
    L16, L8, Dup, L16B = 2, 3, 4, 5
    T = 8
    MLO, MHI, FLO, NEGV = 6, 7, 14, 15
    Q = 16
    K = 48
    KM = 80
    V = 96
    VM = 128
    S = 136
    P = 156
    O = 16
    RC = 176

def attn_consts(a, cfg):
    A = AV
    a('v_and_b32 v1, 63, v0')
    a('v_lshlrev_b32 v%d, 4, v1' % A.L16)
    a('v_lshlrev_b32 v%d, 3, v1' % A.L8)
    a('v_add_u32 v%d, 0x1000, v%d' % (A.L16B, A.L16))
    a('v_lshrrev_b32 v%d, 4, v1' % A.T)
    a('v_and_b32 v%d, 7, v1' % (A.T + 1))
    a('v_lshl_add_u32 v%d, v%d, 3, v%d' % (A.Dup, A.T, A.T + 1))
    a('v_lshlrev_b32 v%d, 4, v%d' % (A.Dup, A.Dup))
    a('v_cmp_gt_u32 vcc, 32, v1')
    a('v_cndmask_b32 v%d, 0, -1, vcc' % A.MLO)
    a('v_cndmask_b32 v%d, -1, 0, vcc' % A.MHI)
    a('v_cndmask_b32 v%d, 0, 1.0, vcc' % A.FLO)
    a('v_mov_b32 v%d, 0x%x' % (A.NEGV, NEG))
    a('v_and_b32 v%d, 15, v1' % (A.T + 1))
    a('v_lshlrev_b32 v%d, 2, v%d' % (A.T, A.T))
    for i in range(4):
        a('v_add_u32 v%d, %d, v%d' % (A.T + 2, i, A.T))
        a('v_cmp_le_u32 s[%d:%d], v%d, v%d' % (sMK + 2 * i, sMK + 2 * i + 1, A.T + 2, A.T + 1))
    a('s_mov_b32 s%d, 0x%x' % (sC, cfg['cbits']))

def attn_task(a, cfg, ld_flags='', st_flags=''):
    A = AV
    a('s_lshl_b32 s%d, s%d, 13' % (sT0, sTASK))
    a('s_add_u32 s%d, s%d, 0x%x' % (sT1, sT0, KF_OFF))
    a('s_add_u32 s%d, s%d, 0x%x' % (sT2, sT0, VF_OFF))
    if QF_OFF: a('s_add_u32 s%d, s%d, 0x%x' % (sT0, sT0, QF_OFF))
    def ld(r, n, va, so, off, fl=''):
        a('buffer_load_dword%s %s, v%d, s[%d:%d], s%d offen offset:%d%s' % ('x%d' % n, vr(r, n), va, sWS, sWS + 3, so, off, fl))
    for n in range(8): ld(A.Q + 4 * n, 4, A.L16 if n < 4 else A.L16B, sT0, (n & 3) * 1024)
    for n in range(8): ld(A.K + 4 * n, 4, A.L16 if n < 4 else A.L16B, sT1, (n & 3) * 1024)
    a('s_lshl_b32 s%d, s%d, 11' % (sT0, sTASK))
    a('s_add_u32 s%d, s%d, 0x%x' % (sT1, sT0, KM_OFF))
    a('s_add_u32 s%d, s%d, 0x%x' % (sT0, sT0, VM_OFF))
    for c in range(4): ld(A.KM + 4 * c, 4, A.Dup, sT1, c * 512, ld_flags)
    for n in range(8): ld(A.V + 4 * n, 4, A.L16 if n < 4 else A.L16B, sT2, (n & 3) * 1024)
    for j in range(4): ld(A.VM + 2 * j, 2, A.L8, sT0, j * 512, ld_flags)
    tiles = {(0, 0): A.S, (0, 2): A.S + 4, (1, 0): A.S + 8, (1, 1): A.S + 12, (1, 2): A.S + 16}
    a('s_waitcnt vmcnt(12)')
    for c in range(4):
        for (u, t), d in tiles.items():
            Aop = (A.K + 16 * t + 4 * c) if t < 2 else (A.KM + 4 * c)
            a('v_mfma_f32_16x16x32_bf16 %s, %s, %s, %s' % (vr(d, 4), vr(Aop, 4), vr(A.Q + 16 * u + 4 * c, 4), '0' if c == 0 else vr(d, 4)))
    a('s_lshr_b32 s%d, s%d, 5' % (sT0, sTASK))
    a('s_lshl_b32 s%d, s%d, 18' % (sT0, sT0))
    a('s_and_b32 s%d, s%d, 31' % (sT1, sTASK))
    a('s_lshl_b32 s%d, s%d, 12' % (sT1, sT1))
    a('s_add_u32 s%d, s%d, s%d' % (sT0, sT0, sT1))
    a('s_add_u32 s%d, s%d, 0x%x' % (sT0, sT0, OF_OFF))
    a('s_add_u32 s%d, s%d, 0x20000' % (sT1, sT0))
    for d in (tiles[(0, 0)], tiles[(1, 1)]):
        for i in range(4):
            a('v_cndmask_b32 v%d, v%d, v%d, s[%d:%d]' % (d + i, A.NEGV, d + i, sMK + 2 * i, sMK + 2 * i + 1))
    for u in range(2):
        regs = [tiles[k] + i for k in sorted(tiles) if k[0] == u for i in range(4)]
        m, t2 = A.T + 2 * u, A.T + 2 * u + 1
        a('v_max3_f32 v%d, v%d, v%d, v%d' % (m, regs[0], regs[1], regs[2]))
        k = 3
        while k + 1 < len(regs):
            a('v_max3_f32 v%d, v%d, v%d, v%d' % (m, m, regs[k], regs[k + 1])); k += 2
        if k < len(regs): a('v_max_f32 v%d, v%d, v%d' % (m, m, regs[k]))
    for sw in ('v_permlane16_swap_b32', 'v_permlane32_swap_b32'):
        for u in range(2): a('v_mov_b32 v%d, v%d' % (A.T + 2 * u + 1, A.T + 2 * u))
        for u in range(2): a('%s v%d, v%d' % (sw, A.T + 2 * u, A.T + 2 * u + 1))
        for u in range(2): a('v_max_f32 v%d, v%d, v%d' % (A.T + 2 * u, A.T + 2 * u, A.T + 2 * u + 1))
    for u in range(2): a('v_mul_f32 v%d, s%d, v%d' % (A.T + 2 * u, sC, A.T + 2 * u))
    for (u, t), d in tiles.items():
        for i in range(4): a('v_fma_f32 v%d, v%d, s%d, -v%d' % (d + i, d + i, sC, A.T + 2 * u))
    for (u, t), d in tiles.items():
        for i in range(4): a('v_exp_f32 v%d, v%d' % (d + i, d + i))
    for u in range(2):
        p = A.P + 10 * u
        d = tiles[(u, 0)]
        a('v_cvt_pk_bf16_f32 v%d, v%d, v%d' % (p, d, d + 1)); a('v_cvt_pk_bf16_f32 v%d, v%d, v%d' % (p + 1, d + 2, d + 3))
        if u == 0:
            a('v_mov_b32 v%d, 0' % (p + 2)); a('v_mov_b32 v%d, 0' % (p + 3))
        else:
            d = tiles[(1, 1)]
            a('v_cvt_pk_bf16_f32 v%d, v%d, v%d' % (p + 2, d, d + 1)); a('v_cvt_pk_bf16_f32 v%d, v%d, v%d' % (p + 3, d + 2, d + 3))
        d = tiles[(u, 2)]
        a('v_cvt_pk_bf16_f32 v%d, v%d, v%d' % (p + 4, d, d + 1)); a('v_cvt_pk_bf16_f32 v%d, v%d, v%d' % (p + 5, d + 2, d + 3))
        a('v_and_b32 v%d, v%d, v%d' % (p + 6, p + 4, A.MLO)); a('v_and_b32 v%d, v%d, v%d' % (p + 7, p + 5, A.MLO))
        a('v_and_b32 v%d, v%d, v%d' % (p + 8, p + 4, A.MHI)); a('v_and_b32 v%d, v%d, v%d' % (p + 9, p + 5, A.MHI))
    a('s_waitcnt vmcnt(0)')
    for u in range(2):
        sA, sB = A.T + 2 * u, A.T + 2 * u + 1
        d2 = tiles[(u, 2)]; d0 = tiles[(u, 0)]
        R.pk_add(a, d2, d2, d2 + 2); R.pk_add(a, d0, d0, d0 + 2)
        if u == 1:
            d1 = tiles[(1, 1)]
            R.pk_add(a, d1, d1, d1 + 2); R.pk_add(a, d0, d0, d1)
        a('v_add_f32 v%d, v%d, v%d' % (sB, d2, d2 + 1))
        a('v_add_f32 v%d, v%d, v%d' % (sA, d0, d0 + 1))
        a('v_fma_f32 v%d, v%d, v%d, v%d' % (sA, sB, A.FLO, sA))
    for u in range(2):
        p = A.P + 10 * u
        for et in range(8):
            o = A.O + 32 * u + 4 * et
            a('v_mfma_f32_16x16x32_bf16 %s, %s, %s, 0' % (vr(o, 4), vr(A.V + 4 * et, 4), vr(p, 4)))
            if u == 0 and et in (0, 3):
                sw = 'v_permlane16_swap_b32' if et == 0 else 'v_permlane32_swap_b32'
                for x in range(2): a('v_mov_b32 v%d, v%d' % (A.T + 2 * x + 1, A.T + 2 * x))
                for x in range(2): a('%s v%d, v%d' % (sw, A.T + 2 * x, A.T + 2 * x + 1))
                for x in range(2): a('v_add_f32 v%d, v%d, v%d' % (A.T + 2 * x, A.T + 2 * x, A.T + 2 * x + 1))
            if u == 0 and et == 6:
                for x in range(2):
                    a('v_rcp_f32 v%d, v%d' % (A.RC + 2 * x, A.T + 2 * x))
                for x in range(2):
                    a('v_mov_b32 v%d, v%d' % (A.RC + 2 * x + 1, A.RC + 2 * x))
        for et in range(8):
            o = A.O + 32 * u + 4 * et
            a('v_mfma_f32_16x16x16_bf16 %s, %s, %s, %s' % (vr(o, 4), vr(A.VM + 2 * (et >> 1), 2), vr(p + 6 + 2 * (et & 1), 2), vr(o, 4)))
    for u in range(2):
        for c in range(4):
            o = A.O + 32 * u + 8 * c
            for i in range(4):
                a('v_pk_mul_f32 v[%d:%d], v[%d:%d], v[%d:%d]' % (o + 2 * i, o + 2 * i + 1, o + 2 * i, o + 2 * i + 1, A.RC + 2 * u, A.RC + 2 * u + 1))
            for i in range(4):
                a('v_cvt_pk_bf16_f32 v%d, v%d, v%d' % (o + i, o + 2 * i, o + 2 * i + 1))
            a('buffer_store_dwordx4 %s, v%d, s[%d:%d], s%d offen offset:%d%s' % (vr(o, 4), A.L16, sWS, sWS + 3, sT0 + u, c * 1024, st_flags))

def gen_attn_kernel(name, cfg):
    a = Asm()
    a.raw(kernel_header(name))
    a('s_cmp_ge_u32 s2, 512')
    a('s_cbranch_scc1 at_exit')
    build_srds(a, dict(ws=sWS))
    attn_consts(a, cfg)
    a('v_lshrrev_b32 v%d, 6, v0' % AV.T)
    a('v_readfirstlane_b32 s%d, v%d' % (sT0, AV.T))
    a('s_lshl_b32 s%d, s2, 2' % sTASK)
    a('s_add_u32 s%d, s%d, s%d' % (sTASK, sTASK, sT0))
    attn_task(a, cfg)
    a.label('at_exit')
    a('s_endpgm')
    return a.text()

sWO, sX, sOUT = 12, 16, 20
sI, sW, sTILE, sTEND, sTSTEP, sOO, sN, sIDX0, sIDX1 = 41, 42, 43, 44, 49, 50, 51, 52, 53
class OV:
    L, L16, L16B, XA, GA = 1, 2, 3, 4, 5
    T = 8
    TR = 12
    B = 16
    AC = 144
    XR = 152
    G = 160
    RD = 164
    E = 188
LDSO = 0

def wof(q, tau, p): return 64 * q + (tau * 8 + p) * 4

def out_load_weights(a):
    O = OV
    a('v_lshrrev_b32 v%d, 2, v%d' % (O.T, O.L))
    a('v_and_b32 v%d, 3, v%d' % (O.T + 1, O.L))
    a('v_lshlrev_b32 v%d, 4, v%d' % (O.T + 1, O.T + 1))
    a('v_lshl_add_u32 v%d, v%d, 11, v%d' % (O.T + 3, O.T, O.T + 1))
    a('s_lshl_b32 s%d, s%d, 21' % (sT0, sW))
    a('s_lshl_b32 s%d, s%d, 6' % (sT1, sI))
    a('s_add_u32 s%d, s%d, s%d' % (sT0, sT0, sT1))
    for n in range(64):
        a('buffer_load_dwordx4 a[%d:%d], v%d, s[%d:%d], s%d offen' % (4 * n, 4 * n + 3, O.T + 3, sWO, sWO + 3, sT0))
        if n < 63: a('s_add_u32 s%d, s%d, 0x8000' % (sT0, sT0))
        if n == 31: pass
    a('s_lshl_b32 s%d, s%d, 14' % (sT0, sW))
    a('v_add_u32 v%d, s%d, v%d' % (O.TR, sT0, O.L16))
    a('v_lshrrev_b32 v%d, 4, v%d' % (O.T, O.L))
    a('v_bfe_u32 v%d, v%d, 2, 2' % (O.T + 1, O.L))
    a('v_and_b32 v%d, 3, v%d' % (O.T + 2, O.L))
    a('v_lshl_add_u32 v%d, v%d, 2, v%d' % (O.T + 3, O.T, O.T + 1))
    a('v_lshlrev_b32 v%d, 6, v%d' % (O.T + 3, O.T + 3))
    a('v_lshl_add_u32 v%d, v%d, 4, v%d' % (O.T + 3, O.T + 2, O.T + 3))
    a('v_add_u32 v%d, s%d, v%d' % (O.TR + 1, sT0, O.T + 3))
    for q in range(4):
        a('s_waitcnt vmcnt(%d)' % (48 - 16 * q))
        for n in range(16):
            a('ds_write_b128 v%d, a[%d:%d] offset:%d' % (O.TR, 64 * q + 4 * n, 64 * q + 4 * n + 3, n * 1024))
        a('s_waitcnt lgkmcnt(0)')
        for tau in range(2):
            for p in range(8):
                for half in range(2):
                    r = wof(q, tau, p) + 2 * half
                    a('ds_read_b64_tr_b16 a[%d:%d], v%d offset:%d' % (r, r + 1, O.TR + 1, (32 * p + 16 * half) * 64 + tau * 8))
        a('s_waitcnt lgkmcnt(0)')

def oloads(q, so, fl=''):
    O = OV
    return ['buffer_load_dwordx4 v[%d:%d], v%d, s[%d:%d], s%d offen offset:%d%s' % (O.B + 32 * q + 4 * p, O.B + 32 * q + 4 * p + 3, O.L16 if p < 4 else O.L16B, sWS, sWS + 3, so, (p & 3) * 1024, fl) for p in range(8)]

def epilogue(a, par, w_dyn=True):
    O = OV
    for wv in range(4):
        for tau in range(2):
            r = O.E + wv * 8 + tau * 4
            a('ds_read_b128 v[%d:%d], v%d offset:%d' % (r, r + 3, O.L16, LDSO + par * 8192 + wv * 2048 + tau * 1024))
    a('s_waitcnt lgkmcnt(0)')
    for x in range(0, 8, 2):
        R.pk_add(a, O.E + x, O.E + x, O.E + 8 + x); R.pk_add(a, O.E + 16 + x, O.E + 16 + x, O.E + 24 + x)
    for x in range(0, 8, 2):
        R.pk_add(a, O.E + x, O.E + x, O.E + 16 + x)
    for i in range(4): a('v_cvt_pk_bf16_f32 v%d, v%d, v%d' % (O.E + 8 + i, O.E + 2 * i, O.E + 2 * i + 1))
    for i in range(4):
        a('v_lshlrev_b32 v%d, 16, v%d' % (O.E + 2 * i, O.E + 8 + i))
        a('v_and_b32 v%d, 0xffff0000, v%d' % (O.E + 2 * i + 1, O.E + 8 + i))
    xr = O.XR + 4 * par; g = O.G + par
    a('s_waitcnt vmcnt(34)')
    for i in range(4):
        a('v_lshlrev_b32 v%d, 16, v%d' % (O.E + 16 + 2 * i, xr + i))
        a('v_and_b32 v%d, 0xffff0000, v%d' % (O.E + 17 + 2 * i, xr + i))
    a('s_sub_u32 s%d, s%d, s%d' % (sT0, sTILE, sTSTEP))
    Lskip = a.newlabel('nomod')
    a('s_lshr_b32 s%d, s%d, 4' % (sT1, sIDX0))
    a('s_lshr_b32 s%d, s%d, 4' % (sT2, sIDX1))
    a('s_cmp_eq_u32 s%d, s%d' % (sT1, sT0))
    a('s_cselect_b32 s%d, 1, 0' % sT3)
    a('s_cmp_eq_u32 s%d, s%d' % (sT2, sT0))
    a('s_cselect_b32 s%d, 1, s%d' % (sT3, sT3))
    a('s_cmp_eq_u32 s%d, 0' % sT3)
    a.branch('s_cbranch_scc1 %s' % Lskip)
    a('v_and_b32 v%d, 15, v%d' % (O.E + 24, O.L))
    a('s_lshl_b32 s%d, s%d, 4' % (sT1, sT0))
    a('v_add_u32 v%d, s%d, v%d' % (O.E + 24, sT1, O.E + 24))
    a('v_lshrrev_b32 v%d, 4, v%d' % (O.E + 25, O.L))
    a('v_lshlrev_b32 v%d, 5, v%d' % (O.E + 25, O.E + 25))
    for c in range(2):
        Lc = a.newlabel('modc')
        a('v_cmp_eq_u32 vcc, s%d, v%d' % (sIDX0 + c, O.E + 24))
        a('s_and_saveexec_b64 s[90:91], vcc')
        a.branch('s_cbranch_execz %s' % Lc)
        a('s_lshl_b32 s%d, s%d, 7' % (sT1, sI))
        a('s_add_u32 s%d, s%d, 0x%x' % (sT1, sT1, YP_OFF + c * 4096))
        for i in range(8): a('v_mov_b32 v%d, 0' % (O.RD + 16 + i))
        for sp in range(7):
            a('buffer_load_dwordx4 v[%d:%d], v%d, s[%d:%d], s%d offen sc1' % (O.RD, O.RD + 3, O.E + 25, sWS, sWS + 3, sT1))
            a('buffer_load_dwordx4 v[%d:%d], v%d, s[%d:%d], s%d offen offset:16 sc1' % (O.RD + 4, O.RD + 7, O.E + 25, sWS, sWS + 3, sT1))
            a('s_add_u32 s%d, s%d, 8192' % (sT1, sT1))
            a('s_waitcnt vmcnt(0)')
            for x in range(0, 8, 2): R.pk_add(a, O.RD + 16 + x, O.RD + 16 + x, O.RD + x)
        a('s_mov_b32 s%d, 0x%x' % (sT1, IDX_OFF + 8 + 4 * c))
        a('v_mov_b32 v%d, 0' % (O.RD + 8))
        a('buffer_load_dword v%d, v%d, s[%d:%d], s%d offen sc1' % (O.RD + 9, O.RD + 8, sWS, sWS + 3, sT1))
        def rnd(base):
            for i in range(4):
                a('v_cvt_pk_bf16_f32 v%d, v%d, v%d' % (O.RD + i, base + 2 * i, base + 2 * i + 1))
            for i in range(4):
                a('v_lshlrev_b32 v%d, 16, v%d' % (base + 2 * i, O.RD + i))
                a('v_and_b32 v%d, 0xffff0000, v%d' % (base + 2 * i + 1, O.RD + i))
        rnd(O.RD + 16)
        a('s_waitcnt vmcnt(0)')
        for i in range(8): a('v_mul_f32 v%d, v%d, v%d' % (O.RD + 16 + i, O.RD + 16 + i, O.RD + 9))
        rnd(O.RD + 16)
        for i in range(8): a('v_add_f32 v%d, v%d, v%d' % (O.E + 16 + i, O.E + 16 + i, O.RD + 16 + i))
        rnd(O.E + 16)
        a.label(Lc)
        a('s_mov_b64 exec, s[90:91]')
    a.label(Lskip)
    a('v_sub_f32 v%d, 1.0, v%d' % (O.E + 24, g))
    a('v_cvt_pk_bf16_f32 v%d, v%d, v%d' % (O.E + 24, O.E + 24, O.E + 24))
    a('v_and_b32 v%d, 0xffff0000, v%d' % (O.E + 24, O.E + 24))
    for i in range(8): a('v_mul_f32 v%d, v%d, v%d' % (O.E + 16 + i, O.E + 16 + i, O.E + 24))
    for i in range(8): a('v_fma_f32 v%d, v%d, v%d, v%d' % (O.E + i, O.E + i, g, O.E + 16 + i))
    for i in range(4): a('v_cvt_pk_bf16_f32 v%d, v%d, v%d' % (O.E + 8 + i, O.E + 2 * i, O.E + 2 * i + 1))
    a('s_lshl_b32 s%d, s%d, 15' % (sT0, sT0))
    a('s_lshl_b32 s%d, s%d, 6' % (sT1, sI))
    a('s_add_u32 s%d, s%d, s%d' % (sT0, sT0, sT1))
    a('buffer_store_dwordx4 v[%d:%d], v%d, s[%d:%d], s%d offen' % (O.E + 8, O.E + 11, O.XA, sOUT, sOUT + 3, sT0))

def tile_body(a, par, cfg):
    O = OV
    a('s_lshl_b32 s%d, s%d, 15' % (sT0, sTILE))
    a('s_lshl_b32 s%d, s%d, 6' % (sT1, sI))
    a('s_add_u32 s%d, s%d, s%d' % (sT0, sT0, sT1))
    a('buffer_load_dwordx4 v[%d:%d], v%d, s[%d:%d], s%d offen' % (O.XR + 4 * par, O.XR + 4 * par + 3, O.XA, sX, sX + 3, sT0))
    a('s_lshl_b32 s%d, s%d, 6' % (sT0, sTILE))
    a('s_add_u32 s%d, s%d, 0x%x' % (sT0, sT0, GL_OFF))
    a('buffer_load_dword v%d, v%d, s[%d:%d], s%d offen' % (O.G + par, O.GA, sWS, sWS + 3, sT0))
    Ls = a.newlabel('noepi')
    a('s_cmp_eq_u32 s%d, 0' % sN)
    a('s_cbranch_scc1 %s' % Ls)
    a('s_and_b32 s%d, s%d, 3' % (sT0, sN))
    a('s_cmp_lg_u32 s%d, s%d' % (sT0, sW))
    a.branch('s_cbranch_scc1 %s' % Ls)
    epilogue(a, 1 - par)
    a.label(Ls)
    a('s_lshl_b32 s%d, s%d, 17' % (sT3, sTSTEP))
    a('s_add_u32 s%d, s%d, s%d' % (sOO, sOO, sT3))
    for q in range(4):
        a('s_waitcnt vmcnt(26)')
        for p in range(8):
            for tau in range(2):
                c = '0' if (q == 0 and p == 0) else vr(O.AC + 4 * tau, 4)
                a('v_mfma_f32_16x16x32_bf16 %s, %s, %s, %s' % (vr(O.AC + 4 * tau, 4), ar(wof(q, tau, p), 4), vr(O.B + 32 * q + 4 * p, 4), c))
        a('s_add_u32 s%d, s%d, %d' % (sT0, sOO, q * 8192))
        for x in oloads(q, sT0): a(x)
    a('s_lshl_b32 s%d, s%d, 11' % (sT0, sW))
    a('v_add_u32 v%d, s%d, v%d' % (O.T, sT0, O.L16))
    for tau in range(2):
        a('ds_write_b128 v%d, v[%d:%d] offset:%d' % (O.T, O.AC + 4 * tau, O.AC + 4 * tau + 3, LDSO + par * 8192 + tau * 1024))
    a('s_waitcnt lgkmcnt(0)')
    a('s_barrier')
    a('s_add_u32 s%d, s%d, s%d' % (sTILE, sTILE, sTSTEP))
    a('s_add_u32 s%d, s%d, 1' % (sN, sN))

def gen_out_kernel(name, cfg):
    O = OV
    a = Asm()
    a.raw(kernel_header(name))
    a('s_cmp_ge_u32 s2, 256')
    a('s_cbranch_scc1 out_exit')
    build_srds(a, dict(ws=sWS, wo=sWO, x=sX, out=sOUT))
    a('v_and_b32 v%d, 63, v0' % O.L)
    a('v_lshlrev_b32 v%d, 4, v%d' % (O.L16, O.L))
    a('v_add_u32 v%d, 0x1000, v%d' % (O.L16B, O.L16))
    a('v_lshrrev_b32 v%d, 6, v0' % O.T)
    a('v_readfirstlane_b32 s%d, v%d' % (sW, O.T))
    a('v_and_b32 v%d, 15, v%d' % (O.T, O.L))
    a('v_lshlrev_b32 v%d, 2, v%d' % (O.GA, O.T))
    a('v_lshrrev_b32 v%d, 4, v%d' % (O.T + 1, O.L))
    a('v_lshlrev_b32 v%d, 4, v%d' % (O.T + 1, O.T + 1))
    a('v_lshl_add_u32 v%d, v%d, 11, v%d' % (O.XA, O.T, O.T + 1))
    a('s_lshr_b32 s%d, s2, 3' % sI)
    a('s_and_b32 s%d, s2, 7' % sTILE)
    a('s_mov_b32 s%d, 8' % sTSTEP)
    a('s_mov_b32 s%d, 0' % sN)
    a('v_mov_b32 v%d, 0' % O.T)
    a('s_mov_b32 s%d, 0x%x' % (sT0, IDX_OFF))
    a('buffer_load_dwordx2 v[%d:%d], v%d, s[%d:%d], s%d offen' % (O.E, O.E + 1, O.T, sWS, sWS + 3, sT0))
    a('s_waitcnt vmcnt(0)')
    a('v_readfirstlane_b32 s%d, v%d' % (sIDX0, O.E))
    a('v_readfirstlane_b32 s%d, v%d' % (sIDX1, O.E + 1))
    out_load_weights(a)
    a('s_barrier')
    a('s_lshl_b32 s%d, s%d, 17' % (sOO, sTILE))
    a('s_lshl_b32 s%d, s%d, 15' % (sT0, sW))
    a('s_add_u32 s%d, s%d, s%d' % (sOO, sOO, sT0))
    a('s_add_u32 s%d, s%d, 0x%x' % (sOO, sOO, OF_OFF))
    for q in range(4):
        a('s_add_u32 s%d, s%d, %d' % (sT0, sOO, q * 8192))
        for x in oloads(q, sT0): a(x)
    a.label('out_loop')
    tile_body(a, 0, cfg)
    tile_body(a, 1, cfg)
    a('s_cmp_lt_u32 s%d, 16' % sN)
    a.branch('s_cbranch_scc1 out_loop')
    a('s_cmp_lg_u32 s%d, 0' % sW)
    a.branch('s_cbranch_scc1 out_exit')
    a('s_waitcnt vmcnt(0)')
    epilogue(a, 1)
    a.label('out_exit')
    a('s_endpgm')
    return a.text()
```

```python
from common import *
import rrole as R
sWS, sWG, sWU, sWD, sX = 8, 12, 16, 20, 24
sW, sB, sT0, sT1, sT2, sT3, sK0, sK1 = 42, 41, 45, 46, 47, 48, 52, 53
vL, vL16, vT = 1, 2, 8
vW = 32
vXS = 160
vAC = 192
vR = 208

def wave_allreduce_max_u32(a, v, t):
    for sh in (1, 2, 4, 8):
        a('v_max_u32_dpp v%d, v%d, v%d row_ror:%d row_mask:0xf bank_mask:0xf' % (v, v, v, sh))
    for sw in ('v_permlane16_swap_b32', 'v_permlane32_swap_b32'):
        a('v_mov_b32 v%d, v%d' % (t, v))
        a('%s v%d, v%d' % (sw, v, t))
        a('v_max_u32 v%d, v%d, v%d' % (v, v, t))

def top2(a, lds0, fl=''):
    k = 16
    a('v_lshlrev_b32 v%d, 5, v0' % vT)
    a('s_mov_b32 s%d, 0x%x' % (sT0, RR_OFF))
    a('buffer_load_dwordx4 v[%d:%d], v%d, s[%d:%d], s%d offen%s' % (k, k + 3, vT, sWS, sWS + 3, sT0, fl))
    a('buffer_load_dwordx4 v[%d:%d], v%d, s[%d:%d], s%d offen offset:16%s' % (k + 4, k + 7, vT, sWS, sWS + 3, sT0, fl))
    a('v_lshlrev_b32 v%d, 3, v0' % (vT + 1))
    a('v_sub_u32 v%d, 0xffff, v%d' % (vT + 1, vT + 1))
    a('s_waitcnt vmcnt(0)')
    for i in range(8):
        r = k + i
        a('v_ashrrev_i32 v%d, 31, v%d' % (vT + 2, r))
        a('v_or_b32 v%d, 0x80000000, v%d' % (vT + 2, vT + 2))
        a('v_cmp_u_f32 vcc, v%d, v%d' % (r, r))
        a('v_xor_b32 v%d, v%d, v%d' % (r, r, vT + 2))
        a('v_cndmask_b32 v%d, v%d, 0, vcc' % (r, r))
        a('v_and_b32 v%d, 0xffff0000, v%d' % (r, r))
        a('v_subrev_u32 v%d, %d, v%d' % (vT + 3, i, vT + 1))
        a('v_or_b32 v%d, v%d, v%d' % (r, r, vT + 3))
    a('s_lshl_b32 s%d, s%d, 2' % (sT1, sW))
    a('s_add_u32 s%d, s%d, %d' % (sT1, sT1, lds0))
    a('v_mov_b32 v%d, s%d' % (vT + 4, sT1))
    a('v_mov_b32 v%d, %d' % (vT + 5, lds0))
    for rnd in range(2):
        m = 24
        a('v_max3_u32 v%d, v%d, v%d, v%d' % (m, k, k + 1, k + 2))
        a('v_max3_u32 v%d, v%d, v%d, v%d' % (m, m, k + 3, k + 4))
        a('v_max3_u32 v%d, v%d, v%d, v%d' % (m, m, k + 5, k + 6))
        a('v_max_u32 v%d, v%d, v%d' % (m, m, k + 7))
        wave_allreduce_max_u32(a, m, 25)
        a('ds_write_b32 v%d, v%d offset:%d' % (vT + 4, m, rnd * 16))
        a('s_waitcnt lgkmcnt(0)')
        a('s_barrier')
        a('ds_read_b128 v[%d:%d], v%d offset:%d' % (28, 31, vT + 5, rnd * 16))
        a('s_waitcnt lgkmcnt(0)')
        a('v_max3_u32 v%d, v28, v29, v30' % m)
        a('v_max_u32 v%d, v%d, v31' % (m, m))
        a('v_readfirstlane_b32 s%d, v%d' % (sK0 + rnd, m))
        if rnd == 0:
            for i in range(8):
                a('v_cmp_eq_u32 vcc, v%d, v%d' % (k + i, m))
                a('v_cndmask_b32 v%d, v%d, 0, vcc' % (k + i, k + i))

def tr_addrs(a, lds_per_wave_shift, lds0):
    a('s_lshl_b32 s%d, s%d, %d' % (sT0, sW, lds_per_wave_shift))
    if lds0: a('s_add_u32 s%d, s%d, %d' % (sT0, sT0, lds0))
    a('v_add_u32 v%d, s%d, v%d' % (vT + 6, sT0, vL16))
    a('v_lshrrev_b32 v%d, 4, v%d' % (vT, vL))
    a('v_bfe_u32 v%d, v%d, 2, 2' % (vT + 1, vL))
    a('v_and_b32 v%d, 3, v%d' % (vT + 2, vL))
    a('v_lshl_add_u32 v%d, v%d, 4, v%d' % (vT + 3, vT, vT + 1))
    a('v_lshlrev_b32 v%d, 6, v%d' % (vT + 3, vT + 3))
    a('v_lshl_add_u32 v%d, v%d, 3, v%d' % (vT + 3, vT + 2, vT + 3))
    a('v_add_u32 v%d, s%d, v%d' % (vT + 7, sT0, vT + 3))

def transpose(a, base, nT):
    for n in range(4 * nT):
        a('ds_write_b128 v%d, v[%d:%d] offset:%d' % (vT + 6, base + 4 * n, base + 4 * n + 3, n * 1024))
    a('s_waitcnt lgkmcnt(0)')
    for tau in range(2):
        for T in range(nT):
            for b in range(2):
                for half in range(2):
                    r = base + ((tau * nT + T) * 2 + b) * 4 + 2 * half
                    a('ds_read_b64_tr_b16 v[%d:%d], v%d offset:%d' % (r, r + 1, vT + 7, (64 * T + 8 * b + 4 * half) * 64 + tau * 32))
    a('s_waitcnt lgkmcnt(0)')

def mod1_body(a, cfg, fl='', sfl=''):
    LT = 65536
    a('v_and_b32 v%d, 63, v0' % vL)
    a('v_lshlrev_b32 v%d, 4, v%d' % (vL16, vL))
    a('v_lshrrev_b32 v%d, 2, v%d' % (vT, vL))
    a('v_mul_u32_u24 v%d, 7168, v%d' % (vT, vT))
    a('v_and_b32 v%d, 3, v%d' % (vT + 1, vL))
    a('v_lshl_add_u32 v%d, v%d, 4, v%d' % (3, vT + 1, vT))
    a('s_mul_i32 s%d, s%d, %d' % (sT0, sW, 256 * 7168))
    a('s_lshl_b32 s%d, s%d, 6' % (sT1, sB))
    a('s_add_u32 s%d, s%d, s%d' % (sT0, sT0, sT1))
    for n in range(16):
        for M, srd in enumerate((sWG, sWU)):
            a('buffer_load_dwordx4 v[%d:%d], v3, s[%d:%d], s%d offen' % (vW + 64 * M + 4 * n, vW + 64 * M + 4 * n + 3, srd, srd + 3, sT0))
        a('s_add_u32 s%d, s%d, %d' % (sT0, sT0, 16 * 7168))
    top2(a, LT, fl)
    for c in range(2):
        a('s_and_b32 s%d, s%d, 0xffff' % (sT0 + c, sK0 + c))
        a('s_sub_u32 s%d, 0xffff, s%d' % (sT0 + c, sT0 + c))
    a('v_and_b32 v%d, 1, v%d' % (vT, vL))
    a('v_cmp_eq_u32 vcc, 1, v%d' % vT)
    a('v_mov_b32 v%d, s%d' % (vT + 1, sT0))
    a('v_mov_b32 v%d, s%d' % (vT + 2, sT1))
    a('v_cndmask_b32 v%d, v%d, v%d, vcc' % (vT + 1, vT + 1, vT + 2))
    a('v_lshrrev_b32 v%d, 4, v%d' % (vT + 2, vL))
    a('v_lshlrev_b32 v%d, 5, v%d' % (vT + 2, vT + 2))
    a('v_lshl_add_u32 v%d, v%d, 11, v%d' % (4, vT + 1, vT + 2))
    a('s_lshl_b32 s%d, s%d, 9' % (sT2, sW))
    for n in range(8):
        a('buffer_load_dwordx4 v[%d:%d], v4, s[%d:%d], s%d offen offset:%d' % (vXS + 4 * n, vXS + 4 * n + 3, sX, sX + 3, sT2, (n >> 1) * 128 + (n & 1) * 16))
    Ln = a.newlabel('m1np')
    a('s_or_b32 s%d, s%d, s%d' % (sT2, sB, sW))
    a('s_cmp_lg_u32 s%d, 0' % sT2)
    a.branch('s_cbranch_scc1 %s' % Ln)
    a('v_mov_b32 v16, s%d' % sT0); a('v_mov_b32 v17, s%d' % sT1)
    for c in range(2):
        a('s_and_b32 s%d, s%d, 0xffff0000' % (sT2, sK0 + c))
        a('s_xor_b32 s%d, s%d, 0x80000000' % (sT3, sT2))
        a('s_not_b32 s%d, s%d' % (sT2, sT2))
        a('s_and_b32 s%d, s%d, 0xffff0000' % (sT2, sT2))
        a('s_bitcmp1_b32 s%d, 31' % (sK0 + c))
        a('s_cselect_b32 s%d, s%d, s%d' % (sT2, sT3, sT2))
        a('v_mov_b32 v%d, s%d' % (18 + c, sT2))
        a('v_mul_f32 v%d, 0xbfb8aa3b, v%d' % (18 + c, 18 + c))
        a('v_exp_f32 v%d, v%d' % (18 + c, 18 + c))
        a('v_add_f32 v%d, 1.0, v%d' % (18 + c, 18 + c))
        a('v_rcp_f32 v%d, v%d' % (18 + c, 18 + c))
        a('v_cvt_pk_bf16_f32 v%d, v%d, v%d' % (18 + c, 18 + c, 18 + c))
        a('v_lshlrev_b32 v%d, 16, v%d' % (18 + c, 18 + c))
    a('v_mov_b32 v20, 0')
    a('s_mov_b32 s%d, 0x%x' % (sT2, IDX_OFF))
    a('s_mov_b64 exec, 1')
    a('buffer_store_dwordx4 v[16:19], v20, s[%d:%d], s%d offen%s' % (sWS, sWS + 3, sT2, sfl))
    a('s_mov_b64 exec, -1')
    a.label(Ln)
    tr_addrs(a, 14, 0)
    a('s_waitcnt vmcnt(0)')
    for M in range(2): transpose(a, vW + 64 * M, 4)
    for M in range(2):
        for tau in range(2):
            d = vAC + (M * 2 + tau) * 4
            for n in range(8):
                f = vW + 64 * M + (tau * 8 + n) * 4
                a('v_mfma_f32_16x16x32_bf16 %s, %s, %s, %s' % (vr(d, 4), vr(f, 4), vr(vXS + 4 * n, 4), '0' if n == 0 else vr(d, 4)))
    a('s_barrier')
    a('s_lshl_b32 s%d, s%d, 12' % (sT0, sW))
    a('v_add_u32 v%d, s%d, v%d' % (vT, sT0, vL16))
    for q in range(4): a('ds_write_b128 v%d, v[%d:%d] offset:%d' % (vT, vAC + 4 * q, vAC + 4 * q + 3, q * 1024))
    a('s_waitcnt lgkmcnt(0)')
    a('s_barrier')
    Ld = a.newlabel('m1done')
    a('s_cmp_gt_u32 s%d, 1' % sW)
    a.branch('s_cbranch_scc1 %s' % Ld)
    a('s_lshl_b32 s%d, s%d, 10' % (sT0, sW))
    a('v_add_u32 v%d, s%d, v%d' % (vT, sT0, vL16))
    for M in range(2):
        for wv in range(4):
            r = vW + (M * 4 + wv) * 4
            a('ds_read_b128 v[%d:%d], v%d offset:%d' % (r, r + 3, vT, wv * 4096 + M * 2048))
    a('s_waitcnt lgkmcnt(0)')
    for M in range(2):
        b0 = vW + M * 16
        for x in (0, 2):
            R.pk_add(a, b0 + x, b0 + x, b0 + 4 + x); R.pk_add(a, b0 + 8 + x, b0 + 8 + x, b0 + 12 + x)
        for x in (0, 2): R.pk_add(a, b0 + x, b0 + x, b0 + 8 + x)
    def rnd(base, t):
        a('v_cvt_pk_bf16_f32 v%d, v%d, v%d' % (t, base, base + 1)); a('v_cvt_pk_bf16_f32 v%d, v%d, v%d' % (t + 1, base + 2, base + 3))
        for i in range(2):
            a('v_lshlrev_b32 v%d, 16, v%d' % (base + 2 * i, t + i)); a('v_and_b32 v%d, 0xffff0000, v%d' % (base + 2 * i + 1, t + i))
    G, U = vW, vW + 16
    rnd(G, vR); rnd(U, vR + 2)
    for i in range(4):
        a('v_mul_f32 v%d, 0xbfb8aa3b, v%d' % (vR + 4 + i, G + i))
        a('v_exp_f32 v%d, v%d' % (vR + 4 + i, vR + 4 + i))
        a('v_add_f32 v%d, 1.0, v%d' % (vR + 4 + i, vR + 4 + i))
        a('v_rcp_f32 v%d, v%d' % (vR + 4 + i, vR + 4 + i))
        a('v_mul_f32 v%d, v%d, v%d' % (G + i, G + i, vR + 4 + i))
    rnd(G, vR)
    for i in range(4): a('v_mul_f32 v%d, v%d, v%d' % (G + i, G + i, U + i))
    a('v_cvt_pk_bf16_f32 v%d, v%d, v%d' % (vR, G, G + 1)); a('v_cvt_pk_bf16_f32 v%d, v%d, v%d' % (vR + 1, G + 2, G + 3))
    a('v_and_b32 v%d, 15, v%d' % (vT, vL))
    a('v_lshrrev_b32 v%d, 4, v%d' % (vT + 1, vL))
    a('v_mul_u32_u24 v%d, 7168, v%d' % (vT + 2, vT))
    a('v_lshl_add_u32 v%d, v%d, 3, v%d' % (vT + 2, vT + 1, vT + 2))
    a('s_lshl_b32 s%d, s%d, 6' % (sT0, sB))
    a('s_lshl_b32 s%d, s%d, 5' % (sT1, sW))
    a('s_add_u32 s%d, s%d, s%d' % (sT0, sT0, sT1))
    a('s_add_u32 s%d, s%d, 0x%x' % (sT0, sT0, HB_OFF))
    a('v_cmp_gt_u32 vcc, 2, v%d' % vT)
    a('s_mov_b64 exec, vcc')
    a('buffer_store_dwordx2 v[%d:%d], v%d, s[%d:%d], s%d offen%s' % (vR, vR + 1, vT + 2, sWS, sWS + 3, sT0, sfl))
    a('s_mov_b64 exec, -1')
    a.label(Ld)

def mod2_body(a, cfg, fl='', sfl=''):
    a('v_and_b32 v%d, 63, v0' % vL)
    a('v_lshlrev_b32 v%d, 4, v%d' % (vL16, vL))
    a('v_lshrrev_b32 v%d, 2, v%d' % (vT, vL))
    a('v_and_b32 v%d, 3, v%d' % (vT + 1, vL))
    a('v_lshlrev_b32 v%d, 4, v%d' % (vT + 1, vT + 1))
    a('v_lshl_add_u32 v3, v%d, 11, v%d' % (vT, vT + 1))
    a('s_lshr_b32 s%d, s%d, 5' % (sT2, sB))
    a('s_lshl_b32 s%d, s%d, 2' % (sT0, sT2))
    a('s_add_u32 s%d, s%d, s%d' % (sT3, sT0, sW))
    a('s_lshl_b32 s%d, s%d, 18' % (sT0, sT3))
    a('s_and_b32 s%d, s%d, 31' % (sT1, sB))
    a('s_lshl_b32 s%d, s%d, 6' % (sT1, sT1))
    a('s_add_u32 s%d, s%d, s%d' % (sT0, sT0, sT1))
    for n in range(8):
        a('buffer_load_dwordx4 v[%d:%d], v3, s[%d:%d], s%d offen' % (vW + 4 * n, vW + 4 * n + 3, sWD, sWD + 3, sT0))
        a('s_add_u32 s%d, s%d, 0x8000' % (sT0, sT0))
    a('v_and_b32 v%d, 1, v%d' % (vT, vL))
    a('v_mul_u32_u24 v%d, 7168, v%d' % (vT, vT))
    a('v_lshrrev_b32 v%d, 4, v%d' % (vT + 1, vL))
    a('v_lshl_add_u32 v4, v%d, 5, v%d' % (vT + 1, vT))
    a('s_lshl_b32 s%d, s%d, 8' % (sT0, sT3))
    a('s_add_u32 s%d, s%d, 0x%x' % (sT0, sT0, HB_OFF))
    for n in range(4):
        a('buffer_load_dwordx4 v[%d:%d], v4, s[%d:%d], s%d offen offset:%d%s' % (vXS + 4 * n, vXS + 4 * n + 3, sWS, sWS + 3, sT0, (n >> 1) * 128 + (n & 1) * 16, fl))
    tr_addrs(a, 13, 0)
    a('s_waitcnt vmcnt(0)')
    transpose(a, vW, 2)
    for tau in range(2):
        d = vAC + tau * 4
        for n in range(4):
            a('v_mfma_f32_16x16x32_bf16 %s, %s, %s, %s' % (vr(d, 4), vr(vW + (tau * 4 + n) * 4, 4), vr(vXS + 4 * n, 4), '0' if n == 0 else vr(d, 4)))
    a('s_lshl_b32 s%d, s%d, 11' % (sT0, sW))
    a('v_add_u32 v%d, s%d, v%d' % (vT, sT0, vL16))
    for q in range(2): a('ds_write_b128 v%d, v[%d:%d] offset:%d' % (vT, vAC + 4 * q, vAC + 4 * q + 3, 32768 + q * 1024))
    a('s_waitcnt lgkmcnt(0)')
    a('s_barrier')
    Ld = a.newlabel('m2done')
    a('s_cmp_gt_u32 s%d, 1' % sW)
    a.branch('s_cbranch_scc1 %s' % Ld)
    a('s_lshl_b32 s%d, s%d, 10' % (sT0, sW))
    a('v_add_u32 v%d, s%d, v%d' % (vT, sT0, vL16))
    for wv in range(4):
        a('ds_read_b128 v[%d:%d], v%d offset:%d' % (vW + 4 * wv, vW + 4 * wv + 3, vT, 32768 + wv * 2048))
    a('s_waitcnt lgkmcnt(0)')
    for x in (0, 2):
        R.pk_add(a, vW + x, vW + x, vW + 4 + x); R.pk_add(a, vW + 8 + x, vW + 8 + x, vW + 12 + x)
    for x in (0, 2): R.pk_add(a, vW + x, vW + x, vW + 8 + x)
    a('v_and_b32 v%d, 15, v%d' % (vT, vL))
    a('v_lshrrev_b32 v%d, 4, v%d' % (vT + 1, vL))
    a('v_lshlrev_b32 v%d, 12, v%d' % (vT + 2, vT))
    a('v_lshl_add_u32 v%d, v%d, 4, v%d' % (vT + 2, vT + 1, vT + 2))
    a('s_lshl_b32 s%d, s%d, 13' % (sT0, sT2))
    a('s_and_b32 s%d, s%d, 31' % (sT1, sB))
    a('s_lshl_b32 s%d, s%d, 7' % (sT1, sT1))
    a('s_add_u32 s%d, s%d, s%d' % (sT0, sT0, sT1))
    a('s_lshl_b32 s%d, s%d, 6' % (sT1, sW))
    a('s_add_u32 s%d, s%d, s%d' % (sT0, sT0, sT1))
    a('s_add_u32 s%d, s%d, 0x%x' % (sT0, sT0, YP_OFF))
    a('v_cmp_gt_u32 vcc, 2, v%d' % vT)
    a('s_mov_b64 exec, vcc')
    a('buffer_store_dwordx4 v[%d:%d], v%d, s[%d:%d], s%d offen%s' % (vW, vW + 3, vT + 2, sWS, sWS + 3, sT0, sfl))
    a('s_mov_b64 exec, -1')
    a.label(Ld)

def gen_mod_kernel(name, cfg, which):
    a = Asm()
    a.raw(kernel_header(name))
    a('s_cmp_ge_u32 s2, %d' % (112 if which == 1 else 224))
    a('s_cbranch_scc1 %s_exit' % name)
    build_srds(a, dict(ws=sWS, wg=sWG, wu=sWU, wd=sWD, x=sX))
    a('v_lshrrev_b32 v1, 6, v0')
    a('v_readfirstlane_b32 s%d, v1' % sW)
    a('s_mov_b32 s%d, s2' % sB)
    (mod1_body if which == 1 else mod2_body)(a, cfg)
    a.label('%s_exit' % name)
    a('s_endpgm')
    return a.text()
```

```python
from common import *
sWS, sX, sGW, sWR = 8, 12, 16, 20
sW, sC, sT0, sT1 = 40, 41, 45, 46
LOG2E = 0x3fb8aa3b

def pre_body(a, cfg, sc1=False, lds0=0):
    vL, vL16, vXA, vWA, vT = 1, 2, 3, 4, 6
    vX, vA, vD = 16, 48, 80
    a('v_and_b32 v%d, 63, v0' % vL)
    a('v_lshlrev_b32 v%d, 4, v%d' % (vL16, vL))
    a('v_and_b32 v%d, 15, v%d' % (vT, vL))
    a('v_lshrrev_b32 v%d, 4, v%d' % (vT + 1, vL))
    a('v_lshlrev_b32 v%d, 5, v%d' % (vWA, vT + 1))
    a('v_lshl_add_u32 v%d, v%d, 11, v%d' % (vXA, vT, vWA))
    a('s_lshl_b32 s%d, s%d, 15' % (sT0, sC))
    a('s_lshl_b32 s%d, s%d, 9' % (sT1, sW))
    a('s_add_u32 s%d, s%d, s%d' % (sT0, sT0, sT1))
    for n in range(8):
        a('buffer_load_dwordx4 v[%d:%d], v%d, s[%d:%d], s%d offen offset:%d' % (vX + 4 * n, vX + 4 * n + 3, vXA, sX, sX + 3, sT0, (n >> 1) * 128 + (n & 1) * 16))
    for i in range(32): a('v_mov_b32 v%d, 0' % (vA + i))
    a('v_cmp_eq_u32 vcc, 0, v%d' % vT)
    a('s_mov_b64 exec, vcc')
    for n in range(8):
        a('buffer_load_dwordx4 v[%d:%d], v%d, s[%d:%d], s%d offen offset:%d' % (vA + 4 * n, vA + 4 * n + 3, vWA, sGW, sGW + 3, sT1, (n >> 1) * 128 + (n & 1) * 16))
    a('s_mov_b64 exec, -1')
    a('v_cmp_eq_u32 vcc, 1, v%d' % vT)
    a('s_mov_b64 exec, vcc')
    for n in range(8):
        a('buffer_load_dwordx4 v[%d:%d], v%d, s[%d:%d], s%d offen offset:%d' % (vA + 4 * n, vA + 4 * n + 3, vWA, sWR, sWR + 3, sT1, (n >> 1) * 128 + (n & 1) * 16))
    a('s_mov_b64 exec, -1')
    a('s_lshl_b32 s%d, s%d, 15' % (sT0, sC))
    a('s_lshl_b32 s%d, s%d, 13' % (sT1, sW))
    a('s_add_u32 s%d, s%d, s%d' % (sT0, sT0, sT1))
    a('s_add_u32 s%d, s%d, 0x%x' % (sT0, sT0, XF_OFF))
    a('s_add_u32 s%d, s%d, 4096' % (sT1, sT0))
    a('s_waitcnt vmcnt(16)')
    for n in range(8):
        a('buffer_store_dwordx4 v[%d:%d], v%d, s[%d:%d], s%d offen offset:%d%s' % (vX + 4 * n, vX + 4 * n + 3, vL16, sWS, sWS + 3, sT0 if n < 4 else sT1, (n & 3) * 1024, ' sc1' if sc1 else ''))
    a('s_waitcnt vmcnt(8)')
    for n in range(8):
        a('v_mfma_f32_16x16x32_bf16 v[%d:%d], v[%d:%d], v[%d:%d], %s' % (vD, vD + 3, vA + 4 * n, vA + 4 * n + 3, vX + 4 * n, vX + 4 * n + 3, '0' if n == 0 else vr(vD, 4)))
    a('s_lshl_b32 s%d, s%d, 7' % (sT1, sW))
    a('v_lshlrev_b32 v%d, 3, v%d' % (vT + 2, vL))
    a('v_add_u32 v%d, s%d, v%d' % (vT + 3, sT1, vT + 2))
    a('s_mov_b64 exec, 0xffff')
    a('ds_write_b64 v%d, v[%d:%d] offset:%d' % (vT + 3, vD, vD + 1, lds0))
    a('s_waitcnt lgkmcnt(0)')
    a('s_mov_b64 exec, -1')
    a('s_barrier')
    Ld = a.newlabel('pre_done')
    a('s_cmp_lg_u32 s%d, 0' % sW)
    a.branch('s_cbranch_scc1 %s' % Ld)
    a('s_mov_b64 exec, 0xffff')
    for w in range(4):
        a('ds_read_b64 v[%d:%d], v%d offset:%d' % (vD + 2 * w, vD + 2 * w + 1, vT + 2, lds0 + w * 128))
    a('s_waitcnt lgkmcnt(0)')
    a('v_pk_add_f32 v[%d:%d], v[%d:%d], v[%d:%d]' % (vD, vD + 1, vD, vD + 1, vD + 2, vD + 3))
    a('v_pk_add_f32 v[%d:%d], v[%d:%d], v[%d:%d]' % (vD + 4, vD + 5, vD + 4, vD + 5, vD + 6, vD + 7))
    a('v_pk_add_f32 v[%d:%d], v[%d:%d], v[%d:%d]' % (vD, vD + 1, vD, vD + 1, vD + 4, vD + 5))
    a('v_cvt_pk_bf16_f32 v%d, v%d, v%d' % (vD + 2, vD, vD + 1))
    a('v_lshlrev_b32 v%d, 16, v%d' % (vD, vD + 2))
    a('v_and_b32 v%d, 0xffff0000, v%d' % (vD + 1, vD + 2))
    a('v_mul_f32 v%d, 0xbfb8aa3b, v%d' % (vD, vD))
    a('v_exp_f32 v%d, v%d' % (vD, vD))
    a('v_add_f32 v%d, 1.0, v%d' % (vD, vD))
    a('v_rcp_f32 v%d, v%d' % (vD, vD))
    a('v_cvt_pk_bf16_f32 v%d, v%d, v%d' % (vD, vD, vD))
    a('v_lshlrev_b32 v%d, 16, v%d' % (vD, vD))
    a('s_lshl_b32 s%d, s%d, 6' % (sT0, sC))
    a('s_add_u32 s%d, s%d, 0x%x' % (sT0, sT0, GL_OFF))
    a('s_add_u32 s%d, s%d, 8192' % (sT1, sT0))
    a('v_lshlrev_b32 v%d, 2, v%d' % (vT + 2, vL))
    a('buffer_store_dword v%d, v%d, s[%d:%d], s%d offen%s' % (vD, vT + 2, sWS, sWS + 3, sT0, ' sc1' if sc1 else ''))
    a('buffer_store_dword v%d, v%d, s[%d:%d], s%d offen%s' % (vD + 1, vT + 2, sWS, sWS + 3, sT1, ' sc1' if sc1 else ''))
    a('s_mov_b64 exec, -1')
    a.label(Ld)

def gen_pre_kernel(name, cfg):
    a = Asm()
    a.raw(kernel_header(name))
    a('s_cmp_ge_u32 s2, 128')
    a('s_cbranch_scc1 pre_exit')
    build_srds(a, dict(ws=sWS, x=sX, gw=sGW, wr=sWR))
    a('v_lshrrev_b32 v1, 6, v0')
    a('v_readfirstlane_b32 s%d, v1' % sW)
    a('s_mov_b32 s%d, s2' % sC)
    pre_body(a, cfg)
    a.label('pre_exit')
    a('s_endpgm')
    return a.text()
```

```python
from common import *

SPIN_LIMIT = 0x40000
sWS, sWQ, sWK, sWV, sWO, sM0, sDBG = 8, 12, 16, 20, 24, 28, 32
sRX, sI, sW, sSTEP, sSPIN, sT0, sT1, sT2, sT3, sH, sJ = 40, 41, 42, 43, 44, 45, 46, 47, 48, 49, 50
sMXR, sMXW, sQKW, sQKR, sOXR, sOXW, sPXR, sPXW, sARC, sKF, sVF = 52, 53, 54, 55, 56, 57, 58, 59, 60, 61, 62
sSLOT, sSLOT2, sC, sA0, sA1, sA2, sA3, sP0, sP1 = 63, 64, 65, 66, 67, 68, 69, 74, 75
vL, vL16, vP8, vDup, vOD, vL8 = 1, 2, 3, 4, 5, 6
vSENT = 8
vT = 12
vSET = 16
vM = 64
vACC = 80
vZ = 128
vR = 144
vMLO, vMHI, vFLO = 156, 157, 158
vTR = 144
vKX = 160
vVX = 192
vS = 200
vP = 212
vVZ = 222
vO = 224
vX = 160
vXR = 224
vXA, vXM, vZERO = 232, 233, 234
sXB = 36
sPX1, sP2, sP3 = 51, 72, 73
vL16B, vXAB = 7, 236
LDS_B = 0
LDS_D = 12288
LDS_KV = 16384
LDS_TK = 65536
SWITCH = 8

def acc(tile, b): return vACC + (tile * 2 + b) * 4
def wq_frag(tile, T, b): return ((tile * 4 + T) * 2 + b) * 4
def wo_frag(tau, u, b): return 192 + ((tau * 4 + u) * 2 + b) * 4

def check_sent(a, regs, tmp):
    regs = list(regs)
    h = len(regs) // 2
    chains = [(regs[:h], tmp), (regs[h:], tmp + 1)]
    outs = []
    for rg, t in chains:
        seq = ['v_max3_u32 v%d, v%d, v%d, v%d' % (t, rg[0], rg[1], rg[2])]
        k = 3
        while k + 1 < len(rg):
            seq.append('v_max3_u32 v%d, v%d, v%d, v%d' % (t, t, rg[k], rg[k + 1])); k += 2
        if k < len(rg): seq.append('v_max_u32 v%d, v%d, v%d' % (t, t, rg[k]))
        outs.append(seq)
    for x, y in zip(outs[0], outs[1]):
        a(x); a(y)
    a('v_max_u32 v%d, v%d, v%d' % (tmp, tmp, tmp + 1))
    a('v_cmp_eq_u32 vcc, -1, v%d' % tmp)

def delay(a, n):
    if n <= 0: return
    if n >= 4: a('s_sleep %d' % (n // 4))
    for _ in range(n % 4): a('s_nop 3')

def spoll_issue(a, nsets, loads, gap):
    for k in range(nsets):
        for ld in loads(k): a(ld)
        if k < nsets - 1: delay(a, gap)

def spoll(a, nsets, loads, regs, consume, first=0, gap=0, issued=False):
    L = a.newlabel('sp'); J = a.newlabel('spj')
    C = [a.newlabel('spc') for _ in range(nsets)]
    nl = len(loads(0))
    if not issued:
        delay(a, first)
        spoll_issue(a, nsets, loads, gap)
    a.label(L)
    for k in range(nsets):
        a('s_waitcnt vmcnt(%d)' % (nl * (nsets - 1)))
        check_sent(a, regs(k), vT)
        a('s_cbranch_vccz %s' % C[k])
        for ld in loads(k): a(ld)
    a('s_add_u32 s%d, s%d, 1' % (sSPIN, sSPIN))
    a('s_cmp_lt_u32 s%d, 0x%x' % (sSPIN, SPIN_LIMIT))
    a('s_cbranch_scc1 %s' % L)
    a('s_waitcnt vmcnt(0)')
    for k in range(nsets):
        a.label(C[k], fence=False); a.hist = []
        consume(k)
        if k < nsets - 1: a.branch('s_branch %s' % J)
    a.label(J)

def ppoll(a, nb, loads, regs, consume, first=0, issued=False):
    nl = len(loads(0))
    if not issued:
        delay(a, first)
        for T in range(nb):
            for ld in loads(T): a(ld)
    for T in range(nb):
        C = a.newlabel('ppc'); Rr = a.newlabel('ppr'); OK = a.newlabel('ppo')
        a('s_waitcnt vmcnt(%d)' % (nl * (nb - 1 - T)))
        rg = list(regs(T))
        def chk():
            if len(rg) == 4:
                a('v_max3_u32 v%d, v%d, v%d, v%d' % (vT, rg[0], rg[1], rg[2]))
                a('v_max_u32 v%d, v%d, v%d' % (vT, vT, rg[3]))
                a('v_cmp_eq_u32 vcc, -1, v%d' % vT)
            else:
                check_sent(a, rg, vT)
        chk()
        a('s_cbranch_vccz %s' % OK)
        saved = list(a.hist)
        a.label(Rr)
        for T2 in range(T, nb):
            for ld in loads(T2): a(ld)
        a('s_add_u32 s%d, s%d, 1' % (sSPIN, sSPIN))
        a('s_waitcnt vmcnt(%d)' % (nl * (nb - 1 - T)))
        chk()
        a('s_cbranch_vccz %s' % OK)
        a('s_cmp_lt_u32 s%d, 0x%x' % (sSPIN, SPIN_LIMIT))
        a('s_cbranch_scc1 %s' % Rr)
        a.label(OK, fence=False); a.hist = saved
        consume(T)

def combine_pair(a, z, t0, t1):
    for i in range(4):
        a('v_add_f32_dpp v%d, v%d, v%d row_ror:8 row_mask:0xf bank_mask:0x3' % (z + i, acc(t0, 1) + i, acc(t0, 0) + i))
        a('v_add_f32_dpp v%d, v%d, v%d row_ror:8 row_mask:0xf bank_mask:0xc' % (z + i, acc(t1, 0) + i, acc(t1, 1) + i))

def pk_add(a, d, x, y):
    a('v_pk_add_f32 v[%d:%d], v[%d:%d], v[%d:%d]' % (d, d + 1, x, x + 1, y, y + 1))

def reduce3(a, z, ldsbase, w):
    others = [x for x in range(4) if x != w]
    for n, o in enumerate(others):
        a('ds_read_b128 v[%d:%d], v%d offset:%d' % (vR + 4 * n, vR + 4 * n + 3, vL16, ldsbase + o * 1024))
    a('s_waitcnt lgkmcnt(2)')
    pk_add(a, z, z, vR); pk_add(a, z + 2, z + 2, vR + 2)
    a('s_waitcnt lgkmcnt(0)')
    pk_add(a, vR + 4, vR + 4, vR + 8); pk_add(a, vR + 6, vR + 6, vR + 10)
    pk_add(a, z, z, vR + 4); pk_add(a, z + 2, z + 2, vR + 6)

def load_weights(a, with_wo=True):
    a('v_lshrrev_b32 v%d, 2, v%d' % (vT, vL))
    a('v_and_b32 v%d, 3, v%d' % (vT + 1, vL))
    a('v_lshlrev_b32 v%d, 4, v%d' % (vT + 1, vT + 1))
    a('v_lshl_add_u32 v%d, v%d, 13, v%d' % (vT + 2, vT, vT + 1))
    a('v_lshl_add_u32 v%d, v%d, 11, v%d' % (vT + 3, vT, vT + 1))
    a('s_lshl_b32 s%d, s%d, 21' % (sT0, sW))
    a('s_lshl_b32 s%d, s%d, 8' % (sT1, sH))
    a('s_add_u32 s%d, s%d, s%d' % (sT0, sT0, sT1))
    a('s_lshl_b32 s%d, s%d, 6' % (sT1, sJ))
    a('s_add_u32 s%d, s%d, s%d' % (sT0, sT0, sT1))
    for n in range(16):
        for M, srd in enumerate((sWQ, sWK, sWV)):
            a('buffer_load_dwordx4 a[%d:%d], v%d, s[%d:%d], s%d offen' % (64 * M + 4 * n, 64 * M + 4 * n + 3, vT + 2, srd, srd + 3, sT0))
        if n < 15: a('s_add_u32 s%d, s%d, 0x20000' % (sT0, sT0))
    if with_wo:
        a('s_lshl_b32 s%d, s%d, 21' % (sT0, sRX))
        a('s_lshl_b32 s%d, s%d, 19' % (sT1, sW))
        a('s_add_u32 s%d, s%d, s%d' % (sT0, sT0, sT1))
        a('s_lshl_b32 s%d, s%d, 6' % (sT1, sI))
        a('s_add_u32 s%d, s%d, s%d' % (sT0, sT0, sT1))
        for n in range(16):
            a('buffer_load_dwordx4 a[%d:%d], v%d, s[%d:%d], s%d offen' % (192 + 4 * n, 192 + 4 * n + 3, vT + 3, sWO, sWO + 3, sT0))
            if n < 15: a('s_add_u32 s%d, s%d, 0x8000' % (sT0, sT0))

def transpose_weights(a, with_wo=True):
    a('s_lshl_b32 s%d, s%d, 14' % (sT0, sW))
    a('v_add_u32 v%d, s%d, v%d' % (vTR, sT0, vL16))
    a('v_lshrrev_b32 v%d, 4, v%d' % (vT, vL))
    a('v_bfe_u32 v%d, v%d, 2, 2' % (vT + 1, vL))
    a('v_and_b32 v%d, 3, v%d' % (vT + 2, vL))
    a('v_lshl_add_u32 v%d, v%d, 4, v%d' % (vT + 3, vT, vT + 1))
    a('v_lshlrev_b32 v%d, 6, v%d' % (vT + 3, vT + 3))
    a('v_lshl_add_u32 v%d, v%d, 3, v%d' % (vT + 3, vT + 2, vT + 3))
    a('v_add_u32 v%d, s%d, v%d' % (vTR + 1, sT0, vT + 3))
    a('v_lshl_add_u32 v%d, v%d, 2, v%d' % (vT + 3, vT, vT + 1))
    a('v_lshlrev_b32 v%d, 6, v%d' % (vT + 3, vT + 3))
    a('v_lshl_add_u32 v%d, v%d, 4, v%d' % (vT + 3, vT + 2, vT + 3))
    a('v_add_u32 v%d, s%d, v%d' % (vTR + 2, sT0, vT + 3))
    a('s_waitcnt vmcnt(0)')
    for M in range(4 if with_wo else 3):
        for n in range(16):
            a('ds_write_b128 v%d, a[%d:%d] offset:%d' % (vTR, 64 * M + 4 * n, 64 * M + 4 * n + 3, n * 1024))
        a('s_waitcnt lgkmcnt(0)')
        for tau in range(2):
            for T in range(4):
                for b in range(2):
                    for half in range(2):
                        if M < 3:
                            r = wq_frag(2 * M + tau, T, b) + 2 * half
                            off = (64 * T + 8 * b + 4 * half) * 64 + tau * 32
                            a('ds_read_b64_tr_b16 a[%d:%d], v%d offset:%d' % (r, r + 1, vTR + 1, off))
                        else:
                            r = wo_frag(tau, T, b) + 2 * half
                            off = (32 * (2 * T + b) + 16 * half) * 64 + tau * 8
                            a('ds_read_b64_tr_b16 a[%d:%d], v%d offset:%d' % (r, r + 1, vTR + 2, off))
        a('s_waitcnt lgkmcnt(0)')

def lane_consts(a):
    a('v_and_b32 v%d, 63, v0' % vL)
    a('v_lshlrev_b32 v%d, 4, v%d' % (vL16, vL))
    a('v_lshlrev_b32 v%d, 3, v%d' % (vL8, vL))
    a('v_lshrrev_b32 v%d, 4, v%d' % (vT, vL))
    a('v_and_b32 v%d, 7, v%d' % (vT + 1, vL))
    a('v_bfe_u32 v%d, v%d, 3, 1' % (vT + 2, vL))
    a('v_lshl_add_u32 v%d, v%d, 3, v%d' % (vT + 3, vT, vT + 1))
    a('v_lshlrev_b32 v%d, 4, v%d' % (vDup, vT + 3))
    a('v_lshl_add_u32 v%d, v%d, 3, v%d' % (vP8, vT + 2, vDup))
    a('v_lshl_add_u32 v%d, v%d, 9, v%d' % (vOD, vT + 2, vDup))
    for i in range(4): a('v_mov_b32 v%d, -1' % (vSENT + i))
    a('v_cmp_gt_u32 vcc, 32, v%d' % vL)
    a('v_cndmask_b32 v%d, 0, -1, vcc' % vMLO)
    a('v_cndmask_b32 v%d, -1, 0, vcc' % vMHI)
    a('v_cndmask_b32 v%d, 0, 1.0, vcc' % vFLO)

def mark(a, cfg, k):
    if not cfg.get('prof'): return
    if cfg['prof'] == 3:
        if k not in (1, 2, 9, 100, 101, 102, 103, 104, 105, 106, 107): return
        if k >= 100: k = k - 100 + 3 if k < 104 else k - 104 + 10
        a('s_memtime s[76:77]')
        a('s_cmp_eq_u32 s%d, %d' % (sSTEP, cfg.get('pstep', 21)))
        a('s_waitcnt lgkmcnt(0)')
        a('s_cselect_b32 s%d, s76, s%d' % (80 + k, 80 + k))
        return
    if k >= 100: return
    if cfg['prof'] == 2:
        a('s_memrealtime s[76:77]')
        a('s_cmp_eq_u32 s%d, %d' % (sSTEP, 20 if k > 1 else 21))
        a('s_waitcnt lgkmcnt(0)')
        a('s_cselect_b32 s%d, s76, s%d' % (80 + k, 80 + k))
        return
    a('s_memtime s[76:77]')
    a('s_waitcnt lgkmcnt(0)')
    a('s_sub_u32 s78, s76, s79')
    a('s_add_u32 s%d, s%d, s78' % (80 + k, 80 + k))
    a('s_mov_b32 s79, s76')

def px_slot(a, dst, slotreg, base):
    a('s_lshr_b32 s%d, s%d, 1' % (sT3, slotreg))
    a('s_lshl_b32 s%d, s%d, 14' % (sT3, sT3))
    a('s_add_u32 s%d, s%d, s%d' % (sT3, sT3, base))
    a('s_and_b32 s%d, s%d, 1' % (dst, slotreg))
    a('s_lshl_b32 s%d, s%d, 12' % (dst, dst))
    a('s_add_u32 s%d, s%d, s%d' % (dst, dst, sT3))

def slot_off(a, dst, slotreg, shift, base):
    a('s_lshl_b32 s%d, s%d, %d' % (dst, slotreg, shift))
    a('s_add_u32 s%d, s%d, s%d' % (dst, dst, base))

def st(a, regs, n, vaddr, soff, sc1=False):
    a('buffer_store_dword%s %s, v%d, s[%d:%d], s%d offen%s' % ('x%d' % n if n > 1 else '', vr(regs, n), vaddr, sWS, sWS + 3, soff, ' sc1' if sc1 else ''))

def read_choice(a, cfg, bases):
    L = a.newlabel('ch'); D = a.newlabel('chd')
    a('v_mov_b32 v%d, 132' % (vT + 1))
    a.label(L)
    a('buffer_load_dword v%d, v%d, s[%d:%d], 0 offen sc1' % (vT, vT + 1, sDBG, sDBG + 3))
    a('s_waitcnt vmcnt(0)')
    a('v_readfirstlane_b32 s%d, v%d' % (sT0, vT))
    a('s_cmp_lg_u32 s%d, 0' % sT0)
    a('s_cbranch_scc1 %s' % D)
    a('s_add_u32 s%d, s%d, 1' % (sSPIN, sSPIN))
    a('s_cmp_lt_u32 s%d, 0x%x' % (sSPIN, SPIN_LIMIT))
    a('s_cbranch_scc1 %s' % L)
    a.label(D)
    if 'forcesel' in cfg: a('s_mov_b32 s%d, %d' % (sT0, cfg['forcesel']))
    a('s_and_b32 s%d, s%d, 1' % (sT1, sT0))
    a('s_lshl_b32 s%d, s%d, 13' % (sT1, sT1))
    a('s_add_u32 s%d, s%d, s%d' % (sPXR, sPXR, sT1))
    a('s_and_b32 s%d, s%d, 2' % (sT1, sT0))
    a('s_lshl_b32 s%d, s%d, 12' % (sT1, sT1))
    a('s_add_u32 s%d, s%d, s%d' % (sPX1, sPX1, sT1))

def wave_loop(a, w, cfg):
    Lloop = 'r_loop_w%d' % w
    Lend = 'r_end_w%d' % w
    g = cfg.get
    a('s_lshl_b32 s%d, s%d, 16' % (sT0, sRX))
    a('s_add_u32 s%d, s%d, 0x%x' % (sMXR, sT0, MX_OFF + w * 4096))
    a('s_lshl_b32 s%d, s%d, 9' % (sT1, sI))
    a('s_add_u32 s%d, s%d, s%d' % (sT2, sT0, sT1))
    a('s_add_u32 s%d, s%d, 0x%x' % (sMXW, sT2, MX_OFF))
    a('s_add_u32 s%d, s%d, 0x%x' % (sOXR, sT0, OX_OFF + w * 4096))
    a('s_add_u32 s%d, s%d, 0x%x' % (sOXW, sT2, OX_OFF))
    a('s_lshl_b32 s%d, s%d, 17' % (sT0, sRX))
    a('s_lshr_b32 s%d, s%d, 2' % (sT1, sI))
    a('s_lshl_b32 s%d, s%d, 12' % (sT1, sT1))
    a('s_add_u32 s%d, s%d, s%d' % (sT0, sT0, sT1))
    a('s_add_u32 s%d, s%d, 0x%x' % (sQKR, sT0, QKX_OFF))
    a('s_lshl_b32 s%d, s%d, 9' % (sT1, sJ))
    a('s_add_u32 s%d, s%d, s%d' % (sQKW, sQKR, sT1))
    if w == 1: a('s_add_u32 s%d, s%d, 2048' % (sQKW, sQKW))
    a('s_lshl_b32 s%d, s%d, 16' % (sT0, sI))
    a('s_add_u32 s%d, s%d, 0x%x' % (sPXR, sT0, PX_OFF))
    if w == 0:
        a('s_lshl_b32 s%d, s%d, 10' % (sT1, sRX))
        a('s_add_u32 s%d, s%d, s%d' % (sPXR, sPXR, sT1))
    a('s_add_u32 s%d, s%d, 0x%x' % (sPX1, sPXR, 2 * MB))
    a('v_add_u32 v%d, 0x1000, v%d' % (vL16B, vL16))
    a('s_lshl_b32 s%d, s%d, 11' % (sT0, sH))
    a('s_lshl_b32 s%d, s%d, 9' % (sT1, sJ))
    a('s_add_u32 s%d, s%d, s%d' % (sT0, sT0, sT1))
    a('s_add_u32 s%d, s%d, 0x%x' % (sARC, sT0, KM_OFF if w == 1 else VM_OFF))
    a('s_lshl_b32 s%d, s%d, 13' % (sT0, sH))
    a('s_add_u32 s%d, s%d, 0x%x' % (sKF, sT0, KF_OFF))
    a('s_lshl_b32 s%d, s%d, 11' % (sT1, sJ))
    a('s_add_u32 s%d, s%d, s%d' % (sT0, sT0, sT1))
    a('s_add_u32 s%d, s%d, 0x%x' % (sVF, sT0, VF_OFF))
    a('s_mov_b32 s%d, 0x%x' % (sC, cfg['cbits']))
    a('s_mov_b32 s%d, 0x7fffffff' % sP0)
    a('s_mov_b32 s%d, 0x7fffffff' % sP1)
    a('s_mov_b32 s%d, 0x7fffffff' % sP2)
    a('s_mov_b32 s%d, 0x7fffffff' % sP3)
    for slot in range(4):
        if w in (0, 1):
            a('s_add_u32 s%d, s%d, 0x%x' % (sT0, sQKW, slot * 32768)); st(a, vSENT, 2, vL8, sT0)
        if w == 0:
            for reg in range(2):
                for q4 in range(4):
                    a('s_add_u32 s%d, s%d, 0x%x' % (sT0, sPXR, reg * 2 * MB + slot * 16384 + q4 * 4096)); st(a, vSENT, 4, vL16, sT0, True)
        if w == 2:
            a('s_add_u32 s%d, s%d, 0x%x' % (sT0, sMXW, slot * 16384)); st(a, vSENT, 2, vL8, sT0)
        if w == 3:
            a('s_add_u32 s%d, s%d, 0x%x' % (sT0, sOXW, slot * 16384)); st(a, vSENT, 2, vL8, sT0)
    if w == 3:
        prefetch_kv(a)
    if w in (1, 2):
        xa = w - 1
        a('v_add_u32 v%d, %d, v%d' % (vT, 64 * xa, vL))
        a('v_lshlrev_b32 v%d, 3, v%d' % (vXA, vT))
        a('v_add_u32 v%d, 0x1000, v%d' % (vXAB, vXA))
        a('v_lshrrev_b32 v%d, 1, v%d' % (vT + 1, vT))
        a('v_and_b32 v%d, 7, v%d' % (vT + 2, vT + 1))
        a('v_lshrrev_b32 v%d, 4, v%d' % (vT + 3, vT + 1))
        a('v_lshl_add_u32 v%d, v%d, 3, v%d' % (vXM, vT + 3, vT + 2))
        a('v_lshlrev_b32 v%d, 4, v%d' % (vXM, vXM))
        a('v_bfe_u32 v%d, v%d, 3, 1' % (vT + 3, vT + 1))
        a('v_lshl_add_u32 v%d, v%d, 3, v%d' % (vXM, vT + 3, vXM))
        a('v_and_b32 v%d, 1, v%d' % (vT + 3, vL))
        a('v_lshl_add_u32 v%d, v%d, 2, v%d' % (vXM, vT + 3, vXM))
        a('v_lshrrev_b32 v%d, 3, v%d' % (vT + 1, vT + 1))
        a('v_lshlrev_b32 v%d, 3, v%d' % (vT + 1, vT + 1))
        a('v_lshl_add_u32 v%d, v%d, 2, v%d' % (vT + 1, vT + 3, vT + 1))
        a('v_lshl_add_u32 v%d, v%d, 11, v%d' % (vT, vT + 2, vT + 1))
        a('s_lshl_b32 s%d, s%d, 6' % (sT0, sI))
        a('buffer_load_dword v%d, v%d, s[%d:%d], s%d offen' % (vXR, vT, sM0, sM0 + 3, sT0))
        a('v_mov_b32 v%d, 0' % vZERO)
        a('v_mov_b32 v%d, 0' % (vZERO + 1))
    transpose_weights(a)
    a('s_barrier')
    if w == 0:
        L = a.newlabel('sb'); D = a.newlabel('sbd')
        a('v_mov_b32 v%d, 1' % vT)
        a('v_mov_b32 v%d, 128' % (vT + 1))
        a('s_mov_b64 exec, 1')
        a('buffer_atomic_add v%d, v%d, s[%d:%d], 0 offen sc1' % (vT, vT + 1, sDBG, sDBG + 3))
        a.label(L)
        a('buffer_load_dword v%d, v%d, s[%d:%d], 0 offen sc1' % (vT, vT + 1, sDBG, sDBG + 3))
        a('s_waitcnt vmcnt(0)')
        a('v_cmp_gt_u32 vcc, 128, v%d' % vT)
        a('s_cbranch_vccz %s' % D)
        a('s_add_u32 s%d, s%d, 1' % (sSPIN, sSPIN))
        a('s_cmp_lt_u32 s%d, 0x%x' % (sSPIN, SPIN_LIMIT))
        a('s_cbranch_scc1 %s' % L)
        a.label(D)
        a('s_mov_b64 exec, -1')
    a('s_barrier')
    a('s_mov_b32 s%d, 0' % sSTEP)
    if g('stamp'): a('s_memrealtime s[70:71]')
    if g('prof'):
        for k in range(16): a('s_mov_b32 s%d, 0' % (80 + k))
        a('s_memtime s[76:77]')
        a('s_waitcnt lgkmcnt(0)')
        a('s_mov_b32 s79, s76')
    a.label(Lloop)
    a('s_and_b32 s%d, s%d, 3' % (sSLOT, sSTEP))
    a('s_add_u32 s%d, s%d, 2' % (sSLOT2, sSTEP))
    a('s_and_b32 s%d, s%d, 3' % (sSLOT2, sSLOT2))
    slot_off(a, sA0, sSLOT, 14, sMXR)
    slot_off(a, sA1, sSLOT, 14, sOXR)
    if w in (1, 2):
        Lpub = a.newlabel('apub'); Lns = a.newlabel('nosw')
        slot_off(a, sA2, sSLOT, 14, sMXW)
        slot_off(a, sA3, sSLOT2, 14, sMXW)
        a('s_cmp_eq_u32 s%d, 0' % sSTEP)
        a.branch('s_cbranch_scc1 %s' % Lpub)
        a('s_cmp_lg_u32 s%d, %d' % (sSTEP, SWITCH))
        a.branch('s_cbranch_scc1 %s' % Lns)
        read_choice(a, cfg, None)
        a.label(Lns)
        for reg, base in ((0, sPXR), (1, sPX1)):
            slot_off(a, sT0, sSLOT, 14, base)
            a('s_add_u32 s%d, s%d, s%d' % (sXB + 2 * reg, sWS, sT0))
            a('s_addc_u32 s%d, s%d, 0' % (sXB + 2 * reg + 1, sWS + 1))
        def xl(k):
            cp = k if g('xcopy', 1) else 0
            return ['global_load_dwordx2 v[%d:%d], v%d, s[%d:%d] offset:%d sc1' % (vX + 8 * k + 2 * p, vX + 8 * k + 2 * p + 1, vXAB if cp & 1 else vXA, sXB + 2 * (cp >> 1), sXB + 2 * (cp >> 1) + 1, p * 1024) for p in range(4)]
        def xc(k):
            b = vX + 8 * k
            pk_add(a, b, b, b + 2); pk_add(a, b + 4, b + 4, b + 6)
            pk_add(a, b, b, b + 4)
            a('v_cvt_pk_bf16_f32 v%d, v%d, v%d' % (vXR, b, b + 1))
        spoll(a, g('ns_x', 4), xl, lambda k: range(vX + 8 * k, vX + 8 * k + 8), xc, g('dly_x', 0), g('gap_x', 8))
        mark(a, cfg, 0)
        a.label(Lpub)
        a('v_min_u32 v%d, -2, v%d' % (vXR, vXR))
        st(a, vXR, 1, vXM, sA2)
        st(a, vSENT, 1, vXM, sA3)
    if w in (0, 1):
        slot_off(a, sA2, sSLOT, 15, sQKW)
        slot_off(a, sA3, sSLOT2, 15, sQKW)
    if w == 3:
        slot_off(a, sA2, sSLOT, 14, sOXW)
        slot_off(a, sA3, sSLOT2, 14, sOXW)
        slot_off(a, sT2, sSLOT, 15, sQKR)
    mark(a, cfg, 1)
    a('s_barrier')
    mark(a, cfg, 2)
    mb = vSET + 64
    mb = vM
    def ml(T): return ['buffer_load_dwordx4 v[%d:%d], v%d, s[%d:%d], s%d offen offset:%d sc1' % (mb + 4 * T, mb + 4 * T + 3, vL16, sWS, sWS + 3, sA0, T * 1024)]
    def mc(T):
        if T == 3: mark(a, cfg, 3)
        mark(a, cfg, 100 + T)
        for tile in range(4):
            for b in range(2):
                c = '0' if T == 0 else vr(acc(tile, b), 4)
                a('v_mfma_f32_16x16x32_bf16 %s, %s, %s, %s' % (vr(acc(tile, b), 4), ar(wq_frag(tile, T, b), 4), vr(mb + 4 * T, 4), c))
    ppoll(a, 4, ml, lambda T: range(mb + 4 * T, mb + 4 * T + 4), mc, g('dly_m', 0))
    for i in range(4):
        a('v_add_f32_dpp v%d, v%d, v%d row_ror:8 row_mask:0xf bank_mask:0x3' % (vZ + i, acc(0, 1) + i, acc(0, 0) + i))
    for i in range(4):
        a('v_add_f32_dpp v%d, v%d, v%d row_ror:8 row_mask:0xf bank_mask:0xc' % (vZ + i, acc(1, 0) + i, acc(1, 1) + i))
    if w != 0: a('ds_write_b128 v%d, v[%d:%d] offset:%d' % (vL16, vZ, vZ + 3, LDS_B + w * 1024))
    for i in range(4):
        a('v_add_f32_dpp v%d, v%d, v%d row_ror:8 row_mask:0xf bank_mask:0x3' % (vZ + 4 + i, acc(2, 1) + i, acc(2, 0) + i))
    for i in range(4):
        a('v_add_f32_dpp v%d, v%d, v%d row_ror:8 row_mask:0xf bank_mask:0xc' % (vZ + 4 + i, acc(3, 0) + i, acc(3, 1) + i))
    if w != 1: a('ds_write_b128 v%d, v[%d:%d] offset:%d' % (vL16, vZ + 4, vZ + 7, LDS_B + 4096 + w * 1024))
    a('s_waitcnt lgkmcnt(0)')
    mark(a, cfg, 4)
    a('s_barrier')
    mark(a, cfg, 5)
    if w in (0, 1):
        z = vZ + 4 * w
        reduce3(a, z, LDS_B + 4096 * w, w)
        a('v_cvt_pk_bf16_f32 v%d, v%d, v%d' % (z, z, z + 1))
        a('v_cvt_pk_bf16_f32 v%d, v%d, v%d' % (z + 1, z + 2, z + 3))
        a('v_min_u32 v%d, -2, v%d' % (z, z))
        a('v_min_u32 v%d, -2, v%d' % (z + 1, z + 1))
        st(a, z, 2, vP8, sA2)
        st(a, vSENT, 2, vL8, sA3)
        if w == 1:
            slot_off(a, sT0, sSTEP, 16, sARC)
            st(a, z, 2, vP8, sT0, True)
    def qkl(c):
        return ['buffer_load_dwordx4 v[%d:%d], v%d, s[%d:%d], s%d offen offset:%d sc1' % (vSET + 8 * c + 4 * x, vSET + 8 * c + 4 * x + 3, vDup, sWS, sWS + 3, sT2, x * 2048 + c * 512) for x in range(2)]
    n = 0
    qk_at = g('qk_at', 16)
    for tile in (4, 5):
        for T in range(4):
            for b in range(2):
                if w == 3 and n >= qk_at and (n - qk_at) < 8 and (n - qk_at) % 2 == 0:
                    for ld in qkl((n - qk_at) // 2): a(ld)
                c = '0' if T == 0 else vr(acc(tile, b), 4)
                a('v_mfma_f32_16x16x32_bf16 %s, %s, %s, %s' % (vr(acc(tile, b), 4), vr(mb + 4 * T, 4), ar(wq_frag(tile, T, b), 4), c))
                n += 1
    qk_done = max(0, min(4, (16 - qk_at + 1) // 2))
    for i in range(4):
        a('v_permlane32_swap_b32 v%d, v%d' % (acc(4, 0) + i, acc(5, 0) + i))
        a('v_permlane32_swap_b32 v%d, v%d' % (acc(4, 1) + i, acc(5, 1) + i))
    for i in range(4):
        a('v_add_f32 v%d, v%d, v%d' % (vZ + 8 + i, acc(4, 0) + i, acc(5, 1) + i))
    a('ds_write_b128 v%d, v[%d:%d] offset:%d' % (vL16, vZ + 8, vZ + 11, LDS_B + 8192 + w * 1024))
    if w == 3:
        if qk_done < 4: delay(a, g('dly_qk', 0))
        for c in range(qk_done, 4):
            for ld in qkl(c): a(ld)
    a('s_waitcnt lgkmcnt(0)')
    mark(a, cfg, 6)
    a('s_barrier')
    mark(a, cfg, 7)
    if w in (2, 3):
        reduce3(a, vZ + 8, LDS_B + 8192, w)
        a('v_cvt_pk_bf16_f32 v%d, v%d, v%d' % (vZ + 8 if w == 2 else vVZ, vZ + 8, vZ + 9))
        a('v_cvt_pk_bf16_f32 v%d, v%d, v%d' % (vZ + 9 if w == 2 else vVZ + 1, vZ + 10, vZ + 11))
    if w == 2:
        slot_off(a, sT0, sSTEP, 16, sARC)
        st(a, vZ + 8, 2, vL8, sT0, True)
    a('s_cmp_eq_u32 s%d, 63' % sSTEP)
    a.branch('s_cbranch_scc1 %s' % Lend)
    if w == 2:
        a('s_add_u32 s%d, s%d, 0x40000' % (sKF, sKF))
        a('s_add_u32 s%d, s%d, 0x40000' % (sVF, sVF))
        prefetch_dma(a)
    if w == 3:
        def qkc(c):
            qb = vSET + 8 * c; ka = qb + 4
            if c == 3: mark(a, cfg, 8)
            for t, A in ((0, vKX + 4 * c), (1, vKX + 16 + 4 * c), (2, ka)):
                cc = '0' if c == 0 else vr(vS + 4 * t, 4)
                a('v_mfma_f32_16x16x32_bf16 %s, %s, %s, %s' % (vr(vS + 4 * t, 4), vr(A, 4), vr(qb, 4), cc))
        ppoll(a, 4, qkl, lambda c: range(vSET + 8 * c, vSET + 8 * c + 8), qkc, issued=True)
        m, t2 = vT, vT + 1
        a('v_max3_f32 v%d, v%d, v%d, v%d' % (m, vS, vS + 1, vS + 2))
        a('v_max3_f32 v%d, v%d, v%d, v%d' % (t2, vS + 3, vS + 4, vS + 5))
        a('v_max3_f32 v%d, v%d, v%d, v%d' % (m, m, vS + 6, vS + 7))
        a('v_max3_f32 v%d, v%d, v%d, v%d' % (t2, t2, vS + 8, vS + 9))
        a('v_max3_f32 v%d, v%d, v%d, v%d' % (m, m, vS + 10, vS + 11))
        a('v_max_f32 v%d, v%d, v%d' % (m, m, t2))
        a('v_mov_b32 v%d, v%d' % (t2, m))
        a('v_permlane16_swap_b32 v%d, v%d' % (m, t2))
        a('v_max_f32 v%d, v%d, v%d' % (m, m, t2))
        a('v_mov_b32 v%d, v%d' % (t2, m))
        a('v_permlane32_swap_b32 v%d, v%d' % (m, t2))
        a('v_max_f32 v%d, v%d, v%d' % (m, m, t2))
        a('v_mul_f32 v%d, s%d, v%d' % (m, sC, m))
        for i in range(12):
            a('v_fma_f32 v%d, v%d, s%d, -v%d' % (vS + i, vS + i, sC, m))
            if i >= 1: a('v_exp_f32 v%d, v%d' % (vS + i - 1, vS + i - 1))
        a('v_exp_f32 v%d, v%d' % (vS + 11, vS + 11))
        for i in range(4):
            a('v_cvt_pk_bf16_f32 v%d, v%d, v%d' % (vP + i, vS + 2 * i, vS + 2 * i + 1))
        for i in range(4, 6):
            a('v_cvt_pk_bf16_f32 v%d, v%d, v%d' % (vP + i, vS + 2 * i, vS + 2 * i + 1))
        a('v_mfma_f32_16x16x32_bf16 %s, %s, %s, 0' % (vr(vO, 4), vr(vVX, 4), vr(vP, 4)))
        a('v_and_b32 v%d, v%d, v%d' % (vP + 6, vP + 4, vMLO))
        a('v_and_b32 v%d, v%d, v%d' % (vP + 7, vP + 5, vMLO))
        a('v_mfma_f32_16x16x32_bf16 %s, %s, %s, 0' % (vr(vO + 4, 4), vr(vVX + 4, 4), vr(vP, 4)))
        a('v_and_b32 v%d, v%d, v%d' % (vP + 8, vP + 4, vMHI))
        a('v_and_b32 v%d, v%d, v%d' % (vP + 9, vP + 5, vMHI))
        a('v_mfma_f32_16x16x16_bf16 %s, %s, %s, %s' % (vr(vO, 4), vr(vVZ, 2), vr(vP + 6, 2), vr(vO, 4)))
        sA, sB = vT, vT + 1
        pk_add(a, vS + 8, vS + 8, vS + 10)
        pk_add(a, vS, vS, vS + 2)
        a('v_mfma_f32_16x16x16_bf16 %s, %s, %s, %s' % (vr(vO + 4, 4), vr(vVZ, 2), vr(vP + 8, 2), vr(vO + 4, 4)))
        pk_add(a, vS + 4, vS + 4, vS + 6)
        a('v_add_f32 v%d, v%d, v%d' % (sB, vS + 8, vS + 9))
        pk_add(a, vS, vS, vS + 4)
        a('v_add_f32 v%d, v%d, v%d' % (sA, vS, vS + 1))
        a('v_fma_f32 v%d, v%d, v%d, v%d' % (sA, sB, vFLO, sA))
        a('v_mov_b32 v%d, v%d' % (sB, sA))
        a('v_permlane16_swap_b32 v%d, v%d' % (sA, sB))
        a('v_add_f32 v%d, v%d, v%d' % (sA, sA, sB))
        a('v_mov_b32 v%d, v%d' % (sB, sA))
        a('v_permlane32_swap_b32 v%d, v%d' % (sA, sB))
        a('v_add_f32 v%d, v%d, v%d' % (sA, sA, sB))
        a('v_rcp_f32 v%d, v%d' % (sA, sA))
        a('v_mov_b32 v%d, v%d' % (sB, sA))
        for i in range(4):
            a('v_pk_mul_f32 v[%d:%d], v[%d:%d], v[%d:%d]' % (vO + 2 * i, vO + 2 * i + 1, vO + 2 * i, vO + 2 * i + 1, sA, sB))
        for i in range(4):
            a('v_cvt_pk_bf16_f32 v%d, v%d, v%d' % (vO + i, vO + 2 * i, vO + 2 * i + 1))
        for i in range(4):
            a('v_min_u32 v%d, -2, v%d' % (vO + i, vO + i))
        st(a, vO, 4, vDup, sA2)
        st(a, vSENT, 2, vL8, sA3)
    if w == 0:
        Lns = a.newlabel('nosw')
        a('s_cmp_lg_u32 s%d, %d' % (sSTEP, SWITCH - 1))
        a.branch('s_cbranch_scc1 %s' % Lns)
        read_choice(a, cfg, None)
        a.label(Lns)
        a('s_add_u32 s%d, s%d, 1' % (sT2, sSTEP))
        a('s_and_b32 s%d, s%d, 3' % (sT2, sT2))
        slot_off(a, sA2, sT2, 14, sPXR)
        slot_off(a, sA3, sT2, 14, sPX1)
        a('s_add_u32 s%d, s%d, 3' % (sT2, sSTEP))
        a('s_and_b32 s%d, s%d, 3' % (sT2, sT2))
        slot_off(a, sXB, sT2, 14, sPXR)
        slot_off(a, sXB + 1, sT2, 14, sPX1)
        K = g('ns_x', 4) if g('xcopy', 1) else 1
        for cp in range(K): st(a, vSENT, 4, vL16B if cp & 1 else vL16, sXB + (cp >> 1), True)
    mark(a, cfg, 9)
    a('s_barrier')
    mark(a, cfg, 10)
    def ol(u): return ['buffer_load_dwordx4 v[%d:%d], v%d, s[%d:%d], s%d offen offset:%d sc1' % (mb + 4 * u, mb + 4 * u + 3, vOD, sWS, sWS + 3, sA1, u * 1024)]
    def oc(u):
        if u == 3: mark(a, cfg, 11)
        mark(a, cfg, 104 + u)
        for tau in range(2):
            for b in range(2):
                c = '0' if u == 0 else vr(acc(tau, b), 4)
                a('v_mfma_f32_16x16x32_bf16 %s, %s, %s, %s' % (vr(acc(tau, b), 4), ar(wo_frag(tau, u, b), 4), vr(mb + 4 * u, 4), c))
    ppoll(a, 4, ol, lambda u: range(mb + 4 * u, mb + 4 * u + 4), oc, g('dly_o', 0))
    for i in range(4):
        a('v_add_f32_dpp v%d, v%d, v%d row_ror:8 row_mask:0xf bank_mask:0x3' % (vZ + 12 + i, acc(0, 1) + i, acc(0, 0) + i))
    for i in range(4):
        a('v_add_f32_dpp v%d, v%d, v%d row_ror:8 row_mask:0xf bank_mask:0xc' % (vZ + 12 + i, acc(1, 0) + i, acc(1, 1) + i))
    if w != 0: a('ds_write_b128 v%d, v[%d:%d] offset:%d' % (vL16, vZ + 12, vZ + 15, LDS_D + w * 1024))
    a('s_waitcnt lgkmcnt(0)')
    mark(a, cfg, 12)
    a('s_barrier')
    mark(a, cfg, 13)
    if w == 0:
        z = vZ + 12
        reduce3(a, z, LDS_D, 0)
        for i in range(4): a('v_min_u32 v%d, -2, v%d' % (z + i, z + i))
        K = g('ns_x', 4) if g('xcopy', 1) else 1
        for cp in range(K): st(a, z, 4, vL16B if cp & 1 else vL16, sA2 + (cp >> 1), True)
    if w == 0:
        Lnp = a.newlabel('noprobe'); Lpb = a.newlabel('pubch')
        a('s_or_b32 s%d, s%d, s%d' % (sT0, sRX, sI))
        a('s_cmp_lg_u32 s%d, 0' % sT0)
        a.branch('s_cbranch_scc1 %s' % Lnp)
        a('s_cmp_gt_u32 s%d, 4' % sSTEP)
        a.branch('s_cbranch_scc1 %s' % Lnp)
        a('s_cmp_eq_u32 s%d, 4' % sSTEP)
        a.branch('s_cbranch_scc1 %s' % Lpb)
        a('s_waitcnt vmcnt(0)')
        a('s_sleep 2')
        a('s_cmp_lt_u32 s%d, 2' % sSTEP)
        a('s_cselect_b32 s%d, s%d, s%d' % (sA2, sXB, sXB + 1))
        for n in range(2):
            a('s_add_u32 s%d, s%d, %d' % (sT1, sSTEP, n))
            a('s_and_b32 s%d, s%d, 1' % (sT1, sT1))
            a('s_lshl_b32 s%d, s%d, 13' % (sT0, sT1))
            a('s_add_u32 s%d, s%d, s%d' % (sT0, sT0, sA2))
            a('s_memtime s[96:97]')
            a('s_waitcnt lgkmcnt(0)')
            st(a, vSENT, 4, vL16, sT0, True)
            a('s_waitcnt vmcnt(0)')
            a('s_memtime s[98:99]')
            a('s_waitcnt lgkmcnt(0)')
            a('s_sub_u32 s%d, s98, s96' % sT3)
            a('s_and_b32 s%d, s%d, 2' % (sT0, sSTEP))
            a('s_or_b32 s%d, s%d, s%d' % (sT1, sT1, sT0))
            for cnd, reg in enumerate((sP0, sP1, sP2, sP3)):
                a('s_min_u32 s%d, s%d, s%d' % (sT0, reg, sT3))
                a('s_cmp_eq_u32 s%d, %d' % (sT1, cnd))
                a('s_cselect_b32 s%d, s%d, s%d' % (reg, sT0, reg))
        a.branch('s_branch %s' % Lnp)
        a.label(Lpb)
        a('s_cmp_lt_u32 s%d, s%d' % (sP1, sP0))
        a('s_cselect_b32 s%d, 5, 4' % sT0)
        a('s_cmp_lt_u32 s%d, s%d' % (sP3, sP2))
        a('s_cselect_b32 s%d, 2, 0' % sT1)
        a('s_or_b32 s%d, s%d, s%d' % (sT0, sT0, sT1))
        a('v_mov_b32 v%d, s%d' % (vT, sT0))
        a('v_mov_b32 v%d, 132' % (vT + 1))
        a('s_mov_b64 exec, 1')
        a('buffer_store_dword v%d, v%d, s[%d:%d], 0 offen sc1' % (vT, vT + 1, sDBG, sDBG + 3))
        a('s_mov_b64 exec, -1')
        a.label(Lnp)
    if w == 3:
        for n in range(10):
            a('ds_read_b128 v[%d:%d], v%d offset:%d' % (vKX + 4 * n, vKX + 4 * n + 3, vL16, LDS_KV + n * 1024))
    a('s_add_u32 s%d, s%d, 1' % (sSTEP, sSTEP))
    mark(a, cfg, 14)
    a.branch('s_branch %s' % Lloop)
    a.label(Lend)
    if g('prof'):
        a('s_mov_b32 s95, s%d' % sSPIN)
        a('s_lshl_b32 s%d, s%d, 5' % (sT0, sRX))
        a('s_add_u32 s%d, s%d, s%d' % (sT0, sT0, sI))
        a('s_lshl_b32 s%d, s%d, 8' % (sT0, sT0))
        a('s_add_u32 s%d, s%d, 0x%x' % (sT0, sT0, MISC_OFF + 4096 + w * 64))
        a('v_mov_b32 v%d, 0' % (vT + 2))
        a('s_mov_b64 exec, 1')
        for k in range(16):
            a('v_mov_b32 v%d, s%d' % (vT, 80 + k))
            a('buffer_store_dword v%d, v%d, s[%d:%d], s%d offen offset:%d' % (vT, vT + 2, sWS, sWS + 3, sT0, 4 * k))
        a('s_mov_b64 exec, -1')
    if g('stamp') and w == 0:
        a('s_memrealtime s[72:73]')
        a('s_waitcnt lgkmcnt(0)')
        a('s_sub_u32 s72, s72, s70')
        a('v_mov_b32 v%d, s72' % vT)
        a('v_mov_b32 v%d, s%d' % (vT + 1, sSPIN))
        a('s_lshl_b32 s%d, s%d, 5' % (sT0, sRX))
        a('s_add_u32 s%d, s%d, s%d' % (sT0, sT0, sI))
        a('s_lshl_b32 s%d, s%d, 3' % (sT0, sT0))
        a('s_add_u32 s%d, s%d, 0x%x' % (sT0, sT0, MISC_OFF))
        a('v_mov_b32 v%d, 0' % (vT + 2))
        a('s_mov_b64 exec, 1')
        a('buffer_store_dwordx2 v[%d:%d], v%d, s[%d:%d], s%d offen' % (vT, vT + 1, vT + 2, sWS, sWS + 3, sT0))
    a('s_endpgm')

def archive_v(a):
    slot_off(a, sT0, sSTEP, 16, sARC)
    st(a, vVZ, 2, vL8, sT0, True)

def prefetch_dma(a):
    a('s_add_u32 s%d, s%d, 4096' % (sT0, sKF))
    for grp, (so, n) in enumerate(((sKF, 4), (sT0, 4), (sVF, 2))):
        a('s_mov_b32 m0, %d' % (LDS_KV + grp * 4096))
        for c in range(n):
            a('buffer_load_dwordx4 v%d, s[%d:%d], s%d offen offset:%d lds' % (vL16, sWS, sWS + 3, so, c * 1024))

def prefetch_kv(a):
    a('s_add_u32 s%d, s%d, 4096' % (sT0, sKF))
    for tt in range(2):
        for c in range(4):
            r = vKX + 16 * tt + 4 * c
            a('buffer_load_dwordx4 v[%d:%d], v%d, s[%d:%d], s%d offen offset:%d' % (r, r + 3, vL16, sWS, sWS + 3, sKF if tt == 0 else sT0, c * 1024))
    for e in range(2):
        a('buffer_load_dwordx4 v[%d:%d], v%d, s[%d:%d], s%d offen offset:%d' % (vVX + 4 * e, vVX + 4 * e + 3, vL16, sWS, sWS + 3, sVF, e * 1024))

def gen_r_kernel(name, cfg):
    a = Asm()
    a.raw(kernel_header(name))
    Lexit = 'r_exit'
    a('s_cmp_ge_u32 s2, 256')
    a('s_cbranch_scc1 %s' % Lexit)
    build_srds(a, dict(ws=sWS, wq=sWQ, wk=sWK, wv=sWV, wo=sWO, mem0=sM0, dbg=sDBG))
    a('s_getreg_b32 s%d, hwreg(HW_REG_XCC_ID)' % sRX)
    a('s_and_b32 s%d, s%d, 7' % (sRX, sRX))
    a('s_cmp_ge_u32 s%d, 4' % sRX)
    a('s_cbranch_scc1 %s' % Lexit)
    a('s_mov_b32 s%d, 0' % sSPIN)
    lane_consts(a)
    a('v_lshrrev_b32 v%d, 6, v0' % vT)
    a('v_readfirstlane_b32 s%d, v%d' % (sW, vT))
    Lt = a.newlabel('tk')
    a('s_cmp_lg_u32 s%d, 0' % sW)
    a.branch('s_cbranch_scc1 %s' % Lt)
    a('v_mov_b32 v%d, 1' % vT)
    a('s_lshl_b32 s%d, s%d, 2' % (sT0, sRX))
    a('v_mov_b32 v%d, s%d' % (vT + 1, sT0))
    a('v_mov_b32 v%d, %d' % (vT + 2, LDS_TK))
    a('s_mov_b64 exec, 1')
    a('buffer_atomic_add v%d, v%d, s[%d:%d], 0 offen sc0 sc1' % (vT, vT + 1, sDBG, sDBG + 3))
    a('s_waitcnt vmcnt(0)')
    a('ds_write_b32 v%d, v%d' % (vT + 2, vT))
    a('s_waitcnt lgkmcnt(0)')
    a('s_mov_b64 exec, -1')
    a.label(Lt)
    a('s_barrier')
    a('v_mov_b32 v%d, %d' % (vT + 2, LDS_TK))
    a('ds_read_b32 v%d, v%d' % (vT, vT + 2))
    a('s_waitcnt lgkmcnt(0)')
    a('v_readfirstlane_b32 s%d, v%d' % (sI, vT))
    a('s_cmp_ge_u32 s%d, 32' % sI)
    a.branch('s_cbranch_scc1 %s' % Lexit)
    a('s_lshr_b32 s%d, s%d, 2' % (sH, sI))
    a('s_lshl_b32 s%d, s%d, 3' % (sT0, sRX))
    a('s_add_u32 s%d, s%d, s%d' % (sH, sH, sT0))
    a('s_and_b32 s%d, s%d, 3' % (sJ, sI))
    load_weights(a)
    for w in range(1, 4):
        a('s_cmp_eq_u32 s%d, %d' % (sW, w))
        a.branch('s_cbranch_scc1 r_wave%d' % w)
    for w in range(4):
        a.label('r_wave%d' % w)
        wave_loop(a, w, cfg)
    a.label(Lexit)
    a('s_endpgm')
    return a.text()
```

```python
import sys, struct, math
from common import *
import rrole, g1role, prerole, g2role, modrole, fused

NAME = 'gated_mix__memory_aug_recurrent_mem_tr__moe_arch_mod__prompt'
HEADER = open('cdna_kernels/%s.s.ref' % NAME).read().split('; Override launch')[0]

def f32bits(x): return struct.unpack('<I', struct.pack('<f', x))[0]

def build(cfg, launches, kernels):
    out = HEADER
    for (k, g, b, lds) in launches:
        out += '; @launch kernel=%s grid=(%d,1,1) block=(%d,1,1) lds=%d\n' % (k, g, b, lds)
    out += '.amdgcn_target "amdgcn-amd-amdhsa--gfx950"\n.text\n'
    for name, text, _, _ in kernels:
        out += text
    out += '.section .rodata,"a"\n'
    for name, _, vg, acc in kernels:
        out += kernel_desc(name, vg, acc)
    return out

if __name__ == '__main__':
    cfg = dict(xcopy=0, ns_x=1, dly_x=28, dly_qk=18, wbl2=12, wo2=1, cbits=f32bits(128 ** -0.5 * math.log2(math.e)), stamp=1)
    for arg in sys.argv[2:]:
        k, v = arg.split('='); cfg[k] = int(v)
    if cfg.get('trk0'): cfg['trk'] = (23, 71)
    import modloop
    modloop.WO2[0] = cfg.get('wo2', 0)
    which = cfg.get('which', 2)
    g1role.NOPK[0] = cfg.get('nopk', 1)
    rrole.LW['order'] = cfg.get('lworder', 3); rrole.LW['rdelay'] = cfg.get('rdelay', 0)
    kernels, launches = [], []
    if which & 4:
        kernels.append(('pre_kernel', prerole.gen_pre_kernel('pre_kernel', cfg), 96, 96)); launches.append(('pre_kernel', 128, 256, 1024))
    if which & 1:
        kernels.append(('qkv_kernel', g1role.gen_g1_kernel('qkv_kernel', cfg), 512, 256)); launches.append(('qkv_kernel', 256, 256, 98304))
    if which & 2:
        kernels.append(('rec_kernel', rrole.gen_r_kernel('rec_kernel', cfg), 512, 256)); launches.append(('rec_kernel', 256, 256, 86016))
    if which & 8:
        kernels.append(('mod1_kernel', modrole.gen_mod_kernel('mod1_kernel', cfg, 1), 256, 256)); launches.append(('mod1_kernel', 112, 256, 66560))
        kernels.append(('mod2_kernel', modrole.gen_mod_kernel('mod2_kernel', cfg, 2), 256, 256)); launches.append(('mod2_kernel', 224, 256, 40960))
    if which & 16:
        kernels.append(('attn_kernel', g2role.gen_attn_kernel('attn_kernel', cfg), 184, 184)); launches.append(('attn_kernel', 512, 256, 0))
        kernels.append(('out_kernel', g2role.gen_out_kernel('out_kernel', cfg), 512, 256)); launches.append(('out_kernel', 256, 256, 65536))
    if which & 32:
        kernels.append(('main_kernel', fused.gen_fused('main_kernel', cfg), 512, 256)); launches.append(('main_kernel', 256, 256, 163840))
    open(sys.argv[1], 'w').write(build(cfg, launches, kernels))
```

```python
from asmlib import *

MB = 1 << 20
QF_OFF = 0
KF_OFF = 16 * MB
VF_OFF = 32 * MB
OF_OFF = 48 * MB
KM_OFF = 64 * MB
VM_OFF = 68 * MB
MX_OFF = 72 * MB
QKX_OFF = MX_OFF + 256 * 1024
OX_OFF = QKX_OFF + 512 * 1024
PX_OFF = 74 * MB
MISC_OFF = 78 * MB
XF_OFF = 96 * MB
GL_OFF = 84 * MB
RR_OFF = GL_OFF + 8192
HB_OFF = RR_OFF + 8192
YP_OFF = HB_OFF + 32768
IDX_OFF = YP_OFF + 65536
WS_BYTES = 256 * MB

KA = dict(x=0, mem0=8, wq=16, wk=24, wv=32, wo=40, seg=48, bx=56, wr=64, wg=72, wu=80, wd=88, gw=96, out=104, dbg=112, ws=120)
SZ = dict(x=2048*1024*2, mem0=8*1024*2, wq=1024*4096*2, wk=1024*4096*2, wv=1024*4096*2, wo=4096*1024*2, wr=2048, wg=1024*3584*2,
          wu=1024*3584*2, wd=3584*1024*2, gw=2048, out=2048*1024*2, dbg=256, ws=WS_BYTES)

def build_srds(a, srds):
    for n, b in srds.items():
        a('s_load_dwordx2 s[%d:%d], s[0:1], %d' % (b, b + 1, KA[n]))
    a('s_waitcnt lgkmcnt(0)')
    for n, b in srds.items():
        a('s_and_b32 s%d, s%d, 0xffff' % (b + 1, b + 1))
        a('s_mov_b32 s%d, 0x%x' % (b + 2, SZ[n]))
        a('s_mov_b32 s%d, 0x20000' % (b + 3))

def kernel_header(name):
    return '''.globl %s
.p2align 8
.type %s,@function
%s:
''' % (name, name, name)

def kernel_desc(name, vgpr, accum, sgpr=102):
    return '''.p2align 6
.amdhsa_kernel %s
  .amdhsa_next_free_vgpr %d
  .amdhsa_next_free_sgpr %d
  .amdhsa_accum_offset %d
  .amdhsa_group_segment_fixed_size 0
  .amdhsa_kernarg_size 128
  .amdhsa_user_sgpr_count 2
  .amdhsa_user_sgpr_kernarg_segment_ptr 1
  .amdhsa_system_sgpr_workgroup_id_x 1
.end_amdhsa_kernel
''' % (name, vgpr, sgpr, accum)

FLG_OFF = 85 * MB
PROG_OFF = FLG_OFF
GP_OFF = FLG_OFF + 1024
AP_OFF = FLG_OFF + 2048
DB_CHOICE, DB_INIT, DB_PRE, DB_M1, DB_M2, DB_RR = 132, 136, 64, 144, 148, 152
SPIN_LIMIT = 0x40000

def dbg_arrive(a, srd, off, vt):
    a('v_mov_b32 v%d, 1' % vt)
    a('v_mov_b32 v%d, %s' % (vt + 1, off))
    a('s_mov_b64 exec, 1')
    a('buffer_atomic_add v%d, v%d, s[%d:%d], 0 offen sc1' % (vt, vt + 1, srd, srd + 3))
    a('s_mov_b64 exec, -1')

def dbg_wait(a, srd, off, target, vt, sspin, sleep=0):
    L = a.newlabel('dw'); D = a.newlabel('dwd')
    a('v_mov_b32 v%d, %s' % (vt + 1, off))
    a.label(L)
    a('buffer_load_dword v%d, v%d, s[%d:%d], 0 offen sc1' % (vt, vt + 1, srd, srd + 3))
    a('s_waitcnt vmcnt(0)')
    a('v_cmp_gt_u32 vcc, %d, v%d' % (target, vt))
    a('s_cbranch_vccz %s' % D)
    if sleep: a('s_sleep %d' % sleep)
    a('s_add_u32 s%d, s%d, 1' % (sspin, sspin))
    a('s_cmp_lt_u32 s%d, 0x%x' % (sspin, SPIN_LIMIT))
    a('s_cbranch_scc1 %s' % L)
    a.label(D)
```

```python
from common import *
import rrole as R, g1role as G1, prerole as P, g2role as G2, modrole as M

sGX, sGI, sGW, sGC = 92, 93, 94, 95
sNA, sNW, sAV, sAA, sSP = 88, 89, 54, 55, 44
sDBG = 32
sPREO = 91
LDS_CTL = 32768

def g_body(a, cfg):
    Ln = a.newlabel('gi')
    a('s_cmp_lg_u32 s%d, 0' % sGW)
    a.branch('s_cbranch_scc1 %s' % Ln)
    a('s_lshl_b32 s%d, s%d, 2' % (R.sT0, sGC))
    a('s_add_u32 s%d, s%d, 0x%x' % (R.sT1, R.sT0, GP_OFF))
    a('s_add_u32 s%d, s%d, 0x%x' % (R.sT2, R.sT0, AP_OFF))
    a('v_mov_b32 v12, 0')
    a('s_mov_b64 exec, 1')
    a('buffer_store_dword v12, v12, s[%d:%d], s%d offen sc1' % (R.sWS, R.sWS + 3, R.sT1))
    a('buffer_store_dword v12, v12, s[%d:%d], s%d offen sc1' % (R.sWS, R.sWS + 3, R.sT2))
    a('s_mov_b64 exec, -1')
    a('s_waitcnt vmcnt(0)')
    dbg_arrive(a, sDBG, DB_INIT, 12)
    a.label(Ln)
    a('s_lshl_b32 s%d, s%d, 2' % (sPREO, sGX))
    a('s_add_u32 s%d, s%d, %d' % (sPREO, sPREO, DB_PRE))
    P.sX, P.sGW, P.sWR = 24, 28, 36
    P.sW, P.sC = sGW, sGC
    build_srds(a, dict(x=P.sX, gw=P.sGW, wr=P.sWR))
    a('s_lshr_b32 s%d, s%d, 2' % (R.sH, sGC))
    a('s_and_b32 s%d, s%d, 3' % (R.sJ, sGC))
    a('s_mov_b32 s%d, s%d' % (R.sW, sGW))
    def hook():
        if cfg.get('st2'): stamp(a, cfg, 1)
        R.load_weights(a, with_wo=False)
        a('s_waitcnt vmcnt(48)')
        if cfg.get('st2'): stamp(a, cfg, 2)
    P.pre_fused(a, cfg, sGX, sGI, 66560, hook)
    Lp = a.newlabel('gp')
    a('s_cmp_lg_u32 s%d, 1' % sGW)
    a.branch('s_cbranch_scc1 %s' % Lp)
    dbg_arrive(a, sDBG, 's%d' % sPREO, 12)
    a.label(Lp)
    G1.XFL[0] = ' sc1'
    a('s_mov_b32 s%d, 0' % G1.sSEG)
    a('s_mov_b32 s%d, 64' % G1.sEND)
    a('s_lshl_b32 s%d, s%d, 2' % (R.sT0, sGC))
    a('s_add_u32 s%d, s%d, 0x%x' % (G1.sGPA, R.sT0, GP_OFF))
    for w in range(1, 4):
        a('s_cmp_eq_u32 s%d, %d' % (sGW, w))
        a.branch('s_cbranch_scc1 fg1_wave%d' % w)
    for w in range(4):
        a.label('fg1_wave%d' % w)
        G1.g1_wave(a, w, cfg, 'fg1')
        if w < 3: a.branch('s_branch fg1_join')
    a.label('fg1_join')
    if not cfg.get('st2'): stamp(a, cfg, 1)
    build_srds(a, dict(wg=M.sWG, wu=M.sWU, wd=M.sWD, x=M.sX))
    a('s_mov_b32 s%d, s%d' % (M.sW, sGW))
    a('s_mov_b32 s%d, s%d' % (M.sB, sGC))
    L1 = a.newlabel('m1skip')
    a('s_cmp_ge_u32 s%d, 112' % sGC)
    a.branch('s_cbranch_scc1 %s' % L1)
    dbg_wait(a, sDBG, DB_RR, 128, 8, sSP)
    M.mod1_body(a, cfg, fl=' sc1', sfl=' sc1')
    a('s_waitcnt vmcnt(0)')
    a('s_barrier')
    Lw = a.newlabel('m1a')
    a('s_cmp_lg_u32 s%d, 0' % sGW)
    a.branch('s_cbranch_scc1 %s' % Lw)
    dbg_arrive(a, sDBG, DB_M1, 8)
    a.label(Lw)
    a.label(L1)
    dbg_wait(a, sDBG, DB_M1, 112, 8, sSP, sleep=2)
    a.label('fm2_loop')
    M.mod2_body(a, cfg, fl=' sc1', sfl=' sc1')
    a('s_waitcnt vmcnt(0)')
    a('s_barrier')
    a('s_add_u32 s%d, s%d, 128' % (M.sB, M.sB))
    a('s_cmp_lt_u32 s%d, 224' % M.sB)
    a.branch('s_cbranch_scc1 fm2_loop')
    Lw = a.newlabel('m2a')
    a('s_cmp_lg_u32 s%d, 0' % sGW)
    a.branch('s_cbranch_scc1 %s' % Lw)
    dbg_arrive(a, sDBG, DB_M2, 8)
    a.label(Lw)
    if not cfg.get('st2'): stamp(a, cfg, 2)
    build_srds(a, dict(wo=G2.sWO, x=G2.sX, out=G2.sOUT))
    G2.sI, G2.sW = sGI, sGW
    G2.out_consts(a)
    G2.out_load_weights(a)
    dbg_wait(a, sDBG, DB_M2, 128, 8, sSP, sleep=2)
    a('v_mov_b32 v8, 0')
    a('s_mov_b32 s%d, 0x%x' % (R.sT0, IDX_OFF))
    a('buffer_load_dwordx2 v[10:11], v8, s[%d:%d], s%d offen sc1' % (R.sWS, R.sWS + 3, R.sT0))
    a('s_waitcnt vmcnt(0)')
    a('v_readfirstlane_b32 s%d, v10' % G2.sIDX0)
    a('v_readfirstlane_b32 s%d, v11' % G2.sIDX1)
    a('s_mov_b32 s%d, 0' % sNA)
    a('s_mov_b32 s%d, 0' % sNW)
    a('s_barrier')
    if not cfg.get('st2'): stamp(a, cfg, 3)
    a.label('g2_loop')
    Lc = a.newlabel('ctl')
    a('s_cmp_lg_u32 s%d, 0' % sGW)
    a.branch('s_cbranch_scc1 %s' % Lc)
    a('v_and_b32 v8, 31, v0')
    a('v_lshlrev_b32 v8, 2, v8')
    a('v_and_b32 v9, 3, v0')
    a('v_lshlrev_b32 v9, 2, v9')
    a('s_lshl_b32 s%d, s%d, 7' % (R.sT0, sGX))
    a('s_add_u32 s%d, s%d, 0x%x' % (R.sT0, R.sT0, AP_OFF))
    a('s_lshl_b32 s%d, s%d, 4' % (R.sT1, sGI))
    a('s_add_u32 s%d, s%d, 0x%x' % (R.sT1, R.sT1, PROG_OFF))
    a('buffer_load_dword v10, v8, s[%d:%d], s%d offen sc1' % (R.sWS, R.sWS + 3, R.sT0))
    a('buffer_load_dword v11, v9, s[%d:%d], s%d offen sc1' % (R.sWS, R.sWS + 3, R.sT1))
    a('s_waitcnt vmcnt(0)')
    for sh in (1, 2, 4, 8):
        a('v_min_u32_dpp v10, v10, v10 row_ror:%d row_mask:0xf bank_mask:0xf' % sh)
        if sh < 4: a('v_min_u32_dpp v11, v11, v11 row_ror:%d row_mask:0xf bank_mask:0xf' % sh)
    a('v_mov_b32 v12, v10')
    a('v_permlane16_swap_b32 v10, v12')
    a('v_min_u32 v10, v10, v12')
    a('v_mov_b32 v12, %d' % LDS_CTL)
    a('ds_write_b64 v12, v[10:11]')
    a('s_waitcnt lgkmcnt(0)')
    a.label(Lc)
    a('s_barrier')
    a('v_mov_b32 v12, %d' % LDS_CTL)
    a('ds_read_b64 v[10:11], v12')
    a('s_waitcnt lgkmcnt(0)')
    a('v_readfirstlane_b32 s%d, v10' % sAA)
    a('v_readfirstlane_b32 s%d, v11' % sAV)
    a('s_barrier')
    a('s_add_u32 s%d, s%d, 3' % (sAV, sAV))
    a('s_sub_u32 s%d, s%d, s%d' % (sAV, sAV, sGX))
    a('s_lshr_b32 s%d, s%d, 2' % (sAV, sAV))
    Lna = a.newlabel('noattn'); Lnt = a.newlabel('notask'); Lnw = a.newlabel('nowo'); Lpa = a.newlabel('nopub')
    a('s_cmp_le_u32 s%d, s%d' % (sAV, sNA))
    a.branch('s_cbranch_scc1 %s' % Lna)
    a('s_add_u32 s%d, s%d, 4' % (R.sT0, sNA))
    a('s_min_u32 s%d, s%d, s%d' % (sAV, sAV, R.sT0))
    a('s_add_u32 s%d, s%d, s%d' % (R.sT0, sNA, sGW))
    a('s_cmp_ge_u32 s%d, s%d' % (R.sT0, sAV))
    a.branch('s_cbranch_scc1 %s' % Lnt)
    a('s_lshl_b32 s%d, s%d, 2' % (R.sT0, R.sT0))
    a('s_add_u32 s%d, s%d, s%d' % (R.sT0, R.sT0, sGX))
    a('s_lshl_b32 s%d, s%d, 5' % (R.sT0, R.sT0))
    a('s_add_u32 s%d, s%d, s%d' % (G2.sTASK, R.sT0, sGI))
    G2.attn_consts(a, cfg)
    G2.attn_task(a, cfg, all_sc1=True)
    a('s_waitcnt vmcnt(0)')
    a.label(Lnt)
    a('s_barrier')
    a('s_mov_b32 s%d, s%d' % (sNA, sAV))
    a('s_cmp_lg_u32 s%d, 0' % sGW)
    a.branch('s_cbranch_scc1 %s' % Lpa)
    a('s_lshl_b32 s%d, s%d, 2' % (R.sT0, sGC))
    a('s_add_u32 s%d, s%d, 0x%x' % (R.sT0, R.sT0, AP_OFF))
    a('v_mov_b32 v10, s%d' % sNA)
    a('v_mov_b32 v11, 0')
    a('s_mov_b64 exec, 1')
    a('buffer_store_dword v10, v11, s[%d:%d], s%d offen sc1' % (R.sWS, R.sWS + 3, R.sT0))
    a('s_mov_b64 exec, -1')
    a.label(Lpa)
    a.label(Lna)
    a('s_cmp_le_u32 s%d, s%d' % (sAA, sNW))
    a.branch('s_cbranch_scc1 %s' % Lnw)
    a('s_lshl_b32 s%d, s%d, 2' % (R.sT0, sNW))
    a('s_add_u32 s%d, s%d, s%d' % (R.sT0, R.sT0, sGX))
    a('s_lshl_b32 s%d, s%d, 1' % (G2.sTILE, R.sT0))
    G2.wo_segment(a, cfg)
    a('s_add_u32 s%d, s%d, 1' % (sNW, sNW))
    a.label(Lnw)
    a('s_add_u32 s%d, s%d, 1' % (sSP, sSP))
    a('s_cmp_ge_u32 s%d, 0x%x' % (sSP, SPIN_LIMIT))
    a.branch('s_cbranch_scc1 g2_done')
    a('s_cmp_lt_u32 s%d, 16' % sNW)
    a.branch('s_cbranch_scc1 g2_loop')
    a.label('g2_done')
    stamp(a, cfg, 4)
    a('s_endpgm')

def stamp(a, cfg, k):
    if not cfg.get('stamp'): return
    L = a.newlabel('stp')
    a('s_cmp_lg_u32 s%d, 0' % sGW)
    a.branch('s_cbranch_scc1 %s' % L)
    a('s_memrealtime s[74:75]')
    a('s_waitcnt lgkmcnt(0)')
    a('v_mov_b32 v250, s74')
    a('s_lshl_b32 s74, s%d, 5' % sGC)
    a('s_add_u32 s74, s74, 0x%x' % (MISC_OFF + 65536 + 4 * k))
    a('v_mov_b32 v251, 0')
    a('s_mov_b64 exec, 1')
    a('buffer_store_dword v250, v251, s[%d:%d], s74 offen' % (R.sWS, R.sWS + 3))
    a('s_mov_b64 exec, -1')
    a.label(L)

def gen_fused(name, cfg):
    cfg = dict(cfg); cfg['fused'] = 1; cfg['g1_sc1'] = 1
    a = Asm()
    a.raw(kernel_header(name))
    a('s_cmp_ge_u32 s2, 256')
    a('s_cbranch_scc1 f_exit')
    build_srds(a, dict(ws=R.sWS, wq=R.sWQ, wk=R.sWK, wv=R.sWV, wo=R.sWO, mem0=R.sM0, dbg=R.sDBG))
    a('s_getreg_b32 s%d, hwreg(HW_REG_XCC_ID)' % R.sRX)
    a('s_and_b32 s%d, s%d, 7' % (R.sRX, R.sRX))
    a('s_mov_b32 s%d, 0' % R.sSPIN)
    R.lane_consts(a)
    vT = R.vT
    a('v_lshrrev_b32 v%d, 6, v0' % vT)
    a('v_readfirstlane_b32 s%d, v%d' % (R.sW, vT))
    if cfg.get('wwarm', 1):
        a('s_lshl_b32 s%d, s2, 2' % R.sT0)
        a('s_add_u32 s%d, s%d, s%d' % (R.sT0, R.sT0, R.sW))
        a('s_lshl_b32 s%d, s%d, 13' % (R.sT0, R.sT0))
        a('s_add_u32 s%d, s%d, 4096' % (R.sT1, R.sT0))
        for n in range(8):
            for M, srd in enumerate((R.sWK, R.sWV, R.sWQ, R.sWO)):
                r = 244
                a('buffer_load_dwordx4 v[%d:%d], v%d, s[%d:%d], s%d offen offset:%d' % (r, r + 3, R.vL16, srd, srd + 3, R.sT0 if n < 4 else R.sT1, (n & 3) * 1024))
        if cfg.get('wwarm', 1) == 2: a('s_waitcnt vmcnt(0)')
    Lt = a.newlabel('tk')
    a('s_cmp_lg_u32 s%d, 0' % R.sW)
    a.branch('s_cbranch_scc1 %s' % Lt)
    a('v_mov_b32 v%d, 1' % vT)
    a('s_lshl_b32 s%d, s%d, 2' % (R.sT0, R.sRX))
    a('v_mov_b32 v%d, s%d' % (vT + 1, R.sT0))
    a('v_mov_b32 v%d, %d' % (vT + 2, R.LDS_TK))
    a('s_mov_b64 exec, 1')
    a('buffer_atomic_add v%d, v%d, s[%d:%d], 0 offen sc0 sc1' % (vT, vT + 1, R.sDBG, R.sDBG + 3))
    a('s_waitcnt vmcnt(0)')
    a('ds_write_b32 v%d, v%d' % (vT + 2, vT))
    a('s_waitcnt lgkmcnt(0)')
    a('s_mov_b64 exec, -1')
    a.label(Lt)
    a('s_barrier')
    a('v_mov_b32 v%d, %d' % (vT + 2, R.LDS_TK))
    a('ds_read_b32 v%d, v%d' % (vT, vT + 2))
    a('s_waitcnt lgkmcnt(0)')
    a('v_readfirstlane_b32 s%d, v%d' % (R.sI, vT))
    a('s_cmp_ge_u32 s%d, 32' % R.sI)
    a.branch('s_cbranch_scc1 f_exit')
    a('s_cmp_ge_u32 s%d, 4' % R.sRX)
    a.branch('s_cbranch_scc1 f_grole')
    R.r_body(a, cfg)
    a.label('f_grole')
    a('s_sub_u32 s%d, s%d, 4' % (sGX, R.sRX))
    a('s_mov_b32 s%d, s%d' % (sGI, R.sI))
    a('s_mov_b32 s%d, s%d' % (sGW, R.sW))
    a('s_lshl_b32 s%d, s%d, 5' % (sGC, sGX))
    a('s_add_u32 s%d, s%d, s%d' % (sGC, sGC, sGI))
    stamp(a, cfg, 0)
    g_body(a, cfg)
    a.label('f_exit')
    a('s_endpgm')
    return a.text()
```

```python
from common import *
import rrole as R
from rrole import sWS, sWQ, sWK, sWV, sDBG, sRX, sI, sW, sT0, sT1, sT2, sT3, sH, sJ, vL, vL16, vT, wq_frag

sX = 24
sSEG, sEND, sXO, sQO, sKO, sVO = 52, 53, 54, 55, 56, 57
vXA = 3
vXB = 16
vAC = 144
vRD = 192
vOUT = 224
LDSP = 0

def xf(buf, tt, T, b): return vXB + buf * 64 + ((tt * 4 + T) * 2 + b) * 4
def ac(tt, tile): return vAC + (tt * 6 + tile) * 4
def lp(buf, wv, tt, tile): return LDSP + buf * 49152 + ((wv * 2 + tt) * 6 + tile) * 1024

XFL = ['']
sGPA, sCNT, sSPIN, sWM = 58, 59, 44, 60
def xloads(buf, soff0, soff1):
    out = []
    for tt in range(2):
        for T in range(4):
            for b in range(2):
                r = xf(buf, tt, T, b)
                n = T * 2 + b
                out.append('buffer_load_dwordx4 v[%d:%d], v%d, s[%d:%d], s%d offen offset:%d' % (r, r + 3, vL16 if n < 4 else 5, sWS, sWS + 3, soff0 if tt == 0 else soff1, (n & 3) * 1024) + XFL[0])
    return out

FRAGS = [('q', 0), ('q', 1), ('k', 0), ('k', 1), ('v', 0), ('v', 1)]
def frag_src(kind, idx):
    if kind == 'q': return [(idx, 0), (idx, 1)]
    if kind == 'k': return [(idx, 2), (idx, 3)]
    return [(0, 4 + idx), (1, 4 + idx)]
ASSIGN = [[[0, 1], [2, 3], [4], [5]], [[0], [1], [2, 3], [4, 5]]]

def reduce_ops(w, par, sc1):
    ops = []
    for n, f in enumerate(ASSIGN[par][w]):
        kind, idx = FRAGS[f]
        o = vOUT + 4 * n
        rd = []
        for h2, (tt, tile) in enumerate(frag_src(kind, idx)):
            for wv in range(4):
                r = vRD + (h2 * 4 + wv) * 4
                off = lp(par, wv, tt, tile)
                rd.append('ds_read_b128 v[%d:%d], v%d offset:%d' % (r, r + 3, vL16 if off < 65536 else 4, off if off < 65536 else off - 49152))
        ops.append(('rd', rd))
        ad = []
        for h2 in range(2):
            b0 = vRD + h2 * 16
            for x in (0, 2):
                ad.append('v_pk_add_f32 v[%d:%d], v[%d:%d], v[%d:%d]' % (b0 + x, b0 + x + 1, b0 + x, b0 + x + 1, b0 + 4 + x, b0 + 5 + x))
                ad.append('v_pk_add_f32 v[%d:%d], v[%d:%d], v[%d:%d]' % (b0 + 8 + x, b0 + 9 + x, b0 + 8 + x, b0 + 9 + x, b0 + 12 + x, b0 + 13 + x))
            for x in (0, 2):
                ad.append('v_pk_add_f32 v[%d:%d], v[%d:%d], v[%d:%d]' % (b0 + x, b0 + x + 1, b0 + x, b0 + x + 1, b0 + 8 + x, b0 + 9 + x))
            ad.append('v_cvt_pk_bf16_f32 v%d, v%d, v%d' % (o + 2 * h2, b0, b0 + 1))
            ad.append('v_cvt_pk_bf16_f32 v%d, v%d, v%d' % (o + 2 * h2 + 1, b0 + 2, b0 + 3))
        so = {'q': sQO, 'k': sKO, 'v': sVO}[kind]
        if kind == 'v':
            ad.append('buffer_store_dwordx4 v[%d:%d], v%d, s[%d:%d], s%d offen offset:%d%s' % (o, o + 3, vL16, sWS, sWS + 3, so, idx * 1024, ' sc1' if sc1 else ''))
        else:
            ad.append('buffer_store_dwordx4 v[%d:%d], v%d, s[%d:%d], s%d offen%s' % (o, o + 3, vL16 if idx == 0 else 5, sWS, sWS + 3, so, ' sc1' if sc1 else ''))
        ops.append(('ad', ad))
    return ops

def pub_gp(a):
    a('v_mov_b32 v6, s%d' % sCNT)
    a('v_mov_b32 v7, 0')
    a('s_mov_b64 exec, 1')
    a('buffer_store_dword v6, v7, s[%d:%d], s%d offen sc1' % (sWS, sWS + 3, sGPA))
    a('s_mov_b64 exec, -1')

def seg_plan(w, par, first, cfg):
    sc1 = cfg.get('g1_sc1', 0)
    buf = par
    slots = [[] for _ in range(96)]
    nxt = xloads(1 - buf, sXO, sT0)
    for n, x in enumerate(nxt):
        tt = n // 8
        slots[tt * 48 + (n % 8) * 5 + 1].append(('x%d' % tt, x))
    if cfg.get('warm', 3) and w == 3:
        for n in range(2):
            slots[20 + 30 * n].append(('x2', 'buffer_load_dwordx4 v[232:235], v%d, s[%d:%d], s%d offen offset:%d%s' % (vL16, sWS, sWS + 3, sWM, n * 1024, XFL[0])))
    tail = []
    for tt in range(2):
        for tile in range(6):
            off = lp(buf, w, tt, tile)
            ins = ('ds', 'ds_write_b128 v%d, v[%d:%d] offset:%d' % (vL16 if off < 65536 else 4, ac(tt, tile), ac(tt, tile) + 3, off if off < 65536 else off - 49152))
            p = (tt * 6 + tile) * 8 + 7 + 5
            if p < 96: slots[p].append(ins)
            else: tail.append(ins)
    if not first:
        p = 0
        for kind, lst in reduce_ops(w, 1 - par, sc1):
            if kind == 'rd':
                for x in lst:
                    while len(slots[p]) >= 1: p += 1
                    slots[p].append(('ds', x)); p += 1
                p += 5
            else:
                slots[p].append(('w', 's_waitcnt lgkmcnt(0)'))
                for x in lst:
                    while len(slots[p]) >= 2: p += 1
                    slots[p].append(('st' if x.startswith('buffer_store') else 'va', x))
                p += 1
    return slots, tail

def vm_seq(slots, upto=96, frm=0):
    return [t for sl in slots[frm:upto] for (t, x) in sl if t in ('x0', 'x1', 'x2', 'st')]

def count_after(seq, tag):
    idx = max(i for i, t in enumerate(seq) if t == tag)
    return len(seq) - 1 - idx

def gmark(a, cfg, k):
    if not cfg.get('gprof'): return
    a('s_memtime s[76:77]')
    a('s_waitcnt lgkmcnt(0)')
    a('s_sub_u32 s78, s76, s79')
    a('s_add_u32 s%d, s%d, s78' % (80 + k, 80 + k))
    a('s_mov_b32 s79, s76')

def seg_body(a, w, par, first, cfg, preds):
    buf = par
    slots, tail = seg_plan(w, par, first, cfg)
    a('s_add_u32 s%d, s%d, 0x10000' % (sXO, sXO))
    if w == 3: a('s_add_u32 s%d, s%d, 0x10000' % (sWM, sWM))
    a('s_add_u32 s%d, s%d, 0x8000' % (sT0, sXO))
    if preds is None:
        n0 = n1 = None
        a('s_waitcnt vmcnt(0)')
    else:
        n0 = min(count_after(vm_seq(seg_plan(w, *p, cfg)[0]), 'x0') for p in preds)
        n1 = min(count_after(vm_seq(seg_plan(w, *p, cfg)[0]), 'x1') for p in preds) + len(vm_seq(slots, 48))
        a('s_waitcnt vmcnt(%d)' % n0)
        gmark(a, cfg, 0)
    n = 0
    for tt in range(2):
        if tt == 1 and n1 is not None:
            gmark(a, cfg, 1)
            a('s_waitcnt vmcnt(%d)' % n1)
            gmark(a, cfg, 2)
        for tile in range(6):
            for T in range(4):
                for b in range(2):
                    c = '0' if (T == 0 and b == 0) else vr(ac(tt, tile), 4)
                    W = ar(wq_frag(tile, T, b), 4); X = vr(xf(buf, tt, T, b), 4)
                    if tile < 4: a('v_mfma_f32_16x16x32_bf16 %s, %s, %s, %s' % (vr(ac(tt, tile), 4), W, X, c))
                    else: a('v_mfma_f32_16x16x32_bf16 %s, %s, %s, %s' % (vr(ac(tt, tile), 4), X, W, c))
                    for t, x in slots[n]: a(x)
                    n += 1
    for t, x in tail: a(x)
    gmark(a, cfg, 3)
    if not first:
        for so in (sQO, sKO, sVO): a('s_add_u32 s%d, s%d, 0x40000' % (so, so))
    if cfg.get('fused') and not first:
        a('s_waitcnt vmcnt(%d) lgkmcnt(0)' % len(vm_seq(slots)))
    else:
        a('s_waitcnt lgkmcnt(0)')
    gmark(a, cfg, 4)
    a('s_barrier')
    gmark(a, cfg, 5)
    if cfg.get('fused') and not first:
        if w == 0: pub_gp(a)
        a('s_add_u32 s%d, s%d, 1' % (sCNT, sCNT))

def g1_wave(a, w, cfg, pre):
    a('v_and_b32 v%d, 15, v%d' % (vT, vL))
    a('v_lshrrev_b32 v%d, 4, v%d' % (vT + 1, vL))
    a('v_lshlrev_b32 v%d, 5, v%d' % (vT + 1, vT + 1))
    a('v_lshl_add_u32 v%d, v%d, 11, v%d' % (vXA, vT, vT + 1))
    a('v_add_u32 v4, 49152, v%d' % vL16)
    a('v_add_u32 v5, 4096, v%d' % vL16)
    a('s_lshl_b32 s%d, s%d, 16' % (sXO, sSEG))
    if cfg.get('fused'):
        a('s_lshl_b32 s%d, s92, 22' % sT0)
        a('s_add_u32 s%d, s%d, s%d' % (sXO, sXO, sT0))
    if w == 3:
        a('s_lshl_b32 s%d, s%d, 2' % (sT0, sH))
        a('s_add_u32 s%d, s%d, s%d' % (sT0, sT0, sJ))
        a('s_and_b32 s%d, s%d, 31' % (sT0, sT0))
        a('s_lshl_b32 s%d, s%d, 11' % (sT0, sT0))
        a('s_add_u32 s%d, s%d, s%d' % (sWM, sXO, sT0))
        a('s_add_u32 s%d, s%d, 0x%x' % (sWM, sWM, XF_OFF + (cfg.get('warm', 3) - 1) * 0x10000))
    a('s_add_u32 s%d, s%d, 0x%x' % (sXO, sXO, XF_OFF + w * 8192))
    if not cfg.get('fused'):
        a('s_add_u32 s%d, s%d, 0x8000' % (sT0, sXO))
        for x in xloads(0, sXO, sT0): a(x)
    a('s_lshl_b32 s%d, s%d, 5' % (sT0, sSEG))
    a('s_add_u32 s%d, s%d, s%d' % (sT0, sT0, sH))
    a('s_lshl_b32 s%d, s%d, 13' % (sT0, sT0))
    a('s_lshl_b32 s%d, s%d, 10' % (sT1, sJ))
    a('s_add_u32 s%d, s%d, s%d' % (sT2, sT0, sT1))
    a('s_add_u32 s%d, s%d, 0x%x' % (sQO, sT2, QF_OFF))
    a('s_add_u32 s%d, s%d, 0x%x' % (sKO, sT2, KF_OFF))
    a('s_add_u32 s%d, s%d, s%d' % (sT2, sT2, sT1))
    a('s_add_u32 s%d, s%d, 0x%x' % (sVO, sT2, VF_OFF))
    R.transpose_weights(a, with_wo=False)
    if cfg.get('fused'):
        if cfg.get('st2'):
            import fused
            fused.stamp(a, cfg, 3)
        if w == 0: dbg_arrive(a, sDBG, DB_RR, 8)
        dbg_wait(a, sDBG, 's91', 32, 8, sSPIN)
        a('s_add_u32 s%d, s%d, 0x8000' % (sT0, sXO))
        for x in xloads(0, sXO, sT0): a(x)
        a('s_mov_b32 s%d, 0' % sCNT)
    a('s_barrier')
    a('s_memrealtime s[72:73]')
    if cfg.get('fused'):
        import fused
        fused.stamp(a, cfg, 5)
    if cfg.get('gprof'):
        for k in range(8): a('s_mov_b32 s%d, 0' % (80 + k))
        a('s_memtime s[76:77]')
        a('s_waitcnt lgkmcnt(0)')
        a('s_mov_b32 s79, s76')
    seg_body(a, w, 0, True, cfg, None)
    L = pre + '_loop_w%d' % w; E = pre + '_done_w%d' % w
    p_after_even = len(ASSIGN[1][w])
    a.label(L)
    seg_body(a, w, 1, False, cfg, [(0, True), (0, False)])
    a('s_add_u32 s%d, s%d, 2' % (sSEG, sSEG))
    a('s_cmp_ge_u32 s%d, s%d' % (sSEG, sEND))
    a.branch('s_cbranch_scc1 %s' % E)
    seg_body(a, w, 0, False, cfg, [(1, False)])
    a.branch('s_branch %s' % L)
    a.label(E)
    if cfg.get('gprof'):
        a('s_lshl_b32 s%d, s95, 7' % sT0)
        a('s_add_u32 s%d, s%d, 0x%x' % (sT0, sT0, MISC_OFF + 131072 + w * 32))
        a('v_mov_b32 v9, 0')
        a('s_mov_b64 exec, 1')
        for k in range(8):
            a('v_mov_b32 v8, s%d' % (80 + k))
            a('buffer_store_dword v8, v9, s[%d:%d], s%d offen offset:%d' % (sWS, sWS + 3, sT0, 4 * k))
        a('s_mov_b64 exec, -1')
    for kind, lst in reduce_ops(w, 1, cfg.get('g1_sc1', 0)):
        if kind == 'ad': a('s_waitcnt lgkmcnt(0)')
        for x in lst: a(x)
    if cfg.get('fused'):
        a('s_waitcnt vmcnt(0)')
        a('s_barrier')
        a('s_add_u32 s%d, s%d, 1' % (sCNT, sCNT))
        if w == 0: pub_gp(a)

def gen_g1_kernel(name, cfg):
    a = Asm()
    a.raw(kernel_header(name))
    a('s_cmp_ge_u32 s2, 256')
    a('s_cbranch_scc1 g1_exit')
    a('s_memrealtime s[70:71]')
    build_srds(a, dict(ws=sWS, wq=sWQ, wk=sWK, wv=sWV))
    a('v_and_b32 v%d, 63, v0' % vL)
    a('v_lshlrev_b32 v%d, 4, v%d' % (vL16, vL))
    a('v_lshrrev_b32 v%d, 6, v0' % vT)
    a('v_readfirstlane_b32 s%d, v%d' % (sW, vT))
    a('s_and_b32 s%d, s2, 127' % sT0)
    a('s_lshr_b32 s%d, s%d, 2' % (sH, sT0))
    a('s_and_b32 s%d, s%d, 3' % (sJ, sT0))
    a('s_lshr_b32 s%d, s2, 7' % sT0)
    a('s_lshl_b32 s%d, s%d, 5' % (sSEG, sT0))
    a('s_add_u32 s%d, s%d, 32' % (sEND, sSEG))
    R.load_weights(a, with_wo=False)
    for w in range(1, 4):
        a('s_cmp_eq_u32 s%d, %d' % (sW, w))
        a.branch('s_cbranch_scc1 g1_wave%d' % w)
    for w in range(4):
        a.label('g1_wave%d' % w)
        g1_wave(a, w, cfg, 'g1')
        if w == 0 and cfg.get('stamp'):
            a('s_memrealtime s[74:75]')
            a('s_waitcnt lgkmcnt(0)')
            a('v_mov_b32 v10, s70'); a('v_mov_b32 v11, s72'); a('v_mov_b32 v12, s74'); a('v_mov_b32 v13, 0')
            a('s_lshl_b32 s%d, s2, 4' % sT0)
            a('s_add_u32 s%d, s%d, 0x%x' % (sT0, sT0, MISC_OFF + 65536))
            a('v_mov_b32 v14, 0')
            a('s_mov_b64 exec, 1')
            a('buffer_store_dwordx4 v[10:13], v14, s[%d:%d], s%d offen' % (sWS, sWS + 3, sT0))
        a('s_endpgm')
    a.label('g1_exit')
    a('s_endpgm')
    return a.text()
```

```python
from common import *
import rrole as R

sWS = 8
sT0, sT1, sT2, sT3, sC, sTASK = 45, 46, 47, 48, 65, 41
sMK = 80
NEG = 0xff7fffff

class AV:
    L16, L8, Dup, L16B = 2, 3, 4, 5
    T = 8
    MLO, MHI, FLO, NEGV = 6, 7, 14, 15
    Q = 16
    K = 48
    KM = 80
    V = 96
    VM = 128
    S = 136
    P = 156
    O = 16
    RC = 176

def attn_consts(a, cfg):
    A = AV
    a('v_and_b32 v1, 63, v0')
    a('v_lshlrev_b32 v%d, 4, v1' % A.L16)
    a('v_lshlrev_b32 v%d, 3, v1' % A.L8)
    a('v_add_u32 v%d, 0x1000, v%d' % (A.L16B, A.L16))
    a('v_lshrrev_b32 v%d, 4, v1' % A.T)
    a('v_and_b32 v%d, 7, v1' % (A.T + 1))
    a('v_lshl_add_u32 v%d, v%d, 3, v%d' % (A.Dup, A.T, A.T + 1))
    a('v_lshlrev_b32 v%d, 4, v%d' % (A.Dup, A.Dup))
    a('v_cmp_gt_u32 vcc, 32, v1')
    a('v_cndmask_b32 v%d, 0, -1, vcc' % A.MLO)
    a('v_cndmask_b32 v%d, -1, 0, vcc' % A.MHI)
    a('v_cndmask_b32 v%d, 0, 1.0, vcc' % A.FLO)
    a('v_mov_b32 v%d, 0x%x' % (A.NEGV, NEG))
    a('v_and_b32 v%d, 15, v1' % (A.T + 1))
    a('v_lshlrev_b32 v%d, 2, v%d' % (A.T, A.T))
    for i in range(4):
        a('v_add_u32 v%d, %d, v%d' % (A.T + 2, i, A.T))
        a('v_cmp_le_u32 s[%d:%d], v%d, v%d' % (sMK + 2 * i, sMK + 2 * i + 1, A.T + 2, A.T + 1))
    a('s_mov_b32 s%d, 0x%x' % (sC, cfg['cbits']))

def attn_task(a, cfg, ld_flags='', st_flags='', all_sc1=False):
    A = AV
    a('s_lshl_b32 s%d, s%d, 13' % (sT0, sTASK))
    a('s_add_u32 s%d, s%d, 0x%x' % (sT1, sT0, KF_OFF))
    a('s_add_u32 s%d, s%d, 0x%x' % (sT2, sT0, VF_OFF))
    if QF_OFF: a('s_add_u32 s%d, s%d, 0x%x' % (sT0, sT0, QF_OFF))
    def ld(r, n, va, so, off, fl=''):
        if all_sc1: fl = ' sc1'
        a('buffer_load_dword%s %s, v%d, s[%d:%d], s%d offen offset:%d%s' % ('x%d' % n, vr(r, n), va, sWS, sWS + 3, so, off, fl))
    for n in range(8): ld(A.Q + 4 * n, 4, A.L16 if n < 4 else A.L16B, sT0, (n & 3) * 1024)
    for n in range(8): ld(A.K + 4 * n, 4, A.L16 if n < 4 else A.L16B, sT1, (n & 3) * 1024)
    a('s_lshl_b32 s%d, s%d, 11' % (sT0, sTASK))
    a('s_add_u32 s%d, s%d, 0x%x' % (sT1, sT0, KM_OFF))
    a('s_add_u32 s%d, s%d, 0x%x' % (sT0, sT0, VM_OFF))
    for c in range(4): ld(A.KM + 4 * c, 4, A.Dup, sT1, c * 512, ld_flags)
    for n in range(8): ld(A.V + 4 * n, 4, A.L16 if n < 4 else A.L16B, sT2, (n & 3) * 1024)
    for j in range(4): ld(A.VM + 2 * j, 2, A.L8, sT0, j * 512, ld_flags)
    tiles = {(0, 0): A.S, (0, 2): A.S + 4, (1, 0): A.S + 8, (1, 1): A.S + 12, (1, 2): A.S + 16}
    a('s_waitcnt vmcnt(12)')
    for c in range(4):
        for (u, t), d in tiles.items():
            Aop = (A.K + 16 * t + 4 * c) if t < 2 else (A.KM + 4 * c)
            a('v_mfma_f32_16x16x32_bf16 %s, %s, %s, %s' % (vr(d, 4), vr(Aop, 4), vr(A.Q + 16 * u + 4 * c, 4), '0' if c == 0 else vr(d, 4)))
    a('s_lshr_b32 s%d, s%d, 5' % (sT0, sTASK))
    a('s_lshl_b32 s%d, s%d, 18' % (sT0, sT0))
    a('s_and_b32 s%d, s%d, 31' % (sT1, sTASK))
    a('s_lshl_b32 s%d, s%d, 12' % (sT1, sT1))
    a('s_add_u32 s%d, s%d, s%d' % (sT0, sT0, sT1))
    a('s_add_u32 s%d, s%d, 0x%x' % (sT0, sT0, OF_OFF))
    a('s_add_u32 s%d, s%d, 0x20000' % (sT1, sT0))
    for d in (tiles[(0, 0)], tiles[(1, 1)]):
        for i in range(4):
            a('v_cndmask_b32 v%d, v%d, v%d, s[%d:%d]' % (d + i, A.NEGV, d + i, sMK + 2 * i, sMK + 2 * i + 1))
    for u in range(2):
        regs = [tiles[k] + i for k in sorted(tiles) if k[0] == u for i in range(4)]
        m, t2 = A.T + 2 * u, A.T + 2 * u + 1
        a('v_max3_f32 v%d, v%d, v%d, v%d' % (m, regs[0], regs[1], regs[2]))
        k = 3
        while k + 1 < len(regs):
            a('v_max3_f32 v%d, v%d, v%d, v%d' % (m, m, regs[k], regs[k + 1])); k += 2
        if k < len(regs): a('v_max_f32 v%d, v%d, v%d' % (m, m, regs[k]))
    for sw in ('v_permlane16_swap_b32', 'v_permlane32_swap_b32'):
        for u in range(2): a('v_mov_b32 v%d, v%d' % (A.T + 2 * u + 1, A.T + 2 * u))
        for u in range(2): a('%s v%d, v%d' % (sw, A.T + 2 * u, A.T + 2 * u + 1))
        for u in range(2): a('v_max_f32 v%d, v%d, v%d' % (A.T + 2 * u, A.T + 2 * u, A.T + 2 * u + 1))
    for u in range(2): a('v_mul_f32 v%d, s%d, v%d' % (A.T + 2 * u, sC, A.T + 2 * u))
    for (u, t), d in tiles.items():
        for i in range(4): a('v_fma_f32 v%d, v%d, s%d, -v%d' % (d + i, d + i, sC, A.T + 2 * u))
    for (u, t), d in tiles.items():
        for i in range(4): a('v_exp_f32 v%d, v%d' % (d + i, d + i))
    for u in range(2):
        p = A.P + 10 * u
        d = tiles[(u, 0)]
        a('v_cvt_pk_bf16_f32 v%d, v%d, v%d' % (p, d, d + 1)); a('v_cvt_pk_bf16_f32 v%d, v%d, v%d' % (p + 1, d + 2, d + 3))
        if u == 0:
            a('v_mov_b32 v%d, 0' % (p + 2)); a('v_mov_b32 v%d, 0' % (p + 3))
        else:
            d = tiles[(1, 1)]
            a('v_cvt_pk_bf16_f32 v%d, v%d, v%d' % (p + 2, d, d + 1)); a('v_cvt_pk_bf16_f32 v%d, v%d, v%d' % (p + 3, d + 2, d + 3))
        d = tiles[(u, 2)]
        a('v_cvt_pk_bf16_f32 v%d, v%d, v%d' % (p + 4, d, d + 1)); a('v_cvt_pk_bf16_f32 v%d, v%d, v%d' % (p + 5, d + 2, d + 3))
        a('v_and_b32 v%d, v%d, v%d' % (p + 6, p + 4, A.MLO)); a('v_and_b32 v%d, v%d, v%d' % (p + 7, p + 5, A.MLO))
        a('v_and_b32 v%d, v%d, v%d' % (p + 8, p + 4, A.MHI)); a('v_and_b32 v%d, v%d, v%d' % (p + 9, p + 5, A.MHI))
    a('s_waitcnt vmcnt(0)')
    for u in range(2):
        sA, sB = A.T + 2 * u, A.T + 2 * u + 1
        d2 = tiles[(u, 2)]; d0 = tiles[(u, 0)]
        R.pk_add(a, d2, d2, d2 + 2); R.pk_add(a, d0, d0, d0 + 2)
        if u == 1:
            d1 = tiles[(1, 1)]
            R.pk_add(a, d1, d1, d1 + 2); R.pk_add(a, d0, d0, d1)
        a('v_add_f32 v%d, v%d, v%d' % (sB, d2, d2 + 1))
        a('v_add_f32 v%d, v%d, v%d' % (sA, d0, d0 + 1))
        a('v_fma_f32 v%d, v%d, v%d, v%d' % (sA, sB, A.FLO, sA))
    for u in range(2):
        p = A.P + 10 * u
        for et in range(8):
            o = A.O + 32 * u + 4 * et
            a('v_mfma_f32_16x16x32_bf16 %s, %s, %s, 0' % (vr(o, 4), vr(A.V + 4 * et, 4), vr(p, 4)))
            if u == 0 and et in (0, 3):
                sw = 'v_permlane16_swap_b32' if et == 0 else 'v_permlane32_swap_b32'
                for x in range(2): a('v_mov_b32 v%d, v%d' % (A.T + 2 * x + 1, A.T + 2 * x))
                for x in range(2): a('%s v%d, v%d' % (sw, A.T + 2 * x, A.T + 2 * x + 1))
                for x in range(2): a('v_add_f32 v%d, v%d, v%d' % (A.T + 2 * x, A.T + 2 * x, A.T + 2 * x + 1))
            if u == 0 and et == 6:
                for x in range(2):
                    a('v_rcp_f32 v%d, v%d' % (A.RC + 2 * x, A.T + 2 * x))
                for x in range(2):
                    a('v_mov_b32 v%d, v%d' % (A.RC + 2 * x + 1, A.RC + 2 * x))
        for et in range(8):
            o = A.O + 32 * u + 4 * et
            a('v_mfma_f32_16x16x16_bf16 %s, %s, %s, %s' % (vr(o, 4), vr(A.VM + 2 * (et >> 1), 2), vr(p + 6 + 2 * (et & 1), 2), vr(o, 4)))
    for u in range(2):
        for c in range(4):
            o = A.O + 32 * u + 8 * c
            for i in range(4):
                a('v_pk_mul_f32 v[%d:%d], v[%d:%d], v[%d:%d]' % (o + 2 * i, o + 2 * i + 1, o + 2 * i, o + 2 * i + 1, A.RC + 2 * u, A.RC + 2 * u + 1))
            for i in range(4):
                a('v_cvt_pk_bf16_f32 v%d, v%d, v%d' % (o + i, o + 2 * i, o + 2 * i + 1))
            a('buffer_store_dwordx4 %s, v%d, s[%d:%d], s%d offen offset:%d%s' % (vr(o, 4), A.L16, sWS, sWS + 3, sT0 + u, c * 1024, st_flags))

def gen_attn_kernel(name, cfg):
    a = Asm()
    a.raw(kernel_header(name))
    a('s_cmp_ge_u32 s2, 512')
    a('s_cbranch_scc1 at_exit')
    build_srds(a, dict(ws=sWS))
    attn_consts(a, cfg)
    a('v_lshrrev_b32 v%d, 6, v0' % AV.T)
    a('v_readfirstlane_b32 s%d, v%d' % (sT0, AV.T))
    a('s_lshl_b32 s%d, s2, 2' % sTASK)
    a('s_add_u32 s%d, s%d, s%d' % (sTASK, sTASK, sT0))
    attn_task(a, cfg)
    a.label('at_exit')
    a('s_endpgm')
    return a.text()

sWO, sX, sOUT = 12, 16, 20
sI, sW, sTILE, sTEND, sTSTEP, sOO, sN, sIDX0, sIDX1 = 41, 42, 43, 44, 49, 50, 51, 52, 53
class OV:
    L, L16, L16B, XA, GA = 1, 2, 3, 4, 5
    T = 8
    TR = 12
    B = 16
    AC = 144
    XR = 152
    G = 160
    RD = 164
    E = 188
LDSO = 0

def wof(q, tau, p): return 64 * q + (tau * 8 + p) * 4

def out_load_weights(a):
    O = OV
    a('v_lshrrev_b32 v%d, 2, v%d' % (O.T, O.L))
    a('v_and_b32 v%d, 3, v%d' % (O.T + 1, O.L))
    a('v_lshlrev_b32 v%d, 4, v%d' % (O.T + 1, O.T + 1))
    a('v_lshl_add_u32 v%d, v%d, 11, v%d' % (O.T + 3, O.T, O.T + 1))
    a('s_lshl_b32 s%d, s%d, 21' % (sT0, sW))
    a('s_lshl_b32 s%d, s%d, 6' % (sT1, sI))
    a('s_add_u32 s%d, s%d, s%d' % (sT0, sT0, sT1))
    for n in range(64):
        a('buffer_load_dwordx4 a[%d:%d], v%d, s[%d:%d], s%d offen' % (4 * n, 4 * n + 3, O.T + 3, sWO, sWO + 3, sT0))
        if n < 63: a('s_add_u32 s%d, s%d, 0x8000' % (sT0, sT0))
        if n == 31: pass
    a('s_lshl_b32 s%d, s%d, 14' % (sT0, sW))
    a('v_add_u32 v%d, s%d, v%d' % (O.TR, sT0, O.L16))
    a('v_lshrrev_b32 v%d, 4, v%d' % (O.T, O.L))
    a('v_bfe_u32 v%d, v%d, 2, 2' % (O.T + 1, O.L))
    a('v_and_b32 v%d, 3, v%d' % (O.T + 2, O.L))
    a('v_lshl_add_u32 v%d, v%d, 2, v%d' % (O.T + 3, O.T, O.T + 1))
    a('v_lshlrev_b32 v%d, 6, v%d' % (O.T + 3, O.T + 3))
    a('v_lshl_add_u32 v%d, v%d, 4, v%d' % (O.T + 3, O.T + 2, O.T + 3))
    a('v_add_u32 v%d, s%d, v%d' % (O.TR + 1, sT0, O.T + 3))
    for q in range(4):
        a('s_waitcnt vmcnt(%d)' % (48 - 16 * q))
        for n in range(16):
            a('ds_write_b128 v%d, a[%d:%d] offset:%d' % (O.TR, 64 * q + 4 * n, 64 * q + 4 * n + 3, n * 1024))
        a('s_waitcnt lgkmcnt(0)')
        for tau in range(2):
            for p in range(8):
                for half in range(2):
                    r = wof(q, tau, p) + 2 * half
                    a('ds_read_b64_tr_b16 a[%d:%d], v%d offset:%d' % (r, r + 1, O.TR + 1, (32 * p + 16 * half) * 64 + tau * 8))
        a('s_waitcnt lgkmcnt(0)')

def oloads(q, so, fl=''):
    O = OV
    return ['buffer_load_dwordx4 v[%d:%d], v%d, s[%d:%d], s%d offen offset:%d%s' % (O.B + 32 * q + 4 * p, O.B + 32 * q + 4 * p + 3, O.L16 if p < 4 else O.L16B, sWS, sWS + 3, so, (p & 3) * 1024, fl) for p in range(8)]

def epilogue(a, par, tile_s=None, fused=False):
    O = OV
    for wv in range(4):
        for tau in range(2):
            r = O.E + wv * 8 + tau * 4
            a('ds_read_b128 v[%d:%d], v%d offset:%d' % (r, r + 3, O.L16, LDSO + par * 8192 + wv * 2048 + tau * 1024))
    a('s_waitcnt lgkmcnt(0)')
    for x in range(0, 8, 2):
        R.pk_add(a, O.E + x, O.E + x, O.E + 8 + x); R.pk_add(a, O.E + 16 + x, O.E + 16 + x, O.E + 24 + x)
    for x in range(0, 8, 2):
        R.pk_add(a, O.E + x, O.E + x, O.E + 16 + x)
    for i in range(4): a('v_cvt_pk_bf16_f32 v%d, v%d, v%d' % (O.E + 8 + i, O.E + 2 * i, O.E + 2 * i + 1))
    for i in range(4):
        a('v_lshlrev_b32 v%d, 16, v%d' % (O.E + 2 * i, O.E + 8 + i))
        a('v_and_b32 v%d, 0xffff0000, v%d' % (O.E + 2 * i + 1, O.E + 8 + i))
    xr = O.XR + 4 * par; g = O.G + par
    if not fused: a('s_waitcnt vmcnt(34)')
    for i in range(4):
        a('v_lshlrev_b32 v%d, 16, v%d' % (O.E + 16 + 2 * i, xr + i))
        a('v_and_b32 v%d, 0xffff0000, v%d' % (O.E + 17 + 2 * i, xr + i))
    if tile_s is None: a('s_sub_u32 s%d, s%d, s%d' % (sT0, sTILE, sTSTEP))
    else: a('s_add_u32 s%d, s%d, %d' % (sT0, tile_s, par))
    Lskip = a.newlabel('nomod')
    a('s_lshr_b32 s%d, s%d, 4' % (sT1, sIDX0))
    a('s_lshr_b32 s%d, s%d, 4' % (sT2, sIDX1))
    a('s_cmp_eq_u32 s%d, s%d' % (sT1, sT0))
    a('s_cselect_b32 s%d, 1, 0' % sT3)
    a('s_cmp_eq_u32 s%d, s%d' % (sT2, sT0))
    a('s_cselect_b32 s%d, 1, s%d' % (sT3, sT3))
    a('s_cmp_eq_u32 s%d, 0' % sT3)
    a.branch('s_cbranch_scc1 %s' % Lskip)
    a('v_and_b32 v%d, 15, v%d' % (O.E + 24, O.L))
    a('s_lshl_b32 s%d, s%d, 4' % (sT1, sT0))
    a('v_add_u32 v%d, s%d, v%d' % (O.E + 24, sT1, O.E + 24))
    a('v_lshrrev_b32 v%d, 4, v%d' % (O.E + 25, O.L))
    a('v_lshlrev_b32 v%d, 5, v%d' % (O.E + 25, O.E + 25))
    for c in range(2):
        Lc = a.newlabel('modc')
        a('v_cmp_eq_u32 vcc, s%d, v%d' % (sIDX0 + c, O.E + 24))
        a('s_and_saveexec_b64 s[90:91], vcc')
        a.branch('s_cbranch_execz %s' % Lc)
        a('s_lshl_b32 s%d, s%d, 7' % (sT1, sI))
        a('s_add_u32 s%d, s%d, 0x%x' % (sT1, sT1, YP_OFF + c * 4096))
        for i in range(8): a('v_mov_b32 v%d, 0' % (O.RD + 16 + i))
        for sp in range(7):
            a('buffer_load_dwordx4 v[%d:%d], v%d, s[%d:%d], s%d offen sc1' % (O.RD, O.RD + 3, O.E + 25, sWS, sWS + 3, sT1))
            a('buffer_load_dwordx4 v[%d:%d], v%d, s[%d:%d], s%d offen offset:16 sc1' % (O.RD + 4, O.RD + 7, O.E + 25, sWS, sWS + 3, sT1))
            a('s_add_u32 s%d, s%d, 8192' % (sT1, sT1))
            a('s_waitcnt vmcnt(0)')
            for x in range(0, 8, 2): R.pk_add(a, O.RD + 16 + x, O.RD + 16 + x, O.RD + x)
        a('s_mov_b32 s%d, 0x%x' % (sT1, IDX_OFF + 8 + 4 * c))
        a('v_mov_b32 v%d, 0' % (O.RD + 8))
        a('buffer_load_dword v%d, v%d, s[%d:%d], s%d offen sc1' % (O.RD + 9, O.RD + 8, sWS, sWS + 3, sT1))
        def rnd(base):
            for i in range(4):
                a('v_cvt_pk_bf16_f32 v%d, v%d, v%d' % (O.RD + i, base + 2 * i, base + 2 * i + 1))
            for i in range(4):
                a('v_lshlrev_b32 v%d, 16, v%d' % (base + 2 * i, O.RD + i))
                a('v_and_b32 v%d, 0xffff0000, v%d' % (base + 2 * i + 1, O.RD + i))
        rnd(O.RD + 16)
        a('s_waitcnt vmcnt(0)')
        for i in range(8): a('v_mul_f32 v%d, v%d, v%d' % (O.RD + 16 + i, O.RD + 16 + i, O.RD + 9))
        rnd(O.RD + 16)
        for i in range(8): a('v_add_f32 v%d, v%d, v%d' % (O.E + 16 + i, O.E + 16 + i, O.RD + 16 + i))
        rnd(O.E + 16)
        a.label(Lc)
        a('s_mov_b64 exec, s[90:91]')
    a.label(Lskip)
    a('v_sub_f32 v%d, 1.0, v%d' % (O.E + 24, g))
    a('v_cvt_pk_bf16_f32 v%d, v%d, v%d' % (O.E + 24, O.E + 24, O.E + 24))
    a('v_and_b32 v%d, 0xffff0000, v%d' % (O.E + 24, O.E + 24))
    for i in range(8): a('v_mul_f32 v%d, v%d, v%d' % (O.E + 16 + i, O.E + 16 + i, O.E + 24))
    for i in range(8): a('v_fma_f32 v%d, v%d, v%d, v%d' % (O.E + i, O.E + i, g, O.E + 16 + i))
    for i in range(4): a('v_cvt_pk_bf16_f32 v%d, v%d, v%d' % (O.E + 8 + i, O.E + 2 * i, O.E + 2 * i + 1))
    a('s_lshl_b32 s%d, s%d, 15' % (sT0, sT0))
    a('s_lshl_b32 s%d, s%d, 6' % (sT1, sI))
    a('s_add_u32 s%d, s%d, s%d' % (sT0, sT0, sT1))
    a('buffer_store_dwordx4 v[%d:%d], v%d, s[%d:%d], s%d offen' % (O.E + 8, O.E + 11, O.XA, sOUT, sOUT + 3, sT0))

def tile_body(a, par, cfg):
    O = OV
    a('s_lshl_b32 s%d, s%d, 15' % (sT0, sTILE))
    a('s_lshl_b32 s%d, s%d, 6' % (sT1, sI))
    a('s_add_u32 s%d, s%d, s%d' % (sT0, sT0, sT1))
    a('buffer_load_dwordx4 v[%d:%d], v%d, s[%d:%d], s%d offen' % (O.XR + 4 * par, O.XR + 4 * par + 3, O.XA, sX, sX + 3, sT0))
    a('s_lshl_b32 s%d, s%d, 6' % (sT0, sTILE))
    a('s_add_u32 s%d, s%d, 0x%x' % (sT0, sT0, GL_OFF))
    a('buffer_load_dword v%d, v%d, s[%d:%d], s%d offen' % (O.G + par, O.GA, sWS, sWS + 3, sT0))
    Ls = a.newlabel('noepi')
    a('s_cmp_eq_u32 s%d, 0' % sN)
    a('s_cbranch_scc1 %s' % Ls)
    a('s_and_b32 s%d, s%d, 3' % (sT0, sN))
    a('s_cmp_lg_u32 s%d, s%d' % (sT0, sW))
    a.branch('s_cbranch_scc1 %s' % Ls)
    epilogue(a, 1 - par)
    a.label(Ls)
    a('s_lshl_b32 s%d, s%d, 17' % (sT3, sTSTEP))
    a('s_add_u32 s%d, s%d, s%d' % (sOO, sOO, sT3))
    for q in range(4):
        a('s_waitcnt vmcnt(26)')
        for p in range(8):
            for tau in range(2):
                c = '0' if (q == 0 and p == 0) else vr(O.AC + 4 * tau, 4)
                a('v_mfma_f32_16x16x32_bf16 %s, %s, %s, %s' % (vr(O.AC + 4 * tau, 4), ar(wof(q, tau, p), 4), vr(O.B + 32 * q + 4 * p, 4), c))
        a('s_add_u32 s%d, s%d, %d' % (sT0, sOO, q * 8192))
        for x in oloads(q, sT0): a(x)
    a('s_lshl_b32 s%d, s%d, 11' % (sT0, sW))
    a('v_add_u32 v%d, s%d, v%d' % (O.T, sT0, O.L16))
    for tau in range(2):
        a('ds_write_b128 v%d, v[%d:%d] offset:%d' % (O.T, O.AC + 4 * tau, O.AC + 4 * tau + 3, LDSO + par * 8192 + tau * 1024))
    a('s_waitcnt lgkmcnt(0)')
    a('s_barrier')
    a('s_add_u32 s%d, s%d, s%d' % (sTILE, sTILE, sTSTEP))
    a('s_add_u32 s%d, s%d, 1' % (sN, sN))

def gen_out_kernel(name, cfg):
    O = OV
    a = Asm()
    a.raw(kernel_header(name))
    a('s_cmp_ge_u32 s2, 256')
    a('s_cbranch_scc1 out_exit')
    build_srds(a, dict(ws=sWS, wo=sWO, x=sX, out=sOUT))
    a('v_and_b32 v%d, 63, v0' % O.L)
    a('v_lshlrev_b32 v%d, 4, v%d' % (O.L16, O.L))
    a('v_add_u32 v%d, 0x1000, v%d' % (O.L16B, O.L16))
    a('v_lshrrev_b32 v%d, 6, v0' % O.T)
    a('v_readfirstlane_b32 s%d, v%d' % (sW, O.T))
    a('v_and_b32 v%d, 15, v%d' % (O.T, O.L))
    a('v_lshlrev_b32 v%d, 2, v%d' % (O.GA, O.T))
    a('v_lshrrev_b32 v%d, 4, v%d' % (O.T + 1, O.L))
    a('v_lshlrev_b32 v%d, 4, v%d' % (O.T + 1, O.T + 1))
    a('v_lshl_add_u32 v%d, v%d, 11, v%d' % (O.XA, O.T, O.T + 1))
    a('s_lshr_b32 s%d, s2, 3' % sI)
    a('s_and_b32 s%d, s2, 7' % sTILE)
    a('s_mov_b32 s%d, 8' % sTSTEP)
    a('s_mov_b32 s%d, 0' % sN)
    a('v_mov_b32 v%d, 0' % O.T)
    a('s_mov_b32 s%d, 0x%x' % (sT0, IDX_OFF))
    a('buffer_load_dwordx2 v[%d:%d], v%d, s[%d:%d], s%d offen' % (O.E, O.E + 1, O.T, sWS, sWS + 3, sT0))
    a('s_waitcnt vmcnt(0)')
    a('v_readfirstlane_b32 s%d, v%d' % (sIDX0, O.E))
    a('v_readfirstlane_b32 s%d, v%d' % (sIDX1, O.E + 1))
    out_load_weights(a)
    a('s_barrier')
    a('s_lshl_b32 s%d, s%d, 17' % (sOO, sTILE))
    a('s_lshl_b32 s%d, s%d, 15' % (sT0, sW))
    a('s_add_u32 s%d, s%d, s%d' % (sOO, sOO, sT0))
    a('s_add_u32 s%d, s%d, 0x%x' % (sOO, sOO, OF_OFF))
    for q in range(4):
        a('s_add_u32 s%d, s%d, %d' % (sT0, sOO, q * 8192))
        for x in oloads(q, sT0): a(x)
    a.label('out_loop')
    tile_body(a, 0, cfg)
    tile_body(a, 1, cfg)
    a('s_cmp_lt_u32 s%d, 16' % sN)
    a.branch('s_cbranch_scc1 out_loop')
    a('s_cmp_lg_u32 s%d, 0' % sW)
    a.branch('s_cbranch_scc1 out_exit')
    a('s_waitcnt vmcnt(0)')
    epilogue(a, 1)
    a.label('out_exit')
    a('s_endpgm')
    return a.text()

def out_consts(a):
    O = OV
    a('v_and_b32 v%d, 63, v0' % O.L)
    a('v_lshlrev_b32 v%d, 4, v%d' % (O.L16, O.L))
    a('v_add_u32 v%d, 0x1000, v%d' % (O.L16B, O.L16))
    a('v_and_b32 v%d, 15, v%d' % (O.T, O.L))
    a('v_lshlrev_b32 v%d, 2, v%d' % (O.GA, O.T))
    a('v_lshrrev_b32 v%d, 4, v%d' % (O.T + 1, O.L))
    a('v_lshlrev_b32 v%d, 4, v%d' % (O.T + 1, O.T + 1))
    a('v_lshl_add_u32 v%d, v%d, 11, v%d' % (O.XA, O.T, O.T + 1))

def wo_segment(a, cfg):
    O = OV
    out_consts(a)
    for par in range(2):
        a('s_add_u32 s%d, s%d, %d' % (sT2, sTILE, par))
        a('s_lshl_b32 s%d, s%d, 15' % (sT0, sT2))
        a('s_lshl_b32 s%d, s%d, 6' % (sT1, sI))
        a('s_add_u32 s%d, s%d, s%d' % (sT0, sT0, sT1))
        a('buffer_load_dwordx4 v[%d:%d], v%d, s[%d:%d], s%d offen' % (O.XR + 4 * par, O.XR + 4 * par + 3, O.XA, sX, sX + 3, sT0))
        a('s_lshl_b32 s%d, s%d, 6' % (sT0, sT2))
        a('s_add_u32 s%d, s%d, 0x%x' % (sT0, sT0, GL_OFF))
        a('buffer_load_dword v%d, v%d, s[%d:%d], s%d offen sc1' % (O.G + par, O.GA, sWS, sWS + 3, sT0))
    a('s_lshl_b32 s%d, s%d, 17' % (sOO, sTILE))
    a('s_lshl_b32 s%d, s%d, 15' % (sT0, sW))
    a('s_add_u32 s%d, s%d, s%d' % (sOO, sOO, sT0))
    a('s_add_u32 s%d, s%d, 0x%x' % (sOO, sOO, OF_OFF))
    for q in range(4):
        a('s_add_u32 s%d, s%d, %d' % (sT0, sOO, q * 8192))
        for x in oloads(q, sT0, ' sc1'): a(x)
    a('s_lshl_b32 s%d, s%d, 11' % (sT0, sW))
    a('v_add_u32 v%d, s%d, v%d' % (O.T, sT0, O.L16))
    for par in range(2):
        for q in range(4):
            a('s_waitcnt vmcnt(%d)' % (24 if par == 0 else 24 - 8 * q))
            for p in range(8):
                for tau in range(2):
                    c = '0' if (q == 0 and p == 0) else vr(O.AC + 4 * tau, 4)
                    a('v_mfma_f32_16x16x32_bf16 %s, %s, %s, %s' % (vr(O.AC + 4 * tau, 4), ar(wof(q, tau, p), 4), vr(O.B + 32 * q + 4 * p, 4), c))
            if par == 0:
                a('s_add_u32 s%d, s%d, %d' % (sT0, sOO, 0x20000 + q * 8192))
                for x in oloads(q, sT0, ' sc1'): a(x)
        for tau in range(2):
            a('ds_write_b128 v%d, v[%d:%d] offset:%d' % (O.T, O.AC + 4 * tau, O.AC + 4 * tau + 3, LDSO + par * 8192 + tau * 1024))
        a('s_waitcnt lgkmcnt(0)')
        a('s_barrier')
        Ls = a.newlabel('noepi')
        a('s_cmp_lg_u32 s%d, %d' % (sW, 1 + par))
        a.branch('s_cbranch_scc1 %s' % Ls)
        epilogue(a, par, sTILE, True)
        a.label(Ls)
```

```python
from common import *
sWS, sX, sGW, sWR = 8, 12, 16, 20
sW, sC, sT0, sT1 = 40, 41, 45, 46
LOG2E = 0x3fb8aa3b

def pre_body(a, cfg, sc1=False, lds0=0, hook=None, nhook=0):
    vL, vL16, vXA, vWA, vT = 1, 2, 3, 4, 6
    vX, vA, vD = 16, 48, 80
    a('v_and_b32 v%d, 63, v0' % vL)
    a('v_lshlrev_b32 v%d, 4, v%d' % (vL16, vL))
    a('v_and_b32 v%d, 15, v%d' % (vT, vL))
    a('v_lshrrev_b32 v%d, 4, v%d' % (vT + 1, vL))
    a('v_lshlrev_b32 v%d, 5, v%d' % (vWA, vT + 1))
    a('v_lshl_add_u32 v%d, v%d, 11, v%d' % (vXA, vT, vWA))
    a('s_lshl_b32 s%d, s%d, 15' % (sT0, sC))
    a('s_lshl_b32 s%d, s%d, 9' % (sT1, sW))
    a('s_add_u32 s%d, s%d, s%d' % (sT0, sT0, sT1))
    for n in range(8):
        a('buffer_load_dwordx4 v[%d:%d], v%d, s[%d:%d], s%d offen offset:%d' % (vX + 4 * n, vX + 4 * n + 3, vXA, sX, sX + 3, sT0, (n >> 1) * 128 + (n & 1) * 16))
    for i in range(32): a('v_mov_b32 v%d, 0' % (vA + i))
    a('v_cmp_eq_u32 vcc, 0, v%d' % vT)
    a('s_mov_b64 exec, vcc')
    for n in range(8):
        a('buffer_load_dwordx4 v[%d:%d], v%d, s[%d:%d], s%d offen offset:%d' % (vA + 4 * n, vA + 4 * n + 3, vWA, sGW, sGW + 3, sT1, (n >> 1) * 128 + (n & 1) * 16))
    a('s_mov_b64 exec, -1')
    a('v_cmp_eq_u32 vcc, 1, v%d' % vT)
    a('s_mov_b64 exec, vcc')
    for n in range(8):
        a('buffer_load_dwordx4 v[%d:%d], v%d, s[%d:%d], s%d offen offset:%d' % (vA + 4 * n, vA + 4 * n + 3, vWA, sWR, sWR + 3, sT1, (n >> 1) * 128 + (n & 1) * 16))
    a('s_mov_b64 exec, -1')
    a('s_lshl_b32 s%d, s%d, 15' % (sT0, sC))
    a('s_lshl_b32 s%d, s%d, 13' % (sT1, sW))
    a('s_add_u32 s%d, s%d, s%d' % (sT0, sT0, sT1))
    a('s_add_u32 s%d, s%d, 0x%x' % (sT0, sT0, XF_OFF))
    a('s_add_u32 s%d, s%d, 4096' % (sT1, sT0))
    a('s_waitcnt vmcnt(16)')
    for n in range(8):
        a('buffer_store_dwordx4 v[%d:%d], v%d, s[%d:%d], s%d offen offset:%d%s' % (vX + 4 * n, vX + 4 * n + 3, vL16, sWS, sWS + 3, sT0 if n < 4 else sT1, (n & 3) * 1024, ' sc1' if sc1 else ''))
    a('s_waitcnt vmcnt(8)')
    if hook: hook()
    for n in range(8):
        a('v_mfma_f32_16x16x32_bf16 v[%d:%d], v[%d:%d], v[%d:%d], %s' % (vD, vD + 3, vA + 4 * n, vA + 4 * n + 3, vX + 4 * n, vX + 4 * n + 3, '0' if n == 0 else vr(vD, 4)))
    a('s_lshl_b32 s%d, s%d, 7' % (sT1, sW))
    a('v_lshlrev_b32 v%d, 3, v%d' % (vT + 2, vL))
    if lds0: a('v_add_u32 v%d, %d, v%d' % (vT + 2, lds0, vT + 2))
    a('v_add_u32 v%d, s%d, v%d' % (vT + 3, sT1, vT + 2))
    a('s_mov_b64 exec, 0xffff')
    a('ds_write_b64 v%d, v[%d:%d] offset:%d' % (vT + 3, vD, vD + 1, 0))
    a('s_waitcnt lgkmcnt(0)')
    a('s_mov_b64 exec, -1')
    a('s_barrier')
    Ld = a.newlabel('pre_done')
    a('s_cmp_lg_u32 s%d, 0' % sW)
    a.branch('s_cbranch_scc1 %s' % Ld)
    a('s_mov_b64 exec, 0xffff')
    for w in range(4):
        a('ds_read_b64 v[%d:%d], v%d offset:%d' % (vD + 2 * w, vD + 2 * w + 1, vT + 2, w * 128))
    a('s_waitcnt lgkmcnt(0)')
    a('v_pk_add_f32 v[%d:%d], v[%d:%d], v[%d:%d]' % (vD, vD + 1, vD, vD + 1, vD + 2, vD + 3))
    a('v_pk_add_f32 v[%d:%d], v[%d:%d], v[%d:%d]' % (vD + 4, vD + 5, vD + 4, vD + 5, vD + 6, vD + 7))
    a('v_pk_add_f32 v[%d:%d], v[%d:%d], v[%d:%d]' % (vD, vD + 1, vD, vD + 1, vD + 4, vD + 5))
    a('v_cvt_pk_bf16_f32 v%d, v%d, v%d' % (vD + 2, vD, vD + 1))
    a('v_lshlrev_b32 v%d, 16, v%d' % (vD, vD + 2))
    a('v_and_b32 v%d, 0xffff0000, v%d' % (vD + 1, vD + 2))
    a('v_mul_f32 v%d, 0xbfb8aa3b, v%d' % (vD, vD))
    a('v_exp_f32 v%d, v%d' % (vD, vD))
    a('v_add_f32 v%d, 1.0, v%d' % (vD, vD))
    a('v_rcp_f32 v%d, v%d' % (vD, vD))
    a('v_cvt_pk_bf16_f32 v%d, v%d, v%d' % (vD, vD, vD))
    a('v_lshlrev_b32 v%d, 16, v%d' % (vD, vD))
    a('s_lshl_b32 s%d, s%d, 6' % (sT0, sC))
    a('s_add_u32 s%d, s%d, 0x%x' % (sT0, sT0, GL_OFF))
    a('s_add_u32 s%d, s%d, 8192' % (sT1, sT0))
    a('v_lshlrev_b32 v%d, 2, v%d' % (vT + 2, vL))
    a('buffer_store_dword v%d, v%d, s[%d:%d], s%d offen%s' % (vD, vT + 2, sWS, sWS + 3, sT0, ' sc1' if sc1 else ''))
    a('buffer_store_dword v%d, v%d, s[%d:%d], s%d offen%s' % (vD + 1, vT + 2, sWS, sWS + 3, sT1, ' sc1' if sc1 else ''))
    a('s_mov_b64 exec, -1')
    a.label(Ld)

def gen_pre_kernel(name, cfg):
    a = Asm()
    a.raw(kernel_header(name))
    a('s_cmp_ge_u32 s2, 128')
    a('s_cbranch_scc1 pre_exit')
    build_srds(a, dict(ws=sWS, x=sX, gw=sGW, wr=sWR))
    a('v_lshrrev_b32 v1, 6, v0')
    a('v_readfirstlane_b32 s%d, v1' % sW)
    a('s_mov_b32 s%d, s2' % sC)
    pre_body(a, cfg)
    a.label('pre_exit')
    a('s_endpgm')
    return a.text()

def pre_fused(a, cfg, sGX, sGI, lds0, hook):
    vL, vL16, vXA, vWA, vT = 1, 2, 3, 4, 6
    vX, vA, vD = 16, 144, 176
    a('v_and_b32 v%d, 63, v0' % vL)
    a('v_lshlrev_b32 v%d, 4, v%d' % (vL16, vL))
    a('v_add_u32 v5, 4096, v%d' % vL16)
    a('v_and_b32 v%d, 15, v%d' % (vT, vL))
    a('v_lshrrev_b32 v%d, 4, v%d' % (vT + 1, vL))
    a('v_lshlrev_b32 v%d, 5, v%d' % (vWA, vT + 1))
    a('v_lshl_add_u32 v%d, v%d, 11, v%d' % (vXA, vT, vWA))
    a('s_lshl_b32 s%d, s%d, 15' % (sT0, sGI))
    a('s_lshl_b32 s%d, s%d, 9' % (sT1, sW))
    a('s_add_u32 s%d, s%d, s%d' % (sT0, sT0, sT1))
    for t in range(4):
        for n in range(8):
            r = vX + 32 * t + 4 * n
            a('buffer_load_dwordx4 v[%d:%d], v%d, s[%d:%d], s%d offen offset:%d' % (r, r + 3, vXA, sX, sX + 3, sT0, (n >> 1) * 128 + (n & 1) * 16))
        a('s_add_u32 s%d, s%d, 0x100000' % (sT0, sT0))
    for i in range(32): a('v_mov_b32 v%d, 0' % (vA + i))
    for row, srd in ((0, sGW), (1, sWR)):
        a('v_cmp_eq_u32 vcc, %d, v%d' % (row, vT))
        a('s_mov_b64 exec, vcc')
        for n in range(8):
            a('buffer_load_dwordx4 v[%d:%d], v%d, s[%d:%d], s%d offen offset:%d' % (vA + 4 * n, vA + 4 * n + 3, vWA, srd, srd + 3, sT1, (n >> 1) * 128 + (n & 1) * 16))
        a('s_mov_b64 exec, -1')
    a('s_lshl_b32 s%d, s%d, 15' % (sT0, sGI))
    a('s_lshl_b32 s%d, s%d, 13' % (sT1, sW))
    a('s_add_u32 s%d, s%d, s%d' % (sT0, sT0, sT1))
    a('s_lshl_b32 s%d, s%d, 22' % (sT1, sGX))
    a('s_add_u32 s%d, s%d, s%d' % (sT0, sT0, sT1))
    a('s_add_u32 s%d, s%d, 0x%x' % (sT0, sT0, XF_OFF))
    for t in range(4):
        a('s_waitcnt vmcnt(%d)' % (16 + 24 - 8 * t + 8 * t))
        for n in range(8):
            r = vX + 32 * t + 4 * n
            a('buffer_store_dwordx4 v[%d:%d], v%d, s[%d:%d], s%d offen offset:%d' % (r, r + 3, vL16 if n < 4 else 5, sWS, sWS + 3, sT0, (n & 3) * 1024))
        a('s_add_u32 s%d, s%d, 0x100000' % (sT0, sT0))
    a('s_waitcnt vmcnt(8)')
    hook()
    J = a.newlabel('pj')
    for t in range(4):
        Ls = a.newlabel('ps')
        a('s_cmp_lg_u32 s%d, %d' % (sGX, t))
        a.branch('s_cbranch_scc1 %s' % Ls)
        for n in range(8):
            r = vX + 32 * t + 4 * n
            a('v_mfma_f32_16x16x32_bf16 v[%d:%d], v[%d:%d], v[%d:%d], %s' % (vD, vD + 3, vA + 4 * n, vA + 4 * n + 3, r, r + 3, '0' if n == 0 else vr(vD, 4)))
        a.label(Ls)
    a('s_lshl_b32 s%d, s%d, 7' % (sT1, sW))
    a('v_lshlrev_b32 v%d, 3, v%d' % (vT + 2, vL))
    a('v_add_u32 v%d, %d, v%d' % (vT + 2, lds0, vT + 2))
    a('v_add_u32 v%d, s%d, v%d' % (vT + 3, sT1, vT + 2))
    a('s_mov_b64 exec, 0xffff')
    a('ds_write_b64 v%d, v[%d:%d]' % (vT + 3, vD, vD + 1))
    a('s_waitcnt lgkmcnt(0)')
    a('s_mov_b64 exec, -1')
    a('s_barrier')
    Ld = a.newlabel('pre_done')
    a('s_cmp_lg_u32 s%d, 0' % sW)
    a.branch('s_cbranch_scc1 %s' % Ld)
    a('s_mov_b64 exec, 0xffff')
    for w in range(4):
        a('ds_read_b64 v[%d:%d], v%d offset:%d' % (vD + 2 * w, vD + 2 * w + 1, vT + 2, w * 128))
    a('s_waitcnt lgkmcnt(0)')
    a('v_pk_add_f32 v[%d:%d], v[%d:%d], v[%d:%d]' % (vD, vD + 1, vD, vD + 1, vD + 2, vD + 3))
    a('v_pk_add_f32 v[%d:%d], v[%d:%d], v[%d:%d]' % (vD + 4, vD + 5, vD + 4, vD + 5, vD + 6, vD + 7))
    a('v_pk_add_f32 v[%d:%d], v[%d:%d], v[%d:%d]' % (vD, vD + 1, vD, vD + 1, vD + 4, vD + 5))
    a('v_cvt_pk_bf16_f32 v%d, v%d, v%d' % (vD + 2, vD, vD + 1))
    a('v_lshlrev_b32 v%d, 16, v%d' % (vD, vD + 2))
    a('v_and_b32 v%d, 0xffff0000, v%d' % (vD + 1, vD + 2))
    a('v_mul_f32 v%d, 0xbfb8aa3b, v%d' % (vD, vD))
    a('v_exp_f32 v%d, v%d' % (vD, vD))
    a('v_add_f32 v%d, 1.0, v%d' % (vD, vD))
    a('v_rcp_f32 v%d, v%d' % (vD, vD))
    a('v_cvt_pk_bf16_f32 v%d, v%d, v%d' % (vD, vD, vD))
    a('v_lshlrev_b32 v%d, 16, v%d' % (vD, vD))
    a('s_lshl_b32 s%d, s%d, 6' % (sT0, sC))
    a('s_add_u32 s%d, s%d, 0x%x' % (sT0, sT0, GL_OFF))
    a('s_add_u32 s%d, s%d, 8192' % (sT1, sT0))
    a('v_lshlrev_b32 v%d, 2, v%d' % (vT + 2, vL))
    a('buffer_store_dword v%d, v%d, s[%d:%d], s%d offen sc1' % (vD, vT + 2, sWS, sWS + 3, sT0))
    a('buffer_store_dword v%d, v%d, s[%d:%d], s%d offen sc1' % (vD + 1, vT + 2, sWS, sWS + 3, sT1))
    a('s_mov_b64 exec, -1')
    a.label(Ld)
```

```python
from common import *

sWS, sWQ, sWK, sWV, sWO, sM0, sDBG = 8, 12, 16, 20, 24, 28, 32
sRX, sI, sW, sSTEP, sSPIN, sT0, sT1, sT2, sT3, sH, sJ = 40, 41, 42, 43, 44, 45, 46, 47, 48, 49, 50
sMXR, sMXW, sQKW, sQKR, sOXR, sOXW, sPXR, sPXW, sARC, sKF, sVF = 52, 53, 54, 55, 56, 57, 58, 59, 60, 61, 62
sSLOT, sSLOT2, sC, sA0, sA1, sA2, sA3, sP0, sP1 = 63, 64, 65, 66, 67, 68, 69, 74, 75
vL, vL16, vP8, vDup, vOD, vL8 = 1, 2, 3, 4, 5, 6
vSENT = 8
vT = 12
vSET = 16
vM = 64
vACC = 80
vZ = 128
vR = 144
vMLO, vMHI, vFLO = 156, 157, 158
vTR = 144
vKX = 160
vVX = 192
vS = 200
vP = 212
vVZ = 222
vO = 224
vX = 160
vXR = 224
vXA, vXM, vZERO = 232, 233, 234
sXB = 36
sPX1, sP2, sP3 = 51, 72, 73
sGP = 59
vL16B, vXAB = 7, 236
LDS_B = 0
LDS_D = 12288
LDS_KV = 16384
LDS_TK = 65536
SWITCH = 8

def acc(tile, b): return vACC + (tile * 2 + b) * 4
def wq_frag(tile, T, b): return ((tile * 4 + T) * 2 + b) * 4
def wo_frag(tau, u, b): return 192 + ((tau * 4 + u) * 2 + b) * 4

def check_sent(a, regs, tmp):
    regs = list(regs)
    h = len(regs) // 2
    chains = [(regs[:h], tmp), (regs[h:], tmp + 1)]
    outs = []
    for rg, t in chains:
        seq = ['v_max3_u32 v%d, v%d, v%d, v%d' % (t, rg[0], rg[1], rg[2])]
        k = 3
        while k + 1 < len(rg):
            seq.append('v_max3_u32 v%d, v%d, v%d, v%d' % (t, t, rg[k], rg[k + 1])); k += 2
        if k < len(rg): seq.append('v_max_u32 v%d, v%d, v%d' % (t, t, rg[k]))
        outs.append(seq)
    for x, y in zip(outs[0], outs[1]):
        a(x); a(y)
    a('v_max_u32 v%d, v%d, v%d' % (tmp, tmp, tmp + 1))
    a('v_cmp_eq_u32 vcc, -1, v%d' % tmp)

def delay(a, n):
    if n <= 0: return
    if n >= 4: a('s_sleep %d' % (n // 4))
    for _ in range(n % 4): a('s_nop 3')

def spoll_issue(a, nsets, loads, gap):
    for k in range(nsets):
        for ld in loads(k): a(ld)
        if k < nsets - 1: delay(a, gap)

def spoll(a, nsets, loads, regs, consume, first=0, gap=0, issued=False):
    L = a.newlabel('sp'); J = a.newlabel('spj')
    C = [a.newlabel('spc') for _ in range(nsets)]
    nl = len(loads(0))
    if not issued:
        delay(a, first)
        spoll_issue(a, nsets, loads, gap)
    a.label(L)
    for k in range(nsets):
        a('s_waitcnt vmcnt(%d)' % (nl * (nsets - 1)))
        check_sent(a, regs(k), vT)
        a('s_cbranch_vccz %s' % C[k])
        for ld in loads(k): a(ld)
    a('s_add_u32 s%d, s%d, 1' % (sSPIN, sSPIN))
    a('s_cmp_lt_u32 s%d, 0x%x' % (sSPIN, SPIN_LIMIT))
    a('s_cbranch_scc1 %s' % L)
    a('s_waitcnt vmcnt(0)')
    for k in range(nsets):
        a.label(C[k], fence=False); a.hist = []
        consume(k)
        if k < nsets - 1: a.branch('s_branch %s' % J)
    a.label(J)

def ppoll(a, nb, loads, regs, consume, first=0, issued=False):
    nl = len(loads(0))
    if not issued:
        delay(a, first)
        for T in range(nb):
            for ld in loads(T): a(ld)
    for T in range(nb):
        C = a.newlabel('ppc'); Rr = a.newlabel('ppr'); OK = a.newlabel('ppo')
        a('s_waitcnt vmcnt(%d)' % (nl * (nb - 1 - T)))
        rg = list(regs(T))
        def chk():
            if len(rg) == 4:
                a('v_max3_u32 v%d, v%d, v%d, v%d' % (vT, rg[0], rg[1], rg[2]))
                a('v_max_u32 v%d, v%d, v%d' % (vT, vT, rg[3]))
                a('v_cmp_eq_u32 vcc, -1, v%d' % vT)
            else:
                check_sent(a, rg, vT)
        chk()
        a('s_cbranch_vccz %s' % OK)
        saved = list(a.hist)
        a.label(Rr)
        for T2 in range(T, nb):
            for ld in loads(T2): a(ld)
        a('s_add_u32 s%d, s%d, 1' % (sSPIN, sSPIN))
        a('s_waitcnt vmcnt(%d)' % (nl * (nb - 1 - T)))
        chk()
        a('s_cbranch_vccz %s' % OK)
        a('s_cmp_lt_u32 s%d, 0x%x' % (sSPIN, SPIN_LIMIT))
        a('s_cbranch_scc1 %s' % Rr)
        a.label(OK, fence=False); a.hist = saved
        consume(T)

def combine_pair(a, z, t0, t1):
    for i in range(4):
        a('v_add_f32_dpp v%d, v%d, v%d row_ror:8 row_mask:0xf bank_mask:0x3' % (z + i, acc(t0, 1) + i, acc(t0, 0) + i))
        a('v_add_f32_dpp v%d, v%d, v%d row_ror:8 row_mask:0xf bank_mask:0xc' % (z + i, acc(t1, 0) + i, acc(t1, 1) + i))

def pk_add(a, d, x, y):
    a('v_pk_add_f32 v[%d:%d], v[%d:%d], v[%d:%d]' % (d, d + 1, x, x + 1, y, y + 1))

def reduce3(a, z, ldsbase, w):
    others = [x for x in range(4) if x != w]
    for n, o in enumerate(others):
        a('ds_read_b128 v[%d:%d], v%d offset:%d' % (vR + 4 * n, vR + 4 * n + 3, vL16, ldsbase + o * 1024))
    a('s_waitcnt lgkmcnt(2)')
    pk_add(a, z, z, vR); pk_add(a, z + 2, z + 2, vR + 2)
    a('s_waitcnt lgkmcnt(0)')
    pk_add(a, vR + 4, vR + 4, vR + 8); pk_add(a, vR + 6, vR + 6, vR + 10)
    pk_add(a, z, z, vR + 4); pk_add(a, z + 2, z + 2, vR + 6)

def load_weights(a, with_wo=True):
    a('v_lshrrev_b32 v%d, 2, v%d' % (vT, vL))
    a('v_and_b32 v%d, 3, v%d' % (vT + 1, vL))
    a('v_lshlrev_b32 v%d, 4, v%d' % (vT + 1, vT + 1))
    a('v_lshl_add_u32 v%d, v%d, 13, v%d' % (vT + 2, vT, vT + 1))
    a('v_lshl_add_u32 v%d, v%d, 11, v%d' % (vT + 3, vT, vT + 1))
    a('s_lshl_b32 s%d, s%d, 21' % (sT0, sW))
    a('s_lshl_b32 s%d, s%d, 8' % (sT1, sH))
    a('s_add_u32 s%d, s%d, s%d' % (sT0, sT0, sT1))
    a('s_lshl_b32 s%d, s%d, 6' % (sT1, sJ))
    a('s_add_u32 s%d, s%d, s%d' % (sT0, sT0, sT1))
    for n in range(16):
        for M, srd in enumerate((sWQ, sWK, sWV)):
            a('buffer_load_dwordx4 a[%d:%d], v%d, s[%d:%d], s%d offen' % (64 * M + 4 * n, 64 * M + 4 * n + 3, vT + 2, srd, srd + 3, sT0))
        if n < 15: a('s_add_u32 s%d, s%d, 0x20000' % (sT0, sT0))
    if with_wo:
        a('s_lshl_b32 s%d, s%d, 21' % (sT0, sRX))
        a('s_lshl_b32 s%d, s%d, 19' % (sT1, sW))
        a('s_add_u32 s%d, s%d, s%d' % (sT0, sT0, sT1))
        a('s_lshl_b32 s%d, s%d, 6' % (sT1, sI))
        a('s_add_u32 s%d, s%d, s%d' % (sT0, sT0, sT1))
        for n in range(16):
            a('buffer_load_dwordx4 a[%d:%d], v%d, s[%d:%d], s%d offen' % (192 + 4 * n, 192 + 4 * n + 3, vT + 3, sWO, sWO + 3, sT0))
            if n < 15: a('s_add_u32 s%d, s%d, 0x8000' % (sT0, sT0))

def transpose_weights(a, with_wo=True):
    a('s_lshl_b32 s%d, s%d, 14' % (sT0, sW))
    a('v_add_u32 v%d, s%d, v%d' % (vTR, sT0, vL16))
    a('v_lshrrev_b32 v%d, 4, v%d' % (vT, vL))
    a('v_bfe_u32 v%d, v%d, 2, 2' % (vT + 1, vL))
    a('v_and_b32 v%d, 3, v%d' % (vT + 2, vL))
    a('v_lshl_add_u32 v%d, v%d, 4, v%d' % (vT + 3, vT, vT + 1))
    a('v_lshlrev_b32 v%d, 6, v%d' % (vT + 3, vT + 3))
    a('v_lshl_add_u32 v%d, v%d, 3, v%d' % (vT + 3, vT + 2, vT + 3))
    a('v_add_u32 v%d, s%d, v%d' % (vTR + 1, sT0, vT + 3))
    a('v_lshl_add_u32 v%d, v%d, 2, v%d' % (vT + 3, vT, vT + 1))
    a('v_lshlrev_b32 v%d, 6, v%d' % (vT + 3, vT + 3))
    a('v_lshl_add_u32 v%d, v%d, 4, v%d' % (vT + 3, vT + 2, vT + 3))
    a('v_add_u32 v%d, s%d, v%d' % (vTR + 2, sT0, vT + 3))
    a('s_waitcnt vmcnt(0)')
    for M in range(4 if with_wo else 3):
        for n in range(16):
            a('ds_write_b128 v%d, a[%d:%d] offset:%d' % (vTR, 64 * M + 4 * n, 64 * M + 4 * n + 3, n * 1024))
        a('s_waitcnt lgkmcnt(0)')
        for tau in range(2):
            for T in range(4):
                for b in range(2):
                    for half in range(2):
                        if M < 3:
                            r = wq_frag(2 * M + tau, T, b) + 2 * half
                            off = (64 * T + 8 * b + 4 * half) * 64 + tau * 32
                            a('ds_read_b64_tr_b16 a[%d:%d], v%d offset:%d' % (r, r + 1, vTR + 1, off))
                        else:
                            r = wo_frag(tau, T, b) + 2 * half
                            off = (32 * (2 * T + b) + 16 * half) * 64 + tau * 8
                            a('ds_read_b64_tr_b16 a[%d:%d], v%d offset:%d' % (r, r + 1, vTR + 2, off))
        a('s_waitcnt lgkmcnt(0)')

def lane_consts(a):
    a('v_and_b32 v%d, 63, v0' % vL)
    a('v_lshlrev_b32 v%d, 4, v%d' % (vL16, vL))
    a('v_lshlrev_b32 v%d, 3, v%d' % (vL8, vL))
    a('v_lshrrev_b32 v%d, 4, v%d' % (vT, vL))
    a('v_and_b32 v%d, 7, v%d' % (vT + 1, vL))
    a('v_bfe_u32 v%d, v%d, 3, 1' % (vT + 2, vL))
    a('v_lshl_add_u32 v%d, v%d, 3, v%d' % (vT + 3, vT, vT + 1))
    a('v_lshlrev_b32 v%d, 4, v%d' % (vDup, vT + 3))
    a('v_lshl_add_u32 v%d, v%d, 3, v%d' % (vP8, vT + 2, vDup))
    a('v_lshl_add_u32 v%d, v%d, 9, v%d' % (vOD, vT + 2, vDup))
    for i in range(4): a('v_mov_b32 v%d, -1' % (vSENT + i))
    a('v_cmp_gt_u32 vcc, 32, v%d' % vL)
    a('v_cndmask_b32 v%d, 0, -1, vcc' % vMLO)
    a('v_cndmask_b32 v%d, -1, 0, vcc' % vMHI)
    a('v_cndmask_b32 v%d, 0, 1.0, vcc' % vFLO)

def mark(a, cfg, k):
    if not cfg.get('prof'): return
    if cfg['prof'] == 3:
        if k not in (1, 2, 9, 100, 101, 102, 103, 104, 105, 106, 107): return
        if k >= 100: k = k - 100 + 3 if k < 104 else k - 104 + 10
        a('s_memtime s[76:77]')
        a('s_cmp_eq_u32 s%d, %d' % (sSTEP, cfg.get('pstep', 21)))
        a('s_waitcnt lgkmcnt(0)')
        a('s_cselect_b32 s%d, s76, s%d' % (80 + k, 80 + k))
        return
    if k >= 100: return
    if cfg['prof'] == 2:
        a('s_memrealtime s[76:77]')
        a('s_cmp_eq_u32 s%d, %d' % (sSTEP, 20 if k > 1 else 21))
        a('s_waitcnt lgkmcnt(0)')
        a('s_cselect_b32 s%d, s76, s%d' % (80 + k, 80 + k))
        return
    a('s_memtime s[76:77]')
    a('s_waitcnt lgkmcnt(0)')
    a('s_sub_u32 s78, s76, s79')
    a('s_add_u32 s%d, s%d, s78' % (80 + k, 80 + k))
    a('s_mov_b32 s79, s76')

def px_slot(a, dst, slotreg, base):
    a('s_lshr_b32 s%d, s%d, 1' % (sT3, slotreg))
    a('s_lshl_b32 s%d, s%d, 14' % (sT3, sT3))
    a('s_add_u32 s%d, s%d, s%d' % (sT3, sT3, base))
    a('s_and_b32 s%d, s%d, 1' % (dst, slotreg))
    a('s_lshl_b32 s%d, s%d, 12' % (dst, dst))
    a('s_add_u32 s%d, s%d, s%d' % (dst, dst, sT3))

def slot_off(a, dst, slotreg, shift, base):
    a('s_lshl_b32 s%d, s%d, %d' % (dst, slotreg, shift))
    a('s_add_u32 s%d, s%d, s%d' % (dst, dst, base))

def st(a, regs, n, vaddr, soff, sc1=False):
    a('buffer_store_dword%s %s, v%d, s[%d:%d], s%d offen%s' % ('x%d' % n if n > 1 else '', vr(regs, n), vaddr, sWS, sWS + 3, soff, ' sc1' if sc1 else ''))

def read_choice(a, cfg, bases):
    L = a.newlabel('ch'); D = a.newlabel('chd')
    a('v_mov_b32 v%d, 132' % (vT + 1))
    a.label(L)
    a('buffer_load_dword v%d, v%d, s[%d:%d], 0 offen sc1' % (vT, vT + 1, sDBG, sDBG + 3))
    a('s_waitcnt vmcnt(0)')
    a('v_readfirstlane_b32 s%d, v%d' % (sT0, vT))
    a('s_cmp_lg_u32 s%d, 0' % sT0)
    a('s_cbranch_scc1 %s' % D)
    a('s_add_u32 s%d, s%d, 1' % (sSPIN, sSPIN))
    a('s_cmp_lt_u32 s%d, 0x%x' % (sSPIN, SPIN_LIMIT))
    a('s_cbranch_scc1 %s' % L)
    a.label(D)
    if 'forcesel' in cfg: a('s_mov_b32 s%d, %d' % (sT0, cfg['forcesel']))
    a('s_and_b32 s%d, s%d, 1' % (sT1, sT0))
    a('s_lshl_b32 s%d, s%d, 13' % (sT1, sT1))
    a('s_add_u32 s%d, s%d, s%d' % (sPXR, sPXR, sT1))
    a('s_and_b32 s%d, s%d, 2' % (sT1, sT0))
    a('s_lshl_b32 s%d, s%d, 12' % (sT1, sT1))
    a('s_add_u32 s%d, s%d, s%d' % (sPX1, sPX1, sT1))

def wave_loop(a, w, cfg):
    Lloop = 'r_loop_w%d' % w
    Lend = 'r_end_w%d' % w
    g = cfg.get
    a('s_lshl_b32 s%d, s%d, 16' % (sT0, sRX))
    a('s_add_u32 s%d, s%d, 0x%x' % (sMXR, sT0, MX_OFF + w * 4096))
    a('s_lshl_b32 s%d, s%d, 9' % (sT1, sI))
    a('s_add_u32 s%d, s%d, s%d' % (sT2, sT0, sT1))
    a('s_add_u32 s%d, s%d, 0x%x' % (sMXW, sT2, MX_OFF))
    a('s_add_u32 s%d, s%d, 0x%x' % (sOXR, sT0, OX_OFF + w * 4096))
    a('s_add_u32 s%d, s%d, 0x%x' % (sOXW, sT2, OX_OFF))
    a('s_lshl_b32 s%d, s%d, 17' % (sT0, sRX))
    a('s_lshr_b32 s%d, s%d, 2' % (sT1, sI))
    a('s_lshl_b32 s%d, s%d, 12' % (sT1, sT1))
    a('s_add_u32 s%d, s%d, s%d' % (sT0, sT0, sT1))
    a('s_add_u32 s%d, s%d, 0x%x' % (sQKR, sT0, QKX_OFF))
    a('s_lshl_b32 s%d, s%d, 9' % (sT1, sJ))
    a('s_add_u32 s%d, s%d, s%d' % (sQKW, sQKR, sT1))
    if w == 1: a('s_add_u32 s%d, s%d, 2048' % (sQKW, sQKW))
    a('s_lshl_b32 s%d, s%d, 16' % (sT0, sI))
    a('s_add_u32 s%d, s%d, 0x%x' % (sPXR, sT0, PX_OFF))
    if w == 0:
        a('s_lshl_b32 s%d, s%d, 10' % (sT1, sRX))
        a('s_add_u32 s%d, s%d, s%d' % (sPXR, sPXR, sT1))
    a('s_add_u32 s%d, s%d, 0x%x' % (sPX1, sPXR, 2 * MB))
    a('v_add_u32 v%d, 0x1000, v%d' % (vL16B, vL16))
    a('s_lshl_b32 s%d, s%d, 11' % (sT0, sH))
    a('s_lshl_b32 s%d, s%d, 9' % (sT1, sJ))
    a('s_add_u32 s%d, s%d, s%d' % (sT0, sT0, sT1))
    a('s_add_u32 s%d, s%d, 0x%x' % (sARC, sT0, KM_OFF if w == 1 else VM_OFF))
    a('s_lshl_b32 s%d, s%d, 13' % (sT0, sH))
    a('s_add_u32 s%d, s%d, 0x%x' % (sKF, sT0, KF_OFF))
    a('s_lshl_b32 s%d, s%d, 11' % (sT1, sJ))
    a('s_add_u32 s%d, s%d, s%d' % (sT0, sT0, sT1))
    a('s_add_u32 s%d, s%d, 0x%x' % (sVF, sT0, VF_OFF))
    a('s_mov_b32 s%d, 0x%x' % (sC, cfg['cbits']))
    a('s_mov_b32 s%d, 0x7fffffff' % sP0)
    a('s_mov_b32 s%d, 0x7fffffff' % sP1)
    a('s_mov_b32 s%d, 0x7fffffff' % sP2)
    a('s_mov_b32 s%d, 0x7fffffff' % sP3)
    for slot in range(4):
        if w in (0, 1):
            a('s_add_u32 s%d, s%d, 0x%x' % (sT0, sQKW, slot * 32768)); st(a, vSENT, 2, vL8, sT0)
        if w == 0:
            for reg in range(2 if g('xcopy', 1) else 1):
                for q4 in (range(4) if g('xcopy', 1) else (0, 2)):
                    a('s_add_u32 s%d, s%d, 0x%x' % (sT0, sPXR, reg * 2 * MB + slot * 16384 + q4 * 4096)); st(a, vSENT, 4, vL16, sT0, True)
        if w == 2:
            a('s_add_u32 s%d, s%d, 0x%x' % (sT0, sMXW, slot * 16384)); st(a, vSENT, 2, vL8, sT0)
        if w == 3:
            a('s_add_u32 s%d, s%d, 0x%x' % (sT0, sOXW, slot * 16384)); st(a, vSENT, 2, vL8, sT0)
    fused = g('fused', 0)
    if w == 3 and not fused:
        prefetch_kv(a)
    if w == 3 and fused:
        a('s_lshl_b32 s%d, s%d, 5' % (sT0, sRX))
        a('s_add_u32 s%d, s%d, s%d' % (sT0, sT0, sI))
        a('s_lshl_b32 s%d, s%d, 2' % (sT0, sT0))
        a('s_add_u32 s%d, s%d, 0x%x' % (sARC, sT0, PROG_OFF))
        publish_prog(a, None, 0)
    if w in (1, 2):
        xa = w - 1
        a('v_add_u32 v%d, %d, v%d' % (vT, 64 * xa, vL))
        a('v_lshlrev_b32 v%d, 3, v%d' % (vXA, vT))
        a('v_add_u32 v%d, 0x1000, v%d' % (vXAB, vXA))
        a('v_lshrrev_b32 v%d, 1, v%d' % (vT + 1, vT))
        a('v_and_b32 v%d, 7, v%d' % (vT + 2, vT + 1))
        a('v_lshrrev_b32 v%d, 4, v%d' % (vT + 3, vT + 1))
        a('v_lshl_add_u32 v%d, v%d, 3, v%d' % (vXM, vT + 3, vT + 2))
        a('v_lshlrev_b32 v%d, 4, v%d' % (vXM, vXM))
        a('v_bfe_u32 v%d, v%d, 3, 1' % (vT + 3, vT + 1))
        a('v_lshl_add_u32 v%d, v%d, 3, v%d' % (vXM, vT + 3, vXM))
        a('v_and_b32 v%d, 1, v%d' % (vT + 3, vL))
        a('v_lshl_add_u32 v%d, v%d, 2, v%d' % (vXM, vT + 3, vXM))
        a('v_lshrrev_b32 v%d, 3, v%d' % (vT + 1, vT + 1))
        a('v_lshlrev_b32 v%d, 3, v%d' % (vT + 1, vT + 1))
        a('v_lshl_add_u32 v%d, v%d, 2, v%d' % (vT + 1, vT + 3, vT + 1))
        a('v_lshl_add_u32 v%d, v%d, 11, v%d' % (vT, vT + 2, vT + 1))
        a('s_lshl_b32 s%d, s%d, 6' % (sT0, sI))
        a('buffer_load_dword v%d, v%d, s[%d:%d], s%d offen' % (vXR, vT, sM0, sM0 + 3, sT0))
        a('v_mov_b32 v%d, 0' % vZERO)
        a('v_mov_b32 v%d, 0' % (vZERO + 1))
    load_weights(a)
    a('s_waitcnt vmcnt(63)')
    a('s_barrier')
    if w == 0:
        dbg_arrive(a, sDBG, DB_INIT, vR)
    transpose_weights(a)
    a('s_barrier')
    if w == 0 or (w == 2 and fused):
        dbg_wait(a, sDBG, DB_INIT, 256 if fused else 128, vT, sSPIN)
    if w == 2 and fused:
        a('s_mov_b32 s%d, 0' % sGP)
        ensure_gp(a, None, 1)
        prefetch_dma(a, True)
        a('s_waitcnt vmcnt(0)')
    a('s_barrier')
    if w == 3 and fused:
        for n in range(10):
            a('ds_read_b128 v[%d:%d], v%d offset:%d' % (vKX + 4 * n, vKX + 4 * n + 3, vL16, LDS_KV + n * 1024))
    a('s_mov_b32 s%d, 0' % sSTEP)
    if g('stamp'): a('s_memrealtime s[70:71]')
    if g('prof'):
        for k in range(16): a('s_mov_b32 s%d, 0' % (80 + k))
        a('s_memtime s[76:77]')
        a('s_waitcnt lgkmcnt(0)')
        a('s_mov_b32 s79, s76')
    a.label(Lloop)
    a('s_and_b32 s%d, s%d, 3' % (sSLOT, sSTEP))
    a('s_add_u32 s%d, s%d, 2' % (sSLOT2, sSTEP))
    a('s_and_b32 s%d, s%d, 3' % (sSLOT2, sSLOT2))
    slot_off(a, sA0, sSLOT, 14, sMXR)
    slot_off(a, sA1, sSLOT, 14, sOXR)
    if w in (1, 2):
        Lpub = a.newlabel('apub'); Lns = a.newlabel('nosw')
        slot_off(a, sA2, sSLOT, 14, sMXW)
        slot_off(a, sA3, sSLOT2, 14, sMXW)
        a('s_cmp_eq_u32 s%d, 0' % sSTEP)
        a.branch('s_cbranch_scc1 %s' % Lpub)
        a('s_cmp_lg_u32 s%d, %d' % (sSTEP, SWITCH))
        a.branch('s_cbranch_scc1 %s' % Lns)
        read_choice(a, cfg, None)
        a.label(Lns)
        for reg, base in ((0, sPXR), (1, sPX1)):
            slot_off(a, sT0, sSLOT, 14, base)
            a('s_add_u32 s%d, s%d, s%d' % (sXB + 2 * reg, sWS, sT0))
            a('s_addc_u32 s%d, s%d, 0' % (sXB + 2 * reg + 1, sWS + 1))
        def xl(k):
            cp = k if g('xcopy', 1) else 0
            return ['global_load_dwordx2 v[%d:%d], v%d, s[%d:%d] offset:%d sc1' % (vX + 8 * k + 2 * p, vX + 8 * k + 2 * p + 1, vXAB if cp & 1 else vXA, sXB + 2 * (cp >> 1), sXB + 2 * (cp >> 1) + 1, p * 1024) for p in range(4)]
        def xc(k):
            b = vX + 8 * k
            pk_add(a, b, b, b + 2); pk_add(a, b + 4, b + 4, b + 6)
            pk_add(a, b, b, b + 4)
            a('v_cvt_pk_bf16_f32 v%d, v%d, v%d' % (vXR, b, b + 1))
        spoll(a, g('ns_x', 4), xl, lambda k: range(vX + 8 * k, vX + 8 * k + 8), xc, g('dly_x', 0), g('gap_x', 8))
        mark(a, cfg, 0)
        a.label(Lpub)
        a('v_min_u32 v%d, -2, v%d' % (vXR, vXR))
        st(a, vXR, 1, vXM, sA2)
        st(a, vSENT, 1, vXM, sA3)
    if w in (0, 1):
        slot_off(a, sA2, sSLOT, 15, sQKW)
        slot_off(a, sA3, sSLOT2, 15, sQKW)
    if w == 3:
        slot_off(a, sA2, sSLOT, 14, sOXW)
        slot_off(a, sA3, sSLOT2, 14, sOXW)
        slot_off(a, sT2, sSLOT, 15, sQKR)
    mark(a, cfg, 1)
    a('s_barrier')
    mark(a, cfg, 2)
    mb = vSET + 64
    mb = vM
    def ml(T): return ['buffer_load_dwordx4 v[%d:%d], v%d, s[%d:%d], s%d offen offset:%d sc1' % (mb + 4 * T, mb + 4 * T + 3, vL16, sWS, sWS + 3, sA0, T * 1024)]
    def mc(T):
        if T == 3: mark(a, cfg, 3)
        mark(a, cfg, 100 + T)
        for tile in range(4):
            for b in range(2):
                c = '0' if T == 0 else vr(acc(tile, b), 4)
                a('v_mfma_f32_16x16x32_bf16 %s, %s, %s, %s' % (vr(acc(tile, b), 4), ar(wq_frag(tile, T, b), 4), vr(mb + 4 * T, 4), c))
    ppoll(a, 4, ml, lambda T: range(mb + 4 * T, mb + 4 * T + 4), mc, g('dly_m', 0))
    for i in range(4):
        a('v_add_f32_dpp v%d, v%d, v%d row_ror:8 row_mask:0xf bank_mask:0x3' % (vZ + i, acc(0, 1) + i, acc(0, 0) + i))
    for i in range(4):
        a('v_add_f32_dpp v%d, v%d, v%d row_ror:8 row_mask:0xf bank_mask:0xc' % (vZ + i, acc(1, 0) + i, acc(1, 1) + i))
    if w != 0: a('ds_write_b128 v%d, v[%d:%d] offset:%d' % (vL16, vZ, vZ + 3, LDS_B + w * 1024))
    for i in range(4):
        a('v_add_f32_dpp v%d, v%d, v%d row_ror:8 row_mask:0xf bank_mask:0x3' % (vZ + 4 + i, acc(2, 1) + i, acc(2, 0) + i))
    for i in range(4):
        a('v_add_f32_dpp v%d, v%d, v%d row_ror:8 row_mask:0xf bank_mask:0xc' % (vZ + 4 + i, acc(3, 0) + i, acc(3, 1) + i))
    if w != 1: a('ds_write_b128 v%d, v[%d:%d] offset:%d' % (vL16, vZ + 4, vZ + 7, LDS_B + 4096 + w * 1024))
    a('s_waitcnt lgkmcnt(0)')
    mark(a, cfg, 4)
    a('s_barrier')
    mark(a, cfg, 5)
    if w in (0, 1):
        z = vZ + 4 * w
        reduce3(a, z, LDS_B + 4096 * w, w)
        a('v_cvt_pk_bf16_f32 v%d, v%d, v%d' % (z, z, z + 1))
        a('v_cvt_pk_bf16_f32 v%d, v%d, v%d' % (z + 1, z + 2, z + 3))
        a('v_min_u32 v%d, -2, v%d' % (z, z))
        a('v_min_u32 v%d, -2, v%d' % (z + 1, z + 1))
        st(a, z, 2, vP8, sA2)
        st(a, vSENT, 2, vL8, sA3)
        if w == 1:
            slot_off(a, sT0, sSTEP, 16, sARC)
            st(a, z, 2, vP8, sT0, True)
    def qkl(c):
        return ['buffer_load_dwordx4 v[%d:%d], v%d, s[%d:%d], s%d offen offset:%d sc1' % (vSET + 8 * c + 4 * x, vSET + 8 * c + 4 * x + 3, vDup, sWS, sWS + 3, sT2, x * 2048 + c * 512) for x in range(2)]
    n = 0
    qk_at = g('qk_at', 16)
    for tile in (4, 5):
        for T in range(4):
            for b in range(2):
                if w == 3 and n >= qk_at and (n - qk_at) < 8 and (n - qk_at) % 2 == 0:
                    for ld in qkl((n - qk_at) // 2): a(ld)
                c = '0' if T == 0 else vr(acc(tile, b), 4)
                a('v_mfma_f32_16x16x32_bf16 %s, %s, %s, %s' % (vr(acc(tile, b), 4), vr(mb + 4 * T, 4), ar(wq_frag(tile, T, b), 4), c))
                n += 1
    qk_done = max(0, min(4, (16 - qk_at + 1) // 2))
    for i in range(4):
        a('v_permlane32_swap_b32 v%d, v%d' % (acc(4, 0) + i, acc(5, 0) + i))
        a('v_permlane32_swap_b32 v%d, v%d' % (acc(4, 1) + i, acc(5, 1) + i))
    for i in range(4):
        a('v_add_f32 v%d, v%d, v%d' % (vZ + 8 + i, acc(4, 0) + i, acc(5, 1) + i))
    a('ds_write_b128 v%d, v[%d:%d] offset:%d' % (vL16, vZ + 8, vZ + 11, LDS_B + 8192 + w * 1024))
    if w == 3:
        if qk_done < 4: delay(a, g('dly_qk', 0))
        for c in range(qk_done, 4):
            for ld in qkl(c): a(ld)
    a('s_waitcnt lgkmcnt(0)')
    mark(a, cfg, 6)
    a('s_barrier')
    mark(a, cfg, 7)
    if w in (2, 3):
        reduce3(a, vZ + 8, LDS_B + 8192, w)
        a('v_cvt_pk_bf16_f32 v%d, v%d, v%d' % (vZ + 8 if w == 2 else vVZ, vZ + 8, vZ + 9))
        a('v_cvt_pk_bf16_f32 v%d, v%d, v%d' % (vZ + 9 if w == 2 else vVZ + 1, vZ + 10, vZ + 11))
    if w == 2:
        slot_off(a, sT0, sSTEP, 16, sARC)
        st(a, vZ + 8, 2, vL8, sT0, True)
    a('s_cmp_eq_u32 s%d, 63' % sSTEP)
    a.branch('s_cbranch_scc1 %s' % Lend)
    if w == 2:
        a('s_add_u32 s%d, s%d, 0x40000' % (sKF, sKF))
        a('s_add_u32 s%d, s%d, 0x40000' % (sVF, sVF))
        if fused: ensure_gp(a, sSTEP, 2)
        prefetch_dma(a, fused)
    if w == 3:
        def qkc(c):
            qb = vSET + 8 * c; ka = qb + 4
            if c == 3: mark(a, cfg, 8)
            for t, A in ((0, vKX + 4 * c), (1, vKX + 16 + 4 * c), (2, ka)):
                cc = '0' if c == 0 else vr(vS + 4 * t, 4)
                a('v_mfma_f32_16x16x32_bf16 %s, %s, %s, %s' % (vr(vS + 4 * t, 4), vr(A, 4), vr(qb, 4), cc))
        ppoll(a, 4, qkl, lambda c: range(vSET + 8 * c, vSET + 8 * c + 8), qkc, issued=True)
        m, t2 = vT, vT + 1
        a('v_max3_f32 v%d, v%d, v%d, v%d' % (m, vS, vS + 1, vS + 2))
        a('v_max3_f32 v%d, v%d, v%d, v%d' % (t2, vS + 3, vS + 4, vS + 5))
        a('v_max3_f32 v%d, v%d, v%d, v%d' % (m, m, vS + 6, vS + 7))
        a('v_max3_f32 v%d, v%d, v%d, v%d' % (t2, t2, vS + 8, vS + 9))
        a('v_max3_f32 v%d, v%d, v%d, v%d' % (m, m, vS + 10, vS + 11))
        a('v_max_f32 v%d, v%d, v%d' % (m, m, t2))
        a('v_mov_b32 v%d, v%d' % (t2, m))
        a('v_permlane16_swap_b32 v%d, v%d' % (m, t2))
        a('v_max_f32 v%d, v%d, v%d' % (m, m, t2))
        a('v_mov_b32 v%d, v%d' % (t2, m))
        a('v_permlane32_swap_b32 v%d, v%d' % (m, t2))
        a('v_max_f32 v%d, v%d, v%d' % (m, m, t2))
        a('v_mul_f32 v%d, s%d, v%d' % (m, sC, m))
        for i in range(12):
            a('v_fma_f32 v%d, v%d, s%d, -v%d' % (vS + i, vS + i, sC, m))
            if i >= 1: a('v_exp_f32 v%d, v%d' % (vS + i - 1, vS + i - 1))
        a('v_exp_f32 v%d, v%d' % (vS + 11, vS + 11))
        for i in range(4):
            a('v_cvt_pk_bf16_f32 v%d, v%d, v%d' % (vP + i, vS + 2 * i, vS + 2 * i + 1))
        for i in range(4, 6):
            a('v_cvt_pk_bf16_f32 v%d, v%d, v%d' % (vP + i, vS + 2 * i, vS + 2 * i + 1))
        a('v_mfma_f32_16x16x32_bf16 %s, %s, %s, 0' % (vr(vO, 4), vr(vVX, 4), vr(vP, 4)))
        a('v_and_b32 v%d, v%d, v%d' % (vP + 6, vP + 4, vMLO))
        a('v_and_b32 v%d, v%d, v%d' % (vP + 7, vP + 5, vMLO))
        a('v_mfma_f32_16x16x32_bf16 %s, %s, %s, 0' % (vr(vO + 4, 4), vr(vVX + 4, 4), vr(vP, 4)))
        a('v_and_b32 v%d, v%d, v%d' % (vP + 8, vP + 4, vMHI))
        a('v_and_b32 v%d, v%d, v%d' % (vP + 9, vP + 5, vMHI))
        a('v_mfma_f32_16x16x16_bf16 %s, %s, %s, %s' % (vr(vO, 4), vr(vVZ, 2), vr(vP + 6, 2), vr(vO, 4)))
        sA, sB = vT, vT + 1
        pk_add(a, vS + 8, vS + 8, vS + 10)
        pk_add(a, vS, vS, vS + 2)
        a('v_mfma_f32_16x16x16_bf16 %s, %s, %s, %s' % (vr(vO + 4, 4), vr(vVZ, 2), vr(vP + 8, 2), vr(vO + 4, 4)))
        pk_add(a, vS + 4, vS + 4, vS + 6)
        a('v_add_f32 v%d, v%d, v%d' % (sB, vS + 8, vS + 9))
        pk_add(a, vS, vS, vS + 4)
        a('v_add_f32 v%d, v%d, v%d' % (sA, vS, vS + 1))
        a('v_fma_f32 v%d, v%d, v%d, v%d' % (sA, sB, vFLO, sA))
        a('v_mov_b32 v%d, v%d' % (sB, sA))
        a('v_permlane16_swap_b32 v%d, v%d' % (sA, sB))
        a('v_add_f32 v%d, v%d, v%d' % (sA, sA, sB))
        a('v_mov_b32 v%d, v%d' % (sB, sA))
        a('v_permlane32_swap_b32 v%d, v%d' % (sA, sB))
        a('v_add_f32 v%d, v%d, v%d' % (sA, sA, sB))
        a('v_rcp_f32 v%d, v%d' % (sA, sA))
        a('v_mov_b32 v%d, v%d' % (sB, sA))
        for i in range(4):
            a('v_pk_mul_f32 v[%d:%d], v[%d:%d], v[%d:%d]' % (vO + 2 * i, vO + 2 * i + 1, vO + 2 * i, vO + 2 * i + 1, sA, sB))
        for i in range(4):
            a('v_cvt_pk_bf16_f32 v%d, v%d, v%d' % (vO + i, vO + 2 * i, vO + 2 * i + 1))
        for i in range(4):
            a('v_min_u32 v%d, -2, v%d' % (vO + i, vO + i))
        st(a, vO, 4, vDup, sA2)
        st(a, vSENT, 2, vL8, sA3)
    if w == 0:
        Lns = a.newlabel('nosw')
        a('s_cmp_lg_u32 s%d, %d' % (sSTEP, SWITCH - 1))
        a.branch('s_cbranch_scc1 %s' % Lns)
        read_choice(a, cfg, None)
        a.label(Lns)
        a('s_add_u32 s%d, s%d, 1' % (sT2, sSTEP))
        a('s_and_b32 s%d, s%d, 3' % (sT2, sT2))
        slot_off(a, sA2, sT2, 14, sPXR)
        slot_off(a, sA3, sT2, 14, sPX1)
        a('s_add_u32 s%d, s%d, 3' % (sT2, sSTEP))
        a('s_and_b32 s%d, s%d, 3' % (sT2, sT2))
        slot_off(a, sXB, sT2, 14, sPXR)
        slot_off(a, sXB + 1, sT2, 14, sPX1)
        K = g('ns_x', 4) if g('xcopy', 1) else 1
        for cp in range(K): st(a, vSENT, 4, vL16B if cp & 1 else vL16, sXB + (cp >> 1), True)
    mark(a, cfg, 9)
    a('s_barrier')
    mark(a, cfg, 10)
    def ol(u): return ['buffer_load_dwordx4 v[%d:%d], v%d, s[%d:%d], s%d offen offset:%d sc1' % (mb + 4 * u, mb + 4 * u + 3, vOD, sWS, sWS + 3, sA1, u * 1024)]
    def oc(u):
        if u == 3: mark(a, cfg, 11)
        mark(a, cfg, 104 + u)
        for tau in range(2):
            for b in range(2):
                c = '0' if u == 0 else vr(acc(tau, b), 4)
                a('v_mfma_f32_16x16x32_bf16 %s, %s, %s, %s' % (vr(acc(tau, b), 4), ar(wo_frag(tau, u, b), 4), vr(mb + 4 * u, 4), c))
    ppoll(a, 4, ol, lambda u: range(mb + 4 * u, mb + 4 * u + 4), oc, g('dly_o', 0))
    for i in range(4):
        a('v_add_f32_dpp v%d, v%d, v%d row_ror:8 row_mask:0xf bank_mask:0x3' % (vZ + 12 + i, acc(0, 1) + i, acc(0, 0) + i))
    for i in range(4):
        a('v_add_f32_dpp v%d, v%d, v%d row_ror:8 row_mask:0xf bank_mask:0xc' % (vZ + 12 + i, acc(1, 0) + i, acc(1, 1) + i))
    if w != 0: a('ds_write_b128 v%d, v[%d:%d] offset:%d' % (vL16, vZ + 12, vZ + 15, LDS_D + w * 1024))
    a('s_waitcnt lgkmcnt(0)')
    mark(a, cfg, 12)
    a('s_barrier')
    mark(a, cfg, 13)
    if w == 0:
        z = vZ + 12
        reduce3(a, z, LDS_D, 0)
        for i in range(4): a('v_min_u32 v%d, -2, v%d' % (z + i, z + i))
        K = g('ns_x', 4) if g('xcopy', 1) else 1
        for cp in range(K): st(a, z, 4, vL16B if cp & 1 else vL16, sA2 + (cp >> 1), True)
    if w == 0:
        Lnp = a.newlabel('noprobe'); Lpb = a.newlabel('pubch')
        a('s_or_b32 s%d, s%d, s%d' % (sT0, sRX, sI))
        a('s_cmp_lg_u32 s%d, 0' % sT0)
        a.branch('s_cbranch_scc1 %s' % Lnp)
        a('s_cmp_gt_u32 s%d, 4' % sSTEP)
        a.branch('s_cbranch_scc1 %s' % Lnp)
        a('s_cmp_eq_u32 s%d, 4' % sSTEP)
        a.branch('s_cbranch_scc1 %s' % Lpb)
        a('s_waitcnt vmcnt(0)')
        a('s_sleep 2')
        a('s_cmp_lt_u32 s%d, 2' % sSTEP)
        a('s_cselect_b32 s%d, s%d, s%d' % (sA2, sXB, sXB + 1))
        for n in range(2):
            a('s_add_u32 s%d, s%d, %d' % (sT1, sSTEP, n))
            a('s_and_b32 s%d, s%d, 1' % (sT1, sT1))
            a('s_lshl_b32 s%d, s%d, 13' % (sT0, sT1))
            a('s_add_u32 s%d, s%d, s%d' % (sT0, sT0, sA2))
            a('s_memtime s[96:97]')
            a('s_waitcnt lgkmcnt(0)')
            st(a, vSENT, 4, vL16, sT0, True)
            a('s_waitcnt vmcnt(0)')
            a('s_memtime s[98:99]')
            a('s_waitcnt lgkmcnt(0)')
            a('s_sub_u32 s%d, s98, s96' % sT3)
            a('s_and_b32 s%d, s%d, 2' % (sT0, sSTEP))
            a('s_or_b32 s%d, s%d, s%d' % (sT1, sT1, sT0))
            for cnd, reg in enumerate((sP0, sP1, sP2, sP3)):
                a('s_min_u32 s%d, s%d, s%d' % (sT0, reg, sT3))
                a('s_cmp_eq_u32 s%d, %d' % (sT1, cnd))
                a('s_cselect_b32 s%d, s%d, s%d' % (reg, sT0, reg))
        a.branch('s_branch %s' % Lnp)
        a.label(Lpb)
        a('s_cmp_lt_u32 s%d, s%d' % (sP1, sP0))
        a('s_cselect_b32 s%d, 5, 4' % sT0)
        a('s_cmp_lt_u32 s%d, s%d' % (sP3, sP2))
        a('s_cselect_b32 s%d, 2, 0' % sT1)
        a('s_or_b32 s%d, s%d, s%d' % (sT0, sT0, sT1))
        a('v_mov_b32 v%d, s%d' % (vT, sT0))
        a('v_mov_b32 v%d, 132' % (vT + 1))
        a('s_mov_b64 exec, 1')
        a('buffer_store_dword v%d, v%d, s[%d:%d], 0 offen sc1' % (vT, vT + 1, sDBG, sDBG + 3))
        a('s_mov_b64 exec, -1')
        a.label(Lnp)
    if w == 3:
        for n in range(10):
            a('ds_read_b128 v[%d:%d], v%d offset:%d' % (vKX + 4 * n, vKX + 4 * n + 3, vL16, LDS_KV + n * 1024))
        if fused: publish_prog(a, sSTEP, 1)
    a('s_add_u32 s%d, s%d, 1' % (sSTEP, sSTEP))
    mark(a, cfg, 14)
    a.branch('s_branch %s' % Lloop)
    a.label(Lend)
    if fused:
        a('s_waitcnt vmcnt(0)')
        a('s_barrier')
        if w == 3: publish_prog(a, None, 64)
    if g('prof'):
        a('s_mov_b32 s95, s%d' % sSPIN)
        a('s_lshl_b32 s%d, s%d, 5' % (sT0, sRX))
        a('s_add_u32 s%d, s%d, s%d' % (sT0, sT0, sI))
        a('s_lshl_b32 s%d, s%d, 8' % (sT0, sT0))
        a('s_add_u32 s%d, s%d, 0x%x' % (sT0, sT0, MISC_OFF + 4096 + w * 64))
        a('v_mov_b32 v%d, 0' % (vT + 2))
        a('s_mov_b64 exec, 1')
        for k in range(16):
            a('v_mov_b32 v%d, s%d' % (vT, 80 + k))
            a('buffer_store_dword v%d, v%d, s[%d:%d], s%d offen offset:%d' % (vT, vT + 2, sWS, sWS + 3, sT0, 4 * k))
        a('s_mov_b64 exec, -1')
    if g('stamp') and w == 0:
        a('s_memrealtime s[72:73]')
        a('s_waitcnt lgkmcnt(0)')
        a('s_sub_u32 s72, s72, s70')
        a('v_mov_b32 v%d, s72' % vT)
        a('v_mov_b32 v%d, s70' % (vT + 1))
        a('s_lshl_b32 s%d, s%d, 5' % (sT0, sRX))
        a('s_add_u32 s%d, s%d, s%d' % (sT0, sT0, sI))
        a('s_lshl_b32 s%d, s%d, 3' % (sT0, sT0))
        a('s_add_u32 s%d, s%d, 0x%x' % (sT0, sT0, MISC_OFF))
        a('v_mov_b32 v%d, 0' % (vT + 2))
        a('s_mov_b64 exec, 1')
        a('buffer_store_dwordx2 v[%d:%d], v%d, s[%d:%d], s%d offen' % (vT, vT + 1, vT + 2, sWS, sWS + 3, sT0))
    a('s_endpgm')

def archive_v(a):
    slot_off(a, sT0, sSTEP, 16, sARC)
    st(a, vVZ, 2, vL8, sT0, True)

def publish_prog(a, sreg, add):
    if sreg is None: a('v_mov_b32 v%d, %d' % (vT, add))
    else:
        a('s_add_u32 s%d, s%d, %d' % (sT0, sreg, add))
        a('v_mov_b32 v%d, s%d' % (vT, sT0))
    a('v_mov_b32 v%d, 0' % (vT + 1))
    a('s_mov_b64 exec, 1')
    a('buffer_store_dword v%d, v%d, s[%d:%d], s%d offen sc1' % (vT, vT + 1, sWS, sWS + 3, sARC))
    a('s_mov_b64 exec, -1')

def ensure_gp(a, sreg, add):
    L = a.newlabel('gp'); D = a.newlabel('gpd')
    if sreg is None: a('s_mov_b32 s%d, %d' % (sT2, add))
    else: a('s_add_u32 s%d, s%d, %d' % (sT2, sreg, add))
    a('s_min_u32 s%d, s%d, 64' % (sT2, sT2))
    a('s_lshl_b32 s%d, s%d, 4' % (sT1, sH))
    a('s_add_u32 s%d, s%d, 0x%x' % (sT1, sT1, GP_OFF))
    a('v_mov_b32 v%d, 0' % vT)
    a.label(L)
    a('s_cmp_ge_u32 s%d, s%d' % (sGP, sT2))
    a('s_cbranch_scc1 %s' % D)
    a('buffer_load_dwordx4 v[%d:%d], v%d, s[%d:%d], s%d offen sc1' % (vR, vR + 3, vT, sWS, sWS + 3, sT1))
    a('s_waitcnt vmcnt(0)')
    a('v_min3_u32 v%d, v%d, v%d, v%d' % (vR, vR, vR + 1, vR + 2))
    a('v_min_u32 v%d, v%d, v%d' % (vR, vR, vR + 3))
    a('v_readfirstlane_b32 s%d, v%d' % (sGP, vR))
    a('s_add_u32 s%d, s%d, 1' % (sSPIN, sSPIN))
    a('s_cmp_lt_u32 s%d, 0x%x' % (sSPIN, SPIN_LIMIT))
    a('s_cbranch_scc1 %s' % L)
    a.label(D)

def prefetch_dma(a, sc1=False):
    a('s_add_u32 s%d, s%d, 4096' % (sT0, sKF))
    for grp, (so, n) in enumerate(((sKF, 4), (sT0, 4), (sVF, 2))):
        a('s_mov_b32 m0, %d' % (LDS_KV + grp * 4096))
        for c in range(n):
            a('buffer_load_dwordx4 v%d, s[%d:%d], s%d offen offset:%d%s lds' % (vL16, sWS, sWS + 3, so, c * 1024, ' sc1' if sc1 else ''))

def prefetch_kv(a):
    a('s_add_u32 s%d, s%d, 4096' % (sT0, sKF))
    for tt in range(2):
        for c in range(4):
            r = vKX + 16 * tt + 4 * c
            a('buffer_load_dwordx4 v[%d:%d], v%d, s[%d:%d], s%d offen offset:%d' % (r, r + 3, vL16, sWS, sWS + 3, sKF if tt == 0 else sT0, c * 1024))
    for e in range(2):
        a('buffer_load_dwordx4 v[%d:%d], v%d, s[%d:%d], s%d offen offset:%d' % (vVX + 4 * e, vVX + 4 * e + 3, vL16, sWS, sWS + 3, sVF, e * 1024))

def r_body(a, cfg):
    a('s_lshr_b32 s%d, s%d, 2' % (sH, sI))
    a('s_lshl_b32 s%d, s%d, 3' % (sT0, sRX))
    a('s_add_u32 s%d, s%d, s%d' % (sH, sH, sT0))
    a('s_and_b32 s%d, s%d, 3' % (sJ, sI))
    for w in range(1, 4):
        a('s_cmp_eq_u32 s%d, %d' % (sW, w))
        a.branch('s_cbranch_scc1 r_wave%d' % w)
    for w in range(4):
        a.label('r_wave%d' % w)
        wave_loop(a, w, cfg)

def gen_r_kernel(name, cfg):
    a = Asm()
    a.raw(kernel_header(name))
    Lexit = 'r_exit'
    a('s_cmp_ge_u32 s2, 256')
    a('s_cbranch_scc1 %s' % Lexit)
    build_srds(a, dict(ws=sWS, wq=sWQ, wk=sWK, wv=sWV, wo=sWO, mem0=sM0, dbg=sDBG))
    a('s_getreg_b32 s%d, hwreg(HW_REG_XCC_ID)' % sRX)
    a('s_and_b32 s%d, s%d, 7' % (sRX, sRX))
    a('s_cmp_ge_u32 s%d, 4' % sRX)
    a('s_cbranch_scc1 %s' % Lexit)
    a('s_mov_b32 s%d, 0' % sSPIN)
    lane_consts(a)
    a('v_lshrrev_b32 v%d, 6, v0' % vT)
    a('v_readfirstlane_b32 s%d, v%d' % (sW, vT))
    Lt = a.newlabel('tk')
    a('s_cmp_lg_u32 s%d, 0' % sW)
    a.branch('s_cbranch_scc1 %s' % Lt)
    a('v_mov_b32 v%d, 1' % vT)
    a('s_lshl_b32 s%d, s%d, 2' % (sT0, sRX))
    a('v_mov_b32 v%d, s%d' % (vT + 1, sT0))
    a('v_mov_b32 v%d, %d' % (vT + 2, LDS_TK))
    a('s_mov_b64 exec, 1')
    a('buffer_atomic_add v%d, v%d, s[%d:%d], 0 offen sc0 sc1' % (vT, vT + 1, sDBG, sDBG + 3))
    a('s_waitcnt vmcnt(0)')
    a('ds_write_b32 v%d, v%d' % (vT + 2, vT))
    a('s_waitcnt lgkmcnt(0)')
    a('s_mov_b64 exec, -1')
    a.label(Lt)
    a('s_barrier')
    a('v_mov_b32 v%d, %d' % (vT + 2, LDS_TK))
    a('ds_read_b32 v%d, v%d' % (vT, vT + 2))
    a('s_waitcnt lgkmcnt(0)')
    a('v_readfirstlane_b32 s%d, v%d' % (sI, vT))
    a('s_cmp_ge_u32 s%d, 32' % sI)
    a.branch('s_cbranch_scc1 %s' % Lexit)
    r_body(a, cfg)
    a.label(Lexit)
    a('s_endpgm')
    return a.text()
```

```python
from asmlib import *

MB = 1 << 20
QF_OFF = 0
KF_OFF = 16 * MB
VF_OFF = 32 * MB
OF_OFF = 48 * MB
KM_OFF = 64 * MB
VM_OFF = 68 * MB
MX_OFF = 72 * MB
QKX_OFF = MX_OFF + 256 * 1024
OX_OFF = QKX_OFF + 512 * 1024
PX_OFF = 74 * MB
MISC_OFF = 78 * MB
XF_OFF = 96 * MB
GL_OFF = 84 * MB
RR_OFF = GL_OFF + 8192
HB_OFF = RR_OFF + 8192
YP_OFF = HB_OFF + 32768
IDX_OFF = YP_OFF + 65536
WS_BYTES = 256 * MB

KA = dict(x=0, mem0=8, wq=16, wk=24, wv=32, wo=40, seg=48, bx=56, wr=64, wg=72, wu=80, wd=88, gw=96, out=104, dbg=112, ws=120)
SZ = dict(x=2048*1024*2, mem0=8*1024*2, wq=1024*4096*2, wk=1024*4096*2, wv=1024*4096*2, wo=4096*1024*2, wr=2048, wg=1024*3584*2,
          wu=1024*3584*2, wd=3584*1024*2, gw=2048, out=2048*1024*2, dbg=256, ws=WS_BYTES)

def build_srds(a, srds):
    for n, b in srds.items():
        a('s_load_dwordx2 s[%d:%d], s[0:1], %d' % (b, b + 1, KA[n]))
    a('s_waitcnt lgkmcnt(0)')
    for n, b in srds.items():
        a('s_and_b32 s%d, s%d, 0xffff' % (b + 1, b + 1))
        a('s_mov_b32 s%d, 0x%x' % (b + 2, SZ[n]))
        a('s_mov_b32 s%d, 0x20000' % (b + 3))

def kernel_header(name):
    return '''.globl %s
.p2align 8
.type %s,@function
%s:
''' % (name, name, name)

def kernel_desc(name, vgpr, accum, sgpr=102):
    return '''.p2align 6
.amdhsa_kernel %s
  .amdhsa_next_free_vgpr %d
  .amdhsa_next_free_sgpr %d
  .amdhsa_accum_offset %d
  .amdhsa_group_segment_fixed_size 0
  .amdhsa_kernarg_size 128
  .amdhsa_user_sgpr_count 2
  .amdhsa_user_sgpr_kernarg_segment_ptr 1
  .amdhsa_system_sgpr_workgroup_id_x 1
.end_amdhsa_kernel
''' % (name, vgpr, sgpr, accum)

FLG_OFF = 85 * MB
PROG_OFF = FLG_OFF
GP_OFF = FLG_OFF + 8192
AP_OFF = FLG_OFF + 16384
WP_OFF = FLG_OFF + 20480
PW_OFF = 112 * MB
DB_CHOICE, DB_INIT, DB_PRE, DB_M1, DB_M2, DB_RR = 132, 136, 64, 144, 148, 152
DB_BAD, DB_GT, DB_INIT2, DB_PRE2 = 140, 156, 160, 96
SPIN_LIMIT = 0x40000

def dbg_arrive(a, srd, off, vt):
    a('v_mov_b32 v%d, 1' % vt)
    a('v_mov_b32 v%d, %s' % (vt + 1, off))
    a('s_mov_b64 exec, 1')
    a('buffer_atomic_add v%d, v%d, s[%d:%d], 0 offen sc1' % (vt, vt + 1, srd, srd + 3))
    a('s_mov_b64 exec, -1')

def dbg_wait(a, srd, off, target, vt, sspin, sleep=0):
    L = a.newlabel('dw'); D = a.newlabel('dwd')
    a('v_mov_b32 v%d, %s' % (vt + 1, off))
    a.label(L)
    a('buffer_load_dword v%d, v%d, s[%d:%d], 0 offen sc1' % (vt, vt + 1, srd, srd + 3))
    a('s_waitcnt vmcnt(0)')
    a('v_cmp_gt_u32 vcc, %d, v%d' % (target, vt))
    a('s_cbranch_vccz %s' % D)
    if sleep: a('s_sleep %d' % sleep)
    a('s_add_u32 s%d, s%d, 1' % (sspin, sspin))
    a('s_cmp_lt_u32 s%d, 0x%x' % (sspin, SPIN_LIMIT))
    a('s_cbranch_scc1 %s' % L)
    a.label(D)

def dbg_wait_wg(a, srd, off, target, vt, sspin, swave, sleep=1):
    L = a.newlabel('dww')
    a('s_cmp_lg_u32 s%d, 0' % swave)
    a.branch('s_cbranch_scc1 %s' % L)
    dbg_wait(a, srd, off, target, vt, sspin, sleep)
    a.label(L)
    a('s_barrier')

def init_wait(a, srd, cfg, vt, sspin, stmp):
    safe = cfg.get('safe')
    off = DB_INIT2 if safe else DB_INIT
    L = a.newlabel('iw'); D = a.newlabel('iwd')
    a('v_mov_b32 v%d, %d' % (vt + 2, off))
    a.label(L)
    a('buffer_load_dwordx2 v[%d:%d], v%d, s[%d:%d], 0 offen sc1' % (vt, vt + 1, vt + 2, srd, srd + 3))
    a('s_waitcnt vmcnt(0)')
    a('v_cmp_gt_u32 vcc, 256, v%d' % vt)
    a('s_cbranch_vccz %s' % D)
    a('s_sleep 2')
    a('s_add_u32 s%d, s%d, 1' % (sspin, sspin))
    a('s_cmp_lt_u32 s%d, 0x%x' % (sspin, SPIN_LIMIT))
    a('s_cbranch_scc1 %s' % L)
    a.label(D)
    if not safe:
        a('v_readfirstlane_b32 s%d, v%d' % (stmp, vt + 1))
        a('s_cmp_lg_u32 s%d, %d' % (stmp, 12345 if cfg.get('forcesafe') else 0))
        a.branch('s_cbranch_scc1 SAFE_ENTRY')
```

```python
from common import *
import rrole as R, g1role as G1, prerole as P, g2role as G2, modrole as M

sGX, sGI, sGW, sGC = 92, 93, 94, 95
sNA, sNW, sAV, sAA, sSP = 88, 89, 54, 55, 44
sDBG = 32
sPREO = 91
sDID = 58
LDS_CTL = 32768

def gp_addr(a, dst):
    a('s_lshr_b32 s%d, s%d, 2' % (dst, sGC))
    a('s_lshl_b32 s%d, s%d, 8' % (dst, dst))
    a('s_and_b32 s%d, s%d, 3' % (R.sT3, sGC))
    a('s_lshl_b32 s%d, s%d, 2' % (R.sT3, R.sT3))
    a('s_add_u32 s%d, s%d, s%d' % (dst, dst, R.sT3))
    a('s_add_u32 s%d, s%d, 0x%x' % (dst, dst, GP_OFF))

def g_body(a, cfg):
    Ln = a.newlabel('gi')
    a('s_cmp_lg_u32 s%d, 0' % sGW)
    a.branch('s_cbranch_scc1 %s' % Ln)
    a('s_lshl_b32 s%d, s%d, 2' % (R.sT0, sGC))
    a('s_add_u32 s%d, s%d, 0x%x' % (R.sT2, R.sT0, AP_OFF))
    gp_addr(a, R.sT1)
    a('v_mov_b32 v12, 0')
    a('s_mov_b64 exec, 1')
    a('buffer_store_dword v12, v12, s[%d:%d], s%d offen sc1' % (R.sWS, R.sWS + 3, R.sT1))
    a('buffer_store_dword v12, v12, s[%d:%d], s%d offen sc1' % (R.sWS, R.sWS + 3, R.sT2))
    a('s_mov_b64 exec, -1')
    a('s_waitcnt vmcnt(0)')
    dbg_arrive(a, sDBG, DB_INIT2 if cfg.get('safe') else DB_INIT, 12)
    a.label(Ln)
    a('s_lshl_b32 s%d, s%d, 2' % (sPREO, sGX))
    a('s_add_u32 s%d, s%d, %d' % (sPREO, sPREO, DB_PRE2 if cfg.get('safe') else DB_PRE))
    P.sX, P.sGW, P.sWR = 24, 28, 36
    P.sW, P.sC = sGW, sGC
    build_srds(a, dict(x=P.sX, gw=P.sGW, wr=P.sWR))
    a('s_lshr_b32 s%d, s%d, 2' % (R.sH, sGC))
    a('s_and_b32 s%d, s%d, 3' % (R.sJ, sGC))
    a('s_mov_b32 s%d, s%d' % (R.sW, sGW))
    def hook():
        R.load_weights(a, with_wo=False)
    P.conv0(a, cfg, sGX, sGI, G1.sCX, G1.sCD, hook)
    G1.XFL[0] = ' sc1'
    a('s_mov_b32 s%d, 0' % G1.sSEG)
    a('s_mov_b32 s%d, 64' % G1.sEND)
    gp_addr(a, G1.sGPA)
    for w in range(1, 4):
        a('s_cmp_eq_u32 s%d, %d' % (sGW, w))
        a.branch('s_cbranch_scc1 fg1_wave%d' % w)
    for w in range(4):
        a.label('fg1_wave%d' % w)
        G1.g1_wave(a, w, cfg, 'fg1')
        if w < 3: a.branch('s_branch fg1_join')
    a.label('fg1_join')
    if not cfg.get('st2'): stamp(a, cfg, 1)
    build_srds(a, dict(wg=M.sWG, wu=M.sWU, wd=M.sWD, x=M.sX))
    a('s_mov_b32 s%d, s%d' % (M.sW, sGW))
    a('s_mov_b32 s%d, s%d' % (M.sB, sGC))
    L1 = a.newlabel('m1skip')
    a('s_cmp_ge_u32 s%d, 112' % sGC)
    a.branch('s_cbranch_scc1 %s' % L1)
    M.mod1_body(a, cfg, fl=' sc1', sfl=' sc1', pre=lambda: dbg_wait_wg(a, sDBG, DB_RR, 128, 8, sSP, sGW))
    a('s_waitcnt vmcnt(0)')
    a('s_barrier')
    Lw = a.newlabel('m1a')
    a('s_cmp_lg_u32 s%d, 0' % sGW)
    a.branch('s_cbranch_scc1 %s' % Lw)
    dbg_arrive(a, sDBG, DB_M1, 8)
    a.label(Lw)
    a.label(L1)
    dbg_wait_wg(a, sDBG, DB_M1, 112, 8, sSP, sGW)
    a.label('fm2_loop')
    M.mod2_body(a, cfg, fl=' sc1', sfl=' sc1')
    a('s_waitcnt vmcnt(0)')
    a('s_barrier')
    a('s_add_u32 s%d, s%d, 128' % (M.sB, M.sB))
    a('s_cmp_lt_u32 s%d, 224' % M.sB)
    a.branch('s_cbranch_scc1 fm2_loop')
    Lw = a.newlabel('m2a')
    a('s_cmp_lg_u32 s%d, 0' % sGW)
    a.branch('s_cbranch_scc1 %s' % Lw)
    dbg_arrive(a, sDBG, DB_M2, 8)
    a.label(Lw)
    if not cfg.get('st2'): stamp(a, cfg, 2)
    build_srds(a, dict(wo=G2.sWO, x=G2.sX, out=G2.sOUT))
    G2.sI, G2.sW = sGI, sGW
    G2.out_consts(a)
    G2.out_load_weights(a)
    dbg_wait_wg(a, sDBG, DB_M2, 128, 8, sSP, sGW)
    a('v_mov_b32 v8, 0')
    a('s_mov_b32 s%d, 0x%x' % (R.sT0, IDX_OFF))
    a('buffer_load_dwordx2 v[10:11], v8, s[%d:%d], s%d offen sc1' % (R.sWS, R.sWS + 3, R.sT0))
    a('s_waitcnt vmcnt(0)')
    a('v_readfirstlane_b32 s%d, v10' % G2.sIDX0)
    a('v_readfirstlane_b32 s%d, v11' % G2.sIDX1)
    a('s_mov_b32 s%d, 0' % sNA)
    a('s_mov_b32 s%d, 0' % sNW)
    a('s_barrier')
    if not cfg.get('st2'): stamp(a, cfg, 3)
    a.label('g2_loop')
    a('s_mov_b32 s%d, 0' % sDID)
    Lc = a.newlabel('ctl')
    a('s_cmp_lg_u32 s%d, 0' % sGW)
    a.branch('s_cbranch_scc1 %s' % Lc)
    a('v_and_b32 v8, 31, v0')
    a('v_lshlrev_b32 v8, 2, v8')
    a('v_and_b32 v9, 3, v0')
    a('v_lshlrev_b32 v9, 2, v9')
    a('s_lshl_b32 s%d, s%d, 7' % (R.sT0, sGX))
    a('s_add_u32 s%d, s%d, 0x%x' % (R.sT0, R.sT0, AP_OFF))
    a('s_lshl_b32 s%d, s%d, 8' % (R.sT1, sGI))
    a('s_add_u32 s%d, s%d, 0x%x' % (R.sT1, R.sT1, PROG_OFF))
    a('buffer_load_dword v10, v8, s[%d:%d], s%d offen sc1' % (R.sWS, R.sWS + 3, R.sT0))
    a('buffer_load_dword v11, v9, s[%d:%d], s%d offen sc1' % (R.sWS, R.sWS + 3, R.sT1))
    a('s_waitcnt vmcnt(0)')
    for sh in (1, 2, 4, 8):
        a('v_min_u32_dpp v10, v10, v10 row_ror:%d row_mask:0xf bank_mask:0xf' % sh)
        if sh < 4: a('v_min_u32_dpp v11, v11, v11 row_ror:%d row_mask:0xf bank_mask:0xf' % sh)
    a('v_mov_b32 v12, v10')
    a('v_permlane16_swap_b32 v10, v12')
    a('v_min_u32 v10, v10, v12')
    a('v_mov_b32 v12, %d' % LDS_CTL)
    a('ds_write_b64 v12, v[10:11]')
    a('s_waitcnt lgkmcnt(0)')
    a.label(Lc)
    a('s_barrier')
    a('v_mov_b32 v12, %d' % LDS_CTL)
    a('ds_read_b64 v[10:11], v12')
    a('s_waitcnt lgkmcnt(0)')
    a('v_readfirstlane_b32 s%d, v10' % sAA)
    a('v_readfirstlane_b32 s%d, v11' % sAV)
    a('s_barrier')
    a('s_add_u32 s%d, s%d, 3' % (sAV, sAV))
    a('s_sub_u32 s%d, s%d, s%d' % (sAV, sAV, sGX))
    a('s_lshr_b32 s%d, s%d, 2' % (sAV, sAV))
    Lna = a.newlabel('noattn'); Lnt = a.newlabel('notask'); Lnw = a.newlabel('nowo'); Lpa = a.newlabel('nopub')
    a('s_cmp_le_u32 s%d, s%d' % (sAV, sNA))
    a.branch('s_cbranch_scc1 %s' % Lna)
    a('s_add_u32 s%d, s%d, 4' % (R.sT0, sNA))
    a('s_min_u32 s%d, s%d, s%d' % (sAV, sAV, R.sT0))
    a('s_add_u32 s%d, s%d, s%d' % (R.sT0, sNA, sGW))
    a('s_cmp_ge_u32 s%d, s%d' % (R.sT0, sAV))
    a.branch('s_cbranch_scc1 %s' % Lnt)
    a('s_lshl_b32 s%d, s%d, 2' % (R.sT0, R.sT0))
    a('s_add_u32 s%d, s%d, s%d' % (R.sT0, R.sT0, sGX))
    a('s_lshl_b32 s%d, s%d, 5' % (R.sT0, R.sT0))
    a('s_add_u32 s%d, s%d, s%d' % (G2.sTASK, R.sT0, sGI))
    G2.attn_consts(a, cfg)
    G2.attn_task(a, cfg, all_sc1=True, st_flags=' sc1' if cfg.get('safe') else '')
    a('s_waitcnt vmcnt(0)')
    a.label(Lnt)
    a('s_barrier')
    a('s_mov_b32 s%d, s%d' % (sNA, sAV))
    a('s_mov_b32 s%d, 1' % sDID)
    a('s_cmp_lg_u32 s%d, 0' % sGW)
    a.branch('s_cbranch_scc1 %s' % Lpa)
    a('s_lshl_b32 s%d, s%d, 2' % (R.sT0, sGC))
    a('s_add_u32 s%d, s%d, 0x%x' % (R.sT0, R.sT0, AP_OFF))
    a('v_mov_b32 v10, s%d' % sNA)
    a('v_mov_b32 v11, 0')
    a('s_mov_b64 exec, 1')
    a('buffer_store_dword v10, v11, s[%d:%d], s%d offen sc1' % (R.sWS, R.sWS + 3, R.sT0))
    a('s_mov_b64 exec, -1')
    a.label(Lpa)
    a.label(Lna)
    a('s_cmp_le_u32 s%d, s%d' % (sAA, sNW))
    a.branch('s_cbranch_scc1 %s' % Lnw)
    a('s_lshl_b32 s%d, s%d, 2' % (R.sT0, sNW))
    a('s_add_u32 s%d, s%d, s%d' % (R.sT0, R.sT0, sGX))
    a('s_lshl_b32 s%d, s%d, 1' % (G2.sTILE, R.sT0))
    a('s_sub_u32 s%d, s%d, s%d' % (G2.sNB, sAA, sNW))
    a('s_min_u32 s%d, s%d, %d' % (G2.sNB, G2.sNB, cfg.get('wob', 4)))
    a('s_add_u32 s%d, s%d, s%d' % (sNW, sNW, G2.sNB))
    G2.wo_batch(a, cfg)
    a('s_mov_b32 s%d, 1' % sDID)
    a.label(Lnw)
    Lsl = a.newlabel('nosleep')
    a('s_cmp_lg_u32 s%d, 0' % sDID)
    a('s_cbranch_scc1 %s' % Lsl)
    a('s_cmp_lt_u32 s%d, s%d' % (sNW, sNA))
    a('s_cbranch_scc1 %s' % Lsl)
    a('s_sleep %d' % cfg.get('g2sleep', 16))
    a.label(Lsl)
    a('s_add_u32 s%d, s%d, 1' % (sSP, sSP))
    a('s_cmp_ge_u32 s%d, 0x%x' % (sSP, SPIN_LIMIT))
    a.branch('s_cbranch_scc1 g2_done')
    a('s_cmp_lt_u32 s%d, 16' % sNW)
    a.branch('s_cbranch_scc1 g2_loop')
    a.label('g2_done')
    stamp(a, cfg, 4)
    a('s_endpgm')

def stamp(a, cfg, k):
    if not cfg.get('stamp'): return
    L = a.newlabel('stp')
    a('s_cmp_lg_u32 s%d, 0' % sGW)
    a.branch('s_cbranch_scc1 %s' % L)
    a('s_memrealtime s[74:75]')
    a('s_waitcnt lgkmcnt(0)')
    a('v_mov_b32 v250, s74')
    a('s_lshl_b32 s74, s%d, 5' % sGC)
    a('s_add_u32 s74, s74, 0x%x' % (MISC_OFF + 65536 + 4 * k))
    a('v_mov_b32 v251, 0')
    a('s_mov_b64 exec, 1')
    a('buffer_store_dword v250, v251, s[%d:%d], s74 offen' % (R.sWS, R.sWS + 3))
    a('s_mov_b64 exec, -1')
    a.label(L)

def roles(a, cfg):
    a('s_cmp_ge_u32 s%d, 4' % R.sRX)
    a.branch('s_cbranch_scc1 f_grole')
    R.r_body(a, cfg)
    a.label('f_grole')
    a('s_sub_u32 s%d, s%d, 4' % (sGX, R.sRX))
    a('s_mov_b32 s%d, s%d' % (sGI, R.sI))
    a('s_mov_b32 s%d, s%d' % (sGW, R.sW))
    a('s_lshl_b32 s%d, s%d, 5' % (sGC, sGX))
    a('s_add_u32 s%d, s%d, s%d' % (sGC, sGC, sGI))
    stamp(a, cfg, 0)
    g_body(a, cfg)

def common_init(a):
    build_srds(a, dict(ws=R.sWS, wq=R.sWQ, wk=R.sWK, wv=R.sWV, wo=R.sWO, mem0=R.sM0, dbg=R.sDBG))
    a('s_mov_b32 s%d, 0' % R.sSPIN)
    R.lane_consts(a)
    a('v_lshrrev_b32 v%d, 6, v0' % R.vT)
    a('v_readfirstlane_b32 s%d, v%d' % (R.sW, R.vT))

def gen_fused(name, cfg):
    import re
    cfg = dict(cfg); cfg['fused'] = 1; cfg['g1_sc1'] = 1
    sGT = 100
    a = Asm()
    a.raw(kernel_header(name))
    a('s_cmp_ge_u32 s2, 256')
    a('s_cbranch_scc0 f_start')
    a('s_endpgm')
    a.label('f_start')
    common_init(a)
    a('s_getreg_b32 s%d, hwreg(HW_REG_XCC_ID)' % R.sRX)
    a('s_and_b32 s%d, s%d, 7' % (R.sRX, R.sRX))
    vT = R.vT
    Lt = a.newlabel('tk')
    a('s_cmp_lg_u32 s%d, 0' % R.sW)
    a.branch('s_cbranch_scc1 %s' % Lt)
    a('v_mov_b32 v%d, 1' % vT)
    a('v_mov_b32 v%d, 1' % (vT + 1))
    a('s_lshl_b32 s%d, s%d, 2' % (R.sT0, R.sRX))
    a('v_mov_b32 v%d, s%d' % (vT + 2, R.sT0))
    a('v_mov_b32 v%d, %d' % (vT + 3, DB_GT))
    a('s_mov_b64 exec, 1')
    a('buffer_atomic_add v%d, v%d, s[%d:%d], 0 offen sc0 sc1' % (vT, vT + 2, R.sDBG, R.sDBG + 3))
    a('buffer_atomic_add v%d, v%d, s[%d:%d], 0 offen sc0 sc1' % (vT + 1, vT + 3, R.sDBG, R.sDBG + 3))
    a('v_mov_b32 v%d, %d' % (vT + 2, R.LDS_TK))
    a('s_waitcnt vmcnt(0)')
    a('ds_write_b64 v%d, v[%d:%d]' % (vT + 2, vT, vT + 1))
    a('s_waitcnt lgkmcnt(0)')
    a('s_mov_b64 exec, -1')
    a.label(Lt)
    a('s_barrier')
    a('v_mov_b32 v%d, %d' % (vT + 2, R.LDS_TK))
    a('ds_read_b64 v[%d:%d], v%d' % (vT, vT + 1, vT + 2))
    a('s_waitcnt lgkmcnt(0)')
    a('v_readfirstlane_b32 s%d, v%d' % (R.sI, vT))
    a('v_readfirstlane_b32 s%d, v%d' % (sGT, vT + 1))
    a('s_cmp_lt_u32 s%d, 32' % R.sI)
    a.branch('s_cbranch_scc1 f_census_ok')
    Lo = a.newlabel('ovf')
    a('s_cmp_lg_u32 s%d, 0' % R.sW)
    a.branch('s_cbranch_scc1 %s' % Lo)
    dbg_arrive(a, R.sDBG, DB_BAD, vT)
    a('s_waitcnt vmcnt(0)')
    dbg_arrive(a, R.sDBG, DB_INIT, vT)
    a.label(Lo)
    init_wait(a, R.sDBG, cfg, vT, R.sSPIN, R.sT0)
    a.branch('s_branch SAFE_ENTRY')
    a.label('f_census_ok')
    head = a.text()
    gl0 = Asm.GL
    a = Asm()
    roles(a, cfg)
    fast = a.text()
    gl1 = Asm.GL
    cfg2 = dict(cfg); cfg2['safe'] = 1; cfg2['stamp'] = 0; cfg2['prof'] = 0; cfg2['tl'] = 0; cfg2['st3'] = 0; cfg2['st2'] = 0; cfg2['gprof'] = 0
    SH = 128 * MB
    saved = (R.MX_OFF, R.QKX_OFF, R.OX_OFF, G1.XF_OFF, P.XF_OFF)
    R.MX_OFF += SH; R.QKX_OFF += SH; R.OX_OFF += SH; G1.XF_OFF += SH; P.XF_OFF += SH; R.SAFE[0] = True
    b = Asm()
    b('s_mov_b64 exec, -1')
    b('s_waitcnt vmcnt(0) lgkmcnt(0)')
    b('s_barrier')
    common_init(b)
    b('s_lshr_b32 s%d, s%d, 5' % (R.sRX, sGT))
    b('s_and_b32 s%d, s%d, 7' % (R.sRX, R.sRX))
    b('s_and_b32 s%d, s%d, 31' % (R.sI, sGT))
    b.fence()
    head2 = b.text()
    dbgbuild = any(cfg.get(k) for k in ('stamp', 'prof', 'tl', 'st3', 'st2', 'gprof'))
    if not dbgbuild: Asm.GL = gl0
    b = Asm()
    roles(b, cfg2)
    Asm.GL = max(Asm.GL, gl1)
    R.MX_OFF, R.QKX_OFF, R.OX_OFF, G1.XF_OFF, P.XF_OFF = saved; R.SAFE[0] = False
    safe = b.text()
    import difflib
    labels = set(re.findall(r'^([A-Za-z_][\w]*):', safe + fast, re.M))
    rx = re.compile(r'\b(' + '|'.join(sorted(labels, key=len, reverse=True)) + r')\b')
    fl = [rx.sub(lambda m: m.group(1) + '_\\sf', l.strip()) for l in fast.split('\n') if l.strip()]
    sl = [rx.sub(lambda m: m.group(1) + '_\\sf', l.strip()) for l in safe.split('\n') if l.strip()]
    out = ['.macro ROLES sf']
    if len(fl) == len(sl) or True:
        sm = difflib.SequenceMatcher(None, fl, sl, autojunk=False) if len(fl) != len(sl) else None
        if sm is None:
            ops = []
            i = 0
            while i < len(fl):
                j = i
                same = fl[i] == sl[i]
                while j < len(fl) and (fl[j] == sl[j]) == same: j += 1
                ops.append(('equal' if same else 'replace', i, j, i, j)); i = j
        else:
            ops = sm.get_opcodes()
        for tag, i1, i2, j1, j2 in ops:
            if tag == 'equal': out += fl[i1:i2]
            else:
                out.append('.if \\sf == 0'); out += fl[i1:i2]; out.append('.else'); out += sl[j1:j2]; out.append('.endif')
    out.append('.endm')
    return '\n'.join(out) + '\n' + head + 'ROLES 0\nSAFE_ENTRY:\n' + head2 + 'ROLES 1\n'
```

```python
from common import *
import rrole as R
from rrole import sWS, sWQ, sWK, sWV, sDBG, sRX, sI, sW, sT0, sT1, sT2, sT3, sH, sJ, vL, vL16, vT, wq_frag

sX = 24
sSEG, sEND, sXO, sQO, sKO, sVO = 52, 53, 54, 55, 56, 57
vXA = 3
vXB = 16
vAC = 144
vRD = 192
vOUT = 224
LDSP = 0

def xf(buf, tt, T, b): return vXB + buf * 64 + ((tt * 4 + T) * 2 + b) * 4
def ac(tt, tile): return vAC + (tt * 6 + tile) * 4
def lp(buf, wv, tt, tile): return LDSP + buf * 49152 + ((wv * 2 + tt) * 6 + tile) * 1024

XFL = ['']
sGPA, sCNT, sSPIN, sWM = 58, 59, 44, 60
def xloads(buf, soff0, soff1):
    out = []
    for tt in range(2):
        for T in range(4):
            for b in range(2):
                r = xf(buf, tt, T, b)
                n = T * 2 + b
                out.append('buffer_load_dwordx4 v[%d:%d], v%d, s[%d:%d], s%d offen offset:%d' % (r, r + 3, vL16 if n < 4 else 5, sWS, sWS + 3, soff0 if tt == 0 else soff1, (n & 3) * 1024) + XFL[0])
    return out

FRAGS = [('q', 0), ('q', 1), ('k', 0), ('k', 1), ('v', 0), ('v', 1)]
def frag_src(kind, idx):
    if kind == 'q': return [(idx, 0), (idx, 1)]
    if kind == 'k': return [(idx, 2), (idx, 3)]
    return [(0, 4 + idx), (1, 4 + idx)]
ASSIGN = [[[0, 1], [2, 3], [4], [5]], [[0], [1], [2, 3], [4, 5]]]

def reduce_ops(w, par, sc1):
    ops = []
    for n, f in enumerate(ASSIGN[par][w]):
        kind, idx = FRAGS[f]
        o = vOUT + 4 * n
        rd = []
        for h2, (tt, tile) in enumerate(frag_src(kind, idx)):
            for wv in range(4):
                r = vRD + (h2 * 4 + wv) * 4
                off = lp(par, wv, tt, tile)
                rd.append('ds_read_b128 v[%d:%d], v%d offset:%d' % (r, r + 3, vL16 if off < 65536 else 4, off if off < 65536 else off - 49152))
        ops.append(('rd', rd))
        ad = []
        for h2 in range(2):
            b0 = vRD + h2 * 16
            for x in (0, 2):
                ad.append('v_pk_add_f32 v[%d:%d], v[%d:%d], v[%d:%d]' % (b0 + x, b0 + x + 1, b0 + x, b0 + x + 1, b0 + 4 + x, b0 + 5 + x))
                ad.append('v_pk_add_f32 v[%d:%d], v[%d:%d], v[%d:%d]' % (b0 + 8 + x, b0 + 9 + x, b0 + 8 + x, b0 + 9 + x, b0 + 12 + x, b0 + 13 + x))
            for x in (0, 2):
                ad.append('v_pk_add_f32 v[%d:%d], v[%d:%d], v[%d:%d]' % (b0 + x, b0 + x + 1, b0 + x, b0 + x + 1, b0 + 8 + x, b0 + 9 + x))
            ad.append('v_cvt_pk_bf16_f32 v%d, v%d, v%d' % (o + 2 * h2, b0, b0 + 1))
            ad.append('v_cvt_pk_bf16_f32 v%d, v%d, v%d' % (o + 2 * h2 + 1, b0 + 2, b0 + 3))
        so = {'q': sQO, 'k': sKO, 'v': sVO}[kind]
        if kind == 'v':
            ad.append('buffer_store_dwordx4 v[%d:%d], v%d, s[%d:%d], s%d offen offset:%d%s' % (o, o + 3, vL16, sWS, sWS + 3, so, idx * 1024, ' sc1' if sc1 else ''))
        else:
            ad.append('buffer_store_dwordx4 v[%d:%d], v%d, s[%d:%d], s%d offen%s' % (o, o + 3, vL16 if idx == 0 else 5, sWS, sWS + 3, so, ' sc1' if sc1 else ''))
        ops.append(('ad', ad))
    return ops

def pub_gp(a):
    a('v_mov_b32 v6, s%d' % sCNT)
    a('v_mov_b32 v7, 0')
    a('s_mov_b64 exec, 1')
    a('buffer_store_dword v6, v7, s[%d:%d], s%d offen sc1' % (sWS, sWS + 3, sGPA))
    a('s_mov_b64 exec, -1')

sCX, sCD = 61, 62
sXSRD = 24
def seg_plan(w, par, first, cfg, conv=(None, None)):
    sc1 = cfg.get('g1_sc1', 0)
    buf = par
    slots = [[] for _ in range(96)]
    nxt = xloads(1 - buf, sXO, sT0)
    for n, x in enumerate(nxt):
        tt = n // 8
        slots[tt * 48 + (n % 8) * 5 + 1].append(('x%d' % tt, x))
    cl, cs = conv
    if cl is not None:
        for n in range(8):
            r = 192 + 32 * cl + 4 * n
            slots[2 + 4 * n].append(('cv', 'buffer_load_dwordx4 a[%d:%d], v3, s[%d:%d], s%d offen offset:%d' % (r, r + 3, sXSRD, sXSRD + 3, sCX, (n >> 1) * 128 + (n & 1) * 16)))
    if cs is not None:
        for n in range(8):
            r = 192 + 32 * cs + 4 * n
            slots[4 + 4 * n].append(('cv', 'buffer_store_dwordx4 a[%d:%d], v%d, s[%d:%d], s%d offen offset:%d' % (r, r + 3, vL16 if n < 4 else 5, sWS, sWS + 3, sCD, (n & 3) * 1024) + (' sc1' if cfg.get('safe') else '')))
    if cfg.get('warm', 0) and w == 3:
        for n in range(2):
            slots[20 + 30 * n].append(('x2', 'buffer_load_dwordx4 v[232:235], v%d, s[%d:%d], s%d offen offset:%d%s' % (vL16, sWS, sWS + 3, sWM, n * 1024, XFL[0])))
    tail = []
    for tt in range(2):
        for tile in range(6):
            off = lp(buf, w, tt, tile)
            ins = ('ds', 'ds_write_b128 v%d, v[%d:%d] offset:%d' % (vL16 if off < 65536 else 4, ac(tt, tile), ac(tt, tile) + 3, off if off < 65536 else off - 49152))
            p = (tt * 6 + tile) * 8 + 7 + 5
            if p < 96: slots[p].append(ins)
            else: tail.append(ins)
    if not first:
        p = 0
        for kind, lst in reduce_ops(w, 1 - par, sc1):
            if kind == 'rd':
                for x in lst:
                    while len(slots[p]) >= (2 if (cl is not None or cs is not None) else 1): p += 1
                    slots[p].append(('ds', x)); p += 1
                p += 5
            else:
                slots[p].append(('w', 's_waitcnt lgkmcnt(0)'))
                for x in lst:
                    while len(slots[p]) >= 2: p += 1
                    slots[p].append(('st' if x.startswith('buffer_store') else 'va', x))
                p += 1
    return slots, tail

def vm_seq(slots, upto=96, frm=0):
    return [t for sl in slots[frm:upto] for (t, x) in sl if t in ('x0', 'x1', 'x2', 'st', 'cv')]

def count_after(seq, tag):
    idx = max(i for i, t in enumerate(seq) if t == tag)
    return len(seq) - 1 - idx

def gmark(a, cfg, k):
    if not cfg.get('gprof'): return
    a('s_memtime s[76:77]')
    a('s_waitcnt lgkmcnt(0)')
    a('s_sub_u32 s78, s76, s79')
    a('s_add_u32 s%d, s%d, s78' % (80 + k, 80 + k))
    a('s_mov_b32 s79, s76')

def seg_body(a, w, par, first, cfg, preds, conv=(None, None), exact=False):
    buf = par
    slots, tail = seg_plan(w, par, first, cfg, conv)
    a('s_add_u32 s%d, s%d, 0x10000' % (sXO, sXO))
    if w == 3: a('s_add_u32 s%d, s%d, 0x10000' % (sWM, sWM))
    a('s_add_u32 s%d, s%d, 0x8000' % (sT0, sXO))
    if preds is None:
        n0 = n1 = None
        a('s_waitcnt vmcnt(0)')
    else:
        n0 = min(count_after(vm_seq(seg_plan(w, p[0], p[1], cfg, *p[2:])[0]), 'x0') for p in preds)
        n1 = min(count_after(vm_seq(seg_plan(w, p[0], p[1], cfg, *p[2:])[0]), 'x1') for p in preds) + len(vm_seq(slots, 48))
        a('s_waitcnt vmcnt(%d)' % n0)
        gmark(a, cfg, 0)
    n = 0
    for tt in range(2):
        if tt == 1 and n1 is not None:
            gmark(a, cfg, 1)
            a('s_waitcnt vmcnt(%d)' % n1)
            gmark(a, cfg, 2)
        for tile in range(6):
            for T in range(4):
                for b in range(2):
                    c = '0' if (T == 0 and b == 0) else vr(ac(tt, tile), 4)
                    W = ar(wq_frag(tile, T, b), 4); X = vr(xf(buf, tt, T, b), 4)
                    if tile < 4: a('v_mfma_f32_16x16x32_bf16 %s, %s, %s, %s' % (vr(ac(tt, tile), 4), W, X, c))
                    else: a('v_mfma_f32_16x16x32_bf16 %s, %s, %s, %s' % (vr(ac(tt, tile), 4), X, W, c))
                    for t, x in slots[n]: a(x)
                    n += 1
    for t, x in tail: a(x)
    gmark(a, cfg, 3)
    if not first:
        for so in (sQO, sKO, sVO): a('s_add_u32 s%d, s%d, 0x40000' % (so, so))
    if conv[0] is not None: a('s_add_u32 s%d, s%d, 0x100000' % (sCX, sCX))
    if conv[1] is not None: a('s_add_u32 s%d, s%d, 0x100000' % (sCD, sCD))
    if cfg.get('fused') and not first:
        a('s_waitcnt vmcnt(%d) lgkmcnt(0)' % (count_after(vm_seq(slots), 'st') if exact else len(vm_seq(slots))))
    else:
        a('s_waitcnt lgkmcnt(0)')
    gmark(a, cfg, 4)
    a('s_barrier')
    gmark(a, cfg, 5)
    if cfg.get('fused') and not first:
        if exact: a('s_add_u32 s%d, s%d, 1' % (sCNT, sCNT))
        if w == 0: pub_gp(a)
        if not exact: a('s_add_u32 s%d, s%d, 1' % (sCNT, sCNT))

def g1_wave(a, w, cfg, pre):
    a('v_and_b32 v%d, 15, v%d' % (vT, vL))
    a('v_lshrrev_b32 v%d, 4, v%d' % (vT + 1, vL))
    a('v_lshlrev_b32 v%d, 5, v%d' % (vT + 1, vT + 1))
    a('v_lshl_add_u32 v%d, v%d, 11, v%d' % (vXA, vT, vT + 1))
    a('v_add_u32 v4, 49152, v%d' % vL16)
    a('v_add_u32 v5, 4096, v%d' % vL16)
    a('s_lshl_b32 s%d, s%d, 16' % (sXO, sSEG))
    if cfg.get('fused'):
        a('s_lshl_b32 s%d, s92, 22' % sT0)
        a('s_add_u32 s%d, s%d, s%d' % (sXO, sXO, sT0))
    if w == 3:
        a('s_lshl_b32 s%d, s%d, 2' % (sT0, sH))
        a('s_add_u32 s%d, s%d, s%d' % (sT0, sT0, sJ))
        a('s_and_b32 s%d, s%d, 31' % (sT0, sT0))
        a('s_lshl_b32 s%d, s%d, 11' % (sT0, sT0))
        a('s_add_u32 s%d, s%d, s%d' % (sWM, sXO, sT0))
        a('s_add_u32 s%d, s%d, 0x%x' % (sWM, sWM, XF_OFF + (cfg.get('warm', 0) - 1) * 0x10000))
    a('s_add_u32 s%d, s%d, 0x%x' % (sXO, sXO, XF_OFF + w * 8192))
    if not cfg.get('fused'):
        a('s_add_u32 s%d, s%d, 0x8000' % (sT0, sXO))
        for x in xloads(0, sXO, sT0): a(x)
    a('s_lshl_b32 s%d, s%d, 5' % (sT0, sSEG))
    a('s_add_u32 s%d, s%d, s%d' % (sT0, sT0, sH))
    a('s_lshl_b32 s%d, s%d, 13' % (sT0, sT0))
    a('s_lshl_b32 s%d, s%d, 10' % (sT1, sJ))
    a('s_add_u32 s%d, s%d, s%d' % (sT2, sT0, sT1))
    a('s_add_u32 s%d, s%d, 0x%x' % (sQO, sT2, QF_OFF))
    a('s_add_u32 s%d, s%d, 0x%x' % (sKO, sT2, KF_OFF))
    a('s_add_u32 s%d, s%d, s%d' % (sT2, sT2, sT1))
    a('s_add_u32 s%d, s%d, 0x%x' % (sVO, sT2, VF_OFF))
    R.transpose_weights(a, with_wo=False)
    if cfg.get('fused'):
        if cfg.get('st2'):
            import fused
            fused.stamp(a, cfg, 3)
        init_wait(a, sDBG, cfg, 8, sSPIN, sT0)
        a('s_barrier')
        if w == 1: dbg_arrive(a, sDBG, 's91', 8)
        dbg_wait(a, sDBG, 's91', 32, 8, sSPIN)
        a('s_add_u32 s%d, s%d, 0x8000' % (sT0, sXO))
        for x in xloads(0, sXO, sT0): a(x)
        a('s_mov_b32 s%d, 0' % sCNT)
    a('s_barrier')
    a('s_memrealtime s[72:73]')
    if cfg.get('fused'):
        import fused
        fused.stamp(a, cfg, 5)
    if cfg.get('gprof'):
        for k in range(8): a('s_mov_b32 s%d, 0' % (80 + k))
        a('s_memtime s[76:77]')
        a('s_waitcnt lgkmcnt(0)')
        a('s_mov_b32 s79, s76')
    L = pre + '_loop_w%d' % w; E = pre + '_done_w%d' % w
    if cfg.get('fused'):
        plan = [(0, True, (0, None)), (1, False, (1, 0)), (0, False, (0, 1)), (1, False, (None, 0)), (0, False, (None, None))]
        for n, (par, first, conv) in enumerate(plan):
            seg_body(a, w, par, first, cfg, None if n == 0 else [plan[n - 1]], conv, exact=(1 <= n <= 3))
            if n == 4:
                if w == 1: dbg_arrive(a, sDBG, 's91', 8)
        a('s_add_u32 s%d, s%d, 4' % (sSEG, sSEG))
        preds_odd = [(0, False)]
    else:
        seg_body(a, w, 0, True, cfg, None)
        preds_odd = [(0, True), (0, False)]
    a.label(L)
    if cfg.get('fused'):
        Lq = a.newlabel('nocv')
        a('s_cmp_lg_u32 s%d, 12' % sSEG)
        a.branch('s_cbranch_scc1 %s' % Lq)
        dbg_wait(a, sDBG, 's91', 64, 8, sSPIN)
        import prerole
        prerole.dots_agpr(a, cfg, 92, 98304)
        a.label(Lq)
    seg_body(a, w, 1, False, cfg, preds_odd)
    a('s_add_u32 s%d, s%d, 2' % (sSEG, sSEG))
    a('s_cmp_ge_u32 s%d, s%d' % (sSEG, sEND))
    a.branch('s_cbranch_scc1 %s' % E)
    seg_body(a, w, 0, False, cfg, [(1, False)])
    a.branch('s_branch %s' % L)
    a.label(E)
    if cfg.get('gprof'):
        a('s_lshl_b32 s%d, s95, 7' % sT0)
        a('s_add_u32 s%d, s%d, 0x%x' % (sT0, sT0, MISC_OFF + 131072 + w * 32))
        a('v_mov_b32 v9, 0')
        a('s_mov_b64 exec, 1')
        for k in range(8):
            a('v_mov_b32 v8, s%d' % (80 + k))
            a('buffer_store_dword v8, v9, s[%d:%d], s%d offen offset:%d' % (sWS, sWS + 3, sT0, 4 * k))
        a('s_mov_b64 exec, -1')
    for kind, lst in reduce_ops(w, 1, cfg.get('g1_sc1', 0)):
        if kind == 'ad': a('s_waitcnt lgkmcnt(0)')
        for x in lst: a(x)
    if cfg.get('fused'):
        a('s_waitcnt vmcnt(0)')
        a('s_barrier')
        a('s_mov_b32 s%d, 64' % sCNT)
        if w == 0: pub_gp(a)

def gen_g1_kernel(name, cfg):
    a = Asm()
    a.raw(kernel_header(name))
    a('s_cmp_ge_u32 s2, 256')
    a('s_cbranch_scc1 g1_exit')
    a('s_memrealtime s[70:71]')
    build_srds(a, dict(ws=sWS, wq=sWQ, wk=sWK, wv=sWV))
    a('v_and_b32 v%d, 63, v0' % vL)
    a('v_lshlrev_b32 v%d, 4, v%d' % (vL16, vL))
    a('v_lshrrev_b32 v%d, 6, v0' % vT)
    a('v_readfirstlane_b32 s%d, v%d' % (sW, vT))
    a('s_and_b32 s%d, s2, 127' % sT0)
    a('s_lshr_b32 s%d, s%d, 2' % (sH, sT0))
    a('s_and_b32 s%d, s%d, 3' % (sJ, sT0))
    a('s_lshr_b32 s%d, s2, 7' % sT0)
    a('s_lshl_b32 s%d, s%d, 5' % (sSEG, sT0))
    a('s_add_u32 s%d, s%d, 32' % (sEND, sSEG))
    R.load_weights(a, with_wo=False)
    for w in range(1, 4):
        a('s_cmp_eq_u32 s%d, %d' % (sW, w))
        a.branch('s_cbranch_scc1 g1_wave%d' % w)
    for w in range(4):
        a.label('g1_wave%d' % w)
        g1_wave(a, w, cfg, 'g1')
        if w == 0 and cfg.get('stamp'):
            a('s_memrealtime s[74:75]')
            a('s_waitcnt lgkmcnt(0)')
            a('v_mov_b32 v10, s70'); a('v_mov_b32 v11, s72'); a('v_mov_b32 v12, s74'); a('v_mov_b32 v13, 0')
            a('s_lshl_b32 s%d, s2, 4' % sT0)
            a('s_add_u32 s%d, s%d, 0x%x' % (sT0, sT0, MISC_OFF + 65536))
            a('v_mov_b32 v14, 0')
            a('s_mov_b64 exec, 1')
            a('buffer_store_dwordx4 v[10:13], v14, s[%d:%d], s%d offen' % (sWS, sWS + 3, sT0))
        a('s_endpgm')
    a.label('g1_exit')
    a('s_endpgm')
    return a.text()
```

```python
from common import *
import rrole as R

sWS = 8
sT0, sT1, sT2, sT3, sC, sTASK = 45, 46, 47, 48, 65, 41
sMK = 80
NEG = 0xff7fffff

class AV:
    L16, L8, Dup, L16B = 2, 3, 4, 5
    T = 8
    MLO, MHI, FLO, NEGV = 6, 7, 14, 15
    Q = 16
    K = 48
    KM = 80
    V = 96
    VM = 128
    S = 136
    P = 156
    O = 16
    RC = 176

def attn_consts(a, cfg):
    A = AV
    a('v_and_b32 v1, 63, v0')
    a('v_lshlrev_b32 v%d, 4, v1' % A.L16)
    a('v_lshlrev_b32 v%d, 3, v1' % A.L8)
    a('v_add_u32 v%d, 0x1000, v%d' % (A.L16B, A.L16))
    a('v_lshrrev_b32 v%d, 4, v1' % A.T)
    a('v_and_b32 v%d, 7, v1' % (A.T + 1))
    a('v_lshl_add_u32 v%d, v%d, 3, v%d' % (A.Dup, A.T, A.T + 1))
    a('v_lshlrev_b32 v%d, 4, v%d' % (A.Dup, A.Dup))
    a('v_cmp_gt_u32 vcc, 32, v1')
    a('v_cndmask_b32 v%d, 0, -1, vcc' % A.MLO)
    a('v_cndmask_b32 v%d, -1, 0, vcc' % A.MHI)
    a('v_cndmask_b32 v%d, 0, 1.0, vcc' % A.FLO)
    a('v_mov_b32 v%d, 0x%x' % (A.NEGV, NEG))
    a('v_and_b32 v%d, 15, v1' % (A.T + 1))
    a('v_lshlrev_b32 v%d, 2, v%d' % (A.T, A.T))
    for i in range(4):
        a('v_add_u32 v%d, %d, v%d' % (A.T + 2, i, A.T))
        a('v_cmp_le_u32 s[%d:%d], v%d, v%d' % (sMK + 2 * i, sMK + 2 * i + 1, A.T + 2, A.T + 1))
    a('s_mov_b32 s%d, 0x%x' % (sC, cfg['cbits']))

def attn_task(a, cfg, ld_flags='', st_flags='', all_sc1=False):
    A = AV
    a('s_lshl_b32 s%d, s%d, 13' % (sT0, sTASK))
    a('s_add_u32 s%d, s%d, 0x%x' % (sT1, sT0, KF_OFF))
    a('s_add_u32 s%d, s%d, 0x%x' % (sT2, sT0, VF_OFF))
    if QF_OFF: a('s_add_u32 s%d, s%d, 0x%x' % (sT0, sT0, QF_OFF))
    def ld(r, n, va, so, off, fl=''):
        if all_sc1: fl = ' sc1'
        a('buffer_load_dword%s %s, v%d, s[%d:%d], s%d offen offset:%d%s' % ('x%d' % n, vr(r, n), va, sWS, sWS + 3, so, off, fl))
    for n in range(8): ld(A.Q + 4 * n, 4, A.L16 if n < 4 else A.L16B, sT0, (n & 3) * 1024)
    for n in range(8): ld(A.K + 4 * n, 4, A.L16 if n < 4 else A.L16B, sT1, (n & 3) * 1024)
    a('s_lshl_b32 s%d, s%d, 11' % (sT0, sTASK))
    a('s_add_u32 s%d, s%d, 0x%x' % (sT1, sT0, KM_OFF))
    a('s_add_u32 s%d, s%d, 0x%x' % (sT0, sT0, VM_OFF))
    for c in range(4): ld(A.KM + 4 * c, 4, A.Dup, sT1, c * 512, ld_flags)
    for n in range(8): ld(A.V + 4 * n, 4, A.L16 if n < 4 else A.L16B, sT2, (n & 3) * 1024)
    for j in range(4): ld(A.VM + 2 * j, 2, A.L8, sT0, j * 512, ld_flags)
    tiles = {(0, 0): A.S, (0, 2): A.S + 4, (1, 0): A.S + 8, (1, 1): A.S + 12, (1, 2): A.S + 16}
    a('s_waitcnt vmcnt(12)')
    for c in range(4):
        for (u, t), d in tiles.items():
            Aop = (A.K + 16 * t + 4 * c) if t < 2 else (A.KM + 4 * c)
            a('v_mfma_f32_16x16x32_bf16 %s, %s, %s, %s' % (vr(d, 4), vr(Aop, 4), vr(A.Q + 16 * u + 4 * c, 4), '0' if c == 0 else vr(d, 4)))
    a('s_lshr_b32 s%d, s%d, 5' % (sT0, sTASK))
    a('s_lshl_b32 s%d, s%d, 18' % (sT0, sT0))
    a('s_and_b32 s%d, s%d, 31' % (sT1, sTASK))
    a('s_lshl_b32 s%d, s%d, 12' % (sT1, sT1))
    a('s_add_u32 s%d, s%d, s%d' % (sT0, sT0, sT1))
    a('s_add_u32 s%d, s%d, 0x%x' % (sT0, sT0, OF_OFF))
    a('s_add_u32 s%d, s%d, 0x20000' % (sT1, sT0))
    for d in (tiles[(0, 0)], tiles[(1, 1)]):
        for i in range(4):
            a('v_cndmask_b32 v%d, v%d, v%d, s[%d:%d]' % (d + i, A.NEGV, d + i, sMK + 2 * i, sMK + 2 * i + 1))
    for u in range(2):
        regs = [tiles[k] + i for k in sorted(tiles) if k[0] == u for i in range(4)]
        m, t2 = A.T + 2 * u, A.T + 2 * u + 1
        a('v_max3_f32 v%d, v%d, v%d, v%d' % (m, regs[0], regs[1], regs[2]))
        k = 3
        while k + 1 < len(regs):
            a('v_max3_f32 v%d, v%d, v%d, v%d' % (m, m, regs[k], regs[k + 1])); k += 2
        if k < len(regs): a('v_max_f32 v%d, v%d, v%d' % (m, m, regs[k]))
    for sw in ('v_permlane16_swap_b32', 'v_permlane32_swap_b32'):
        for u in range(2): a('v_mov_b32 v%d, v%d' % (A.T + 2 * u + 1, A.T + 2 * u))
        for u in range(2): a('%s v%d, v%d' % (sw, A.T + 2 * u, A.T + 2 * u + 1))
        for u in range(2): a('v_max_f32 v%d, v%d, v%d' % (A.T + 2 * u, A.T + 2 * u, A.T + 2 * u + 1))
    for u in range(2): a('v_mul_f32 v%d, s%d, v%d' % (A.T + 2 * u, sC, A.T + 2 * u))
    for (u, t), d in tiles.items():
        for i in range(4): a('v_fma_f32 v%d, v%d, s%d, -v%d' % (d + i, d + i, sC, A.T + 2 * u))
    for (u, t), d in tiles.items():
        for i in range(4): a('v_exp_f32 v%d, v%d' % (d + i, d + i))
    for u in range(2):
        p = A.P + 10 * u
        d = tiles[(u, 0)]
        a('v_cvt_pk_bf16_f32 v%d, v%d, v%d' % (p, d, d + 1)); a('v_cvt_pk_bf16_f32 v%d, v%d, v%d' % (p + 1, d + 2, d + 3))
        if u == 0:
            a('v_mov_b32 v%d, 0' % (p + 2)); a('v_mov_b32 v%d, 0' % (p + 3))
        else:
            d = tiles[(1, 1)]
            a('v_cvt_pk_bf16_f32 v%d, v%d, v%d' % (p + 2, d, d + 1)); a('v_cvt_pk_bf16_f32 v%d, v%d, v%d' % (p + 3, d + 2, d + 3))
        d = tiles[(u, 2)]
        a('v_cvt_pk_bf16_f32 v%d, v%d, v%d' % (p + 4, d, d + 1)); a('v_cvt_pk_bf16_f32 v%d, v%d, v%d' % (p + 5, d + 2, d + 3))
        a('v_and_b32 v%d, v%d, v%d' % (p + 6, p + 4, A.MLO)); a('v_and_b32 v%d, v%d, v%d' % (p + 7, p + 5, A.MLO))
        a('v_and_b32 v%d, v%d, v%d' % (p + 8, p + 4, A.MHI)); a('v_and_b32 v%d, v%d, v%d' % (p + 9, p + 5, A.MHI))
    a('s_waitcnt vmcnt(0)')
    for u in range(2):
        sA, sB = A.T + 2 * u, A.T + 2 * u + 1
        d2 = tiles[(u, 2)]; d0 = tiles[(u, 0)]
        R.pk_add(a, d2, d2, d2 + 2); R.pk_add(a, d0, d0, d0 + 2)
        if u == 1:
            d1 = tiles[(1, 1)]
            R.pk_add(a, d1, d1, d1 + 2); R.pk_add(a, d0, d0, d1)
        a('v_add_f32 v%d, v%d, v%d' % (sB, d2, d2 + 1))
        a('v_add_f32 v%d, v%d, v%d' % (sA, d0, d0 + 1))
        a('v_fma_f32 v%d, v%d, v%d, v%d' % (sA, sB, A.FLO, sA))
    for u in range(2):
        p = A.P + 10 * u
        for et in range(8):
            o = A.O + 32 * u + 4 * et
            a('v_mfma_f32_16x16x32_bf16 %s, %s, %s, 0' % (vr(o, 4), vr(A.V + 4 * et, 4), vr(p, 4)))
            if u == 0 and et in (0, 3):
                sw = 'v_permlane16_swap_b32' if et == 0 else 'v_permlane32_swap_b32'
                for x in range(2): a('v_mov_b32 v%d, v%d' % (A.T + 2 * x + 1, A.T + 2 * x))
                for x in range(2): a('%s v%d, v%d' % (sw, A.T + 2 * x, A.T + 2 * x + 1))
                for x in range(2): a('v_add_f32 v%d, v%d, v%d' % (A.T + 2 * x, A.T + 2 * x, A.T + 2 * x + 1))
            if u == 0 and et == 6:
                for x in range(2):
                    a('v_rcp_f32 v%d, v%d' % (A.RC + 2 * x, A.T + 2 * x))
                for x in range(2):
                    a('v_mov_b32 v%d, v%d' % (A.RC + 2 * x + 1, A.RC + 2 * x))
        for et in range(8):
            o = A.O + 32 * u + 4 * et
            a('v_mfma_f32_16x16x16_bf16 %s, %s, %s, %s' % (vr(o, 4), vr(A.VM + 2 * (et >> 1), 2), vr(p + 6 + 2 * (et & 1), 2), vr(o, 4)))
    for u in range(2):
        for c in range(4):
            o = A.O + 32 * u + 8 * c
            for i in range(4):
                a('v_pk_mul_f32 v[%d:%d], v[%d:%d], v[%d:%d]' % (o + 2 * i, o + 2 * i + 1, o + 2 * i, o + 2 * i + 1, A.RC + 2 * u, A.RC + 2 * u + 1))
            for i in range(4):
                a('v_cvt_pk_bf16_f32 v%d, v%d, v%d' % (o + i, o + 2 * i, o + 2 * i + 1))
            a('buffer_store_dwordx4 %s, v%d, s[%d:%d], s%d offen offset:%d%s' % (vr(o, 4), A.L16, sWS, sWS + 3, sT0 + u, c * 1024, st_flags))

def gen_attn_kernel(name, cfg):
    a = Asm()
    a.raw(kernel_header(name))
    a('s_cmp_ge_u32 s2, 512')
    a('s_cbranch_scc1 at_exit')
    build_srds(a, dict(ws=sWS))
    attn_consts(a, cfg)
    a('v_lshrrev_b32 v%d, 6, v0' % AV.T)
    a('v_readfirstlane_b32 s%d, v%d' % (sT0, AV.T))
    a('s_lshl_b32 s%d, s2, 2' % sTASK)
    a('s_add_u32 s%d, s%d, s%d' % (sTASK, sTASK, sT0))
    attn_task(a, cfg)
    a.label('at_exit')
    a('s_endpgm')
    return a.text()

sWO, sX, sOUT = 12, 16, 20
sI, sW, sTILE, sTEND, sTSTEP, sOO, sN, sIDX0, sIDX1 = 41, 42, 43, 44, 49, 50, 51, 52, 53
class OV:
    L, L16, L16B, XA, GA = 1, 2, 3, 4, 5
    T = 8
    TR = 12
    B = 16
    AC = 144
    XR = 152
    G = 160
    RD = 164
    E = 188
LDSO = 0

def wof(q, tau, p): return 64 * q + (tau * 8 + p) * 4

def out_load_weights(a):
    O = OV
    a('v_lshrrev_b32 v%d, 2, v%d' % (O.T, O.L))
    a('v_and_b32 v%d, 3, v%d' % (O.T + 1, O.L))
    a('v_lshlrev_b32 v%d, 4, v%d' % (O.T + 1, O.T + 1))
    a('v_lshl_add_u32 v%d, v%d, 11, v%d' % (O.T + 3, O.T, O.T + 1))
    a('s_lshl_b32 s%d, s%d, 21' % (sT0, sW))
    a('s_lshl_b32 s%d, s%d, 6' % (sT1, sI))
    a('s_add_u32 s%d, s%d, s%d' % (sT0, sT0, sT1))
    for n in range(64):
        a('buffer_load_dwordx4 a[%d:%d], v%d, s[%d:%d], s%d offen' % (4 * n, 4 * n + 3, O.T + 3, sWO, sWO + 3, sT0))
        if n < 63: a('s_add_u32 s%d, s%d, 0x8000' % (sT0, sT0))
        if n == 31: pass
    a('s_lshl_b32 s%d, s%d, 14' % (sT0, sW))
    a('v_add_u32 v%d, s%d, v%d' % (O.TR, sT0, O.L16))
    a('v_lshrrev_b32 v%d, 4, v%d' % (O.T, O.L))
    a('v_bfe_u32 v%d, v%d, 2, 2' % (O.T + 1, O.L))
    a('v_and_b32 v%d, 3, v%d' % (O.T + 2, O.L))
    a('v_lshl_add_u32 v%d, v%d, 2, v%d' % (O.T + 3, O.T, O.T + 1))
    a('v_lshlrev_b32 v%d, 6, v%d' % (O.T + 3, O.T + 3))
    a('v_lshl_add_u32 v%d, v%d, 4, v%d' % (O.T + 3, O.T + 2, O.T + 3))
    a('v_add_u32 v%d, s%d, v%d' % (O.TR + 1, sT0, O.T + 3))
    for q in range(4):
        a('s_waitcnt vmcnt(%d)' % (48 - 16 * q))
        for n in range(16):
            a('ds_write_b128 v%d, a[%d:%d] offset:%d' % (O.TR, 64 * q + 4 * n, 64 * q + 4 * n + 3, n * 1024))
        a('s_waitcnt lgkmcnt(0)')
        for tau in range(2):
            for p in range(8):
                for half in range(2):
                    r = wof(q, tau, p) + 2 * half
                    a('ds_read_b64_tr_b16 a[%d:%d], v%d offset:%d' % (r, r + 1, O.TR + 1, (32 * p + 16 * half) * 64 + tau * 8))
        a('s_waitcnt lgkmcnt(0)')

def oloads(q, so, fl=''):
    O = OV
    return ['buffer_load_dwordx4 v[%d:%d], v%d, s[%d:%d], s%d offen offset:%d%s' % (O.B + 32 * q + 4 * p, O.B + 32 * q + 4 * p + 3, O.L16 if p < 4 else O.L16B, sWS, sWS + 3, so, (p & 3) * 1024, fl) for p in range(8)]

def epilogue(a, par, tile_s=None, fused=False):
    O = OV
    for wv in range(4):
        for tau in range(2):
            r = O.E + wv * 8 + tau * 4
            a('ds_read_b128 v[%d:%d], v%d offset:%d' % (r, r + 3, O.L16, LDSO + par * 8192 + wv * 2048 + tau * 1024))
    a('s_waitcnt lgkmcnt(0)')
    for x in range(0, 8, 2):
        R.pk_add(a, O.E + x, O.E + x, O.E + 8 + x); R.pk_add(a, O.E + 16 + x, O.E + 16 + x, O.E + 24 + x)
    for x in range(0, 8, 2):
        R.pk_add(a, O.E + x, O.E + x, O.E + 16 + x)
    for i in range(4): a('v_cvt_pk_bf16_f32 v%d, v%d, v%d' % (O.E + 8 + i, O.E + 2 * i, O.E + 2 * i + 1))
    for i in range(4):
        a('v_lshlrev_b32 v%d, 16, v%d' % (O.E + 2 * i, O.E + 8 + i))
        a('v_and_b32 v%d, 0xffff0000, v%d' % (O.E + 2 * i + 1, O.E + 8 + i))
    xr = O.XR + 4 * par; g = O.G + par
    a('s_waitcnt vmcnt(34)')
    for i in range(4):
        a('v_lshlrev_b32 v%d, 16, v%d' % (O.E + 16 + 2 * i, xr + i))
        a('v_and_b32 v%d, 0xffff0000, v%d' % (O.E + 17 + 2 * i, xr + i))
    if tile_s is None: a('s_sub_u32 s%d, s%d, s%d' % (sT0, sTILE, sTSTEP))
    else: a('s_mov_b32 s%d, s%d' % (sT0, tile_s))
    Lskip = a.newlabel('nomod')
    a('s_lshr_b32 s%d, s%d, 4' % (sT1, sIDX0))
    a('s_lshr_b32 s%d, s%d, 4' % (sT2, sIDX1))
    a('s_cmp_eq_u32 s%d, s%d' % (sT1, sT0))
    a('s_cselect_b32 s%d, 1, 0' % sT3)
    a('s_cmp_eq_u32 s%d, s%d' % (sT2, sT0))
    a('s_cselect_b32 s%d, 1, s%d' % (sT3, sT3))
    a('s_cmp_eq_u32 s%d, 0' % sT3)
    a.branch('s_cbranch_scc1 %s' % Lskip)
    a('v_and_b32 v%d, 15, v%d' % (O.E + 24, O.L))
    a('s_lshl_b32 s%d, s%d, 4' % (sT1, sT0))
    a('v_add_u32 v%d, s%d, v%d' % (O.E + 24, sT1, O.E + 24))
    a('v_lshrrev_b32 v%d, 4, v%d' % (O.E + 25, O.L))
    a('v_lshlrev_b32 v%d, 5, v%d' % (O.E + 25, O.E + 25))
    for c in range(2):
        Lc = a.newlabel('modc')
        a('v_cmp_eq_u32 vcc, s%d, v%d' % (sIDX0 + c, O.E + 24))
        a('s_and_saveexec_b64 s[90:91], vcc')
        a.branch('s_cbranch_execz %s' % Lc)
        a('s_lshl_b32 s%d, s%d, 7' % (sT1, sI))
        a('s_add_u32 s%d, s%d, 0x%x' % (sT1, sT1, YP_OFF + c * 4096))
        for i in range(8): a('v_mov_b32 v%d, 0' % (O.RD + 16 + i))
        for sp in range(7):
            a('buffer_load_dwordx4 v[%d:%d], v%d, s[%d:%d], s%d offen sc1' % (O.RD, O.RD + 3, O.E + 25, sWS, sWS + 3, sT1))
            a('buffer_load_dwordx4 v[%d:%d], v%d, s[%d:%d], s%d offen offset:16 sc1' % (O.RD + 4, O.RD + 7, O.E + 25, sWS, sWS + 3, sT1))
            a('s_add_u32 s%d, s%d, 8192' % (sT1, sT1))
            a('s_waitcnt vmcnt(0)')
            for x in range(0, 8, 2): R.pk_add(a, O.RD + 16 + x, O.RD + 16 + x, O.RD + x)
        a('s_mov_b32 s%d, 0x%x' % (sT1, IDX_OFF + 8 + 4 * c))
        a('v_mov_b32 v%d, 0' % (O.RD + 8))
        a('buffer_load_dword v%d, v%d, s[%d:%d], s%d offen sc1' % (O.RD + 9, O.RD + 8, sWS, sWS + 3, sT1))
        def rnd(base):
            for i in range(4):
                a('v_cvt_pk_bf16_f32 v%d, v%d, v%d' % (O.RD + i, base + 2 * i, base + 2 * i + 1))
            for i in range(4):
                a('v_lshlrev_b32 v%d, 16, v%d' % (base + 2 * i, O.RD + i))
                a('v_and_b32 v%d, 0xffff0000, v%d' % (base + 2 * i + 1, O.RD + i))
        rnd(O.RD + 16)
        a('s_waitcnt vmcnt(0)')
        for i in range(8): a('v_mul_f32 v%d, v%d, v%d' % (O.RD + 16 + i, O.RD + 16 + i, O.RD + 9))
        rnd(O.RD + 16)
        for i in range(8): a('v_add_f32 v%d, v%d, v%d' % (O.E + 16 + i, O.E + 16 + i, O.RD + 16 + i))
        rnd(O.E + 16)
        a.label(Lc)
        a('s_mov_b64 exec, s[90:91]')
    a.label(Lskip)
    a('v_sub_f32 v%d, 1.0, v%d' % (O.E + 24, g))
    a('v_cvt_pk_bf16_f32 v%d, v%d, v%d' % (O.E + 24, O.E + 24, O.E + 24))
    a('v_and_b32 v%d, 0xffff0000, v%d' % (O.E + 24, O.E + 24))
    for i in range(8): a('v_mul_f32 v%d, v%d, v%d' % (O.E + 16 + i, O.E + 16 + i, O.E + 24))
    for i in range(8): a('v_fma_f32 v%d, v%d, v%d, v%d' % (O.E + i, O.E + i, g, O.E + 16 + i))
    for i in range(4): a('v_cvt_pk_bf16_f32 v%d, v%d, v%d' % (O.E + 8 + i, O.E + 2 * i, O.E + 2 * i + 1))
    a('s_lshl_b32 s%d, s%d, 15' % (sT0, sT0))
    a('s_lshl_b32 s%d, s%d, 6' % (sT1, sI))
    a('s_add_u32 s%d, s%d, s%d' % (sT0, sT0, sT1))
    a('buffer_store_dwordx4 v[%d:%d], v%d, s[%d:%d], s%d offen' % (O.E + 8, O.E + 11, O.XA, sOUT, sOUT + 3, sT0))

def tile_body(a, par, cfg):
    O = OV
    a('s_lshl_b32 s%d, s%d, 15' % (sT0, sTILE))
    a('s_lshl_b32 s%d, s%d, 6' % (sT1, sI))
    a('s_add_u32 s%d, s%d, s%d' % (sT0, sT0, sT1))
    a('buffer_load_dwordx4 v[%d:%d], v%d, s[%d:%d], s%d offen' % (O.XR + 4 * par, O.XR + 4 * par + 3, O.XA, sX, sX + 3, sT0))
    a('s_lshl_b32 s%d, s%d, 6' % (sT0, sTILE))
    a('s_add_u32 s%d, s%d, 0x%x' % (sT0, sT0, GL_OFF))
    a('buffer_load_dword v%d, v%d, s[%d:%d], s%d offen' % (O.G + par, O.GA, sWS, sWS + 3, sT0))
    Ls = a.newlabel('noepi')
    a('s_cmp_eq_u32 s%d, 0' % sN)
    a('s_cbranch_scc1 %s' % Ls)
    a('s_and_b32 s%d, s%d, 3' % (sT0, sN))
    a('s_cmp_lg_u32 s%d, s%d' % (sT0, sW))
    a.branch('s_cbranch_scc1 %s' % Ls)
    epilogue(a, 1 - par)
    a.label(Ls)
    a('s_lshl_b32 s%d, s%d, 17' % (sT3, sTSTEP))
    a('s_add_u32 s%d, s%d, s%d' % (sOO, sOO, sT3))
    for q in range(4):
        a('s_waitcnt vmcnt(26)')
        for p in range(8):
            for tau in range(2):
                c = '0' if (q == 0 and p == 0) else vr(O.AC + 4 * tau, 4)
                a('v_mfma_f32_16x16x32_bf16 %s, %s, %s, %s' % (vr(O.AC + 4 * tau, 4), ar(wof(q, tau, p), 4), vr(O.B + 32 * q + 4 * p, 4), c))
        a('s_add_u32 s%d, s%d, %d' % (sT0, sOO, q * 8192))
        for x in oloads(q, sT0): a(x)
    a('s_lshl_b32 s%d, s%d, 11' % (sT0, sW))
    a('v_add_u32 v%d, s%d, v%d' % (O.T, sT0, O.L16))
    for tau in range(2):
        a('ds_write_b128 v%d, v[%d:%d] offset:%d' % (O.T, O.AC + 4 * tau, O.AC + 4 * tau + 3, LDSO + par * 8192 + tau * 1024))
    a('s_waitcnt lgkmcnt(0)')
    a('s_barrier')
    a('s_add_u32 s%d, s%d, s%d' % (sTILE, sTILE, sTSTEP))
    a('s_add_u32 s%d, s%d, 1' % (sN, sN))

def gen_out_kernel(name, cfg):
    O = OV
    a = Asm()
    a.raw(kernel_header(name))
    a('s_cmp_ge_u32 s2, 256')
    a('s_cbranch_scc1 out_exit')
    build_srds(a, dict(ws=sWS, wo=sWO, x=sX, out=sOUT))
    a('v_and_b32 v%d, 63, v0' % O.L)
    a('v_lshlrev_b32 v%d, 4, v%d' % (O.L16, O.L))
    a('v_add_u32 v%d, 0x1000, v%d' % (O.L16B, O.L16))
    a('v_lshrrev_b32 v%d, 6, v0' % O.T)
    a('v_readfirstlane_b32 s%d, v%d' % (sW, O.T))
    a('v_and_b32 v%d, 15, v%d' % (O.T, O.L))
    a('v_lshlrev_b32 v%d, 2, v%d' % (O.GA, O.T))
    a('v_lshrrev_b32 v%d, 4, v%d' % (O.T + 1, O.L))
    a('v_lshlrev_b32 v%d, 4, v%d' % (O.T + 1, O.T + 1))
    a('v_lshl_add_u32 v%d, v%d, 11, v%d' % (O.XA, O.T, O.T + 1))
    a('s_lshr_b32 s%d, s2, 3' % sI)
    a('s_and_b32 s%d, s2, 7' % sTILE)
    a('s_mov_b32 s%d, 8' % sTSTEP)
    a('s_mov_b32 s%d, 0' % sN)
    a('v_mov_b32 v%d, 0' % O.T)
    a('s_mov_b32 s%d, 0x%x' % (sT0, IDX_OFF))
    a('buffer_load_dwordx2 v[%d:%d], v%d, s[%d:%d], s%d offen' % (O.E, O.E + 1, O.T, sWS, sWS + 3, sT0))
    a('s_waitcnt vmcnt(0)')
    a('v_readfirstlane_b32 s%d, v%d' % (sIDX0, O.E))
    a('v_readfirstlane_b32 s%d, v%d' % (sIDX1, O.E + 1))
    out_load_weights(a)
    a('s_barrier')
    a('s_lshl_b32 s%d, s%d, 17' % (sOO, sTILE))
    a('s_lshl_b32 s%d, s%d, 15' % (sT0, sW))
    a('s_add_u32 s%d, s%d, s%d' % (sOO, sOO, sT0))
    a('s_add_u32 s%d, s%d, 0x%x' % (sOO, sOO, OF_OFF))
    for q in range(4):
        a('s_add_u32 s%d, s%d, %d' % (sT0, sOO, q * 8192))
        for x in oloads(q, sT0): a(x)
    a.label('out_loop')
    tile_body(a, 0, cfg)
    tile_body(a, 1, cfg)
    a('s_cmp_lt_u32 s%d, 16' % sN)
    a.branch('s_cbranch_scc1 out_loop')
    a('s_cmp_lg_u32 s%d, 0' % sW)
    a.branch('s_cbranch_scc1 out_exit')
    a('s_waitcnt vmcnt(0)')
    epilogue(a, 1)
    a.label('out_exit')
    a('s_endpgm')
    return a.text()

def out_consts(a):
    O = OV
    a('v_and_b32 v%d, 63, v0' % O.L)
    a('v_lshlrev_b32 v%d, 4, v%d' % (O.L16, O.L))
    a('v_add_u32 v%d, 0x1000, v%d' % (O.L16B, O.L16))
    a('v_and_b32 v%d, 15, v%d' % (O.T, O.L))
    a('v_lshlrev_b32 v%d, 2, v%d' % (O.GA, O.T))
    a('v_lshrrev_b32 v%d, 4, v%d' % (O.T + 1, O.L))
    a('v_lshlrev_b32 v%d, 4, v%d' % (O.T + 1, O.T + 1))
    a('v_lshl_add_u32 v%d, v%d, 11, v%d' % (O.XA, O.T, O.T + 1))

sPT, sNB = 56, 57
def wo_tile(a, par, pf=True):
    O = OV
    a('s_lshl_b32 s%d, s%d, 15' % (sT0, sTILE))
    a('s_lshl_b32 s%d, s%d, 6' % (sT1, sI))
    a('s_add_u32 s%d, s%d, s%d' % (sT0, sT0, sT1))
    a('buffer_load_dwordx4 v[%d:%d], v%d, s[%d:%d], s%d offen' % (O.XR + 4 * par, O.XR + 4 * par + 3, O.XA, sX, sX + 3, sT0))
    a('s_lshl_b32 s%d, s%d, 6' % (sT0, sTILE))
    a('s_add_u32 s%d, s%d, 0x%x' % (sT0, sT0, GL_OFF))
    a('buffer_load_dword v%d, v%d, s[%d:%d], s%d offen sc1' % (O.G + par, O.GA, sWS, sWS + 3, sT0))
    Ls = a.newlabel('noepi')
    a('s_cmp_eq_u32 s%d, 0' % sN)
    a('s_cbranch_scc1 %s' % Ls)
    a('s_and_b32 s%d, s%d, 3' % (sT0, sN))
    a('s_cmp_lg_u32 s%d, s%d' % (sT0, sW))
    a.branch('s_cbranch_scc1 %s' % Ls)
    epilogue(a, 1 - par, sPT, True)
    a.label(Ls)
    a('s_add_u32 s%d, s%d, 0x%x' % (sOO, sOO, 0x20000 * (1 if par == 0 else 7)))
    for q in range(4):
        a('s_waitcnt vmcnt(%d)' % (26 if pf else 26 - 8 * q))
        for p in range(8):
            for tau in range(2):
                c = '0' if (q == 0 and p == 0) else vr(O.AC + 4 * tau, 4)
                a('v_mfma_f32_16x16x32_bf16 %s, %s, %s, %s' % (vr(O.AC + 4 * tau, 4), ar(wof(q, tau, p), 4), vr(O.B + 32 * q + 4 * p, 4), c))
        if pf:
            a('s_add_u32 s%d, s%d, %d' % (sT0, sOO, q * 8192))
            for x in oloads(q, sT0, ' sc1'): a(x)
    for tau in range(2):
        a('ds_write_b128 v%d, v[%d:%d] offset:%d' % (O.T, O.AC + 4 * tau, O.AC + 4 * tau + 3, LDSO + par * 8192 + tau * 1024))
    a('s_waitcnt lgkmcnt(0)')
    a('s_barrier')
    a('s_mov_b32 s%d, s%d' % (sPT, sTILE))
    a('s_add_u32 s%d, s%d, %d' % (sTILE, sTILE, 1 if par == 0 else 7))
    a('s_add_u32 s%d, s%d, 1' % (sN, sN))

def wo_batch(a, cfg):
    O = OV
    out_consts(a)
    a('s_mov_b32 s%d, 0' % sN)
    a('s_lshl_b32 s%d, s%d, 17' % (sOO, sTILE))
    a('s_lshl_b32 s%d, s%d, 15' % (sT0, sW))
    a('s_add_u32 s%d, s%d, s%d' % (sOO, sOO, sT0))
    a('s_add_u32 s%d, s%d, 0x%x' % (sOO, sOO, OF_OFF))
    for q in range(4):
        a('s_add_u32 s%d, s%d, %d' % (sT0, sOO, q * 8192))
        for x in oloads(q, sT0, ' sc1'): a(x)
    a('s_lshl_b32 s%d, s%d, 11' % (sT0, sW))
    a('v_add_u32 v%d, s%d, v%d' % (O.T, sT0, O.L16))
    L = a.newlabel('wob')
    a.label(L)
    Ll = a.newlabel('wol')
    wo_tile(a, 0)
    a('s_sub_u32 s%d, s%d, 1' % (sNB, sNB))
    a('s_cmp_eq_u32 s%d, 0' % sNB)
    a.branch('s_cbranch_scc1 %s' % Ll)
    wo_tile(a, 1)
    a.branch('s_branch %s' % L)
    a.label(Ll)
    wo_tile(a, 1, pf=False)
    Ls = a.newlabel('noepi')
    a('s_cmp_lg_u32 s%d, 3' % sW)
    a.branch('s_cbranch_scc1 %s' % Ls)
    a('s_waitcnt vmcnt(0)')
    epilogue(a, 1, sPT, True)
    a.label(Ls)
```

```python
from common import *
import rrole as R
sWS, sWG, sWU, sWD, sX = 8, 12, 16, 20, 24
sW, sB, sT0, sT1, sT2, sT3, sK0, sK1 = 42, 41, 45, 46, 47, 48, 52, 53
vL, vL16, vT = 1, 2, 8
vW = 32
vXS = 160
vAC = 192
vR = 208

def wave_allreduce_max_u32(a, v, t):
    for sh in (1, 2, 4, 8):
        a('v_max_u32_dpp v%d, v%d, v%d row_ror:%d row_mask:0xf bank_mask:0xf' % (v, v, v, sh))
    for sw in ('v_permlane16_swap_b32', 'v_permlane32_swap_b32'):
        a('v_mov_b32 v%d, v%d' % (t, v))
        a('%s v%d, v%d' % (sw, v, t))
        a('v_max_u32 v%d, v%d, v%d' % (v, v, t))

def top2(a, lds0, fl='', hook=None, nhook=0):
    k = 16
    a('v_lshlrev_b32 v%d, 5, v0' % vT)
    a('s_mov_b32 s%d, 0x%x' % (sT0, RR_OFF))
    a('buffer_load_dwordx4 v[%d:%d], v%d, s[%d:%d], s%d offen%s' % (k, k + 3, vT, sWS, sWS + 3, sT0, fl))
    a('buffer_load_dwordx4 v[%d:%d], v%d, s[%d:%d], s%d offen offset:16%s' % (k + 4, k + 7, vT, sWS, sWS + 3, sT0, fl))
    a('v_lshlrev_b32 v%d, 3, v0' % (vT + 1))
    a('v_sub_u32 v%d, 0xffff, v%d' % (vT + 1, vT + 1))
    if hook: hook()
    a('s_waitcnt vmcnt(%d)' % nhook)
    for i in range(8):
        r = k + i
        a('v_ashrrev_i32 v%d, 31, v%d' % (vT + 2, r))
        a('v_or_b32 v%d, 0x80000000, v%d' % (vT + 2, vT + 2))
        a('v_cmp_u_f32 vcc, v%d, v%d' % (r, r))
        a('v_xor_b32 v%d, v%d, v%d' % (r, r, vT + 2))
        a('v_cndmask_b32 v%d, v%d, 0, vcc' % (r, r))
        a('v_and_b32 v%d, 0xffff0000, v%d' % (r, r))
        a('v_subrev_u32 v%d, %d, v%d' % (vT + 3, i, vT + 1))
        a('v_or_b32 v%d, v%d, v%d' % (r, r, vT + 3))
    a('s_lshl_b32 s%d, s%d, 2' % (sT1, sW))
    a('s_add_u32 s%d, s%d, %d' % (sT1, sT1, lds0))
    a('v_mov_b32 v%d, s%d' % (vT + 4, sT1))
    a('v_mov_b32 v%d, %d' % (vT + 5, lds0))
    for rnd in range(2):
        m = 24
        a('v_max3_u32 v%d, v%d, v%d, v%d' % (m, k, k + 1, k + 2))
        a('v_max3_u32 v%d, v%d, v%d, v%d' % (m, m, k + 3, k + 4))
        a('v_max3_u32 v%d, v%d, v%d, v%d' % (m, m, k + 5, k + 6))
        a('v_max_u32 v%d, v%d, v%d' % (m, m, k + 7))
        wave_allreduce_max_u32(a, m, 25)
        a('ds_write_b32 v%d, v%d offset:%d' % (vT + 4, m, rnd * 16))
        a('s_waitcnt lgkmcnt(0)')
        a('s_barrier')
        a('ds_read_b128 v[%d:%d], v%d offset:%d' % (28, 31, vT + 5, rnd * 16))
        a('s_waitcnt lgkmcnt(0)')
        a('v_max3_u32 v%d, v28, v29, v30' % m)
        a('v_max_u32 v%d, v%d, v31' % (m, m))
        a('v_readfirstlane_b32 s%d, v%d' % (sK0 + rnd, m))
        if rnd == 0:
            for i in range(8):
                a('v_cmp_eq_u32 vcc, v%d, v%d' % (k + i, m))
                a('v_cndmask_b32 v%d, v%d, 0, vcc' % (k + i, k + i))

def tr_addrs(a, lds_per_wave_shift, lds0):
    a('s_lshl_b32 s%d, s%d, %d' % (sT0, sW, lds_per_wave_shift))
    if lds0: a('s_add_u32 s%d, s%d, %d' % (sT0, sT0, lds0))
    a('v_add_u32 v%d, s%d, v%d' % (vT + 6, sT0, vL16))
    a('v_lshrrev_b32 v%d, 4, v%d' % (vT, vL))
    a('v_bfe_u32 v%d, v%d, 2, 2' % (vT + 1, vL))
    a('v_and_b32 v%d, 3, v%d' % (vT + 2, vL))
    a('v_lshl_add_u32 v%d, v%d, 4, v%d' % (vT + 3, vT, vT + 1))
    a('v_lshlrev_b32 v%d, 6, v%d' % (vT + 3, vT + 3))
    a('v_lshl_add_u32 v%d, v%d, 3, v%d' % (vT + 3, vT + 2, vT + 3))
    a('v_add_u32 v%d, s%d, v%d' % (vT + 7, sT0, vT + 3))

def transpose(a, base, nT):
    for n in range(4 * nT):
        a('ds_write_b128 v%d, v[%d:%d] offset:%d' % (vT + 6, base + 4 * n, base + 4 * n + 3, n * 1024))
    a('s_waitcnt lgkmcnt(0)')
    for tau in range(2):
        for T in range(nT):
            for b in range(2):
                for half in range(2):
                    r = base + ((tau * nT + T) * 2 + b) * 4 + 2 * half
                    a('ds_read_b64_tr_b16 v[%d:%d], v%d offset:%d' % (r, r + 1, vT + 7, (64 * T + 8 * b + 4 * half) * 64 + tau * 32))
    a('s_waitcnt lgkmcnt(0)')

def mod1_body(a, cfg, fl='', sfl='', pre=None):
    LT = 65536
    a('v_and_b32 v%d, 63, v0' % vL)
    a('v_lshlrev_b32 v%d, 4, v%d' % (vL16, vL))
    if pre: pre()
    def whook():
        a('v_lshrrev_b32 v%d, 2, v%d' % (26, vL))
        a('v_mul_u32_u24 v%d, 7168, v%d' % (26, 26))
        a('v_and_b32 v%d, 3, v%d' % (27, vL))
        a('v_lshl_add_u32 v%d, v%d, 4, v%d' % (3, 27, 26))
        a('s_mul_i32 s%d, s%d, %d' % (sT2, sW, 256 * 7168))
        a('s_lshl_b32 s%d, s%d, 6' % (sT3, sB))
        a('s_add_u32 s%d, s%d, s%d' % (sT2, sT2, sT3))
        for n in range(16):
            for M, srd in enumerate((sWG, sWU)):
                a('buffer_load_dwordx4 v[%d:%d], v3, s[%d:%d], s%d offen' % (vW + 64 * M + 4 * n, vW + 64 * M + 4 * n + 3, srd, srd + 3, sT2))
            a('s_add_u32 s%d, s%d, %d' % (sT2, sT2, 16 * 7168))
    top2(a, LT, fl, whook, 32)
    for c in range(2):
        a('s_and_b32 s%d, s%d, 0xffff' % (sT0 + c, sK0 + c))
        a('s_sub_u32 s%d, 0xffff, s%d' % (sT0 + c, sT0 + c))
    a('v_and_b32 v%d, 1, v%d' % (vT, vL))
    a('v_cmp_eq_u32 vcc, 1, v%d' % vT)
    a('v_mov_b32 v%d, s%d' % (vT + 1, sT0))
    a('v_mov_b32 v%d, s%d' % (vT + 2, sT1))
    a('v_cndmask_b32 v%d, v%d, v%d, vcc' % (vT + 1, vT + 1, vT + 2))
    a('v_lshrrev_b32 v%d, 4, v%d' % (vT + 2, vL))
    a('v_lshlrev_b32 v%d, 5, v%d' % (vT + 2, vT + 2))
    a('v_lshl_add_u32 v%d, v%d, 11, v%d' % (4, vT + 1, vT + 2))
    a('s_lshl_b32 s%d, s%d, 9' % (sT2, sW))
    for n in range(8):
        a('buffer_load_dwordx4 v[%d:%d], v4, s[%d:%d], s%d offen offset:%d' % (vXS + 4 * n, vXS + 4 * n + 3, sX, sX + 3, sT2, (n >> 1) * 128 + (n & 1) * 16))
    Ln = a.newlabel('m1np')
    a('s_or_b32 s%d, s%d, s%d' % (sT2, sB, sW))
    a('s_cmp_lg_u32 s%d, 0' % sT2)
    a.branch('s_cbranch_scc1 %s' % Ln)
    a('v_mov_b32 v16, s%d' % sT0); a('v_mov_b32 v17, s%d' % sT1)
    for c in range(2):
        a('s_and_b32 s%d, s%d, 0xffff0000' % (sT2, sK0 + c))
        a('s_xor_b32 s%d, s%d, 0x80000000' % (sT3, sT2))
        a('s_not_b32 s%d, s%d' % (sT2, sT2))
        a('s_and_b32 s%d, s%d, 0xffff0000' % (sT2, sT2))
        a('s_bitcmp1_b32 s%d, 31' % (sK0 + c))
        a('s_cselect_b32 s%d, s%d, s%d' % (sT2, sT3, sT2))
        a('v_mov_b32 v%d, s%d' % (18 + c, sT2))
        a('v_mul_f32 v%d, 0xbfb8aa3b, v%d' % (18 + c, 18 + c))
        a('v_exp_f32 v%d, v%d' % (18 + c, 18 + c))
        a('v_add_f32 v%d, 1.0, v%d' % (18 + c, 18 + c))
        a('v_rcp_f32 v%d, v%d' % (18 + c, 18 + c))
        a('v_cvt_pk_bf16_f32 v%d, v%d, v%d' % (18 + c, 18 + c, 18 + c))
        a('v_lshlrev_b32 v%d, 16, v%d' % (18 + c, 18 + c))
    a('v_mov_b32 v20, 0')
    a('s_mov_b32 s%d, 0x%x' % (sT2, IDX_OFF))
    a('s_mov_b64 exec, 1')
    a('buffer_store_dwordx4 v[16:19], v20, s[%d:%d], s%d offen%s' % (sWS, sWS + 3, sT2, sfl))
    a('s_mov_b64 exec, -1')
    a.label(Ln)
    tr_addrs(a, 14, 0)
    a('s_waitcnt vmcnt(0)')
    for M in range(2): transpose(a, vW + 64 * M, 4)
    for M in range(2):
        for tau in range(2):
            d = vAC + (M * 2 + tau) * 4
            for n in range(8):
                f = vW + 64 * M + (tau * 8 + n) * 4
                a('v_mfma_f32_16x16x32_bf16 %s, %s, %s, %s' % (vr(d, 4), vr(f, 4), vr(vXS + 4 * n, 4), '0' if n == 0 else vr(d, 4)))
    a('s_barrier')
    a('s_lshl_b32 s%d, s%d, 12' % (sT0, sW))
    a('v_add_u32 v%d, s%d, v%d' % (vT, sT0, vL16))
    for q in range(4): a('ds_write_b128 v%d, v[%d:%d] offset:%d' % (vT, vAC + 4 * q, vAC + 4 * q + 3, q * 1024))
    a('s_waitcnt lgkmcnt(0)')
    a('s_barrier')
    Ld = a.newlabel('m1done')
    a('s_cmp_gt_u32 s%d, 1' % sW)
    a.branch('s_cbranch_scc1 %s' % Ld)
    a('s_lshl_b32 s%d, s%d, 10' % (sT0, sW))
    a('v_add_u32 v%d, s%d, v%d' % (vT, sT0, vL16))
    for M in range(2):
        for wv in range(4):
            r = vW + (M * 4 + wv) * 4
            a('ds_read_b128 v[%d:%d], v%d offset:%d' % (r, r + 3, vT, wv * 4096 + M * 2048))
    a('s_waitcnt lgkmcnt(0)')
    for M in range(2):
        b0 = vW + M * 16
        for x in (0, 2):
            R.pk_add(a, b0 + x, b0 + x, b0 + 4 + x); R.pk_add(a, b0 + 8 + x, b0 + 8 + x, b0 + 12 + x)
        for x in (0, 2): R.pk_add(a, b0 + x, b0 + x, b0 + 8 + x)
    def rnd(base, t):
        a('v_cvt_pk_bf16_f32 v%d, v%d, v%d' % (t, base, base + 1)); a('v_cvt_pk_bf16_f32 v%d, v%d, v%d' % (t + 1, base + 2, base + 3))
        for i in range(2):
            a('v_lshlrev_b32 v%d, 16, v%d' % (base + 2 * i, t + i)); a('v_and_b32 v%d, 0xffff0000, v%d' % (base + 2 * i + 1, t + i))
    G, U = vW, vW + 16
    rnd(G, vR); rnd(U, vR + 2)
    for i in range(4):
        a('v_mul_f32 v%d, 0xbfb8aa3b, v%d' % (vR + 4 + i, G + i))
        a('v_exp_f32 v%d, v%d' % (vR + 4 + i, vR + 4 + i))
        a('v_add_f32 v%d, 1.0, v%d' % (vR + 4 + i, vR + 4 + i))
        a('v_rcp_f32 v%d, v%d' % (vR + 4 + i, vR + 4 + i))
        a('v_mul_f32 v%d, v%d, v%d' % (G + i, G + i, vR + 4 + i))
    rnd(G, vR)
    for i in range(4): a('v_mul_f32 v%d, v%d, v%d' % (G + i, G + i, U + i))
    a('v_cvt_pk_bf16_f32 v%d, v%d, v%d' % (vR, G, G + 1)); a('v_cvt_pk_bf16_f32 v%d, v%d, v%d' % (vR + 1, G + 2, G + 3))
    a('v_and_b32 v%d, 15, v%d' % (vT, vL))
    a('v_lshrrev_b32 v%d, 4, v%d' % (vT + 1, vL))
    a('v_mul_u32_u24 v%d, 7168, v%d' % (vT + 2, vT))
    a('v_lshl_add_u32 v%d, v%d, 3, v%d' % (vT + 2, vT + 1, vT + 2))
    a('s_lshl_b32 s%d, s%d, 6' % (sT0, sB))
    a('s_lshl_b32 s%d, s%d, 5' % (sT1, sW))
    a('s_add_u32 s%d, s%d, s%d' % (sT0, sT0, sT1))
    a('s_add_u32 s%d, s%d, 0x%x' % (sT0, sT0, HB_OFF))
    a('v_cmp_gt_u32 vcc, 2, v%d' % vT)
    a('s_mov_b64 exec, vcc')
    a('buffer_store_dwordx2 v[%d:%d], v%d, s[%d:%d], s%d offen%s' % (vR, vR + 1, vT + 2, sWS, sWS + 3, sT0, sfl))
    a('s_mov_b64 exec, -1')
    a.label(Ld)

def mod2_body(a, cfg, fl='', sfl=''):
    a('v_and_b32 v%d, 63, v0' % vL)
    a('v_lshlrev_b32 v%d, 4, v%d' % (vL16, vL))
    a('v_lshrrev_b32 v%d, 2, v%d' % (vT, vL))
    a('v_and_b32 v%d, 3, v%d' % (vT + 1, vL))
    a('v_lshlrev_b32 v%d, 4, v%d' % (vT + 1, vT + 1))
    a('v_lshl_add_u32 v3, v%d, 11, v%d' % (vT, vT + 1))
    a('s_lshr_b32 s%d, s%d, 5' % (sT2, sB))
    a('s_lshl_b32 s%d, s%d, 2' % (sT0, sT2))
    a('s_add_u32 s%d, s%d, s%d' % (sT3, sT0, sW))
    a('s_lshl_b32 s%d, s%d, 18' % (sT0, sT3))
    a('s_and_b32 s%d, s%d, 31' % (sT1, sB))
    a('s_lshl_b32 s%d, s%d, 6' % (sT1, sT1))
    a('s_add_u32 s%d, s%d, s%d' % (sT0, sT0, sT1))
    for n in range(8):
        a('buffer_load_dwordx4 v[%d:%d], v3, s[%d:%d], s%d offen' % (vW + 4 * n, vW + 4 * n + 3, sWD, sWD + 3, sT0))
        a('s_add_u32 s%d, s%d, 0x8000' % (sT0, sT0))
    a('v_and_b32 v%d, 1, v%d' % (vT, vL))
    a('v_mul_u32_u24 v%d, 7168, v%d' % (vT, vT))
    a('v_lshrrev_b32 v%d, 4, v%d' % (vT + 1, vL))
    a('v_lshl_add_u32 v4, v%d, 5, v%d' % (vT + 1, vT))
    a('s_lshl_b32 s%d, s%d, 8' % (sT0, sT3))
    a('s_add_u32 s%d, s%d, 0x%x' % (sT0, sT0, HB_OFF))
    for n in range(4):
        a('buffer_load_dwordx4 v[%d:%d], v4, s[%d:%d], s%d offen offset:%d%s' % (vXS + 4 * n, vXS + 4 * n + 3, sWS, sWS + 3, sT0, (n >> 1) * 128 + (n & 1) * 16, fl))
    tr_addrs(a, 13, 0)
    a('s_waitcnt vmcnt(0)')
    transpose(a, vW, 2)
    for tau in range(2):
        d = vAC + tau * 4
        for n in range(4):
            a('v_mfma_f32_16x16x32_bf16 %s, %s, %s, %s' % (vr(d, 4), vr(vW + (tau * 4 + n) * 4, 4), vr(vXS + 4 * n, 4), '0' if n == 0 else vr(d, 4)))
    a('s_lshl_b32 s%d, s%d, 11' % (sT0, sW))
    a('v_add_u32 v%d, s%d, v%d' % (vT, sT0, vL16))
    for q in range(2): a('ds_write_b128 v%d, v[%d:%d] offset:%d' % (vT, vAC + 4 * q, vAC + 4 * q + 3, 32768 + q * 1024))
    a('s_waitcnt lgkmcnt(0)')
    a('s_barrier')
    Ld = a.newlabel('m2done')
    a('s_cmp_gt_u32 s%d, 1' % sW)
    a.branch('s_cbranch_scc1 %s' % Ld)
    a('s_lshl_b32 s%d, s%d, 10' % (sT0, sW))
    a('v_add_u32 v%d, s%d, v%d' % (vT, sT0, vL16))
    for wv in range(4):
        a('ds_read_b128 v[%d:%d], v%d offset:%d' % (vW + 4 * wv, vW + 4 * wv + 3, vT, 32768 + wv * 2048))
    a('s_waitcnt lgkmcnt(0)')
    for x in (0, 2):
        R.pk_add(a, vW + x, vW + x, vW + 4 + x); R.pk_add(a, vW + 8 + x, vW + 8 + x, vW + 12 + x)
    for x in (0, 2): R.pk_add(a, vW + x, vW + x, vW + 8 + x)
    a('v_and_b32 v%d, 15, v%d' % (vT, vL))
    a('v_lshrrev_b32 v%d, 4, v%d' % (vT + 1, vL))
    a('v_lshlrev_b32 v%d, 12, v%d' % (vT + 2, vT))
    a('v_lshl_add_u32 v%d, v%d, 4, v%d' % (vT + 2, vT + 1, vT + 2))
    a('s_lshl_b32 s%d, s%d, 13' % (sT0, sT2))
    a('s_and_b32 s%d, s%d, 31' % (sT1, sB))
    a('s_lshl_b32 s%d, s%d, 7' % (sT1, sT1))
    a('s_add_u32 s%d, s%d, s%d' % (sT0, sT0, sT1))
    a('s_lshl_b32 s%d, s%d, 6' % (sT1, sW))
    a('s_add_u32 s%d, s%d, s%d' % (sT0, sT0, sT1))
    a('s_add_u32 s%d, s%d, 0x%x' % (sT0, sT0, YP_OFF))
    a('v_cmp_gt_u32 vcc, 2, v%d' % vT)
    a('s_mov_b64 exec, vcc')
    a('buffer_store_dwordx4 v[%d:%d], v%d, s[%d:%d], s%d offen%s' % (vW, vW + 3, vT + 2, sWS, sWS + 3, sT0, sfl))
    a('s_mov_b64 exec, -1')
    a.label(Ld)

def gen_mod_kernel(name, cfg, which):
    a = Asm()
    a.raw(kernel_header(name))
    a('s_cmp_ge_u32 s2, %d' % (112 if which == 1 else 224))
    a('s_cbranch_scc1 %s_exit' % name)
    build_srds(a, dict(ws=sWS, wg=sWG, wu=sWU, wd=sWD, x=sX))
    a('v_lshrrev_b32 v1, 6, v0')
    a('v_readfirstlane_b32 s%d, v1' % sW)
    a('s_mov_b32 s%d, s2' % sB)
    (mod1_body if which == 1 else mod2_body)(a, cfg)
    a.label('%s_exit' % name)
    a('s_endpgm')
    return a.text()
```

```python
from common import *
sWS, sX, sGW, sWR = 8, 12, 16, 20
sW, sC, sT0, sT1 = 40, 41, 45, 46
LOG2E = 0x3fb8aa3b

def pre_body(a, cfg, sc1=False, lds0=0, hook=None, nhook=0):
    vL, vL16, vXA, vWA, vT = 1, 2, 3, 4, 6
    vX, vA, vD = 16, 48, 80
    a('v_and_b32 v%d, 63, v0' % vL)
    a('v_lshlrev_b32 v%d, 4, v%d' % (vL16, vL))
    a('v_and_b32 v%d, 15, v%d' % (vT, vL))
    a('v_lshrrev_b32 v%d, 4, v%d' % (vT + 1, vL))
    a('v_lshlrev_b32 v%d, 5, v%d' % (vWA, vT + 1))
    a('v_lshl_add_u32 v%d, v%d, 11, v%d' % (vXA, vT, vWA))
    a('s_lshl_b32 s%d, s%d, 15' % (sT0, sC))
    a('s_lshl_b32 s%d, s%d, 9' % (sT1, sW))
    a('s_add_u32 s%d, s%d, s%d' % (sT0, sT0, sT1))
    for n in range(8):
        a('buffer_load_dwordx4 v[%d:%d], v%d, s[%d:%d], s%d offen offset:%d' % (vX + 4 * n, vX + 4 * n + 3, vXA, sX, sX + 3, sT0, (n >> 1) * 128 + (n & 1) * 16))
    for i in range(32): a('v_mov_b32 v%d, 0' % (vA + i))
    a('v_cmp_eq_u32 vcc, 0, v%d' % vT)
    a('s_mov_b64 exec, vcc')
    for n in range(8):
        a('buffer_load_dwordx4 v[%d:%d], v%d, s[%d:%d], s%d offen offset:%d' % (vA + 4 * n, vA + 4 * n + 3, vWA, sGW, sGW + 3, sT1, (n >> 1) * 128 + (n & 1) * 16))
    a('s_mov_b64 exec, -1')
    a('v_cmp_eq_u32 vcc, 1, v%d' % vT)
    a('s_mov_b64 exec, vcc')
    for n in range(8):
        a('buffer_load_dwordx4 v[%d:%d], v%d, s[%d:%d], s%d offen offset:%d' % (vA + 4 * n, vA + 4 * n + 3, vWA, sWR, sWR + 3, sT1, (n >> 1) * 128 + (n & 1) * 16))
    a('s_mov_b64 exec, -1')
    a('s_lshl_b32 s%d, s%d, 15' % (sT0, sC))
    a('s_lshl_b32 s%d, s%d, 13' % (sT1, sW))
    a('s_add_u32 s%d, s%d, s%d' % (sT0, sT0, sT1))
    a('s_add_u32 s%d, s%d, 0x%x' % (sT0, sT0, XF_OFF))
    a('s_add_u32 s%d, s%d, 4096' % (sT1, sT0))
    a('s_waitcnt vmcnt(16)')
    for n in range(8):
        a('buffer_store_dwordx4 v[%d:%d], v%d, s[%d:%d], s%d offen offset:%d%s' % (vX + 4 * n, vX + 4 * n + 3, vL16, sWS, sWS + 3, sT0 if n < 4 else sT1, (n & 3) * 1024, ' sc1' if sc1 else ''))
    a('s_waitcnt vmcnt(8)')
    if hook: hook()
    for n in range(8):
        a('v_mfma_f32_16x16x32_bf16 v[%d:%d], v[%d:%d], v[%d:%d], %s' % (vD, vD + 3, vA + 4 * n, vA + 4 * n + 3, vX + 4 * n, vX + 4 * n + 3, '0' if n == 0 else vr(vD, 4)))
    a('s_lshl_b32 s%d, s%d, 7' % (sT1, sW))
    a('v_lshlrev_b32 v%d, 3, v%d' % (vT + 2, vL))
    if lds0: a('v_add_u32 v%d, %d, v%d' % (vT + 2, lds0, vT + 2))
    a('v_add_u32 v%d, s%d, v%d' % (vT + 3, sT1, vT + 2))
    a('s_mov_b64 exec, 0xffff')
    a('ds_write_b64 v%d, v[%d:%d] offset:%d' % (vT + 3, vD, vD + 1, 0))
    a('s_waitcnt lgkmcnt(0)')
    a('s_mov_b64 exec, -1')
    a('s_barrier')
    Ld = a.newlabel('pre_done')
    a('s_cmp_lg_u32 s%d, 0' % sW)
    a.branch('s_cbranch_scc1 %s' % Ld)
    a('s_mov_b64 exec, 0xffff')
    for w in range(4):
        a('ds_read_b64 v[%d:%d], v%d offset:%d' % (vD + 2 * w, vD + 2 * w + 1, vT + 2, w * 128))
    a('s_waitcnt lgkmcnt(0)')
    a('v_pk_add_f32 v[%d:%d], v[%d:%d], v[%d:%d]' % (vD, vD + 1, vD, vD + 1, vD + 2, vD + 3))
    a('v_pk_add_f32 v[%d:%d], v[%d:%d], v[%d:%d]' % (vD + 4, vD + 5, vD + 4, vD + 5, vD + 6, vD + 7))
    a('v_pk_add_f32 v[%d:%d], v[%d:%d], v[%d:%d]' % (vD, vD + 1, vD, vD + 1, vD + 4, vD + 5))
    a('v_cvt_pk_bf16_f32 v%d, v%d, v%d' % (vD + 2, vD, vD + 1))
    a('v_lshlrev_b32 v%d, 16, v%d' % (vD, vD + 2))
    a('v_and_b32 v%d, 0xffff0000, v%d' % (vD + 1, vD + 2))
    a('v_mul_f32 v%d, 0xbfb8aa3b, v%d' % (vD, vD))
    a('v_exp_f32 v%d, v%d' % (vD, vD))
    a('v_add_f32 v%d, 1.0, v%d' % (vD, vD))
    a('v_rcp_f32 v%d, v%d' % (vD, vD))
    a('v_cvt_pk_bf16_f32 v%d, v%d, v%d' % (vD, vD, vD))
    a('v_lshlrev_b32 v%d, 16, v%d' % (vD, vD))
    a('s_lshl_b32 s%d, s%d, 6' % (sT0, sC))
    a('s_add_u32 s%d, s%d, 0x%x' % (sT0, sT0, GL_OFF))
    a('s_add_u32 s%d, s%d, 8192' % (sT1, sT0))
    a('v_lshlrev_b32 v%d, 2, v%d' % (vT + 2, vL))
    a('buffer_store_dword v%d, v%d, s[%d:%d], s%d offen%s' % (vD, vT + 2, sWS, sWS + 3, sT0, ' sc1' if sc1 else ''))
    a('buffer_store_dword v%d, v%d, s[%d:%d], s%d offen%s' % (vD + 1, vT + 2, sWS, sWS + 3, sT1, ' sc1' if sc1 else ''))
    a('s_mov_b64 exec, -1')
    a.label(Ld)

def gen_pre_kernel(name, cfg):
    a = Asm()
    a.raw(kernel_header(name))
    a('s_cmp_ge_u32 s2, 128')
    a('s_cbranch_scc1 pre_exit')
    build_srds(a, dict(ws=sWS, x=sX, gw=sGW, wr=sWR))
    a('v_lshrrev_b32 v1, 6, v0')
    a('v_readfirstlane_b32 s%d, v1' % sW)
    a('s_mov_b32 s%d, s2' % sC)
    pre_body(a, cfg)
    a.label('pre_exit')
    a('s_endpgm')
    return a.text()

def pre_fused(a, cfg, sGX, sGI, lds0, hook):
    vL, vL16, vXA, vWA, vT = 1, 2, 3, 4, 6
    vX, vA, vD = 16, 144, 176
    a('v_and_b32 v%d, 63, v0' % vL)
    a('v_lshlrev_b32 v%d, 4, v%d' % (vL16, vL))
    a('v_add_u32 v5, 4096, v%d' % vL16)
    a('v_and_b32 v%d, 15, v%d' % (vT, vL))
    a('v_lshrrev_b32 v%d, 4, v%d' % (vT + 1, vL))
    a('v_lshlrev_b32 v%d, 5, v%d' % (vWA, vT + 1))
    a('v_lshl_add_u32 v%d, v%d, 11, v%d' % (vXA, vT, vWA))
    a('s_lshl_b32 s%d, s%d, 15' % (sT0, sGI))
    a('s_lshl_b32 s%d, s%d, 9' % (sT1, sW))
    a('s_add_u32 s%d, s%d, s%d' % (sT0, sT0, sT1))
    for t in range(4):
        for n in range(8):
            r = vX + 32 * t + 4 * n
            a('buffer_load_dwordx4 v[%d:%d], v%d, s[%d:%d], s%d offen offset:%d' % (r, r + 3, vXA, sX, sX + 3, sT0, (n >> 1) * 128 + (n & 1) * 16))
        a('s_add_u32 s%d, s%d, 0x100000' % (sT0, sT0))
    for i in range(32): a('v_mov_b32 v%d, 0' % (vA + i))
    for row, srd in ((0, sGW), (1, sWR)):
        a('v_cmp_eq_u32 vcc, %d, v%d' % (row, vT))
        a('s_mov_b64 exec, vcc')
        for n in range(8):
            a('buffer_load_dwordx4 v[%d:%d], v%d, s[%d:%d], s%d offen offset:%d' % (vA + 4 * n, vA + 4 * n + 3, vWA, srd, srd + 3, sT1, (n >> 1) * 128 + (n & 1) * 16))
        a('s_mov_b64 exec, -1')
    a('s_lshl_b32 s%d, s%d, 15' % (sT0, sGI))
    a('s_lshl_b32 s%d, s%d, 13' % (sT1, sW))
    a('s_add_u32 s%d, s%d, s%d' % (sT0, sT0, sT1))
    a('s_lshl_b32 s%d, s%d, 22' % (sT1, sGX))
    a('s_add_u32 s%d, s%d, s%d' % (sT0, sT0, sT1))
    a('s_add_u32 s%d, s%d, 0x%x' % (sT0, sT0, XF_OFF))
    for t in range(4):
        a('s_waitcnt vmcnt(%d)' % (16 + 24 - 8 * t + 8 * t))
        for n in range(8):
            r = vX + 32 * t + 4 * n
            a('buffer_store_dwordx4 v[%d:%d], v%d, s[%d:%d], s%d offen offset:%d' % (r, r + 3, vL16 if n < 4 else 5, sWS, sWS + 3, sT0, (n & 3) * 1024))
        a('s_add_u32 s%d, s%d, 0x100000' % (sT0, sT0))
    a('s_waitcnt vmcnt(8)')
    hook()
    J = a.newlabel('pj')
    for t in range(4):
        Ls = a.newlabel('ps')
        a('s_cmp_lg_u32 s%d, %d' % (sGX, t))
        a.branch('s_cbranch_scc1 %s' % Ls)
        for n in range(8):
            r = vX + 32 * t + 4 * n
            a('v_mfma_f32_16x16x32_bf16 v[%d:%d], v[%d:%d], v[%d:%d], %s' % (vD, vD + 3, vA + 4 * n, vA + 4 * n + 3, r, r + 3, '0' if n == 0 else vr(vD, 4)))
        a.label(Ls)
    a('s_lshl_b32 s%d, s%d, 7' % (sT1, sW))
    a('v_lshlrev_b32 v%d, 3, v%d' % (vT + 2, vL))
    a('v_add_u32 v%d, %d, v%d' % (vT + 2, lds0, vT + 2))
    a('v_add_u32 v%d, s%d, v%d' % (vT + 3, sT1, vT + 2))
    a('s_mov_b64 exec, 0xffff')
    a('ds_write_b64 v%d, v[%d:%d]' % (vT + 3, vD, vD + 1))
    a('s_waitcnt lgkmcnt(0)')
    a('s_mov_b64 exec, -1')
    a('s_barrier')
    Ld = a.newlabel('pre_done')
    a('s_cmp_lg_u32 s%d, 0' % sW)
    a.branch('s_cbranch_scc1 %s' % Ld)
    a('s_mov_b64 exec, 0xffff')
    for w in range(4):
        a('ds_read_b64 v[%d:%d], v%d offset:%d' % (vD + 2 * w, vD + 2 * w + 1, vT + 2, w * 128))
    a('s_waitcnt lgkmcnt(0)')
    a('v_pk_add_f32 v[%d:%d], v[%d:%d], v[%d:%d]' % (vD, vD + 1, vD, vD + 1, vD + 2, vD + 3))
    a('v_pk_add_f32 v[%d:%d], v[%d:%d], v[%d:%d]' % (vD + 4, vD + 5, vD + 4, vD + 5, vD + 6, vD + 7))
    a('v_pk_add_f32 v[%d:%d], v[%d:%d], v[%d:%d]' % (vD, vD + 1, vD, vD + 1, vD + 4, vD + 5))
    a('v_cvt_pk_bf16_f32 v%d, v%d, v%d' % (vD + 2, vD, vD + 1))
    a('v_lshlrev_b32 v%d, 16, v%d' % (vD, vD + 2))
    a('v_and_b32 v%d, 0xffff0000, v%d' % (vD + 1, vD + 2))
    a('v_mul_f32 v%d, 0xbfb8aa3b, v%d' % (vD, vD))
    a('v_exp_f32 v%d, v%d' % (vD, vD))
    a('v_add_f32 v%d, 1.0, v%d' % (vD, vD))
    a('v_rcp_f32 v%d, v%d' % (vD, vD))
    a('v_cvt_pk_bf16_f32 v%d, v%d, v%d' % (vD, vD, vD))
    a('v_lshlrev_b32 v%d, 16, v%d' % (vD, vD))
    a('s_lshl_b32 s%d, s%d, 6' % (sT0, sC))
    a('s_add_u32 s%d, s%d, 0x%x' % (sT0, sT0, GL_OFF))
    a('s_add_u32 s%d, s%d, 8192' % (sT1, sT0))
    a('v_lshlrev_b32 v%d, 2, v%d' % (vT + 2, vL))
    a('buffer_store_dword v%d, v%d, s[%d:%d], s%d offen sc1' % (vD, vT + 2, sWS, sWS + 3, sT0))
    a('buffer_store_dword v%d, v%d, s[%d:%d], s%d offen sc1' % (vD + 1, vT + 2, sWS, sWS + 3, sT1))
    a('s_mov_b64 exec, -1')
    a.label(Ld)

def conv0(a, cfg, sGX, sGI, sCX, sCD, hook):
    vL, vL16, vXA, vT = 1, 2, 3, 6
    a('v_and_b32 v%d, 63, v0' % vL)
    a('v_lshlrev_b32 v%d, 4, v%d' % (vL16, vL))
    a('v_add_u32 v5, 4096, v%d' % vL16)
    a('v_and_b32 v%d, 15, v%d' % (vT, vL))
    a('v_lshrrev_b32 v%d, 4, v%d' % (vT + 1, vL))
    a('v_lshlrev_b32 v%d, 5, v%d' % (vT + 1, vT + 1))
    a('v_lshl_add_u32 v%d, v%d, 11, v%d' % (vXA, vT, vT + 1))
    a('s_lshl_b32 s%d, s%d, 15' % (sT0, sGI))
    a('s_lshl_b32 s%d, s%d, 9' % (sT1, sW))
    a('s_add_u32 s%d, s%d, s%d' % (sCX, sT0, sT1))
    for n in range(8):
        a('buffer_load_dwordx4 v[%d:%d], v%d, s[%d:%d], s%d offen offset:%d' % (16 + 4 * n, 19 + 4 * n, vXA, sX, sX + 3, sCX, (n >> 1) * 128 + (n & 1) * 16))
    a('s_lshl_b32 s%d, s%d, 13' % (sT1, sW))
    a('s_add_u32 s%d, s%d, s%d' % (sCD, sT0, sT1))
    a('s_lshl_b32 s%d, s%d, 22' % (sT1, sGX))
    a('s_add_u32 s%d, s%d, s%d' % (sCD, sCD, sT1))
    a('s_add_u32 s%d, s%d, 0x%x' % (sCD, sCD, XF_OFF))
    hook()
    a('s_waitcnt vmcnt(48)')
    for n in range(8):
        a('buffer_store_dwordx4 v[%d:%d], v%d, s[%d:%d], s%d offen offset:%d' % (16 + 4 * n, 19 + 4 * n, vL16 if n < 4 else 5, sWS, sWS + 3, sCD, (n & 3) * 1024) + (' sc1' if cfg.get('safe') else ''))
    a('s_add_u32 s%d, s%d, 0x100000' % (sCX, sCX))
    a('s_add_u32 s%d, s%d, 0x100000' % (sCD, sCD))

def dots(a, cfg, sGX, lds0):
    vL, vL16, vWA, vT = 1, 2, 4, 6
    vX, vA, vD = 16, 48, 80
    a('v_and_b32 v%d, 63, v0' % vL)
    a('v_lshlrev_b32 v%d, 4, v%d' % (vL16, vL))
    a('v_add_u32 v5, 4096, v%d' % vL16)
    a('v_and_b32 v%d, 15, v%d' % (vT, vL))
    a('v_lshrrev_b32 v%d, 4, v%d' % (vT + 1, vL))
    a('v_lshlrev_b32 v%d, 5, v%d' % (vWA, vT + 1))
    a('s_lshl_b32 s%d, s%d, 15' % (sT0, sC))
    a('s_lshl_b32 s%d, s%d, 13' % (sT1, sW))
    a('s_add_u32 s%d, s%d, s%d' % (sT0, sT0, sT1))
    a('s_lshl_b32 s%d, s%d, 22' % (sT1, sGX))
    a('s_add_u32 s%d, s%d, s%d' % (sT0, sT0, sT1))
    a('s_add_u32 s%d, s%d, 0x%x' % (sT0, sT0, XF_OFF))
    for n in range(8):
        a('buffer_load_dwordx4 v[%d:%d], v%d, s[%d:%d], s%d offen offset:%d sc1' % (vX + 4 * n, vX + 4 * n + 3, vL16 if n < 4 else 5, sWS, sWS + 3, sT0, (n & 3) * 1024))
    a('s_lshl_b32 s%d, s%d, 9' % (sT1, sW))
    for i in range(32): a('v_mov_b32 v%d, 0' % (vA + i))
    for row, srd in ((0, sGW), (1, sWR)):
        a('v_cmp_eq_u32 vcc, %d, v%d' % (row, vT))
        a('s_mov_b64 exec, vcc')
        for n in range(8):
            a('buffer_load_dwordx4 v[%d:%d], v%d, s[%d:%d], s%d offen offset:%d' % (vA + 4 * n, vA + 4 * n + 3, vWA, srd, srd + 3, sT1, (n >> 1) * 128 + (n & 1) * 16))
        a('s_mov_b64 exec, -1')
    a('s_waitcnt vmcnt(0)')
    for n in range(8):
        a('v_mfma_f32_16x16x32_bf16 v[%d:%d], v[%d:%d], v[%d:%d], %s' % (vD, vD + 3, vA + 4 * n, vA + 4 * n + 3, vX + 4 * n, vX + 4 * n + 3, '0' if n == 0 else vr(vD, 4)))
    a('s_lshl_b32 s%d, s%d, 7' % (sT1, sW))
    a('v_lshlrev_b32 v%d, 3, v%d' % (vT + 2, vL))
    a('v_add_u32 v%d, %d, v%d' % (vT + 2, lds0, vT + 2))
    a('v_add_u32 v%d, s%d, v%d' % (vT + 3, sT1, vT + 2))
    a('s_mov_b64 exec, 0xffff')
    a('ds_write_b64 v%d, v[%d:%d]' % (vT + 3, vD, vD + 1))
    a('s_waitcnt lgkmcnt(0)')
    a('s_mov_b64 exec, -1')
    a('s_barrier')
    Ld = a.newlabel('pre_done')
    a('s_cmp_lg_u32 s%d, 0' % sW)
    a.branch('s_cbranch_scc1 %s' % Ld)
    a('s_mov_b64 exec, 0xffff')
    for w in range(4):
        a('ds_read_b64 v[%d:%d], v%d offset:%d' % (vD + 2 * w, vD + 2 * w + 1, vT + 2, w * 128))
    a('s_waitcnt lgkmcnt(0)')
    a('v_pk_add_f32 v[%d:%d], v[%d:%d], v[%d:%d]' % (vD, vD + 1, vD, vD + 1, vD + 2, vD + 3))
    a('v_pk_add_f32 v[%d:%d], v[%d:%d], v[%d:%d]' % (vD + 4, vD + 5, vD + 4, vD + 5, vD + 6, vD + 7))
    a('v_pk_add_f32 v[%d:%d], v[%d:%d], v[%d:%d]' % (vD, vD + 1, vD, vD + 1, vD + 4, vD + 5))
    a('v_cvt_pk_bf16_f32 v%d, v%d, v%d' % (vD + 2, vD, vD + 1))
    a('v_lshlrev_b32 v%d, 16, v%d' % (vD, vD + 2))
    a('v_and_b32 v%d, 0xffff0000, v%d' % (vD + 1, vD + 2))
    a('v_mul_f32 v%d, 0xbfb8aa3b, v%d' % (vD, vD))
    a('v_exp_f32 v%d, v%d' % (vD, vD))
    a('v_add_f32 v%d, 1.0, v%d' % (vD, vD))
    a('v_rcp_f32 v%d, v%d' % (vD, vD))
    a('v_cvt_pk_bf16_f32 v%d, v%d, v%d' % (vD, vD, vD))
    a('v_lshlrev_b32 v%d, 16, v%d' % (vD, vD))
    a('s_lshl_b32 s%d, s%d, 6' % (sT0, sC))
    a('s_add_u32 s%d, s%d, 0x%x' % (sT0, sT0, GL_OFF))
    a('s_add_u32 s%d, s%d, 8192' % (sT1, sT0))
    a('v_lshlrev_b32 v%d, 2, v%d' % (vT + 2, vL))
    a('buffer_store_dword v%d, v%d, s[%d:%d], s%d offen sc1' % (vD, vT + 2, sWS, sWS + 3, sT0))
    a('buffer_store_dword v%d, v%d, s[%d:%d], s%d offen sc1' % (vD + 1, vT + 2, sWS, sWS + 3, sT1))
    a('s_mov_b64 exec, -1')
    a('s_waitcnt vmcnt(0)')
    dbg_arrive(a, 32, DB_RR, 8)
    a.label(Ld)

def dots_agpr(a, cfg, sGX, lds0):
    vL, vL16, vT, vD = 1, 2, 6, 232
    aX, aA = 192, 224
    vWA = 240
    a('v_and_b32 v%d, 15, v%d' % (vT, vL))
    a('v_lshrrev_b32 v%d, 4, v%d' % (vT + 1, vL))
    a('v_lshlrev_b32 v%d, 5, v%d' % (vWA, vT + 1))
    a('s_lshl_b32 s%d, s%d, 15' % (sT0, sC))
    a('s_lshl_b32 s%d, s%d, 13' % (sT1, sW))
    a('s_add_u32 s%d, s%d, s%d' % (sT0, sT0, sT1))
    a('s_lshl_b32 s%d, s%d, 22' % (sT1, sGX))
    a('s_add_u32 s%d, s%d, s%d' % (sT0, sT0, sT1))
    a('s_add_u32 s%d, s%d, 0x%x' % (sT0, sT0, XF_OFF))
    for n in range(8):
        a('buffer_load_dwordx4 a[%d:%d], v%d, s[%d:%d], s%d offen offset:%d sc1' % (aX + 4 * n, aX + 4 * n + 3, vL16 if n < 4 else 5, sWS, sWS + 3, sT0, (n & 3) * 1024))
    a('s_lshl_b32 s%d, s%d, 9' % (sT1, sW))
    for i in range(32): a('v_accvgpr_write_b32 a%d, 0' % (aA + i))
    for row, srd in ((0, sGW), (1, sWR)):
        a('v_cmp_eq_u32 vcc, %d, v%d' % (row, vT))
        a('s_mov_b64 exec, vcc')
        for n in range(8):
            a('buffer_load_dwordx4 a[%d:%d], v%d, s[%d:%d], s%d offen offset:%d' % (aA + 4 * n, aA + 4 * n + 3, vWA, srd, srd + 3, sT1, (n >> 1) * 128 + (n & 1) * 16))
        a('s_mov_b64 exec, -1')
    a('s_waitcnt vmcnt(0)')
    for n in range(8):
        a('v_mfma_f32_16x16x32_bf16 v[%d:%d], a[%d:%d], a[%d:%d], %s' % (vD, vD + 3, aA + 4 * n, aA + 4 * n + 3, aX + 4 * n, aX + 4 * n + 3, '0' if n == 0 else vr(vD, 4)))
    a('s_lshl_b32 s%d, s%d, 7' % (sT1, sW))
    a('v_lshlrev_b32 v%d, 3, v%d' % (vT + 2, vL))
    a('v_add_u32 v%d, %d, v%d' % (vT + 2, lds0, vT + 2))
    a('v_add_u32 v%d, s%d, v%d' % (vT + 3, sT1, vT + 2))
    a('s_mov_b64 exec, 0xffff')
    a('ds_write_b64 v%d, v[%d:%d]' % (vT + 3, vD, vD + 1))
    a('s_waitcnt lgkmcnt(0)')
    a('s_mov_b64 exec, -1')
    a('s_barrier')
    Ld = a.newlabel('pre_done')
    a('s_cmp_lg_u32 s%d, 2' % sW)
    a.branch('s_cbranch_scc1 %s' % Ld)
    a('s_mov_b64 exec, 0xffff')
    for w in range(4):
        a('ds_read_b64 v[%d:%d], v%d offset:%d' % (vD + 2 * w, vD + 2 * w + 1, vT + 2, w * 128))
    a('s_waitcnt lgkmcnt(0)')
    a('v_pk_add_f32 v[%d:%d], v[%d:%d], v[%d:%d]' % (vD, vD + 1, vD, vD + 1, vD + 2, vD + 3))
    a('v_pk_add_f32 v[%d:%d], v[%d:%d], v[%d:%d]' % (vD + 4, vD + 5, vD + 4, vD + 5, vD + 6, vD + 7))
    a('v_pk_add_f32 v[%d:%d], v[%d:%d], v[%d:%d]' % (vD, vD + 1, vD, vD + 1, vD + 4, vD + 5))
    a('v_cvt_pk_bf16_f32 v%d, v%d, v%d' % (vD + 2, vD, vD + 1))
    a('v_lshlrev_b32 v%d, 16, v%d' % (vD, vD + 2))
    a('v_and_b32 v%d, 0xffff0000, v%d' % (vD + 1, vD + 2))
    a('v_mul_f32 v%d, 0xbfb8aa3b, v%d' % (vD, vD))
    a('v_exp_f32 v%d, v%d' % (vD, vD))
    a('v_add_f32 v%d, 1.0, v%d' % (vD, vD))
    a('v_rcp_f32 v%d, v%d' % (vD, vD))
    a('v_cvt_pk_bf16_f32 v%d, v%d, v%d' % (vD, vD, vD))
    a('v_lshlrev_b32 v%d, 16, v%d' % (vD, vD))
    a('s_lshl_b32 s%d, s%d, 6' % (sT0, sC))
    a('s_add_u32 s%d, s%d, 0x%x' % (sT0, sT0, GL_OFF))
    a('s_add_u32 s%d, s%d, 8192' % (sT1, sT0))
    a('v_lshlrev_b32 v%d, 2, v%d' % (vT + 2, vL))
    a('buffer_store_dword v%d, v%d, s[%d:%d], s%d offen sc1' % (vD, vT + 2, sWS, sWS + 3, sT0))
    a('buffer_store_dword v%d, v%d, s[%d:%d], s%d offen sc1' % (vD + 1, vT + 2, sWS, sWS + 3, sT1))
    a('s_mov_b64 exec, -1')
    a.label(Ld)
```

```python
from common import *

sWS, sWQ, sWK, sWV, sWO, sM0, sDBG = 8, 12, 16, 20, 24, 28, 32
sRX, sI, sW, sSTEP, sSPIN, sT0, sT1, sT2, sT3, sH, sJ = 40, 41, 42, 43, 44, 45, 46, 47, 48, 49, 50
sMXR, sMXW, sQKW, sQKR, sOXR, sOXW, sPXR, sPXW, sARC, sKF, sVF = 52, 53, 54, 55, 56, 57, 58, 59, 60, 61, 62
sSLOT, sSLOT2, sC, sA0, sA1, sA2, sA3, sP0, sP1 = 63, 64, 65, 66, 67, 68, 69, 74, 75
vL, vL16, vP8, vDup, vOD, vL8 = 1, 2, 3, 4, 5, 6
vSENT = 8
vT = 12
vSET = 16
vM = 64
vACC = 80
vZ = 128
vR = 144
vMLO, vMHI, vFLO = 156, 157, 158
vTR = 144
vKX = 160
vVX = 192
vS = 200
vP = 212
vVZ = 222
vO = 224
vX = 160
vXR = 224
vXA, vXM, vZERO = 232, 233, 234
sXB = 36
sPX1, sP2, sP3 = 51, 72, 73
sGP = 59
vL16B, vXAB = 7, 236
LDS_B = 0
LDS_D = 12288
LDS_KV = 16384
LDS_TK = 65536
SWITCH = 5

def acc(tile, b): return vACC + (tile * 2 + b) * 4
def wq_frag(tile, T, b): return ((tile * 4 + T) * 2 + b) * 4
def wo_frag(tau, u, b): return 192 + ((tau * 4 + u) * 2 + b) * 4

def check_sent(a, regs, tmp):
    regs = list(regs)
    h = len(regs) // 2
    chains = [(regs[:h], tmp), (regs[h:], tmp + 1)]
    outs = []
    for rg, t in chains:
        seq = ['v_max3_u32 v%d, v%d, v%d, v%d' % (t, rg[0], rg[1], rg[2])]
        k = 3
        while k + 1 < len(rg):
            seq.append('v_max3_u32 v%d, v%d, v%d, v%d' % (t, t, rg[k], rg[k + 1])); k += 2
        if k < len(rg): seq.append('v_max_u32 v%d, v%d, v%d' % (t, t, rg[k]))
        outs.append(seq)
    for x, y in zip(outs[0], outs[1]):
        a(x); a(y)
    a('v_max_u32 v%d, v%d, v%d' % (tmp, tmp, tmp + 1))
    a('v_cmp_eq_u32 vcc, -1, v%d' % tmp)

def delay(a, n):
    if n <= 0: return
    if n >= 4: a('s_sleep %d' % (n // 4))
    for _ in range(n % 4): a('s_nop 3')

def spoll_issue(a, nsets, loads, gap):
    for k in range(nsets):
        for ld in loads(k): a(ld)
        if k < nsets - 1: delay(a, gap)

def spoll(a, nsets, loads, regs, consume, first=0, gap=0, issued=False):
    L = a.newlabel('sp'); J = a.newlabel('spj')
    C = [a.newlabel('spc') for _ in range(nsets)]
    nl = len(loads(0))
    if not issued:
        delay(a, first)
        spoll_issue(a, nsets, loads, gap)
    a.label(L)
    for k in range(nsets):
        a('s_waitcnt vmcnt(%d)' % (nl * (nsets - 1)))
        check_sent(a, regs(k), vT)
        a('s_cbranch_vccz %s' % C[k])
        for ld in loads(k): a(ld)
    a('s_add_u32 s%d, s%d, 1' % (sSPIN, sSPIN))
    a('s_cmp_lt_u32 s%d, 0x%x' % (sSPIN, SPIN_LIMIT))
    a('s_cbranch_scc1 %s' % L)
    a('s_waitcnt vmcnt(0)')
    for k in range(nsets):
        a.label(C[k], fence=False); a.hist = []
        consume(k)
        if k < nsets - 1: a.branch('s_branch %s' % J)
    a.label(J)

def ppoll(a, nb, loads, regs, consume, first=0, issued=False):
    nl = len(loads(0))
    if not issued:
        delay(a, first)
        for T in range(nb):
            for ld in loads(T): a(ld)
    for T in range(nb):
        C = a.newlabel('ppc'); Rr = a.newlabel('ppr'); OK = a.newlabel('ppo')
        a('s_waitcnt vmcnt(%d)' % (nl * (nb - 1 - T)))
        rg = list(regs(T))
        def chk():
            if len(rg) == 4:
                a('v_max3_u32 v%d, v%d, v%d, v%d' % (vT, rg[0], rg[1], rg[2]))
                a('v_max_u32 v%d, v%d, v%d' % (vT, vT, rg[3]))
                a('v_cmp_eq_u32 vcc, -1, v%d' % vT)
            else:
                check_sent(a, rg, vT)
        chk()
        a('s_cbranch_vccz %s' % OK)
        saved = list(a.hist)
        a.label(Rr)
        for T2 in range(T, nb):
            for ld in loads(T2): a(ld)
        a('s_add_u32 s%d, s%d, 1' % (sSPIN, sSPIN))
        a('s_waitcnt vmcnt(%d)' % (nl * (nb - 1 - T)))
        chk()
        a('s_cbranch_vccz %s' % OK)
        a('s_cmp_lt_u32 s%d, 0x%x' % (sSPIN, SPIN_LIMIT))
        a('s_cbranch_scc1 %s' % Rr)
        a.label(OK, fence=False); a.hist = saved
        consume(T)

def combine_pair(a, z, t0, t1):
    for i in range(4):
        a('v_add_f32_dpp v%d, v%d, v%d row_ror:8 row_mask:0xf bank_mask:0x3' % (z + i, acc(t0, 1) + i, acc(t0, 0) + i))
        a('v_add_f32_dpp v%d, v%d, v%d row_ror:8 row_mask:0xf bank_mask:0xc' % (z + i, acc(t1, 0) + i, acc(t1, 1) + i))

def pk_add(a, d, x, y):
    a('v_pk_add_f32 v[%d:%d], v[%d:%d], v[%d:%d]' % (d, d + 1, x, x + 1, y, y + 1))

def reduce3(a, z, ldsbase, w):
    others = [x for x in range(4) if x != w]
    for n, o in enumerate(others):
        a('ds_read_b128 v[%d:%d], v%d offset:%d' % (vR + 4 * n, vR + 4 * n + 3, vL16, ldsbase + o * 1024))
    a('s_waitcnt lgkmcnt(2)')
    pk_add(a, z, z, vR); pk_add(a, z + 2, z + 2, vR + 2)
    a('s_waitcnt lgkmcnt(0)')
    pk_add(a, vR + 4, vR + 4, vR + 8); pk_add(a, vR + 6, vR + 6, vR + 10)
    pk_add(a, z, z, vR + 4); pk_add(a, z + 2, z + 2, vR + 6)

def load_weights(a, with_wo=True):
    a('v_lshrrev_b32 v%d, 2, v%d' % (vT, vL))
    a('v_and_b32 v%d, 3, v%d' % (vT + 1, vL))
    a('v_lshlrev_b32 v%d, 4, v%d' % (vT + 1, vT + 1))
    a('v_lshl_add_u32 v%d, v%d, 13, v%d' % (vT + 2, vT, vT + 1))
    a('v_lshl_add_u32 v%d, v%d, 11, v%d' % (vT + 3, vT, vT + 1))
    a('s_lshl_b32 s%d, s%d, 21' % (sT0, sW))
    a('s_lshl_b32 s%d, s%d, 8' % (sT1, sH))
    a('s_add_u32 s%d, s%d, s%d' % (sT0, sT0, sT1))
    a('s_lshl_b32 s%d, s%d, 6' % (sT1, sJ))
    a('s_add_u32 s%d, s%d, s%d' % (sT0, sT0, sT1))
    for n in range(16):
        for M, srd in enumerate((sWQ, sWK, sWV)):
            a('buffer_load_dwordx4 a[%d:%d], v%d, s[%d:%d], s%d offen' % (64 * M + 4 * n, 64 * M + 4 * n + 3, vT + 2, srd, srd + 3, sT0))
        if n < 15: a('s_add_u32 s%d, s%d, 0x20000' % (sT0, sT0))
    if with_wo:
        a('s_lshl_b32 s%d, s%d, 21' % (sT0, sRX))
        a('s_lshl_b32 s%d, s%d, 19' % (sT1, sW))
        a('s_add_u32 s%d, s%d, s%d' % (sT0, sT0, sT1))
        a('s_lshl_b32 s%d, s%d, 6' % (sT1, sI))
        a('s_add_u32 s%d, s%d, s%d' % (sT0, sT0, sT1))
        for n in range(16):
            a('buffer_load_dwordx4 a[%d:%d], v%d, s[%d:%d], s%d offen' % (192 + 4 * n, 192 + 4 * n + 3, vT + 3, sWO, sWO + 3, sT0))
            if n < 15: a('s_add_u32 s%d, s%d, 0x8000' % (sT0, sT0))

def rstamp(a, k):
    a('s_memrealtime s[%d:%d]' % (80 + 2 * k, 81 + 2 * k))

def transpose_weights(a, with_wo=True, st=False):
    a('s_lshl_b32 s%d, s%d, 14' % (sT0, sW))
    a('v_add_u32 v%d, s%d, v%d' % (vTR, sT0, vL16))
    a('v_lshrrev_b32 v%d, 4, v%d' % (vT, vL))
    a('v_bfe_u32 v%d, v%d, 2, 2' % (vT + 1, vL))
    a('v_and_b32 v%d, 3, v%d' % (vT + 2, vL))
    a('v_lshl_add_u32 v%d, v%d, 4, v%d' % (vT + 3, vT, vT + 1))
    a('v_lshlrev_b32 v%d, 6, v%d' % (vT + 3, vT + 3))
    a('v_lshl_add_u32 v%d, v%d, 3, v%d' % (vT + 3, vT + 2, vT + 3))
    a('v_add_u32 v%d, s%d, v%d' % (vTR + 1, sT0, vT + 3))
    a('v_lshl_add_u32 v%d, v%d, 2, v%d' % (vT + 3, vT, vT + 1))
    a('v_lshlrev_b32 v%d, 6, v%d' % (vT + 3, vT + 3))
    a('v_lshl_add_u32 v%d, v%d, 4, v%d' % (vT + 3, vT + 2, vT + 3))
    a('v_add_u32 v%d, s%d, v%d' % (vTR + 2, sT0, vT + 3))
    a('s_waitcnt vmcnt(0)')
    if st: rstamp(a, 1)
    for M in range(4 if with_wo else 3):
        for n in range(16):
            a('ds_write_b128 v%d, a[%d:%d] offset:%d' % (vTR, 64 * M + 4 * n, 64 * M + 4 * n + 3, n * 1024))
        a('s_waitcnt lgkmcnt(0)')
        for tau in range(2):
            for T in range(4):
                for b in range(2):
                    for half in range(2):
                        if M < 3:
                            r = wq_frag(2 * M + tau, T, b) + 2 * half
                            off = (64 * T + 8 * b + 4 * half) * 64 + tau * 32
                            a('ds_read_b64_tr_b16 a[%d:%d], v%d offset:%d' % (r, r + 1, vTR + 1, off))
                        else:
                            r = wo_frag(tau, T, b) + 2 * half
                            off = (32 * (2 * T + b) + 16 * half) * 64 + tau * 8
                            a('ds_read_b64_tr_b16 a[%d:%d], v%d offset:%d' % (r, r + 1, vTR + 2, off))
        a('s_waitcnt lgkmcnt(0)')

def lane_consts(a):
    a('v_and_b32 v%d, 63, v0' % vL)
    a('v_lshlrev_b32 v%d, 4, v%d' % (vL16, vL))
    a('v_lshlrev_b32 v%d, 3, v%d' % (vL8, vL))
    a('v_lshrrev_b32 v%d, 4, v%d' % (vT, vL))
    a('v_and_b32 v%d, 7, v%d' % (vT + 1, vL))
    a('v_bfe_u32 v%d, v%d, 3, 1' % (vT + 2, vL))
    a('v_lshl_add_u32 v%d, v%d, 3, v%d' % (vT + 3, vT, vT + 1))
    a('v_lshlrev_b32 v%d, 4, v%d' % (vDup, vT + 3))
    a('v_lshl_add_u32 v%d, v%d, 3, v%d' % (vP8, vT + 2, vDup))
    a('v_lshl_add_u32 v%d, v%d, 9, v%d' % (vOD, vT + 2, vDup))
    for i in range(4): a('v_mov_b32 v%d, -1' % (vSENT + i))
    a('v_cmp_gt_u32 vcc, 32, v%d' % vL)
    a('v_cndmask_b32 v%d, 0, -1, vcc' % vMLO)
    a('v_cndmask_b32 v%d, -1, 0, vcc' % vMHI)
    a('v_cndmask_b32 v%d, 0, 1.0, vcc' % vFLO)

def mark(a, cfg, k):
    if not cfg.get('prof'): return
    if cfg['prof'] == 3:
        if k not in (1, 2, 9, 100, 101, 102, 103, 104, 105, 106, 107): return
        if k >= 100: k = k - 100 + 3 if k < 104 else k - 104 + 10
        a('s_memtime s[76:77]')
        a('s_cmp_eq_u32 s%d, %d' % (sSTEP, cfg.get('pstep', 21)))
        a('s_waitcnt lgkmcnt(0)')
        a('s_cselect_b32 s%d, s76, s%d' % (80 + k, 80 + k))
        return
    if k >= 100: return
    if cfg['prof'] == 2:
        a('s_memrealtime s[76:77]')
        a('s_cmp_eq_u32 s%d, %d' % (sSTEP, 20 if k > 1 else 21))
        a('s_waitcnt lgkmcnt(0)')
        a('s_cselect_b32 s%d, s76, s%d' % (80 + k, 80 + k))
        return
    a('s_memtime s[76:77]')
    a('s_waitcnt lgkmcnt(0)')
    a('s_sub_u32 s78, s76, s79')
    a('s_add_u32 s%d, s%d, s78' % (80 + k, 80 + k))
    a('s_mov_b32 s79, s76')

def px_slot(a, dst, slotreg, base):
    a('s_lshr_b32 s%d, s%d, 1' % (sT3, slotreg))
    a('s_lshl_b32 s%d, s%d, 14' % (sT3, sT3))
    a('s_add_u32 s%d, s%d, s%d' % (sT3, sT3, base))
    a('s_and_b32 s%d, s%d, 1' % (dst, slotreg))
    a('s_lshl_b32 s%d, s%d, 12' % (dst, dst))
    a('s_add_u32 s%d, s%d, s%d' % (dst, dst, sT3))

def slot_off(a, dst, slotreg, shift, base):
    a('s_lshl_b32 s%d, s%d, %d' % (dst, slotreg, shift))
    a('s_add_u32 s%d, s%d, s%d' % (dst, dst, base))

SAFE = [False]
def st(a, regs, n, vaddr, soff, sc1=False):
    sc1 = sc1 or SAFE[0]
    a('buffer_store_dword%s %s, v%d, s[%d:%d], s%d offen%s' % ('x%d' % n if n > 1 else '', vr(regs, n), vaddr, sWS, sWS + 3, soff, ' sc1' if sc1 else ''))

def read_choice(a, cfg, bases):
    L = a.newlabel('ch'); D = a.newlabel('chd')
    a('v_mov_b32 v%d, 132' % (vT + 1))
    a.label(L)
    a('buffer_load_dword v%d, v%d, s[%d:%d], 0 offen sc1' % (vT, vT + 1, sDBG, sDBG + 3))
    a('s_waitcnt vmcnt(0)')
    a('v_readfirstlane_b32 s%d, v%d' % (sT0, vT))
    a('s_cmp_lg_u32 s%d, 0' % sT0)
    a('s_cbranch_scc1 %s' % D)
    a('s_add_u32 s%d, s%d, 1' % (sSPIN, sSPIN))
    a('s_cmp_lt_u32 s%d, 0x%x' % (sSPIN, SPIN_LIMIT))
    a('s_cbranch_scc1 %s' % L)
    a.label(D)
    if 'forcesel' in cfg: a('s_mov_b32 s%d, %d' % (sT0, cfg['forcesel']))
    a('s_and_b32 s%d, s%d, 1' % (sT1, sT0))
    a('s_lshl_b32 s%d, s%d, 13' % (sT1, sT1))
    a('s_add_u32 s%d, s%d, s%d' % (sPXR, sPXR, sT1))
    a('s_and_b32 s%d, s%d, 2' % (sT1, sT0))
    a('s_lshl_b32 s%d, s%d, 12' % (sT1, sT1))
    a('s_add_u32 s%d, s%d, s%d' % (sPX1, sPX1, sT1))

def wave_loop(a, w, cfg):
    Lloop = 'r_loop_w%d' % w
    Lend = 'r_end_w%d' % w
    g = cfg.get
    a('s_lshl_b32 s%d, s%d, 16' % (sT0, sRX))
    a('s_add_u32 s%d, s%d, 0x%x' % (sMXR, sT0, MX_OFF + w * 4096))
    a('s_lshl_b32 s%d, s%d, 9' % (sT1, sI))
    a('s_add_u32 s%d, s%d, s%d' % (sT2, sT0, sT1))
    a('s_add_u32 s%d, s%d, 0x%x' % (sMXW, sT2, MX_OFF))
    a('s_add_u32 s%d, s%d, 0x%x' % (sOXR, sT0, OX_OFF + w * 4096))
    a('s_add_u32 s%d, s%d, 0x%x' % (sOXW, sT2, OX_OFF))
    a('s_lshl_b32 s%d, s%d, 17' % (sT0, sRX))
    a('s_lshr_b32 s%d, s%d, 2' % (sT1, sI))
    a('s_lshl_b32 s%d, s%d, 12' % (sT1, sT1))
    a('s_add_u32 s%d, s%d, s%d' % (sT0, sT0, sT1))
    a('s_add_u32 s%d, s%d, 0x%x' % (sQKR, sT0, QKX_OFF))
    a('s_lshl_b32 s%d, s%d, 9' % (sT1, sJ))
    a('s_add_u32 s%d, s%d, s%d' % (sQKW, sQKR, sT1))
    if w == 1: a('s_add_u32 s%d, s%d, 2048' % (sQKW, sQKW))
    a('s_lshl_b32 s%d, s%d, 16' % (sT0, sI))
    a('s_add_u32 s%d, s%d, 0x%x' % (sPXR, sT0, PX_OFF))
    if w == 0:
        a('s_lshl_b32 s%d, s%d, 10' % (sT1, sRX))
        a('s_add_u32 s%d, s%d, s%d' % (sPXR, sPXR, sT1))
    a('s_add_u32 s%d, s%d, 0x%x' % (sPX1, sPXR, 2 * MB))
    a('v_add_u32 v%d, 0x1000, v%d' % (vL16B, vL16))
    a('s_lshl_b32 s%d, s%d, 11' % (sT0, sH))
    a('s_lshl_b32 s%d, s%d, 9' % (sT1, sJ))
    a('s_add_u32 s%d, s%d, s%d' % (sT0, sT0, sT1))
    a('s_add_u32 s%d, s%d, 0x%x' % (sARC, sT0, KM_OFF if w == 1 else VM_OFF))
    a('s_lshl_b32 s%d, s%d, 13' % (sT0, sH))
    a('s_add_u32 s%d, s%d, 0x%x' % (sKF, sT0, KF_OFF))
    a('s_lshl_b32 s%d, s%d, 11' % (sT1, sJ))
    a('s_add_u32 s%d, s%d, s%d' % (sT0, sT0, sT1))
    a('s_add_u32 s%d, s%d, 0x%x' % (sVF, sT0, VF_OFF))
    a('s_mov_b32 s%d, 0x%x' % (sC, cfg['cbits']))
    a('s_mov_b32 s%d, 0x7fffffff' % sP0)
    a('s_mov_b32 s%d, 0x7fffffff' % sP1)
    a('s_mov_b32 s%d, 0x7fffffff' % sP2)
    a('s_mov_b32 s%d, 0x7fffffff' % sP3)
    for slot in range(4):
        if w in (0, 1):
            a('s_add_u32 s%d, s%d, 0x%x' % (sT0, sQKW, slot * 32768)); st(a, vSENT, 2, vL8, sT0)
        if w == 0:
            for reg in range(2 if g('xcopy', 1) else 1):
                for q4 in (range(4) if g('xcopy', 1) else (0, 2)):
                    a('s_add_u32 s%d, s%d, 0x%x' % (sT0, sPXR, reg * 2 * MB + slot * 16384 + q4 * 4096)); st(a, vSENT, 4, vL16, sT0, True)
        if w == 2:
            a('s_add_u32 s%d, s%d, 0x%x' % (sT0, sMXW, slot * 16384)); st(a, vSENT, 2, vL8, sT0)
        if w == 3:
            a('s_add_u32 s%d, s%d, 0x%x' % (sT0, sOXW, slot * 16384)); st(a, vSENT, 2, vL8, sT0)
    fused = g('fused', 0)
    if w == 3 and not fused:
        prefetch_kv(a)
    if w == 0 and fused:
        a('s_lshl_b32 s%d, s%d, 8' % (sT0, sH))
        a('s_lshl_b32 s%d, s%d, 2' % (sT1, sJ))
        a('s_add_u32 s%d, s%d, s%d' % (sT0, sT0, sT1))
        a('s_add_u32 s%d, s%d, 0x%x' % (sARC, sT0, PROG_OFF))
        publish_prog(a, None, 0)
    if w in (1, 2):
        xa = w - 1
        a('v_add_u32 v%d, %d, v%d' % (vT, 64 * xa, vL))
        a('v_lshlrev_b32 v%d, 3, v%d' % (vXA, vT))
        a('v_add_u32 v%d, 0x1000, v%d' % (vXAB, vXA))
        a('v_lshrrev_b32 v%d, 1, v%d' % (vT + 1, vT))
        a('v_and_b32 v%d, 7, v%d' % (vT + 2, vT + 1))
        a('v_lshrrev_b32 v%d, 4, v%d' % (vT + 3, vT + 1))
        a('v_lshl_add_u32 v%d, v%d, 3, v%d' % (vXM, vT + 3, vT + 2))
        a('v_lshlrev_b32 v%d, 4, v%d' % (vXM, vXM))
        a('v_bfe_u32 v%d, v%d, 3, 1' % (vT + 3, vT + 1))
        a('v_lshl_add_u32 v%d, v%d, 3, v%d' % (vXM, vT + 3, vXM))
        a('v_and_b32 v%d, 1, v%d' % (vT + 3, vL))
        a('v_lshl_add_u32 v%d, v%d, 2, v%d' % (vXM, vT + 3, vXM))
        a('v_lshrrev_b32 v%d, 3, v%d' % (vT + 1, vT + 1))
        a('v_lshlrev_b32 v%d, 3, v%d' % (vT + 1, vT + 1))
        a('v_lshl_add_u32 v%d, v%d, 2, v%d' % (vT + 1, vT + 3, vT + 1))
        a('v_lshl_add_u32 v%d, v%d, 11, v%d' % (vT, vT + 2, vT + 1))
        a('s_lshl_b32 s%d, s%d, 6' % (sT0, sI))
        a('buffer_load_dword v%d, v%d, s[%d:%d], s%d offen' % (vXR, vT, sM0, sM0 + 3, sT0))
        a('v_mov_b32 v%d, 0' % vZERO)
        a('v_mov_b32 v%d, 0' % (vZERO + 1))
    if g('st3'): rstamp(a, 0)
    load_weights(a)
    if g('st3'): rstamp(a, 4)
    a('s_waitcnt vmcnt(63)')
    a('s_barrier')
    if w == 0:
        dbg_arrive(a, sDBG, DB_INIT2 if g('safe') else DB_INIT, vR)
    transpose_weights(a, st=g('st3'))
    if g('st3'): rstamp(a, 2)
    a('s_barrier')
    if fused:
        init_wait(a, sDBG, cfg, vT, sSPIN, sT0)
    elif w == 0:
        dbg_wait(a, sDBG, DB_INIT, 128, vT, sSPIN)
    a('s_mov_b32 s%d, 0' % sGP)
    a('s_barrier')
    a('s_mov_b32 s%d, 0' % sSTEP)
    if g('stamp'): a('s_memrealtime s[70:71]')
    if g('prof'):
        for k in range(16): a('s_mov_b32 s%d, 0' % (80 + k))
        a('s_memtime s[76:77]')
        a('s_waitcnt lgkmcnt(0)')
        a('s_mov_b32 s79, s76')
    a.label(Lloop)
    a('s_and_b32 s%d, s%d, 3' % (sSLOT, sSTEP))
    a('s_add_u32 s%d, s%d, 2' % (sSLOT2, sSTEP))
    a('s_and_b32 s%d, s%d, 3' % (sSLOT2, sSLOT2))
    slot_off(a, sA0, sSLOT, 14, sMXR)
    slot_off(a, sA1, sSLOT, 14, sOXR)
    if w in (1, 2):
        Lpub = a.newlabel('apub'); Lns = a.newlabel('nosw')
        slot_off(a, sA2, sSLOT, 14, sMXW)
        slot_off(a, sA3, sSLOT2, 14, sMXW)
        a('s_cmp_eq_u32 s%d, 0' % sSTEP)
        a.branch('s_cbranch_scc1 %s' % Lpub)
        a('s_cmp_lg_u32 s%d, %d' % (sSTEP, SWITCH))
        a.branch('s_cbranch_scc1 %s' % Lns)
        read_choice(a, cfg, None)
        a.label(Lns)
        for reg, base in ((0, sPXR), (1, sPX1)):
            slot_off(a, sT0, sSLOT, 14, base)
            a('s_add_u32 s%d, s%d, s%d' % (sXB + 2 * reg, sWS, sT0))
            a('s_addc_u32 s%d, s%d, 0' % (sXB + 2 * reg + 1, sWS + 1))
        def xl(k):
            cp = k if g('xcopy', 1) else 0
            return ['global_load_dwordx2 v[%d:%d], v%d, s[%d:%d] offset:%d sc1' % (vX + 8 * k + 2 * p, vX + 8 * k + 2 * p + 1, vXAB if cp & 1 else vXA, sXB + 2 * (cp >> 1), sXB + 2 * (cp >> 1) + 1, p * 1024) for p in range(4)]
        def xc(k):
            b = vX + 8 * k
            pk_add(a, b, b, b + 2); pk_add(a, b + 4, b + 4, b + 6)
            pk_add(a, b, b, b + 4)
            a('v_cvt_pk_bf16_f32 v%d, v%d, v%d' % (vXR, b, b + 1))
        spoll(a, g('ns_x', 4), xl, lambda k: range(vX + 8 * k, vX + 8 * k + 8), xc, g('dly_x', 0), g('gap_x', 8))
        mark(a, cfg, 0)
        a.label(Lpub)
        a('v_min_u32 v%d, -2, v%d' % (vXR, vXR))
        st(a, vXR, 1, vXM, sA2)
        st(a, vSENT, 1, vXM, sA3)
    if w in (0, 1):
        slot_off(a, sA2, sSLOT, 15, sQKW)
        slot_off(a, sA3, sSLOT2, 15, sQKW)
    if w == 3:
        slot_off(a, sA2, sSLOT, 14, sOXW)
        slot_off(a, sA3, sSLOT2, 14, sOXW)
        slot_off(a, sT2, sSLOT, 15, sQKR)
    mark(a, cfg, 1)
    a('s_barrier')
    mark(a, cfg, 2)
    mb = vSET + 64
    mb = vM
    def ml(T): return ['buffer_load_dwordx4 v[%d:%d], v%d, s[%d:%d], s%d offen offset:%d sc1' % (mb + 4 * T, mb + 4 * T + 3, vL16, sWS, sWS + 3, sA0, T * 1024)]
    def mc(T):
        if T == 3: mark(a, cfg, 3)
        mark(a, cfg, 100 + T)
        for tile in range(4):
            for b in range(2):
                c = '0' if T == 0 else vr(acc(tile, b), 4)
                a('v_mfma_f32_16x16x32_bf16 %s, %s, %s, %s' % (vr(acc(tile, b), 4), ar(wq_frag(tile, T, b), 4), vr(mb + 4 * T, 4), c))
    ppoll(a, 4, ml, lambda T: range(mb + 4 * T, mb + 4 * T + 4), mc, g('dly_m', 0))
    for i in range(4):
        a('v_add_f32_dpp v%d, v%d, v%d row_ror:8 row_mask:0xf bank_mask:0x3' % (vZ + i, acc(0, 1) + i, acc(0, 0) + i))
    for i in range(4):
        a('v_add_f32_dpp v%d, v%d, v%d row_ror:8 row_mask:0xf bank_mask:0xc' % (vZ + i, acc(1, 0) + i, acc(1, 1) + i))
    if w != 0: a('ds_write_b128 v%d, v[%d:%d] offset:%d' % (vL16, vZ, vZ + 3, LDS_B + w * 1024))
    for i in range(4):
        a('v_add_f32_dpp v%d, v%d, v%d row_ror:8 row_mask:0xf bank_mask:0x3' % (vZ + 4 + i, acc(2, 1) + i, acc(2, 0) + i))
    for i in range(4):
        a('v_add_f32_dpp v%d, v%d, v%d row_ror:8 row_mask:0xf bank_mask:0xc' % (vZ + 4 + i, acc(3, 0) + i, acc(3, 1) + i))
    if w != 1: a('ds_write_b128 v%d, v[%d:%d] offset:%d' % (vL16, vZ + 4, vZ + 7, LDS_B + 4096 + w * 1024))
    a('s_waitcnt lgkmcnt(0)')
    mark(a, cfg, 4)
    a('s_barrier')
    mark(a, cfg, 5)
    if w in (0, 1):
        z = vZ + 4 * w
        reduce3(a, z, LDS_B + 4096 * w, w)
        a('v_cvt_pk_bf16_f32 v%d, v%d, v%d' % (z, z, z + 1))
        a('v_cvt_pk_bf16_f32 v%d, v%d, v%d' % (z + 1, z + 2, z + 3))
        a('v_min_u32 v%d, -2, v%d' % (z, z))
        a('v_min_u32 v%d, -2, v%d' % (z + 1, z + 1))
        st(a, z, 2, vP8, sA2)
        st(a, vSENT, 2, vL8, sA3)
        if w == 1:
            slot_off(a, sT0, sSTEP, 16, sARC)
            st(a, z, 2, vP8, sT0, True)
    def qkl(c):
        return ['buffer_load_dwordx4 v[%d:%d], v%d, s[%d:%d], s%d offen offset:%d sc1' % (vSET + 8 * c + 4 * x, vSET + 8 * c + 4 * x + 3, vDup, sWS, sWS + 3, sT2, x * 2048 + c * 512) for x in range(2)]
    n = 0
    qk_at = g('qk_at', 16)
    for tile in (4, 5):
        for T in range(4):
            for b in range(2):
                if w == 3 and n >= qk_at and (n - qk_at) < 8 and (n - qk_at) % 2 == 0:
                    for ld in qkl((n - qk_at) // 2): a(ld)
                c = '0' if T == 0 else vr(acc(tile, b), 4)
                a('v_mfma_f32_16x16x32_bf16 %s, %s, %s, %s' % (vr(acc(tile, b), 4), vr(mb + 4 * T, 4), ar(wq_frag(tile, T, b), 4), c))
                n += 1
    qk_done = max(0, min(4, (16 - qk_at + 1) // 2))
    for i in range(4):
        a('v_permlane32_swap_b32 v%d, v%d' % (acc(4, 0) + i, acc(5, 0) + i))
        a('v_permlane32_swap_b32 v%d, v%d' % (acc(4, 1) + i, acc(5, 1) + i))
    for i in range(4):
        a('v_add_f32 v%d, v%d, v%d' % (vZ + 8 + i, acc(4, 0) + i, acc(5, 1) + i))
    a('ds_write_b128 v%d, v[%d:%d] offset:%d' % (vL16, vZ + 8, vZ + 11, LDS_B + 8192 + w * 1024))
    if w == 3:
        if qk_done < 4: delay(a, g('dly_qk', 0))
        for c in range(qk_done, 4):
            for ld in qkl(c): a(ld)
    a('s_waitcnt lgkmcnt(0)')
    mark(a, cfg, 6)
    a('s_barrier')
    mark(a, cfg, 7)
    if w in (2, 3):
        reduce3(a, vZ + 8, LDS_B + 8192, w)
        a('v_cvt_pk_bf16_f32 v%d, v%d, v%d' % (vZ + 8 if w == 2 else vVZ, vZ + 8, vZ + 9))
        a('v_cvt_pk_bf16_f32 v%d, v%d, v%d' % (vZ + 9 if w == 2 else vVZ + 1, vZ + 10, vZ + 11))
    if w == 2:
        slot_off(a, sT0, sSTEP, 16, sARC)
        st(a, vZ + 8, 2, vL8, sT0, True)
    a('s_cmp_eq_u32 s%d, 63' % sSTEP)
    a.branch('s_cbranch_scc1 %s' % Lend)
    if w == 2:
        a('s_add_u32 s%d, s%d, 0x40000' % (sKF, sKF))
        a('s_add_u32 s%d, s%d, 0x40000' % (sVF, sVF))
        if fused: ensure_gp(a, sSTEP, 2)
        prefetch_dma(a, fused)
    if w == 3:
        if fused:
            L0 = a.newlabel('kv0')
            a('s_cmp_lg_u32 s%d, 0' % sSTEP)
            a.branch('s_cbranch_scc1 %s' % L0)
            a('s_mov_b32 s%d, s%d' % (sP0, sT2))
            ensure_gp(a, None, 1)
            prefetch_kv(a, True)
            a('s_mov_b32 s%d, s%d' % (sT2, sP0))
            a('s_waitcnt vmcnt(0)')
            a.label(L0)
        def qkc(c):
            qb = vSET + 8 * c; ka = qb + 4
            if c == 3: mark(a, cfg, 8)
            for t, A in ((0, vKX + 4 * c), (1, vKX + 16 + 4 * c), (2, ka)):
                cc = '0' if c == 0 else vr(vS + 4 * t, 4)
                a('v_mfma_f32_16x16x32_bf16 %s, %s, %s, %s' % (vr(vS + 4 * t, 4), vr(A, 4), vr(qb, 4), cc))
        ppoll(a, 4, qkl, lambda c: range(vSET + 8 * c, vSET + 8 * c + 8), qkc, issued=True)
        m, t2 = vT, vT + 1
        a('v_max3_f32 v%d, v%d, v%d, v%d' % (m, vS, vS + 1, vS + 2))
        a('v_max3_f32 v%d, v%d, v%d, v%d' % (t2, vS + 3, vS + 4, vS + 5))
        a('v_max3_f32 v%d, v%d, v%d, v%d' % (m, m, vS + 6, vS + 7))
        a('v_max3_f32 v%d, v%d, v%d, v%d' % (t2, t2, vS + 8, vS + 9))
        a('v_max3_f32 v%d, v%d, v%d, v%d' % (m, m, vS + 10, vS + 11))
        a('v_max_f32 v%d, v%d, v%d' % (m, m, t2))
        a('v_mov_b32 v%d, v%d' % (t2, m))
        a('v_permlane16_swap_b32 v%d, v%d' % (m, t2))
        a('v_max_f32 v%d, v%d, v%d' % (m, m, t2))
        a('v_mov_b32 v%d, v%d' % (t2, m))
        a('v_permlane32_swap_b32 v%d, v%d' % (m, t2))
        a('v_max_f32 v%d, v%d, v%d' % (m, m, t2))
        a('v_mul_f32 v%d, s%d, v%d' % (m, sC, m))
        for i in range(12):
            a('v_fma_f32 v%d, v%d, s%d, -v%d' % (vS + i, vS + i, sC, m))
            if i >= 1: a('v_exp_f32 v%d, v%d' % (vS + i - 1, vS + i - 1))
        a('v_exp_f32 v%d, v%d' % (vS + 11, vS + 11))
        for i in range(4):
            a('v_cvt_pk_bf16_f32 v%d, v%d, v%d' % (vP + i, vS + 2 * i, vS + 2 * i + 1))
        for i in range(4, 6):
            a('v_cvt_pk_bf16_f32 v%d, v%d, v%d' % (vP + i, vS + 2 * i, vS + 2 * i + 1))
        a('v_mfma_f32_16x16x32_bf16 %s, %s, %s, 0' % (vr(vO, 4), vr(vVX, 4), vr(vP, 4)))
        a('v_and_b32 v%d, v%d, v%d' % (vP + 6, vP + 4, vMLO))
        a('v_and_b32 v%d, v%d, v%d' % (vP + 7, vP + 5, vMLO))
        a('v_mfma_f32_16x16x32_bf16 %s, %s, %s, 0' % (vr(vO + 4, 4), vr(vVX + 4, 4), vr(vP, 4)))
        a('v_and_b32 v%d, v%d, v%d' % (vP + 8, vP + 4, vMHI))
        a('v_and_b32 v%d, v%d, v%d' % (vP + 9, vP + 5, vMHI))
        a('v_mfma_f32_16x16x16_bf16 %s, %s, %s, %s' % (vr(vO, 4), vr(vVZ, 2), vr(vP + 6, 2), vr(vO, 4)))
        sA, sB = vT, vT + 1
        pk_add(a, vS + 8, vS + 8, vS + 10)
        pk_add(a, vS, vS, vS + 2)
        a('v_mfma_f32_16x16x16_bf16 %s, %s, %s, %s' % (vr(vO + 4, 4), vr(vVZ, 2), vr(vP + 8, 2), vr(vO + 4, 4)))
        pk_add(a, vS + 4, vS + 4, vS + 6)
        a('v_add_f32 v%d, v%d, v%d' % (sB, vS + 8, vS + 9))
        pk_add(a, vS, vS, vS + 4)
        a('v_add_f32 v%d, v%d, v%d' % (sA, vS, vS + 1))
        a('v_fma_f32 v%d, v%d, v%d, v%d' % (sA, sB, vFLO, sA))
        a('v_mov_b32 v%d, v%d' % (sB, sA))
        a('v_permlane16_swap_b32 v%d, v%d' % (sA, sB))
        a('v_add_f32 v%d, v%d, v%d' % (sA, sA, sB))
        a('v_mov_b32 v%d, v%d' % (sB, sA))
        a('v_permlane32_swap_b32 v%d, v%d' % (sA, sB))
        a('v_add_f32 v%d, v%d, v%d' % (sA, sA, sB))
        a('v_rcp_f32 v%d, v%d' % (sA, sA))
        a('v_mov_b32 v%d, v%d' % (sB, sA))
        for i in range(4):
            a('v_pk_mul_f32 v[%d:%d], v[%d:%d], v[%d:%d]' % (vO + 2 * i, vO + 2 * i + 1, vO + 2 * i, vO + 2 * i + 1, sA, sB))
        for i in range(4):
            a('v_cvt_pk_bf16_f32 v%d, v%d, v%d' % (vO + i, vO + 2 * i, vO + 2 * i + 1))
        for i in range(4):
            a('v_min_u32 v%d, -2, v%d' % (vO + i, vO + i))
        st(a, vO, 4, vDup, sA2)
        st(a, vSENT, 2, vL8, sA3)
    if w == 0:
        if fused: publish_prog(a, sSTEP, 0)
        Lns = a.newlabel('nosw')
        a('s_cmp_lg_u32 s%d, %d' % (sSTEP, SWITCH - 1))
        a.branch('s_cbranch_scc1 %s' % Lns)
        read_choice(a, cfg, None)
        a.label(Lns)
        a('s_add_u32 s%d, s%d, 1' % (sT2, sSTEP))
        a('s_and_b32 s%d, s%d, 3' % (sT2, sT2))
        slot_off(a, sA2, sT2, 14, sPXR)
        slot_off(a, sA3, sT2, 14, sPX1)
        a('s_add_u32 s%d, s%d, 3' % (sT2, sSTEP))
        a('s_and_b32 s%d, s%d, 3' % (sT2, sT2))
        slot_off(a, sXB, sT2, 14, sPXR)
        slot_off(a, sXB + 1, sT2, 14, sPX1)
        K = g('ns_x', 4) if g('xcopy', 1) else 1
        for cp in range(K): st(a, vSENT, 4, vL16B if cp & 1 else vL16, sXB + (cp >> 1), True)
    mark(a, cfg, 9)
    a('s_barrier')
    mark(a, cfg, 10)
    def ol(u): return ['buffer_load_dwordx4 v[%d:%d], v%d, s[%d:%d], s%d offen offset:%d sc1' % (mb + 4 * u, mb + 4 * u + 3, vOD, sWS, sWS + 3, sA1, u * 1024)]
    def oc(u):
        if u == 3: mark(a, cfg, 11)
        mark(a, cfg, 104 + u)
        for tau in range(2):
            for b in range(2):
                c = '0' if u == 0 else vr(acc(tau, b), 4)
                a('v_mfma_f32_16x16x32_bf16 %s, %s, %s, %s' % (vr(acc(tau, b), 4), ar(wo_frag(tau, u, b), 4), vr(mb + 4 * u, 4), c))
    ppoll(a, 4, ol, lambda u: range(mb + 4 * u, mb + 4 * u + 4), oc, g('dly_o', 0))
    for i in range(4):
        a('v_add_f32_dpp v%d, v%d, v%d row_ror:8 row_mask:0xf bank_mask:0x3' % (vZ + 12 + i, acc(0, 1) + i, acc(0, 0) + i))
    for i in range(4):
        a('v_add_f32_dpp v%d, v%d, v%d row_ror:8 row_mask:0xf bank_mask:0xc' % (vZ + 12 + i, acc(1, 0) + i, acc(1, 1) + i))
    if w != 0: a('ds_write_b128 v%d, v[%d:%d] offset:%d' % (vL16, vZ + 12, vZ + 15, LDS_D + w * 1024))
    a('s_waitcnt lgkmcnt(0)')
    mark(a, cfg, 12)
    a('s_barrier')
    mark(a, cfg, 13)
    if w == 0:
        z = vZ + 12
        reduce3(a, z, LDS_D, 0)
        for i in range(4): a('v_min_u32 v%d, -2, v%d' % (z + i, z + i))
        K = g('ns_x', 4) if g('xcopy', 1) else 1
        for cp in range(K): st(a, z, 4, vL16B if cp & 1 else vL16, sA2 + (cp >> 1), True)
    if w == 0:
        Lnp = a.newlabel('noprobe'); Lpb = a.newlabel('pubch')
        a('s_or_b32 s%d, s%d, s%d' % (sT0, sRX, sI))
        a('s_cmp_lg_u32 s%d, 0' % sT0)
        a.branch('s_cbranch_scc1 %s' % Lnp)
        a('s_cmp_gt_u32 s%d, 3' % sSTEP)
        a.branch('s_cbranch_scc1 %s' % Lnp)
        a('s_cmp_eq_u32 s%d, 3' % sSTEP)
        a.branch('s_cbranch_scc1 %s' % Lpb)
        a('s_waitcnt vmcnt(0)')
        a('s_sleep 2')
        a('s_mov_b32 s%d, s%d' % (sA2, sXB))
        for n in range(2):
            a('s_add_u32 s%d, s%d, %d' % (sT1, sSTEP, n))
            a('s_and_b32 s%d, s%d, 1' % (sT1, sT1))
            a('s_lshl_b32 s%d, s%d, 13' % (sT0, sT1))
            a('s_add_u32 s%d, s%d, s%d' % (sT0, sT0, sA2))
            a('s_memtime s[96:97]')
            a('s_waitcnt lgkmcnt(0)')
            st(a, vSENT, 4, vL16, sT0, True)
            a('s_waitcnt vmcnt(0)')
            a('s_memtime s[98:99]')
            a('s_waitcnt lgkmcnt(0)')
            a('s_sub_u32 s%d, s98, s96' % sT3)
            for cnd, reg in enumerate((sP0, sP1, sP2, sP3)):
                a('s_min_u32 s%d, s%d, s%d' % (sT0, reg, sT3))
                a('s_cmp_eq_u32 s%d, %d' % (sT1, cnd))
                a('s_cselect_b32 s%d, s%d, s%d' % (reg, sT0, reg))
        a.branch('s_branch %s' % Lnp)
        a.label(Lpb)
        a('s_cmp_lt_u32 s%d, s%d' % (sP1, sP0))
        a('s_cselect_b32 s%d, 5, 4' % sT0)
        a('s_cmp_lt_u32 s%d, s%d' % (sP3, sP2))
        a('s_cselect_b32 s%d, 2, 0' % sT1)
        a('s_or_b32 s%d, s%d, s%d' % (sT0, sT0, sT1))
        a('v_mov_b32 v%d, s%d' % (vT, sT0))
        a('v_mov_b32 v%d, 132' % (vT + 1))
        a('s_mov_b64 exec, 1')
        a('buffer_store_dword v%d, v%d, s[%d:%d], 0 offen sc1' % (vT, vT + 1, sDBG, sDBG + 3))
        a('s_mov_b64 exec, -1')
        a.label(Lnp)
    if w == 3:
        for n in range(10):
            a('ds_read_b128 v[%d:%d], v%d offset:%d' % (vKX + 4 * n, vKX + 4 * n + 3, vL16, LDS_KV + n * 1024))
    if g('tl') and w == 3:
        Lt = a.newlabel('tl')
        a('s_or_b32 s%d, s%d, s%d' % (sT0, sRX, sI))
        a('s_cmp_lg_u32 s%d, 0' % sT0)
        a.branch('s_cbranch_scc1 %s' % Lt)
        a('s_memrealtime s[96:97]')
        a('s_memtime s[98:99]')
        a('s_waitcnt lgkmcnt(0)')
        a('v_mov_b32 v%d, s96' % vT)
        a('v_mov_b32 v%d, s98' % (vT + 1))
        a('v_mov_b32 v%d, 0' % (vT + 2))
        a('s_lshl_b32 s%d, s%d, 3' % (sT0, sSTEP))
        a('s_add_u32 s%d, s%d, 0x%x' % (sT0, sT0, MISC_OFF + 196608))
        a('s_mov_b64 exec, 1')
        a('buffer_store_dwordx2 v[%d:%d], v%d, s[%d:%d], s%d offen' % (vT, vT + 1, vT + 2, sWS, sWS + 3, sT0))
        a('s_mov_b64 exec, -1')
        a.label(Lt)
    a('s_add_u32 s%d, s%d, 1' % (sSTEP, sSTEP))
    mark(a, cfg, 14)
    a.branch('s_branch %s' % Lloop)
    a.label(Lend)
    if fused:
        a('s_waitcnt vmcnt(0)')
        a('s_barrier')
        if w == 0: publish_prog(a, None, 64)
    if g('prof'):
        a('s_mov_b32 s95, s%d' % sSPIN)
        a('s_lshl_b32 s%d, s%d, 5' % (sT0, sRX))
        a('s_add_u32 s%d, s%d, s%d' % (sT0, sT0, sI))
        a('s_lshl_b32 s%d, s%d, 8' % (sT0, sT0))
        a('s_add_u32 s%d, s%d, 0x%x' % (sT0, sT0, MISC_OFF + 4096 + w * 64))
        a('v_mov_b32 v%d, 0' % (vT + 2))
        a('s_mov_b64 exec, 1')
        for k in range(16):
            a('v_mov_b32 v%d, s%d' % (vT, 80 + k))
            a('buffer_store_dword v%d, v%d, s[%d:%d], s%d offen offset:%d' % (vT, vT + 2, sWS, sWS + 3, sT0, 4 * k))
        a('s_mov_b64 exec, -1')
    if g('st3') and w == 0:
        a('s_lshl_b32 s%d, s%d, 5' % (sT0, sRX))
        a('s_add_u32 s%d, s%d, s%d' % (sT0, sT0, sI))
        a('s_lshl_b32 s%d, s%d, 5' % (sT0, sT0))
        a('s_add_u32 s%d, s%d, 0x%x' % (sT0, sT0, MISC_OFF + 262144))
        a('v_mov_b32 v%d, 0' % (vT + 2))
        a('s_mov_b64 exec, 1')
        for k in range(5):
            a('v_mov_b32 v%d, s%d' % (vT, 80 + 2 * k))
            a('buffer_store_dword v%d, v%d, s[%d:%d], s%d offen offset:%d' % (vT, vT + 2, sWS, sWS + 3, sT0, 4 * k))
        a('s_mov_b64 exec, -1')
    if g('stamp') and w == 0:
        a('s_memrealtime s[72:73]')
        a('s_waitcnt lgkmcnt(0)')
        a('s_sub_u32 s72, s72, s70')
        a('v_mov_b32 v%d, s72' % vT)
        a('v_mov_b32 v%d, s70' % (vT + 1))
        a('s_lshl_b32 s%d, s%d, 5' % (sT0, sRX))
        a('s_add_u32 s%d, s%d, s%d' % (sT0, sT0, sI))
        a('s_lshl_b32 s%d, s%d, 3' % (sT0, sT0))
        a('s_add_u32 s%d, s%d, 0x%x' % (sT0, sT0, MISC_OFF))
        a('v_mov_b32 v%d, 0' % (vT + 2))
        a('s_mov_b64 exec, 1')
        a('buffer_store_dwordx2 v[%d:%d], v%d, s[%d:%d], s%d offen' % (vT, vT + 1, vT + 2, sWS, sWS + 3, sT0))
    a('s_endpgm')

def archive_v(a):
    slot_off(a, sT0, sSTEP, 16, sARC)
    st(a, vVZ, 2, vL8, sT0, True)

def publish_prog(a, sreg, add):
    if sreg is None: a('v_mov_b32 v%d, %d' % (vT, add))
    else:
        a('s_add_u32 s%d, s%d, %d' % (sT0, sreg, add))
        a('v_mov_b32 v%d, s%d' % (vT, sT0))
    a('v_mov_b32 v%d, 0' % (vT + 1))
    a('s_mov_b64 exec, 1')
    a('buffer_store_dword v%d, v%d, s[%d:%d], s%d offen sc1' % (vT, vT + 1, sWS, sWS + 3, sARC))
    a('s_mov_b64 exec, -1')

def ensure_gp(a, sreg, add):
    L = a.newlabel('gp'); D = a.newlabel('gpd')
    if sreg is None: a('s_mov_b32 s%d, %d' % (sT2, add))
    else: a('s_add_u32 s%d, s%d, %d' % (sT2, sreg, add))
    a('s_min_u32 s%d, s%d, 64' % (sT2, sT2))
    a('s_lshl_b32 s%d, s%d, 8' % (sT1, sH))
    a('s_add_u32 s%d, s%d, 0x%x' % (sT1, sT1, GP_OFF))
    a('v_mov_b32 v%d, 0' % vT)
    a.label(L)
    a('s_cmp_ge_u32 s%d, s%d' % (sGP, sT2))
    a('s_cbranch_scc1 %s' % D)
    a('buffer_load_dwordx4 v[%d:%d], v%d, s[%d:%d], s%d offen sc1' % (vR, vR + 3, vT, sWS, sWS + 3, sT1))
    a('s_waitcnt vmcnt(0)')
    a('v_min3_u32 v%d, v%d, v%d, v%d' % (vR, vR, vR + 1, vR + 2))
    a('v_min_u32 v%d, v%d, v%d' % (vR, vR, vR + 3))
    a('v_readfirstlane_b32 s%d, v%d' % (sGP, vR))
    a('s_add_u32 s%d, s%d, 1' % (sSPIN, sSPIN))
    a('s_cmp_lt_u32 s%d, 0x%x' % (sSPIN, SPIN_LIMIT))
    a('s_cbranch_scc1 %s' % L)
    a.label(D)

def prefetch_dma(a, sc1=False):
    a('s_add_u32 s%d, s%d, 4096' % (sT0, sKF))
    for grp, (so, n) in enumerate(((sKF, 4), (sT0, 4), (sVF, 2))):
        a('s_mov_b32 m0, %d' % (LDS_KV + grp * 4096))
        for c in range(n):
            a('buffer_load_dwordx4 v%d, s[%d:%d], s%d offen offset:%d%s lds' % (vL16, sWS, sWS + 3, so, c * 1024, ' sc1' if sc1 else ''))

def prefetch_kv(a, sc1=False):
    a('s_add_u32 s%d, s%d, 4096' % (sT0, sKF))
    for tt in range(2):
        for c in range(4):
            r = vKX + 16 * tt + 4 * c
            a('buffer_load_dwordx4 v[%d:%d], v%d, s[%d:%d], s%d offen offset:%d%s' % (r, r + 3, vL16, sWS, sWS + 3, sKF if tt == 0 else sT0, c * 1024, ' sc1' if sc1 else ''))
    for e in range(2):
        a('buffer_load_dwordx4 v[%d:%d], v%d, s[%d:%d], s%d offen offset:%d%s' % (vVX + 4 * e, vVX + 4 * e + 3, vL16, sWS, sWS + 3, sVF, e * 1024, ' sc1' if sc1 else ''))

def r_body(a, cfg):
    a('s_lshr_b32 s%d, s%d, 2' % (sH, sI))
    a('s_lshl_b32 s%d, s%d, 3' % (sT0, sRX))
    a('s_add_u32 s%d, s%d, s%d' % (sH, sH, sT0))
    a('s_and_b32 s%d, s%d, 3' % (sJ, sI))
    for w in range(1, 4):
        a('s_cmp_eq_u32 s%d, %d' % (sW, w))
        a.branch('s_cbranch_scc1 r_wave%d' % w)
    for w in range(4):
        a.label('r_wave%d' % w)
        wave_loop(a, w, cfg)

def gen_r_kernel(name, cfg):
    a = Asm()
    a.raw(kernel_header(name))
    Lexit = 'r_exit'
    a('s_cmp_ge_u32 s2, 256')
    a('s_cbranch_scc1 %s' % Lexit)
    build_srds(a, dict(ws=sWS, wq=sWQ, wk=sWK, wv=sWV, wo=sWO, mem0=sM0, dbg=sDBG))
    a('s_getreg_b32 s%d, hwreg(HW_REG_XCC_ID)' % sRX)
    a('s_and_b32 s%d, s%d, 7' % (sRX, sRX))
    a('s_cmp_ge_u32 s%d, 4' % sRX)
    a('s_cbranch_scc1 %s' % Lexit)
    a('s_mov_b32 s%d, 0' % sSPIN)
    lane_consts(a)
    a('v_lshrrev_b32 v%d, 6, v0' % vT)
    a('v_readfirstlane_b32 s%d, v%d' % (sW, vT))
    Lt = a.newlabel('tk')
    a('s_cmp_lg_u32 s%d, 0' % sW)
    a.branch('s_cbranch_scc1 %s' % Lt)
    a('v_mov_b32 v%d, 1' % vT)
    a('s_lshl_b32 s%d, s%d, 2' % (sT0, sRX))
    a('v_mov_b32 v%d, s%d' % (vT + 1, sT0))
    a('v_mov_b32 v%d, %d' % (vT + 2, LDS_TK))
    a('s_mov_b64 exec, 1')
    a('buffer_atomic_add v%d, v%d, s[%d:%d], 0 offen sc0 sc1' % (vT, vT + 1, sDBG, sDBG + 3))
    a('s_waitcnt vmcnt(0)')
    a('ds_write_b32 v%d, v%d' % (vT + 2, vT))
    a('s_waitcnt lgkmcnt(0)')
    a('s_mov_b64 exec, -1')
    a.label(Lt)
    a('s_barrier')
    a('v_mov_b32 v%d, %d' % (vT + 2, LDS_TK))
    a('ds_read_b32 v%d, v%d' % (vT, vT + 2))
    a('s_waitcnt lgkmcnt(0)')
    a('v_readfirstlane_b32 s%d, v%d' % (sI, vT))
    a('s_cmp_ge_u32 s%d, 32' % sI)
    a.branch('s_cbranch_scc1 %s' % Lexit)
    r_body(a, cfg)
    a.label(Lexit)
    a('s_endpgm')
    return a.text()
```

```python
from common import *
import rrole as R, g1role as G1, prerole as P, g2role as G2, modrole as M

sGX, sGI, sGW, sGC = 92, 93, 94, 95
sNA, sNW, sAV, sAA, sSP = 88, 89, 54, 55, 44
sDBG = 32
sPREO = 91
sDID = 58
LDS_CTL = 98304

def gp_addr(a, dst):
    a('s_lshr_b32 s%d, s%d, 2' % (dst, sGC))
    a('s_lshl_b32 s%d, s%d, 8' % (dst, dst))
    a('s_and_b32 s%d, s%d, 3' % (R.sT3, sGC))
    a('s_lshl_b32 s%d, s%d, 2' % (R.sT3, R.sT3))
    a('s_add_u32 s%d, s%d, s%d' % (dst, dst, R.sT3))
    a('s_add_u32 s%d, s%d, 0x%x' % (dst, dst, GP_OFF))

def g_body(a, cfg):
    Ln = a.newlabel('gi')
    a('s_cmp_lg_u32 s%d, 0' % sGW)
    a.branch('s_cbranch_scc1 %s' % Ln)
    a('s_lshl_b32 s%d, s%d, 2' % (R.sT0, sGC))
    a('s_add_u32 s%d, s%d, 0x%x' % (R.sT2, R.sT0, AP_OFF))
    gp_addr(a, R.sT1)
    a('v_mov_b32 v12, 0')
    a('s_mov_b64 exec, 1')
    a('buffer_store_dword v12, v12, s[%d:%d], s%d offen sc1' % (R.sWS, R.sWS + 3, R.sT1))
    a('buffer_store_dword v12, v12, s[%d:%d], s%d offen sc1' % (R.sWS, R.sWS + 3, R.sT2))
    a('s_and_b32 s%d, s%d, 7' % (R.sT0, sGI))
    a('s_lshl_b32 s%d, s%d, 3' % (R.sT1, sGX))
    a('s_add_u32 s%d, s%d, s%d' % (R.sT0, R.sT0, R.sT1))
    a('s_lshl_b32 s%d, s%d, 7' % (R.sT0, R.sT0))
    a('s_lshr_b32 s%d, s%d, 3' % (R.sT1, sGI))
    a('s_lshl_b32 s%d, s%d, 2' % (R.sT1, R.sT1))
    a('s_add_u32 s%d, s%d, s%d' % (R.sT0, R.sT0, R.sT1))
    a('s_add_u32 s%d, s%d, 0x%x' % (R.sT0, R.sT0, WP_OFF))
    a('buffer_store_dword v12, v12, s[%d:%d], s%d offen sc1' % (R.sWS, R.sWS + 3, R.sT0))
    a('s_mov_b64 exec, -1')
    a('s_waitcnt vmcnt(0)')
    dbg_arrive(a, sDBG, DB_INIT2 if cfg.get('safe') else DB_INIT, 12)
    a.label(Ln)
    a('s_lshl_b32 s%d, s%d, 2' % (sPREO, sGX))
    a('s_add_u32 s%d, s%d, %d' % (sPREO, sPREO, DB_PRE2 if cfg.get('safe') else DB_PRE))
    P.sX, P.sGW, P.sWR = 24, 28, 36
    P.sW, P.sC = sGW, sGC
    build_srds(a, dict(x=P.sX, gw=P.sGW, wr=P.sWR))
    a('s_lshr_b32 s%d, s%d, 2' % (R.sH, sGC))
    a('s_and_b32 s%d, s%d, 3' % (R.sJ, sGC))
    a('s_mov_b32 s%d, s%d' % (R.sW, sGW))
    G1.XFL[0] = ' sc1'
    gp_addr(a, G1.sGPA)
    G1.fast_start(a, cfg)
    if cfg.get('st2'): stamp(a, cfg, 3)
    a('s_mov_b32 s%d, %d' % (G1.sSEG, G1.NPB))
    a('s_mov_b32 s%d, 64' % G1.sEND)
    for w in range(1, 4):
        a('s_cmp_eq_u32 s%d, %d' % (sGW, w))
        a.branch('s_cbranch_scc1 fg1_wave%d' % w)
    for w in range(4):
        a.label('fg1_wave%d' % w)
        G1.g1_wave(a, w, cfg, 'fg1')
        if w < 3: a.branch('s_branch fg1_join')
    a.label('fg1_join')
    if not cfg.get('st2'): stamp(a, cfg, 1)
    build_srds(a, dict(wg=M.sWG, wu=M.sWU, wd=M.sWD, x=M.sX))
    a('s_mov_b32 s%d, s%d' % (M.sW, sGW))
    a('s_mov_b32 s%d, s%d' % (M.sB, sGC))
    L1 = a.newlabel('m1skip')
    a('s_cmp_ge_u32 s%d, 112' % sGC)
    a.branch('s_cbranch_scc1 %s' % L1)
    M.mod1_body(a, cfg, fl=' sc1', sfl=' sc1', pre=lambda: dbg_wait_wg(a, sDBG, DB_RR, 128, 8, sSP, sGW))
    a('s_waitcnt vmcnt(0)')
    a('s_barrier')
    Lw = a.newlabel('m1a')
    a('s_cmp_lg_u32 s%d, 0' % sGW)
    a.branch('s_cbranch_scc1 %s' % Lw)
    dbg_arrive(a, sDBG, DB_M1, 8)
    a.label(Lw)
    a.label(L1)
    dbg_wait_wg(a, sDBG, DB_M1, 112, 8, sSP, sGW)
    a.label('fm2_loop')
    M.mod2_body(a, cfg, fl=' sc1', sfl=' sc1')
    a('s_waitcnt vmcnt(0)')
    a('s_barrier')
    a('s_add_u32 s%d, s%d, 128' % (M.sB, M.sB))
    a('s_cmp_lt_u32 s%d, 224' % M.sB)
    a.branch('s_cbranch_scc1 fm2_loop')
    Lw = a.newlabel('m2a')
    a('s_cmp_lg_u32 s%d, 0' % sGW)
    a.branch('s_cbranch_scc1 %s' % Lw)
    dbg_arrive(a, sDBG, DB_M2, 8)
    a.label(Lw)
    if not cfg.get('st2'): stamp(a, cfg, 2)
    build_srds(a, dict(wo=G2.sWO, x=G2.sX, out=G2.sOUT))
    G2.sI, G2.sW = sGI, sGW
    G2.out_consts(a)
    (G2.wo2_load_weights if cfg.get('wo2', 0) else G2.out_load_weights)(a)
    dbg_wait_wg(a, sDBG, DB_M2, 128, 8, sSP, sGW)
    a('v_mov_b32 v8, 0')
    a('s_mov_b32 s%d, 0x%x' % (R.sT0, IDX_OFF))
    a('buffer_load_dwordx2 v[10:11], v8, s[%d:%d], s%d offen sc1' % (R.sWS, R.sWS + 3, R.sT0))
    a('s_waitcnt vmcnt(0)')
    a('v_readfirstlane_b32 s%d, v10' % G2.sIDX0)
    a('v_readfirstlane_b32 s%d, v11' % G2.sIDX1)
    a('s_mov_b32 s%d, 0' % sNA)
    a('s_mov_b32 s%d, 0' % sNW)
    a('s_barrier')
    if not cfg.get('st2'): stamp(a, cfg, 3)
    if cfg.get('g2prof'):
        for k in range(8): a('s_mov_b32 s%d, 0' % (66 + k))
        a('s_memtime s[76:77]')
        a('s_waitcnt lgkmcnt(0)')
        a('s_mov_b32 s79, s76')
    a.label('g2_loop')
    a('s_mov_b32 s%d, 0' % sDID)
    Lc = a.newlabel('ctl')
    a('s_cmp_lg_u32 s%d, 0' % sGW)
    a.branch('s_cbranch_scc1 %s' % Lc)
    a('v_and_b32 v8, 31, v0')
    a('v_lshlrev_b32 v8, 2, v8')
    a('v_and_b32 v9, 3, v0')
    a('v_lshlrev_b32 v9, 2, v9')
    a('s_lshl_b32 s%d, s%d, 7' % (R.sT0, sGX))
    a('s_add_u32 s%d, s%d, 0x%x' % (R.sT0, R.sT0, AP_OFF))
    a('s_lshl_b32 s%d, s%d, 8' % (R.sT1, sGI))
    a('s_add_u32 s%d, s%d, 0x%x' % (R.sT1, R.sT1, PROG_OFF))
    a('buffer_load_dword v10, v8, s[%d:%d], s%d offen sc1' % (R.sWS, R.sWS + 3, R.sT0))
    a('buffer_load_dword v11, v9, s[%d:%d], s%d offen sc1' % (R.sWS, R.sWS + 3, R.sT1))
    a('s_waitcnt vmcnt(0)')
    for sh in (1, 2, 4, 8):
        a('v_min_u32_dpp v10, v10, v10 row_ror:%d row_mask:0xf bank_mask:0xf' % sh)
        if sh < 4: a('v_min_u32_dpp v11, v11, v11 row_ror:%d row_mask:0xf bank_mask:0xf' % sh)
    a('v_mov_b32 v12, v10')
    a('v_permlane16_swap_b32 v10, v12')
    a('v_min_u32 v10, v10, v12')
    a('v_mov_b32 v12, %d' % LDS_CTL)
    a('ds_write_b64 v12, v[10:11]')
    a('s_waitcnt lgkmcnt(0)')
    a.label(Lc)
    a('s_barrier')
    a('v_mov_b32 v12, %d' % LDS_CTL)
    a('ds_read_b64 v[10:11], v12')
    a('s_waitcnt lgkmcnt(0)')
    a('v_readfirstlane_b32 s%d, v10' % sAA)
    a('v_readfirstlane_b32 s%d, v11' % sAV)
    a('s_barrier')
    g2mark(a, cfg, 0)
    a('s_add_u32 s%d, s%d, 3' % (sAV, sAV))
    a('s_sub_u32 s%d, s%d, s%d' % (sAV, sAV, sGX))
    a('s_lshr_b32 s%d, s%d, 2' % (sAV, sAV))
    Lna = a.newlabel('noattn'); Lnt = a.newlabel('notask'); Lnw = a.newlabel('nowo'); Lpa = a.newlabel('nopub')
    a('s_cmp_le_u32 s%d, s%d' % (sAV, sNA))
    a.branch('s_cbranch_scc1 %s' % Lna)
    a('s_add_u32 s%d, s%d, 4' % (R.sT0, sNA))
    a('s_min_u32 s%d, s%d, s%d' % (sAV, sAV, R.sT0))
    a('s_add_u32 s%d, s%d, s%d' % (R.sT0, sNA, sGW))
    a('s_cmp_ge_u32 s%d, s%d' % (R.sT0, sAV))
    a.branch('s_cbranch_scc1 %s' % Lnt)
    a('s_lshl_b32 s%d, s%d, 2' % (R.sT0, R.sT0))
    a('s_add_u32 s%d, s%d, s%d' % (R.sT0, R.sT0, sGX))
    a('s_lshl_b32 s%d, s%d, 5' % (R.sT0, R.sT0))
    a('s_add_u32 s%d, s%d, s%d' % (G2.sTASK, R.sT0, sGI))
    G2.attn_consts(a, cfg)
    G2.attn_task(a, cfg, all_sc1=True, st_flags=' sc1' if cfg.get('safe') else '')
    a('s_waitcnt vmcnt(0)')
    a.label(Lnt)
    a('s_barrier')
    a('s_mov_b32 s%d, s%d' % (sNA, sAV))
    a('s_mov_b32 s%d, 1' % sDID)
    a('s_cmp_lg_u32 s%d, 0' % sGW)
    a.branch('s_cbranch_scc1 %s' % Lpa)
    a('s_lshl_b32 s%d, s%d, 2' % (R.sT0, sGC))
    a('s_add_u32 s%d, s%d, 0x%x' % (R.sT0, R.sT0, AP_OFF))
    a('v_mov_b32 v10, s%d' % sNA)
    a('v_mov_b32 v11, 0')
    a('s_mov_b64 exec, 1')
    a('buffer_store_dword v10, v11, s[%d:%d], s%d offen sc1' % (R.sWS, R.sWS + 3, R.sT0))
    a('s_mov_b64 exec, -1')
    a.label(Lpa)
    if cfg.get('g2prof'): a('s_add_u32 s70, s70, 1')
    a.label(Lna)
    g2mark(a, cfg, 1)
    a('s_cmp_le_u32 s%d, s%d' % (sAA, sNW))
    a.branch('s_cbranch_scc1 %s' % Lnw)
    a('s_lshl_b32 s%d, s%d, 2' % (R.sT0, sNW))
    a('s_add_u32 s%d, s%d, s%d' % (R.sT0, R.sT0, sGX))
    a('s_lshl_b32 s%d, s%d, 1' % (G2.sTILE, R.sT0))
    a('s_sub_u32 s%d, s%d, s%d' % (G2.sNB, sAA, sNW))
    a('s_min_u32 s%d, s%d, %d' % (G2.sNB, G2.sNB, cfg.get('wob', 4)))
    a('s_lshl_b32 s%d, s%d, 1' % (G2.sTN, sNW))
    a('s_add_u32 s%d, s%d, s%d' % (sNW, sNW, G2.sNB))
    a('s_lshl_b32 s%d, s%d, 1' % (G2.sNT, sNW))
    if cfg.get('wo2', 0): G2.wo2_batch(a, cfg, sGX, sNW, sSP)
    else: G2.wo_batch(a, cfg)
    a('s_mov_b32 s%d, 1' % sDID)
    if cfg.get('g2prof'): a('s_add_u32 s71, s71, 1')
    a.label(Lnw)
    g2mark(a, cfg, 2)
    Lsl = a.newlabel('nosleep')
    a('s_cmp_lg_u32 s%d, 0' % sDID)
    a('s_cbranch_scc1 %s' % Lsl)
    a('s_cmp_lt_u32 s%d, s%d' % (sNW, sNA))
    a('s_cbranch_scc1 %s' % Lsl)
    a('s_sleep %d' % cfg.get('g2sleep', 16))
    a.label(Lsl)
    g2mark(a, cfg, 3)
    a('s_add_u32 s%d, s%d, 1' % (sSP, sSP))
    a('s_cmp_ge_u32 s%d, 0x%x' % (sSP, SPIN_LIMIT))
    a.branch('s_cbranch_scc1 g2_done')
    a('s_cmp_lt_u32 s%d, 16' % sNW)
    a.branch('s_cbranch_scc1 g2_loop')
    a.label('g2_done')
    if cfg.get('g2prof'):
        a('s_lshl_b32 s45, s95, 7')
        a('s_lshl_b32 s46, s94, 5')
        a('s_add_u32 s45, s45, s46')
        a('s_add_u32 s45, s45, 0x%x' % (MISC_OFF + 131072))
        a('v_mov_b32 v9, 0')
        a('s_mov_b64 exec, 1')
        for k in range(8):
            a('v_mov_b32 v8, s%d' % (66 + k))
            a('buffer_store_dword v8, v9, s[%d:%d], s45 offen offset:%d' % (R.sWS, R.sWS + 3, 4 * k))
        a('s_mov_b64 exec, -1')
    stamp(a, cfg, 4)
    a('s_endpgm')

def g2mark(a, cfg, k):
    if not cfg.get('g2prof'): return
    a('s_memtime s[76:77]')
    a('s_waitcnt lgkmcnt(0)')
    a('s_sub_u32 s78, s76, s79')
    a('s_add_u32 s%d, s%d, s78' % (66 + k, 66 + k))
    a('s_mov_b32 s79, s76')

def stamp(a, cfg, k):
    if not cfg.get('stamp'): return
    L = a.newlabel('stp')
    a('s_cmp_lg_u32 s%d, 0' % sGW)
    a.branch('s_cbranch_scc1 %s' % L)
    a('s_memrealtime s[74:75]')
    a('s_waitcnt lgkmcnt(0)')
    a('v_mov_b32 v250, s74')
    a('s_lshl_b32 s74, s%d, 5' % sGC)
    a('s_add_u32 s74, s74, 0x%x' % (MISC_OFF + 65536 + 4 * k))
    a('v_mov_b32 v251, 0')
    a('s_mov_b64 exec, 1')
    a('buffer_store_dword v250, v251, s[%d:%d], s74 offen' % (R.sWS, R.sWS + 3))
    a('s_mov_b64 exec, -1')
    a.label(L)

def roles(a, cfg):
    a('s_cmp_ge_u32 s%d, 4' % R.sRX)
    a.branch('s_cbranch_scc1 f_grole')
    R.r_body(a, cfg)
    a.label('f_grole')
    a('s_sub_u32 s%d, s%d, 4' % (sGX, R.sRX))
    a('s_mov_b32 s%d, s%d' % (sGI, R.sI))
    a('s_mov_b32 s%d, s%d' % (sGW, R.sW))
    a('s_lshl_b32 s%d, s%d, 5' % (sGC, sGX))
    a('s_add_u32 s%d, s%d, s%d' % (sGC, sGC, sGI))
    stamp(a, cfg, 0)
    g_body(a, cfg)

def common_init(a):
    build_srds(a, dict(ws=R.sWS, wq=R.sWQ, wk=R.sWK, wv=R.sWV, wo=R.sWO, mem0=R.sM0, dbg=R.sDBG))
    a('s_mov_b32 s%d, 0' % R.sSPIN)
    R.lane_consts(a)
    a('v_lshrrev_b32 v%d, 6, v0' % R.vT)
    a('v_readfirstlane_b32 s%d, v%d' % (R.sW, R.vT))

def gen_fused(name, cfg):
    import re
    cfg = dict(cfg); cfg['fused'] = 1; cfg['g1_sc1'] = 1
    sGT = 100
    a = Asm()
    a.raw(kernel_header(name))
    a('s_cmp_ge_u32 s2, 256')
    a('s_cbranch_scc0 f_start')
    a('s_endpgm')
    a.label('f_start')
    common_init(a)
    a('s_getreg_b32 s%d, hwreg(HW_REG_XCC_ID)' % R.sRX)
    a('s_and_b32 s%d, s%d, 7' % (R.sRX, R.sRX))
    vT = R.vT
    Lt = a.newlabel('tk')
    a('s_cmp_lg_u32 s%d, 0' % R.sW)
    a.branch('s_cbranch_scc1 %s' % Lt)
    a('v_mov_b32 v%d, 1' % vT)
    a('v_mov_b32 v%d, 1' % (vT + 1))
    a('s_lshl_b32 s%d, s%d, 2' % (R.sT0, R.sRX))
    a('v_mov_b32 v%d, s%d' % (vT + 2, R.sT0))
    a('v_mov_b32 v%d, %d' % (vT + 3, DB_GT))
    a('s_mov_b64 exec, 1')
    a('buffer_atomic_add v%d, v%d, s[%d:%d], 0 offen sc0 sc1' % (vT, vT + 2, R.sDBG, R.sDBG + 3))
    a('buffer_atomic_add v%d, v%d, s[%d:%d], 0 offen sc0 sc1' % (vT + 1, vT + 3, R.sDBG, R.sDBG + 3))
    a('v_mov_b32 v%d, %d' % (vT + 2, R.LDS_TK))
    a('s_waitcnt vmcnt(0)')
    a('ds_write_b64 v%d, v[%d:%d]' % (vT + 2, vT, vT + 1))
    a('s_waitcnt lgkmcnt(0)')
    a('s_mov_b64 exec, -1')
    a.label(Lt)
    a('s_barrier')
    a('v_mov_b32 v%d, %d' % (vT + 2, R.LDS_TK))
    a('ds_read_b64 v[%d:%d], v%d' % (vT, vT + 1, vT + 2))
    a('s_waitcnt lgkmcnt(0)')
    a('v_readfirstlane_b32 s%d, v%d' % (R.sI, vT))
    a('v_readfirstlane_b32 s%d, v%d' % (sGT, vT + 1))
    a('s_cmp_lt_u32 s%d, 32' % R.sI)
    a.branch('s_cbranch_scc1 f_census_ok')
    Lo = a.newlabel('ovf')
    a('s_cmp_lg_u32 s%d, 0' % R.sW)
    a.branch('s_cbranch_scc1 %s' % Lo)
    dbg_arrive(a, R.sDBG, DB_BAD, vT)
    a('s_waitcnt vmcnt(0)')
    dbg_arrive(a, R.sDBG, DB_INIT, vT)
    a.label(Lo)
    init_wait(a, R.sDBG, cfg, vT, R.sSPIN, R.sT0)
    a.branch('s_branch SAFE_ENTRY')
    a.label('f_census_ok')
    head = a.text()
    gl0 = Asm.GL
    a = Asm()
    roles(a, cfg)
    fast = a.text()
    gl1 = Asm.GL
    cfg2 = dict(cfg); cfg2['safe'] = 1; cfg2['stamp'] = 0; cfg2['prof'] = 0; cfg2['tl'] = 0; cfg2['st3'] = 0; cfg2['st2'] = 0; cfg2['gprof'] = 0; cfg2['g2prof'] = 0
    SH = 128 * MB
    saved = (R.MX_OFF, R.QKX_OFF, R.OX_OFF, G1.XF_OFF, P.XF_OFF)
    R.MX_OFF += SH; R.QKX_OFF += SH; R.OX_OFF += SH; G1.XF_OFF += SH; P.XF_OFF += SH; R.SAFE[0] = True
    b = Asm()
    b('s_mov_b64 exec, -1')
    b('s_waitcnt vmcnt(0) lgkmcnt(0)')
    b('s_barrier')
    common_init(b)
    b('s_lshr_b32 s%d, s%d, 5' % (R.sRX, sGT))
    b('s_and_b32 s%d, s%d, 7' % (R.sRX, R.sRX))
    b('s_and_b32 s%d, s%d, 31' % (R.sI, sGT))
    b.fence()
    head2 = b.text()
    dbgbuild = any(cfg.get(k) for k in ('stamp', 'prof', 'tl', 'st3', 'st2', 'gprof', 'g2prof'))
    if not dbgbuild: Asm.GL = gl0
    b = Asm()
    roles(b, cfg2)
    Asm.GL = max(Asm.GL, gl1)
    R.MX_OFF, R.QKX_OFF, R.OX_OFF, G1.XF_OFF, P.XF_OFF = saved; R.SAFE[0] = False
    safe = b.text()
    import difflib
    labels = set(re.findall(r'^([A-Za-z_][\w]*):', safe + fast, re.M))
    rx = re.compile(r'\b(' + '|'.join(sorted(labels, key=len, reverse=True)) + r')\b')
    fl = [rx.sub(lambda m: m.group(1) + '_\\sf', l.strip()) for l in fast.split('\n') if l.strip()]
    sl = [rx.sub(lambda m: m.group(1) + '_\\sf', l.strip()) for l in safe.split('\n') if l.strip()]
    out = ['.macro ROLES sf']
    if len(fl) == len(sl) or True:
        sm = difflib.SequenceMatcher(None, fl, sl, autojunk=False) if len(fl) != len(sl) else None
        if sm is None:
            ops = []
            i = 0
            while i < len(fl):
                j = i
                same = fl[i] == sl[i]
                while j < len(fl) and (fl[j] == sl[j]) == same: j += 1
                ops.append(('equal' if same else 'replace', i, j, i, j)); i = j
        else:
            ops = sm.get_opcodes()
        for tag, i1, i2, j1, j2 in ops:
            if tag == 'equal': out += fl[i1:i2]
            else:
                out.append('.if \\sf == 0'); out += fl[i1:i2]; out.append('.else'); out += sl[j1:j2]; out.append('.endif')
    out.append('.endm')
    return '\n'.join(out) + '\n' + head + 'ROLES 0\nSAFE_ENTRY:\n' + head2 + 'ROLES 1\n'
```

```python
from common import *
import rrole as R
from rrole import sWS, sWQ, sWK, sWV, sDBG, sRX, sI, sW, sT0, sT1, sT2, sT3, sH, sJ, vL, vL16, vT, wq_frag

sX = 24
sSEG, sEND, sXO, sQO, sKO, sVO = 52, 53, 54, 55, 56, 57
vXA = 3
vXB = 16
vAC = 144
vRD = 192
vOUT = 224
LDSP = 0

def xf(buf, tt, T, b): return vXB + buf * 64 + ((tt * 4 + T) * 2 + b) * 4
def ac(tt, tile): return vAC + (tt * 6 + tile) * 4
def lp(buf, wv, tt, tile): return LDSP + buf * 49152 + ((wv * 2 + tt) * 6 + tile) * 1024

XFL = ['']
sGPA, sCNT, sSPIN, sWM = 58, 59, 44, 60
def xloads(buf, soff0, soff1):
    out = []
    for tt in range(2):
        for T in range(4):
            for b in range(2):
                r = xf(buf, tt, T, b)
                n = T * 2 + b
                out.append('buffer_load_dwordx4 v[%d:%d], v%d, s[%d:%d], s%d offen offset:%d' % (r, r + 3, vL16 if n < 4 else 5, sWS, sWS + 3, soff0 if tt == 0 else soff1, (n & 3) * 1024) + XFL[0])
    return out

FRAGS = [('q', 0), ('q', 1), ('k', 0), ('k', 1), ('v', 0), ('v', 1)]
def frag_src(kind, idx):
    if kind == 'q': return [(idx, 0), (idx, 1)]
    if kind == 'k': return [(idx, 2), (idx, 3)]
    return [(0, 4 + idx), (1, 4 + idx)]
ASSIGN = [[[0, 1], [2, 3], [4], [5]], [[0], [1], [2, 3], [4, 5]]]

def reduce_ops(w, par, sc1):
    ops = []
    for n, f in enumerate(ASSIGN[par][w]):
        kind, idx = FRAGS[f]
        o = vOUT + 4 * n
        rd = []
        for h2, (tt, tile) in enumerate(frag_src(kind, idx)):
            for wv in range(4):
                r = vRD + (h2 * 4 + wv) * 4
                off = lp(par, wv, tt, tile)
                rd.append('ds_read_b128 v[%d:%d], v%d offset:%d' % (r, r + 3, vL16 if off < 65536 else 4, off if off < 65536 else off - 49152))
        ops.append(('rd', rd))
        ad = []
        for h2 in range(2):
            b0 = vRD + h2 * 16
            for x in (0, 2):
                ad.append('v_pk_add_f32 v[%d:%d], v[%d:%d], v[%d:%d]' % (b0 + x, b0 + x + 1, b0 + x, b0 + x + 1, b0 + 4 + x, b0 + 5 + x))
                ad.append('v_pk_add_f32 v[%d:%d], v[%d:%d], v[%d:%d]' % (b0 + 8 + x, b0 + 9 + x, b0 + 8 + x, b0 + 9 + x, b0 + 12 + x, b0 + 13 + x))
            for x in (0, 2):
                ad.append('v_pk_add_f32 v[%d:%d], v[%d:%d], v[%d:%d]' % (b0 + x, b0 + x + 1, b0 + x, b0 + x + 1, b0 + 8 + x, b0 + 9 + x))
            ad.append('v_cvt_pk_bf16_f32 v%d, v%d, v%d' % (o + 2 * h2, b0, b0 + 1))
            ad.append('v_cvt_pk_bf16_f32 v%d, v%d, v%d' % (o + 2 * h2 + 1, b0 + 2, b0 + 3))
        so = {'q': sQO, 'k': sKO, 'v': sVO}[kind]
        if kind == 'v':
            ad.append('buffer_store_dwordx4 v[%d:%d], v%d, s[%d:%d], s%d offen offset:%d%s' % (o, o + 3, vL16, sWS, sWS + 3, so, idx * 1024, ' sc1' if sc1 else ''))
        else:
            ad.append('buffer_store_dwordx4 v[%d:%d], v%d, s[%d:%d], s%d offen%s' % (o, o + 3, vL16 if idx == 0 else 5, sWS, sWS + 3, so, ' sc1' if sc1 else ''))
        ops.append(('ad', ad))
    return ops

def pub_gp(a):
    a('s_min_u32 s%d, s%d, 64' % (sT1, sCNT))
    a('v_mov_b32 v6, s%d' % sT1)
    a('v_mov_b32 v7, 0')
    a('s_mov_b64 exec, 1')
    a('buffer_store_dword v6, v7, s[%d:%d], s%d offen sc1' % (sWS, sWS + 3, sGPA))
    a('s_mov_b64 exec, -1')

sCX, sCD = 61, 62
sXSRD = 24
def seg_plan(w, par, first, cfg, conv=(None, None)):
    sc1 = cfg.get('g1_sc1', 0)
    buf = par
    slots = [[] for _ in range(96)]
    nxt = xloads(1 - buf, sXO, sT0)
    for n, x in enumerate(nxt):
        tt = n // 8
        slots[tt * 48 + (n % 8) * 5 + 1].append(('x%d' % tt, x))
    cl, cs = conv
    if cl is not None:
        for n in range(8):
            r = 192 + 32 * cl + 4 * n
            slots[2 + 4 * n].append(('cv', 'buffer_load_dwordx4 a[%d:%d], v3, s[%d:%d], s%d offen offset:%d' % (r, r + 3, sXSRD, sXSRD + 3, sCX, (n >> 1) * 128 + (n & 1) * 16)))
    if cs is not None:
        for n in range(8):
            r = 192 + 32 * cs + 4 * n
            slots[4 + 4 * n].append(('cv', 'buffer_store_dwordx4 a[%d:%d], v%d, s[%d:%d], s%d offen offset:%d' % (r, r + 3, vL16 if n < 4 else 5, sWS, sWS + 3, sCD, (n & 3) * 1024) + (' sc1' if cfg.get('safe') else '')))
    if cfg.get('warm', 0) and w == 3:
        for n in range(2):
            slots[20 + 30 * n].append(('x2', 'buffer_load_dwordx4 v[232:235], v%d, s[%d:%d], s%d offen offset:%d%s' % (vL16, sWS, sWS + 3, sWM, n * 1024, XFL[0])))
    tail = []
    for tt in range(2):
        for tile in range(6):
            off = lp(buf, w, tt, tile)
            ins = ('ds', 'ds_write_b128 v%d, v[%d:%d] offset:%d' % (vL16 if off < 65536 else 4, ac(tt, tile), ac(tt, tile) + 3, off if off < 65536 else off - 49152))
            p = (tt * 6 + tile) * 8 + 7 + 5
            if p < 96: slots[p].append(ins)
            else: tail.append(ins)
    if not first:
        p = 0
        for kind, lst in reduce_ops(w, 1 - par, sc1):
            if kind == 'rd':
                for x in lst:
                    while len(slots[p]) >= (2 if (cl is not None or cs is not None) else 1): p += 1
                    slots[p].append(('ds', x)); p += 1
                p += 5
            else:
                slots[p].append(('w', 's_waitcnt lgkmcnt(0)'))
                for x in lst:
                    while len(slots[p]) >= 2: p += 1
                    slots[p].append(('st' if x.startswith('buffer_store') else 'va', x))
                p += 1
    return slots, tail

def vm_seq(slots, upto=96, frm=0):
    return [t for sl in slots[frm:upto] for (t, x) in sl if t in ('x0', 'x1', 'x2', 'st', 'cv')]

def count_after(seq, tag):
    idx = max(i for i, t in enumerate(seq) if t == tag)
    return len(seq) - 1 - idx

def gmark(a, cfg, k):
    if not cfg.get('gprof'): return
    a('s_memtime s[76:77]')
    a('s_waitcnt lgkmcnt(0)')
    a('s_sub_u32 s78, s76, s79')
    a('s_add_u32 s%d, s%d, s78' % (80 + k, 80 + k))
    a('s_mov_b32 s79, s76')

def seg_body(a, w, par, first, cfg, preds, conv=(None, None), exact=False):
    buf = par
    slots, tail = seg_plan(w, par, first, cfg, conv)
    a('s_add_u32 s%d, s%d, 0x10000' % (sXO, sXO))
    if cfg.get('fused') and par == 1:
        a('s_cmp_eq_u32 s%d, %d' % (sSEG, 62 - NPB))
        a('s_cselect_b32 s%d, 0x400000, 0' % sT0)
        a('s_sub_u32 s%d, s%d, s%d' % (sXO, sXO, sT0))
    if w == 3: a('s_add_u32 s%d, s%d, 0x10000' % (sWM, sWM))
    a('s_add_u32 s%d, s%d, 0x8000' % (sT0, sXO))
    if preds is None:
        n0 = n1 = None
        a('s_waitcnt vmcnt(0)')
    else:
        n0 = min(count_after(vm_seq(seg_plan(w, p[0], p[1], cfg, *p[2:])[0]), 'x0') for p in preds)
        n1 = min(count_after(vm_seq(seg_plan(w, p[0], p[1], cfg, *p[2:])[0]), 'x1') for p in preds) + len(vm_seq(slots, 48))
        a('s_waitcnt vmcnt(%d)' % n0)
        gmark(a, cfg, 0)
    n = 0
    for tt in range(2):
        if tt == 1 and n1 is not None:
            gmark(a, cfg, 1)
            a('s_waitcnt vmcnt(%d)' % n1)
            gmark(a, cfg, 2)
        for tile in range(6):
            for T in range(4):
                for b in range(2):
                    c = '0' if (T == 0 and b == 0) else vr(ac(tt, tile), 4)
                    W = ar(wq_frag(tile, T, b), 4); X = vr(xf(buf, tt, T, b), 4)
                    if tile < 4: a('v_mfma_f32_16x16x32_bf16 %s, %s, %s, %s' % (vr(ac(tt, tile), 4), W, X, c))
                    else: a('v_mfma_f32_16x16x32_bf16 %s, %s, %s, %s' % (vr(ac(tt, tile), 4), X, W, c))
                    for t, x in slots[n]: a(x)
                    n += 1
    for t, x in tail: a(x)
    gmark(a, cfg, 3)
    if not first:
        for so in (sQO, sKO, sVO): a('s_add_u32 s%d, s%d, 0x40000' % (so, so))
        if cfg.get('fused') and par == 0:
            a('s_cmp_eq_u32 s%d, %d' % (sSEG, 64 - NPB))
            a('s_cselect_b32 s%d, 0x1000000, 0' % sT0)
            for so in (sQO, sKO, sVO): a('s_sub_u32 s%d, s%d, s%d' % (so, so, sT0))
    if conv[0] is not None: a('s_add_u32 s%d, s%d, 0x100000' % (sCX, sCX))
    if conv[1] is not None: a('s_add_u32 s%d, s%d, 0x100000' % (sCD, sCD))
    if cfg.get('fused') and not first:
        a('s_waitcnt vmcnt(%d) lgkmcnt(0)' % (count_after(vm_seq(slots), 'st') if exact else len(vm_seq(slots))))
    else:
        a('s_waitcnt lgkmcnt(0)')
    gmark(a, cfg, 4)
    a('s_barrier')
    gmark(a, cfg, 5)
    if cfg.get('fused') and not first:
        if exact: a('s_add_u32 s%d, s%d, 1' % (sCNT, sCNT))
        if w == 0: pub_gp(a)
        if not exact: a('s_add_u32 s%d, s%d, 1' % (sCNT, sCNT))

NPB = 4
def fast_start(a, cfg):
    sW = R.sW
    save = R.vTR; R.vTR = 236
    vWA, vRA, vRB, vCV = 239, 240, 241, 192
    PB = 65536
    sWQO, sPD = 63, 64
    a('v_and_b32 v%d, 15, v%d' % (vT, vL))
    a('v_lshrrev_b32 v%d, 4, v%d' % (vT + 1, vL))
    a('v_lshlrev_b32 v%d, 5, v%d' % (vT + 1, vT + 1))
    a('v_lshl_add_u32 v%d, v%d, 11, v%d' % (vXA, vT, vT + 1))
    a('v_add_u32 v4, 49152, v%d' % vL16)
    a('v_add_u32 v5, 4096, v%d' % vL16)
    a('v_lshrrev_b32 v%d, 2, v%d' % (vT, vL))
    a('v_and_b32 v%d, 3, v%d' % (vT + 1, vL))
    a('v_lshlrev_b32 v%d, 4, v%d' % (vT + 1, vT + 1))
    a('v_lshl_add_u32 v%d, v%d, 13, v%d' % (vWA, vT, vT + 1))
    def xs(buf):
        a('s_add_u32 s%d, s%d, 0x8000' % (sT0, sXO))
        for tt in range(2):
            for n in range(8):
                r = xf(buf, tt, n >> 1, n & 1)
                a('buffer_load_dwordx4 v[%d:%d], v%d, s[%d:%d], s%d offen offset:%d' % (r, r + 3, vXA, sXSRD, sXSRD + 3, sXO if tt == 0 else sT0, (n >> 1) * 128 + (n & 1) * 16))
        a('s_add_u32 s%d, s%d, 0x10000' % (sXO, sXO))
    a('s_lshl_b32 s%d, s%d, 9' % (sXO, sW))
    xs(0)
    a('s_lshl_b32 s%d, s%d, 21' % (sWQO, sW))
    a('s_lshl_b32 s%d, s%d, 8' % (sT1, sH))
    a('s_add_u32 s%d, s%d, s%d' % (sWQO, sWQO, sT1))
    a('s_lshl_b32 s%d, s%d, 6' % (sT1, sJ))
    a('s_add_u32 s%d, s%d, s%d' % (sWQO, sWQO, sT1))
    for M, srd in ((1, sWK), (2, sWV)):
        a('s_mov_b32 s%d, s%d' % (sT0, sWQO))
        for n in range(16):
            a('buffer_load_dwordx4 a[%d:%d], v%d, s[%d:%d], s%d offen' % (64 * M + 4 * n, 64 * M + 4 * n + 3, vWA, srd, srd + 3, sT0))
            if n < 15: a('s_add_u32 s%d, s%d, 0x20000' % (sT0, sT0))
    a('s_lshl_b32 s%d, s93, 15' % sT0)
    a('s_lshl_b32 s%d, s%d, 9' % (sT1, sW))
    a('s_add_u32 s%d, s%d, s%d' % (sCX, sT0, sT1))
    a('s_lshl_b32 s%d, s%d, 13' % (sT1, sW))
    a('s_add_u32 s%d, s%d, s%d' % (sCD, sT0, sT1))
    a('s_lshl_b32 s%d, s92, 22' % sT1)
    a('s_add_u32 s%d, s%d, s%d' % (sCD, sCD, sT1))
    a('s_add_u32 s%d, s%d, 0x%x' % (sCD, sCD, XF_OFF))
    a('s_cmp_lt_u32 s%d, 2' % sW)
    a('s_cselect_b32 s%d, 4, 1' % sT0)
    a('s_mul_i32 s%d, s%d, s%d' % (sT0, sT0, sW))
    a('s_cselect_b32 s%d, 1, 4' % sT1)
    a('s_add_u32 s%d, s%d, s%d' % (sT1, sT1, sT0))
    a('s_lshl_b32 s%d, s%d, 10' % (sT0, sT0))
    a('s_lshl_b32 s%d, s%d, 10' % (sT1, sT1))
    a('s_add_u32 s%d, s%d, %d' % (sT0, sT0, PB))
    a('s_add_u32 s%d, s%d, %d' % (sT1, sT1, PB))
    a('v_add_u32 v%d, s%d, v%d' % (vRA, sT0, vL16))
    a('v_add_u32 v%d, s%d, v%d' % (vRB, sT1, vL16))
    a('s_lshl_b32 s%d, s%d, 13' % (sT0, sW))
    a('s_add_u32 s%d, s%d, %d' % (sT0, sT0, PB))
    a('v_add_u32 v242, s%d, v%d' % (sT0, vL16))
    a('s_lshl_b32 s%d, s%d, 13' % (sT0, sH))
    a('s_lshl_b32 s%d, s%d, 10' % (sT1, sJ))
    a('s_add_u32 s%d, s%d, s%d' % (sT0, sT0, sT1))
    a('s_lshl_b32 s%d, s%d, 12' % (sT2, sW))
    a('s_add_u32 s%d, s%d, s%d' % (sT2, sT2, sT0))
    a('s_add_u32 s%d, s%d, 0x%x' % (sT2, sT2, KF_OFF))
    a('s_add_u32 s%d, s%d, s%d' % (sT0, sT0, sT1))
    a('s_lshl_b32 s%d, s%d, 10' % (sT1, sW))
    a('s_add_u32 s%d, s%d, s%d' % (sT0, sT0, sT1))
    a('s_add_u32 s%d, s%d, 0x%x' % (sT0, sT0, VF_OFF - 2048))
    a('s_cmp_lt_u32 s%d, 2' % sW)
    a('s_cselect_b32 s%d, s%d, s%d' % (sPD, sT2, sT0))
    R.tr_setup(a)
    a('s_waitcnt vmcnt(16)')
    R.tr_matrix(a, 1)
    a('s_waitcnt vmcnt(0)')
    R.tr_matrix(a, 2)
    init_wait(a, sDBG, cfg, 8, sSPIN, sT0)
    a('s_mov_b32 s%d, 0' % sCNT)
    for pb in range(NPB):
        buf = pb & 1
        if pb < NPB - 1: xs(1 - buf)
        for n in range(4 * pb, 4 * pb + 4):
            a('buffer_load_dwordx4 a[%d:%d], v%d, s[%d:%d], s%d offen' % (4 * n, 4 * n + 3, vWA, sWQ, sWQ + 3, sWQO))
            a('s_add_u32 s%d, s%d, 0x20000' % (sWQO, sWQO))
        if pb == 0:
            for n in range(8):
                a('buffer_load_dwordx4 a[%d:%d], v%d, s[%d:%d], s%d offen offset:%d' % (192 + 4 * n, 195 + 4 * n, vXA, sXSRD, sXSRD + 3, sCX, (n >> 1) * 128 + (n & 1) * 16))
            a('s_add_u32 s%d, s%d, 0x100000' % (sCX, sCX))
        if pb == 1:
            for n in range(8):
                a('buffer_store_dwordx4 a[%d:%d], v%d, s[%d:%d], s%d offen offset:%d%s' % (192 + 4 * n, 195 + 4 * n, vL16 if n < 4 else 5, sWS, sWS + 3, sCD, (n & 3) * 1024, ' sc1' if cfg.get('safe') else ''))
            a('s_add_u32 s%d, s%d, 0x100000' % (sCD, sCD))
        for tt in range(2):
            for t4 in range(4):
                tile = 2 + t4
                for n in range(8):
                    d = vr(ac(tt, tile), 4); W = ar(wq_frag(tile, n >> 1, n & 1), 4); X = vr(xf(buf, tt, n >> 1, n & 1), 4)
                    a('v_mfma_f32_16x16x32_bf16 %s, %s, %s, %s' % (d, W if tile < 4 else X, X if tile < 4 else W, '0' if n == 0 else d))
                    if n == 6 and (tt, t4) != (0, 0):
                        g0 = tt * 4 + t4 - 1
                        a('ds_write_b128 v242, %s offset:%d' % (vr(ac(g0 >> 2, 2 + (g0 & 3)), 4), g0 * 1024))
        a('ds_write_b128 v242, %s offset:%d' % (vr(ac(1, 5), 4), 7 * 1024))
        a('s_waitcnt lgkmcnt(0)')
        a('s_barrier')
        for h2, va in enumerate((vRA, vRB)):
            for wv in range(4):
                r = vRD + (h2 * 4 + wv) * 4
                a('ds_read_b128 v[%d:%d], v%d offset:%d' % (r, r + 3, va, wv * 8192))
        a('s_waitcnt lgkmcnt(0)')
        for h2 in range(2):
            b0 = vRD + h2 * 16
            for x in (0, 2):
                R.pk_add(a, b0 + x, b0 + x, b0 + 4 + x); R.pk_add(a, b0 + 8 + x, b0 + 8 + x, b0 + 12 + x)
            for x in (0, 2): R.pk_add(a, b0 + x, b0 + x, b0 + 8 + x)
            a('v_cvt_pk_bf16_f32 v%d, v%d, v%d' % (vOUT + 2 * h2, b0, b0 + 1))
            a('v_cvt_pk_bf16_f32 v%d, v%d, v%d' % (vOUT + 2 * h2 + 1, b0 + 2, b0 + 3))
        a('buffer_store_dwordx4 v[%d:%d], v%d, s[%d:%d], s%d offen sc1' % (vOUT, vOUT + 3, vL16, sWS, sWS + 3, sPD))
        a('s_add_u32 s%d, s%d, 0x40000' % (sPD, sPD))
        a('s_add_u32 s%d, s%d, 1' % (sCNT, sCNT))
        a('s_waitcnt vmcnt(0)')
        a('s_barrier')
        Lp = a.newlabel('fsp')
        a('s_cmp_lg_u32 s%d, 0' % sW)
        a.branch('s_cbranch_scc1 %s' % Lp)
        pub_gp(a)
        if pb == 1: dbg_arrive(a, sDBG, 's91', 8)
        a.label(Lp)
    R.tr_matrix(a, 0)
    R.vTR = save

def g1_wave(a, w, cfg, pre):
    a('v_and_b32 v%d, 15, v%d' % (vT, vL))
    a('v_lshrrev_b32 v%d, 4, v%d' % (vT + 1, vL))
    a('v_lshlrev_b32 v%d, 5, v%d' % (vT + 1, vT + 1))
    a('v_lshl_add_u32 v%d, v%d, 11, v%d' % (vXA, vT, vT + 1))
    a('v_add_u32 v4, 49152, v%d' % vL16)
    a('v_add_u32 v5, 4096, v%d' % vL16)
    a('s_lshl_b32 s%d, s%d, 16' % (sXO, sSEG))
    if cfg.get('fused'):
        a('s_lshl_b32 s%d, s92, 22' % sT0)
        a('s_add_u32 s%d, s%d, s%d' % (sXO, sXO, sT0))
    if w == 3:
        a('s_lshl_b32 s%d, s%d, 2' % (sT0, sH))
        a('s_add_u32 s%d, s%d, s%d' % (sT0, sT0, sJ))
        a('s_and_b32 s%d, s%d, 31' % (sT0, sT0))
        a('s_lshl_b32 s%d, s%d, 11' % (sT0, sT0))
        a('s_add_u32 s%d, s%d, s%d' % (sWM, sXO, sT0))
        a('s_add_u32 s%d, s%d, 0x%x' % (sWM, sWM, XF_OFF + (cfg.get('warm', 0) - 1) * 0x10000))
    a('s_add_u32 s%d, s%d, 0x%x' % (sXO, sXO, XF_OFF + w * 8192))
    if not cfg.get('fused'):
        a('s_add_u32 s%d, s%d, 0x8000' % (sT0, sXO))
        for x in xloads(0, sXO, sT0): a(x)
    a('s_lshl_b32 s%d, s%d, 5' % (sT0, sSEG))
    a('s_add_u32 s%d, s%d, s%d' % (sT0, sT0, sH))
    a('s_lshl_b32 s%d, s%d, 13' % (sT0, sT0))
    a('s_lshl_b32 s%d, s%d, 10' % (sT1, sJ))
    a('s_add_u32 s%d, s%d, s%d' % (sT2, sT0, sT1))
    a('s_add_u32 s%d, s%d, 0x%x' % (sQO, sT2, QF_OFF))
    a('s_add_u32 s%d, s%d, 0x%x' % (sKO, sT2, KF_OFF))
    a('s_add_u32 s%d, s%d, s%d' % (sT2, sT2, sT1))
    a('s_add_u32 s%d, s%d, 0x%x' % (sVO, sT2, VF_OFF))
    if not cfg.get('fused'): R.transpose_weights(a, with_wo=False)
    if cfg.get('fused'):
        dbg_wait(a, sDBG, 's91', 32, 8, sSPIN)
        a('s_add_u32 s%d, s%d, 0x8000' % (sT0, sXO))
        for x in xloads(0, sXO, sT0): a(x)
        a('s_mov_b32 s%d, 0' % sSEG)
    a('s_barrier')
    a('s_memrealtime s[72:73]')
    if cfg.get('fused'):
        import fused
        fused.stamp(a, cfg, 5)
    if cfg.get('gprof'):
        for k in range(8): a('s_mov_b32 s%d, 0' % (80 + k))
        a('s_memtime s[76:77]')
        a('s_waitcnt lgkmcnt(0)')
        a('s_mov_b32 s79, s76')
    L = pre + '_loop_w%d' % w; E = pre + '_done_w%d' % w
    if cfg.get('fused'):
        plan = [(0, True, (0, None)), (1, False, (1, 0)), (0, False, (0, 1)), (1, False, (None, 0)), (0, False, (None, None))]
        for n, (par, first, conv) in enumerate(plan):
            seg_body(a, w, par, first, cfg, None if n == 0 else [plan[n - 1]], conv, exact=(1 <= n <= 3))
            if n == 4:
                if w == 1: dbg_arrive(a, sDBG, 's91', 8)
        a('s_add_u32 s%d, s%d, 4' % (sSEG, sSEG))
        preds_odd = [(0, False)]
    else:
        seg_body(a, w, 0, True, cfg, None)
        preds_odd = [(0, True), (0, False)]
    a.label(L)
    if cfg.get('fused'):
        Lq = a.newlabel('nocv')
        a('s_cmp_lg_u32 s%d, 8' % sSEG)
        a.branch('s_cbranch_scc1 %s' % Lq)
        dbg_wait(a, sDBG, 's91', 64, 8, sSPIN)
        import prerole
        prerole.dots_agpr(a, cfg, 92, 98304)
        a.label(Lq)
    seg_body(a, w, 1, False, cfg, preds_odd)
    a('s_add_u32 s%d, s%d, 2' % (sSEG, sSEG))
    a('s_cmp_ge_u32 s%d, s%d' % (sSEG, sEND))
    a.branch('s_cbranch_scc1 %s' % E)
    seg_body(a, w, 0, False, cfg, [(1, False)])
    a.branch('s_branch %s' % L)
    a.label(E)
    if cfg.get('gprof'):
        a('s_lshl_b32 s%d, s95, 7' % sT0)
        a('s_add_u32 s%d, s%d, 0x%x' % (sT0, sT0, MISC_OFF + 131072 + w * 32))
        a('v_mov_b32 v9, 0')
        a('s_mov_b64 exec, 1')
        for k in range(8):
            a('v_mov_b32 v8, s%d' % (80 + k))
            a('buffer_store_dword v8, v9, s[%d:%d], s%d offen offset:%d' % (sWS, sWS + 3, sT0, 4 * k))
        a('s_mov_b64 exec, -1')
    for kind, lst in reduce_ops(w, 1, cfg.get('g1_sc1', 0)):
        if kind == 'ad': a('s_waitcnt lgkmcnt(0)')
        for x in lst: a(x)
    if cfg.get('fused'):
        a('s_waitcnt vmcnt(0)')
        a('s_barrier')
        a('s_mov_b32 s%d, 64' % sCNT)
        if w == 0: pub_gp(a)

def gen_g1_kernel(name, cfg):
    a = Asm()
    a.raw(kernel_header(name))
    a('s_cmp_ge_u32 s2, 256')
    a('s_cbranch_scc1 g1_exit')
    a('s_memrealtime s[70:71]')
    build_srds(a, dict(ws=sWS, wq=sWQ, wk=sWK, wv=sWV))
    a('v_and_b32 v%d, 63, v0' % vL)
    a('v_lshlrev_b32 v%d, 4, v%d' % (vL16, vL))
    a('v_lshrrev_b32 v%d, 6, v0' % vT)
    a('v_readfirstlane_b32 s%d, v%d' % (sW, vT))
    a('s_and_b32 s%d, s2, 127' % sT0)
    a('s_lshr_b32 s%d, s%d, 2' % (sH, sT0))
    a('s_and_b32 s%d, s%d, 3' % (sJ, sT0))
    a('s_lshr_b32 s%d, s2, 7' % sT0)
    a('s_lshl_b32 s%d, s%d, 5' % (sSEG, sT0))
    a('s_add_u32 s%d, s%d, 32' % (sEND, sSEG))
    R.load_weights(a, with_wo=False)
    for w in range(1, 4):
        a('s_cmp_eq_u32 s%d, %d' % (sW, w))
        a.branch('s_cbranch_scc1 g1_wave%d' % w)
    for w in range(4):
        a.label('g1_wave%d' % w)
        g1_wave(a, w, cfg, 'g1')
        if w == 0 and cfg.get('stamp'):
            a('s_memrealtime s[74:75]')
            a('s_waitcnt lgkmcnt(0)')
            a('v_mov_b32 v10, s70'); a('v_mov_b32 v11, s72'); a('v_mov_b32 v12, s74'); a('v_mov_b32 v13, 0')
            a('s_lshl_b32 s%d, s2, 4' % sT0)
            a('s_add_u32 s%d, s%d, 0x%x' % (sT0, sT0, MISC_OFF + 65536))
            a('v_mov_b32 v14, 0')
            a('s_mov_b64 exec, 1')
            a('buffer_store_dwordx4 v[10:13], v14, s[%d:%d], s%d offen' % (sWS, sWS + 3, sT0))
        a('s_endpgm')
    a.label('g1_exit')
    a('s_endpgm')
    return a.text()
```

```python
from common import *
import rrole as R

sWS = 8
sT0, sT1, sT2, sT3, sC, sTASK = 45, 46, 47, 48, 65, 41
sMK = 80
NEG = 0xff7fffff

class AV:
    L16, L8, Dup, L16B = 2, 3, 4, 5
    T = 8
    MLO, MHI, FLO, NEGV = 6, 7, 14, 15
    Q = 16
    K = 48
    KM = 80
    V = 96
    VM = 128
    S = 136
    P = 156
    O = 16
    RC = 176

def attn_consts(a, cfg):
    A = AV
    a('v_and_b32 v1, 63, v0')
    a('v_lshlrev_b32 v%d, 4, v1' % A.L16)
    a('v_lshlrev_b32 v%d, 3, v1' % A.L8)
    a('v_add_u32 v%d, 0x1000, v%d' % (A.L16B, A.L16))
    a('v_lshrrev_b32 v%d, 4, v1' % A.T)
    a('v_and_b32 v%d, 7, v1' % (A.T + 1))
    a('v_lshl_add_u32 v%d, v%d, 3, v%d' % (A.Dup, A.T, A.T + 1))
    a('v_lshlrev_b32 v%d, 4, v%d' % (A.Dup, A.Dup))
    a('v_cmp_gt_u32 vcc, 32, v1')
    a('v_cndmask_b32 v%d, 0, -1, vcc' % A.MLO)
    a('v_cndmask_b32 v%d, -1, 0, vcc' % A.MHI)
    a('v_cndmask_b32 v%d, 0, 1.0, vcc' % A.FLO)
    a('v_mov_b32 v%d, 0x%x' % (A.NEGV, NEG))
    a('v_and_b32 v%d, 15, v1' % (A.T + 1))
    a('v_lshlrev_b32 v%d, 2, v%d' % (A.T, A.T))
    for i in range(4):
        a('v_add_u32 v%d, %d, v%d' % (A.T + 2, i, A.T))
        a('v_cmp_le_u32 s[%d:%d], v%d, v%d' % (sMK + 2 * i, sMK + 2 * i + 1, A.T + 2, A.T + 1))
    a('s_mov_b32 s%d, 0x%x' % (sC, cfg['cbits']))

def attn_task(a, cfg, ld_flags='', st_flags='', all_sc1=False):
    A = AV
    a('s_lshl_b32 s%d, s%d, 13' % (sT0, sTASK))
    a('s_add_u32 s%d, s%d, 0x%x' % (sT1, sT0, KF_OFF))
    a('s_add_u32 s%d, s%d, 0x%x' % (sT2, sT0, VF_OFF))
    if QF_OFF: a('s_add_u32 s%d, s%d, 0x%x' % (sT0, sT0, QF_OFF))
    def ld(r, n, va, so, off, fl=''):
        if all_sc1: fl = ' sc1'
        a('buffer_load_dword%s %s, v%d, s[%d:%d], s%d offen offset:%d%s' % ('x%d' % n, vr(r, n), va, sWS, sWS + 3, so, off, fl))
    for n in range(8): ld(A.Q + 4 * n, 4, A.L16 if n < 4 else A.L16B, sT0, (n & 3) * 1024)
    for n in range(8): ld(A.K + 4 * n, 4, A.L16 if n < 4 else A.L16B, sT1, (n & 3) * 1024)
    a('s_lshl_b32 s%d, s%d, 11' % (sT0, sTASK))
    a('s_add_u32 s%d, s%d, 0x%x' % (sT1, sT0, KM_OFF))
    a('s_add_u32 s%d, s%d, 0x%x' % (sT0, sT0, VM_OFF))
    for c in range(4): ld(A.KM + 4 * c, 4, A.Dup, sT1, c * 512, ld_flags)
    for n in range(8): ld(A.V + 4 * n, 4, A.L16 if n < 4 else A.L16B, sT2, (n & 3) * 1024)
    for j in range(4): ld(A.VM + 2 * j, 2, A.L8, sT0, j * 512, ld_flags)
    tiles = {(0, 0): A.S, (0, 2): A.S + 4, (1, 0): A.S + 8, (1, 1): A.S + 12, (1, 2): A.S + 16}
    a('s_waitcnt vmcnt(12)')
    for c in range(4):
        for (u, t), d in tiles.items():
            Aop = (A.K + 16 * t + 4 * c) if t < 2 else (A.KM + 4 * c)
            a('v_mfma_f32_16x16x32_bf16 %s, %s, %s, %s' % (vr(d, 4), vr(Aop, 4), vr(A.Q + 16 * u + 4 * c, 4), '0' if c == 0 else vr(d, 4)))
    a('s_lshr_b32 s%d, s%d, 5' % (sT0, sTASK))
    a('s_lshl_b32 s%d, s%d, 18' % (sT0, sT0))
    a('s_and_b32 s%d, s%d, 31' % (sT1, sTASK))
    a('s_lshl_b32 s%d, s%d, 12' % (sT1, sT1))
    a('s_add_u32 s%d, s%d, s%d' % (sT0, sT0, sT1))
    a('s_add_u32 s%d, s%d, 0x%x' % (sT0, sT0, OF_OFF))
    a('s_add_u32 s%d, s%d, 0x20000' % (sT1, sT0))
    for d in (tiles[(0, 0)], tiles[(1, 1)]):
        for i in range(4):
            a('v_cndmask_b32 v%d, v%d, v%d, s[%d:%d]' % (d + i, A.NEGV, d + i, sMK + 2 * i, sMK + 2 * i + 1))
    for u in range(2):
        regs = [tiles[k] + i for k in sorted(tiles) if k[0] == u for i in range(4)]
        m, t2 = A.T + 2 * u, A.T + 2 * u + 1
        a('v_max3_f32 v%d, v%d, v%d, v%d' % (m, regs[0], regs[1], regs[2]))
        k = 3
        while k + 1 < len(regs):
            a('v_max3_f32 v%d, v%d, v%d, v%d' % (m, m, regs[k], regs[k + 1])); k += 2
        if k < len(regs): a('v_max_f32 v%d, v%d, v%d' % (m, m, regs[k]))
    for sw in ('v_permlane16_swap_b32', 'v_permlane32_swap_b32'):
        for u in range(2): a('v_mov_b32 v%d, v%d' % (A.T + 2 * u + 1, A.T + 2 * u))
        for u in range(2): a('%s v%d, v%d' % (sw, A.T + 2 * u, A.T + 2 * u + 1))
        for u in range(2): a('v_max_f32 v%d, v%d, v%d' % (A.T + 2 * u, A.T + 2 * u, A.T + 2 * u + 1))
    for u in range(2): a('v_mul_f32 v%d, s%d, v%d' % (A.T + 2 * u, sC, A.T + 2 * u))
    for (u, t), d in tiles.items():
        for i in range(4): a('v_fma_f32 v%d, v%d, s%d, -v%d' % (d + i, d + i, sC, A.T + 2 * u))
    for (u, t), d in tiles.items():
        for i in range(4): a('v_exp_f32 v%d, v%d' % (d + i, d + i))
    for u in range(2):
        p = A.P + 10 * u
        d = tiles[(u, 0)]
        a('v_cvt_pk_bf16_f32 v%d, v%d, v%d' % (p, d, d + 1)); a('v_cvt_pk_bf16_f32 v%d, v%d, v%d' % (p + 1, d + 2, d + 3))
        if u == 0:
            a('v_mov_b32 v%d, 0' % (p + 2)); a('v_mov_b32 v%d, 0' % (p + 3))
        else:
            d = tiles[(1, 1)]
            a('v_cvt_pk_bf16_f32 v%d, v%d, v%d' % (p + 2, d, d + 1)); a('v_cvt_pk_bf16_f32 v%d, v%d, v%d' % (p + 3, d + 2, d + 3))
        d = tiles[(u, 2)]
        a('v_cvt_pk_bf16_f32 v%d, v%d, v%d' % (p + 4, d, d + 1)); a('v_cvt_pk_bf16_f32 v%d, v%d, v%d' % (p + 5, d + 2, d + 3))
        a('v_and_b32 v%d, v%d, v%d' % (p + 6, p + 4, A.MLO)); a('v_and_b32 v%d, v%d, v%d' % (p + 7, p + 5, A.MLO))
        a('v_and_b32 v%d, v%d, v%d' % (p + 8, p + 4, A.MHI)); a('v_and_b32 v%d, v%d, v%d' % (p + 9, p + 5, A.MHI))
    a('s_waitcnt vmcnt(0)')
    for u in range(2):
        sA, sB = A.T + 2 * u, A.T + 2 * u + 1
        d2 = tiles[(u, 2)]; d0 = tiles[(u, 0)]
        R.pk_add(a, d2, d2, d2 + 2); R.pk_add(a, d0, d0, d0 + 2)
        if u == 1:
            d1 = tiles[(1, 1)]
            R.pk_add(a, d1, d1, d1 + 2); R.pk_add(a, d0, d0, d1)
        a('v_add_f32 v%d, v%d, v%d' % (sB, d2, d2 + 1))
        a('v_add_f32 v%d, v%d, v%d' % (sA, d0, d0 + 1))
        a('v_fma_f32 v%d, v%d, v%d, v%d' % (sA, sB, A.FLO, sA))
    for u in range(2):
        p = A.P + 10 * u
        for et in range(8):
            o = A.O + 32 * u + 4 * et
            a('v_mfma_f32_16x16x32_bf16 %s, %s, %s, 0' % (vr(o, 4), vr(A.V + 4 * et, 4), vr(p, 4)))
            if u == 0 and et in (0, 3):
                sw = 'v_permlane16_swap_b32' if et == 0 else 'v_permlane32_swap_b32'
                for x in range(2): a('v_mov_b32 v%d, v%d' % (A.T + 2 * x + 1, A.T + 2 * x))
                for x in range(2): a('%s v%d, v%d' % (sw, A.T + 2 * x, A.T + 2 * x + 1))
                for x in range(2): a('v_add_f32 v%d, v%d, v%d' % (A.T + 2 * x, A.T + 2 * x, A.T + 2 * x + 1))
            if u == 0 and et == 6:
                for x in range(2):
                    a('v_rcp_f32 v%d, v%d' % (A.RC + 2 * x, A.T + 2 * x))
                for x in range(2):
                    a('v_mov_b32 v%d, v%d' % (A.RC + 2 * x + 1, A.RC + 2 * x))
        for et in range(8):
            o = A.O + 32 * u + 4 * et
            a('v_mfma_f32_16x16x16_bf16 %s, %s, %s, %s' % (vr(o, 4), vr(A.VM + 2 * (et >> 1), 2), vr(p + 6 + 2 * (et & 1), 2), vr(o, 4)))
    for u in range(2):
        for c in range(4):
            o = A.O + 32 * u + 8 * c
            for i in range(4):
                a('v_pk_mul_f32 v[%d:%d], v[%d:%d], v[%d:%d]' % (o + 2 * i, o + 2 * i + 1, o + 2 * i, o + 2 * i + 1, A.RC + 2 * u, A.RC + 2 * u + 1))
            for i in range(4):
                a('v_cvt_pk_bf16_f32 v%d, v%d, v%d' % (o + i, o + 2 * i, o + 2 * i + 1))
            a('buffer_store_dwordx4 %s, v%d, s[%d:%d], s%d offen offset:%d%s' % (vr(o, 4), A.L16, sWS, sWS + 3, sT0 + u, c * 1024, st_flags))

def gen_attn_kernel(name, cfg):
    a = Asm()
    a.raw(kernel_header(name))
    a('s_cmp_ge_u32 s2, 512')
    a('s_cbranch_scc1 at_exit')
    build_srds(a, dict(ws=sWS))
    attn_consts(a, cfg)
    a('v_lshrrev_b32 v%d, 6, v0' % AV.T)
    a('v_readfirstlane_b32 s%d, v%d' % (sT0, AV.T))
    a('s_lshl_b32 s%d, s2, 2' % sTASK)
    a('s_add_u32 s%d, s%d, s%d' % (sTASK, sTASK, sT0))
    attn_task(a, cfg)
    a.label('at_exit')
    a('s_endpgm')
    return a.text()

sWO, sX, sOUT = 12, 16, 20
sI, sW, sTILE, sTEND, sTSTEP, sOO, sN, sIDX0, sIDX1 = 41, 42, 43, 44, 49, 50, 51, 52, 53
class OV:
    L, L16, L16B, XA, GA = 1, 2, 3, 4, 5
    T = 8
    TR = 12
    B = 16
    AC = 144
    XR = 152
    G = 160
    RD = 164
    E = 188
LDSO = 0

def wof(q, tau, p): return 64 * q + (tau * 8 + p) * 4

def out_load_weights(a):
    O = OV
    a('v_lshrrev_b32 v%d, 2, v%d' % (O.T, O.L))
    a('v_and_b32 v%d, 3, v%d' % (O.T + 1, O.L))
    a('v_lshlrev_b32 v%d, 4, v%d' % (O.T + 1, O.T + 1))
    a('v_lshl_add_u32 v%d, v%d, 11, v%d' % (O.T + 3, O.T, O.T + 1))
    a('s_lshl_b32 s%d, s%d, 21' % (sT0, sW))
    a('s_lshl_b32 s%d, s%d, 6' % (sT1, sI))
    a('s_add_u32 s%d, s%d, s%d' % (sT0, sT0, sT1))
    for n in range(64):
        a('buffer_load_dwordx4 a[%d:%d], v%d, s[%d:%d], s%d offen' % (4 * n, 4 * n + 3, O.T + 3, sWO, sWO + 3, sT0))
        if n < 63: a('s_add_u32 s%d, s%d, 0x8000' % (sT0, sT0))
        if n == 31: pass
    a('s_lshl_b32 s%d, s%d, 14' % (sT0, sW))
    a('v_add_u32 v%d, s%d, v%d' % (O.TR, sT0, O.L16))
    a('v_lshrrev_b32 v%d, 4, v%d' % (O.T, O.L))
    a('v_bfe_u32 v%d, v%d, 2, 2' % (O.T + 1, O.L))
    a('v_and_b32 v%d, 3, v%d' % (O.T + 2, O.L))
    a('v_lshl_add_u32 v%d, v%d, 2, v%d' % (O.T + 3, O.T, O.T + 1))
    a('v_lshlrev_b32 v%d, 6, v%d' % (O.T + 3, O.T + 3))
    a('v_lshl_add_u32 v%d, v%d, 4, v%d' % (O.T + 3, O.T + 2, O.T + 3))
    a('v_add_u32 v%d, s%d, v%d' % (O.TR + 1, sT0, O.T + 3))
    for q in range(4):
        a('s_waitcnt vmcnt(%d)' % (48 - 16 * q))
        for n in range(16):
            a('ds_write_b128 v%d, a[%d:%d] offset:%d' % (O.TR, 64 * q + 4 * n, 64 * q + 4 * n + 3, n * 1024))
        a('s_waitcnt lgkmcnt(0)')
        for tau in range(2):
            for p in range(8):
                for half in range(2):
                    r = wof(q, tau, p) + 2 * half
                    a('ds_read_b64_tr_b16 a[%d:%d], v%d offset:%d' % (r, r + 1, O.TR + 1, (32 * p + 16 * half) * 64 + tau * 8))
        a('s_waitcnt lgkmcnt(0)')

def oloads(q, so, fl=''):
    O = OV
    return ['buffer_load_dwordx4 v[%d:%d], v%d, s[%d:%d], s%d offen offset:%d%s' % (O.B + 32 * q + 4 * p, O.B + 32 * q + 4 * p + 3, O.L16 if p < 4 else O.L16B, sWS, sWS + 3, so, (p & 3) * 1024, fl) for p in range(8)]

def epilogue(a, par, tile_s=None, fused=False, lds=True):
    O = OV
    for wv in range(4 if lds else 0):
        for tau in range(2):
            r = O.E + wv * 8 + tau * 4
            a('ds_read_b128 v[%d:%d], v%d offset:%d' % (r, r + 3, O.L16, LDSO + par * 8192 + wv * 2048 + tau * 1024))
    if lds: a('s_waitcnt lgkmcnt(0)')
    for x in range(0, 8, 2):
        R.pk_add(a, O.E + x, O.E + x, O.E + 8 + x); R.pk_add(a, O.E + 16 + x, O.E + 16 + x, O.E + 24 + x)
    for x in range(0, 8, 2):
        R.pk_add(a, O.E + x, O.E + x, O.E + 16 + x)
    for i in range(4): a('v_cvt_pk_bf16_f32 v%d, v%d, v%d' % (O.E + 8 + i, O.E + 2 * i, O.E + 2 * i + 1))
    for i in range(4):
        a('v_lshlrev_b32 v%d, 16, v%d' % (O.E + 2 * i, O.E + 8 + i))
        a('v_and_b32 v%d, 0xffff0000, v%d' % (O.E + 2 * i + 1, O.E + 8 + i))
    xr = O.XR + 4 * par; g = O.G + par
    if lds: a('s_waitcnt vmcnt(34)')
    for i in range(4):
        a('v_lshlrev_b32 v%d, 16, v%d' % (O.E + 16 + 2 * i, xr + i))
        a('v_and_b32 v%d, 0xffff0000, v%d' % (O.E + 17 + 2 * i, xr + i))
    if tile_s is None: a('s_sub_u32 s%d, s%d, s%d' % (sT0, sTILE, sTSTEP))
    else: a('s_mov_b32 s%d, s%d' % (sT0, tile_s))
    Lskip = a.newlabel('nomod')
    a('s_lshr_b32 s%d, s%d, 4' % (sT1, sIDX0))
    a('s_lshr_b32 s%d, s%d, 4' % (sT2, sIDX1))
    a('s_cmp_eq_u32 s%d, s%d' % (sT1, sT0))
    a('s_cselect_b32 s%d, 1, 0' % sT3)
    a('s_cmp_eq_u32 s%d, s%d' % (sT2, sT0))
    a('s_cselect_b32 s%d, 1, s%d' % (sT3, sT3))
    a('s_cmp_eq_u32 s%d, 0' % sT3)
    a.branch('s_cbranch_scc1 %s' % Lskip)
    a('v_and_b32 v%d, 15, v%d' % (O.E + 24, O.L))
    a('s_lshl_b32 s%d, s%d, 4' % (sT1, sT0))
    a('v_add_u32 v%d, s%d, v%d' % (O.E + 24, sT1, O.E + 24))
    a('v_lshrrev_b32 v%d, 4, v%d' % (O.E + 25, O.L))
    a('v_lshlrev_b32 v%d, 5, v%d' % (O.E + 25, O.E + 25))
    for c in range(2):
        Lc = a.newlabel('modc')
        a('v_cmp_eq_u32 vcc, s%d, v%d' % (sIDX0 + c, O.E + 24))
        a('s_and_saveexec_b64 s[90:91], vcc')
        a.branch('s_cbranch_execz %s' % Lc)
        a('s_lshl_b32 s%d, s%d, 7' % (sT1, sI))
        a('s_add_u32 s%d, s%d, 0x%x' % (sT1, sT1, YP_OFF + c * 4096))
        for i in range(8): a('v_mov_b32 v%d, 0' % (O.RD + 16 + i))
        for sp in range(7):
            a('buffer_load_dwordx4 v[%d:%d], v%d, s[%d:%d], s%d offen sc1' % (O.RD, O.RD + 3, O.E + 25, sWS, sWS + 3, sT1))
            a('buffer_load_dwordx4 v[%d:%d], v%d, s[%d:%d], s%d offen offset:16 sc1' % (O.RD + 4, O.RD + 7, O.E + 25, sWS, sWS + 3, sT1))
            a('s_add_u32 s%d, s%d, 8192' % (sT1, sT1))
            a('s_waitcnt vmcnt(0)')
            for x in range(0, 8, 2): R.pk_add(a, O.RD + 16 + x, O.RD + 16 + x, O.RD + x)
        a('s_mov_b32 s%d, 0x%x' % (sT1, IDX_OFF + 8 + 4 * c))
        a('v_mov_b32 v%d, 0' % (O.RD + 8))
        a('buffer_load_dword v%d, v%d, s[%d:%d], s%d offen sc1' % (O.RD + 9, O.RD + 8, sWS, sWS + 3, sT1))
        def rnd(base):
            for i in range(4):
                a('v_cvt_pk_bf16_f32 v%d, v%d, v%d' % (O.RD + i, base + 2 * i, base + 2 * i + 1))
            for i in range(4):
                a('v_lshlrev_b32 v%d, 16, v%d' % (base + 2 * i, O.RD + i))
                a('v_and_b32 v%d, 0xffff0000, v%d' % (base + 2 * i + 1, O.RD + i))
        rnd(O.RD + 16)
        a('s_waitcnt vmcnt(0)')
        for i in range(8): a('v_mul_f32 v%d, v%d, v%d' % (O.RD + 16 + i, O.RD + 16 + i, O.RD + 9))
        rnd(O.RD + 16)
        for i in range(8): a('v_add_f32 v%d, v%d, v%d' % (O.E + 16 + i, O.E + 16 + i, O.RD + 16 + i))
        rnd(O.E + 16)
        a.label(Lc)
        a('s_mov_b64 exec, s[90:91]')
    a.label(Lskip)
    a('v_sub_f32 v%d, 1.0, v%d' % (O.E + 24, g))
    a('v_cvt_pk_bf16_f32 v%d, v%d, v%d' % (O.E + 24, O.E + 24, O.E + 24))
    a('v_and_b32 v%d, 0xffff0000, v%d' % (O.E + 24, O.E + 24))
    for i in range(8): a('v_mul_f32 v%d, v%d, v%d' % (O.E + 16 + i, O.E + 16 + i, O.E + 24))
    for i in range(8): a('v_fma_f32 v%d, v%d, v%d, v%d' % (O.E + i, O.E + i, g, O.E + 16 + i))
    for i in range(4): a('v_cvt_pk_bf16_f32 v%d, v%d, v%d' % (O.E + 8 + i, O.E + 2 * i, O.E + 2 * i + 1))
    a('s_lshl_b32 s%d, s%d, 15' % (sT0, sT0))
    a('s_lshl_b32 s%d, s%d, 6' % (sT1, sI))
    a('s_add_u32 s%d, s%d, s%d' % (sT0, sT0, sT1))
    a('buffer_store_dwordx4 v[%d:%d], v%d, s[%d:%d], s%d offen' % (O.E + 8, O.E + 11, O.XA, sOUT, sOUT + 3, sT0))

def tile_body(a, par, cfg):
    O = OV
    a('s_lshl_b32 s%d, s%d, 15' % (sT0, sTILE))
    a('s_lshl_b32 s%d, s%d, 6' % (sT1, sI))
    a('s_add_u32 s%d, s%d, s%d' % (sT0, sT0, sT1))
    a('buffer_load_dwordx4 v[%d:%d], v%d, s[%d:%d], s%d offen' % (O.XR + 4 * par, O.XR + 4 * par + 3, O.XA, sX, sX + 3, sT0))
    a('s_lshl_b32 s%d, s%d, 6' % (sT0, sTILE))
    a('s_add_u32 s%d, s%d, 0x%x' % (sT0, sT0, GL_OFF))
    a('buffer_load_dword v%d, v%d, s[%d:%d], s%d offen' % (O.G + par, O.GA, sWS, sWS + 3, sT0))
    Ls = a.newlabel('noepi')
    a('s_cmp_eq_u32 s%d, 0' % sN)
    a('s_cbranch_scc1 %s' % Ls)
    a('s_and_b32 s%d, s%d, 3' % (sT0, sN))
    a('s_cmp_lg_u32 s%d, s%d' % (sT0, sW))
    a.branch('s_cbranch_scc1 %s' % Ls)
    epilogue(a, 1 - par)
    a.label(Ls)
    a('s_lshl_b32 s%d, s%d, 17' % (sT3, sTSTEP))
    a('s_add_u32 s%d, s%d, s%d' % (sOO, sOO, sT3))
    for q in range(4):
        a('s_waitcnt vmcnt(26)')
        for p in range(8):
            for tau in range(2):
                c = '0' if (q == 0 and p == 0) else vr(O.AC + 4 * tau, 4)
                a('v_mfma_f32_16x16x32_bf16 %s, %s, %s, %s' % (vr(O.AC + 4 * tau, 4), ar(wof(q, tau, p), 4), vr(O.B + 32 * q + 4 * p, 4), c))
        a('s_add_u32 s%d, s%d, %d' % (sT0, sOO, q * 8192))
        for x in oloads(q, sT0): a(x)
    a('s_lshl_b32 s%d, s%d, 11' % (sT0, sW))
    a('v_add_u32 v%d, s%d, v%d' % (O.T, sT0, O.L16))
    for tau in range(2):
        a('ds_write_b128 v%d, v[%d:%d] offset:%d' % (O.T, O.AC + 4 * tau, O.AC + 4 * tau + 3, LDSO + par * 8192 + tau * 1024))
    a('s_waitcnt lgkmcnt(0)')
    a('s_barrier')
    a('s_add_u32 s%d, s%d, s%d' % (sTILE, sTILE, sTSTEP))
    a('s_add_u32 s%d, s%d, 1' % (sN, sN))

def gen_out_kernel(name, cfg):
    O = OV
    a = Asm()
    a.raw(kernel_header(name))
    a('s_cmp_ge_u32 s2, 256')
    a('s_cbranch_scc1 out_exit')
    build_srds(a, dict(ws=sWS, wo=sWO, x=sX, out=sOUT))
    a('v_and_b32 v%d, 63, v0' % O.L)
    a('v_lshlrev_b32 v%d, 4, v%d' % (O.L16, O.L))
    a('v_add_u32 v%d, 0x1000, v%d' % (O.L16B, O.L16))
    a('v_lshrrev_b32 v%d, 6, v0' % O.T)
    a('v_readfirstlane_b32 s%d, v%d' % (sW, O.T))
    a('v_and_b32 v%d, 15, v%d' % (O.T, O.L))
    a('v_lshlrev_b32 v%d, 2, v%d' % (O.GA, O.T))
    a('v_lshrrev_b32 v%d, 4, v%d' % (O.T + 1, O.L))
    a('v_lshlrev_b32 v%d, 4, v%d' % (O.T + 1, O.T + 1))
    a('v_lshl_add_u32 v%d, v%d, 11, v%d' % (O.XA, O.T, O.T + 1))
    a('s_lshr_b32 s%d, s2, 3' % sI)
    a('s_and_b32 s%d, s2, 7' % sTILE)
    a('s_mov_b32 s%d, 8' % sTSTEP)
    a('s_mov_b32 s%d, 0' % sN)
    a('v_mov_b32 v%d, 0' % O.T)
    a('s_mov_b32 s%d, 0x%x' % (sT0, IDX_OFF))
    a('buffer_load_dwordx2 v[%d:%d], v%d, s[%d:%d], s%d offen' % (O.E, O.E + 1, O.T, sWS, sWS + 3, sT0))
    a('s_waitcnt vmcnt(0)')
    a('v_readfirstlane_b32 s%d, v%d' % (sIDX0, O.E))
    a('v_readfirstlane_b32 s%d, v%d' % (sIDX1, O.E + 1))
    out_load_weights(a)
    a('s_barrier')
    a('s_lshl_b32 s%d, s%d, 17' % (sOO, sTILE))
    a('s_lshl_b32 s%d, s%d, 15' % (sT0, sW))
    a('s_add_u32 s%d, s%d, s%d' % (sOO, sOO, sT0))
    a('s_add_u32 s%d, s%d, 0x%x' % (sOO, sOO, OF_OFF))
    for q in range(4):
        a('s_add_u32 s%d, s%d, %d' % (sT0, sOO, q * 8192))
        for x in oloads(q, sT0): a(x)
    a.label('out_loop')
    tile_body(a, 0, cfg)
    tile_body(a, 1, cfg)
    a('s_cmp_lt_u32 s%d, 16' % sN)
    a.branch('s_cbranch_scc1 out_loop')
    a('s_cmp_lg_u32 s%d, 0' % sW)
    a.branch('s_cbranch_scc1 out_exit')
    a('s_waitcnt vmcnt(0)')
    epilogue(a, 1)
    a.label('out_exit')
    a('s_endpgm')
    return a.text()

def out_consts(a):
    O = OV
    a('v_and_b32 v%d, 63, v0' % O.L)
    a('v_lshlrev_b32 v%d, 4, v%d' % (O.L16, O.L))
    a('v_add_u32 v%d, 0x1000, v%d' % (O.L16B, O.L16))
    a('v_and_b32 v%d, 15, v%d' % (O.T, O.L))
    a('v_lshlrev_b32 v%d, 2, v%d' % (O.GA, O.T))
    a('v_lshrrev_b32 v%d, 4, v%d' % (O.T + 1, O.L))
    a('v_lshlrev_b32 v%d, 4, v%d' % (O.T + 1, O.T + 1))
    a('v_lshl_add_u32 v%d, v%d, 11, v%d' % (O.XA, O.T, O.T + 1))

sPT, sNB = 56, 57
def wo_tile(a, par, pf=True):
    O = OV
    a('s_lshl_b32 s%d, s%d, 15' % (sT0, sTILE))
    a('s_lshl_b32 s%d, s%d, 6' % (sT1, sI))
    a('s_add_u32 s%d, s%d, s%d' % (sT0, sT0, sT1))
    a('buffer_load_dwordx4 v[%d:%d], v%d, s[%d:%d], s%d offen' % (O.XR + 4 * par, O.XR + 4 * par + 3, O.XA, sX, sX + 3, sT0))
    a('s_lshl_b32 s%d, s%d, 6' % (sT0, sTILE))
    a('s_add_u32 s%d, s%d, 0x%x' % (sT0, sT0, GL_OFF))
    a('buffer_load_dword v%d, v%d, s[%d:%d], s%d offen sc1' % (O.G + par, O.GA, sWS, sWS + 3, sT0))
    Ls = a.newlabel('noepi')
    a('s_cmp_eq_u32 s%d, 0' % sN)
    a('s_cbranch_scc1 %s' % Ls)
    a('s_and_b32 s%d, s%d, 3' % (sT0, sN))
    a('s_cmp_lg_u32 s%d, s%d' % (sT0, sW))
    a.branch('s_cbranch_scc1 %s' % Ls)
    epilogue(a, 1 - par, sPT, True)
    a.label(Ls)
    a('s_add_u32 s%d, s%d, 0x%x' % (sOO, sOO, 0x20000 * (1 if par == 0 else 7)))
    for q in range(4):
        a('s_waitcnt vmcnt(%d)' % (26 if pf else 26 - 8 * q))
        for p in range(8):
            for tau in range(2):
                c = '0' if (q == 0 and p == 0) else vr(O.AC + 4 * tau, 4)
                a('v_mfma_f32_16x16x32_bf16 %s, %s, %s, %s' % (vr(O.AC + 4 * tau, 4), ar(wof(q, tau, p), 4), vr(O.B + 32 * q + 4 * p, 4), c))
        if pf:
            a('s_add_u32 s%d, s%d, %d' % (sT0, sOO, q * 8192))
            for x in oloads(q, sT0, ' sc1'): a(x)
    for tau in range(2):
        a('ds_write_b128 v%d, v[%d:%d] offset:%d' % (O.T, O.AC + 4 * tau, O.AC + 4 * tau + 3, LDSO + par * 8192 + tau * 1024))
    a('s_waitcnt lgkmcnt(0)')
    a('s_barrier')
    a('s_mov_b32 s%d, s%d' % (sPT, sTILE))
    a('s_add_u32 s%d, s%d, %d' % (sTILE, sTILE, 1 if par == 0 else 7))
    a('s_add_u32 s%d, s%d, 1' % (sN, sN))

def wo_batch(a, cfg):
    O = OV
    out_consts(a)
    a('s_mov_b32 s%d, 0' % sN)
    a('s_lshl_b32 s%d, s%d, 17' % (sOO, sTILE))
    a('s_lshl_b32 s%d, s%d, 15' % (sT0, sW))
    a('s_add_u32 s%d, s%d, s%d' % (sOO, sOO, sT0))
    a('s_add_u32 s%d, s%d, 0x%x' % (sOO, sOO, OF_OFF))
    for q in range(4):
        a('s_add_u32 s%d, s%d, %d' % (sT0, sOO, q * 8192))
        for x in oloads(q, sT0, ' sc1'): a(x)
    a('s_lshl_b32 s%d, s%d, 11' % (sT0, sW))
    a('v_add_u32 v%d, s%d, v%d' % (O.T, sT0, O.L16))
    L = a.newlabel('wob')
    a.label(L)
    Ll = a.newlabel('wol')
    wo_tile(a, 0)
    a('s_sub_u32 s%d, s%d, 1' % (sNB, sNB))
    a('s_cmp_eq_u32 s%d, 0' % sNB)
    a.branch('s_cbranch_scc1 %s' % Ll)
    wo_tile(a, 1)
    a.branch('s_branch %s' % L)
    a.label(Ll)
    wo_tile(a, 1, pf=False)
    Ls = a.newlabel('noepi')
    a('s_cmp_lg_u32 s%d, 3' % sW)
    a.branch('s_cbranch_scc1 %s' % Ls)
    a('s_waitcnt vmcnt(0)')
    epilogue(a, 1, sPT, True)
    a.label(Ls)

sKQ, sCG, sC32, sSLOT_, sPWO, sNT, sTN = 60, 61, 62, 63, 64, 49, 59
def wo2_load_weights(a):
    global sW, sI
    sw, si = sW, sI
    a('s_lshr_b32 s%d, s%d, 3' % (sKQ, si))
    a('s_and_b32 s%d, s%d, 7' % (sCG, si))
    a('s_lshl_b32 s%d, s%d, 2' % (sC32, sCG))
    a('s_add_u32 s%d, s%d, s%d' % (sC32, sC32, sw))
    O = OV
    a('v_lshrrev_b32 v%d, 2, v%d' % (O.T, O.L))
    a('v_and_b32 v%d, 3, v%d' % (O.T + 1, O.L))
    a('v_lshlrev_b32 v%d, 4, v%d' % (O.T + 1, O.T + 1))
    a('v_lshl_add_u32 v%d, v%d, 11, v%d' % (O.T + 3, O.T, O.T + 1))
    a('s_lshl_b32 s%d, s%d, 21' % (sT0, sKQ))
    a('s_lshl_b32 s%d, s%d, 6' % (sT1, sC32))
    a('s_add_u32 s%d, s%d, s%d' % (sT0, sT0, sT1))
    for n in range(64):
        a('buffer_load_dwordx4 a[%d:%d], v%d, s[%d:%d], s%d offen' % (4 * n, 4 * n + 3, O.T + 3, sWO, sWO + 3, sT0))
        if n < 63: a('s_add_u32 s%d, s%d, 0x8000' % (sT0, sT0))
    a('s_lshl_b32 s%d, s%d, 14' % (sT0, sw))
    a('v_add_u32 v%d, s%d, v%d' % (O.TR, sT0, O.L16))
    a('v_lshrrev_b32 v%d, 4, v%d' % (O.T, O.L))
    a('v_bfe_u32 v%d, v%d, 2, 2' % (O.T + 1, O.L))
    a('v_and_b32 v%d, 3, v%d' % (O.T + 2, O.L))
    a('v_lshl_add_u32 v%d, v%d, 2, v%d' % (O.T + 3, O.T, O.T + 1))
    a('v_lshlrev_b32 v%d, 6, v%d' % (O.T + 3, O.T + 3))
    a('v_lshl_add_u32 v%d, v%d, 4, v%d' % (O.T + 3, O.T + 2, O.T + 3))
    a('v_add_u32 v%d, s%d, v%d' % (O.TR + 1, sT0, O.T + 3))
    for q in range(4):
        a('s_waitcnt vmcnt(%d)' % (48 - 16 * q))
        for n in range(16):
            a('ds_write_b128 v%d, a[%d:%d] offset:%d' % (O.TR, 64 * q + 4 * n, 64 * q + 4 * n + 3, n * 1024))
        a('s_waitcnt lgkmcnt(0)')
        for tau in range(2):
            for p in range(8):
                for half in range(2):
                    r = wof(q, tau, p) + 2 * half
                    a('ds_read_b64_tr_b16 a[%d:%d], v%d offset:%d' % (r, r + 1, O.TR + 1, (32 * p + 16 * half) * 64 + tau * 8))
        a('s_waitcnt lgkmcnt(0)')

def tile_of(a, dst, n_s, sGX):
    a('s_lshr_b32 s%d, s%d, 1' % (dst, n_s))
    a('s_lshl_b32 s%d, s%d, 2' % (dst, dst))
    a('s_add_u32 s%d, s%d, s%d' % (dst, dst, sGX))
    a('s_lshl_b32 s%d, s%d, 1' % (dst, dst))
    a('s_and_b32 s%d, s%d, 1' % (sT3, n_s))
    a('s_add_u32 s%d, s%d, s%d' % (dst, dst, sT3))

sDA, sDL = 74, 75
def wo2_dma_setup(a, n_s, slot_s, sGX):
    tile_of(a, sDA, n_s, sGX)
    a('s_lshl_b32 s%d, s%d, 17' % (sDA, sDA))
    a('s_lshl_b32 s%d, s%d, 15' % (sT1, sKQ))
    a('s_add_u32 s%d, s%d, s%d' % (sDA, sDA, sT1))
    a('s_lshl_b32 s%d, s%d, 13' % (sT1, sW))
    a('s_add_u32 s%d, s%d, s%d' % (sDA, sDA, sT1))
    a('s_add_u32 s%d, s%d, 0x%x' % (sDA, sDA, OF_OFF))
    a('s_lshl_b32 s%d, s%d, 15' % (sDL, slot_s))
    a('s_add_u32 s%d, s%d, s%d' % (sDL, sDL, sT1))

def wo2_dma_one(a, p):
    O = OV
    if p == 0: a('s_mov_b32 m0, s%d' % sDL)
    if p == 4:
        a('s_add_u32 m0, s%d, 4096' % sDL)
        a('s_add_u32 s%d, s%d, 4096' % (sDA, sDA))
    a('buffer_load_dwordx4 v%d, s[%d:%d], s%d offen offset:%d sc1 lds' % (O.L16, sWS, sWS + 3, sDA, (p & 3) * 1024))

def wo2_dma(a, n_s, slot_s, sGX):
    wo2_dma_setup(a, n_s, slot_s, sGX)
    for p in range(8): wo2_dma_one(a, p)

def wo2_batch(a, cfg, sGX, sNW, sSP):
    O = OV
    safe = ' sc1' if cfg.get('safe') else ''
    out_consts(a)
    sN0 = sPT
    a('s_mov_b32 s%d, s%d' % (sN0, sTN))
    a('s_mov_b32 s%d, 0' % sSLOT_)
    wo2_dma(a, sTN, sSLOT_, sGX)
    a('s_add_u32 s%d, s%d, 1' % (sOO, sTN))
    a('s_mov_b32 s%d, 1' % sN)
    wo2_dma(a, sOO, sN, sGX)
    a('s_lshl_b32 s%d, s%d, 23' % (sPWO, sGX))
    a('s_lshl_b32 s%d, s%d, 16' % (sT0, sKQ))
    a('s_add_u32 s%d, s%d, s%d' % (sPWO, sPWO, sT0))
    a('s_lshl_b32 s%d, s%d, 11' % (sT0, sC32))
    a('s_add_u32 s%d, s%d, s%d' % (sPWO, sPWO, sT0))
    a('s_add_u32 s%d, s%d, 0x%x' % (sPWO, sPWO, PW_OFF))
    a('s_waitcnt vmcnt(8)')
    L = a.newlabel('w2l'); Lnd = a.newlabel('w2nd'); Lj = a.newlabel('w2j')
    a.label(L)
    a('s_barrier')
    a('s_lshl_b32 s%d, s%d, 15' % (sT0, sSLOT_))
    a('v_add_u32 v%d, s%d, v%d' % (O.T, sT0, O.L16))
    NPRE = 8
    def rd(k): a('ds_read_b128 v[%d:%d], v%d offset:%d' % (O.B + 4 * (k % 16), O.B + 4 * (k % 16) + 3, O.T, k * 1024))
    for k in range(NPRE): rd(k)
    a('s_add_u32 s%d, s%d, 2' % (sOO, sTN))
    a('s_sub_u32 s%d, s%d, 1' % (sT0, sNT))
    a('s_min_u32 s%d, s%d, s%d' % (sOO, sOO, sT0))
    a('s_add_u32 s%d, s%d, 2' % (sN, sSLOT_))
    a('s_cmp_ge_u32 s%d, 3' % sN)
    a('s_cselect_b32 s%d, 3, 0' % sT0)
    a('s_sub_u32 s%d, s%d, s%d' % (sN, sN, sT0))
    wo2_dma_setup(a, sOO, sN, sGX)
    a('s_and_b32 s%d, s%d, %d' % (sT0, sTN, cfg.get('pwmask', 31)))
    a('s_lshl_b32 s%d, s%d, 18' % (sT0, sT0))
    a('s_add_u32 s%d, s%d, s%d' % (sT0, sT0, sPWO))
    for k in range(32):
        a('s_waitcnt lgkmcnt(%d)' % min(NPRE - 1, 31 - k))
        for tau in range(2):
            c = '0' if k == 0 else vr(O.AC + 4 * tau, 4)
            a('v_mfma_f32_16x16x32_bf16 %s, %s, %s, %s' % (vr(O.AC + 4 * tau, 4), ar(wof(k >> 3, tau, k & 7), 4), vr(O.B + 4 * (k % 16), 4), c))
            if tau == 0 and k + NPRE < 32: rd(k + NPRE)
            if tau == 1 and k % 3 == 1 and k // 3 < 8: wo2_dma_one(a, k // 3)
    a('s_add_u32 s%d, s%d, 1' % (sTN, sTN))
    a('s_add_u32 s%d, s%d, 1' % (sSLOT_, sSLOT_))
    a('s_cmp_ge_u32 s%d, 3' % sSLOT_)
    a('s_cselect_b32 s%d, 0, s%d' % (sSLOT_, sSLOT_))
    for tau in range(2):
        a('buffer_store_dwordx4 v[%d:%d], v%d, s[%d:%d], s%d offen offset:%d%s' % (O.AC + 4 * tau, O.AC + 4 * tau + 3, O.L16, sWS, sWS + 3, sT0, tau * 1024, safe))
    a('s_cmp_ge_u32 s%d, s%d' % (sTN, sNT))
    a('s_cbranch_scc1 %s' % Lj)
    a('s_waitcnt vmcnt(10)')
    a.branch('s_branch %s' % L)
    a.label(Lj)
    a('s_waitcnt vmcnt(0)')
    a('s_barrier')
    import fused
    fused.g2mark(a, cfg, 7)
    a('s_lshl_b32 s%d, s%d, 3' % (sT0, sGX))
    a('s_add_u32 s%d, s%d, s%d' % (sT0, sT0, sCG))
    a('s_lshl_b32 s%d, s%d, 7' % (sT0, sT0))
    a('s_add_u32 s%d, s%d, 0x%x' % (sOO, sT0, WP_OFF))
    Lp = a.newlabel('w2p')
    a('s_cmp_lg_u32 s%d, 0' % sW)
    a.branch('s_cbranch_scc1 %s' % Lp)
    a('s_lshl_b32 s%d, s%d, 2' % (sT0, sKQ))
    a('v_mov_b32 v%d, s%d' % (O.T + 1, sT0))
    a('v_mov_b32 v%d, s%d' % (O.T + 2, sNT))
    a('s_mov_b64 exec, 1')
    a('buffer_store_dword v%d, v%d, s[%d:%d], s%d offen%s' % (O.T + 2, O.T + 1, sWS, sWS + 3, sOO, safe))
    a('s_mov_b64 exec, -1')
    a.label(Lp)
    a('s_add_u32 s%d, s%d, s%d' % (sTN, sN0, sW))
    Lf = a.newlabel('w2f'); Le = a.newlabel('w2e'); Lq = a.newlabel('w2q'); Lqd = a.newlabel('w2qd')
    a('s_cmp_ge_u32 s%d, s%d' % (sTN, sNT))
    a.branch('s_cbranch_scc1 %s' % Le)
    global sI
    si_save = sI
    sFC = sSLOT_
    a('s_lshl_b32 s%d, s%d, 2' % (sFC, sCG))
    a('s_add_u32 s%d, s%d, s%d' % (sFC, sFC, sKQ))
    def xg(n_s, par):
        tile_of(a, sT2, n_s, sGX)
        a('s_lshl_b32 s%d, s%d, 15' % (sT0, sT2))
        a('s_lshl_b32 s%d, s%d, 6' % (sT1, sFC))
        a('s_add_u32 s%d, s%d, s%d' % (sT0, sT0, sT1))
        a('buffer_load_dwordx4 v[%d:%d], v%d, s[%d:%d], s%d offen' % (O.XR + 4 * par, O.XR + 4 * par + 3, O.XA, sX, sX + 3, sT0))
        a('s_lshl_b32 s%d, s%d, 6' % (sT0, sT2))
        a('s_add_u32 s%d, s%d, 0x%x' % (sT0, sT0, GL_OFF))
        a('buffer_load_dword v%d, v%d, s[%d:%d], s%d offen sc1' % (O.G + par, O.GA, sWS, sWS + 3, sT0))
    xg(sTN, 0)
    a('s_add_u32 s%d, s%d, 4' % (sN, sTN))
    xg(sN, 1)
    a('v_mov_b32 v%d, 0' % (O.T + 1))
    a.label(Lq)
    a('buffer_load_dwordx4 v[%d:%d], v%d, s[%d:%d], s%d offen sc1' % (O.T + 4, O.T + 7, O.T + 1, sWS, sWS + 3, sOO))
    a('s_waitcnt vmcnt(0)')
    a('v_min3_u32 v%d, v%d, v%d, v%d' % (O.T + 4, O.T + 4, O.T + 5, O.T + 6))
    a('v_min_u32 v%d, v%d, v%d' % (O.T + 4, O.T + 4, O.T + 7))
    a('v_cmp_gt_u32 vcc, s%d, v%d' % (sNT, O.T + 4))
    a('s_cbranch_vccz %s' % Lqd)
    a('s_sleep 1')
    a('s_add_u32 s%d, s%d, 1' % (sSP, sSP))
    a('s_cmp_lt_u32 s%d, 0x%x' % (sSP, SPIN_LIMIT))
    a('s_cbranch_scc1 %s' % Lq)
    a.label(Lqd)
    fused.g2mark(a, cfg, 6)
    for par in range(2):
        tile_of(a, sTILE, sTN, sGX)
        a('s_lshl_b32 s%d, s%d, 23' % (sT0, sGX))
        a('s_and_b32 s%d, s%d, %d' % (sT1, sTN, cfg.get('pwmask', 31)))
        a('s_lshl_b32 s%d, s%d, 18' % (sT1, sT1))
        a('s_add_u32 s%d, s%d, s%d' % (sT0, sT0, sT1))
        a('s_lshl_b32 s%d, s%d, 11' % (sT1, sFC))
        a('s_add_u32 s%d, s%d, s%d' % (sT0, sT0, sT1))
        a('s_add_u32 s%d, s%d, 0x%x' % (sT0, sT0, PW_OFF))
        for kq in range(4):
            for tau in range(2):
                r = O.E + kq * 8 + tau * 4
                a('buffer_load_dwordx4 v[%d:%d], v%d, s[%d:%d], s%d offen offset:%d sc1' % (r, r + 3, O.L16, sWS, sWS + 3, sT0, tau * 1024))
            a('s_add_u32 s%d, s%d, 0x10000' % (sT0, sT0))
        a('s_waitcnt vmcnt(0)')
        sI = sFC
        epilogue(a, par, sTILE, True, lds=False)
        sI = si_save
        if par == 0:
            a('s_add_u32 s%d, s%d, 4' % (sTN, sTN))
            a('s_cmp_ge_u32 s%d, s%d' % (sTN, sNT))
            a.branch('s_cbranch_scc1 %s' % Le)
    a.label(Le)
```

```python
from common import *

sWS, sWQ, sWK, sWV, sWO, sM0, sDBG = 8, 12, 16, 20, 24, 28, 32
sRX, sI, sW, sSTEP, sSPIN, sT0, sT1, sT2, sT3, sH, sJ = 40, 41, 42, 43, 44, 45, 46, 47, 48, 49, 50
sMXR, sMXW, sQKW, sQKR, sOXR, sOXW, sPXR, sPXW, sARC, sKF, sVF = 52, 53, 54, 55, 56, 57, 58, 59, 60, 61, 62
sSLOT, sSLOT2, sC, sA0, sA1, sA2, sA3, sP0, sP1 = 63, 64, 65, 66, 67, 68, 69, 74, 75
vL, vL16, vP8, vDup, vOD, vL8 = 1, 2, 3, 4, 5, 6
vSENT = 8
vT = 12
vSET = 16
vM = 64
vACC = 80
vZ = 128
vR = 144
vMLO, vMHI, vFLO = 156, 157, 158
vTR = 144
vKX = 160
vVX = 192
vS = 200
vP = 212
vVZ = 222
vO = 224
vX = 160
vXR = 224
vXA, vXM, vZERO = 232, 233, 234
sXB = 36
sPX1, sP2, sP3 = 51, 72, 73
sGP = 59
vL16B, vXAB = 7, 236
LDS_B = 0
LDS_D = 12288
LDS_KV = 16384
LDS_TK = 65536
SWITCH = 5

def acc(tile, b): return vACC + (tile * 2 + b) * 4
def wq_frag(tile, T, b): return ((tile * 4 + T) * 2 + b) * 4
def wo_frag(tau, u, b): return 192 + ((tau * 4 + u) * 2 + b) * 4

def check_sent(a, regs, tmp):
    regs = list(regs)
    h = len(regs) // 2
    chains = [(regs[:h], tmp), (regs[h:], tmp + 1)]
    outs = []
    for rg, t in chains:
        seq = ['v_max3_u32 v%d, v%d, v%d, v%d' % (t, rg[0], rg[1], rg[2])]
        k = 3
        while k + 1 < len(rg):
            seq.append('v_max3_u32 v%d, v%d, v%d, v%d' % (t, t, rg[k], rg[k + 1])); k += 2
        if k < len(rg): seq.append('v_max_u32 v%d, v%d, v%d' % (t, t, rg[k]))
        outs.append(seq)
    for x, y in zip(outs[0], outs[1]):
        a(x); a(y)
    a('v_max_u32 v%d, v%d, v%d' % (tmp, tmp, tmp + 1))
    a('v_cmp_eq_u32 vcc, -1, v%d' % tmp)

def delay(a, n):
    if n <= 0: return
    if n >= 4: a('s_sleep %d' % (n // 4))
    for _ in range(n % 4): a('s_nop 3')

def spoll_issue(a, nsets, loads, gap):
    for k in range(nsets):
        for ld in loads(k): a(ld)
        if k < nsets - 1: delay(a, gap)

def spoll(a, nsets, loads, regs, consume, first=0, gap=0, issued=False):
    L = a.newlabel('sp'); J = a.newlabel('spj')
    C = [a.newlabel('spc') for _ in range(nsets)]
    nl = len(loads(0))
    if not issued:
        delay(a, first)
        spoll_issue(a, nsets, loads, gap)
    a.label(L)
    for k in range(nsets):
        a('s_waitcnt vmcnt(%d)' % (nl * (nsets - 1)))
        check_sent(a, regs(k), vT)
        a('s_cbranch_vccz %s' % C[k])
        for ld in loads(k): a(ld)
    a('s_add_u32 s%d, s%d, 1' % (sSPIN, sSPIN))
    a('s_cmp_lt_u32 s%d, 0x%x' % (sSPIN, SPIN_LIMIT))
    a('s_cbranch_scc1 %s' % L)
    a('s_waitcnt vmcnt(0)')
    for k in range(nsets):
        a.label(C[k], fence=False); a.hist = []
        consume(k)
        if k < nsets - 1: a.branch('s_branch %s' % J)
    a.label(J)

def ppoll(a, nb, loads, regs, consume, first=0, issued=False):
    nl = len(loads(0))
    if not issued:
        delay(a, first)
        for T in range(nb):
            for ld in loads(T): a(ld)
    for T in range(nb):
        C = a.newlabel('ppc'); Rr = a.newlabel('ppr'); OK = a.newlabel('ppo')
        a('s_waitcnt vmcnt(%d)' % (nl * (nb - 1 - T)))
        rg = list(regs(T))
        def chk():
            if len(rg) == 4:
                a('v_max3_u32 v%d, v%d, v%d, v%d' % (vT, rg[0], rg[1], rg[2]))
                a('v_max_u32 v%d, v%d, v%d' % (vT, vT, rg[3]))
                a('v_cmp_eq_u32 vcc, -1, v%d' % vT)
            else:
                check_sent(a, rg, vT)
        chk()
        a('s_cbranch_vccz %s' % OK)
        saved = list(a.hist)
        a.label(Rr)
        for T2 in range(T, nb):
            for ld in loads(T2): a(ld)
        a('s_add_u32 s%d, s%d, 1' % (sSPIN, sSPIN))
        a('s_waitcnt vmcnt(%d)' % (nl * (nb - 1 - T)))
        chk()
        a('s_cbranch_vccz %s' % OK)
        a('s_cmp_lt_u32 s%d, 0x%x' % (sSPIN, SPIN_LIMIT))
        a('s_cbranch_scc1 %s' % Rr)
        a.label(OK, fence=False); a.hist = saved
        consume(T)

def combine_pair(a, z, t0, t1):
    for i in range(4):
        a('v_add_f32_dpp v%d, v%d, v%d row_ror:8 row_mask:0xf bank_mask:0x3' % (z + i, acc(t0, 1) + i, acc(t0, 0) + i))
        a('v_add_f32_dpp v%d, v%d, v%d row_ror:8 row_mask:0xf bank_mask:0xc' % (z + i, acc(t1, 0) + i, acc(t1, 1) + i))

def pk_add(a, d, x, y):
    a('v_pk_add_f32 v[%d:%d], v[%d:%d], v[%d:%d]' % (d, d + 1, x, x + 1, y, y + 1))

def reduce3(a, z, ldsbase, w):
    others = [x for x in range(4) if x != w]
    for n, o in enumerate(others):
        a('ds_read_b128 v[%d:%d], v%d offset:%d' % (vR + 4 * n, vR + 4 * n + 3, vL16, ldsbase + o * 1024))
    a('s_waitcnt lgkmcnt(2)')
    pk_add(a, z, z, vR); pk_add(a, z + 2, z + 2, vR + 2)
    a('s_waitcnt lgkmcnt(0)')
    pk_add(a, vR + 4, vR + 4, vR + 8); pk_add(a, vR + 6, vR + 6, vR + 10)
    pk_add(a, z, z, vR + 4); pk_add(a, z + 2, z + 2, vR + 6)

LW = dict(order=0, rdelay=0)
def load_weights(a, with_wo=True):
    a('v_lshrrev_b32 v%d, 2, v%d' % (vT, vL))
    a('v_and_b32 v%d, 3, v%d' % (vT + 1, vL))
    a('v_lshlrev_b32 v%d, 4, v%d' % (vT + 1, vT + 1))
    a('v_lshl_add_u32 v%d, v%d, 13, v%d' % (vT + 2, vT, vT + 1))
    a('v_lshl_add_u32 v%d, v%d, 11, v%d' % (vT + 3, vT, vT + 1))
    def wo():
        a('s_lshl_b32 s%d, s%d, 21' % (sT0, sRX))
        a('s_lshl_b32 s%d, s%d, 19' % (sT1, sW))
        a('s_add_u32 s%d, s%d, s%d' % (sT0, sT0, sT1))
        a('s_lshl_b32 s%d, s%d, 6' % (sT1, sI))
        a('s_add_u32 s%d, s%d, s%d' % (sT0, sT0, sT1))
        for n in range(16):
            a('buffer_load_dwordx4 a[%d:%d], v%d, s[%d:%d], s%d offen' % (192 + 4 * n, 192 + 4 * n + 3, vT + 3, sWO, sWO + 3, sT0))
            if n < 15: a('s_add_u32 s%d, s%d, 0x8000' % (sT0, sT0))
    if with_wo and LW['order'] & 1:
        wo()
        for _ in range(LW['rdelay']): a('s_sleep 32')
    a('s_lshl_b32 s%d, s%d, 21' % (sT2, sW))
    a('s_lshl_b32 s%d, s%d, 8' % (sT1, sH))
    a('s_add_u32 s%d, s%d, s%d' % (sT2, sT2, sT1))
    a('s_lshl_b32 s%d, s%d, 6' % (sT1, sJ))
    a('s_add_u32 s%d, s%d, s%d' % (sT2, sT2, sT1))
    if LW['order'] & 2:
        for M, srd in ((1, sWK), (2, sWV), (0, sWQ)):
            a('s_mov_b32 s%d, s%d' % (sT0, sT2))
            for n in range(16):
                a('buffer_load_dwordx4 a[%d:%d], v%d, s[%d:%d], s%d offen' % (64 * M + 4 * n, 64 * M + 4 * n + 3, vT + 2, srd, srd + 3, sT0))
                if n < 15: a('s_add_u32 s%d, s%d, 0x20000' % (sT0, sT0))
    else:
        a('s_mov_b32 s%d, s%d' % (sT0, sT2))
        for n in range(16):
            for M, srd in enumerate((sWQ, sWK, sWV)):
                a('buffer_load_dwordx4 a[%d:%d], v%d, s[%d:%d], s%d offen' % (64 * M + 4 * n, 64 * M + 4 * n + 3, vT + 2, srd, srd + 3, sT0))
            if n < 15: a('s_add_u32 s%d, s%d, 0x20000' % (sT0, sT0))
    if with_wo and not (LW['order'] & 1): wo()

def rstamp(a, k):
    a('s_memrealtime s[%d:%d]' % (80 + 2 * k, 81 + 2 * k))

def tr_setup(a):
    a('s_lshl_b32 s%d, s%d, 14' % (sT0, sW))
    a('v_add_u32 v%d, s%d, v%d' % (vTR, sT0, vL16))
    a('v_lshrrev_b32 v%d, 4, v%d' % (vT, vL))
    a('v_bfe_u32 v%d, v%d, 2, 2' % (vT + 1, vL))
    a('v_and_b32 v%d, 3, v%d' % (vT + 2, vL))
    a('v_lshl_add_u32 v%d, v%d, 4, v%d' % (vT + 3, vT, vT + 1))
    a('v_lshlrev_b32 v%d, 6, v%d' % (vT + 3, vT + 3))
    a('v_lshl_add_u32 v%d, v%d, 3, v%d' % (vT + 3, vT + 2, vT + 3))
    a('v_add_u32 v%d, s%d, v%d' % (vTR + 1, sT0, vT + 3))
    a('v_lshl_add_u32 v%d, v%d, 2, v%d' % (vT + 3, vT, vT + 1))
    a('v_lshlrev_b32 v%d, 6, v%d' % (vT + 3, vT + 3))
    a('v_lshl_add_u32 v%d, v%d, 4, v%d' % (vT + 3, vT + 2, vT + 3))
    a('v_add_u32 v%d, s%d, v%d' % (vTR + 2, sT0, vT + 3))

def tr_matrix(a, M):
    for n in range(16):
        a('ds_write_b128 v%d, a[%d:%d] offset:%d' % (vTR, 64 * M + 4 * n, 64 * M + 4 * n + 3, n * 1024))
    a('s_waitcnt lgkmcnt(0)')
    for tau in range(2):
        for T in range(4):
            for b in range(2):
                for half in range(2):
                    if M < 3:
                        r = wq_frag(2 * M + tau, T, b) + 2 * half
                        off = (64 * T + 8 * b + 4 * half) * 64 + tau * 32
                        a('ds_read_b64_tr_b16 a[%d:%d], v%d offset:%d' % (r, r + 1, vTR + 1, off))
                    else:
                        r = wo_frag(tau, T, b) + 2 * half
                        off = (32 * (2 * T + b) + 16 * half) * 64 + tau * 8
                        a('ds_read_b64_tr_b16 a[%d:%d], v%d offset:%d' % (r, r + 1, vTR + 2, off))
    a('s_waitcnt lgkmcnt(0)')

def transpose_weights(a, with_wo=True, st=False):
    tr_setup(a)
    if LW['order'] == 3 and with_wo:
        for n, M in enumerate((3, 1, 2, 0)):
            a('s_waitcnt vmcnt(%d)' % (48 - 16 * n))
            if st and n == 3: rstamp(a, 1)
            tr_matrix(a, M)
        return
    a('s_waitcnt vmcnt(0)')
    if st: rstamp(a, 1)
    for M in range(4 if with_wo else 3): tr_matrix(a, M)

def lane_consts(a):
    a('v_and_b32 v%d, 63, v0' % vL)
    a('v_lshlrev_b32 v%d, 4, v%d' % (vL16, vL))
    a('v_lshlrev_b32 v%d, 3, v%d' % (vL8, vL))
    a('v_lshrrev_b32 v%d, 4, v%d' % (vT, vL))
    a('v_and_b32 v%d, 7, v%d' % (vT + 1, vL))
    a('v_bfe_u32 v%d, v%d, 3, 1' % (vT + 2, vL))
    a('v_lshl_add_u32 v%d, v%d, 3, v%d' % (vT + 3, vT, vT + 1))
    a('v_lshlrev_b32 v%d, 4, v%d' % (vDup, vT + 3))
    a('v_lshl_add_u32 v%d, v%d, 3, v%d' % (vP8, vT + 2, vDup))
    a('v_lshl_add_u32 v%d, v%d, 9, v%d' % (vOD, vT + 2, vDup))
    for i in range(4): a('v_mov_b32 v%d, -1' % (vSENT + i))
    a('v_cmp_gt_u32 vcc, 32, v%d' % vL)
    a('v_cndmask_b32 v%d, 0, -1, vcc' % vMLO)
    a('v_cndmask_b32 v%d, -1, 0, vcc' % vMHI)
    a('v_cndmask_b32 v%d, 0, 1.0, vcc' % vFLO)

def mark(a, cfg, k):
    if not cfg.get('prof'): return
    if cfg['prof'] == 3:
        if k not in (1, 2, 9, 100, 101, 102, 103, 104, 105, 106, 107): return
        if k >= 100: k = k - 100 + 3 if k < 104 else k - 104 + 10
        a('s_memtime s[76:77]')
        a('s_cmp_eq_u32 s%d, %d' % (sSTEP, cfg.get('pstep', 21)))
        a('s_waitcnt lgkmcnt(0)')
        a('s_cselect_b32 s%d, s76, s%d' % (80 + k, 80 + k))
        return
    if k >= 100: return
    if cfg['prof'] == 2:
        a('s_memrealtime s[76:77]')
        a('s_cmp_eq_u32 s%d, %d' % (sSTEP, 20 if k > 1 else 21))
        a('s_waitcnt lgkmcnt(0)')
        a('s_cselect_b32 s%d, s76, s%d' % (80 + k, 80 + k))
        return
    a('s_memtime s[76:77]')
    a('s_waitcnt lgkmcnt(0)')
    a('s_sub_u32 s78, s76, s79')
    a('s_add_u32 s%d, s%d, s78' % (80 + k, 80 + k))
    a('s_mov_b32 s79, s76')

def px_slot(a, dst, slotreg, base):
    a('s_lshr_b32 s%d, s%d, 1' % (sT3, slotreg))
    a('s_lshl_b32 s%d, s%d, 14' % (sT3, sT3))
    a('s_add_u32 s%d, s%d, s%d' % (sT3, sT3, base))
    a('s_and_b32 s%d, s%d, 1' % (dst, slotreg))
    a('s_lshl_b32 s%d, s%d, 12' % (dst, dst))
    a('s_add_u32 s%d, s%d, s%d' % (dst, dst, sT3))

def slot_off(a, dst, slotreg, shift, base):
    a('s_lshl_b32 s%d, s%d, %d' % (dst, slotreg, shift))
    a('s_add_u32 s%d, s%d, s%d' % (dst, dst, base))

SAFE = [False]
def st(a, regs, n, vaddr, soff, sc1=False):
    sc1 = sc1 or SAFE[0]
    a('buffer_store_dword%s %s, v%d, s[%d:%d], s%d offen%s' % ('x%d' % n if n > 1 else '', vr(regs, n), vaddr, sWS, sWS + 3, soff, ' sc1' if sc1 else ''))

def read_choice(a, cfg, bases):
    L = a.newlabel('ch'); D = a.newlabel('chd')
    a('v_mov_b32 v%d, 132' % (vT + 1))
    a.label(L)
    a('buffer_load_dword v%d, v%d, s[%d:%d], 0 offen sc1' % (vT, vT + 1, sDBG, sDBG + 3))
    a('s_waitcnt vmcnt(0)')
    a('v_readfirstlane_b32 s%d, v%d' % (sT0, vT))
    a('s_cmp_lg_u32 s%d, 0' % sT0)
    a('s_cbranch_scc1 %s' % D)
    a('s_add_u32 s%d, s%d, 1' % (sSPIN, sSPIN))
    a('s_cmp_lt_u32 s%d, 0x%x' % (sSPIN, SPIN_LIMIT))
    a('s_cbranch_scc1 %s' % L)
    a.label(D)
    if 'forcesel' in cfg: a('s_mov_b32 s%d, %d' % (sT0, cfg['forcesel']))
    a('s_and_b32 s%d, s%d, 1' % (sT1, sT0))
    a('s_lshl_b32 s%d, s%d, 13' % (sT1, sT1))
    a('s_add_u32 s%d, s%d, s%d' % (sPXR, sPXR, sT1))
    a('s_and_b32 s%d, s%d, 2' % (sT1, sT0))
    a('s_lshl_b32 s%d, s%d, 12' % (sT1, sT1))
    a('s_add_u32 s%d, s%d, s%d' % (sPX1, sPX1, sT1))

def phase_bc_old(a, w, cfg, Lend):
    g = cfg.get
    fused = g('fused', 0)
    mb = vSET + 64
    mb = vM
    def ml(T): return ['buffer_load_dwordx4 v[%d:%d], v%d, s[%d:%d], s%d offen offset:%d sc1' % (mb + 4 * T, mb + 4 * T + 3, vL16, sWS, sWS + 3, sA0, T * 1024)]
    def mc(T):
        if T == 3: mark(a, cfg, 3)
        mark(a, cfg, 100 + T)
        for tile in range(4):
            for b in range(2):
                c = '0' if T == 0 else vr(acc(tile, b), 4)
                a('v_mfma_f32_16x16x32_bf16 %s, %s, %s, %s' % (vr(acc(tile, b), 4), ar(wq_frag(tile, T, b), 4), vr(mb + 4 * T, 4), c))
    ppoll(a, 4, ml, lambda T: range(mb + 4 * T, mb + 4 * T + 4), mc, g('dly_m', 0))
    for i in range(4):
        a('v_add_f32_dpp v%d, v%d, v%d row_ror:8 row_mask:0xf bank_mask:0x3' % (vZ + i, acc(0, 1) + i, acc(0, 0) + i))
    for i in range(4):
        a('v_add_f32_dpp v%d, v%d, v%d row_ror:8 row_mask:0xf bank_mask:0xc' % (vZ + i, acc(1, 0) + i, acc(1, 1) + i))
    if w != 0: a('ds_write_b128 v%d, v[%d:%d] offset:%d' % (vL16, vZ, vZ + 3, LDS_B + w * 1024))
    for i in range(4):
        a('v_add_f32_dpp v%d, v%d, v%d row_ror:8 row_mask:0xf bank_mask:0x3' % (vZ + 4 + i, acc(2, 1) + i, acc(2, 0) + i))
    for i in range(4):
        a('v_add_f32_dpp v%d, v%d, v%d row_ror:8 row_mask:0xf bank_mask:0xc' % (vZ + 4 + i, acc(3, 0) + i, acc(3, 1) + i))
    if w != 1: a('ds_write_b128 v%d, v[%d:%d] offset:%d' % (vL16, vZ + 4, vZ + 7, LDS_B + 4096 + w * 1024))
    a('s_waitcnt lgkmcnt(0)')
    mark(a, cfg, 4)
    a('s_barrier')
    mark(a, cfg, 5)
    if w in (0, 1):
        z = vZ + 4 * w
        reduce3(a, z, LDS_B + 4096 * w, w)
        a('v_cvt_pk_bf16_f32 v%d, v%d, v%d' % (z, z, z + 1))
        a('v_cvt_pk_bf16_f32 v%d, v%d, v%d' % (z + 1, z + 2, z + 3))
        a('v_min_u32 v%d, -2, v%d' % (z, z))
        a('v_min_u32 v%d, -2, v%d' % (z + 1, z + 1))
        st(a, z, 2, vP8, sA2)
        st(a, vSENT, 2, vL8, sA3)
        if w == 1:
            slot_off(a, sT0, sSTEP, 16, sARC)
            st(a, z, 2, vP8, sT0, True)
    def qkl(c):
        return ['buffer_load_dwordx4 v[%d:%d], v%d, s[%d:%d], s%d offen offset:%d sc1' % (vSET + 8 * c + 4 * x, vSET + 8 * c + 4 * x + 3, vDup, sWS, sWS + 3, sT2, x * 2048 + c * 512) for x in range(2)]
    n = 0
    qk_at = g('qk_at', 16)
    for tile in (4, 5):
        for T in range(4):
            for b in range(2):
                if w == 3 and n >= qk_at and (n - qk_at) < 8 and (n - qk_at) % 2 == 0:
                    for ld in qkl((n - qk_at) // 2): a(ld)
                c = '0' if T == 0 else vr(acc(tile, b), 4)
                a('v_mfma_f32_16x16x32_bf16 %s, %s, %s, %s' % (vr(acc(tile, b), 4), vr(mb + 4 * T, 4), ar(wq_frag(tile, T, b), 4), c))
                n += 1
    qk_done = max(0, min(4, (16 - qk_at + 1) // 2))
    for i in range(4):
        a('v_permlane32_swap_b32 v%d, v%d' % (acc(4, 0) + i, acc(5, 0) + i))
        a('v_permlane32_swap_b32 v%d, v%d' % (acc(4, 1) + i, acc(5, 1) + i))
    for i in range(4):
        a('v_add_f32 v%d, v%d, v%d' % (vZ + 8 + i, acc(4, 0) + i, acc(5, 1) + i))
    a('ds_write_b128 v%d, v[%d:%d] offset:%d' % (vL16, vZ + 8, vZ + 11, LDS_B + 8192 + w * 1024))
    if w == 3:
        if qk_done < 4: delay(a, g('dly_qk', 0))
        for c in range(qk_done, 4):
            for ld in qkl(c): a(ld)
    a('s_waitcnt lgkmcnt(0)')
    mark(a, cfg, 6)
    a('s_barrier')
    mark(a, cfg, 7)
    if w in (2, 3):
        reduce3(a, vZ + 8, LDS_B + 8192, w)
        a('v_cvt_pk_bf16_f32 v%d, v%d, v%d' % (vZ + 8 if w == 2 else vVZ, vZ + 8, vZ + 9))
        a('v_cvt_pk_bf16_f32 v%d, v%d, v%d' % (vZ + 9 if w == 2 else vVZ + 1, vZ + 10, vZ + 11))
    if w == 2:
        slot_off(a, sT0, sSTEP, 16, sARC)
        st(a, vZ + 8, 2, vL8, sT0, True)
    a('s_cmp_eq_u32 s%d, 63' % sSTEP)
    a.branch('s_cbranch_scc1 %s' % Lend)
    if w == 2:
        a('s_add_u32 s%d, s%d, 0x40000' % (sKF, sKF))
        a('s_add_u32 s%d, s%d, 0x40000' % (sVF, sVF))
        if fused: ensure_gp(a, sSTEP, 2)
        prefetch_dma(a, fused)
    if w == 3:
        if fused:
            L0 = a.newlabel('kv0')
            a('s_cmp_lg_u32 s%d, 0' % sSTEP)
            a.branch('s_cbranch_scc1 %s' % L0)
            a('s_mov_b32 s%d, s%d' % (sP0, sT2))
            ensure_gp(a, None, 1)
            prefetch_kv(a, True)
            a('s_mov_b32 s%d, s%d' % (sT2, sP0))
            a('s_waitcnt vmcnt(0)')
            a.label(L0)
        def qkc(c):
            qb = vSET + 8 * c; ka = qb + 4
            if c == 3: mark(a, cfg, 8)
            for t, A in ((0, vKX + 4 * c), (1, vKX + 16 + 4 * c), (2, ka)):
                cc = '0' if c == 0 else vr(vS + 4 * t, 4)
                a('v_mfma_f32_16x16x32_bf16 %s, %s, %s, %s' % (vr(vS + 4 * t, 4), vr(A, 4), vr(qb, 4), cc))
        ppoll(a, 4, qkl, lambda c: range(vSET + 8 * c, vSET + 8 * c + 8), qkc, issued=True)
        m, t2 = vT, vT + 1
        a('v_max3_f32 v%d, v%d, v%d, v%d' % (m, vS, vS + 1, vS + 2))
        a('v_max3_f32 v%d, v%d, v%d, v%d' % (t2, vS + 3, vS + 4, vS + 5))
        a('v_max3_f32 v%d, v%d, v%d, v%d' % (m, m, vS + 6, vS + 7))
        a('v_max3_f32 v%d, v%d, v%d, v%d' % (t2, t2, vS + 8, vS + 9))
        a('v_max3_f32 v%d, v%d, v%d, v%d' % (m, m, vS + 10, vS + 11))
        a('v_max_f32 v%d, v%d, v%d' % (m, m, t2))
        a('v_mov_b32 v%d, v%d' % (t2, m))
        a('v_permlane16_swap_b32 v%d, v%d' % (m, t2))
        a('v_max_f32 v%d, v%d, v%d' % (m, m, t2))
        a('v_mov_b32 v%d, v%d' % (t2, m))
        a('v_permlane32_swap_b32 v%d, v%d' % (m, t2))
        a('v_max_f32 v%d, v%d, v%d' % (m, m, t2))
        a('v_mul_f32 v%d, s%d, v%d' % (m, sC, m))
        for i in range(12):
            a('v_fma_f32 v%d, v%d, s%d, -v%d' % (vS + i, vS + i, sC, m))
            if i >= 1: a('v_exp_f32 v%d, v%d' % (vS + i - 1, vS + i - 1))
        a('v_exp_f32 v%d, v%d' % (vS + 11, vS + 11))
        for i in range(4):
            a('v_cvt_pk_bf16_f32 v%d, v%d, v%d' % (vP + i, vS + 2 * i, vS + 2 * i + 1))
        for i in range(4, 6):
            a('v_cvt_pk_bf16_f32 v%d, v%d, v%d' % (vP + i, vS + 2 * i, vS + 2 * i + 1))
        a('v_mfma_f32_16x16x32_bf16 %s, %s, %s, 0' % (vr(vO, 4), vr(vVX, 4), vr(vP, 4)))
        a('v_and_b32 v%d, v%d, v%d' % (vP + 6, vP + 4, vMLO))
        a('v_and_b32 v%d, v%d, v%d' % (vP + 7, vP + 5, vMLO))
        a('v_mfma_f32_16x16x32_bf16 %s, %s, %s, 0' % (vr(vO + 4, 4), vr(vVX + 4, 4), vr(vP, 4)))
        a('v_and_b32 v%d, v%d, v%d' % (vP + 8, vP + 4, vMHI))
        a('v_and_b32 v%d, v%d, v%d' % (vP + 9, vP + 5, vMHI))
        a('v_mfma_f32_16x16x16_bf16 %s, %s, %s, %s' % (vr(vO, 4), vr(vVZ, 2), vr(vP + 6, 2), vr(vO, 4)))
        sA, sB = vT, vT + 1
        pk_add(a, vS + 8, vS + 8, vS + 10)
        pk_add(a, vS, vS, vS + 2)
        a('v_mfma_f32_16x16x16_bf16 %s, %s, %s, %s' % (vr(vO + 4, 4), vr(vVZ, 2), vr(vP + 8, 2), vr(vO + 4, 4)))
        pk_add(a, vS + 4, vS + 4, vS + 6)
        a('v_add_f32 v%d, v%d, v%d' % (sB, vS + 8, vS + 9))
        pk_add(a, vS, vS, vS + 4)
        a('v_add_f32 v%d, v%d, v%d' % (sA, vS, vS + 1))
        a('v_fma_f32 v%d, v%d, v%d, v%d' % (sA, sB, vFLO, sA))
        a('v_mov_b32 v%d, v%d' % (sB, sA))
        a('v_permlane16_swap_b32 v%d, v%d' % (sA, sB))
        a('v_add_f32 v%d, v%d, v%d' % (sA, sA, sB))
        a('v_mov_b32 v%d, v%d' % (sB, sA))
        a('v_permlane32_swap_b32 v%d, v%d' % (sA, sB))
        a('v_add_f32 v%d, v%d, v%d' % (sA, sA, sB))
        a('v_rcp_f32 v%d, v%d' % (sA, sA))
        a('v_mov_b32 v%d, v%d' % (sB, sA))
        for i in range(4):
            a('v_pk_mul_f32 v[%d:%d], v[%d:%d], v[%d:%d]' % (vO + 2 * i, vO + 2 * i + 1, vO + 2 * i, vO + 2 * i + 1, sA, sB))
        for i in range(4):
            a('v_cvt_pk_bf16_f32 v%d, v%d, v%d' % (vO + i, vO + 2 * i, vO + 2 * i + 1))
        for i in range(4):
            a('v_min_u32 v%d, -2, v%d' % (vO + i, vO + i))
        st(a, vO, 4, vDup, sA2)
        st(a, vSENT, 2, vL8, sA3)

def phase_bc_eq(a, w, cfg, Lend):
    g = cfg.get
    fused = g('fused', 0)
    mb = vM
    vMX, vSX = 237, 238
    def ml(T): return ['buffer_load_dwordx4 v[%d:%d], v%d, s[%d:%d], s%d offen offset:%d sc1' % (mb + 4 * T, mb + 4 * T + 3, vL16, sWS, sWS + 3, sA0, T * 1024)]
    def mf(tile, T, b):
        c = '0' if T == 0 else vr(acc(tile, b), 4)
        W = ar(wq_frag(tile, T, b), 4); M = vr(mb + 4 * T, 4)
        return 'v_mfma_f32_16x16x32_bf16 %s, %s, %s, %s' % (vr(acc(tile, b), 4), W if tile < 4 else M, M if tile < 4 else W, c)
    def mc(T):
        if T == 3: mark(a, cfg, 3)
        for tile in range(2):
            for b in range(2): a(mf(tile, T, b))
    ppoll(a, 4, ml, lambda T: range(mb + 4 * T, mb + 4 * T + 4), mc, g('dly_m', 0))
    def qkl(n):
        return ['buffer_load_dwordx4 v[%d:%d], v%d, s[%d:%d], s%d offen offset:%d sc1' % (vSET + 4 * n, vSET + 4 * n + 3, vDup, sWS, sWS + 3, sT2, n * 512)]
    def stream(t0, pt0, z, ldsoff, red_wave, extra):
        fill = {k: [] for k in range(16)}
        dpp = []
        for i in range(4): dpp.append('v_add_f32_dpp v%d, v%d, v%d row_ror:8 row_mask:0xf bank_mask:0x3' % (z + i, acc(pt0, 1) + i, acc(pt0, 0) + i))
        for i in range(4): dpp.append('v_add_f32_dpp v%d, v%d, v%d row_ror:8 row_mask:0xf bank_mask:0xc' % (z + i, acc(pt0 + 1, 0) + i, acc(pt0 + 1, 1) + i))
        for n, x in enumerate(dpp): fill[1 + n // 3].append(x)
        if w != red_wave: fill[4].append('ds_write_b128 v%d, v[%d:%d] offset:%d' % (vL16, z, z + 3, ldsoff + w * 1024))
        fill[6] += ['s_waitcnt lgkmcnt(0)', 's_barrier']
        if w == red_wave:
            others = [x for x in range(4) if x != w]
            for n, o in enumerate(others):
                fill[6].append('ds_read_b128 v[%d:%d], v%d offset:%d' % (vR + 4 * n, vR + 4 * n + 3, vL16, ldsoff + o * 1024))
            pk = lambda d, x, y: 'v_pk_add_f32 v[%d:%d], v[%d:%d], v[%d:%d]' % (d, d + 1, x, x + 1, y, y + 1)
            fill[9] += ['s_waitcnt lgkmcnt(0)', pk(z, z, vR), pk(z + 2, z + 2, vR + 2), pk(vR + 4, vR + 4, vR + 8), pk(vR + 6, vR + 6, vR + 10)]
            fill[10] += [pk(z, z, vR + 4), pk(z + 2, z + 2, vR + 6), 'v_cvt_pk_bf16_f32 v%d, v%d, v%d' % (z, z, z + 1), 'v_cvt_pk_bf16_f32 v%d, v%d, v%d' % (z + 1, z + 2, z + 3)]
            fill[11] += ['v_min_u32 v%d, -2, v%d' % (z, z), 'v_min_u32 v%d, -2, v%d' % (z + 1, z + 1), ('st', z)]
        for k, x in extra.items(): fill[k] += x
        n = 0
        for T in range(4):
            for tile in (t0, t0 + 1):
                for b in range(2):
                    a(mf(tile, T, b))
                    for x in fill[n]:
                        if isinstance(x, tuple):
                            st(a, z, 2, vP8, sA2); st(a, vSENT, 2, vL8, sA3)
                            if w == 1:
                                slot_off(a, sT0, sSTEP, 16, sARC)
                                st(a, z, 2, vP8, sT0, True)
                        else: a(x)
                    n += 1
    stream(2, 0, vZ, LDS_B, 0, {})
    mark(a, cfg, 5)
    q_at = g('q_at', 8)
    ex = {}
    if w == 3:
        for c in range(4): ex.setdefault(min(15, q_at + c), []).extend(qkl(c))
    stream(4, 2, vZ + 4, LDS_B + 4096, 1, ex)
    for i in range(4):
        a('v_permlane32_swap_b32 v%d, v%d' % (acc(4, 0) + i, acc(5, 0) + i))
        a('v_permlane32_swap_b32 v%d, v%d' % (acc(4, 1) + i, acc(5, 1) + i))
    for i in range(4):
        a('v_add_f32 v%d, v%d, v%d' % (vZ + 8 + i, acc(4, 0) + i, acc(5, 1) + i))
    a('ds_write_b128 v%d, v[%d:%d] offset:%d' % (vL16, vZ + 8, vZ + 11, LDS_B + 8192 + w * 1024))
    a('s_waitcnt lgkmcnt(0)')
    mark(a, cfg, 6)
    a('s_barrier')
    mark(a, cfg, 7)
    if w == 3:
        delay(a, g('dly_k', 0))
        for c in range(4, 8):
            for ld in qkl(c): a(ld)
    if w in (2, 3):
        reduce3(a, vZ + 8, LDS_B + 8192, w)
        a('v_cvt_pk_bf16_f32 v%d, v%d, v%d' % (vZ + 8 if w == 2 else vVZ, vZ + 8, vZ + 9))
        a('v_cvt_pk_bf16_f32 v%d, v%d, v%d' % (vZ + 9 if w == 2 else vVZ + 1, vZ + 10, vZ + 11))
    if w == 2:
        slot_off(a, sT0, sSTEP, 16, sARC)
        st(a, vZ + 8, 2, vL8, sT0, True)
    a('s_cmp_eq_u32 s%d, 63' % sSTEP)
    a.branch('s_cbranch_scc1 %s' % Lend)
    if w == 2:
        a('s_add_u32 s%d, s%d, 0x40000' % (sKF, sKF))
        a('s_add_u32 s%d, s%d, 0x40000' % (sVF, sVF))
        if fused: ensure_gp(a, sSTEP, 2)
        prefetch_dma(a, fused)
    if w != 3: return
    if fused:
        L0 = a.newlabel('kv0')
        a('s_cmp_lg_u32 s%d, 0' % sSTEP)
        a.branch('s_cbranch_scc1 %s' % L0)
        a('s_mov_b32 s%d, s%d' % (sP0, sT2))
        ensure_gp(a, None, 1)
        prefetch_kv(a, True)
        a('s_mov_b32 s%d, s%d' % (sT2, sP0))
        a('s_waitcnt vmcnt(0)')
        a.label(L0)
    t2 = vT + 2; t3 = vT + 3
    def qkc(n):
        if n < 4:
            for t, A in ((0, vKX + 4 * n), (1, vKX + 16 + 4 * n)):
                a('v_mfma_f32_16x16x32_bf16 %s, %s, %s, %s' % (vr(vS + 4 * t, 4), vr(A, 4), vr(vSET + 4 * n, 4), '0' if n == 0 else vr(vS + 4 * t, 4)))
        else:
            c = n - 4
            if c == 3: mark(a, cfg, 8)
            a('v_mfma_f32_16x16x32_bf16 %s, %s, %s, %s' % (vr(vS + 8, 4), vr(vSET + 4 * n, 4), vr(vSET + 4 * c, 4), '0' if c == 0 else vr(vS + 8, 4)))
        if n == 3:
            a('v_max3_f32 v%d, v%d, v%d, v%d' % (vMX, vS, vS + 1, vS + 2))
            a('v_max3_f32 v%d, v%d, v%d, v%d' % (t2, vS + 3, vS + 4, vS + 5))
            a('v_max3_f32 v%d, v%d, v%d, v%d' % (vMX, vMX, vS + 6, vS + 7))
            a('v_max_f32 v%d, v%d, v%d' % (vMX, vMX, t2))
            for sw in ('v_permlane16_swap_b32', 'v_permlane32_swap_b32'):
                a('v_mov_b32 v%d, v%d' % (t2, vMX))
                a('%s v%d, v%d' % (sw, vMX, t2))
                a('v_max_f32 v%d, v%d, v%d' % (vMX, vMX, t2))
            a('v_mul_f32 v%d, s%d, v%d' % (vMX, sC, vMX))
            for i in range(8):
                a('v_fma_f32 v%d, v%d, s%d, -v%d' % (vS + i, vS + i, sC, vMX))
                if i >= 1: a('v_exp_f32 v%d, v%d' % (vS + i - 1, vS + i - 1))
            a('v_exp_f32 v%d, v%d' % (vS + 7, vS + 7))
            for i in range(4): a('v_cvt_pk_bf16_f32 v%d, v%d, v%d' % (vP + i, vS + 2 * i, vS + 2 * i + 1))
            pk_add(a, vS, vS, vS + 2)
            a('v_mfma_f32_16x16x32_bf16 %s, %s, %s, 0' % (vr(vO, 4), vr(vVX, 4), vr(vP, 4)))
            pk_add(a, vS + 4, vS + 4, vS + 6)
            a('v_mfma_f32_16x16x32_bf16 %s, %s, %s, 0' % (vr(vO + 4, 4), vr(vVX + 4, 4), vr(vP, 4)))
            pk_add(a, vS, vS, vS + 4)
            a('v_add_f32 v%d, v%d, v%d' % (vSX, vS, vS + 1))
            for sw in ('v_permlane16_swap_b32', 'v_permlane32_swap_b32'):
                a('v_mov_b32 v%d, v%d' % (t2, vSX))
                a('%s v%d, v%d' % (sw, vSX, t2))
                a('v_add_f32 v%d, v%d, v%d' % (vSX, vSX, t2))
    ppoll(a, 8, qkl, lambda n: range(vSET + 4 * n, vSET + 4 * n + 4), qkc, issued=True)
    m = vT; al = vT + 1
    a('v_max3_f32 v%d, v%d, v%d, v%d' % (m, vS + 8, vS + 9, vS + 10))
    a('v_max_f32 v%d, v%d, v%d' % (m, m, vS + 11))
    a('v_mov_b32 v%d, v%d' % (t2, m))
    a('v_permlane16_swap_b32 v%d, v%d' % (m, t2))
    a('v_max_f32 v%d, v%d, v%d' % (m, m, t2))
    a('v_mul_f32 v%d, s%d, v%d' % (m, sC, m))
    a('v_max_f32 v%d, v%d, v%d' % (m, m, vMX))
    for i in range(4): a('v_fma_f32 v%d, v%d, s%d, -v%d' % (vS + 8 + i, vS + 8 + i, sC, m))
    a('v_sub_f32 v%d, v%d, v%d' % (al, vMX, m))
    for i in range(4): a('v_exp_f32 v%d, v%d' % (vS + 8 + i, vS + 8 + i))
    a('v_exp_f32 v%d, v%d' % (al, al))
    a('v_cvt_pk_bf16_f32 v%d, v%d, v%d' % (vP + 4, vS + 8, vS + 9))
    a('v_cvt_pk_bf16_f32 v%d, v%d, v%d' % (vP + 5, vS + 10, vS + 11))
    a('v_and_b32 v%d, v%d, v%d' % (vP + 6, vP + 4, vMLO))
    a('v_and_b32 v%d, v%d, v%d' % (vP + 7, vP + 5, vMLO))
    a('v_and_b32 v%d, v%d, v%d' % (vP + 8, vP + 4, vMHI))
    a('v_and_b32 v%d, v%d, v%d' % (vP + 9, vP + 5, vMHI))
    a('v_mfma_f32_16x16x16_bf16 %s, %s, %s, 0' % (vr(vS, 4), vr(vVZ, 2), vr(vP + 6, 2)))
    pk_add(a, vS + 8, vS + 8, vS + 10)
    a('v_mfma_f32_16x16x16_bf16 %s, %s, %s, 0' % (vr(vS + 4, 4), vr(vVZ, 2), vr(vP + 8, 2)))
    a('v_add_f32 v%d, v%d, v%d' % (m, vS + 8, vS + 9))
    a('v_mov_b32 v%d, v%d' % (t2, m))
    a('v_permlane16_swap_b32 v%d, v%d' % (m, t2))
    a('v_add_f32 v%d, v%d, v%d' % (m, m, t2))
    a('v_fma_f32 v%d, v%d, v%d, v%d' % (m, vSX, al, m))
    a('v_rcp_f32 v%d, v%d' % (t2, m))
    a('v_mul_f32 v%d, v%d, v%d' % (m, al, t2))
    a('v_mov_b32 v%d, v%d' % (t3, t2))
    a('v_mov_b32 v%d, v%d' % (al, m))
    for i in range(4):
        a('v_pk_mul_f32 v[%d:%d], v[%d:%d], v[%d:%d]' % (vO + 2 * i, vO + 2 * i + 1, vO + 2 * i, vO + 2 * i + 1, m, al))
    for i in range(4):
        a('v_pk_fma_f32 v[%d:%d], v[%d:%d], v[%d:%d], v[%d:%d]' % (vO + 2 * i, vO + 2 * i + 1, vS + 2 * i, vS + 2 * i + 1, t2, t3, vO + 2 * i, vO + 2 * i + 1))
    for i in range(4): a('v_cvt_pk_bf16_f32 v%d, v%d, v%d' % (vO + i, vO + 2 * i, vO + 2 * i + 1))
    for i in range(4): a('v_min_u32 v%d, -2, v%d' % (vO + i, vO + i))
    st(a, vO, 4, vDup, sA2)
    st(a, vSENT, 2, vL8, sA3)

def wave_loop(a, w, cfg):
    Lloop = 'r_loop_w%d' % w
    Lend = 'r_end_w%d' % w
    g = cfg.get
    a('s_lshl_b32 s%d, s%d, 16' % (sT0, sRX))
    a('s_add_u32 s%d, s%d, 0x%x' % (sMXR, sT0, MX_OFF + w * 4096))
    a('s_lshl_b32 s%d, s%d, 9' % (sT1, sI))
    a('s_add_u32 s%d, s%d, s%d' % (sT2, sT0, sT1))
    a('s_add_u32 s%d, s%d, 0x%x' % (sMXW, sT2, MX_OFF))
    a('s_add_u32 s%d, s%d, 0x%x' % (sOXR, sT0, OX_OFF + w * 4096))
    a('s_add_u32 s%d, s%d, 0x%x' % (sOXW, sT2, OX_OFF))
    a('s_lshl_b32 s%d, s%d, 17' % (sT0, sRX))
    a('s_lshr_b32 s%d, s%d, 2' % (sT1, sI))
    a('s_lshl_b32 s%d, s%d, 12' % (sT1, sT1))
    a('s_add_u32 s%d, s%d, s%d' % (sT0, sT0, sT1))
    a('s_add_u32 s%d, s%d, 0x%x' % (sQKR, sT0, QKX_OFF))
    a('s_lshl_b32 s%d, s%d, 9' % (sT1, sJ))
    a('s_add_u32 s%d, s%d, s%d' % (sQKW, sQKR, sT1))
    if w == 1: a('s_add_u32 s%d, s%d, 2048' % (sQKW, sQKW))
    a('s_lshl_b32 s%d, s%d, 16' % (sT0, sI))
    a('s_add_u32 s%d, s%d, 0x%x' % (sPXR, sT0, PX_OFF))
    if w == 0:
        a('s_lshl_b32 s%d, s%d, 10' % (sT1, sRX))
        a('s_add_u32 s%d, s%d, s%d' % (sPXR, sPXR, sT1))
    a('s_add_u32 s%d, s%d, 0x%x' % (sPX1, sPXR, 2 * MB))
    a('v_add_u32 v%d, 0x1000, v%d' % (vL16B, vL16))
    a('s_lshl_b32 s%d, s%d, 11' % (sT0, sH))
    a('s_lshl_b32 s%d, s%d, 9' % (sT1, sJ))
    a('s_add_u32 s%d, s%d, s%d' % (sT0, sT0, sT1))
    a('s_add_u32 s%d, s%d, 0x%x' % (sARC, sT0, KM_OFF if w == 1 else VM_OFF))
    a('s_lshl_b32 s%d, s%d, 13' % (sT0, sH))
    a('s_add_u32 s%d, s%d, 0x%x' % (sKF, sT0, KF_OFF))
    a('s_lshl_b32 s%d, s%d, 11' % (sT1, sJ))
    a('s_add_u32 s%d, s%d, s%d' % (sT0, sT0, sT1))
    a('s_add_u32 s%d, s%d, 0x%x' % (sVF, sT0, VF_OFF))
    a('s_mov_b32 s%d, 0x%x' % (sC, cfg['cbits']))
    a('s_mov_b32 s%d, 0x7fffffff' % sP0)
    a('s_mov_b32 s%d, 0x7fffffff' % sP1)
    a('s_mov_b32 s%d, 0x7fffffff' % sP2)
    a('s_mov_b32 s%d, 0x7fffffff' % sP3)
    for slot in range(4):
        if w in (0, 1):
            a('s_add_u32 s%d, s%d, 0x%x' % (sT0, sQKW, slot * 32768)); st(a, vSENT, 2, vL8, sT0)
        if w == 0:
            for reg in range(2 if g('xcopy', 1) else 1):
                for q4 in (range(4) if g('xcopy', 1) else (0, 2)):
                    a('s_add_u32 s%d, s%d, 0x%x' % (sT0, sPXR, reg * 2 * MB + slot * 16384 + q4 * 4096)); st(a, vSENT, 4, vL16, sT0, True)
        if w == 2:
            a('s_add_u32 s%d, s%d, 0x%x' % (sT0, sMXW, slot * 16384)); st(a, vSENT, 2, vL8, sT0)
        if w == 3:
            a('s_add_u32 s%d, s%d, 0x%x' % (sT0, sOXW, slot * 16384)); st(a, vSENT, 2, vL8, sT0)
    fused = g('fused', 0)
    if w == 3 and not fused:
        prefetch_kv(a)
    if w == 0 and fused:
        a('s_lshl_b32 s%d, s%d, 8' % (sT0, sH))
        a('s_lshl_b32 s%d, s%d, 2' % (sT1, sJ))
        a('s_add_u32 s%d, s%d, s%d' % (sT0, sT0, sT1))
        a('s_add_u32 s%d, s%d, 0x%x' % (sARC, sT0, PROG_OFF))
        publish_prog(a, None, 0)
    if w in (1, 2):
        xa = w - 1
        a('v_add_u32 v%d, %d, v%d' % (vT, 64 * xa, vL))
        a('v_lshlrev_b32 v%d, 3, v%d' % (vXA, vT))
        a('v_add_u32 v%d, 0x1000, v%d' % (vXAB, vXA))
        a('v_lshrrev_b32 v%d, 1, v%d' % (vT + 1, vT))
        a('v_and_b32 v%d, 7, v%d' % (vT + 2, vT + 1))
        a('v_lshrrev_b32 v%d, 4, v%d' % (vT + 3, vT + 1))
        a('v_lshl_add_u32 v%d, v%d, 3, v%d' % (vXM, vT + 3, vT + 2))
        a('v_lshlrev_b32 v%d, 4, v%d' % (vXM, vXM))
        a('v_bfe_u32 v%d, v%d, 3, 1' % (vT + 3, vT + 1))
        a('v_lshl_add_u32 v%d, v%d, 3, v%d' % (vXM, vT + 3, vXM))
        a('v_and_b32 v%d, 1, v%d' % (vT + 3, vL))
        a('v_lshl_add_u32 v%d, v%d, 2, v%d' % (vXM, vT + 3, vXM))
        a('v_lshrrev_b32 v%d, 3, v%d' % (vT + 1, vT + 1))
        a('v_lshlrev_b32 v%d, 3, v%d' % (vT + 1, vT + 1))
        a('v_lshl_add_u32 v%d, v%d, 2, v%d' % (vT + 1, vT + 3, vT + 1))
        a('v_lshl_add_u32 v%d, v%d, 11, v%d' % (vT, vT + 2, vT + 1))
        a('s_lshl_b32 s%d, s%d, 6' % (sT0, sI))
        a('buffer_load_dword v%d, v%d, s[%d:%d], s%d offen' % (vXR, vT, sM0, sM0 + 3, sT0))
        a('v_mov_b32 v%d, 0' % vZERO)
        a('v_mov_b32 v%d, 0' % (vZERO + 1))
    a('s_waitcnt vmcnt(0)')
    a('s_barrier')
    if w == 0:
        dbg_arrive(a, sDBG, DB_INIT2 if g('safe') else DB_INIT, vR)
    if g('st3'): rstamp(a, 0)
    load_weights(a)
    if g('st3'): rstamp(a, 4)
    transpose_weights(a, st=g('st3'))
    if g('st3'): rstamp(a, 2)
    a('s_barrier')
    if fused:
        init_wait(a, sDBG, cfg, vT, sSPIN, sT0)
    elif w == 0:
        dbg_wait(a, sDBG, DB_INIT, 128, vT, sSPIN)
    a('s_mov_b32 s%d, 0' % sGP)
    a('s_barrier')
    a('s_mov_b32 s%d, 0' % sSTEP)
    if g('stamp'): a('s_memrealtime s[70:71]')
    if g('prof'):
        for k in range(16): a('s_mov_b32 s%d, 0' % (80 + k))
        a('s_memtime s[76:77]')
        a('s_waitcnt lgkmcnt(0)')
        a('s_mov_b32 s79, s76')
    a.label(Lloop)
    a('s_and_b32 s%d, s%d, 3' % (sSLOT, sSTEP))
    a('s_add_u32 s%d, s%d, 2' % (sSLOT2, sSTEP))
    a('s_and_b32 s%d, s%d, 3' % (sSLOT2, sSLOT2))
    slot_off(a, sA0, sSLOT, 14, sMXR)
    slot_off(a, sA1, sSLOT, 14, sOXR)
    if w in (1, 2):
        Lpub = a.newlabel('apub'); Lns = a.newlabel('nosw')
        slot_off(a, sA2, sSLOT, 14, sMXW)
        slot_off(a, sA3, sSLOT2, 14, sMXW)
        a('s_cmp_eq_u32 s%d, 0' % sSTEP)
        a.branch('s_cbranch_scc1 %s' % Lpub)
        a('s_cmp_lg_u32 s%d, %d' % (sSTEP, SWITCH))
        a.branch('s_cbranch_scc1 %s' % Lns)
        read_choice(a, cfg, None)
        a.label(Lns)
        for reg, base in ((0, sPXR), (1, sPX1)):
            slot_off(a, sT0, sSLOT, 14, base)
            a('s_add_u32 s%d, s%d, s%d' % (sXB + 2 * reg, sWS, sT0))
            a('s_addc_u32 s%d, s%d, 0' % (sXB + 2 * reg + 1, sWS + 1))
        def xl(k):
            cp = k if g('xcopy', 1) else 0
            return ['global_load_dwordx2 v[%d:%d], v%d, s[%d:%d] offset:%d sc1' % (vX + 8 * k + 2 * p, vX + 8 * k + 2 * p + 1, vXAB if cp & 1 else vXA, sXB + 2 * (cp >> 1), sXB + 2 * (cp >> 1) + 1, p * 1024) for p in range(4)]
        def xc(k):
            b = vX + 8 * k
            pk_add(a, b, b, b + 2); pk_add(a, b + 4, b + 4, b + 6)
            pk_add(a, b, b, b + 4)
            a('v_cvt_pk_bf16_f32 v%d, v%d, v%d' % (vXR, b, b + 1))
        spoll(a, g('ns_x', 4), xl, lambda k: range(vX + 8 * k, vX + 8 * k + 8), xc, g('dly_x', 0), g('gap_x', 8))
        mark(a, cfg, 0)
        a.label(Lpub)
        a('v_min_u32 v%d, -2, v%d' % (vXR, vXR))
        st(a, vXR, 1, vXM, sA2)
        st(a, vSENT, 1, vXM, sA3)
    if w in (0, 1):
        slot_off(a, sA2, sSLOT, 15, sQKW)
        slot_off(a, sA3, sSLOT2, 15, sQKW)
    if w == 3:
        slot_off(a, sA2, sSLOT, 14, sOXW)
        slot_off(a, sA3, sSLOT2, 14, sOXW)
        slot_off(a, sT2, sSLOT, 15, sQKR)
    mark(a, cfg, 1)
    a('s_barrier')
    mark(a, cfg, 2)
    mb = vM
    if g('eq', 0):
        phase_bc_eq(a, w, cfg, Lend)
    else:
        phase_bc_old(a, w, cfg, Lend)
    if w == 0:
        if fused: publish_prog(a, sSTEP, 0)
        Lns = a.newlabel('nosw')
        a('s_cmp_lg_u32 s%d, %d' % (sSTEP, SWITCH - 1))
        a.branch('s_cbranch_scc1 %s' % Lns)
        read_choice(a, cfg, None)
        a.label(Lns)
        a('s_add_u32 s%d, s%d, 1' % (sT2, sSTEP))
        a('s_and_b32 s%d, s%d, 3' % (sT2, sT2))
        slot_off(a, sA2, sT2, 14, sPXR)
        slot_off(a, sA3, sT2, 14, sPX1)
        a('s_add_u32 s%d, s%d, 3' % (sT2, sSTEP))
        a('s_and_b32 s%d, s%d, 3' % (sT2, sT2))
        slot_off(a, sXB, sT2, 14, sPXR)
        slot_off(a, sXB + 1, sT2, 14, sPX1)
        K = g('ns_x', 4) if g('xcopy', 1) else 1
        for cp in range(K): st(a, vSENT, 4, vL16B if cp & 1 else vL16, sXB + (cp >> 1), True)
    mark(a, cfg, 9)
    a('s_barrier')
    mark(a, cfg, 10)
    def ol(u): return ['buffer_load_dwordx4 v[%d:%d], v%d, s[%d:%d], s%d offen offset:%d sc1' % (mb + 4 * u, mb + 4 * u + 3, vOD, sWS, sWS + 3, sA1, u * 1024)]
    def oc(u):
        if u == 3: mark(a, cfg, 11)
        mark(a, cfg, 104 + u)
        for tau in range(2):
            for b in range(2):
                c = '0' if u == 0 else vr(acc(tau, b), 4)
                a('v_mfma_f32_16x16x32_bf16 %s, %s, %s, %s' % (vr(acc(tau, b), 4), ar(wo_frag(tau, u, b), 4), vr(mb + 4 * u, 4), c))
    ppoll(a, 4, ol, lambda u: range(mb + 4 * u, mb + 4 * u + 4), oc, g('dly_o', 0))
    for i in range(4):
        a('v_add_f32_dpp v%d, v%d, v%d row_ror:8 row_mask:0xf bank_mask:0x3' % (vZ + 12 + i, acc(0, 1) + i, acc(0, 0) + i))
    for i in range(4):
        a('v_add_f32_dpp v%d, v%d, v%d row_ror:8 row_mask:0xf bank_mask:0xc' % (vZ + 12 + i, acc(1, 0) + i, acc(1, 1) + i))
    if w != 0: a('ds_write_b128 v%d, v[%d:%d] offset:%d' % (vL16, vZ + 12, vZ + 15, LDS_D + w * 1024))
    a('s_waitcnt lgkmcnt(0)')
    mark(a, cfg, 12)
    a('s_barrier')
    mark(a, cfg, 13)
    if w == 0:
        z = vZ + 12
        reduce3(a, z, LDS_D, 0)
        for i in range(4): a('v_min_u32 v%d, -2, v%d' % (z + i, z + i))
        K = g('ns_x', 4) if g('xcopy', 1) else 1
        for cp in range(K): st(a, z, 4, vL16B if cp & 1 else vL16, sA2 + (cp >> 1), True)
    if w == 0:
        Lnp = a.newlabel('noprobe'); Lpb = a.newlabel('pubch')
        a('s_or_b32 s%d, s%d, s%d' % (sT0, sRX, sI))
        a('s_cmp_lg_u32 s%d, 0' % sT0)
        a.branch('s_cbranch_scc1 %s' % Lnp)
        a('s_cmp_gt_u32 s%d, 3' % sSTEP)
        a.branch('s_cbranch_scc1 %s' % Lnp)
        a('s_cmp_eq_u32 s%d, 3' % sSTEP)
        a.branch('s_cbranch_scc1 %s' % Lpb)
        a('s_waitcnt vmcnt(0)')
        a('s_sleep 2')
        a('s_mov_b32 s%d, s%d' % (sA2, sXB))
        for n in range(2):
            a('s_add_u32 s%d, s%d, %d' % (sT1, sSTEP, n))
            a('s_and_b32 s%d, s%d, 1' % (sT1, sT1))
            a('s_lshl_b32 s%d, s%d, 13' % (sT0, sT1))
            a('s_add_u32 s%d, s%d, s%d' % (sT0, sT0, sA2))
            a('s_memtime s[96:97]')
            a('s_waitcnt lgkmcnt(0)')
            st(a, vSENT, 4, vL16, sT0, True)
            a('s_waitcnt vmcnt(0)')
            a('s_memtime s[98:99]')
            a('s_waitcnt lgkmcnt(0)')
            a('s_sub_u32 s%d, s98, s96' % sT3)
            for cnd, reg in enumerate((sP0, sP1, sP2, sP3)):
                a('s_min_u32 s%d, s%d, s%d' % (sT0, reg, sT3))
                a('s_cmp_eq_u32 s%d, %d' % (sT1, cnd))
                a('s_cselect_b32 s%d, s%d, s%d' % (reg, sT0, reg))
        a.branch('s_branch %s' % Lnp)
        a.label(Lpb)
        a('s_cmp_lt_u32 s%d, s%d' % (sP1, sP0))
        a('s_cselect_b32 s%d, 5, 4' % sT0)
        a('s_cmp_lt_u32 s%d, s%d' % (sP3, sP2))
        a('s_cselect_b32 s%d, 2, 0' % sT1)
        a('s_or_b32 s%d, s%d, s%d' % (sT0, sT0, sT1))
        a('v_mov_b32 v%d, s%d' % (vT, sT0))
        a('v_mov_b32 v%d, 132' % (vT + 1))
        a('s_mov_b64 exec, 1')
        a('buffer_store_dword v%d, v%d, s[%d:%d], 0 offen sc1' % (vT, vT + 1, sDBG, sDBG + 3))
        a('s_mov_b64 exec, -1')
        a.label(Lnp)
    if w == 3:
        for n in range(10):
            a('ds_read_b128 v[%d:%d], v%d offset:%d' % (vKX + 4 * n, vKX + 4 * n + 3, vL16, LDS_KV + n * 1024))
    if g('tl') and w == 3:
        Lt = a.newlabel('tl')
        a('s_or_b32 s%d, s%d, s%d' % (sT0, sRX, sI))
        a('s_cmp_lg_u32 s%d, 0' % sT0)
        a.branch('s_cbranch_scc1 %s' % Lt)
        a('s_memrealtime s[96:97]')
        a('s_memtime s[98:99]')
        a('s_waitcnt lgkmcnt(0)')
        a('v_mov_b32 v%d, s96' % vT)
        a('v_mov_b32 v%d, s98' % (vT + 1))
        a('v_mov_b32 v%d, 0' % (vT + 2))
        a('s_lshl_b32 s%d, s%d, 3' % (sT0, sSTEP))
        a('s_add_u32 s%d, s%d, 0x%x' % (sT0, sT0, MISC_OFF + 196608))
        a('s_mov_b64 exec, 1')
        a('buffer_store_dwordx2 v[%d:%d], v%d, s[%d:%d], s%d offen' % (vT, vT + 1, vT + 2, sWS, sWS + 3, sT0))
        a('s_mov_b64 exec, -1')
        a.label(Lt)
    a('s_add_u32 s%d, s%d, 1' % (sSTEP, sSTEP))
    mark(a, cfg, 14)
    a.branch('s_branch %s' % Lloop)
    a.label(Lend)
    if fused:
        a('s_waitcnt vmcnt(0)')
        a('s_barrier')
        if w == 0: publish_prog(a, None, 64)
    if g('prof'):
        a('s_mov_b32 s95, s%d' % sSPIN)
        a('s_lshl_b32 s%d, s%d, 5' % (sT0, sRX))
        a('s_add_u32 s%d, s%d, s%d' % (sT0, sT0, sI))
        a('s_lshl_b32 s%d, s%d, 8' % (sT0, sT0))
        a('s_add_u32 s%d, s%d, 0x%x' % (sT0, sT0, MISC_OFF + 4096 + w * 64))
        a('v_mov_b32 v%d, 0' % (vT + 2))
        a('s_mov_b64 exec, 1')
        for k in range(16):
            a('v_mov_b32 v%d, s%d' % (vT, 80 + k))
            a('buffer_store_dword v%d, v%d, s[%d:%d], s%d offen offset:%d' % (vT, vT + 2, sWS, sWS + 3, sT0, 4 * k))
        a('s_mov_b64 exec, -1')
    if g('st3') and w == 0:
        a('s_lshl_b32 s%d, s%d, 5' % (sT0, sRX))
        a('s_add_u32 s%d, s%d, s%d' % (sT0, sT0, sI))
        a('s_lshl_b32 s%d, s%d, 5' % (sT0, sT0))
        a('s_add_u32 s%d, s%d, 0x%x' % (sT0, sT0, MISC_OFF + 262144))
        a('v_mov_b32 v%d, 0' % (vT + 2))
        a('s_mov_b64 exec, 1')
        for k in range(5):
            a('v_mov_b32 v%d, s%d' % (vT, 80 + 2 * k))
            a('buffer_store_dword v%d, v%d, s[%d:%d], s%d offen offset:%d' % (vT, vT + 2, sWS, sWS + 3, sT0, 4 * k))
        a('s_mov_b64 exec, -1')
    if g('stamp') and w == 0:
        a('s_memrealtime s[72:73]')
        a('s_waitcnt lgkmcnt(0)')
        a('s_sub_u32 s72, s72, s70')
        a('v_mov_b32 v%d, s72' % vT)
        a('v_mov_b32 v%d, s70' % (vT + 1))
        a('s_lshl_b32 s%d, s%d, 5' % (sT0, sRX))
        a('s_add_u32 s%d, s%d, s%d' % (sT0, sT0, sI))
        a('s_lshl_b32 s%d, s%d, 3' % (sT0, sT0))
        a('s_add_u32 s%d, s%d, 0x%x' % (sT0, sT0, MISC_OFF))
        a('v_mov_b32 v%d, 0' % (vT + 2))
        a('s_mov_b64 exec, 1')
        a('buffer_store_dwordx2 v[%d:%d], v%d, s[%d:%d], s%d offen' % (vT, vT + 1, vT + 2, sWS, sWS + 3, sT0))
    a('s_endpgm')

def archive_v(a):
    slot_off(a, sT0, sSTEP, 16, sARC)
    st(a, vVZ, 2, vL8, sT0, True)

def publish_prog(a, sreg, add):
    if sreg is None: a('v_mov_b32 v%d, %d' % (vT, add))
    else:
        a('s_add_u32 s%d, s%d, %d' % (sT0, sreg, add))
        a('v_mov_b32 v%d, s%d' % (vT, sT0))
    a('v_mov_b32 v%d, 0' % (vT + 1))
    a('s_mov_b64 exec, 1')
    a('buffer_store_dword v%d, v%d, s[%d:%d], s%d offen sc1' % (vT, vT + 1, sWS, sWS + 3, sARC))
    a('s_mov_b64 exec, -1')

def ensure_gp(a, sreg, add):
    L = a.newlabel('gp'); D = a.newlabel('gpd')
    if sreg is None: a('s_mov_b32 s%d, %d' % (sT2, add))
    else: a('s_add_u32 s%d, s%d, %d' % (sT2, sreg, add))
    a('s_min_u32 s%d, s%d, 64' % (sT2, sT2))
    a('s_lshl_b32 s%d, s%d, 8' % (sT1, sH))
    a('s_add_u32 s%d, s%d, 0x%x' % (sT1, sT1, GP_OFF))
    a('v_mov_b32 v%d, 0' % vT)
    a.label(L)
    a('s_cmp_ge_u32 s%d, s%d' % (sGP, sT2))
    a('s_cbranch_scc1 %s' % D)
    a('buffer_load_dwordx4 v[%d:%d], v%d, s[%d:%d], s%d offen sc1' % (vR, vR + 3, vT, sWS, sWS + 3, sT1))
    a('s_waitcnt vmcnt(0)')
    a('v_min3_u32 v%d, v%d, v%d, v%d' % (vR, vR, vR + 1, vR + 2))
    a('v_min_u32 v%d, v%d, v%d' % (vR, vR, vR + 3))
    a('v_readfirstlane_b32 s%d, v%d' % (sGP, vR))
    a('s_add_u32 s%d, s%d, 1' % (sSPIN, sSPIN))
    a('s_cmp_lt_u32 s%d, 0x%x' % (sSPIN, SPIN_LIMIT))
    a('s_cbranch_scc1 %s' % L)
    a.label(D)

def prefetch_dma(a, sc1=False):
    a('s_add_u32 s%d, s%d, 4096' % (sT0, sKF))
    for grp, (so, n) in enumerate(((sKF, 4), (sT0, 4), (sVF, 2))):
        a('s_mov_b32 m0, %d' % (LDS_KV + grp * 4096))
        for c in range(n):
            a('buffer_load_dwordx4 v%d, s[%d:%d], s%d offen offset:%d%s lds' % (vL16, sWS, sWS + 3, so, c * 1024, ' sc1' if sc1 else ''))

def prefetch_kv(a, sc1=False):
    a('s_add_u32 s%d, s%d, 4096' % (sT0, sKF))
    for tt in range(2):
        for c in range(4):
            r = vKX + 16 * tt + 4 * c
            a('buffer_load_dwordx4 v[%d:%d], v%d, s[%d:%d], s%d offen offset:%d%s' % (r, r + 3, vL16, sWS, sWS + 3, sKF if tt == 0 else sT0, c * 1024, ' sc1' if sc1 else ''))
    for e in range(2):
        a('buffer_load_dwordx4 v[%d:%d], v%d, s[%d:%d], s%d offen offset:%d%s' % (vVX + 4 * e, vVX + 4 * e + 3, vL16, sWS, sWS + 3, sVF, e * 1024, ' sc1' if sc1 else ''))

def r_body(a, cfg):
    a('s_lshr_b32 s%d, s%d, 2' % (sH, sI))
    a('s_lshl_b32 s%d, s%d, 3' % (sT0, sRX))
    a('s_add_u32 s%d, s%d, s%d' % (sH, sH, sT0))
    a('s_and_b32 s%d, s%d, 3' % (sJ, sI))
    for w in range(1, 4):
        a('s_cmp_eq_u32 s%d, %d' % (sW, w))
        a.branch('s_cbranch_scc1 r_wave%d' % w)
    for w in range(4):
        a.label('r_wave%d' % w)
        wave_loop(a, w, cfg)

def gen_r_kernel(name, cfg):
    a = Asm()
    a.raw(kernel_header(name))
    Lexit = 'r_exit'
    a('s_cmp_ge_u32 s2, 256')
    a('s_cbranch_scc1 %s' % Lexit)
    build_srds(a, dict(ws=sWS, wq=sWQ, wk=sWK, wv=sWV, wo=sWO, mem0=sM0, dbg=sDBG))
    a('s_getreg_b32 s%d, hwreg(HW_REG_XCC_ID)' % sRX)
    a('s_and_b32 s%d, s%d, 7' % (sRX, sRX))
    a('s_cmp_ge_u32 s%d, 4' % sRX)
    a('s_cbranch_scc1 %s' % Lexit)
    a('s_mov_b32 s%d, 0' % sSPIN)
    lane_consts(a)
    a('v_lshrrev_b32 v%d, 6, v0' % vT)
    a('v_readfirstlane_b32 s%d, v%d' % (sW, vT))
    Lt = a.newlabel('tk')
    a('s_cmp_lg_u32 s%d, 0' % sW)
    a.branch('s_cbranch_scc1 %s' % Lt)
    a('v_mov_b32 v%d, 1' % vT)
    a('s_lshl_b32 s%d, s%d, 2' % (sT0, sRX))
    a('v_mov_b32 v%d, s%d' % (vT + 1, sT0))
    a('v_mov_b32 v%d, %d' % (vT + 2, LDS_TK))
    a('s_mov_b64 exec, 1')
    a('buffer_atomic_add v%d, v%d, s[%d:%d], 0 offen sc0 sc1' % (vT, vT + 1, sDBG, sDBG + 3))
    a('s_waitcnt vmcnt(0)')
    a('ds_write_b32 v%d, v%d' % (vT + 2, vT))
    a('s_waitcnt lgkmcnt(0)')
    a('s_mov_b64 exec, -1')
    a.label(Lt)
    a('s_barrier')
    a('v_mov_b32 v%d, %d' % (vT + 2, LDS_TK))
    a('ds_read_b32 v%d, v%d' % (vT, vT + 2))
    a('s_waitcnt lgkmcnt(0)')
    a('v_readfirstlane_b32 s%d, v%d' % (sI, vT))
    a('s_cmp_ge_u32 s%d, 32' % sI)
    a.branch('s_cbranch_scc1 %s' % Lexit)
    r_body(a, cfg)
    a.label(Lexit)
    a('s_endpgm')
    return a.text()
```

```python
from common import *
import rrole as R, g1role as G1, prerole as P, g2role as G2, modrole as M

sGX, sGI, sGW, sGC = 92, 93, 94, 95
sNA, sNW, sAV, sAA, sSP = 88, 89, 54, 55, 44
sDBG = 32
sPREO = 91
sDID = 58
LDS_CTL = 98304

def gp_addr(a, dst):
    a('s_lshr_b32 s%d, s%d, 2' % (dst, sGC))
    a('s_lshl_b32 s%d, s%d, 8' % (dst, dst))
    a('s_and_b32 s%d, s%d, 3' % (R.sT3, sGC))
    a('s_lshl_b32 s%d, s%d, 2' % (R.sT3, R.sT3))
    a('s_add_u32 s%d, s%d, s%d' % (dst, dst, R.sT3))
    a('s_add_u32 s%d, s%d, 0x%x' % (dst, dst, GP_OFF))

def g_body(a, cfg):
    Ln = a.newlabel('gi')
    a('s_cmp_lg_u32 s%d, 0' % sGW)
    a.branch('s_cbranch_scc1 %s' % Ln)
    a('s_lshl_b32 s%d, s%d, 2' % (R.sT0, sGC))
    a('s_add_u32 s%d, s%d, 0x%x' % (R.sT2, R.sT0, AP_OFF))
    gp_addr(a, R.sT1)
    a('v_mov_b32 v12, 0')
    a('s_mov_b64 exec, 1')
    a('buffer_store_dword v12, v12, s[%d:%d], s%d offen sc1' % (R.sWS, R.sWS + 3, R.sT1))
    a('buffer_store_dword v12, v12, s[%d:%d], s%d offen sc1' % (R.sWS, R.sWS + 3, R.sT2))
    a('s_and_b32 s%d, s%d, 7' % (R.sT0, sGI))
    a('s_lshl_b32 s%d, s%d, 3' % (R.sT1, sGX))
    a('s_add_u32 s%d, s%d, s%d' % (R.sT0, R.sT0, R.sT1))
    a('s_lshl_b32 s%d, s%d, 7' % (R.sT0, R.sT0))
    a('s_lshr_b32 s%d, s%d, 3' % (R.sT1, sGI))
    a('s_lshl_b32 s%d, s%d, 2' % (R.sT1, R.sT1))
    a('s_add_u32 s%d, s%d, s%d' % (R.sT0, R.sT0, R.sT1))
    a('s_add_u32 s%d, s%d, 0x%x' % (R.sT0, R.sT0, WP_OFF))
    a('buffer_store_dword v12, v12, s[%d:%d], s%d offen sc1' % (R.sWS, R.sWS + 3, R.sT0))
    a('s_mov_b64 exec, -1')
    a('s_waitcnt vmcnt(0)')
    dbg_arrive(a, sDBG, DB_INIT2 if cfg.get('safe') else DB_INIT, 12)
    a.label(Ln)
    a('s_lshl_b32 s%d, s%d, 2' % (sPREO, sGX))
    a('s_add_u32 s%d, s%d, %d' % (sPREO, sPREO, DB_PRE2 if cfg.get('safe') else DB_PRE))
    P.sX, P.sGW, P.sWR = 24, 28, 36
    P.sW, P.sC = sGW, sGC
    build_srds(a, dict(x=P.sX, gw=P.sGW, wr=P.sWR))
    a('s_lshr_b32 s%d, s%d, 2' % (R.sH, sGC))
    a('s_and_b32 s%d, s%d, 3' % (R.sJ, sGC))
    a('s_mov_b32 s%d, s%d' % (R.sW, sGW))
    G1.XFL[0] = ' sc1'
    gp_addr(a, G1.sGPA)
    G1.fast_start(a, cfg)
    if cfg.get('st2'): stamp(a, cfg, 3)
    a('s_mov_b32 s%d, %d' % (G1.sSEG, G1.NPB))
    a('s_mov_b32 s%d, 64' % G1.sEND)
    for w in range(1, 4):
        a('s_cmp_eq_u32 s%d, %d' % (sGW, w))
        a.branch('s_cbranch_scc1 fg1_wave%d' % w)
    for w in range(4):
        a.label('fg1_wave%d' % w)
        G1.g1_wave(a, w, cfg, 'fg1')
        a.branch('s_branch fg1_join')
    G1.g1_side(a, cfg)
    a.label('fg1_join')
    if not cfg.get('st2'): stamp(a, cfg, 1)
    build_srds(a, dict(wo=G2.sWO, x=G2.sX, out=G2.sOUT))
    G2.sI, G2.sW = sGI, sGW
    G2.out_consts(a)
    G2.out_load_weights(a, 2)
    dbg_wait_wg(a, sDBG, DB_M2, 128, 8, sSP, sGW)
    Lg = a.newlabel('g65'); Lgd = a.newlabel('g65d')
    a('v_mov_b32 v8, 0')
    a('s_lshl_b32 s%d, s%d, 8' % (R.sT1, sGI))
    a('s_add_u32 s%d, s%d, 0x%x' % (R.sT1, R.sT1, GP_OFF))
    a.label(Lg)
    a('buffer_load_dwordx4 v[12:15], v8, s[%d:%d], s%d offen sc1' % (R.sWS, R.sWS + 3, R.sT1))
    a('s_waitcnt vmcnt(0)')
    a('v_min3_u32 v12, v12, v13, v14')
    a('v_min_u32 v12, v12, v15')
    a('v_cmp_gt_u32 vcc, 65, v12')
    a('s_cbranch_vccz %s' % Lgd)
    a('s_sleep 4')
    a('s_add_u32 s%d, s%d, 1' % (sSP, sSP))
    a('s_cmp_lt_u32 s%d, 0x%x' % (sSP, SPIN_LIMIT))
    a('s_cbranch_scc1 %s' % Lg)
    a.label(Lgd)
    a('s_mov_b32 s%d, 0x%x' % (R.sT0, IDX_OFF))
    a('buffer_load_dwordx2 v[10:11], v8, s[%d:%d], s%d offen sc1' % (R.sWS, R.sWS + 3, R.sT0))
    a('s_waitcnt vmcnt(0)')
    a('v_readfirstlane_b32 s%d, v10' % G2.sIDX0)
    a('v_readfirstlane_b32 s%d, v11' % G2.sIDX1)
    a('s_mov_b32 s%d, 0' % sNA)
    a('s_mov_b32 s%d, 0' % sNW)
    a('s_barrier')
    if not cfg.get('st2'): stamp(a, cfg, 3)
    if cfg.get('g2prof'):
        for k in range(8): a('s_mov_b32 s%d, 0' % (66 + k))
        a('s_memtime s[76:77]')
        a('s_waitcnt lgkmcnt(0)')
        a('s_mov_b32 s79, s76')
    a.label('g2_loop')
    a('s_mov_b32 s%d, 0' % sDID)
    Lc = a.newlabel('ctl')
    a('s_cmp_lg_u32 s%d, 0' % sGW)
    a.branch('s_cbranch_scc1 %s' % Lc)
    a('v_and_b32 v8, 31, v0')
    a('v_lshlrev_b32 v8, 2, v8')
    a('v_and_b32 v9, 3, v0')
    a('v_lshlrev_b32 v9, 2, v9')
    a('s_lshl_b32 s%d, s%d, 7' % (R.sT0, sGX))
    a('s_add_u32 s%d, s%d, 0x%x' % (R.sT0, R.sT0, AP_OFF))
    a('s_lshl_b32 s%d, s%d, 8' % (R.sT1, sGI))
    a('s_add_u32 s%d, s%d, 0x%x' % (R.sT1, R.sT1, PROG_OFF))
    a('buffer_load_dword v10, v8, s[%d:%d], s%d offen sc1' % (R.sWS, R.sWS + 3, R.sT0))
    a('buffer_load_dword v11, v9, s[%d:%d], s%d offen sc1' % (R.sWS, R.sWS + 3, R.sT1))
    a('s_waitcnt vmcnt(0)')
    for sh in (1, 2, 4, 8):
        a('v_min_u32_dpp v10, v10, v10 row_ror:%d row_mask:0xf bank_mask:0xf' % sh)
        if sh < 4: a('v_min_u32_dpp v11, v11, v11 row_ror:%d row_mask:0xf bank_mask:0xf' % sh)
    a('v_mov_b32 v12, v10')
    a('v_permlane16_swap_b32 v10, v12')
    a('v_min_u32 v10, v10, v12')
    a('v_mov_b32 v12, %d' % LDS_CTL)
    a('ds_write_b64 v12, v[10:11]')
    a('s_waitcnt lgkmcnt(0)')
    a.label(Lc)
    a('s_barrier')
    a('v_mov_b32 v12, %d' % LDS_CTL)
    a('ds_read_b64 v[10:11], v12')
    a('s_waitcnt lgkmcnt(0)')
    a('v_readfirstlane_b32 s%d, v10' % sAA)
    a('v_readfirstlane_b32 s%d, v11' % sAV)
    a('s_barrier')
    g2mark(a, cfg, 0)
    a('s_add_u32 s%d, s%d, 3' % (sAV, sAV))
    a('s_sub_u32 s%d, s%d, s%d' % (sAV, sAV, sGX))
    a('s_lshr_b32 s%d, s%d, 2' % (sAV, sAV))
    Lna = a.newlabel('noattn'); Lnt = a.newlabel('notask'); Lnw = a.newlabel('nowo'); Lpa = a.newlabel('nopub')
    a('s_cmp_le_u32 s%d, s%d' % (sAV, sNA))
    a.branch('s_cbranch_scc1 %s' % Lna)
    a('s_add_u32 s%d, s%d, 4' % (R.sT0, sNA))
    a('s_min_u32 s%d, s%d, s%d' % (sAV, sAV, R.sT0))
    a('s_add_u32 s%d, s%d, s%d' % (R.sT0, sNA, sGW))
    a('s_cmp_ge_u32 s%d, s%d' % (R.sT0, sAV))
    a.branch('s_cbranch_scc1 %s' % Lnt)
    a('s_lshl_b32 s%d, s%d, 2' % (R.sT0, R.sT0))
    a('s_add_u32 s%d, s%d, s%d' % (R.sT0, R.sT0, sGX))
    a('s_lshl_b32 s%d, s%d, 5' % (R.sT0, R.sT0))
    a('s_add_u32 s%d, s%d, s%d' % (G2.sTASK, R.sT0, sGI))
    G2.attn_consts(a, cfg)
    G2.attn_task(a, cfg, all_sc1=True, st_flags=' sc1' if cfg.get('safe') else '')
    a('s_waitcnt vmcnt(0)')
    a.label(Lnt)
    a('s_barrier')
    a('s_mov_b32 s%d, s%d' % (sNA, sAV))
    a('s_mov_b32 s%d, 1' % sDID)
    a('s_cmp_lg_u32 s%d, 0' % sGW)
    a.branch('s_cbranch_scc1 %s' % Lpa)
    a('s_lshl_b32 s%d, s%d, 2' % (R.sT0, sGC))
    a('s_add_u32 s%d, s%d, 0x%x' % (R.sT0, R.sT0, AP_OFF))
    a('v_mov_b32 v10, s%d' % sNA)
    a('v_mov_b32 v11, 0')
    a('s_mov_b64 exec, 1')
    a('buffer_store_dword v10, v11, s[%d:%d], s%d offen sc1' % (R.sWS, R.sWS + 3, R.sT0))
    a('s_mov_b64 exec, -1')
    a.label(Lpa)
    if cfg.get('g2prof'): a('s_add_u32 s70, s70, 1')
    a.label(Lna)
    g2mark(a, cfg, 1)
    a('s_cmp_le_u32 s%d, s%d' % (sAA, sNW))
    a.branch('s_cbranch_scc1 %s' % Lnw)
    a('s_lshl_b32 s%d, s%d, 2' % (R.sT0, sNW))
    a('s_add_u32 s%d, s%d, s%d' % (R.sT0, R.sT0, sGX))
    a('s_lshl_b32 s%d, s%d, 1' % (G2.sTILE, R.sT0))
    a('s_sub_u32 s%d, s%d, s%d' % (G2.sNB, sAA, sNW))
    a('s_min_u32 s%d, s%d, %d' % (G2.sNB, G2.sNB, cfg.get('wob', 4)))
    a('s_lshl_b32 s%d, s%d, 1' % (G2.sTN, sNW))
    a('s_add_u32 s%d, s%d, s%d' % (sNW, sNW, G2.sNB))
    a('s_lshl_b32 s%d, s%d, 1' % (G2.sNT, sNW))
    if cfg.get('wo2', 0): G2.wo2_batch(a, cfg, sGX, sNW, sSP)
    else: G2.wo_batch(a, cfg)
    a('s_mov_b32 s%d, 1' % sDID)
    if cfg.get('g2prof'): a('s_add_u32 s71, s71, 1')
    a.label(Lnw)
    g2mark(a, cfg, 2)
    Lsl = a.newlabel('nosleep')
    a('s_cmp_lg_u32 s%d, 0' % sDID)
    a('s_cbranch_scc1 %s' % Lsl)
    a('s_cmp_lt_u32 s%d, s%d' % (sNW, sNA))
    a('s_cbranch_scc1 %s' % Lsl)
    a('s_sleep %d' % cfg.get('g2sleep', 16))
    a.label(Lsl)
    g2mark(a, cfg, 3)
    a('s_add_u32 s%d, s%d, 1' % (sSP, sSP))
    a('s_cmp_ge_u32 s%d, 0x%x' % (sSP, SPIN_LIMIT))
    a.branch('s_cbranch_scc1 g2_done')
    a('s_cmp_lt_u32 s%d, 16' % sNW)
    a.branch('s_cbranch_scc1 g2_loop')
    a.label('g2_done')
    if cfg.get('g2prof'):
        a('s_lshl_b32 s45, s95, 7')
        a('s_lshl_b32 s46, s94, 5')
        a('s_add_u32 s45, s45, s46')
        a('s_add_u32 s45, s45, 0x%x' % (MISC_OFF + 131072))
        a('v_mov_b32 v9, 0')
        a('s_mov_b64 exec, 1')
        for k in range(8):
            a('v_mov_b32 v8, s%d' % (66 + k))
            a('buffer_store_dword v8, v9, s[%d:%d], s45 offen offset:%d' % (R.sWS, R.sWS + 3, 4 * k))
        a('s_mov_b64 exec, -1')
    stamp(a, cfg, 4)
    a('s_endpgm')

def g2mark(a, cfg, k):
    if not cfg.get('g2prof'): return
    a('s_memtime s[76:77]')
    a('s_waitcnt lgkmcnt(0)')
    a('s_sub_u32 s78, s76, s79')
    a('s_add_u32 s%d, s%d, s78' % (66 + k, 66 + k))
    a('s_mov_b32 s79, s76')

def stamp(a, cfg, k):
    if not cfg.get('stamp'): return
    L = a.newlabel('stp')
    a('s_cmp_lg_u32 s%d, 0' % sGW)
    a.branch('s_cbranch_scc1 %s' % L)
    a('s_memrealtime s[74:75]')
    a('s_waitcnt lgkmcnt(0)')
    a('v_mov_b32 v250, s74')
    a('s_lshl_b32 s74, s%d, 5' % sGC)
    a('s_add_u32 s74, s74, 0x%x' % (MISC_OFF + 65536 + 4 * k))
    a('v_mov_b32 v251, 0')
    a('s_mov_b64 exec, 1')
    a('buffer_store_dword v250, v251, s[%d:%d], s74 offen' % (R.sWS, R.sWS + 3))
    a('s_mov_b64 exec, -1')
    a.label(L)

def roles(a, cfg):
    a('s_cmp_ge_u32 s%d, 4' % R.sRX)
    a.branch('s_cbranch_scc1 f_grole')
    R.r_body(a, cfg)
    a.label('f_grole')
    a('s_sub_u32 s%d, s%d, 4' % (sGX, R.sRX))
    a('s_mov_b32 s%d, s%d' % (sGI, R.sI))
    a('s_mov_b32 s%d, s%d' % (sGW, R.sW))
    a('s_lshl_b32 s%d, s%d, 5' % (sGC, sGX))
    a('s_add_u32 s%d, s%d, s%d' % (sGC, sGC, sGI))
    stamp(a, cfg, 0)
    g_body(a, cfg)

def common_init(a):
    build_srds(a, dict(ws=R.sWS, wq=R.sWQ, wk=R.sWK, wv=R.sWV, wo=R.sWO, mem0=R.sM0, dbg=R.sDBG))
    a('s_mov_b32 s%d, 0' % R.sSPIN)
    R.lane_consts(a)
    a('v_lshrrev_b32 v%d, 6, v0' % R.vT)
    a('v_readfirstlane_b32 s%d, v%d' % (R.sW, R.vT))

def gen_fused(name, cfg):
    import re
    cfg = dict(cfg); cfg['fused'] = 1; cfg['g1_sc1'] = 1
    sGT = 100
    a = Asm()
    a.raw(kernel_header(name))
    a('s_cmp_ge_u32 s2, 256')
    a('s_cbranch_scc0 f_start')
    a('s_endpgm')
    a.label('f_start')
    common_init(a)
    a('s_getreg_b32 s%d, hwreg(HW_REG_XCC_ID)' % R.sRX)
    a('s_and_b32 s%d, s%d, 7' % (R.sRX, R.sRX))
    vT = R.vT
    Lt = a.newlabel('tk')
    a('s_cmp_lg_u32 s%d, 0' % R.sW)
    a.branch('s_cbranch_scc1 %s' % Lt)
    a('v_mov_b32 v%d, 1' % vT)
    a('v_mov_b32 v%d, 1' % (vT + 1))
    a('s_lshl_b32 s%d, s%d, 2' % (R.sT0, R.sRX))
    a('v_mov_b32 v%d, s%d' % (vT + 2, R.sT0))
    a('v_mov_b32 v%d, %d' % (vT + 3, DB_GT))
    a('s_mov_b64 exec, 1')
    a('buffer_atomic_add v%d, v%d, s[%d:%d], 0 offen sc0 sc1' % (vT, vT + 2, R.sDBG, R.sDBG + 3))
    a('buffer_atomic_add v%d, v%d, s[%d:%d], 0 offen sc0 sc1' % (vT + 1, vT + 3, R.sDBG, R.sDBG + 3))
    a('v_mov_b32 v%d, %d' % (vT + 2, R.LDS_TK))
    a('s_waitcnt vmcnt(0)')
    a('ds_write_b64 v%d, v[%d:%d]' % (vT + 2, vT, vT + 1))
    a('s_waitcnt lgkmcnt(0)')
    a('s_mov_b64 exec, -1')
    a.label(Lt)
    a('s_barrier')
    a('v_mov_b32 v%d, %d' % (vT + 2, R.LDS_TK))
    a('ds_read_b64 v[%d:%d], v%d' % (vT, vT + 1, vT + 2))
    a('s_waitcnt lgkmcnt(0)')
    a('v_readfirstlane_b32 s%d, v%d' % (R.sI, vT))
    a('v_readfirstlane_b32 s%d, v%d' % (sGT, vT + 1))
    a('s_cmp_lt_u32 s%d, 32' % R.sI)
    a.branch('s_cbranch_scc1 f_census_ok')
    Lo = a.newlabel('ovf')
    a('s_cmp_lg_u32 s%d, 0' % R.sW)
    a.branch('s_cbranch_scc1 %s' % Lo)
    dbg_arrive(a, R.sDBG, DB_BAD, vT)
    a('s_waitcnt vmcnt(0)')
    dbg_arrive(a, R.sDBG, DB_INIT, vT)
    a.label(Lo)
    init_wait(a, R.sDBG, cfg, vT, R.sSPIN, R.sT0)
    a.branch('s_branch SAFE_ENTRY')
    a.label('f_census_ok')
    head = a.text()
    gl0 = Asm.GL
    a = Asm()
    roles(a, cfg)
    fast = a.text()
    gl1 = Asm.GL
    cfg2 = dict(cfg); cfg2['safe'] = 1; cfg2['stamp'] = 0; cfg2['prof'] = 0; cfg2['tl'] = 0; cfg2['st3'] = 0; cfg2['st2'] = 0; cfg2['gprof'] = 0; cfg2['g2prof'] = 0
    SH = 128 * MB
    saved = (R.MX_OFF, R.QKX_OFF, R.OX_OFF, G1.XF_OFF, P.XF_OFF)
    R.MX_OFF += SH; R.QKX_OFF += SH; R.OX_OFF += SH; G1.XF_OFF += SH; P.XF_OFF += SH; R.SAFE[0] = True
    b = Asm()
    b('s_mov_b64 exec, -1')
    b('s_waitcnt vmcnt(0) lgkmcnt(0)')
    b('s_barrier')
    common_init(b)
    b('s_lshr_b32 s%d, s%d, 5' % (R.sRX, sGT))
    b('s_and_b32 s%d, s%d, 7' % (R.sRX, R.sRX))
    b('s_and_b32 s%d, s%d, 31' % (R.sI, sGT))
    b.fence()
    head2 = b.text()
    dbgbuild = any(cfg.get(k) for k in ('stamp', 'prof', 'tl', 'st3', 'st2', 'gprof', 'g2prof'))
    if not dbgbuild: Asm.GL = gl0
    b = Asm()
    roles(b, cfg2)
    Asm.GL = max(Asm.GL, gl1)
    R.MX_OFF, R.QKX_OFF, R.OX_OFF, G1.XF_OFF, P.XF_OFF = saved; R.SAFE[0] = False
    safe = b.text()
    import difflib
    labels = set(re.findall(r'^([A-Za-z_][\w]*):', safe + fast, re.M))
    rx = re.compile(r'\b(' + '|'.join(sorted(labels, key=len, reverse=True)) + r')\b')
    fl = [rx.sub(lambda m: m.group(1) + '_\\sf', l.strip()) for l in fast.split('\n') if l.strip()]
    sl = [rx.sub(lambda m: m.group(1) + '_\\sf', l.strip()) for l in safe.split('\n') if l.strip()]
    out = ['.macro ROLES sf']
    if len(fl) == len(sl) or True:
        sm = difflib.SequenceMatcher(None, fl, sl, autojunk=False) if len(fl) != len(sl) else None
        if sm is None:
            ops = []
            i = 0
            while i < len(fl):
                j = i
                same = fl[i] == sl[i]
                while j < len(fl) and (fl[j] == sl[j]) == same: j += 1
                ops.append(('equal' if same else 'replace', i, j, i, j)); i = j
        else:
            ops = sm.get_opcodes()
        for tag, i1, i2, j1, j2 in ops:
            if tag == 'equal': out += fl[i1:i2]
            else:
                out.append('.if \\sf == 0'); out += fl[i1:i2]; out.append('.else'); out += sl[j1:j2]; out.append('.endif')
    out.append('.endm')
    return '\n'.join(out) + '\n' + head + 'ROLES 0\nSAFE_ENTRY:\n' + head2 + 'ROLES 1\n'
```

```python
from common import *
import rrole as R
from rrole import sWS, sWQ, sWK, sWV, sDBG, sRX, sI, sW, sT0, sT1, sT2, sT3, sH, sJ, vL, vL16, vT, wq_frag

sX = 24
sSEG, sEND, sXO, sQO, sKO, sVO = 52, 53, 54, 55, 56, 57
vXA = 3
vXB = 16
vAC = 144
vRD = 192
vOUT = 224
LDSP = 0

def xf(buf, tt, T, b): return vXB + buf * 64 + ((tt * 4 + T) * 2 + b) * 4
def ac(tt, tile): return vAC + (tt * 6 + tile) * 4
def lp(buf, wv, tt, tile): return LDSP + buf * 49152 + ((wv * 2 + tt) * 6 + tile) * 1024

XFL = ['']
NOPK = [1]
sGPA, sCNT, sSPIN, sWM = 58, 59, 44, 60
def xloads(buf, soff0, soff1):
    out = []
    for tt in range(2):
        for T in range(4):
            for b in range(2):
                r = xf(buf, tt, T, b)
                n = T * 2 + b
                out.append('buffer_load_dwordx4 v[%d:%d], v%d, s[%d:%d], s%d offen offset:%d' % (r, r + 3, vL16 if n < 4 else 5, sWS, sWS + 3, soff0 if tt == 0 else soff1, (n & 3) * 1024) + XFL[0])
    return out

FRAGS = [('q', 0), ('q', 1), ('k', 0), ('k', 1), ('v', 0), ('v', 1)]
def frag_src(kind, idx):
    if kind == 'q': return [(idx, 0), (idx, 1)]
    if kind == 'k': return [(idx, 2), (idx, 3)]
    return [(0, 4 + idx), (1, 4 + idx)]
ASSIGN = [[[0, 1], [2, 3], [4], [5]], [[0], [1], [2, 3], [4, 5]]]

def reduce_ops(w, par, sc1):
    ops = []
    for n, f in enumerate(ASSIGN[par][w]):
        kind, idx = FRAGS[f]
        o = vOUT + 4 * n
        rd = []
        for h2, (tt, tile) in enumerate(frag_src(kind, idx)):
            for wv in range(4):
                r = vRD + (h2 * 4 + wv) * 4
                off = lp(par, wv, tt, tile)
                rd.append('ds_read_b128 v[%d:%d], v%d offset:%d' % (r, r + 3, vL16 if off < 65536 else 4, off if off < 65536 else off - 49152))
        ops.append(('rd', rd))
        ad = []
        for h2 in range(2):
            b0 = vRD + h2 * 16
            if NOPK[0]:
                for x in range(4):
                    ad.append('v_add_f32 v%d, v%d, v%d' % (b0 + x, b0 + x, b0 + 4 + x))
                    ad.append('v_add_f32 v%d, v%d, v%d' % (b0 + 8 + x, b0 + 8 + x, b0 + 12 + x))
                for x in range(4):
                    ad.append('v_add_f32 v%d, v%d, v%d' % (b0 + x, b0 + x, b0 + 8 + x))
            else:
                for x in (0, 2):
                    ad.append('v_pk_add_f32 v[%d:%d], v[%d:%d], v[%d:%d]' % (b0 + x, b0 + x + 1, b0 + x, b0 + x + 1, b0 + 4 + x, b0 + 5 + x))
                    ad.append('v_pk_add_f32 v[%d:%d], v[%d:%d], v[%d:%d]' % (b0 + 8 + x, b0 + 9 + x, b0 + 8 + x, b0 + 9 + x, b0 + 12 + x, b0 + 13 + x))
                for x in (0, 2):
                    ad.append('v_pk_add_f32 v[%d:%d], v[%d:%d], v[%d:%d]' % (b0 + x, b0 + x + 1, b0 + x, b0 + x + 1, b0 + 8 + x, b0 + 9 + x))
            ad.append('v_cvt_pk_bf16_f32 v%d, v%d, v%d' % (o + 2 * h2, b0, b0 + 1))
            ad.append('v_cvt_pk_bf16_f32 v%d, v%d, v%d' % (o + 2 * h2 + 1, b0 + 2, b0 + 3))
        so = {'q': sQO, 'k': sKO, 'v': sVO}[kind]
        if kind == 'v':
            ad.append('buffer_store_dwordx4 v[%d:%d], v%d, s[%d:%d], s%d offen offset:%d%s' % (o, o + 3, vL16, sWS, sWS + 3, so, idx * 1024, ' sc1' if sc1 else ''))
        else:
            ad.append('buffer_store_dwordx4 v[%d:%d], v%d, s[%d:%d], s%d offen%s' % (o, o + 3, vL16 if idx == 0 else 5, sWS, sWS + 3, so, ' sc1' if sc1 else ''))
        ops.append(('ad', ad))
    return ops

def pub_gp(a, cap=64):
    a('s_min_u32 s%d, s%d, %d' % (sT1, sCNT, cap))
    a('v_mov_b32 v6, s%d' % sT1)
    a('v_mov_b32 v7, 0')
    a('s_mov_b64 exec, 1')
    a('buffer_store_dword v6, v7, s[%d:%d], s%d offen sc1' % (sWS, sWS + 3, sGPA))
    a('s_mov_b64 exec, -1')

sDM, sDS, sDMI, sDSI = 68, 69, 70, 71
sCX, sCD = 61, 62
sXSRD = 24
def seg_plan(w, par, first, cfg, conv=(None, None)):
    sc1 = cfg.get('g1_sc1', 0)
    buf = par
    slots = [[] for _ in range(96)]
    nxt = xloads(1 - buf, sXO, sT0)
    for n, x in enumerate(nxt):
        tt = n // 8
        slots[tt * 48 + (n % 8) * 5 + 1].append(('x%d' % tt, x))
    cl, cs = conv
    if cl is not None:
        for n in range(8):
            r = 192 + 32 * cl + 4 * n
            slots[2 + 4 * n].append(('cv', 'buffer_load_dwordx4 a[%d:%d], v3, s[%d:%d], s%d offen offset:%d' % (r, r + 3, sXSRD, sXSRD + 3, sCX, (n >> 1) * 128 + (n & 1) * 16)))
    if cs is not None:
        for n in range(8):
            r = 192 + 32 * cs + 4 * n
            slots[4 + 4 * n].append(('cv', 'buffer_store_dwordx4 a[%d:%d], v%d, s[%d:%d], s%d offen offset:%d' % (r, r + 3, vL16 if n < 4 else 5, sWS, sWS + 3, sCD, (n & 3) * 1024) + (' sc1' if cfg.get('safe') else '')))
    if cfg.get('fused'):
        for p in (23, 71):
            slots[p - 1].append(('sa', 's_mov_b32 m0, s%d' % sDM))
            slots[p].append(('cv', 'buffer_load_dwordx4 v243, s[12:15], s%d offen lds' % sDS))
            slots[p + 1].append(('sa', 's_add_u32 s%d, s%d, s%d' % (sDM, sDM, sDMI)))
            slots[p + 1].append(('sa', 's_add_u32 s%d, s%d, s%d' % (sDS, sDS, sDSI)))
    if cfg.get('warm', 0) and w == 3:
        for n in range(2):
            slots[20 + 30 * n].append(('x2', 'buffer_load_dwordx4 v[232:235], v%d, s[%d:%d], s%d offen offset:%d%s' % (vL16, sWS, sWS + 3, sWM, n * 1024, XFL[0])))
    tail = []
    for tt in range(2):
        for tile in range(6):
            off = lp(buf, w, tt, tile)
            ins = ('ds', 'ds_write_b128 v%d, v[%d:%d] offset:%d' % (vL16 if off < 65536 else 4, ac(tt, tile), ac(tt, tile) + 3, off if off < 65536 else off - 49152))
            IL = cfg.get('g1il', 2)
            p = (tt * 6 + (tile // IL + 1) * IL) * 8 + 4 + 3 * (tile % IL)
            if p < 96: slots[p].append(ins)
            else: tail.append(ins)
    if not first:
        p = 0
        for kind, lst in reduce_ops(w, 1 - par, sc1):
            if kind == 'rd':
                for x in lst:
                    while len(slots[p]) >= (2 if (cl is not None or cs is not None) else 1): p += 1
                    slots[p].append(('ds', x)); p += 1
                p += 5
            else:
                slots[p].append(('w', 's_waitcnt lgkmcnt(0)'))
                for x in lst:
                    while len(slots[p]) >= 2: p += 1
                    slots[p].append(('st' if x.startswith('buffer_store') else 'va', x))
                p += 1
    return slots, tail

def vm_seq(slots, upto=96, frm=0):
    return [t for sl in slots[frm:upto] for (t, x) in sl if t in ('x0', 'x1', 'x2', 'st', 'cv')]

def count_after(seq, tag):
    idx = max(i for i, t in enumerate(seq) if t == tag)
    return len(seq) - 1 - idx

def gmark(a, cfg, k):
    if not cfg.get('gprof'): return
    a('s_memtime s[76:77]')
    a('s_waitcnt lgkmcnt(0)')
    a('s_sub_u32 s78, s76, s79')
    a('s_add_u32 s%d, s%d, s78' % (80 + k, 80 + k))
    a('s_mov_b32 s79, s76')

def seg_body(a, w, par, first, cfg, preds, conv=(None, None), exact=False):
    buf = par
    slots, tail = seg_plan(w, par, first, cfg, conv)
    a('s_add_u32 s%d, s%d, 0x10000' % (sXO, sXO))
    if cfg.get('fused') and par == 1:
        a('s_cmp_eq_u32 s%d, %d' % (sSEG, 62 - NPB))
        a('s_cselect_b32 s%d, 0x400000, 0' % sT0)
        a('s_sub_u32 s%d, s%d, s%d' % (sXO, sXO, sT0))
    if w == 3: a('s_add_u32 s%d, s%d, 0x10000' % (sWM, sWM))
    a('s_add_u32 s%d, s%d, 0x8000' % (sT0, sXO))
    if preds is None:
        n0 = n1 = None
        a('s_waitcnt vmcnt(0)')
    else:
        n0 = min(count_after(vm_seq(seg_plan(w, p[0], p[1], cfg, *p[2:])[0]), 'x0') for p in preds)
        n1 = min(count_after(vm_seq(seg_plan(w, p[0], p[1], cfg, *p[2:])[0]), 'x1') for p in preds) + len(vm_seq(slots, 48))
        a('s_waitcnt vmcnt(%d)' % n0)
        gmark(a, cfg, 0)
    n = 0
    for tt in range(2):
        if tt == 1 and n1 is not None:
            gmark(a, cfg, 1)
            a('s_waitcnt vmcnt(%d)' % n1)
            gmark(a, cfg, 2)
        IL = cfg.get('g1il', 2)
        for tp in range(0, 6, IL):
            for T in range(4):
                for b in range(2):
                    for tile in range(tp, tp + IL):
                        c = '0' if (T == 0 and b == 0) else vr(ac(tt, tile), 4)
                        W = ar(wq_frag(tile, T, b), 4); X = vr(xf(buf, tt, T, b), 4)
                        if tile < 4: a('v_mfma_f32_16x16x32_bf16 %s, %s, %s, %s' % (vr(ac(tt, tile), 4), W, X, c))
                        else: a('v_mfma_f32_16x16x32_bf16 %s, %s, %s, %s' % (vr(ac(tt, tile), 4), X, W, c))
                        for t, x in slots[n]: a(x)
                        n += 1
    for t, x in tail: a(x)
    gmark(a, cfg, 3)
    if not first:
        for so in (sQO, sKO, sVO): a('s_add_u32 s%d, s%d, 0x40000' % (so, so))
        if cfg.get('fused') and par == 0:
            a('s_cmp_eq_u32 s%d, %d' % (sSEG, 64 - NPB))
            a('s_cselect_b32 s%d, 0x1000000, 0' % sT0)
            for so in (sQO, sKO, sVO): a('s_sub_u32 s%d, s%d, s%d' % (so, so, sT0))
    if conv[0] is not None: a('s_add_u32 s%d, s%d, 0x100000' % (sCX, sCX))
    if conv[1] is not None: a('s_add_u32 s%d, s%d, 0x100000' % (sCD, sCD))
    if cfg.get('fused') and not first:
        a('s_waitcnt vmcnt(%d) lgkmcnt(0)' % (count_after(vm_seq(slots), 'st') if exact else len(vm_seq(slots))))
    else:
        a('s_waitcnt lgkmcnt(0)')
    gmark(a, cfg, 4)
    a('s_barrier')
    gmark(a, cfg, 5)
    if cfg.get('fused') and not first:
        if exact: a('s_add_u32 s%d, s%d, 1' % (sCNT, sCNT))
        if w == 0: pub_gp(a)
        if not exact: a('s_add_u32 s%d, s%d, 1' % (sCNT, sCNT))

NPB = 4
def fast_start(a, cfg):
    sW = R.sW
    save = R.vTR; R.vTR = 236
    vWA, vRA, vRB, vCV = 239, 240, 241, 192
    PB = 65536
    sWQO, sPD = 63, 64
    a('v_and_b32 v%d, 15, v%d' % (vT, vL))
    a('v_lshrrev_b32 v%d, 4, v%d' % (vT + 1, vL))
    a('v_lshlrev_b32 v%d, 5, v%d' % (vT + 1, vT + 1))
    a('v_lshl_add_u32 v%d, v%d, 11, v%d' % (vXA, vT, vT + 1))
    a('v_add_u32 v4, 49152, v%d' % vL16)
    a('v_add_u32 v5, 4096, v%d' % vL16)
    a('v_lshrrev_b32 v%d, 2, v%d' % (vT, vL))
    a('v_and_b32 v%d, 3, v%d' % (vT + 1, vL))
    a('v_lshlrev_b32 v%d, 4, v%d' % (vT + 1, vT + 1))
    a('v_lshl_add_u32 v%d, v%d, 13, v%d' % (vWA, vT, vT + 1))
    def xs(buf):
        a('s_add_u32 s%d, s%d, 0x8000' % (sT0, sXO))
        for tt in range(2):
            for n in range(8):
                r = xf(buf, tt, n >> 1, n & 1)
                a('buffer_load_dwordx4 v[%d:%d], v%d, s[%d:%d], s%d offen offset:%d' % (r, r + 3, vXA, sXSRD, sXSRD + 3, sXO if tt == 0 else sT0, (n >> 1) * 128 + (n & 1) * 16))
        a('s_add_u32 s%d, s%d, 0x10000' % (sXO, sXO))
    a('s_lshl_b32 s%d, s%d, 9' % (sXO, sW))
    xs(0)
    a('s_lshl_b32 s%d, s%d, 21' % (sWQO, sW))
    a('s_lshl_b32 s%d, s%d, 8' % (sT1, sH))
    a('s_add_u32 s%d, s%d, s%d' % (sWQO, sWQO, sT1))
    a('s_lshl_b32 s%d, s%d, 6' % (sT1, sJ))
    a('s_add_u32 s%d, s%d, s%d' % (sWQO, sWQO, sT1))
    for M, srd in ((1, sWK), (2, sWV)):
        a('s_mov_b32 s%d, s%d' % (sT0, sWQO))
        for n in range(16):
            a('buffer_load_dwordx4 a[%d:%d], v%d, s[%d:%d], s%d offen' % (64 * M + 4 * n, 64 * M + 4 * n + 3, vWA, srd, srd + 3, sT0))
            if n < 15: a('s_add_u32 s%d, s%d, 0x20000' % (sT0, sT0))
    a('s_lshl_b32 s%d, s93, 15' % sT0)
    a('s_lshl_b32 s%d, s%d, 9' % (sT1, sW))
    a('s_add_u32 s%d, s%d, s%d' % (sCX, sT0, sT1))
    a('s_lshl_b32 s%d, s%d, 13' % (sT1, sW))
    a('s_add_u32 s%d, s%d, s%d' % (sCD, sT0, sT1))
    a('s_lshl_b32 s%d, s92, 22' % sT1)
    a('s_add_u32 s%d, s%d, s%d' % (sCD, sCD, sT1))
    a('s_add_u32 s%d, s%d, 0x%x' % (sCD, sCD, XF_OFF))
    a('s_cmp_lt_u32 s%d, 2' % sW)
    a('s_cselect_b32 s%d, 4, 1' % sT0)
    a('s_mul_i32 s%d, s%d, s%d' % (sT0, sT0, sW))
    a('s_cselect_b32 s%d, 1, 4' % sT1)
    a('s_add_u32 s%d, s%d, s%d' % (sT1, sT1, sT0))
    a('s_lshl_b32 s%d, s%d, 10' % (sT0, sT0))
    a('s_lshl_b32 s%d, s%d, 10' % (sT1, sT1))
    a('s_add_u32 s%d, s%d, %d' % (sT0, sT0, PB))
    a('s_add_u32 s%d, s%d, %d' % (sT1, sT1, PB))
    a('v_add_u32 v%d, s%d, v%d' % (vRA, sT0, vL16))
    a('v_add_u32 v%d, s%d, v%d' % (vRB, sT1, vL16))
    a('s_lshl_b32 s%d, s%d, 13' % (sT0, sW))
    a('s_add_u32 s%d, s%d, %d' % (sT0, sT0, PB))
    a('v_add_u32 v242, s%d, v%d' % (sT0, vL16))
    a('s_lshl_b32 s%d, s%d, 13' % (sT0, sH))
    a('s_lshl_b32 s%d, s%d, 10' % (sT1, sJ))
    a('s_add_u32 s%d, s%d, s%d' % (sT0, sT0, sT1))
    a('s_lshl_b32 s%d, s%d, 12' % (sT2, sW))
    a('s_add_u32 s%d, s%d, s%d' % (sT2, sT2, sT0))
    a('s_add_u32 s%d, s%d, 0x%x' % (sT2, sT2, KF_OFF))
    a('s_add_u32 s%d, s%d, s%d' % (sT0, sT0, sT1))
    a('s_lshl_b32 s%d, s%d, 10' % (sT1, sW))
    a('s_add_u32 s%d, s%d, s%d' % (sT0, sT0, sT1))
    a('s_add_u32 s%d, s%d, 0x%x' % (sT0, sT0, VF_OFF - 2048))
    a('s_cmp_lt_u32 s%d, 2' % sW)
    a('s_cselect_b32 s%d, s%d, s%d' % (sPD, sT2, sT0))
    R.tr_setup(a)
    a('s_waitcnt vmcnt(16)')
    R.tr_matrix(a, 1)
    a('s_waitcnt vmcnt(0)')
    R.tr_matrix(a, 2)
    init_wait(a, sDBG, cfg, 8, sSPIN, sT0)
    a('s_mov_b32 s%d, 0' % sCNT)
    for pb in range(NPB):
        buf = pb & 1
        if pb < NPB - 1: xs(1 - buf)
        for n in range(4 * pb, 4 * pb + 4):
            a('buffer_load_dwordx4 a[%d:%d], v%d, s[%d:%d], s%d offen' % (4 * n, 4 * n + 3, vWA, sWQ, sWQ + 3, sWQO))
            a('s_add_u32 s%d, s%d, 0x20000' % (sWQO, sWQO))
        if pb == 0:
            for n in range(8):
                a('buffer_load_dwordx4 a[%d:%d], v%d, s[%d:%d], s%d offen offset:%d' % (192 + 4 * n, 195 + 4 * n, vXA, sXSRD, sXSRD + 3, sCX, (n >> 1) * 128 + (n & 1) * 16))
            a('s_add_u32 s%d, s%d, 0x100000' % (sCX, sCX))
        if pb == 1:
            for n in range(8):
                a('buffer_store_dwordx4 a[%d:%d], v%d, s[%d:%d], s%d offen offset:%d%s' % (192 + 4 * n, 195 + 4 * n, vL16 if n < 4 else 5, sWS, sWS + 3, sCD, (n & 3) * 1024, ' sc1' if cfg.get('safe') else ''))
            a('s_add_u32 s%d, s%d, 0x100000' % (sCD, sCD))
        for tt in range(2):
            for t4 in range(4):
                tile = 2 + t4
                for n in range(8):
                    d = vr(ac(tt, tile), 4); W = ar(wq_frag(tile, n >> 1, n & 1), 4); X = vr(xf(buf, tt, n >> 1, n & 1), 4)
                    a('v_mfma_f32_16x16x32_bf16 %s, %s, %s, %s' % (d, W if tile < 4 else X, X if tile < 4 else W, '0' if n == 0 else d))
                    if n == 6 and (tt, t4) != (0, 0):
                        g0 = tt * 4 + t4 - 1
                        a('ds_write_b128 v242, %s offset:%d' % (vr(ac(g0 >> 2, 2 + (g0 & 3)), 4), g0 * 1024))
        a('ds_write_b128 v242, %s offset:%d' % (vr(ac(1, 5), 4), 7 * 1024))
        a('s_waitcnt lgkmcnt(0)')
        a('s_barrier')
        for h2, va in enumerate((vRA, vRB)):
            for wv in range(4):
                r = vRD + (h2 * 4 + wv) * 4
                a('ds_read_b128 v[%d:%d], v%d offset:%d' % (r, r + 3, va, wv * 8192))
        a('s_waitcnt lgkmcnt(0)')
        for h2 in range(2):
            b0 = vRD + h2 * 16
            for x in (0, 2):
                R.pk_add(a, b0 + x, b0 + x, b0 + 4 + x); R.pk_add(a, b0 + 8 + x, b0 + 8 + x, b0 + 12 + x)
            for x in (0, 2): R.pk_add(a, b0 + x, b0 + x, b0 + 8 + x)
            a('v_cvt_pk_bf16_f32 v%d, v%d, v%d' % (vOUT + 2 * h2, b0, b0 + 1))
            a('v_cvt_pk_bf16_f32 v%d, v%d, v%d' % (vOUT + 2 * h2 + 1, b0 + 2, b0 + 3))
        a('buffer_store_dwordx4 v[%d:%d], v%d, s[%d:%d], s%d offen sc1' % (vOUT, vOUT + 3, vL16, sWS, sWS + 3, sPD))
        a('s_add_u32 s%d, s%d, 0x40000' % (sPD, sPD))
        a('s_add_u32 s%d, s%d, 1' % (sCNT, sCNT))
        a('s_waitcnt vmcnt(0)')
        a('s_barrier')
        Lp = a.newlabel('fsp')
        a('s_cmp_lg_u32 s%d, 0' % sW)
        a.branch('s_cbranch_scc1 %s' % Lp)
        pub_gp(a)
        if pb == 1: dbg_arrive(a, sDBG, 's91', 8)
        a.label(Lp)
    R.tr_matrix(a, 0)
    R.vTR = save

def g1_wave(a, w, cfg, pre):
    a('v_and_b32 v%d, 15, v%d' % (vT, vL))
    a('v_lshrrev_b32 v%d, 4, v%d' % (vT + 1, vL))
    a('v_lshlrev_b32 v%d, 5, v%d' % (vT + 1, vT + 1))
    a('v_lshl_add_u32 v%d, v%d, 11, v%d' % (vXA, vT, vT + 1))
    a('v_add_u32 v4, 49152, v%d' % vL16)
    a('v_add_u32 v5, 4096, v%d' % vL16)
    a('s_lshl_b32 s%d, s%d, 16' % (sXO, sSEG))
    if cfg.get('fused'):
        a('s_lshl_b32 s%d, s92, 22' % sT0)
        a('s_add_u32 s%d, s%d, s%d' % (sXO, sXO, sT0))
    if w == 3:
        a('s_lshl_b32 s%d, s%d, 2' % (sT0, sH))
        a('s_add_u32 s%d, s%d, s%d' % (sT0, sT0, sJ))
        a('s_and_b32 s%d, s%d, 31' % (sT0, sT0))
        a('s_lshl_b32 s%d, s%d, 11' % (sT0, sT0))
        a('s_add_u32 s%d, s%d, s%d' % (sWM, sXO, sT0))
        a('s_add_u32 s%d, s%d, 0x%x' % (sWM, sWM, XF_OFF + (cfg.get('warm', 0) - 1) * 0x10000))
    a('s_add_u32 s%d, s%d, 0x%x' % (sXO, sXO, XF_OFF + w * 8192))
    if not cfg.get('fused'):
        a('s_add_u32 s%d, s%d, 0x8000' % (sT0, sXO))
        for x in xloads(0, sXO, sT0): a(x)
    a('s_lshl_b32 s%d, s%d, 5' % (sT0, sSEG))
    a('s_add_u32 s%d, s%d, s%d' % (sT0, sT0, sH))
    a('s_lshl_b32 s%d, s%d, 13' % (sT0, sT0))
    a('s_lshl_b32 s%d, s%d, 10' % (sT1, sJ))
    a('s_add_u32 s%d, s%d, s%d' % (sT2, sT0, sT1))
    a('s_add_u32 s%d, s%d, 0x%x' % (sQO, sT2, QF_OFF))
    a('s_add_u32 s%d, s%d, 0x%x' % (sKO, sT2, KF_OFF))
    a('s_add_u32 s%d, s%d, s%d' % (sT2, sT2, sT1))
    a('s_add_u32 s%d, s%d, 0x%x' % (sVO, sT2, VF_OFF))
    if not cfg.get('fused'): R.transpose_weights(a, with_wo=False)
    if cfg.get('fused'):
        dbg_wait(a, sDBG, 's91', 32, 8, sSPIN)
        a('s_add_u32 s%d, s%d, 0x8000' % (sT0, sXO))
        for x in xloads(0, sXO, sT0): a(x)
        a('s_mov_b32 s%d, 0' % sSEG)
        import modloop
        modloop.trickle_off(a)
        a('v_mov_b32 v243, 0')
    a('s_barrier')
    a('s_memrealtime s[72:73]')
    if cfg.get('fused'):
        import fused
        fused.stamp(a, cfg, 5)
    if cfg.get('gprof'):
        for k in range(8): a('s_mov_b32 s%d, 0' % (80 + k))
        a('s_memtime s[76:77]')
        a('s_waitcnt lgkmcnt(0)')
        a('s_mov_b32 s79, s76')
    L = pre + '_loop_w%d' % w; E = pre + '_done_w%d' % w
    if cfg.get('fused'):
        plan = [(0, True, (0, None)), (1, False, (1, 0)), (0, False, (0, 1)), (1, False, (None, 0)), (0, False, (None, None))]
        for n, (par, first, conv) in enumerate(plan):
            seg_body(a, w, par, first, cfg, None if n == 0 else [plan[n - 1]], conv, exact=(1 <= n <= 3))
            if n == 4:
                if w == 1: dbg_arrive(a, sDBG, 's91', 8)
        a('s_add_u32 s%d, s%d, 4' % (sSEG, sSEG))
        preds_odd = [(0, False)]
    else:
        seg_body(a, w, 0, True, cfg, None)
        preds_odd = [(0, True), (0, False)]
    a.label(L)
    if cfg.get('fused'):
        Lq = a.newlabel('nocv')
        a('s_and_b32 s%d, s%d, 3' % (sT0, sSEG))
        a('s_cmp_lg_u32 s%d, 0' % sT0)
        a.branch('s_cbranch_scc1 %s' % Lq)
        a('s_mov_b32 s90, %d' % w)
        a.branch('s_branch g1_side')
        a.label('g1_back_w%d' % w)
        a.label(Lq)
    seg_body(a, w, 1, False, cfg, preds_odd)
    a('s_add_u32 s%d, s%d, 2' % (sSEG, sSEG))
    a('s_cmp_ge_u32 s%d, s%d' % (sSEG, sEND))
    a.branch('s_cbranch_scc1 %s' % E)
    seg_body(a, w, 0, False, cfg, [(1, False)])
    a.branch('s_branch %s' % L)
    a.label(E)
    if cfg.get('gprof'):
        a('s_lshl_b32 s%d, s95, 7' % sT0)
        a('s_add_u32 s%d, s%d, 0x%x' % (sT0, sT0, MISC_OFF + 131072 + w * 32))
        a('v_mov_b32 v9, 0')
        a('s_mov_b64 exec, 1')
        for k in range(8):
            a('v_mov_b32 v8, s%d' % (80 + k))
            a('buffer_store_dword v8, v9, s[%d:%d], s%d offen offset:%d' % (sWS, sWS + 3, sT0, 4 * k))
        a('s_mov_b64 exec, -1')
    for kind, lst in reduce_ops(w, 1, cfg.get('g1_sc1', 0)):
        if kind == 'ad': a('s_waitcnt lgkmcnt(0)')
        for x in lst: a(x)
    if cfg.get('fused'):
        a('s_waitcnt vmcnt(0)')
        a('s_barrier')
        a('s_mov_b32 s%d, 65' % sCNT)
        if w == 0: pub_gp(a, 65)

def gen_g1_kernel(name, cfg):
    a = Asm()
    a.raw(kernel_header(name))
    a('s_cmp_ge_u32 s2, 256')
    a('s_cbranch_scc1 g1_exit')
    a('s_memrealtime s[70:71]')
    build_srds(a, dict(ws=sWS, wq=sWQ, wk=sWK, wv=sWV))
    a('v_and_b32 v%d, 63, v0' % vL)
    a('v_lshlrev_b32 v%d, 4, v%d' % (vL16, vL))
    a('v_lshrrev_b32 v%d, 6, v0' % vT)
    a('v_readfirstlane_b32 s%d, v%d' % (sW, vT))
    a('s_and_b32 s%d, s2, 127' % sT0)
    a('s_lshr_b32 s%d, s%d, 2' % (sH, sT0))
    a('s_and_b32 s%d, s%d, 3' % (sJ, sT0))
    a('s_lshr_b32 s%d, s2, 7' % sT0)
    a('s_lshl_b32 s%d, s%d, 5' % (sSEG, sT0))
    a('s_add_u32 s%d, s%d, 32' % (sEND, sSEG))
    R.load_weights(a, with_wo=False)
    for w in range(1, 4):
        a('s_cmp_eq_u32 s%d, %d' % (sW, w))
        a.branch('s_cbranch_scc1 g1_wave%d' % w)
    for w in range(4):
        a.label('g1_wave%d' % w)
        g1_wave(a, w, cfg, 'g1')
        if w == 0 and cfg.get('stamp'):
            a('s_memrealtime s[74:75]')
            a('s_waitcnt lgkmcnt(0)')
            a('v_mov_b32 v10, s70'); a('v_mov_b32 v11, s72'); a('v_mov_b32 v12, s74'); a('v_mov_b32 v13, 0')
            a('s_lshl_b32 s%d, s2, 4' % sT0)
            a('s_add_u32 s%d, s%d, 0x%x' % (sT0, sT0, MISC_OFF + 65536))
            a('v_mov_b32 v14, 0')
            a('s_mov_b64 exec, 1')
            a('buffer_store_dwordx4 v[10:13], v14, s[%d:%d], s%d offen' % (sWS, sWS + 3, sT0))
        a('s_endpgm')
    a.label('g1_exit')
    a('s_endpgm')
    return a.text()

def g1_side(a, cfg):
    import prerole, modloop as M
    a.label('g1_side')
    E = a.newlabel('sidee')
    blocks = {8: lambda: (dbg_wait(a, sDBG, 's91', 64, 8, sSPIN), prerole.dots_agpr(a, cfg, 92, 98304), a('s_barrier'), M.setup_gu(a, 'wg')),
              16: lambda: (M.block_gate(a, cfg), M.setup_gu(a, 'wu')),
              24: lambda: (M.block_up(a, cfg), M.setup_down(a, 0)),
              28: lambda: M.setup_down(a, 1),
              32: lambda: M.trickle_off(a),
              36: lambda: (M.block_c(a, cfg), M.setup_wo(a, 3)),
              44: lambda: (M.block_wo3(a), M.setup_wo(a, 2)),
              52: lambda: M.trickle_off(a)}
    Ls = {k: a.newlabel('side') for k in blocks}
    for k in blocks:
        a('s_cmp_eq_u32 s%d, %d' % (sSEG, k))
        a.branch('s_cbranch_scc1 %s' % Ls[k])
    a.branch('s_branch %s' % E)
    for k, fn in blocks.items():
        a.label(Ls[k]); fn(); a.branch('s_branch %s' % E)
    a.label(E)
    for w in range(3):
        a('s_cmp_eq_u32 s90, %d' % w)
        a.branch('s_cbranch_scc1 g1_back_w%d' % w)
    a.branch('s_branch g1_back_w3')
```

```python
from common import *
import rrole as R

sWS = 8
sT0, sT1, sT2, sT3, sC, sTASK = 45, 46, 47, 48, 65, 41
sMK = 80
NEG = 0xff7fffff

class AV:
    L16, L8, Dup, L16B = 2, 3, 4, 5
    T = 8
    MLO, MHI, FLO, NEGV = 6, 7, 14, 15
    Q = 16
    K = 48
    KM = 80
    V = 96
    VM = 128
    S = 136
    P = 156
    O = 16
    RC = 176

def attn_consts(a, cfg):
    A = AV
    a('v_and_b32 v1, 63, v0')
    a('v_lshlrev_b32 v%d, 4, v1' % A.L16)
    a('v_lshlrev_b32 v%d, 3, v1' % A.L8)
    a('v_add_u32 v%d, 0x1000, v%d' % (A.L16B, A.L16))
    a('v_lshrrev_b32 v%d, 4, v1' % A.T)
    a('v_and_b32 v%d, 7, v1' % (A.T + 1))
    a('v_lshl_add_u32 v%d, v%d, 3, v%d' % (A.Dup, A.T, A.T + 1))
    a('v_lshlrev_b32 v%d, 4, v%d' % (A.Dup, A.Dup))
    a('v_cmp_gt_u32 vcc, 32, v1')
    a('v_cndmask_b32 v%d, 0, -1, vcc' % A.MLO)
    a('v_cndmask_b32 v%d, -1, 0, vcc' % A.MHI)
    a('v_cndmask_b32 v%d, 0, 1.0, vcc' % A.FLO)
    a('v_mov_b32 v%d, 0x%x' % (A.NEGV, NEG))
    a('v_and_b32 v%d, 15, v1' % (A.T + 1))
    a('v_lshlrev_b32 v%d, 2, v%d' % (A.T, A.T))
    for i in range(4):
        a('v_add_u32 v%d, %d, v%d' % (A.T + 2, i, A.T))
        a('v_cmp_le_u32 s[%d:%d], v%d, v%d' % (sMK + 2 * i, sMK + 2 * i + 1, A.T + 2, A.T + 1))
    a('s_mov_b32 s%d, 0x%x' % (sC, cfg['cbits']))

def attn_task(a, cfg, ld_flags='', st_flags='', all_sc1=False):
    A = AV
    a('s_lshl_b32 s%d, s%d, 13' % (sT0, sTASK))
    a('s_add_u32 s%d, s%d, 0x%x' % (sT1, sT0, KF_OFF))
    a('s_add_u32 s%d, s%d, 0x%x' % (sT2, sT0, VF_OFF))
    if QF_OFF: a('s_add_u32 s%d, s%d, 0x%x' % (sT0, sT0, QF_OFF))
    def ld(r, n, va, so, off, fl=''):
        if all_sc1: fl = ' sc1'
        a('buffer_load_dword%s %s, v%d, s[%d:%d], s%d offen offset:%d%s' % ('x%d' % n, vr(r, n), va, sWS, sWS + 3, so, off, fl))
    for n in range(8): ld(A.Q + 4 * n, 4, A.L16 if n < 4 else A.L16B, sT0, (n & 3) * 1024)
    for n in range(8): ld(A.K + 4 * n, 4, A.L16 if n < 4 else A.L16B, sT1, (n & 3) * 1024)
    a('s_lshl_b32 s%d, s%d, 11' % (sT0, sTASK))
    a('s_add_u32 s%d, s%d, 0x%x' % (sT1, sT0, KM_OFF))
    a('s_add_u32 s%d, s%d, 0x%x' % (sT0, sT0, VM_OFF))
    for c in range(4): ld(A.KM + 4 * c, 4, A.Dup, sT1, c * 512, ld_flags)
    for n in range(8): ld(A.V + 4 * n, 4, A.L16 if n < 4 else A.L16B, sT2, (n & 3) * 1024)
    for j in range(4): ld(A.VM + 2 * j, 2, A.L8, sT0, j * 512, ld_flags)
    tiles = {(0, 0): A.S, (0, 2): A.S + 4, (1, 0): A.S + 8, (1, 1): A.S + 12, (1, 2): A.S + 16}
    a('s_waitcnt vmcnt(12)')
    for c in range(4):
        for (u, t), d in tiles.items():
            Aop = (A.K + 16 * t + 4 * c) if t < 2 else (A.KM + 4 * c)
            a('v_mfma_f32_16x16x32_bf16 %s, %s, %s, %s' % (vr(d, 4), vr(Aop, 4), vr(A.Q + 16 * u + 4 * c, 4), '0' if c == 0 else vr(d, 4)))
    a('s_lshr_b32 s%d, s%d, 5' % (sT0, sTASK))
    a('s_lshl_b32 s%d, s%d, 18' % (sT0, sT0))
    a('s_and_b32 s%d, s%d, 31' % (sT1, sTASK))
    a('s_lshl_b32 s%d, s%d, 12' % (sT1, sT1))
    a('s_add_u32 s%d, s%d, s%d' % (sT0, sT0, sT1))
    a('s_add_u32 s%d, s%d, 0x%x' % (sT0, sT0, OF_OFF))
    a('s_add_u32 s%d, s%d, 0x20000' % (sT1, sT0))
    for d in (tiles[(0, 0)], tiles[(1, 1)]):
        for i in range(4):
            a('v_cndmask_b32 v%d, v%d, v%d, s[%d:%d]' % (d + i, A.NEGV, d + i, sMK + 2 * i, sMK + 2 * i + 1))
    for u in range(2):
        regs = [tiles[k] + i for k in sorted(tiles) if k[0] == u for i in range(4)]
        m, t2 = A.T + 2 * u, A.T + 2 * u + 1
        a('v_max3_f32 v%d, v%d, v%d, v%d' % (m, regs[0], regs[1], regs[2]))
        k = 3
        while k + 1 < len(regs):
            a('v_max3_f32 v%d, v%d, v%d, v%d' % (m, m, regs[k], regs[k + 1])); k += 2
        if k < len(regs): a('v_max_f32 v%d, v%d, v%d' % (m, m, regs[k]))
    for sw in ('v_permlane16_swap_b32', 'v_permlane32_swap_b32'):
        for u in range(2): a('v_mov_b32 v%d, v%d' % (A.T + 2 * u + 1, A.T + 2 * u))
        for u in range(2): a('%s v%d, v%d' % (sw, A.T + 2 * u, A.T + 2 * u + 1))
        for u in range(2): a('v_max_f32 v%d, v%d, v%d' % (A.T + 2 * u, A.T + 2 * u, A.T + 2 * u + 1))
    for u in range(2): a('v_mul_f32 v%d, s%d, v%d' % (A.T + 2 * u, sC, A.T + 2 * u))
    for (u, t), d in tiles.items():
        for i in range(4): a('v_fma_f32 v%d, v%d, s%d, -v%d' % (d + i, d + i, sC, A.T + 2 * u))
    for (u, t), d in tiles.items():
        for i in range(4): a('v_exp_f32 v%d, v%d' % (d + i, d + i))
    for u in range(2):
        p = A.P + 10 * u
        d = tiles[(u, 0)]
        a('v_cvt_pk_bf16_f32 v%d, v%d, v%d' % (p, d, d + 1)); a('v_cvt_pk_bf16_f32 v%d, v%d, v%d' % (p + 1, d + 2, d + 3))
        if u == 0:
            a('v_mov_b32 v%d, 0' % (p + 2)); a('v_mov_b32 v%d, 0' % (p + 3))
        else:
            d = tiles[(1, 1)]
            a('v_cvt_pk_bf16_f32 v%d, v%d, v%d' % (p + 2, d, d + 1)); a('v_cvt_pk_bf16_f32 v%d, v%d, v%d' % (p + 3, d + 2, d + 3))
        d = tiles[(u, 2)]
        a('v_cvt_pk_bf16_f32 v%d, v%d, v%d' % (p + 4, d, d + 1)); a('v_cvt_pk_bf16_f32 v%d, v%d, v%d' % (p + 5, d + 2, d + 3))
        a('v_and_b32 v%d, v%d, v%d' % (p + 6, p + 4, A.MLO)); a('v_and_b32 v%d, v%d, v%d' % (p + 7, p + 5, A.MLO))
        a('v_and_b32 v%d, v%d, v%d' % (p + 8, p + 4, A.MHI)); a('v_and_b32 v%d, v%d, v%d' % (p + 9, p + 5, A.MHI))
    a('s_waitcnt vmcnt(0)')
    for u in range(2):
        sA, sB = A.T + 2 * u, A.T + 2 * u + 1
        d2 = tiles[(u, 2)]; d0 = tiles[(u, 0)]
        R.pk_add(a, d2, d2, d2 + 2); R.pk_add(a, d0, d0, d0 + 2)
        if u == 1:
            d1 = tiles[(1, 1)]
            R.pk_add(a, d1, d1, d1 + 2); R.pk_add(a, d0, d0, d1)
        a('v_add_f32 v%d, v%d, v%d' % (sB, d2, d2 + 1))
        a('v_add_f32 v%d, v%d, v%d' % (sA, d0, d0 + 1))
        a('v_fma_f32 v%d, v%d, v%d, v%d' % (sA, sB, A.FLO, sA))
    for u in range(2):
        p = A.P + 10 * u
        for et in range(8):
            o = A.O + 32 * u + 4 * et
            a('v_mfma_f32_16x16x32_bf16 %s, %s, %s, 0' % (vr(o, 4), vr(A.V + 4 * et, 4), vr(p, 4)))
            if u == 0 and et in (0, 3):
                sw = 'v_permlane16_swap_b32' if et == 0 else 'v_permlane32_swap_b32'
                for x in range(2): a('v_mov_b32 v%d, v%d' % (A.T + 2 * x + 1, A.T + 2 * x))
                for x in range(2): a('%s v%d, v%d' % (sw, A.T + 2 * x, A.T + 2 * x + 1))
                for x in range(2): a('v_add_f32 v%d, v%d, v%d' % (A.T + 2 * x, A.T + 2 * x, A.T + 2 * x + 1))
            if u == 0 and et == 6:
                for x in range(2):
                    a('v_rcp_f32 v%d, v%d' % (A.RC + 2 * x, A.T + 2 * x))
                for x in range(2):
                    a('v_mov_b32 v%d, v%d' % (A.RC + 2 * x + 1, A.RC + 2 * x))
        for et in range(8):
            o = A.O + 32 * u + 4 * et
            a('v_mfma_f32_16x16x16_bf16 %s, %s, %s, %s' % (vr(o, 4), vr(A.VM + 2 * (et >> 1), 2), vr(p + 6 + 2 * (et & 1), 2), vr(o, 4)))
    for u in range(2):
        for c in range(4):
            o = A.O + 32 * u + 8 * c
            for i in range(4):
                a('v_pk_mul_f32 v[%d:%d], v[%d:%d], v[%d:%d]' % (o + 2 * i, o + 2 * i + 1, o + 2 * i, o + 2 * i + 1, A.RC + 2 * u, A.RC + 2 * u + 1))
            for i in range(4):
                a('v_cvt_pk_bf16_f32 v%d, v%d, v%d' % (o + i, o + 2 * i, o + 2 * i + 1))
            a('buffer_store_dwordx4 %s, v%d, s[%d:%d], s%d offen offset:%d%s' % (vr(o, 4), A.L16, sWS, sWS + 3, sT0 + u, c * 1024, st_flags))

def gen_attn_kernel(name, cfg):
    a = Asm()
    a.raw(kernel_header(name))
    a('s_cmp_ge_u32 s2, 512')
    a('s_cbranch_scc1 at_exit')
    build_srds(a, dict(ws=sWS))
    attn_consts(a, cfg)
    a('v_lshrrev_b32 v%d, 6, v0' % AV.T)
    a('v_readfirstlane_b32 s%d, v%d' % (sT0, AV.T))
    a('s_lshl_b32 s%d, s2, 2' % sTASK)
    a('s_add_u32 s%d, s%d, s%d' % (sTASK, sTASK, sT0))
    attn_task(a, cfg)
    a.label('at_exit')
    a('s_endpgm')
    return a.text()

sWO, sX, sOUT = 12, 16, 20
sI, sW, sTILE, sTEND, sTSTEP, sOO, sN, sIDX0, sIDX1 = 41, 42, 43, 44, 49, 50, 51, 52, 53
class OV:
    L, L16, L16B, XA, GA = 1, 2, 3, 4, 5
    T = 8
    TR = 12
    B = 16
    AC = 144
    XR = 152
    G = 160
    RD = 164
    E = 188
LDSO = 0

def wof(q, tau, p): return 64 * q + (tau * 8 + p) * 4

def out_load_weights(a, nq=4):
    O = OV
    a('v_lshrrev_b32 v%d, 2, v%d' % (O.T, O.L))
    a('v_and_b32 v%d, 3, v%d' % (O.T + 1, O.L))
    a('v_lshlrev_b32 v%d, 4, v%d' % (O.T + 1, O.T + 1))
    a('v_lshl_add_u32 v%d, v%d, 11, v%d' % (O.T + 3, O.T, O.T + 1))
    a('s_lshl_b32 s%d, s%d, 21' % (sT0, sW))
    a('s_lshl_b32 s%d, s%d, 6' % (sT1, sI))
    a('s_add_u32 s%d, s%d, s%d' % (sT0, sT0, sT1))
    for n in range(16 * nq):
        a('buffer_load_dwordx4 a[%d:%d], v%d, s[%d:%d], s%d offen' % (4 * n, 4 * n + 3, O.T + 3, sWO, sWO + 3, sT0))
        if n < 16 * nq - 1: a('s_add_u32 s%d, s%d, 0x8000' % (sT0, sT0))
    if nq < 4:
        import modloop
        modloop.wo_tr(a, 2)
    a('s_lshl_b32 s%d, s%d, 14' % (sT0, sW))
    a('v_add_u32 v%d, s%d, v%d' % (O.TR, sT0, O.L16))
    a('v_lshrrev_b32 v%d, 4, v%d' % (O.T, O.L))
    a('v_bfe_u32 v%d, v%d, 2, 2' % (O.T + 1, O.L))
    a('v_and_b32 v%d, 3, v%d' % (O.T + 2, O.L))
    a('v_lshl_add_u32 v%d, v%d, 2, v%d' % (O.T + 3, O.T, O.T + 1))
    a('v_lshlrev_b32 v%d, 6, v%d' % (O.T + 3, O.T + 3))
    a('v_lshl_add_u32 v%d, v%d, 4, v%d' % (O.T + 3, O.T + 2, O.T + 3))
    a('v_add_u32 v%d, s%d, v%d' % (O.TR + 1, sT0, O.T + 3))
    for q in range(nq):
        a('s_waitcnt vmcnt(%d)' % (16 * (nq - 1) - 16 * q))
        for n in range(16):
            a('ds_write_b128 v%d, a[%d:%d] offset:%d' % (O.TR, 64 * q + 4 * n, 64 * q + 4 * n + 3, n * 1024))
        a('s_waitcnt lgkmcnt(0)')
        for tau in range(2):
            for p in range(8):
                for half in range(2):
                    r = wof(q, tau, p) + 2 * half
                    a('ds_read_b64_tr_b16 a[%d:%d], v%d offset:%d' % (r, r + 1, O.TR + 1, (32 * p + 16 * half) * 64 + tau * 8))
        a('s_waitcnt lgkmcnt(0)')

def oloads(q, so, fl=''):
    O = OV
    return ['buffer_load_dwordx4 v[%d:%d], v%d, s[%d:%d], s%d offen offset:%d%s' % (O.B + 32 * q + 4 * p, O.B + 32 * q + 4 * p + 3, O.L16 if p < 4 else O.L16B, sWS, sWS + 3, so, (p & 3) * 1024, fl) for p in range(8)]

def epilogue(a, par, tile_s=None, fused=False, lds=True):
    O = OV
    for wv in range(4 if lds else 0):
        for tau in range(2):
            r = O.E + wv * 8 + tau * 4
            a('ds_read_b128 v[%d:%d], v%d offset:%d' % (r, r + 3, O.L16, LDSO + par * 8192 + wv * 2048 + tau * 1024))
    if lds: a('s_waitcnt lgkmcnt(0)')
    for x in range(0, 8, 2):
        R.pk_add(a, O.E + x, O.E + x, O.E + 8 + x); R.pk_add(a, O.E + 16 + x, O.E + 16 + x, O.E + 24 + x)
    for x in range(0, 8, 2):
        R.pk_add(a, O.E + x, O.E + x, O.E + 16 + x)
    for i in range(4): a('v_cvt_pk_bf16_f32 v%d, v%d, v%d' % (O.E + 8 + i, O.E + 2 * i, O.E + 2 * i + 1))
    for i in range(4):
        a('v_lshlrev_b32 v%d, 16, v%d' % (O.E + 2 * i, O.E + 8 + i))
        a('v_and_b32 v%d, 0xffff0000, v%d' % (O.E + 2 * i + 1, O.E + 8 + i))
    xr = O.XR + 4 * par; g = O.G + par
    if lds: a('s_waitcnt vmcnt(34)')
    for i in range(4):
        a('v_lshlrev_b32 v%d, 16, v%d' % (O.E + 16 + 2 * i, xr + i))
        a('v_and_b32 v%d, 0xffff0000, v%d' % (O.E + 17 + 2 * i, xr + i))
    if tile_s is None: a('s_sub_u32 s%d, s%d, s%d' % (sT0, sTILE, sTSTEP))
    else: a('s_mov_b32 s%d, s%d' % (sT0, tile_s))
    Lskip = a.newlabel('nomod')
    a('s_lshr_b32 s%d, s%d, 4' % (sT1, sIDX0))
    a('s_lshr_b32 s%d, s%d, 4' % (sT2, sIDX1))
    a('s_cmp_eq_u32 s%d, s%d' % (sT1, sT0))
    a('s_cselect_b32 s%d, 1, 0' % sT3)
    a('s_cmp_eq_u32 s%d, s%d' % (sT2, sT0))
    a('s_cselect_b32 s%d, 1, s%d' % (sT3, sT3))
    a('s_cmp_eq_u32 s%d, 0' % sT3)
    a.branch('s_cbranch_scc1 %s' % Lskip)
    a('v_and_b32 v%d, 15, v%d' % (O.E + 24, O.L))
    a('s_lshl_b32 s%d, s%d, 4' % (sT1, sT0))
    a('v_add_u32 v%d, s%d, v%d' % (O.E + 24, sT1, O.E + 24))
    a('v_lshrrev_b32 v%d, 4, v%d' % (O.E + 25, O.L))
    a('v_lshlrev_b32 v%d, 5, v%d' % (O.E + 25, O.E + 25))
    for c in range(2):
        Lc = a.newlabel('modc')
        a('v_cmp_eq_u32 vcc, s%d, v%d' % (sIDX0 + c, O.E + 24))
        a('s_and_saveexec_b64 s[90:91], vcc')
        a.branch('s_cbranch_execz %s' % Lc)
        a('s_lshl_b32 s%d, s%d, 7' % (sT1, sI))
        a('s_add_u32 s%d, s%d, 0x%x' % (sT1, sT1, YP_OFF + c * 4096))
        for i in range(8): a('v_mov_b32 v%d, 0' % (O.RD + 16 + i))
        for sp in range(7):
            a('buffer_load_dwordx4 v[%d:%d], v%d, s[%d:%d], s%d offen sc1' % (O.RD, O.RD + 3, O.E + 25, sWS, sWS + 3, sT1))
            a('buffer_load_dwordx4 v[%d:%d], v%d, s[%d:%d], s%d offen offset:16 sc1' % (O.RD + 4, O.RD + 7, O.E + 25, sWS, sWS + 3, sT1))
            a('s_add_u32 s%d, s%d, 8192' % (sT1, sT1))
            a('s_waitcnt vmcnt(0)')
            for x in range(0, 8, 2): R.pk_add(a, O.RD + 16 + x, O.RD + 16 + x, O.RD + x)
        a('s_mov_b32 s%d, 0x%x' % (sT1, IDX_OFF + 8 + 4 * c))
        a('v_mov_b32 v%d, 0' % (O.RD + 8))
        a('buffer_load_dword v%d, v%d, s[%d:%d], s%d offen sc1' % (O.RD + 9, O.RD + 8, sWS, sWS + 3, sT1))
        def rnd(base):
            for i in range(4):
                a('v_cvt_pk_bf16_f32 v%d, v%d, v%d' % (O.RD + i, base + 2 * i, base + 2 * i + 1))
            for i in range(4):
                a('v_lshlrev_b32 v%d, 16, v%d' % (base + 2 * i, O.RD + i))
                a('v_and_b32 v%d, 0xffff0000, v%d' % (base + 2 * i + 1, O.RD + i))
        rnd(O.RD + 16)
        a('s_waitcnt vmcnt(0)')
        for i in range(8): a('v_mul_f32 v%d, v%d, v%d' % (O.RD + 16 + i, O.RD + 16 + i, O.RD + 9))
        rnd(O.RD + 16)
        for i in range(8): a('v_add_f32 v%d, v%d, v%d' % (O.E + 16 + i, O.E + 16 + i, O.RD + 16 + i))
        rnd(O.E + 16)
        a.label(Lc)
        a('s_mov_b64 exec, s[90:91]')
    a.label(Lskip)
    a('v_sub_f32 v%d, 1.0, v%d' % (O.E + 24, g))
    a('v_cvt_pk_bf16_f32 v%d, v%d, v%d' % (O.E + 24, O.E + 24, O.E + 24))
    a('v_and_b32 v%d, 0xffff0000, v%d' % (O.E + 24, O.E + 24))
    for i in range(8): a('v_mul_f32 v%d, v%d, v%d' % (O.E + 16 + i, O.E + 16 + i, O.E + 24))
    for i in range(8): a('v_fma_f32 v%d, v%d, v%d, v%d' % (O.E + i, O.E + i, g, O.E + 16 + i))
    for i in range(4): a('v_cvt_pk_bf16_f32 v%d, v%d, v%d' % (O.E + 8 + i, O.E + 2 * i, O.E + 2 * i + 1))
    a('s_lshl_b32 s%d, s%d, 15' % (sT0, sT0))
    a('s_lshl_b32 s%d, s%d, 6' % (sT1, sI))
    a('s_add_u32 s%d, s%d, s%d' % (sT0, sT0, sT1))
    a('buffer_store_dwordx4 v[%d:%d], v%d, s[%d:%d], s%d offen' % (O.E + 8, O.E + 11, O.XA, sOUT, sOUT + 3, sT0))

def tile_body(a, par, cfg):
    O = OV
    a('s_lshl_b32 s%d, s%d, 15' % (sT0, sTILE))
    a('s_lshl_b32 s%d, s%d, 6' % (sT1, sI))
    a('s_add_u32 s%d, s%d, s%d' % (sT0, sT0, sT1))
    a('buffer_load_dwordx4 v[%d:%d], v%d, s[%d:%d], s%d offen' % (O.XR + 4 * par, O.XR + 4 * par + 3, O.XA, sX, sX + 3, sT0))
    a('s_lshl_b32 s%d, s%d, 6' % (sT0, sTILE))
    a('s_add_u32 s%d, s%d, 0x%x' % (sT0, sT0, GL_OFF))
    a('buffer_load_dword v%d, v%d, s[%d:%d], s%d offen' % (O.G + par, O.GA, sWS, sWS + 3, sT0))
    Ls = a.newlabel('noepi')
    a('s_cmp_eq_u32 s%d, 0' % sN)
    a('s_cbranch_scc1 %s' % Ls)
    a('s_and_b32 s%d, s%d, 3' % (sT0, sN))
    a('s_cmp_lg_u32 s%d, s%d' % (sT0, sW))
    a.branch('s_cbranch_scc1 %s' % Ls)
    epilogue(a, 1 - par)
    a.label(Ls)
    a('s_lshl_b32 s%d, s%d, 17' % (sT3, sTSTEP))
    a('s_add_u32 s%d, s%d, s%d' % (sOO, sOO, sT3))
    for q in range(4):
        a('s_waitcnt vmcnt(26)')
        for p in range(8):
            for tau in range(2):
                c = '0' if (q == 0 and p == 0) else vr(O.AC + 4 * tau, 4)
                a('v_mfma_f32_16x16x32_bf16 %s, %s, %s, %s' % (vr(O.AC + 4 * tau, 4), ar(wof(q, tau, p), 4), vr(O.B + 32 * q + 4 * p, 4), c))
        a('s_add_u32 s%d, s%d, %d' % (sT0, sOO, q * 8192))
        for x in oloads(q, sT0): a(x)
    a('s_lshl_b32 s%d, s%d, 11' % (sT0, sW))
    a('v_add_u32 v%d, s%d, v%d' % (O.T, sT0, O.L16))
    for tau in range(2):
        a('ds_write_b128 v%d, v[%d:%d] offset:%d' % (O.T, O.AC + 4 * tau, O.AC + 4 * tau + 3, LDSO + par * 8192 + tau * 1024))
    a('s_waitcnt lgkmcnt(0)')
    a('s_barrier')
    a('s_add_u32 s%d, s%d, s%d' % (sTILE, sTILE, sTSTEP))
    a('s_add_u32 s%d, s%d, 1' % (sN, sN))

def gen_out_kernel(name, cfg):
    O = OV
    a = Asm()
    a.raw(kernel_header(name))
    a('s_cmp_ge_u32 s2, 256')
    a('s_cbranch_scc1 out_exit')
    build_srds(a, dict(ws=sWS, wo=sWO, x=sX, out=sOUT))
    a('v_and_b32 v%d, 63, v0' % O.L)
    a('v_lshlrev_b32 v%d, 4, v%d' % (O.L16, O.L))
    a('v_add_u32 v%d, 0x1000, v%d' % (O.L16B, O.L16))
    a('v_lshrrev_b32 v%d, 6, v0' % O.T)
    a('v_readfirstlane_b32 s%d, v%d' % (sW, O.T))
    a('v_and_b32 v%d, 15, v%d' % (O.T, O.L))
    a('v_lshlrev_b32 v%d, 2, v%d' % (O.GA, O.T))
    a('v_lshrrev_b32 v%d, 4, v%d' % (O.T + 1, O.L))
    a('v_lshlrev_b32 v%d, 4, v%d' % (O.T + 1, O.T + 1))
    a('v_lshl_add_u32 v%d, v%d, 11, v%d' % (O.XA, O.T, O.T + 1))
    a('s_lshr_b32 s%d, s2, 3' % sI)
    a('s_and_b32 s%d, s2, 7' % sTILE)
    a('s_mov_b32 s%d, 8' % sTSTEP)
    a('s_mov_b32 s%d, 0' % sN)
    a('v_mov_b32 v%d, 0' % O.T)
    a('s_mov_b32 s%d, 0x%x' % (sT0, IDX_OFF))
    a('buffer_load_dwordx2 v[%d:%d], v%d, s[%d:%d], s%d offen' % (O.E, O.E + 1, O.T, sWS, sWS + 3, sT0))
    a('s_waitcnt vmcnt(0)')
    a('v_readfirstlane_b32 s%d, v%d' % (sIDX0, O.E))
    a('v_readfirstlane_b32 s%d, v%d' % (sIDX1, O.E + 1))
    out_load_weights(a)
    a('s_barrier')
    a('s_lshl_b32 s%d, s%d, 17' % (sOO, sTILE))
    a('s_lshl_b32 s%d, s%d, 15' % (sT0, sW))
    a('s_add_u32 s%d, s%d, s%d' % (sOO, sOO, sT0))
    a('s_add_u32 s%d, s%d, 0x%x' % (sOO, sOO, OF_OFF))
    for q in range(4):
        a('s_add_u32 s%d, s%d, %d' % (sT0, sOO, q * 8192))
        for x in oloads(q, sT0): a(x)
    a.label('out_loop')
    tile_body(a, 0, cfg)
    tile_body(a, 1, cfg)
    a('s_cmp_lt_u32 s%d, 16' % sN)
    a.branch('s_cbranch_scc1 out_loop')
    a('s_cmp_lg_u32 s%d, 0' % sW)
    a.branch('s_cbranch_scc1 out_exit')
    a('s_waitcnt vmcnt(0)')
    epilogue(a, 1)
    a.label('out_exit')
    a('s_endpgm')
    return a.text()

def out_consts(a):
    O = OV
    a('v_and_b32 v%d, 63, v0' % O.L)
    a('v_lshlrev_b32 v%d, 4, v%d' % (O.L16, O.L))
    a('v_add_u32 v%d, 0x1000, v%d' % (O.L16B, O.L16))
    a('v_and_b32 v%d, 15, v%d' % (O.T, O.L))
    a('v_lshlrev_b32 v%d, 2, v%d' % (O.GA, O.T))
    a('v_lshrrev_b32 v%d, 4, v%d' % (O.T + 1, O.L))
    a('v_lshlrev_b32 v%d, 4, v%d' % (O.T + 1, O.T + 1))
    a('v_lshl_add_u32 v%d, v%d, 11, v%d' % (O.XA, O.T, O.T + 1))

sPT, sNB = 56, 57
def wo_tile(a, par, pf=True):
    O = OV
    a('s_lshl_b32 s%d, s%d, 15' % (sT0, sTILE))
    a('s_lshl_b32 s%d, s%d, 6' % (sT1, sI))
    a('s_add_u32 s%d, s%d, s%d' % (sT0, sT0, sT1))
    a('buffer_load_dwordx4 v[%d:%d], v%d, s[%d:%d], s%d offen' % (O.XR + 4 * par, O.XR + 4 * par + 3, O.XA, sX, sX + 3, sT0))
    a('s_lshl_b32 s%d, s%d, 6' % (sT0, sTILE))
    a('s_add_u32 s%d, s%d, 0x%x' % (sT0, sT0, GL_OFF))
    a('buffer_load_dword v%d, v%d, s[%d:%d], s%d offen sc1' % (O.G + par, O.GA, sWS, sWS + 3, sT0))
    Ls = a.newlabel('noepi')
    a('s_cmp_eq_u32 s%d, 0' % sN)
    a('s_cbranch_scc1 %s' % Ls)
    a('s_and_b32 s%d, s%d, 3' % (sT0, sN))
    a('s_cmp_lg_u32 s%d, s%d' % (sT0, sW))
    a.branch('s_cbranch_scc1 %s' % Ls)
    epilogue(a, 1 - par, sPT, True)
    a.label(Ls)
    a('s_add_u32 s%d, s%d, 0x%x' % (sOO, sOO, 0x20000 * (1 if par == 0 else 7)))
    for q in range(4):
        a('s_waitcnt vmcnt(%d)' % (26 if pf else 26 - 8 * q))
        for p in range(8):
            for tau in range(2):
                c = '0' if (q == 0 and p == 0) else vr(O.AC + 4 * tau, 4)
                a('v_mfma_f32_16x16x32_bf16 %s, %s, %s, %s' % (vr(O.AC + 4 * tau, 4), ar(wof(q, tau, p), 4), vr(O.B + 32 * q + 4 * p, 4), c))
        if pf:
            a('s_add_u32 s%d, s%d, %d' % (sT0, sOO, q * 8192))
            for x in oloads(q, sT0, ' sc1'): a(x)
    for tau in range(2):
        a('ds_write_b128 v%d, v[%d:%d] offset:%d' % (O.T, O.AC + 4 * tau, O.AC + 4 * tau + 3, LDSO + par * 8192 + tau * 1024))
    a('s_waitcnt lgkmcnt(0)')
    a('s_barrier')
    a('s_mov_b32 s%d, s%d' % (sPT, sTILE))
    a('s_add_u32 s%d, s%d, %d' % (sTILE, sTILE, 1 if par == 0 else 7))
    a('s_add_u32 s%d, s%d, 1' % (sN, sN))

def wo_batch(a, cfg):
    O = OV
    out_consts(a)
    a('s_mov_b32 s%d, 0' % sN)
    a('s_lshl_b32 s%d, s%d, 17' % (sOO, sTILE))
    a('s_lshl_b32 s%d, s%d, 15' % (sT0, sW))
    a('s_add_u32 s%d, s%d, s%d' % (sOO, sOO, sT0))
    a('s_add_u32 s%d, s%d, 0x%x' % (sOO, sOO, OF_OFF))
    for q in range(4):
        a('s_add_u32 s%d, s%d, %d' % (sT0, sOO, q * 8192))
        for x in oloads(q, sT0, ' sc1'): a(x)
    a('s_lshl_b32 s%d, s%d, 11' % (sT0, sW))
    a('v_add_u32 v%d, s%d, v%d' % (O.T, sT0, O.L16))
    L = a.newlabel('wob')
    a.label(L)
    Ll = a.newlabel('wol')
    wo_tile(a, 0)
    a('s_sub_u32 s%d, s%d, 1' % (sNB, sNB))
    a('s_cmp_eq_u32 s%d, 0' % sNB)
    a.branch('s_cbranch_scc1 %s' % Ll)
    wo_tile(a, 1)
    a.branch('s_branch %s' % L)
    a.label(Ll)
    wo_tile(a, 1, pf=False)
    Ls = a.newlabel('noepi')
    a('s_cmp_lg_u32 s%d, 3' % sW)
    a.branch('s_cbranch_scc1 %s' % Ls)
    a('s_waitcnt vmcnt(0)')
    epilogue(a, 1, sPT, True)
    a.label(Ls)

sKQ, sCG, sC32, sSLOT_, sPWO, sNT, sTN = 60, 61, 62, 63, 64, 49, 59
def wo2_load_weights(a):
    global sW, sI
    sw, si = sW, sI
    a('s_lshr_b32 s%d, s%d, 3' % (sKQ, si))
    a('s_and_b32 s%d, s%d, 7' % (sCG, si))
    a('s_lshl_b32 s%d, s%d, 2' % (sC32, sCG))
    a('s_add_u32 s%d, s%d, s%d' % (sC32, sC32, sw))
    O = OV
    a('v_lshrrev_b32 v%d, 2, v%d' % (O.T, O.L))
    a('v_and_b32 v%d, 3, v%d' % (O.T + 1, O.L))
    a('v_lshlrev_b32 v%d, 4, v%d' % (O.T + 1, O.T + 1))
    a('v_lshl_add_u32 v%d, v%d, 11, v%d' % (O.T + 3, O.T, O.T + 1))
    a('s_lshl_b32 s%d, s%d, 21' % (sT0, sKQ))
    a('s_lshl_b32 s%d, s%d, 6' % (sT1, sC32))
    a('s_add_u32 s%d, s%d, s%d' % (sT0, sT0, sT1))
    for n in range(64):
        a('buffer_load_dwordx4 a[%d:%d], v%d, s[%d:%d], s%d offen' % (4 * n, 4 * n + 3, O.T + 3, sWO, sWO + 3, sT0))
        if n < 63: a('s_add_u32 s%d, s%d, 0x8000' % (sT0, sT0))
    a('s_lshl_b32 s%d, s%d, 14' % (sT0, sw))
    a('v_add_u32 v%d, s%d, v%d' % (O.TR, sT0, O.L16))
    a('v_lshrrev_b32 v%d, 4, v%d' % (O.T, O.L))
    a('v_bfe_u32 v%d, v%d, 2, 2' % (O.T + 1, O.L))
    a('v_and_b32 v%d, 3, v%d' % (O.T + 2, O.L))
    a('v_lshl_add_u32 v%d, v%d, 2, v%d' % (O.T + 3, O.T, O.T + 1))
    a('v_lshlrev_b32 v%d, 6, v%d' % (O.T + 3, O.T + 3))
    a('v_lshl_add_u32 v%d, v%d, 4, v%d' % (O.T + 3, O.T + 2, O.T + 3))
    a('v_add_u32 v%d, s%d, v%d' % (O.TR + 1, sT0, O.T + 3))
    for q in range(4):
        a('s_waitcnt vmcnt(%d)' % (48 - 16 * q))
        for n in range(16):
            a('ds_write_b128 v%d, a[%d:%d] offset:%d' % (O.TR, 64 * q + 4 * n, 64 * q + 4 * n + 3, n * 1024))
        a('s_waitcnt lgkmcnt(0)')
        for tau in range(2):
            for p in range(8):
                for half in range(2):
                    r = wof(q, tau, p) + 2 * half
                    a('ds_read_b64_tr_b16 a[%d:%d], v%d offset:%d' % (r, r + 1, O.TR + 1, (32 * p + 16 * half) * 64 + tau * 8))
        a('s_waitcnt lgkmcnt(0)')

def tile_of(a, dst, n_s, sGX):
    a('s_lshr_b32 s%d, s%d, 1' % (dst, n_s))
    a('s_lshl_b32 s%d, s%d, 2' % (dst, dst))
    a('s_add_u32 s%d, s%d, s%d' % (dst, dst, sGX))
    a('s_lshl_b32 s%d, s%d, 1' % (dst, dst))
    a('s_and_b32 s%d, s%d, 1' % (sT3, n_s))
    a('s_add_u32 s%d, s%d, s%d' % (dst, dst, sT3))

sDA, sDL = 74, 75
def wo2_dma_setup(a, n_s, slot_s, sGX):
    tile_of(a, sDA, n_s, sGX)
    a('s_lshl_b32 s%d, s%d, 17' % (sDA, sDA))
    a('s_lshl_b32 s%d, s%d, 15' % (sT1, sKQ))
    a('s_add_u32 s%d, s%d, s%d' % (sDA, sDA, sT1))
    a('s_lshl_b32 s%d, s%d, 13' % (sT1, sW))
    a('s_add_u32 s%d, s%d, s%d' % (sDA, sDA, sT1))
    a('s_add_u32 s%d, s%d, 0x%x' % (sDA, sDA, OF_OFF))
    a('s_lshl_b32 s%d, s%d, 15' % (sDL, slot_s))
    a('s_add_u32 s%d, s%d, s%d' % (sDL, sDL, sT1))

def wo2_dma_one(a, p):
    O = OV
    if p == 0: a('s_mov_b32 m0, s%d' % sDL)
    if p == 4:
        a('s_add_u32 m0, s%d, 4096' % sDL)
        a('s_add_u32 s%d, s%d, 4096' % (sDA, sDA))
    a('buffer_load_dwordx4 v%d, s[%d:%d], s%d offen offset:%d sc1 lds' % (O.L16, sWS, sWS + 3, sDA, (p & 3) * 1024))

def wo2_dma(a, n_s, slot_s, sGX):
    wo2_dma_setup(a, n_s, slot_s, sGX)
    for p in range(8): wo2_dma_one(a, p)

def wo2_batch(a, cfg, sGX, sNW, sSP):
    O = OV
    safe = ' sc1' if cfg.get('safe') else ''
    out_consts(a)
    sN0 = sPT
    a('s_mov_b32 s%d, s%d' % (sN0, sTN))
    a('s_mov_b32 s%d, 0' % sSLOT_)
    wo2_dma(a, sTN, sSLOT_, sGX)
    a('s_add_u32 s%d, s%d, 1' % (sOO, sTN))
    a('s_mov_b32 s%d, 1' % sN)
    wo2_dma(a, sOO, sN, sGX)
    a('s_lshl_b32 s%d, s%d, 23' % (sPWO, sGX))
    a('s_lshl_b32 s%d, s%d, 16' % (sT0, sKQ))
    a('s_add_u32 s%d, s%d, s%d' % (sPWO, sPWO, sT0))
    a('s_lshl_b32 s%d, s%d, 11' % (sT0, sC32))
    a('s_add_u32 s%d, s%d, s%d' % (sPWO, sPWO, sT0))
    a('s_add_u32 s%d, s%d, 0x%x' % (sPWO, sPWO, PW_OFF))
    a('s_waitcnt vmcnt(8)')
    L = a.newlabel('w2l'); Lnd = a.newlabel('w2nd'); Lj = a.newlabel('w2j')
    a.label(L)
    a('s_barrier')
    a('s_lshl_b32 s%d, s%d, 15' % (sT0, sSLOT_))
    a('v_add_u32 v%d, s%d, v%d' % (O.T, sT0, O.L16))
    NPRE = 8
    def rd(k): a('ds_read_b128 v[%d:%d], v%d offset:%d' % (O.B + 4 * (k % 16), O.B + 4 * (k % 16) + 3, O.T, k * 1024))
    for k in range(NPRE): rd(k)
    a('s_add_u32 s%d, s%d, 2' % (sOO, sTN))
    a('s_sub_u32 s%d, s%d, 1' % (sT0, sNT))
    a('s_min_u32 s%d, s%d, s%d' % (sOO, sOO, sT0))
    a('s_add_u32 s%d, s%d, 2' % (sN, sSLOT_))
    a('s_cmp_ge_u32 s%d, 3' % sN)
    a('s_cselect_b32 s%d, 3, 0' % sT0)
    a('s_sub_u32 s%d, s%d, s%d' % (sN, sN, sT0))
    wo2_dma_setup(a, sOO, sN, sGX)
    a('s_and_b32 s%d, s%d, %d' % (sT0, sTN, cfg.get('pwmask', 31)))
    a('s_lshl_b32 s%d, s%d, 18' % (sT0, sT0))
    a('s_add_u32 s%d, s%d, s%d' % (sT0, sT0, sPWO))
    for k in range(32):
        a('s_waitcnt lgkmcnt(%d)' % min(NPRE - 1, 31 - k))
        for tau in range(2):
            c = '0' if k == 0 else vr(O.AC + 4 * tau, 4)
            a('v_mfma_f32_16x16x32_bf16 %s, %s, %s, %s' % (vr(O.AC + 4 * tau, 4), ar(wof(k >> 3, tau, k & 7), 4), vr(O.B + 4 * (k % 16), 4), c))
            if tau == 0 and k + NPRE < 32: rd(k + NPRE)
            if tau == 1 and k % 3 == 1 and k // 3 < 8: wo2_dma_one(a, k // 3)
    a('s_add_u32 s%d, s%d, 1' % (sTN, sTN))
    a('s_add_u32 s%d, s%d, 1' % (sSLOT_, sSLOT_))
    a('s_cmp_ge_u32 s%d, 3' % sSLOT_)
    a('s_cselect_b32 s%d, 0, s%d' % (sSLOT_, sSLOT_))
    for tau in range(2):
        a('buffer_store_dwordx4 v[%d:%d], v%d, s[%d:%d], s%d offen offset:%d%s' % (O.AC + 4 * tau, O.AC + 4 * tau + 3, O.L16, sWS, sWS + 3, sT0, tau * 1024, safe))
    a('s_cmp_ge_u32 s%d, s%d' % (sTN, sNT))
    a('s_cbranch_scc1 %s' % Lj)
    a('s_waitcnt vmcnt(10)')
    a.branch('s_branch %s' % L)
    a.label(Lj)
    a('s_waitcnt vmcnt(0)')
    a('s_barrier')
    import fused
    fused.g2mark(a, cfg, 7)
    a('s_lshl_b32 s%d, s%d, 3' % (sT0, sGX))
    a('s_add_u32 s%d, s%d, s%d' % (sT0, sT0, sCG))
    a('s_lshl_b32 s%d, s%d, 7' % (sT0, sT0))
    a('s_add_u32 s%d, s%d, 0x%x' % (sOO, sT0, WP_OFF))
    Lp = a.newlabel('w2p')
    a('s_cmp_lg_u32 s%d, 0' % sW)
    a.branch('s_cbranch_scc1 %s' % Lp)
    a('s_lshl_b32 s%d, s%d, 2' % (sT0, sKQ))
    a('v_mov_b32 v%d, s%d' % (O.T + 1, sT0))
    a('v_mov_b32 v%d, s%d' % (O.T + 2, sNT))
    a('s_mov_b64 exec, 1')
    a('buffer_store_dword v%d, v%d, s[%d:%d], s%d offen%s' % (O.T + 2, O.T + 1, sWS, sWS + 3, sOO, safe))
    a('s_mov_b64 exec, -1')
    a.label(Lp)
    a('s_add_u32 s%d, s%d, s%d' % (sTN, sN0, sW))
    Lf = a.newlabel('w2f'); Le = a.newlabel('w2e'); Lq = a.newlabel('w2q'); Lqd = a.newlabel('w2qd')
    a('s_cmp_ge_u32 s%d, s%d' % (sTN, sNT))
    a.branch('s_cbranch_scc1 %s' % Le)
    global sI
    si_save = sI
    sFC = sSLOT_
    a('s_lshl_b32 s%d, s%d, 2' % (sFC, sCG))
    a('s_add_u32 s%d, s%d, s%d' % (sFC, sFC, sKQ))
    def xg(n_s, par):
        tile_of(a, sT2, n_s, sGX)
        a('s_lshl_b32 s%d, s%d, 15' % (sT0, sT2))
        a('s_lshl_b32 s%d, s%d, 6' % (sT1, sFC))
        a('s_add_u32 s%d, s%d, s%d' % (sT0, sT0, sT1))
        a('buffer_load_dwordx4 v[%d:%d], v%d, s[%d:%d], s%d offen' % (O.XR + 4 * par, O.XR + 4 * par + 3, O.XA, sX, sX + 3, sT0))
        a('s_lshl_b32 s%d, s%d, 6' % (sT0, sT2))
        a('s_add_u32 s%d, s%d, 0x%x' % (sT0, sT0, GL_OFF))
        a('buffer_load_dword v%d, v%d, s[%d:%d], s%d offen sc1' % (O.G + par, O.GA, sWS, sWS + 3, sT0))
    xg(sTN, 0)
    a('s_add_u32 s%d, s%d, 4' % (sN, sTN))
    xg(sN, 1)
    a('v_mov_b32 v%d, 0' % (O.T + 1))
    a.label(Lq)
    a('buffer_load_dwordx4 v[%d:%d], v%d, s[%d:%d], s%d offen sc1' % (O.T + 4, O.T + 7, O.T + 1, sWS, sWS + 3, sOO))
    a('s_waitcnt vmcnt(0)')
    a('v_min3_u32 v%d, v%d, v%d, v%d' % (O.T + 4, O.T + 4, O.T + 5, O.T + 6))
    a('v_min_u32 v%d, v%d, v%d' % (O.T + 4, O.T + 4, O.T + 7))
    a('v_cmp_gt_u32 vcc, s%d, v%d' % (sNT, O.T + 4))
    a('s_cbranch_vccz %s' % Lqd)
    a('s_sleep 1')
    a('s_add_u32 s%d, s%d, 1' % (sSP, sSP))
    a('s_cmp_lt_u32 s%d, 0x%x' % (sSP, SPIN_LIMIT))
    a('s_cbranch_scc1 %s' % Lq)
    a.label(Lqd)
    fused.g2mark(a, cfg, 6)
    for par in range(2):
        tile_of(a, sTILE, sTN, sGX)
        a('s_lshl_b32 s%d, s%d, 23' % (sT0, sGX))
        a('s_and_b32 s%d, s%d, %d' % (sT1, sTN, cfg.get('pwmask', 31)))
        a('s_lshl_b32 s%d, s%d, 18' % (sT1, sT1))
        a('s_add_u32 s%d, s%d, s%d' % (sT0, sT0, sT1))
        a('s_lshl_b32 s%d, s%d, 11' % (sT1, sFC))
        a('s_add_u32 s%d, s%d, s%d' % (sT0, sT0, sT1))
        a('s_add_u32 s%d, s%d, 0x%x' % (sT0, sT0, PW_OFF))
        for kq in range(4):
            for tau in range(2):
                r = O.E + kq * 8 + tau * 4
                a('buffer_load_dwordx4 v[%d:%d], v%d, s[%d:%d], s%d offen offset:%d sc1' % (r, r + 3, O.L16, sWS, sWS + 3, sT0, tau * 1024))
            a('s_add_u32 s%d, s%d, 0x10000' % (sT0, sT0))
        a('s_waitcnt vmcnt(0)')
        sI = sFC
        epilogue(a, par, sTILE, True, lds=False)
        sI = si_save
        if par == 0:
            a('s_add_u32 s%d, s%d, 4' % (sTN, sTN))
            a('s_cmp_ge_u32 s%d, s%d' % (sTN, sNT))
            a.branch('s_cbranch_scc1 %s' % Le)
    a.label(Le)
```

```python
from common import *
import rrole as R
sWS, sDBG = 8, 32
sTR = 12
sDM, sDS, sDMI, sDSI = 68, 69, 70, 71
sGI = 93
sX = 24
sT0, sT1, sT2, sT3 = 45, 46, 47, 48
sK0, sK1, sSP = 66, 67, 44
sW, sB = 94, 95
D0 = 98304
vL, vL16 = 1, 2
vT = 6
vK = 144
vXS = 160
vF = 192
vAC = 224
vR = 240

def waddr(a, stride):
    a('v_lshrrev_b32 v%d, 2, v%d' % (vT, vL))
    a('v_mul_u32_u24 v%d, %d, v%d' % (vT, stride, vT))
    a('v_and_b32 v%d, 3, v%d' % (vT + 1, vL))
    a('v_lshl_add_u32 v%d, v%d, 4, v%d' % (vT + 2, vT + 1, vT))

def tr_addrs(a):
    a('s_lshl_b32 s%d, s%d, 14' % (sT0, sW))
    a('s_add_u32 s%d, s%d, %d' % (sT0, sT0, D0))
    a('v_add_u32 v%d, s%d, v%d' % (vT + 6, sT0, vL16))
    a('v_lshrrev_b32 v%d, 4, v%d' % (vT, vL))
    a('v_bfe_u32 v%d, v%d, 2, 2' % (vT + 1, vL))
    a('v_and_b32 v%d, 3, v%d' % (vT + 2, vL))
    a('v_lshl_add_u32 v%d, v%d, 4, v%d' % (vT + 3, vT, vT + 1))
    a('v_lshlrev_b32 v%d, 6, v%d' % (vT + 3, vT + 3))
    a('v_lshl_add_u32 v%d, v%d, 3, v%d' % (vT + 3, vT + 2, vT + 3))
    a('v_add_u32 v%d, s%d, v%d' % (vT + 7, sT0, vT + 3))

def tile_mma(a, d, tau, nT, ldsoff):
    for T in range(nT):
        for b in range(2):
            for half in range(2):
                r = vF + (T * 2 + b) * 4 + 2 * half
                a('ds_read_b64_tr_b16 v[%d:%d], v%d offset:%d' % (r, r + 1, vT + 7, ldsoff + (64 * T + 8 * b + 4 * half) * 64 + tau * 32))
    a('s_waitcnt lgkmcnt(0)')
    for n in range(2 * nT):
        a('v_mfma_f32_16x16x32_bf16 %s, %s, %s, %s' % (vr(d, 4), vr(vF + 4 * n, 4), vr(vXS + 4 * n, 4), '0' if n == 0 else vr(d, 4)))

def wave_max(a, v, t):
    for sh in (1, 2, 4, 8):
        a('v_max_u32_dpp v%d, v%d, v%d row_ror:%d row_mask:0xf bank_mask:0xf' % (v, v, v, sh))
    for sw in ('v_permlane16_swap_b32', 'v_permlane32_swap_b32'):
        a('v_mov_b32 v%d, v%d' % (t, v))
        a('%s v%d, v%d' % (sw, v, t))
        a('v_max_u32 v%d, v%d, v%d' % (v, v, t))

def top2(a):
    k = vXS
    a('v_lshlrev_b32 v%d, 7, v%d' % (vT, vL))
    a('s_mov_b32 s%d, 0x%x' % (sT0, RR_OFF))
    for n in range(8):
        a('buffer_load_dwordx4 v[%d:%d], v%d, s[%d:%d], s%d offen offset:%d sc1' % (k + 4 * n, k + 4 * n + 3, vT, sWS, sWS + 3, sT0, 16 * n))
    a('v_lshlrev_b32 v%d, 5, v%d' % (vT + 1, vL))
    a('v_sub_u32 v%d, 0xffff, v%d' % (vT + 1, vT + 1))
    a('s_waitcnt vmcnt(0)')
    for i in range(32):
        r = k + i
        a('v_ashrrev_i32 v%d, 31, v%d' % (vT + 2, r))
        a('v_or_b32 v%d, 0x80000000, v%d' % (vT + 2, vT + 2))
        a('v_cmp_u_f32 vcc, v%d, v%d' % (r, r))
        a('v_xor_b32 v%d, v%d, v%d' % (r, r, vT + 2))
        a('v_subrev_u32 v%d, %d, v%d' % (vT + 3, i, vT + 1))
        a('v_cndmask_b32 v%d, v%d, 0, vcc' % (r, r))
        a('v_and_or_b32 v%d, v%d, s%d, v%d' % (r, r, sT2, vT + 3))
    for rnd in range(2):
        m = vK
        a('v_max3_u32 v%d, v%d, v%d, v%d' % (m, k, k + 1, k + 2))
        for i in range(3, 31, 2): a('v_max3_u32 v%d, v%d, v%d, v%d' % (m, m, k + i, k + i + 1))
        a('v_max_u32 v%d, v%d, v%d' % (m, m, k + 31))
        wave_max(a, m, m + 1)
        a('v_readfirstlane_b32 s%d, v%d' % (sK0 + rnd, m))
        if rnd == 0:
            for i in range(32):
                a('v_cmp_eq_u32 vcc, v%d, v%d' % (k + i, m))
                a('v_cndmask_b32 v%d, v%d, 0, vcc' % (k + i, k + i))

def rnd4(a, base, t):
    a('v_cvt_pk_bf16_f32 v%d, v%d, v%d' % (t, base, base + 1)); a('v_cvt_pk_bf16_f32 v%d, v%d, v%d' % (t + 1, base + 2, base + 3))
    for i in range(2):
        a('v_lshlrev_b32 v%d, 16, v%d' % (base + 2 * i, t + i)); a('v_and_b32 v%d, 0xffff0000, v%d' % (base + 2 * i + 1, t + i))

def block_gate(a, cfg):
    L = a.newlabel('mb')
    a('s_cmp_ge_u32 s%d, 112' % sB)
    a.branch('s_cbranch_scc1 %s' % L)
    dbg_wait(a, sDBG, DB_RR, 128, vT, sSP, 1)
    a('s_mov_b32 s%d, 0xffff0000' % sT2)
    top2(a)
    for c in range(2):
        a('s_and_b32 s%d, s%d, 0xffff' % (sT0 + c, sK0 + c))
        a('s_sub_u32 s%d, 0xffff, s%d' % (sT0 + c, sT0 + c))
    a('v_and_b32 v%d, 1, v%d' % (vT, vL))
    a('v_cmp_eq_u32 vcc, 1, v%d' % vT)
    a('v_mov_b32 v%d, s%d' % (vT + 1, sT0))
    a('v_mov_b32 v%d, s%d' % (vT + 2, sT1))
    a('v_cndmask_b32 v%d, v%d, v%d, vcc' % (vT + 1, vT + 1, vT + 2))
    a('v_lshrrev_b32 v%d, 4, v%d' % (vT + 2, vL))
    a('v_lshlrev_b32 v%d, 5, v%d' % (vT + 2, vT + 2))
    a('v_lshl_add_u32 v%d, v%d, 11, v%d' % (vT + 4, vT + 1, vT + 2))
    a('s_lshl_b32 s%d, s%d, 9' % (sT2, sW))
    for n in range(8):
        a('buffer_load_dwordx4 v[%d:%d], v%d, s[%d:%d], s%d offen offset:%d' % (vXS + 4 * n, vXS + 4 * n + 3, vT + 4, sX, sX + 3, sT2, (n >> 1) * 128 + (n & 1) * 16))
    Ln = a.newlabel('m1np')
    a('s_or_b32 s%d, s%d, s%d' % (sT2, sB, sW))
    a('s_cmp_lg_u32 s%d, 0' % sT2)
    a.branch('s_cbranch_scc1 %s' % Ln)
    a('v_mov_b32 v%d, s%d' % (vK, sT0)); a('v_mov_b32 v%d, s%d' % (vK + 1, sT1))
    for c in range(2):
        r = vK + 2 + c
        a('s_and_b32 s%d, s%d, 0xffff0000' % (sT2, sK0 + c))
        a('s_xor_b32 s%d, s%d, 0x80000000' % (sT3, sT2))
        a('s_not_b32 s%d, s%d' % (sT2, sT2))
        a('s_and_b32 s%d, s%d, 0xffff0000' % (sT2, sT2))
        a('s_bitcmp1_b32 s%d, 31' % (sK0 + c))
        a('s_cselect_b32 s%d, s%d, s%d' % (sT2, sT3, sT2))
        a('v_mov_b32 v%d, s%d' % (r, sT2))
        a('v_mul_f32 v%d, 0xbfb8aa3b, v%d' % (r, r))
        a('v_exp_f32 v%d, v%d' % (r, r))
        a('v_add_f32 v%d, 1.0, v%d' % (r, r))
        a('v_rcp_f32 v%d, v%d' % (r, r))
        a('v_cvt_pk_bf16_f32 v%d, v%d, v%d' % (r, r, r))
        a('v_lshlrev_b32 v%d, 16, v%d' % (r, r))
    a('v_mov_b32 v%d, 0' % (vK + 4))
    a('s_mov_b32 s%d, 0x%x' % (sT2, IDX_OFF))
    a('s_mov_b64 exec, 1')
    a('buffer_store_dwordx4 v[%d:%d], v%d, s[%d:%d], s%d offen sc1' % (vK, vK + 3, vK + 4, sWS, sWS + 3, sT2))
    a('s_mov_b64 exec, -1')
    a.label(Ln)
    tr_addrs(a)
    a('s_waitcnt vmcnt(0)')
    for tau in range(2): tile_mma(a, vAC + 4 * tau, tau, 4, 0)
    for i in range(32): a('v_accvgpr_write_b32 a%d, v%d' % (200 + i, vXS + i))
    for i in range(8): a('v_accvgpr_write_b32 a%d, v%d' % (192 + i, vAC + i))
    a.label(L)

def block_up(a, cfg):
    L = a.newlabel('mu')
    a('s_cmp_ge_u32 s%d, 112' % sB)
    a.branch('s_cbranch_scc1 %s' % L)
    tr_addrs(a)
    for i in range(32): a('v_accvgpr_read_b32 v%d, a%d' % (vXS + i, 200 + i))
    for i in range(8): a('v_accvgpr_read_b32 v%d, a%d' % (vAC + i, 192 + i))
    a('s_waitcnt vmcnt(0)')
    for tau in range(2): tile_mma(a, vAC + 8 + 4 * tau, tau, 4, 0)
    for q in range(4): a('ds_write_b128 v%d, v[%d:%d] offset:%d' % (vT + 6, vAC + 4 * q, vAC + 4 * q + 3, q * 1024))
    a('s_waitcnt lgkmcnt(0)')
    a('s_barrier')
    Ld = a.newlabel('m1done')
    a('s_cmp_gt_u32 s%d, 1' % sW)
    a.branch('s_cbranch_scc1 %s' % Ld)
    a('s_lshl_b32 s%d, s%d, 10' % (sT0, sW))
    a('s_add_u32 s%d, s%d, %d' % (sT0, sT0, D0))
    a('v_add_u32 v%d, s%d, v%d' % (vT, sT0, vL16))
    for M in range(2):
        for wv in range(4):
            r = vF + (M * 4 + wv) * 4
            a('ds_read_b128 v[%d:%d], v%d offset:%d' % (r, r + 3, vT, wv * 16384 + M * 2048))
    a('s_waitcnt lgkmcnt(0)')
    for M in range(2):
        b0 = vF + M * 16
        for x in (0, 2):
            R.pk_add(a, b0 + x, b0 + x, b0 + 4 + x); R.pk_add(a, b0 + 8 + x, b0 + 8 + x, b0 + 12 + x)
        for x in (0, 2): R.pk_add(a, b0 + x, b0 + x, b0 + 8 + x)
    G, U = vF, vF + 16
    rnd4(a, G, vR); rnd4(a, U, vR + 2)
    for i in range(4):
        a('v_mul_f32 v%d, 0xbfb8aa3b, v%d' % (vR + 4 + i, G + i))
        a('v_exp_f32 v%d, v%d' % (vR + 4 + i, vR + 4 + i))
        a('v_add_f32 v%d, 1.0, v%d' % (vR + 4 + i, vR + 4 + i))
        a('v_rcp_f32 v%d, v%d' % (vR + 4 + i, vR + 4 + i))
        a('v_mul_f32 v%d, v%d, v%d' % (G + i, G + i, vR + 4 + i))
    rnd4(a, G, vR)
    for i in range(4): a('v_mul_f32 v%d, v%d, v%d' % (G + i, G + i, U + i))
    a('v_cvt_pk_bf16_f32 v%d, v%d, v%d' % (vR, G, G + 1)); a('v_cvt_pk_bf16_f32 v%d, v%d, v%d' % (vR + 1, G + 2, G + 3))
    a('v_and_b32 v%d, 15, v%d' % (vT, vL))
    a('v_lshrrev_b32 v%d, 4, v%d' % (vT + 1, vL))
    a('v_mul_u32_u24 v%d, 7168, v%d' % (vT + 2, vT))
    a('v_lshl_add_u32 v%d, v%d, 3, v%d' % (vT + 2, vT + 1, vT + 2))
    a('s_lshl_b32 s%d, s%d, 6' % (sT0, sB))
    a('s_lshl_b32 s%d, s%d, 5' % (sT1, sW))
    a('s_add_u32 s%d, s%d, s%d' % (sT0, sT0, sT1))
    a('s_add_u32 s%d, s%d, 0x%x' % (sT0, sT0, HB_OFF))
    a('v_cmp_gt_u32 vcc, 2, v%d' % vT)
    a('s_mov_b64 exec, vcc')
    a('buffer_store_dwordx2 v[%d:%d], v%d, s[%d:%d], s%d offen sc1' % (vR, vR + 1, vT + 2, sWS, sWS + 3, sT0))
    a('s_mov_b64 exec, -1')
    a.label(Ld)
    a('s_waitcnt vmcnt(0)')
    a('s_barrier')
    Lw = a.newlabel('m1a')
    a('s_cmp_lg_u32 s%d, 0' % sW)
    a.branch('s_cbranch_scc1 %s' % Lw)
    dbg_arrive(a, sDBG, DB_M1, vT)
    a.label(Lw)
    a.label(L)

def block_c(a, cfg):
    dbg_wait(a, sDBG, DB_M1, 112, vT, sSP, 1)
    tr_addrs(a)
    a('v_and_b32 v%d, 1, v%d' % (vT, vL))
    a('v_mul_u32_u24 v%d, 7168, v%d' % (vT, vT))
    a('v_lshrrev_b32 v%d, 4, v%d' % (vT + 1, vL))
    a('v_lshl_add_u32 v%d, v%d, 5, v%d' % (vT + 4, vT + 1, vT))
    for t in range(2):
        a('s_add_u32 s%d, s%d, %d' % (sT3, sB, 128 * t))
        a('s_min_u32 s%d, s%d, 223' % (sT3, sT3))
        a('s_lshr_b32 s%d, s%d, 5' % (sT2, sT3))
        a('s_lshl_b32 s%d, s%d, 2' % (sT0, sT2))
        a('s_add_u32 s%d, s%d, s%d' % (sT0, sT0, sW))
        a('s_lshl_b32 s%d, s%d, 8' % (sT0, sT0))
        a('s_add_u32 s%d, s%d, 0x%x' % (sT0, sT0, HB_OFF))
        for n in range(4):
            a('buffer_load_dwordx4 v[%d:%d], v%d, s[%d:%d], s%d offen offset:%d sc1' % (vXS + 4 * n, vXS + 4 * n + 3, vT + 4, sWS, sWS + 3, sT0, (n >> 1) * 128 + (n & 1) * 16))
        a('s_waitcnt vmcnt(0)')
        for tau in range(2): tile_mma(a, vAC + 8 * t + 4 * tau, tau, 2, t * 8192)
    for q in range(4): a('ds_write_b128 v%d, v[%d:%d] offset:%d' % (vT + 6, vAC + 4 * q, vAC + 4 * q + 3, q * 1024))
    a('s_waitcnt lgkmcnt(0)')
    a('s_barrier')
    Ld = a.newlabel('m2done')
    a('s_lshr_b32 s%d, s%d, 1' % (sT3, sW))
    a('s_lshl_b32 s%d, s%d, 7' % (sT3, sT3))
    a('s_add_u32 s%d, s%d, s%d' % (sT3, sT3, sB))
    a('s_cmp_ge_u32 s%d, 224' % sT3)
    a.branch('s_cbranch_scc1 %s' % Ld)
    a('s_lshl_b32 s%d, s%d, 10' % (sT0, sW))
    a('s_add_u32 s%d, s%d, %d' % (sT0, sT0, D0))
    a('v_add_u32 v%d, s%d, v%d' % (vT, sT0, vL16))
    for wv in range(4):
        a('ds_read_b128 v[%d:%d], v%d offset:%d' % (vF + 4 * wv, vF + 4 * wv + 3, vT, wv * 16384))
    a('s_waitcnt lgkmcnt(0)')
    for x in (0, 2):
        R.pk_add(a, vF + x, vF + x, vF + 4 + x); R.pk_add(a, vF + 8 + x, vF + 8 + x, vF + 12 + x)
    for x in (0, 2): R.pk_add(a, vF + x, vF + x, vF + 8 + x)
    a('v_and_b32 v%d, 15, v%d' % (vT, vL))
    a('v_lshrrev_b32 v%d, 4, v%d' % (vT + 1, vL))
    a('v_lshlrev_b32 v%d, 12, v%d' % (vT + 2, vT))
    a('v_lshl_add_u32 v%d, v%d, 4, v%d' % (vT + 2, vT + 1, vT + 2))
    a('s_lshr_b32 s%d, s%d, 5' % (sT2, sT3))
    a('s_lshl_b32 s%d, s%d, 13' % (sT0, sT2))
    a('s_and_b32 s%d, s%d, 31' % (sT1, sT3))
    a('s_lshl_b32 s%d, s%d, 7' % (sT1, sT1))
    a('s_add_u32 s%d, s%d, s%d' % (sT0, sT0, sT1))
    a('s_and_b32 s%d, s%d, 1' % (sT1, sW))
    a('s_lshl_b32 s%d, s%d, 6' % (sT1, sT1))
    a('s_add_u32 s%d, s%d, s%d' % (sT0, sT0, sT1))
    a('s_add_u32 s%d, s%d, 0x%x' % (sT0, sT0, YP_OFF))
    a('v_cmp_gt_u32 vcc, 2, v%d' % vT)
    a('s_mov_b64 exec, vcc')
    a('buffer_store_dwordx4 v[%d:%d], v%d, s[%d:%d], s%d offen sc1' % (vF, vF + 3, vT + 2, sWS, sWS + 3, sT0))
    a('s_mov_b64 exec, -1')
    a.label(Ld)
    a('s_waitcnt vmcnt(0)')
    a('s_barrier')
    Lw = a.newlabel('m2a')
    a('s_cmp_lg_u32 s%d, 0' % sW)
    a.branch('s_cbranch_scc1 %s' % Lw)
    dbg_arrive(a, sDBG, DB_M2, vT)
    a.label(Lw)

def trickle_off(a):
    build_srds(a, dict(wd=sTR))
    a('s_mov_b32 s%d, 0' % (sTR + 2))
    a('s_mov_b32 s%d, 0x30000' % sDM)
    a('s_mov_b32 s%d, 0' % sDS)
    a('s_mov_b32 s%d, 0' % sDMI)
    a('s_mov_b32 s%d, 0' % sDSI)

def trickle_common(a, name, stride, ldsadd):
    build_srds(a, {name: sTR})
    waddr(a, stride)
    a('v_mov_b32 v243, v%d' % (vT + 2))
    a('s_lshl_b32 s%d, s%d, 14' % (sDM, sW))
    a('s_add_u32 s%d, s%d, %d' % (sDM, sDM, D0 + ldsadd))
    a('s_mov_b32 s%d, 1024' % sDMI)
    a('s_mov_b32 s%d, %d' % (sDSI, 16 * stride))

def setup_gu(a, name):
    trickle_common(a, name, 7168, 0)
    a('s_mul_i32 s%d, s%d, %d' % (sDS, sW, 256 * 7168))
    a('s_min_u32 s%d, s%d, 111' % (sT1, sB))
    a('s_lshl_b32 s%d, s%d, 6' % (sT1, sT1))
    a('s_add_u32 s%d, s%d, s%d' % (sDS, sDS, sT1))

def setup_down(a, t):
    trickle_common(a, 'wd', 2048, t * 8192)
    a('s_add_u32 s%d, s%d, %d' % (sT3, sB, 128 * t))
    a('s_min_u32 s%d, s%d, 223' % (sT3, sT3))
    a('s_lshr_b32 s%d, s%d, 5' % (sT2, sT3))
    a('s_lshl_b32 s%d, s%d, 2' % (sT0, sT2))
    a('s_add_u32 s%d, s%d, s%d' % (sT0, sT0, sW))
    a('s_lshl_b32 s%d, s%d, 18' % (sDS, sT0))
    a('s_and_b32 s%d, s%d, 31' % (sT1, sT3))
    a('s_lshl_b32 s%d, s%d, 6' % (sT1, sT1))
    a('s_add_u32 s%d, s%d, s%d' % (sDS, sDS, sT1))

def setup_wo(a, q):
    trickle_common(a, 'wo', 2048, 0)
    a('s_lshl_b32 s%d, s%d, 21' % (sDS, sW))
    a('s_add_u32 s%d, s%d, 0x%x' % (sDS, sDS, q << 19))
    a('s_lshl_b32 s%d, s%d, 6' % (sT1, sGI))
    a('s_add_u32 s%d, s%d, s%d' % (sDS, sDS, sT1))

def wo_tr(a, q):
    a('s_lshl_b32 s%d, s%d, 14' % (sT0, sW))
    a('s_add_u32 s%d, s%d, %d' % (sT0, sT0, D0))
    a('v_lshrrev_b32 v%d, 4, v%d' % (vT, vL))
    a('v_bfe_u32 v%d, v%d, 2, 2' % (vT + 1, vL))
    a('v_and_b32 v%d, 3, v%d' % (vT + 2, vL))
    a('v_lshl_add_u32 v%d, v%d, 2, v%d' % (vT + 3, vT, vT + 1))
    a('v_lshlrev_b32 v%d, 6, v%d' % (vT + 3, vT + 3))
    a('v_lshl_add_u32 v%d, v%d, 4, v%d' % (vT + 3, vT + 2, vT + 3))
    a('v_add_u32 v%d, s%d, v%d' % (vT + 7, sT0, vT + 3))
    for tau in range(2):
        for p in range(8):
            for half in range(2):
                r = 64 * q + (tau * 8 + p) * 4 + 2 * half
                a('ds_read_b64_tr_b16 a[%d:%d], v%d offset:%d' % (r, r + 1, vT + 7, (32 * p + 16 * half) * 64 + tau * 8))
    a('s_waitcnt lgkmcnt(0)')

def block_wo3(a):
    a('s_waitcnt vmcnt(0)')
    wo_tr(a, 3)
```

```python
from common import *
import rrole as R, g1role as G1, prerole as P, g2role as G2, modrole as M

sGX, sGI, sGW, sGC = 92, 93, 94, 95
sNA, sNW, sAV, sAA, sSP = 88, 89, 54, 55, 44
sDBG = 32
sPREO = 91
sDID = 58
LDS_CTL = 98304

def gp_addr(a, dst):
    a('s_lshr_b32 s%d, s%d, 2' % (dst, sGC))
    a('s_lshl_b32 s%d, s%d, 8' % (dst, dst))
    a('s_and_b32 s%d, s%d, 3' % (R.sT3, sGC))
    a('s_lshl_b32 s%d, s%d, 2' % (R.sT3, R.sT3))
    a('s_add_u32 s%d, s%d, s%d' % (dst, dst, R.sT3))
    a('s_add_u32 s%d, s%d, 0x%x' % (dst, dst, GP_OFF))

def g_body(a, cfg):
    Ln = a.newlabel('gi')
    a('s_cmp_lg_u32 s%d, 0' % sGW)
    a.branch('s_cbranch_scc1 %s' % Ln)
    a('s_lshl_b32 s%d, s%d, 2' % (R.sT0, sGC))
    a('s_add_u32 s%d, s%d, 0x%x' % (R.sT2, R.sT0, AP_OFF))
    gp_addr(a, R.sT1)
    a('v_mov_b32 v12, 0')
    a('s_mov_b64 exec, 1')
    a('buffer_store_dword v12, v12, s[%d:%d], s%d offen sc1' % (R.sWS, R.sWS + 3, R.sT1))
    a('buffer_store_dword v12, v12, s[%d:%d], s%d offen sc1' % (R.sWS, R.sWS + 3, R.sT2))
    a('s_and_b32 s%d, s%d, 7' % (R.sT0, sGI))
    a('s_lshl_b32 s%d, s%d, 3' % (R.sT1, sGX))
    a('s_add_u32 s%d, s%d, s%d' % (R.sT0, R.sT0, R.sT1))
    a('s_lshl_b32 s%d, s%d, 7' % (R.sT0, R.sT0))
    a('s_lshr_b32 s%d, s%d, 3' % (R.sT1, sGI))
    a('s_lshl_b32 s%d, s%d, 2' % (R.sT1, R.sT1))
    a('s_add_u32 s%d, s%d, s%d' % (R.sT0, R.sT0, R.sT1))
    a('s_add_u32 s%d, s%d, 0x%x' % (R.sT0, R.sT0, WP_OFF))
    a('buffer_store_dword v12, v12, s[%d:%d], s%d offen sc1' % (R.sWS, R.sWS + 3, R.sT0))
    a('s_mov_b64 exec, -1')
    a('s_waitcnt vmcnt(0)')
    dbg_arrive(a, sDBG, DB_INIT2 if cfg.get('safe') else DB_INIT, 12)
    a.label(Ln)
    a('s_lshl_b32 s%d, s%d, 2' % (sPREO, sGX))
    a('s_add_u32 s%d, s%d, %d' % (sPREO, sPREO, DB_PRE2 if cfg.get('safe') else DB_PRE))
    P.sX, P.sGW, P.sWR = 24, 28, 36
    P.sW, P.sC = sGW, sGC
    build_srds(a, dict(x=P.sX, gw=P.sGW, wr=P.sWR))
    a('s_lshr_b32 s%d, s%d, 2' % (R.sH, sGC))
    a('s_and_b32 s%d, s%d, 3' % (R.sJ, sGC))
    a('s_mov_b32 s%d, s%d' % (R.sW, sGW))
    G1.XFL[0] = ' sc1'
    gp_addr(a, G1.sGPA)
    G1.fast_start(a, cfg)
    if cfg.get('st2'): stamp(a, cfg, 3)
    a('s_mov_b32 s%d, %d' % (G1.sSEG, G1.NPB))
    a('s_mov_b32 s%d, 64' % G1.sEND)
    for w in range(1, 4):
        a('s_cmp_eq_u32 s%d, %d' % (sGW, w))
        a.branch('s_cbranch_scc1 fg1_wave%d' % w)
    for w in range(4):
        a.label('fg1_wave%d' % w)
        G1.g1_wave(a, w, cfg, 'fg1')
        a.branch('s_branch fg1_join')
    G1.g1_side(a, cfg)
    a.label('fg1_join')
    if not cfg.get('st2'): stamp(a, cfg, 1)
    build_srds(a, dict(wo=G2.sWO, x=G2.sX, out=G2.sOUT))
    G2.sI, G2.sW = sGI, sGW
    G2.out_consts(a)
    G2.out_load_weights(a, 2)
    dbg_wait_wg(a, sDBG, DB_M2, 128, 8, sSP, sGW)
    Lg = a.newlabel('g65'); Lgd = a.newlabel('g65d')
    a('v_mov_b32 v8, 0')
    a('s_lshl_b32 s%d, s%d, 8' % (R.sT1, sGI))
    a('s_add_u32 s%d, s%d, 0x%x' % (R.sT1, R.sT1, GP_OFF))
    a.label(Lg)
    a('buffer_load_dwordx4 v[12:15], v8, s[%d:%d], s%d offen sc1' % (R.sWS, R.sWS + 3, R.sT1))
    a('s_waitcnt vmcnt(0)')
    a('v_min3_u32 v12, v12, v13, v14')
    a('v_min_u32 v12, v12, v15')
    a('v_cmp_gt_u32 vcc, 65, v12')
    a('s_cbranch_vccz %s' % Lgd)
    a('s_sleep 4')
    a('s_add_u32 s%d, s%d, 1' % (sSP, sSP))
    a('s_cmp_lt_u32 s%d, 0x%x' % (sSP, SPIN_LIMIT))
    a('s_cbranch_scc1 %s' % Lg)
    a.label(Lgd)
    a('s_mov_b32 s%d, 0x%x' % (R.sT0, IDX_OFF))
    a('buffer_load_dwordx2 v[10:11], v8, s[%d:%d], s%d offen sc1' % (R.sWS, R.sWS + 3, R.sT0))
    a('s_waitcnt vmcnt(0)')
    a('v_readfirstlane_b32 s%d, v10' % G2.sIDX0)
    a('v_readfirstlane_b32 s%d, v11' % G2.sIDX1)
    a('s_mov_b32 s%d, 0' % sNA)
    a('s_mov_b32 s%d, 0' % sNW)
    a('s_barrier')
    if not cfg.get('st2'): stamp(a, cfg, 3)
    if cfg.get('g2prof'):
        for k in range(8): a('s_mov_b32 s%d, 0' % (66 + k))
        a('s_memtime s[76:77]')
        a('s_waitcnt lgkmcnt(0)')
        a('s_mov_b32 s79, s76')
    a.label('g2_loop')
    a('s_mov_b32 s%d, 0' % sDID)
    Lc = a.newlabel('ctl')
    a('s_cmp_lg_u32 s%d, 0' % sGW)
    a.branch('s_cbranch_scc1 %s' % Lc)
    a('v_and_b32 v8, 31, v0')
    a('v_lshlrev_b32 v8, 2, v8')
    a('v_and_b32 v9, 3, v0')
    a('v_lshlrev_b32 v9, 2, v9')
    a('s_lshl_b32 s%d, s%d, 7' % (R.sT0, sGX))
    a('s_add_u32 s%d, s%d, 0x%x' % (R.sT0, R.sT0, AP_OFF))
    a('s_lshl_b32 s%d, s%d, 8' % (R.sT1, sGI))
    a('s_add_u32 s%d, s%d, 0x%x' % (R.sT1, R.sT1, PROG_OFF))
    a('buffer_load_dword v10, v8, s[%d:%d], s%d offen sc1' % (R.sWS, R.sWS + 3, R.sT0))
    a('buffer_load_dword v11, v9, s[%d:%d], s%d offen sc1' % (R.sWS, R.sWS + 3, R.sT1))
    a('s_waitcnt vmcnt(0)')
    for sh in (1, 2, 4, 8):
        a('v_min_u32_dpp v10, v10, v10 row_ror:%d row_mask:0xf bank_mask:0xf' % sh)
        if sh < 4: a('v_min_u32_dpp v11, v11, v11 row_ror:%d row_mask:0xf bank_mask:0xf' % sh)
    a('v_mov_b32 v12, v10')
    a('v_permlane16_swap_b32 v10, v12')
    a('v_min_u32 v10, v10, v12')
    a('v_mov_b32 v12, %d' % LDS_CTL)
    a('ds_write_b64 v12, v[10:11]')
    a('s_waitcnt lgkmcnt(0)')
    a.label(Lc)
    a('s_barrier')
    a('v_mov_b32 v12, %d' % LDS_CTL)
    a('ds_read_b64 v[10:11], v12')
    a('s_waitcnt lgkmcnt(0)')
    a('v_readfirstlane_b32 s%d, v10' % sAA)
    a('v_readfirstlane_b32 s%d, v11' % sAV)
    a('s_barrier')
    g2mark(a, cfg, 0)
    a('s_add_u32 s%d, s%d, 3' % (sAV, sAV))
    a('s_sub_u32 s%d, s%d, s%d' % (sAV, sAV, sGX))
    a('s_lshr_b32 s%d, s%d, 2' % (sAV, sAV))
    Lna = a.newlabel('noattn'); Lnt = a.newlabel('notask'); Lnw = a.newlabel('nowo'); Lpa = a.newlabel('nopub')
    a('s_cmp_le_u32 s%d, s%d' % (sAV, sNA))
    a.branch('s_cbranch_scc1 %s' % Lna)
    a('s_add_u32 s%d, s%d, 4' % (R.sT0, sNA))
    a('s_min_u32 s%d, s%d, s%d' % (sAV, sAV, R.sT0))
    a('s_add_u32 s%d, s%d, s%d' % (R.sT0, sNA, sGW))
    a('s_cmp_ge_u32 s%d, s%d' % (R.sT0, sAV))
    a.branch('s_cbranch_scc1 %s' % Lnt)
    a('s_lshl_b32 s%d, s%d, 2' % (R.sT0, R.sT0))
    a('s_add_u32 s%d, s%d, s%d' % (R.sT0, R.sT0, sGX))
    a('s_lshl_b32 s%d, s%d, 5' % (R.sT0, R.sT0))
    a('s_add_u32 s%d, s%d, s%d' % (G2.sTASK, R.sT0, sGI))
    G2.attn_consts(a, cfg)
    G2.attn_task(a, cfg, all_sc1=True, st_flags=' sc1' if cfg.get('safe') else '')
    a('s_waitcnt vmcnt(0)')
    a.label(Lnt)
    a('s_barrier')
    a('s_mov_b32 s%d, s%d' % (sNA, sAV))
    a('s_mov_b32 s%d, 1' % sDID)
    a('s_cmp_lg_u32 s%d, 0' % sGW)
    a.branch('s_cbranch_scc1 %s' % Lpa)
    a('s_lshl_b32 s%d, s%d, 2' % (R.sT0, sGC))
    a('s_add_u32 s%d, s%d, 0x%x' % (R.sT0, R.sT0, AP_OFF))
    a('v_mov_b32 v10, s%d' % sNA)
    a('v_mov_b32 v11, 0')
    a('s_mov_b64 exec, 1')
    a('buffer_store_dword v10, v11, s[%d:%d], s%d offen sc1' % (R.sWS, R.sWS + 3, R.sT0))
    a('s_mov_b64 exec, -1')
    a.label(Lpa)
    if cfg.get('g2prof'): a('s_add_u32 s70, s70, 1')
    a.label(Lna)
    g2mark(a, cfg, 1)
    a('s_cmp_le_u32 s%d, s%d' % (sAA, sNW))
    a.branch('s_cbranch_scc1 %s' % Lnw)
    a('s_lshl_b32 s%d, s%d, 2' % (R.sT0, sNW))
    a('s_add_u32 s%d, s%d, s%d' % (R.sT0, R.sT0, sGX))
    a('s_lshl_b32 s%d, s%d, 1' % (G2.sTILE, R.sT0))
    a('s_sub_u32 s%d, s%d, s%d' % (G2.sNB, sAA, sNW))
    a('s_min_u32 s%d, s%d, %d' % (G2.sNB, G2.sNB, cfg.get('wob', 4)))
    a('s_lshl_b32 s%d, s%d, 1' % (G2.sTN, sNW))
    a('s_add_u32 s%d, s%d, s%d' % (sNW, sNW, G2.sNB))
    a('s_lshl_b32 s%d, s%d, 1' % (G2.sNT, sNW))
    if cfg.get('wo2', 0): G2.wo2_batch(a, cfg, sGX, sNW, sSP)
    else: G2.wo_batch(a, cfg)
    a('s_mov_b32 s%d, 1' % sDID)
    if cfg.get('g2prof'): a('s_add_u32 s71, s71, 1')
    a.label(Lnw)
    g2mark(a, cfg, 2)
    Lsl = a.newlabel('nosleep')
    a('s_cmp_lg_u32 s%d, 0' % sDID)
    a('s_cbranch_scc1 %s' % Lsl)
    a('s_cmp_lt_u32 s%d, s%d' % (sNW, sNA))
    a('s_cbranch_scc1 %s' % Lsl)
    a('s_sleep %d' % cfg.get('g2sleep', 16))
    a.label(Lsl)
    g2mark(a, cfg, 3)
    a('s_add_u32 s%d, s%d, 1' % (sSP, sSP))
    a('s_cmp_ge_u32 s%d, 0x%x' % (sSP, SPIN_LIMIT))
    a.branch('s_cbranch_scc1 g2_done')
    a('s_cmp_lt_u32 s%d, 16' % sNW)
    a.branch('s_cbranch_scc1 g2_loop')
    a.label('g2_done')
    if cfg.get('g2prof'):
        a('s_lshl_b32 s45, s95, 7')
        a('s_lshl_b32 s46, s94, 5')
        a('s_add_u32 s45, s45, s46')
        a('s_add_u32 s45, s45, 0x%x' % (MISC_OFF + 131072))
        a('v_mov_b32 v9, 0')
        a('s_mov_b64 exec, 1')
        for k in range(8):
            a('v_mov_b32 v8, s%d' % (66 + k))
            a('buffer_store_dword v8, v9, s[%d:%d], s45 offen offset:%d' % (R.sWS, R.sWS + 3, 4 * k))
        a('s_mov_b64 exec, -1')
    stamp(a, cfg, 4)
    a('s_endpgm')

def g2mark(a, cfg, k):
    if not cfg.get('g2prof'): return
    a('s_memtime s[76:77]')
    a('s_waitcnt lgkmcnt(0)')
    a('s_sub_u32 s78, s76, s79')
    a('s_add_u32 s%d, s%d, s78' % (66 + k, 66 + k))
    a('s_mov_b32 s79, s76')

def stamp(a, cfg, k):
    if not cfg.get('stamp'): return
    L = a.newlabel('stp')
    a('s_cmp_lg_u32 s%d, 0' % sGW)
    a.branch('s_cbranch_scc1 %s' % L)
    a('s_memrealtime s[74:75]')
    a('s_waitcnt lgkmcnt(0)')
    a('v_mov_b32 v250, s74')
    a('s_lshl_b32 s74, s%d, 5' % sGC)
    a('s_add_u32 s74, s74, 0x%x' % (MISC_OFF + 65536 + 4 * k))
    a('v_mov_b32 v251, 0')
    a('s_mov_b64 exec, 1')
    a('buffer_store_dword v250, v251, s[%d:%d], s74 offen' % (R.sWS, R.sWS + 3))
    a('s_mov_b64 exec, -1')
    a.label(L)

def roles(a, cfg):
    a('s_cmp_ge_u32 s%d, 4' % R.sRX)
    a.branch('s_cbranch_scc1 f_grole')
    R.r_body(a, cfg)
    a.label('f_grole')
    a('s_sub_u32 s%d, s%d, 4' % (sGX, R.sRX))
    a('s_mov_b32 s%d, s%d' % (sGI, R.sI))
    a('s_mov_b32 s%d, s%d' % (sGW, R.sW))
    a('s_lshl_b32 s%d, s%d, 5' % (sGC, sGX))
    a('s_add_u32 s%d, s%d, s%d' % (sGC, sGC, sGI))
    stamp(a, cfg, 0)
    g_body(a, cfg)

def common_init(a):
    build_srds(a, dict(ws=R.sWS, wq=R.sWQ, wk=R.sWK, wv=R.sWV, wo=R.sWO, mem0=R.sM0, dbg=R.sDBG))
    a('s_mov_b32 s%d, 0' % R.sSPIN)
    R.lane_consts(a)
    a('v_lshrrev_b32 v%d, 6, v0' % R.vT)
    a('v_readfirstlane_b32 s%d, v%d' % (R.sW, R.vT))

def gen_fused(name, cfg):
    import re
    cfg = dict(cfg); cfg['fused'] = 1; cfg['g1_sc1'] = 1
    sGT = 2
    a = Asm()
    a.raw(kernel_header(name))
    a('s_cmp_ge_u32 s2, 256')
    a('s_cbranch_scc0 f_start')
    a('s_endpgm')
    a.label('f_start')
    if cfg.get('cpf', 1):
        a('s_getpc_b64 s[4:5]')
        a('s_and_b32 s4, s4, 0xffffff00')
        a('s_lshr_b32 s6, s2, 3')
        a('s_lshl_b32 s6, s6, 12')
        a('v_lshlrev_b32 v1, 4, v0')
        a('v_add_u32 v1, s6, v1')
        a('v_mov_b32 v3, s5')
        a('v_add_co_u32 v2, vcc, s4, v1')
        a('v_addc_co_u32 v3, vcc, 0, v3, vcc')
        a('global_load_dwordx4 v[244:247], v[2:3], off')
    common_init(a)
    a('s_getreg_b32 s%d, hwreg(HW_REG_XCC_ID)' % R.sRX)
    a('s_and_b32 s%d, s%d, 7' % (R.sRX, R.sRX))
    vT = R.vT
    Lt = a.newlabel('tk')
    a('s_cmp_lg_u32 s%d, 0' % R.sW)
    a.branch('s_cbranch_scc1 %s' % Lt)
    a('v_mov_b32 v%d, 1' % vT)
    a('s_lshl_b32 s%d, s%d, %d' % (R.sT0, R.sRX, 2))
    a('v_mov_b32 v%d, s%d' % (vT + 2, R.sT0))
    a('s_mov_b64 exec, 1')
    a('buffer_atomic_add v%d, v%d, s[%d:%d], 0 offen sc0 sc1' % (vT, vT + 2, R.sDBG, R.sDBG + 3))
    a('v_mov_b32 v%d, %d' % (vT + 2, R.LDS_TK))
    a('s_waitcnt vmcnt(0)')
    a('ds_write_b32 v%d, v%d' % (vT + 2, vT))
    a('s_waitcnt lgkmcnt(0)')
    a('s_mov_b64 exec, -1')
    a.label(Lt)
    a('s_barrier')
    a('v_mov_b32 v%d, %d' % (vT + 2, R.LDS_TK))
    a('ds_read_b32 v%d, v%d' % (vT, vT + 2))
    a('s_waitcnt lgkmcnt(0)')
    a('v_readfirstlane_b32 s%d, v%d' % (R.sI, vT))
    a('s_cmp_lt_u32 s%d, 32' % R.sI)
    a.branch('s_cbranch_scc1 f_census_ok')
    Lo = a.newlabel('ovf')
    a('s_cmp_lg_u32 s%d, 0' % R.sW)
    a.branch('s_cbranch_scc1 %s' % Lo)
    dbg_arrive(a, R.sDBG, DB_BAD, vT)
    a('s_waitcnt vmcnt(0)')
    dbg_arrive(a, R.sDBG, DB_INIT, vT)
    a.label(Lo)
    init_wait(a, R.sDBG, cfg, vT, R.sSPIN, R.sT0)
    a.branch('s_branch SAFE_ENTRY')
    a.label('f_census_ok')
    head = a.text()
    gl0 = Asm.GL
    a = Asm()
    roles(a, cfg)
    fast = a.text()
    gl1 = Asm.GL
    cfg2 = dict(cfg); cfg2['safe'] = 1; cfg2['stamp'] = 0; cfg2['prof'] = 0; cfg2['tl'] = 0; cfg2['st3'] = 0; cfg2['st2'] = 0; cfg2['gprof'] = 0; cfg2['g2prof'] = 0
    SH = 128 * MB
    saved = (R.MX_OFF, R.QKX_OFF, R.OX_OFF, G1.XF_OFF, P.XF_OFF)
    R.MX_OFF += SH; R.QKX_OFF += SH; R.OX_OFF += SH; G1.XF_OFF += SH; P.XF_OFF += SH; R.SAFE[0] = True
    b = Asm()
    b('s_mov_b64 exec, -1')
    b('s_waitcnt vmcnt(0) lgkmcnt(0)')
    b('s_barrier')
    common_init(b)
    b('s_lshr_b32 s%d, s%d, 5' % (R.sRX, sGT))
    b('s_and_b32 s%d, s%d, 7' % (R.sRX, R.sRX))
    b('s_and_b32 s%d, s%d, 31' % (R.sI, sGT))
    b.fence()
    head2 = b.text()
    dbgbuild = any(cfg.get(k) for k in ('stamp', 'prof', 'tl', 'st3', 'st2', 'gprof', 'g2prof'))
    if not dbgbuild: Asm.GL = gl0
    b = Asm()
    roles(b, cfg2)
    Asm.GL = max(Asm.GL, gl1)
    R.MX_OFF, R.QKX_OFF, R.OX_OFF, G1.XF_OFF, P.XF_OFF = saved; R.SAFE[0] = False
    safe = b.text()
    import difflib
    labels = set(re.findall(r'^([A-Za-z_][\w]*):', safe + fast, re.M))
    rx = re.compile(r'\b(' + '|'.join(sorted(labels, key=len, reverse=True)) + r')\b')
    fl = [rx.sub(lambda m: m.group(1) + '_\\sf', l.strip()) for l in fast.split('\n') if l.strip()]
    sl = [rx.sub(lambda m: m.group(1) + '_\\sf', l.strip()) for l in safe.split('\n') if l.strip()]
    out = ['.macro ROLES sf']
    if len(fl) == len(sl) or True:
        sm = difflib.SequenceMatcher(None, fl, sl, autojunk=False) if len(fl) != len(sl) else None
        if sm is None:
            ops = []
            i = 0
            while i < len(fl):
                j = i
                same = fl[i] == sl[i]
                while j < len(fl) and (fl[j] == sl[j]) == same: j += 1
                ops.append(('equal' if same else 'replace', i, j, i, j)); i = j
        else:
            ops = sm.get_opcodes()
        for tag, i1, i2, j1, j2 in ops:
            if tag == 'equal': out += fl[i1:i2]
            else:
                out.append('.if \\sf == 0'); out += fl[i1:i2]; out.append('.else'); out += sl[j1:j2]; out.append('.endif')
    out.append('.endm')
    return '\n'.join(out) + '\n' + head + 'ROLES 0\nSAFE_ENTRY:\n' + head2 + 'ROLES 1\n'
```

```python
from common import *

sWS, sWQ, sWK, sWV, sWO, sM0, sDBG = 8, 12, 16, 20, 24, 28, 32
sRX, sI, sW, sSTEP, sSPIN, sT0, sT1, sT2, sT3, sH, sJ = 40, 41, 42, 43, 44, 45, 46, 47, 48, 49, 50
sMXR, sMXW, sQKW, sQKR, sOXR, sOXW, sPXR, sPXW, sARC, sKF, sVF = 52, 53, 54, 55, 56, 57, 58, 59, 60, 61, 62
sSLOT, sSLOT2, sC, sA0, sA1, sA2, sA3, sP0, sP1 = 63, 64, 65, 66, 67, 68, 69, 74, 75
vL, vL16, vP8, vDup, vOD, vL8 = 1, 2, 3, 4, 5, 6
vSENT = 8
vT = 12
vSET = 16
vM = 64
vACC = 80
vZ = 128
vR = 144
vMLO, vMHI, vFLO = 156, 157, 158
vTR = 144
vKX = 160
vVX = 192
vS = 200
vP = 212
vVZ = 222
vO = 224
vX = 160
vXR = 224
vXA, vXM, vZERO = 232, 233, 234
sXB = 36
sPX1, sP2, sP3 = 51, 72, 73
sGP = 59
vL16B, vXAB = 7, 236
LDS_B = 0
LDS_D = 12288
LDS_KV = 16384
LDS_TK = 65536
SWITCH = 5

def acc(tile, b): return vACC + (tile * 2 + b) * 4
def wq_frag(tile, T, b): return ((tile * 4 + T) * 2 + b) * 4
def wo_frag(tau, u, b): return 192 + ((tau * 4 + u) * 2 + b) * 4

def check_sent(a, regs, tmp):
    regs = list(regs)
    h = len(regs) // 2
    chains = [(regs[:h], tmp), (regs[h:], tmp + 1)]
    outs = []
    for rg, t in chains:
        seq = ['v_max3_u32 v%d, v%d, v%d, v%d' % (t, rg[0], rg[1], rg[2])]
        k = 3
        while k + 1 < len(rg):
            seq.append('v_max3_u32 v%d, v%d, v%d, v%d' % (t, t, rg[k], rg[k + 1])); k += 2
        if k < len(rg): seq.append('v_max_u32 v%d, v%d, v%d' % (t, t, rg[k]))
        outs.append(seq)
    for x, y in zip(outs[0], outs[1]):
        a(x); a(y)
    a('v_max_u32 v%d, v%d, v%d' % (tmp, tmp, tmp + 1))
    a('v_cmp_eq_u32 vcc, -1, v%d' % tmp)

def delay(a, n):
    if n <= 0: return
    if n >= 4: a('s_sleep %d' % (n // 4))
    for _ in range(n % 4): a('s_nop 3')

def spoll_issue(a, nsets, loads, gap):
    for k in range(nsets):
        for ld in loads(k): a(ld)
        if k < nsets - 1: delay(a, gap)

def spoll(a, nsets, loads, regs, consume, first=0, gap=0, issued=False):
    L = a.newlabel('sp'); J = a.newlabel('spj')
    C = [a.newlabel('spc') for _ in range(nsets)]
    nl = len(loads(0))
    if not issued:
        delay(a, first)
        spoll_issue(a, nsets, loads, gap)
    a.label(L)
    for k in range(nsets):
        a('s_waitcnt vmcnt(%d)' % (nl * (nsets - 1)))
        check_sent(a, regs(k), vT)
        a('s_cbranch_vccz %s' % C[k])
        for ld in loads(k): a(ld)
    a('s_add_u32 s%d, s%d, 1' % (sSPIN, sSPIN))
    a('s_cmp_lt_u32 s%d, 0x%x' % (sSPIN, SPIN_LIMIT))
    a('s_cbranch_scc1 %s' % L)
    a('s_waitcnt vmcnt(0)')
    for k in range(nsets):
        a.label(C[k], fence=False); a.hist = []
        consume(k)
        if k < nsets - 1: a.branch('s_branch %s' % J)
    a.label(J)

def ppoll(a, nb, loads, regs, consume, first=0, issued=False):
    nl = len(loads(0))
    if not issued:
        delay(a, first)
        for T in range(nb):
            for ld in loads(T): a(ld)
    for T in range(nb):
        C = a.newlabel('ppc'); Rr = a.newlabel('ppr'); OK = a.newlabel('ppo')
        a('s_waitcnt vmcnt(%d)' % (nl * (nb - 1 - T)))
        rg = list(regs(T))
        def chk():
            if len(rg) == 4:
                a('v_max3_u32 v%d, v%d, v%d, v%d' % (vT, rg[0], rg[1], rg[2]))
                a('v_max_u32 v%d, v%d, v%d' % (vT, vT, rg[3]))
                a('v_cmp_eq_u32 vcc, -1, v%d' % vT)
            else:
                check_sent(a, rg, vT)
        chk()
        a('s_cbranch_vccz %s' % OK)
        saved = list(a.hist)
        a.label(Rr)
        for T2 in range(T, nb):
            for ld in loads(T2): a(ld)
        a('s_add_u32 s%d, s%d, 1' % (sSPIN, sSPIN))
        a('s_waitcnt vmcnt(%d)' % (nl * (nb - 1 - T)))
        chk()
        a('s_cbranch_vccz %s' % OK)
        a('s_cmp_lt_u32 s%d, 0x%x' % (sSPIN, SPIN_LIMIT))
        a('s_cbranch_scc1 %s' % Rr)
        a.label(OK, fence=False); a.hist = saved
        consume(T)

def combine_pair(a, z, t0, t1):
    for i in range(4):
        a('v_add_f32_dpp v%d, v%d, v%d row_ror:8 row_mask:0xf bank_mask:0x3' % (z + i, acc(t0, 1) + i, acc(t0, 0) + i))
        a('v_add_f32_dpp v%d, v%d, v%d row_ror:8 row_mask:0xf bank_mask:0xc' % (z + i, acc(t1, 0) + i, acc(t1, 1) + i))

def pk_add(a, d, x, y):
    a('v_pk_add_f32 v[%d:%d], v[%d:%d], v[%d:%d]' % (d, d + 1, x, x + 1, y, y + 1))

def reduce3(a, z, ldsbase, w):
    others = [x for x in range(4) if x != w]
    for n, o in enumerate(others):
        a('ds_read_b128 v[%d:%d], v%d offset:%d' % (vR + 4 * n, vR + 4 * n + 3, vL16, ldsbase + o * 1024))
    a('s_waitcnt lgkmcnt(2)')
    pk_add(a, z, z, vR); pk_add(a, z + 2, z + 2, vR + 2)
    a('s_waitcnt lgkmcnt(0)')
    pk_add(a, vR + 4, vR + 4, vR + 8); pk_add(a, vR + 6, vR + 6, vR + 10)
    pk_add(a, z, z, vR + 4); pk_add(a, z + 2, z + 2, vR + 6)

LW = dict(order=0, rdelay=0)
def load_weights(a, with_wo=True, hook=None):
    a('v_lshrrev_b32 v%d, 2, v%d' % (vT, vL))
    a('v_and_b32 v%d, 3, v%d' % (vT + 1, vL))
    a('v_lshlrev_b32 v%d, 4, v%d' % (vT + 1, vT + 1))
    a('v_lshl_add_u32 v%d, v%d, 13, v%d' % (vT + 2, vT, vT + 1))
    a('v_lshl_add_u32 v%d, v%d, 11, v%d' % (vT + 3, vT, vT + 1))
    def wo():
        a('s_lshl_b32 s%d, s%d, 21' % (sT0, sRX))
        a('s_lshl_b32 s%d, s%d, 19' % (sT1, sW))
        a('s_add_u32 s%d, s%d, s%d' % (sT0, sT0, sT1))
        a('s_lshl_b32 s%d, s%d, 6' % (sT1, sI))
        a('s_add_u32 s%d, s%d, s%d' % (sT0, sT0, sT1))
        for n in range(16):
            a('buffer_load_dwordx4 a[%d:%d], v%d, s[%d:%d], s%d offen' % (192 + 4 * n, 192 + 4 * n + 3, vT + 3, sWO, sWO + 3, sT0))
            if n < 15: a('s_add_u32 s%d, s%d, 0x8000' % (sT0, sT0))
    if with_wo and LW['order'] & 1:
        wo()
        if hook: hook()
        for _ in range(LW['rdelay']): a('s_sleep 32')
    a('s_lshl_b32 s%d, s%d, 21' % (sT2, sW))
    a('s_lshl_b32 s%d, s%d, 8' % (sT1, sH))
    a('s_add_u32 s%d, s%d, s%d' % (sT2, sT2, sT1))
    a('s_lshl_b32 s%d, s%d, 6' % (sT1, sJ))
    a('s_add_u32 s%d, s%d, s%d' % (sT2, sT2, sT1))
    if LW['order'] & 2:
        for M, srd in ((1, sWK), (2, sWV), (0, sWQ)):
            a('s_mov_b32 s%d, s%d' % (sT0, sT2))
            for n in range(16):
                a('buffer_load_dwordx4 a[%d:%d], v%d, s[%d:%d], s%d offen' % (64 * M + 4 * n, 64 * M + 4 * n + 3, vT + 2, srd, srd + 3, sT0))
                if n < 15: a('s_add_u32 s%d, s%d, 0x20000' % (sT0, sT0))
    else:
        a('s_mov_b32 s%d, s%d' % (sT0, sT2))
        for n in range(16):
            for M, srd in enumerate((sWQ, sWK, sWV)):
                a('buffer_load_dwordx4 a[%d:%d], v%d, s[%d:%d], s%d offen' % (64 * M + 4 * n, 64 * M + 4 * n + 3, vT + 2, srd, srd + 3, sT0))
            if n < 15: a('s_add_u32 s%d, s%d, 0x20000' % (sT0, sT0))
    if with_wo and not (LW['order'] & 1): wo()

def rstamp(a, k):
    a('s_memrealtime s[%d:%d]' % (80 + 2 * k, 81 + 2 * k))

def tr_setup(a):
    a('s_lshl_b32 s%d, s%d, 14' % (sT0, sW))
    a('v_add_u32 v%d, s%d, v%d' % (vTR, sT0, vL16))
    a('v_lshrrev_b32 v%d, 4, v%d' % (vT, vL))
    a('v_bfe_u32 v%d, v%d, 2, 2' % (vT + 1, vL))
    a('v_and_b32 v%d, 3, v%d' % (vT + 2, vL))
    a('v_lshl_add_u32 v%d, v%d, 4, v%d' % (vT + 3, vT, vT + 1))
    a('v_lshlrev_b32 v%d, 6, v%d' % (vT + 3, vT + 3))
    a('v_lshl_add_u32 v%d, v%d, 3, v%d' % (vT + 3, vT + 2, vT + 3))
    a('v_add_u32 v%d, s%d, v%d' % (vTR + 1, sT0, vT + 3))
    a('v_lshl_add_u32 v%d, v%d, 2, v%d' % (vT + 3, vT, vT + 1))
    a('v_lshlrev_b32 v%d, 6, v%d' % (vT + 3, vT + 3))
    a('v_lshl_add_u32 v%d, v%d, 4, v%d' % (vT + 3, vT + 2, vT + 3))
    a('v_add_u32 v%d, s%d, v%d' % (vTR + 2, sT0, vT + 3))

def tr_matrix(a, M):
    for n in range(16):
        a('ds_write_b128 v%d, a[%d:%d] offset:%d' % (vTR, 64 * M + 4 * n, 64 * M + 4 * n + 3, n * 1024))
    a('s_waitcnt lgkmcnt(0)')
    for tau in range(2):
        for T in range(4):
            for b in range(2):
                for half in range(2):
                    if M < 3:
                        r = wq_frag(2 * M + tau, T, b) + 2 * half
                        off = (64 * T + 8 * b + 4 * half) * 64 + tau * 32
                        a('ds_read_b64_tr_b16 a[%d:%d], v%d offset:%d' % (r, r + 1, vTR + 1, off))
                    else:
                        r = wo_frag(tau, T, b) + 2 * half
                        off = (32 * (2 * T + b) + 16 * half) * 64 + tau * 8
                        a('ds_read_b64_tr_b16 a[%d:%d], v%d offset:%d' % (r, r + 1, vTR + 2, off))
    a('s_waitcnt lgkmcnt(0)')

def transpose_weights(a, with_wo=True, st=False):
    tr_setup(a)
    if LW['order'] == 3 and with_wo:
        for n, M in enumerate((3, 1, 2, 0)):
            a('s_waitcnt vmcnt(%d)' % (48 - 16 * n))
            if st and n == 3: rstamp(a, 1)
            tr_matrix(a, M)
        return
    a('s_waitcnt vmcnt(0)')
    if st: rstamp(a, 1)
    for M in range(4 if with_wo else 3): tr_matrix(a, M)

def lane_consts(a):
    a('v_and_b32 v%d, 63, v0' % vL)
    a('v_lshlrev_b32 v%d, 4, v%d' % (vL16, vL))
    a('v_lshlrev_b32 v%d, 3, v%d' % (vL8, vL))
    a('v_lshrrev_b32 v%d, 4, v%d' % (vT, vL))
    a('v_and_b32 v%d, 7, v%d' % (vT + 1, vL))
    a('v_bfe_u32 v%d, v%d, 3, 1' % (vT + 2, vL))
    a('v_lshl_add_u32 v%d, v%d, 3, v%d' % (vT + 3, vT, vT + 1))
    a('v_lshlrev_b32 v%d, 4, v%d' % (vDup, vT + 3))
    a('v_lshl_add_u32 v%d, v%d, 3, v%d' % (vP8, vT + 2, vDup))
    a('v_lshl_add_u32 v%d, v%d, 9, v%d' % (vOD, vT + 2, vDup))
    for i in range(4): a('v_mov_b32 v%d, -1' % (vSENT + i))
    a('v_cmp_gt_u32 vcc, 32, v%d' % vL)
    a('v_cndmask_b32 v%d, 0, -1, vcc' % vMLO)
    a('v_cndmask_b32 v%d, -1, 0, vcc' % vMHI)
    a('v_cndmask_b32 v%d, 0, 1.0, vcc' % vFLO)

def mark(a, cfg, k):
    if not cfg.get('prof'): return
    if cfg['prof'] == 3:
        if k not in (1, 2, 9, 100, 101, 102, 103, 104, 105, 106, 107): return
        if k >= 100: k = k - 100 + 3 if k < 104 else k - 104 + 10
        a('s_memtime s[76:77]')
        a('s_cmp_eq_u32 s%d, %d' % (sSTEP, cfg.get('pstep', 21)))
        a('s_waitcnt lgkmcnt(0)')
        a('s_cselect_b32 s%d, s76, s%d' % (80 + k, 80 + k))
        return
    if k >= 100: return
    if cfg['prof'] == 2:
        a('s_memrealtime s[76:77]')
        a('s_cmp_eq_u32 s%d, %d' % (sSTEP, 20 if k > 1 else 21))
        a('s_waitcnt lgkmcnt(0)')
        a('s_cselect_b32 s%d, s76, s%d' % (80 + k, 80 + k))
        return
    a('s_memtime s[76:77]')
    a('s_waitcnt lgkmcnt(0)')
    a('s_sub_u32 s78, s76, s79')
    a('s_add_u32 s%d, s%d, s78' % (80 + k, 80 + k))
    a('s_mov_b32 s79, s76')

def px_slot(a, dst, slotreg, base):
    a('s_lshr_b32 s%d, s%d, 1' % (sT3, slotreg))
    a('s_lshl_b32 s%d, s%d, 14' % (sT3, sT3))
    a('s_add_u32 s%d, s%d, s%d' % (sT3, sT3, base))
    a('s_and_b32 s%d, s%d, 1' % (dst, slotreg))
    a('s_lshl_b32 s%d, s%d, 12' % (dst, dst))
    a('s_add_u32 s%d, s%d, s%d' % (dst, dst, sT3))

def slot_off(a, dst, slotreg, shift, base):
    a('s_lshl_b32 s%d, s%d, %d' % (dst, slotreg, shift))
    a('s_add_u32 s%d, s%d, s%d' % (dst, dst, base))

SAFE = [False]
def st(a, regs, n, vaddr, soff, sc1=False):
    sc1 = sc1 or SAFE[0]
    a('buffer_store_dword%s %s, v%d, s[%d:%d], s%d offen%s' % ('x%d' % n if n > 1 else '', vr(regs, n), vaddr, sWS, sWS + 3, soff, ' sc1' if sc1 else ''))

def read_choice(a, cfg, bases):
    L = a.newlabel('ch'); D = a.newlabel('chd')
    a('v_mov_b32 v%d, 132' % (vT + 1))
    a.label(L)
    a('buffer_load_dword v%d, v%d, s[%d:%d], 0 offen sc1' % (vT, vT + 1, sDBG, sDBG + 3))
    a('s_waitcnt vmcnt(0)')
    a('v_readfirstlane_b32 s%d, v%d' % (sT0, vT))
    a('s_cmp_lg_u32 s%d, 0' % sT0)
    a('s_cbranch_scc1 %s' % D)
    a('s_add_u32 s%d, s%d, 1' % (sSPIN, sSPIN))
    a('s_cmp_lt_u32 s%d, 0x%x' % (sSPIN, SPIN_LIMIT))
    a('s_cbranch_scc1 %s' % L)
    a.label(D)
    if 'forcesel' in cfg: a('s_mov_b32 s%d, %d' % (sT0, cfg['forcesel']))
    a('s_and_b32 s%d, s%d, 1' % (sT1, sT0))
    a('s_lshl_b32 s%d, s%d, 13' % (sT1, sT1))
    a('s_add_u32 s%d, s%d, s%d' % (sPXR, sPXR, sT1))
    a('s_and_b32 s%d, s%d, 2' % (sT1, sT0))
    a('s_lshl_b32 s%d, s%d, 12' % (sT1, sT1))
    a('s_add_u32 s%d, s%d, s%d' % (sPX1, sPX1, sT1))

def phase_bc_old(a, w, cfg, Lend):
    g = cfg.get
    fused = g('fused', 0)
    mb = vSET + 64
    mb = vM
    def ml(T): return ['buffer_load_dwordx4 v[%d:%d], v%d, s[%d:%d], s%d offen offset:%d sc1' % (mb + 4 * T, mb + 4 * T + 3, vL16, sWS, sWS + 3, sA0, T * 1024)]
    def mc(T):
        if T == 3: mark(a, cfg, 3)
        mark(a, cfg, 100 + T)
        for tile in range(4):
            for b in range(2):
                c = '0' if T == 0 else vr(acc(tile, b), 4)
                a('v_mfma_f32_16x16x32_bf16 %s, %s, %s, %s' % (vr(acc(tile, b), 4), ar(wq_frag(tile, T, b), 4), vr(mb + 4 * T, 4), c))
    ppoll(a, 4, ml, lambda T: range(mb + 4 * T, mb + 4 * T + 4), mc, g('dly_m', 0))
    for i in range(4):
        a('v_add_f32_dpp v%d, v%d, v%d row_ror:8 row_mask:0xf bank_mask:0x3' % (vZ + i, acc(0, 1) + i, acc(0, 0) + i))
    for i in range(4):
        a('v_add_f32_dpp v%d, v%d, v%d row_ror:8 row_mask:0xf bank_mask:0xc' % (vZ + i, acc(1, 0) + i, acc(1, 1) + i))
    if w != 0: a('ds_write_b128 v%d, v[%d:%d] offset:%d' % (vL16, vZ, vZ + 3, LDS_B + w * 1024))
    for i in range(4):
        a('v_add_f32_dpp v%d, v%d, v%d row_ror:8 row_mask:0xf bank_mask:0x3' % (vZ + 4 + i, acc(2, 1) + i, acc(2, 0) + i))
    for i in range(4):
        a('v_add_f32_dpp v%d, v%d, v%d row_ror:8 row_mask:0xf bank_mask:0xc' % (vZ + 4 + i, acc(3, 0) + i, acc(3, 1) + i))
    if w != 1: a('ds_write_b128 v%d, v[%d:%d] offset:%d' % (vL16, vZ + 4, vZ + 7, LDS_B + 4096 + w * 1024))
    a('s_waitcnt lgkmcnt(0)')
    mark(a, cfg, 4)
    a('s_barrier')
    mark(a, cfg, 5)
    if w in (0, 1):
        z = vZ + 4 * w
        reduce3(a, z, LDS_B + 4096 * w, w)
        a('v_cvt_pk_bf16_f32 v%d, v%d, v%d' % (z, z, z + 1))
        a('v_cvt_pk_bf16_f32 v%d, v%d, v%d' % (z + 1, z + 2, z + 3))
        a('v_min_u32 v%d, -2, v%d' % (z, z))
        a('v_min_u32 v%d, -2, v%d' % (z + 1, z + 1))
        st(a, z, 2, vP8, sA2)
        st(a, vSENT, 2, vL8, sA3)
        if w == 1:
            slot_off(a, sT0, sSTEP, 16, sARC)
            st(a, z, 2, vP8, sT0, True)
    def qkl(c):
        return ['buffer_load_dwordx4 v[%d:%d], v%d, s[%d:%d], s%d offen offset:%d sc1' % (vSET + 8 * c + 4 * x, vSET + 8 * c + 4 * x + 3, vDup, sWS, sWS + 3, sT2, x * 2048 + c * 512) for x in range(2)]
    n = 0
    qk_at = g('qk_at', 16)
    for tile in (4, 5):
        for T in range(4):
            for b in range(2):
                if w == 3 and n >= qk_at and (n - qk_at) < 8 and (n - qk_at) % 2 == 0:
                    for ld in qkl((n - qk_at) // 2): a(ld)
                c = '0' if T == 0 else vr(acc(tile, b), 4)
                a('v_mfma_f32_16x16x32_bf16 %s, %s, %s, %s' % (vr(acc(tile, b), 4), vr(mb + 4 * T, 4), ar(wq_frag(tile, T, b), 4), c))
                n += 1
    qk_done = max(0, min(4, (16 - qk_at + 1) // 2))
    for i in range(4):
        a('v_permlane32_swap_b32 v%d, v%d' % (acc(4, 0) + i, acc(5, 0) + i))
        a('v_permlane32_swap_b32 v%d, v%d' % (acc(4, 1) + i, acc(5, 1) + i))
    for i in range(4):
        a('v_add_f32 v%d, v%d, v%d' % (vZ + 8 + i, acc(4, 0) + i, acc(5, 1) + i))
    a('ds_write_b128 v%d, v[%d:%d] offset:%d' % (vL16, vZ + 8, vZ + 11, LDS_B + 8192 + w * 1024))
    if w == 3:
        if qk_done < 4: delay(a, g('dly_qk', 0))
        for c in range(qk_done, 4):
            for ld in qkl(c): a(ld)
    a('s_waitcnt lgkmcnt(0)')
    mark(a, cfg, 6)
    a('s_barrier')
    mark(a, cfg, 7)
    if w in (2, 3):
        reduce3(a, vZ + 8, LDS_B + 8192, w)
        a('v_cvt_pk_bf16_f32 v%d, v%d, v%d' % (vZ + 8 if w == 2 else vVZ, vZ + 8, vZ + 9))
        a('v_cvt_pk_bf16_f32 v%d, v%d, v%d' % (vZ + 9 if w == 2 else vVZ + 1, vZ + 10, vZ + 11))
    if w == 2:
        slot_off(a, sT0, sSTEP, 16, sARC)
        st(a, vZ + 8, 2, vL8, sT0, True)
    a('s_cmp_eq_u32 s%d, 63' % sSTEP)
    a.branch('s_cbranch_scc1 %s' % Lend)
    if w == 2:
        a('s_add_u32 s%d, s%d, 0x40000' % (sKF, sKF))
        a('s_add_u32 s%d, s%d, 0x40000' % (sVF, sVF))
        if fused: ensure_gp(a, sSTEP, 2)
        prefetch_dma(a, fused)
    if w == 3:
        if fused:
            L0 = a.newlabel('kv0')
            a('s_cmp_lg_u32 s%d, 0' % sSTEP)
            a.branch('s_cbranch_scc1 %s' % L0)
            a('s_mov_b32 s%d, s%d' % (sP0, sT2))
            ensure_gp(a, None, 1)
            prefetch_kv(a, True)
            a('s_mov_b32 s%d, s%d' % (sT2, sP0))
            a('s_waitcnt vmcnt(0)')
            a.label(L0)
        def qkc(c):
            qb = vSET + 8 * c; ka = qb + 4
            if c == 3: mark(a, cfg, 8)
            for t, A in ((0, vKX + 4 * c), (1, vKX + 16 + 4 * c), (2, ka)):
                cc = '0' if c == 0 else vr(vS + 4 * t, 4)
                a('v_mfma_f32_16x16x32_bf16 %s, %s, %s, %s' % (vr(vS + 4 * t, 4), vr(A, 4), vr(qb, 4), cc))
        ppoll(a, 4, qkl, lambda c: range(vSET + 8 * c, vSET + 8 * c + 8), qkc, issued=True)
        m, t2 = vT, vT + 1
        a('v_max3_f32 v%d, v%d, v%d, v%d' % (m, vS, vS + 1, vS + 2))
        a('v_max3_f32 v%d, v%d, v%d, v%d' % (t2, vS + 3, vS + 4, vS + 5))
        a('v_max3_f32 v%d, v%d, v%d, v%d' % (m, m, vS + 6, vS + 7))
        a('v_max3_f32 v%d, v%d, v%d, v%d' % (t2, t2, vS + 8, vS + 9))
        a('v_max3_f32 v%d, v%d, v%d, v%d' % (m, m, vS + 10, vS + 11))
        a('v_max_f32 v%d, v%d, v%d' % (m, m, t2))
        a('v_mov_b32 v%d, v%d' % (t2, m))
        a('v_permlane16_swap_b32 v%d, v%d' % (m, t2))
        a('v_max_f32 v%d, v%d, v%d' % (m, m, t2))
        a('v_mov_b32 v%d, v%d' % (t2, m))
        a('v_permlane32_swap_b32 v%d, v%d' % (m, t2))
        a('v_max_f32 v%d, v%d, v%d' % (m, m, t2))
        a('v_mul_f32 v%d, s%d, v%d' % (m, sC, m))
        for i in range(12):
            a('v_fma_f32 v%d, v%d, s%d, -v%d' % (vS + i, vS + i, sC, m))
            if i >= 1: a('v_exp_f32 v%d, v%d' % (vS + i - 1, vS + i - 1))
        a('v_exp_f32 v%d, v%d' % (vS + 11, vS + 11))
        for i in range(4):
            a('v_cvt_pk_bf16_f32 v%d, v%d, v%d' % (vP + i, vS + 2 * i, vS + 2 * i + 1))
        for i in range(4, 6):
            a('v_cvt_pk_bf16_f32 v%d, v%d, v%d' % (vP + i, vS + 2 * i, vS + 2 * i + 1))
        a('v_mfma_f32_16x16x32_bf16 %s, %s, %s, 0' % (vr(vO, 4), vr(vVX, 4), vr(vP, 4)))
        a('v_and_b32 v%d, v%d, v%d' % (vP + 6, vP + 4, vMLO))
        a('v_and_b32 v%d, v%d, v%d' % (vP + 7, vP + 5, vMLO))
        a('v_mfma_f32_16x16x32_bf16 %s, %s, %s, 0' % (vr(vO + 4, 4), vr(vVX + 4, 4), vr(vP, 4)))
        a('v_and_b32 v%d, v%d, v%d' % (vP + 8, vP + 4, vMHI))
        a('v_and_b32 v%d, v%d, v%d' % (vP + 9, vP + 5, vMHI))
        a('v_mfma_f32_16x16x16_bf16 %s, %s, %s, %s' % (vr(vO, 4), vr(vVZ, 2), vr(vP + 6, 2), vr(vO, 4)))
        sA, sB = vT, vT + 1
        pk_add(a, vS + 8, vS + 8, vS + 10)
        pk_add(a, vS, vS, vS + 2)
        a('v_mfma_f32_16x16x16_bf16 %s, %s, %s, %s' % (vr(vO + 4, 4), vr(vVZ, 2), vr(vP + 8, 2), vr(vO + 4, 4)))
        pk_add(a, vS + 4, vS + 4, vS + 6)
        a('v_add_f32 v%d, v%d, v%d' % (sB, vS + 8, vS + 9))
        pk_add(a, vS, vS, vS + 4)
        a('v_add_f32 v%d, v%d, v%d' % (sA, vS, vS + 1))
        a('v_fma_f32 v%d, v%d, v%d, v%d' % (sA, sB, vFLO, sA))
        a('v_mov_b32 v%d, v%d' % (sB, sA))
        a('v_permlane16_swap_b32 v%d, v%d' % (sA, sB))
        a('v_add_f32 v%d, v%d, v%d' % (sA, sA, sB))
        a('v_mov_b32 v%d, v%d' % (sB, sA))
        a('v_permlane32_swap_b32 v%d, v%d' % (sA, sB))
        a('v_add_f32 v%d, v%d, v%d' % (sA, sA, sB))
        a('v_rcp_f32 v%d, v%d' % (sA, sA))
        a('v_mov_b32 v%d, v%d' % (sB, sA))
        for i in range(4):
            a('v_pk_mul_f32 v[%d:%d], v[%d:%d], v[%d:%d]' % (vO + 2 * i, vO + 2 * i + 1, vO + 2 * i, vO + 2 * i + 1, sA, sB))
        for i in range(4):
            a('v_cvt_pk_bf16_f32 v%d, v%d, v%d' % (vO + i, vO + 2 * i, vO + 2 * i + 1))
        for i in range(4):
            a('v_min_u32 v%d, -2, v%d' % (vO + i, vO + i))
        st(a, vO, 4, vDup, sA2)
        st(a, vSENT, 2, vL8, sA3)

def phase_bc_eq(a, w, cfg, Lend):
    g = cfg.get
    fused = g('fused', 0)
    mb = vM
    vMX, vSX = 237, 238
    def ml(T): return ['buffer_load_dwordx4 v[%d:%d], v%d, s[%d:%d], s%d offen offset:%d sc1' % (mb + 4 * T, mb + 4 * T + 3, vL16, sWS, sWS + 3, sA0, T * 1024)]
    def mf(tile, T, b):
        c = '0' if T == 0 else vr(acc(tile, b), 4)
        W = ar(wq_frag(tile, T, b), 4); M = vr(mb + 4 * T, 4)
        return 'v_mfma_f32_16x16x32_bf16 %s, %s, %s, %s' % (vr(acc(tile, b), 4), W if tile < 4 else M, M if tile < 4 else W, c)
    def mc(T):
        if T == 3: mark(a, cfg, 3)
        for tile in range(2):
            for b in range(2): a(mf(tile, T, b))
    ppoll(a, 4, ml, lambda T: range(mb + 4 * T, mb + 4 * T + 4), mc, g('dly_m', 0))
    def qkl(n):
        return ['buffer_load_dwordx4 v[%d:%d], v%d, s[%d:%d], s%d offen offset:%d sc1' % (vSET + 4 * n, vSET + 4 * n + 3, vDup, sWS, sWS + 3, sT2, n * 512)]
    def stream(t0, pt0, z, ldsoff, red_wave, extra):
        fill = {k: [] for k in range(16)}
        dpp = []
        for i in range(4): dpp.append('v_add_f32_dpp v%d, v%d, v%d row_ror:8 row_mask:0xf bank_mask:0x3' % (z + i, acc(pt0, 1) + i, acc(pt0, 0) + i))
        for i in range(4): dpp.append('v_add_f32_dpp v%d, v%d, v%d row_ror:8 row_mask:0xf bank_mask:0xc' % (z + i, acc(pt0 + 1, 0) + i, acc(pt0 + 1, 1) + i))
        for n, x in enumerate(dpp): fill[1 + n // 3].append(x)
        if w != red_wave: fill[4].append('ds_write_b128 v%d, v[%d:%d] offset:%d' % (vL16, z, z + 3, ldsoff + w * 1024))
        fill[6] += ['s_waitcnt lgkmcnt(0)', 's_barrier']
        if w == red_wave:
            others = [x for x in range(4) if x != w]
            for n, o in enumerate(others):
                fill[6].append('ds_read_b128 v[%d:%d], v%d offset:%d' % (vR + 4 * n, vR + 4 * n + 3, vL16, ldsoff + o * 1024))
            pk = lambda d, x, y: 'v_pk_add_f32 v[%d:%d], v[%d:%d], v[%d:%d]' % (d, d + 1, x, x + 1, y, y + 1)
            fill[9] += ['s_waitcnt lgkmcnt(0)', pk(z, z, vR), pk(z + 2, z + 2, vR + 2), pk(vR + 4, vR + 4, vR + 8), pk(vR + 6, vR + 6, vR + 10)]
            fill[10] += [pk(z, z, vR + 4), pk(z + 2, z + 2, vR + 6), 'v_cvt_pk_bf16_f32 v%d, v%d, v%d' % (z, z, z + 1), 'v_cvt_pk_bf16_f32 v%d, v%d, v%d' % (z + 1, z + 2, z + 3)]
            fill[11] += ['v_min_u32 v%d, -2, v%d' % (z, z), 'v_min_u32 v%d, -2, v%d' % (z + 1, z + 1), ('st', z)]
        for k, x in extra.items(): fill[k] += x
        n = 0
        for T in range(4):
            for tile in (t0, t0 + 1):
                for b in range(2):
                    a(mf(tile, T, b))
                    for x in fill[n]:
                        if isinstance(x, tuple):
                            st(a, z, 2, vP8, sA2); st(a, vSENT, 2, vL8, sA3)
                            if w == 1:
                                slot_off(a, sT0, sSTEP, 16, sARC)
                                st(a, z, 2, vP8, sT0, True)
                        else: a(x)
                    n += 1
    stream(2, 0, vZ, LDS_B, 0, {})
    mark(a, cfg, 5)
    q_at = g('q_at', 8)
    ex = {}
    if w == 3:
        for c in range(4): ex.setdefault(min(15, q_at + c), []).extend(qkl(c))
    stream(4, 2, vZ + 4, LDS_B + 4096, 1, ex)
    for i in range(4):
        a('v_permlane32_swap_b32 v%d, v%d' % (acc(4, 0) + i, acc(5, 0) + i))
        a('v_permlane32_swap_b32 v%d, v%d' % (acc(4, 1) + i, acc(5, 1) + i))
    for i in range(4):
        a('v_add_f32 v%d, v%d, v%d' % (vZ + 8 + i, acc(4, 0) + i, acc(5, 1) + i))
    a('ds_write_b128 v%d, v[%d:%d] offset:%d' % (vL16, vZ + 8, vZ + 11, LDS_B + 8192 + w * 1024))
    a('s_waitcnt lgkmcnt(0)')
    mark(a, cfg, 6)
    a('s_barrier')
    mark(a, cfg, 7)
    if w == 3:
        delay(a, g('dly_k', 0))
        for c in range(4, 8):
            for ld in qkl(c): a(ld)
    if w in (2, 3):
        reduce3(a, vZ + 8, LDS_B + 8192, w)
        a('v_cvt_pk_bf16_f32 v%d, v%d, v%d' % (vZ + 8 if w == 2 else vVZ, vZ + 8, vZ + 9))
        a('v_cvt_pk_bf16_f32 v%d, v%d, v%d' % (vZ + 9 if w == 2 else vVZ + 1, vZ + 10, vZ + 11))
    if w == 2:
        slot_off(a, sT0, sSTEP, 16, sARC)
        st(a, vZ + 8, 2, vL8, sT0, True)
    a('s_cmp_eq_u32 s%d, 63' % sSTEP)
    a.branch('s_cbranch_scc1 %s' % Lend)
    if w == 2:
        a('s_add_u32 s%d, s%d, 0x40000' % (sKF, sKF))
        a('s_add_u32 s%d, s%d, 0x40000' % (sVF, sVF))
        if fused: ensure_gp(a, sSTEP, 2)
        prefetch_dma(a, fused)
    if w != 3: return
    if fused:
        L0 = a.newlabel('kv0')
        a('s_cmp_lg_u32 s%d, 0' % sSTEP)
        a.branch('s_cbranch_scc1 %s' % L0)
        a('s_mov_b32 s%d, s%d' % (sP0, sT2))
        ensure_gp(a, None, 1)
        prefetch_kv(a, True)
        a('s_mov_b32 s%d, s%d' % (sT2, sP0))
        a('s_waitcnt vmcnt(0)')
        a.label(L0)
    t2 = vT + 2; t3 = vT + 3
    def qkc(n):
        if n < 4:
            for t, A in ((0, vKX + 4 * n), (1, vKX + 16 + 4 * n)):
                a('v_mfma_f32_16x16x32_bf16 %s, %s, %s, %s' % (vr(vS + 4 * t, 4), vr(A, 4), vr(vSET + 4 * n, 4), '0' if n == 0 else vr(vS + 4 * t, 4)))
        else:
            c = n - 4
            if c == 3: mark(a, cfg, 8)
            a('v_mfma_f32_16x16x32_bf16 %s, %s, %s, %s' % (vr(vS + 8, 4), vr(vSET + 4 * n, 4), vr(vSET + 4 * c, 4), '0' if c == 0 else vr(vS + 8, 4)))
        if n == 3:
            a('v_max3_f32 v%d, v%d, v%d, v%d' % (vMX, vS, vS + 1, vS + 2))
            a('v_max3_f32 v%d, v%d, v%d, v%d' % (t2, vS + 3, vS + 4, vS + 5))
            a('v_max3_f32 v%d, v%d, v%d, v%d' % (vMX, vMX, vS + 6, vS + 7))
            a('v_max_f32 v%d, v%d, v%d' % (vMX, vMX, t2))
            for sw in ('v_permlane16_swap_b32', 'v_permlane32_swap_b32'):
                a('v_mov_b32 v%d, v%d' % (t2, vMX))
                a('%s v%d, v%d' % (sw, vMX, t2))
                a('v_max_f32 v%d, v%d, v%d' % (vMX, vMX, t2))
            a('v_mul_f32 v%d, s%d, v%d' % (vMX, sC, vMX))
            for i in range(8):
                a('v_fma_f32 v%d, v%d, s%d, -v%d' % (vS + i, vS + i, sC, vMX))
                if i >= 1: a('v_exp_f32 v%d, v%d' % (vS + i - 1, vS + i - 1))
            a('v_exp_f32 v%d, v%d' % (vS + 7, vS + 7))
            for i in range(4): a('v_cvt_pk_bf16_f32 v%d, v%d, v%d' % (vP + i, vS + 2 * i, vS + 2 * i + 1))
            pk_add(a, vS, vS, vS + 2)
            a('v_mfma_f32_16x16x32_bf16 %s, %s, %s, 0' % (vr(vO, 4), vr(vVX, 4), vr(vP, 4)))
            pk_add(a, vS + 4, vS + 4, vS + 6)
            a('v_mfma_f32_16x16x32_bf16 %s, %s, %s, 0' % (vr(vO + 4, 4), vr(vVX + 4, 4), vr(vP, 4)))
            pk_add(a, vS, vS, vS + 4)
            a('v_add_f32 v%d, v%d, v%d' % (vSX, vS, vS + 1))
            for sw in ('v_permlane16_swap_b32', 'v_permlane32_swap_b32'):
                a('v_mov_b32 v%d, v%d' % (t2, vSX))
                a('%s v%d, v%d' % (sw, vSX, t2))
                a('v_add_f32 v%d, v%d, v%d' % (vSX, vSX, t2))
    ppoll(a, 8, qkl, lambda n: range(vSET + 4 * n, vSET + 4 * n + 4), qkc, issued=True)
    m = vT; al = vT + 1
    a('v_max3_f32 v%d, v%d, v%d, v%d' % (m, vS + 8, vS + 9, vS + 10))
    a('v_max_f32 v%d, v%d, v%d' % (m, m, vS + 11))
    a('v_mov_b32 v%d, v%d' % (t2, m))
    a('v_permlane16_swap_b32 v%d, v%d' % (m, t2))
    a('v_max_f32 v%d, v%d, v%d' % (m, m, t2))
    a('v_mul_f32 v%d, s%d, v%d' % (m, sC, m))
    a('v_max_f32 v%d, v%d, v%d' % (m, m, vMX))
    for i in range(4): a('v_fma_f32 v%d, v%d, s%d, -v%d' % (vS + 8 + i, vS + 8 + i, sC, m))
    a('v_sub_f32 v%d, v%d, v%d' % (al, vMX, m))
    for i in range(4): a('v_exp_f32 v%d, v%d' % (vS + 8 + i, vS + 8 + i))
    a('v_exp_f32 v%d, v%d' % (al, al))
    a('v_cvt_pk_bf16_f32 v%d, v%d, v%d' % (vP + 4, vS + 8, vS + 9))
    a('v_cvt_pk_bf16_f32 v%d, v%d, v%d' % (vP + 5, vS + 10, vS + 11))
    a('v_and_b32 v%d, v%d, v%d' % (vP + 6, vP + 4, vMLO))
    a('v_and_b32 v%d, v%d, v%d' % (vP + 7, vP + 5, vMLO))
    a('v_and_b32 v%d, v%d, v%d' % (vP + 8, vP + 4, vMHI))
    a('v_and_b32 v%d, v%d, v%d' % (vP + 9, vP + 5, vMHI))
    a('v_mfma_f32_16x16x16_bf16 %s, %s, %s, 0' % (vr(vS, 4), vr(vVZ, 2), vr(vP + 6, 2)))
    pk_add(a, vS + 8, vS + 8, vS + 10)
    a('v_mfma_f32_16x16x16_bf16 %s, %s, %s, 0' % (vr(vS + 4, 4), vr(vVZ, 2), vr(vP + 8, 2)))
    a('v_add_f32 v%d, v%d, v%d' % (m, vS + 8, vS + 9))
    a('v_mov_b32 v%d, v%d' % (t2, m))
    a('v_permlane16_swap_b32 v%d, v%d' % (m, t2))
    a('v_add_f32 v%d, v%d, v%d' % (m, m, t2))
    a('v_fma_f32 v%d, v%d, v%d, v%d' % (m, vSX, al, m))
    a('v_rcp_f32 v%d, v%d' % (t2, m))
    a('v_mul_f32 v%d, v%d, v%d' % (m, al, t2))
    a('v_mov_b32 v%d, v%d' % (t3, t2))
    a('v_mov_b32 v%d, v%d' % (al, m))
    for i in range(4):
        a('v_pk_mul_f32 v[%d:%d], v[%d:%d], v[%d:%d]' % (vO + 2 * i, vO + 2 * i + 1, vO + 2 * i, vO + 2 * i + 1, m, al))
    for i in range(4):
        a('v_pk_fma_f32 v[%d:%d], v[%d:%d], v[%d:%d], v[%d:%d]' % (vO + 2 * i, vO + 2 * i + 1, vS + 2 * i, vS + 2 * i + 1, t2, t3, vO + 2 * i, vO + 2 * i + 1))
    for i in range(4): a('v_cvt_pk_bf16_f32 v%d, v%d, v%d' % (vO + i, vO + 2 * i, vO + 2 * i + 1))
    for i in range(4): a('v_min_u32 v%d, -2, v%d' % (vO + i, vO + i))
    st(a, vO, 4, vDup, sA2)
    st(a, vSENT, 2, vL8, sA3)

def wave_loop(a, w, cfg):
    Lloop = 'r_loop_w%d' % w
    Lend = 'r_end_w%d' % w
    g = cfg.get
    a('s_lshl_b32 s%d, s%d, 16' % (sT0, sRX))
    a('s_add_u32 s%d, s%d, 0x%x' % (sMXR, sT0, MX_OFF + w * 4096))
    a('s_lshl_b32 s%d, s%d, 9' % (sT1, sI))
    a('s_add_u32 s%d, s%d, s%d' % (sT2, sT0, sT1))
    a('s_add_u32 s%d, s%d, 0x%x' % (sMXW, sT2, MX_OFF))
    a('s_add_u32 s%d, s%d, 0x%x' % (sOXR, sT0, OX_OFF + w * 4096))
    a('s_add_u32 s%d, s%d, 0x%x' % (sOXW, sT2, OX_OFF))
    a('s_lshl_b32 s%d, s%d, 17' % (sT0, sRX))
    a('s_lshr_b32 s%d, s%d, 2' % (sT1, sI))
    a('s_lshl_b32 s%d, s%d, 12' % (sT1, sT1))
    a('s_add_u32 s%d, s%d, s%d' % (sT0, sT0, sT1))
    a('s_add_u32 s%d, s%d, 0x%x' % (sQKR, sT0, QKX_OFF))
    a('s_lshl_b32 s%d, s%d, 9' % (sT1, sJ))
    a('s_add_u32 s%d, s%d, s%d' % (sQKW, sQKR, sT1))
    if w == 1: a('s_add_u32 s%d, s%d, 2048' % (sQKW, sQKW))
    a('s_lshl_b32 s%d, s%d, 16' % (sT0, sI))
    a('s_add_u32 s%d, s%d, 0x%x' % (sPXR, sT0, PX_OFF))
    if w == 0:
        a('s_lshl_b32 s%d, s%d, 10' % (sT1, sRX))
        a('s_add_u32 s%d, s%d, s%d' % (sPXR, sPXR, sT1))
    a('s_add_u32 s%d, s%d, 0x%x' % (sPX1, sPXR, 2 * MB))
    a('v_add_u32 v%d, 0x1000, v%d' % (vL16B, vL16))
    a('s_lshl_b32 s%d, s%d, 11' % (sT0, sH))
    a('s_lshl_b32 s%d, s%d, 9' % (sT1, sJ))
    a('s_add_u32 s%d, s%d, s%d' % (sT0, sT0, sT1))
    a('s_add_u32 s%d, s%d, 0x%x' % (sARC, sT0, KM_OFF if w == 1 else VM_OFF))
    a('s_lshl_b32 s%d, s%d, 13' % (sT0, sH))
    a('s_add_u32 s%d, s%d, 0x%x' % (sKF, sT0, KF_OFF))
    a('s_lshl_b32 s%d, s%d, 11' % (sT1, sJ))
    a('s_add_u32 s%d, s%d, s%d' % (sT0, sT0, sT1))
    a('s_add_u32 s%d, s%d, 0x%x' % (sVF, sT0, VF_OFF))
    a('s_mov_b32 s%d, 0x%x' % (sC, cfg['cbits']))
    a('s_mov_b32 s%d, 0x7fffffff' % sP0)
    a('s_mov_b32 s%d, 0x7fffffff' % sP1)
    a('s_mov_b32 s%d, 0x7fffffff' % sP2)
    a('s_mov_b32 s%d, 0x7fffffff' % sP3)
    for slot in range(4):
        if w == 0:
            a('s_add_u32 s%d, s%d, 0x%x' % (sT0, sQKW, slot * 32768)); st(a, vSENT, 2, vL8, sT0)
            a('s_add_u32 s%d, s%d, 0x%x' % (sT0, sQKW, slot * 32768 + 2048)); st(a, vSENT, 2, vL8, sT0)
            for reg in range(2 if g('xcopy', 1) else 1):
                for q4 in (range(4) if g('xcopy', 1) else (0, 2)):
                    a('s_add_u32 s%d, s%d, 0x%x' % (sT0, sPXR, reg * 2 * MB + slot * 16384 + q4 * 4096)); st(a, vSENT, 4, vL16, sT0, True)
            a('s_add_u32 s%d, s%d, 0x%x' % (sT0, sMXW, slot * 16384)); st(a, vSENT, 2, vL8, sT0)
            a('s_add_u32 s%d, s%d, 0x%x' % (sT0, sOXW, slot * 16384)); st(a, vSENT, 2, vL8, sT0)
    fused = g('fused', 0)
    if w == 3 and not fused:
        prefetch_kv(a)
    if w == 0 and fused:
        a('s_lshl_b32 s%d, s%d, 8' % (sT0, sH))
        a('s_lshl_b32 s%d, s%d, 2' % (sT1, sJ))
        a('s_add_u32 s%d, s%d, s%d' % (sT0, sT0, sT1))
        a('s_add_u32 s%d, s%d, 0x%x' % (sARC, sT0, PROG_OFF))
        publish_prog(a, None, 0)
    if w in (1, 2):
        xa = w - 1
        a('v_add_u32 v%d, %d, v%d' % (vT, 64 * xa, vL))
        a('v_lshlrev_b32 v%d, 3, v%d' % (vXA, vT))
        a('v_add_u32 v%d, 0x1000, v%d' % (vXAB, vXA))
        a('v_lshrrev_b32 v%d, 1, v%d' % (vT + 1, vT))
        a('v_and_b32 v%d, 7, v%d' % (vT + 2, vT + 1))
        a('v_lshrrev_b32 v%d, 4, v%d' % (vT + 3, vT + 1))
        a('v_lshl_add_u32 v%d, v%d, 3, v%d' % (vXM, vT + 3, vT + 2))
        a('v_lshlrev_b32 v%d, 4, v%d' % (vXM, vXM))
        a('v_bfe_u32 v%d, v%d, 3, 1' % (vT + 3, vT + 1))
        a('v_lshl_add_u32 v%d, v%d, 3, v%d' % (vXM, vT + 3, vXM))
        a('v_and_b32 v%d, 1, v%d' % (vT + 3, vL))
        a('v_lshl_add_u32 v%d, v%d, 2, v%d' % (vXM, vT + 3, vXM))
        a('v_lshrrev_b32 v%d, 3, v%d' % (vT + 1, vT + 1))
        a('v_lshlrev_b32 v%d, 3, v%d' % (vT + 1, vT + 1))
        a('v_lshl_add_u32 v%d, v%d, 2, v%d' % (vT + 1, vT + 3, vT + 1))
        a('v_lshl_add_u32 v%d, v%d, 11, v%d' % (vT, vT + 2, vT + 1))
        a('s_lshl_b32 s%d, s%d, 6' % (sT0, sI))
        a('buffer_load_dword v%d, v%d, s[%d:%d], s%d offen' % (vXR, vT, sM0, sM0 + 3, sT0))
        a('v_mov_b32 v%d, 0' % vZERO)
        a('v_mov_b32 v%d, 0' % (vZERO + 1))
    def arr():
        if w == 0:
            a('s_waitcnt vmcnt(16)')
            dbg_arrive(a, sDBG, DB_INIT2 if g('safe') else DB_INIT, vR)
    if g('st3'): rstamp(a, 0)
    load_weights(a, hook=arr)
    if g('st3'): rstamp(a, 4)
    transpose_weights(a, st=g('st3'))
    if g('st3'): rstamp(a, 2)
    a('s_barrier')
    if fused:
        init_wait(a, sDBG, cfg, vT, sSPIN, sT0)
    elif w == 0:
        dbg_wait(a, sDBG, DB_INIT, 128, vT, sSPIN)
    a('s_mov_b32 s%d, 0' % sGP)
    a('s_barrier')
    a('s_mov_b32 s%d, 0' % sSTEP)
    if g('stamp'): a('s_memrealtime s[70:71]')
    if w == 3: dbgt(a, cfg, 9)
    if g('prof'):
        for k in range(16): a('s_mov_b32 s%d, 0' % (80 + k))
        a('s_memtime s[76:77]')
        a('s_waitcnt lgkmcnt(0)')
        a('s_mov_b32 s79, s76')
    a.label(Lloop)
    a('s_and_b32 s%d, s%d, 3' % (sSLOT, sSTEP))
    a('s_add_u32 s%d, s%d, 2' % (sSLOT2, sSTEP))
    a('s_and_b32 s%d, s%d, 3' % (sSLOT2, sSLOT2))
    slot_off(a, sA0, sSLOT, 14, sMXR)
    slot_off(a, sA1, sSLOT, 14, sOXR)
    if w in (1, 2):
        Lpub = a.newlabel('apub'); Lns = a.newlabel('nosw')
        slot_off(a, sA2, sSLOT, 14, sMXW)
        slot_off(a, sA3, sSLOT2, 14, sMXW)
        a('s_cmp_eq_u32 s%d, 0' % sSTEP)
        a.branch('s_cbranch_scc1 %s' % Lpub)
        a('s_cmp_lg_u32 s%d, %d' % (sSTEP, SWITCH))
        a.branch('s_cbranch_scc1 %s' % Lns)
        read_choice(a, cfg, None)
        a.label(Lns)
        for reg, base in ((0, sPXR), (1, sPX1)):
            slot_off(a, sT0, sSLOT, 14, base)
            a('s_add_u32 s%d, s%d, s%d' % (sXB + 2 * reg, sWS, sT0))
            a('s_addc_u32 s%d, s%d, 0' % (sXB + 2 * reg + 1, sWS + 1))
        def xl(k):
            cp = k if g('xcopy', 1) else 0
            return ['global_load_dwordx2 v[%d:%d], v%d, s[%d:%d] offset:%d sc1' % (vX + 8 * k + 2 * p, vX + 8 * k + 2 * p + 1, vXAB if cp & 1 else vXA, sXB + 2 * (cp >> 1), sXB + 2 * (cp >> 1) + 1, p * 1024) for p in range(4)]
        def xc(k):
            b = vX + 8 * k
            pk_add(a, b, b, b + 2); pk_add(a, b + 4, b + 4, b + 6)
            pk_add(a, b, b, b + 4)
            a('v_cvt_pk_bf16_f32 v%d, v%d, v%d' % (vXR, b, b + 1))
        spoll(a, g('ns_x', 4), xl, lambda k: range(vX + 8 * k, vX + 8 * k + 8), xc, g('dly_x', 0), g('gap_x', 8))
        mark(a, cfg, 0)
        a.label(Lpub)
        a('v_min_u32 v%d, -2, v%d' % (vXR, vXR))
        st(a, vXR, 1, vXM, sA2)
        st(a, vSENT, 1, vXM, sA3)
    if w in (0, 1):
        slot_off(a, sA2, sSLOT, 15, sQKW)
        slot_off(a, sA3, sSLOT2, 15, sQKW)
    if w == 3:
        slot_off(a, sA2, sSLOT, 14, sOXW)
        slot_off(a, sA3, sSLOT2, 14, sOXW)
        slot_off(a, sT2, sSLOT, 15, sQKR)
    mark(a, cfg, 1)
    a('s_barrier')
    mark(a, cfg, 2)
    mb = vM
    if g('eq', 0):
        phase_bc_eq(a, w, cfg, Lend)
    else:
        phase_bc_old(a, w, cfg, Lend)
    if w == 0:
        if fused: publish_prog(a, sSTEP, 0)
        Lns = a.newlabel('nosw')
        a('s_cmp_lg_u32 s%d, %d' % (sSTEP, SWITCH - 1))
        a.branch('s_cbranch_scc1 %s' % Lns)
        read_choice(a, cfg, None)
        a.label(Lns)
        a('s_add_u32 s%d, s%d, 1' % (sT2, sSTEP))
        a('s_and_b32 s%d, s%d, 3' % (sT2, sT2))
        slot_off(a, sA2, sT2, 14, sPXR)
        slot_off(a, sA3, sT2, 14, sPX1)
        a('s_add_u32 s%d, s%d, 3' % (sT2, sSTEP))
        a('s_and_b32 s%d, s%d, 3' % (sT2, sT2))
        slot_off(a, sXB, sT2, 14, sPXR)
        slot_off(a, sXB + 1, sT2, 14, sPX1)
        K = g('ns_x', 4) if g('xcopy', 1) else 1
        for cp in range(K): st(a, vSENT, 4, vL16B if cp & 1 else vL16, sXB + (cp >> 1), True)
    mark(a, cfg, 9)
    a('s_barrier')
    mark(a, cfg, 10)
    def ol(u): return ['buffer_load_dwordx4 v[%d:%d], v%d, s[%d:%d], s%d offen offset:%d sc1' % (mb + 4 * u, mb + 4 * u + 3, vOD, sWS, sWS + 3, sA1, u * 1024)]
    def oc(u):
        if u == 3: mark(a, cfg, 11)
        mark(a, cfg, 104 + u)
        for tau in range(2):
            for b in range(2):
                c = '0' if u == 0 else vr(acc(tau, b), 4)
                a('v_mfma_f32_16x16x32_bf16 %s, %s, %s, %s' % (vr(acc(tau, b), 4), ar(wo_frag(tau, u, b), 4), vr(mb + 4 * u, 4), c))
    ppoll(a, 4, ol, lambda u: range(mb + 4 * u, mb + 4 * u + 4), oc, g('dly_o', 0))
    for i in range(4):
        a('v_add_f32_dpp v%d, v%d, v%d row_ror:8 row_mask:0xf bank_mask:0x3' % (vZ + 12 + i, acc(0, 1) + i, acc(0, 0) + i))
    for i in range(4):
        a('v_add_f32_dpp v%d, v%d, v%d row_ror:8 row_mask:0xf bank_mask:0xc' % (vZ + 12 + i, acc(1, 0) + i, acc(1, 1) + i))
    if w != 0: a('ds_write_b128 v%d, v[%d:%d] offset:%d' % (vL16, vZ + 12, vZ + 15, LDS_D + w * 1024))
    a('s_waitcnt lgkmcnt(0)')
    mark(a, cfg, 12)
    a('s_barrier')
    mark(a, cfg, 13)
    if w == 0:
        z = vZ + 12
        reduce3(a, z, LDS_D, 0)
        for i in range(4): a('v_min_u32 v%d, -2, v%d' % (z + i, z + i))
        K = g('ns_x', 4) if g('xcopy', 1) else 1
        for cp in range(K): st(a, z, 4, vL16B if cp & 1 else vL16, sA2 + (cp >> 1), True)
    if w == 0:
        Lnp = a.newlabel('noprobe'); Lpb = a.newlabel('pubch')
        a('s_or_b32 s%d, s%d, s%d' % (sT0, sRX, sI))
        a('s_cmp_lg_u32 s%d, 0' % sT0)
        a.branch('s_cbranch_scc1 %s' % Lnp)
        a('s_cmp_gt_u32 s%d, 3' % sSTEP)
        a.branch('s_cbranch_scc1 %s' % Lnp)
        a('s_cmp_eq_u32 s%d, 3' % sSTEP)
        a.branch('s_cbranch_scc1 %s' % Lpb)
        a('s_waitcnt vmcnt(0)')
        a('s_sleep 2')
        a('s_mov_b32 s%d, s%d' % (sA2, sXB))
        for n in range(2):
            a('s_add_u32 s%d, s%d, %d' % (sT1, sSTEP, n))
            a('s_and_b32 s%d, s%d, 1' % (sT1, sT1))
            a('s_lshl_b32 s%d, s%d, 13' % (sT0, sT1))
            a('s_add_u32 s%d, s%d, s%d' % (sT0, sT0, sA2))
            a('s_memtime s[96:97]')
            a('s_waitcnt lgkmcnt(0)')
            st(a, vSENT, 4, vL16, sT0, True)
            a('s_waitcnt vmcnt(0)')
            a('s_memtime s[98:99]')
            a('s_waitcnt lgkmcnt(0)')
            a('s_sub_u32 s%d, s98, s96' % sT3)
            for cnd, reg in enumerate((sP0, sP1, sP2, sP3)):
                a('s_min_u32 s%d, s%d, s%d' % (sT0, reg, sT3))
                a('s_cmp_eq_u32 s%d, %d' % (sT1, cnd))
                a('s_cselect_b32 s%d, s%d, s%d' % (reg, sT0, reg))
        a.branch('s_branch %s' % Lnp)
        a.label(Lpb)
        a('s_cmp_lt_u32 s%d, s%d' % (sP1, sP0))
        a('s_cselect_b32 s%d, 5, 4' % sT0)
        a('s_cmp_lt_u32 s%d, s%d' % (sP3, sP2))
        a('s_cselect_b32 s%d, 2, 0' % sT1)
        a('s_or_b32 s%d, s%d, s%d' % (sT0, sT0, sT1))
        a('v_mov_b32 v%d, s%d' % (vT, sT0))
        a('v_mov_b32 v%d, 132' % (vT + 1))
        a('s_mov_b64 exec, 1')
        a('buffer_store_dword v%d, v%d, s[%d:%d], 0 offen sc1' % (vT, vT + 1, sDBG, sDBG + 3))
        a('s_mov_b64 exec, -1')
        a.label(Lnp)
    if w == 3:
        for n in range(10):
            a('ds_read_b128 v[%d:%d], v%d offset:%d' % (vKX + 4 * n, vKX + 4 * n + 3, vL16, LDS_KV + n * 1024))
    if g('tl') and w == 3:
        Lt = a.newlabel('tl')
        a('s_or_b32 s%d, s%d, s%d' % (sT0, sRX, sI))
        a('s_cmp_lg_u32 s%d, 0' % sT0)
        a.branch('s_cbranch_scc1 %s' % Lt)
        a('s_memrealtime s[96:97]')
        a('s_memtime s[98:99]')
        a('s_waitcnt lgkmcnt(0)')
        a('v_mov_b32 v%d, s96' % vT)
        a('v_mov_b32 v%d, s98' % (vT + 1))
        a('v_mov_b32 v%d, 0' % (vT + 2))
        a('s_lshl_b32 s%d, s%d, 3' % (sT0, sSTEP))
        a('s_add_u32 s%d, s%d, 0x%x' % (sT0, sT0, MISC_OFF + 196608))
        a('s_mov_b64 exec, 1')
        a('buffer_store_dwordx2 v[%d:%d], v%d, s[%d:%d], s%d offen' % (vT, vT + 1, vT + 2, sWS, sWS + 3, sT0))
        a('s_mov_b64 exec, -1')
        a.label(Lt)
    a('s_add_u32 s%d, s%d, 1' % (sSTEP, sSTEP))
    mark(a, cfg, 14)
    a.branch('s_branch %s' % Lloop)
    a.label(Lend)
    if w == 3: dbgt(a, cfg, 10)
    if fused:
        a('s_waitcnt vmcnt(0)')
        a('s_barrier')
        if w == 0: publish_prog(a, None, 64)
    if g('prof'):
        a('s_mov_b32 s95, s%d' % sSPIN)
        a('s_lshl_b32 s%d, s%d, 5' % (sT0, sRX))
        a('s_add_u32 s%d, s%d, s%d' % (sT0, sT0, sI))
        a('s_lshl_b32 s%d, s%d, 8' % (sT0, sT0))
        a('s_add_u32 s%d, s%d, 0x%x' % (sT0, sT0, MISC_OFF + 4096 + w * 64))
        a('v_mov_b32 v%d, 0' % (vT + 2))
        a('s_mov_b64 exec, 1')
        for k in range(16):
            a('v_mov_b32 v%d, s%d' % (vT, 80 + k))
            a('buffer_store_dword v%d, v%d, s[%d:%d], s%d offen offset:%d' % (vT, vT + 2, sWS, sWS + 3, sT0, 4 * k))
        a('s_mov_b64 exec, -1')
    if g('st3') and w == 0:
        a('s_lshl_b32 s%d, s%d, 5' % (sT0, sRX))
        a('s_add_u32 s%d, s%d, s%d' % (sT0, sT0, sI))
        a('s_lshl_b32 s%d, s%d, 5' % (sT0, sT0))
        a('s_add_u32 s%d, s%d, 0x%x' % (sT0, sT0, MISC_OFF + 262144))
        a('v_mov_b32 v%d, 0' % (vT + 2))
        a('s_mov_b64 exec, 1')
        for k in range(5):
            a('v_mov_b32 v%d, s%d' % (vT, 80 + 2 * k))
            a('buffer_store_dword v%d, v%d, s[%d:%d], s%d offen offset:%d' % (vT, vT + 2, sWS, sWS + 3, sT0, 4 * k))
        a('s_mov_b64 exec, -1')
    if g('stamp') and w == 0:
        a('s_memrealtime s[72:73]')
        a('s_waitcnt lgkmcnt(0)')
        a('s_sub_u32 s72, s72, s70')
        a('v_mov_b32 v%d, s72' % vT)
        a('v_mov_b32 v%d, s70' % (vT + 1))
        a('s_lshl_b32 s%d, s%d, 5' % (sT0, sRX))
        a('s_add_u32 s%d, s%d, s%d' % (sT0, sT0, sI))
        a('s_lshl_b32 s%d, s%d, 3' % (sT0, sT0))
        a('s_add_u32 s%d, s%d, 0x%x' % (sT0, sT0, MISC_OFF))
        a('v_mov_b32 v%d, 0' % (vT + 2))
        a('s_mov_b64 exec, 1')
        a('buffer_store_dwordx2 v[%d:%d], v%d, s[%d:%d], s%d offen' % (vT, vT + 1, vT + 2, sWS, sWS + 3, sT0))
    a('s_endpgm')

def archive_v(a):
    slot_off(a, sT0, sSTEP, 16, sARC)
    st(a, vVZ, 2, vL8, sT0, True)

def publish_prog(a, sreg, add):
    if sreg is None: a('v_mov_b32 v%d, %d' % (vT, add))
    else:
        a('s_add_u32 s%d, s%d, %d' % (sT0, sreg, add))
        a('v_mov_b32 v%d, s%d' % (vT, sT0))
    a('v_mov_b32 v%d, 0' % (vT + 1))
    a('s_mov_b64 exec, 1')
    a('buffer_store_dword v%d, v%d, s[%d:%d], s%d offen sc1' % (vT, vT + 1, sWS, sWS + 3, sARC))
    a('s_mov_b64 exec, -1')

def ensure_gp(a, sreg, add):
    L = a.newlabel('gp'); D = a.newlabel('gpd')
    if sreg is None: a('s_mov_b32 s%d, %d' % (sT2, add))
    else: a('s_add_u32 s%d, s%d, %d' % (sT2, sreg, add))
    a('s_min_u32 s%d, s%d, 64' % (sT2, sT2))
    a('s_lshl_b32 s%d, s%d, 8' % (sT1, sH))
    a('s_add_u32 s%d, s%d, 0x%x' % (sT1, sT1, GP_OFF))
    a('v_mov_b32 v%d, 0' % vT)
    a.label(L)
    a('s_cmp_ge_u32 s%d, s%d' % (sGP, sT2))
    a('s_cbranch_scc1 %s' % D)
    a('buffer_load_dwordx4 v[%d:%d], v%d, s[%d:%d], s%d offen sc1' % (vR, vR + 3, vT, sWS, sWS + 3, sT1))
    a('s_waitcnt vmcnt(0)')
    a('v_min3_u32 v%d, v%d, v%d, v%d' % (vR, vR, vR + 1, vR + 2))
    a('v_min_u32 v%d, v%d, v%d' % (vR, vR, vR + 3))
    a('v_readfirstlane_b32 s%d, v%d' % (sGP, vR))
    a('s_add_u32 s%d, s%d, 1' % (sSPIN, sSPIN))
    a('s_cmp_lt_u32 s%d, 0x%x' % (sSPIN, SPIN_LIMIT))
    a('s_cbranch_scc1 %s' % L)
    a.label(D)

def prefetch_dma(a, sc1=False):
    a('s_add_u32 s%d, s%d, 4096' % (sT0, sKF))
    for grp, (so, n) in enumerate(((sKF, 4), (sT0, 4), (sVF, 2))):
        a('s_mov_b32 m0, %d' % (LDS_KV + grp * 4096))
        for c in range(n):
            a('buffer_load_dwordx4 v%d, s[%d:%d], s%d offen offset:%d%s lds' % (vL16, sWS, sWS + 3, so, c * 1024, ' sc1' if sc1 else ''))

def prefetch_kv(a, sc1=False):
    a('s_add_u32 s%d, s%d, 4096' % (sT0, sKF))
    for tt in range(2):
        for c in range(4):
            r = vKX + 16 * tt + 4 * c
            a('buffer_load_dwordx4 v[%d:%d], v%d, s[%d:%d], s%d offen offset:%d%s' % (r, r + 3, vL16, sWS, sWS + 3, sKF if tt == 0 else sT0, c * 1024, ' sc1' if sc1 else ''))
    for e in range(2):
        a('buffer_load_dwordx4 v[%d:%d], v%d, s[%d:%d], s%d offen offset:%d%s' % (vVX + 4 * e, vVX + 4 * e + 3, vL16, sWS, sWS + 3, sVF, e * 1024, ' sc1' if sc1 else ''))

def r_body(a, cfg):
    a('s_lshr_b32 s%d, s%d, 2' % (sH, sI))
    a('s_lshl_b32 s%d, s%d, 3' % (sT0, sRX))
    a('s_add_u32 s%d, s%d, s%d' % (sH, sH, sT0))
    a('s_and_b32 s%d, s%d, 3' % (sJ, sI))
    for w in range(1, 4):
        a('s_cmp_eq_u32 s%d, %d' % (sW, w))
        a.branch('s_cbranch_scc1 r_wave%d' % w)
    for w in range(4):
        a.label('r_wave%d' % w)
        wave_loop(a, w, cfg)

def gen_r_kernel(name, cfg):
    a = Asm()
    a.raw(kernel_header(name))
    Lexit = 'r_exit'
    a('s_cmp_ge_u32 s2, 256')
    a('s_cbranch_scc1 %s' % Lexit)
    build_srds(a, dict(ws=sWS, wq=sWQ, wk=sWK, wv=sWV, wo=sWO, mem0=sM0, dbg=sDBG))
    a('s_getreg_b32 s%d, hwreg(HW_REG_XCC_ID)' % sRX)
    a('s_and_b32 s%d, s%d, 7' % (sRX, sRX))
    a('s_cmp_ge_u32 s%d, 4' % sRX)
    a('s_cbranch_scc1 %s' % Lexit)
    a('s_mov_b32 s%d, 0' % sSPIN)
    lane_consts(a)
    a('v_lshrrev_b32 v%d, 6, v0' % vT)
    a('v_readfirstlane_b32 s%d, v%d' % (sW, vT))
    Lt = a.newlabel('tk')
    a('s_cmp_lg_u32 s%d, 0' % sW)
    a.branch('s_cbranch_scc1 %s' % Lt)
    a('v_mov_b32 v%d, 1' % vT)
    a('s_lshl_b32 s%d, s%d, 2' % (sT0, sRX))
    a('v_mov_b32 v%d, s%d' % (vT + 1, sT0))
    a('v_mov_b32 v%d, %d' % (vT + 2, LDS_TK))
    a('s_mov_b64 exec, 1')
    a('buffer_atomic_add v%d, v%d, s[%d:%d], 0 offen sc0 sc1' % (vT, vT + 1, sDBG, sDBG + 3))
    a('s_waitcnt vmcnt(0)')
    a('ds_write_b32 v%d, v%d' % (vT + 2, vT))
    a('s_waitcnt lgkmcnt(0)')
    a('s_mov_b64 exec, -1')
    a.label(Lt)
    a('s_barrier')
    a('v_mov_b32 v%d, %d' % (vT + 2, LDS_TK))
    a('ds_read_b32 v%d, v%d' % (vT, vT + 2))
    a('s_waitcnt lgkmcnt(0)')
    a('v_readfirstlane_b32 s%d, v%d' % (sI, vT))
    a('s_cmp_ge_u32 s%d, 32' % sI)
    a.branch('s_cbranch_scc1 %s' % Lexit)
    r_body(a, cfg)
    a.label(Lexit)
    a('s_endpgm')
    return a.text()
```

```python
from asmlib import *

MB = 1 << 20
QF_OFF = 0
KF_OFF = 16 * MB
VF_OFF = 32 * MB
OF_OFF = 48 * MB
KM_OFF = 64 * MB
VM_OFF = 68 * MB
MX_OFF = 72 * MB
QKX_OFF = MX_OFF + 256 * 1024
OX_OFF = QKX_OFF + 512 * 1024
PX_OFF = 74 * MB
MISC_OFF = 78 * MB
XF_OFF = 96 * MB
GL_OFF = 84 * MB
RR_OFF = GL_OFF + 8192
HB_OFF = RR_OFF + 8192
YP_OFF = HB_OFF + 32768
IDX_OFF = YP_OFF + 65536
WS_BYTES = 256 * MB

KA = dict(x=0, mem0=8, wq=16, wk=24, wv=32, wo=40, seg=48, bx=56, wr=64, wg=72, wu=80, wd=88, gw=96, out=104, dbg=112, ws=120)
SZ = dict(x=2048*1024*2, mem0=8*1024*2, wq=1024*4096*2, wk=1024*4096*2, wv=1024*4096*2, wo=4096*1024*2, wr=2048, wg=1024*3584*2,
          wu=1024*3584*2, wd=3584*1024*2, gw=2048, out=2048*1024*2, dbg=256, ws=WS_BYTES)

def build_srds(a, srds):
    for n, b in srds.items():
        a('s_load_dwordx2 s[%d:%d], s[0:1], %d' % (b, b + 1, KA[n]))
    a('s_waitcnt lgkmcnt(0)')
    for n, b in srds.items():
        a('s_and_b32 s%d, s%d, 0xffff' % (b + 1, b + 1))
        a('s_mov_b32 s%d, 0x%x' % (b + 2, SZ[n]))
        a('s_mov_b32 s%d, 0x20000' % (b + 3))

def kernel_header(name):
    return '''.globl %s
.p2align 8
.type %s,@function
%s:
''' % (name, name, name)

def kernel_desc(name, vgpr, accum, sgpr=102):
    return '''.p2align 6
.amdhsa_kernel %s
  .amdhsa_next_free_vgpr %d
  .amdhsa_next_free_sgpr %d
  .amdhsa_accum_offset %d
  .amdhsa_group_segment_fixed_size 0
  .amdhsa_kernarg_size 128
  .amdhsa_user_sgpr_count 2
  .amdhsa_user_sgpr_kernarg_segment_ptr 1
  .amdhsa_system_sgpr_workgroup_id_x 1
.end_amdhsa_kernel
''' % (name, vgpr, sgpr, accum)

FLG_OFF = 85 * MB
PROG_OFF = FLG_OFF
GP_OFF = FLG_OFF + 8192
AP_OFF = FLG_OFF + 16384
WP_OFF = FLG_OFF + 20480
PW_OFF = 112 * MB
DB_CHOICE, DB_INIT, DB_PRE, DB_M1, DB_M2, DB_RR = 132, 136, 64, 144, 148, 152
DB_BAD, DB_GT, DB_INIT2, DB_PRE2 = 140, 156, 160, 96
SPIN_LIMIT = 0x40000

def dbg_arrive(a, srd, off, vt):
    a('v_mov_b32 v%d, 1' % vt)
    a('v_mov_b32 v%d, %s' % (vt + 1, off))
    a('s_mov_b64 exec, 1')
    a('buffer_atomic_add v%d, v%d, s[%d:%d], 0 offen sc1' % (vt, vt + 1, srd, srd + 3))
    a('s_mov_b64 exec, -1')

def dbg_wait(a, srd, off, target, vt, sspin, sleep=0):
    L = a.newlabel('dw'); D = a.newlabel('dwd')
    a('v_mov_b32 v%d, %s' % (vt + 1, off))
    a.label(L)
    a('buffer_load_dword v%d, v%d, s[%d:%d], 0 offen sc1' % (vt, vt + 1, srd, srd + 3))
    a('s_waitcnt vmcnt(0)')
    a('v_cmp_gt_u32 vcc, %d, v%d' % (target, vt))
    a('s_cbranch_vccz %s' % D)
    if sleep: a('s_sleep %d' % sleep)
    a('s_add_u32 s%d, s%d, 1' % (sspin, sspin))
    a('s_cmp_lt_u32 s%d, 0x%x' % (sspin, SPIN_LIMIT))
    a('s_cbranch_scc1 %s' % L)
    a.label(D)

def dbg_wait_wg(a, srd, off, target, vt, sspin, swave, sleep=1):
    L = a.newlabel('dww')
    a('s_cmp_lg_u32 s%d, 0' % swave)
    a.branch('s_cbranch_scc1 %s' % L)
    dbg_wait(a, srd, off, target, vt, sspin, sleep)
    a.label(L)
    a('s_barrier')

def init_wait(a, srd, cfg, vt, sspin, stmp):
    safe = cfg.get('safe')
    off = DB_INIT2 if safe else DB_INIT
    L = a.newlabel('iw'); D = a.newlabel('iwd')
    a('v_mov_b32 v%d, %d' % (vt + 2, off))
    a.label(L)
    a('buffer_load_dwordx2 v[%d:%d], v%d, s[%d:%d], 0 offen sc1' % (vt, vt + 1, vt + 2, srd, srd + 3))
    a('s_waitcnt vmcnt(0)')
    a('v_cmp_gt_u32 vcc, 256, v%d' % vt)
    a('s_cbranch_vccz %s' % D)
    a('s_sleep 2')
    a('s_add_u32 s%d, s%d, 1' % (sspin, sspin))
    a('s_cmp_lt_u32 s%d, 0x%x' % (sspin, SPIN_LIMIT))
    a('s_cbranch_scc1 %s' % L)
    a.label(D)
    if not safe:
        a('v_readfirstlane_b32 s%d, v%d' % (stmp, vt + 1))
        a('s_cmp_lg_u32 s%d, %d' % (stmp, 12345 if cfg.get('forcesafe') else 0))
        a.branch('s_cbranch_scc1 SAFE_ENTRY')

def dbgt(a, cfg, word, inv=False):
    if not cfg.get('dbgt'): return
    a('s_memrealtime s[98:99]')
    a('s_waitcnt lgkmcnt(0)')
    if inv: a('s_not_b32 s98, s98')
    a('v_mov_b32 v252, s98')
    a('v_mov_b32 v253, %d' % (4 * word))
    a('s_mov_b64 exec, 1')
    a('buffer_atomic_umax v252, v253, s[32:35], 0 offen sc1')
    a('s_mov_b64 exec, -1')
```

```python
from common import *
import rrole as R, g1role as G1, prerole as P, g2role as G2, modrole as M

sGX, sGI, sGW, sGC = 92, 93, 94, 95
sNA, sNW, sAV, sAA, sSP = 88, 89, 54, 55, 44
sDBG = 32
sPREO = 91
sDID = 58
LDS_CTL = 98304

def gp_addr(a, dst):
    a('s_lshr_b32 s%d, s%d, 2' % (dst, sGC))
    a('s_lshl_b32 s%d, s%d, 8' % (dst, dst))
    a('s_and_b32 s%d, s%d, 3' % (R.sT3, sGC))
    a('s_lshl_b32 s%d, s%d, 2' % (R.sT3, R.sT3))
    a('s_add_u32 s%d, s%d, s%d' % (dst, dst, R.sT3))
    a('s_add_u32 s%d, s%d, 0x%x' % (dst, dst, GP_OFF))

def g_body(a, cfg):
    Ln = a.newlabel('gi')
    a('s_cmp_lg_u32 s%d, 0' % sGW)
    a.branch('s_cbranch_scc1 %s' % Ln)
    a('s_lshl_b32 s%d, s%d, 2' % (R.sT0, sGC))
    a('s_add_u32 s%d, s%d, 0x%x' % (R.sT2, R.sT0, AP_OFF))
    gp_addr(a, R.sT1)
    a('v_mov_b32 v12, 0')
    a('s_mov_b64 exec, 1')
    a('buffer_store_dword v12, v12, s[%d:%d], s%d offen sc1' % (R.sWS, R.sWS + 3, R.sT1))
    a('buffer_store_dword v12, v12, s[%d:%d], s%d offen sc1' % (R.sWS, R.sWS + 3, R.sT2))
    a('s_and_b32 s%d, s%d, 7' % (R.sT0, sGI))
    a('s_lshl_b32 s%d, s%d, 3' % (R.sT1, sGX))
    a('s_add_u32 s%d, s%d, s%d' % (R.sT0, R.sT0, R.sT1))
    a('s_lshl_b32 s%d, s%d, 7' % (R.sT0, R.sT0))
    a('s_lshr_b32 s%d, s%d, 3' % (R.sT1, sGI))
    a('s_lshl_b32 s%d, s%d, 2' % (R.sT1, R.sT1))
    a('s_add_u32 s%d, s%d, s%d' % (R.sT0, R.sT0, R.sT1))
    a('s_add_u32 s%d, s%d, 0x%x' % (R.sT0, R.sT0, WP_OFF))
    a('buffer_store_dword v12, v12, s[%d:%d], s%d offen sc1' % (R.sWS, R.sWS + 3, R.sT0))
    a('s_mov_b64 exec, -1')
    a('s_waitcnt vmcnt(0)')
    dbg_arrive(a, sDBG, DB_INIT2 if cfg.get('safe') else DB_INIT, 12)
    a.label(Ln)
    a('s_lshl_b32 s%d, s%d, 2' % (sPREO, sGX))
    a('s_add_u32 s%d, s%d, %d' % (sPREO, sPREO, DB_PRE2 if cfg.get('safe') else DB_PRE))
    P.sX, P.sGW, P.sWR = 24, 28, 36
    P.sW, P.sC = sGW, sGC
    build_srds(a, dict(x=P.sX, gw=P.sGW, wr=P.sWR))
    a('s_lshr_b32 s%d, s%d, 2' % (R.sH, sGC))
    a('s_and_b32 s%d, s%d, 3' % (R.sJ, sGC))
    a('s_mov_b32 s%d, s%d' % (R.sW, sGW))
    G1.XFL[0] = ' sc1'
    gp_addr(a, G1.sGPA)
    G1.fast_start(a, cfg)
    if cfg.get('st2'): stamp(a, cfg, 3)
    a('s_mov_b32 s%d, %d' % (G1.sSEG, G1.NPB))
    a('s_mov_b32 s%d, 64' % G1.sEND)
    for w in range(1, 4):
        a('s_cmp_eq_u32 s%d, %d' % (sGW, w))
        a.branch('s_cbranch_scc1 fg1_wave%d' % w)
    for w in range(4):
        a.label('fg1_wave%d' % w)
        G1.g1_wave(a, w, cfg, 'fg1')
        a.branch('s_branch fg1_join')
    G1.g1_side(a, cfg)
    a.label('fg1_join')
    dbgt(a, cfg, 11)
    if not cfg.get('st2'): stamp(a, cfg, 1)
    build_srds(a, dict(wo=G2.sWO, x=G2.sX, out=G2.sOUT))
    G2.sI, G2.sW = sGI, sGW
    G2.out_consts(a)
    G2.out_load_weights(a, 2)
    dbg_wait_wg(a, sDBG, DB_M2, 128, 8, sSP, sGW)
    Lg = a.newlabel('g65'); Lgd = a.newlabel('g65d')
    a('v_mov_b32 v8, 0')
    a('s_lshl_b32 s%d, s%d, 8' % (R.sT1, sGI))
    a('s_add_u32 s%d, s%d, 0x%x' % (R.sT1, R.sT1, GP_OFF))
    a.label(Lg)
    a('buffer_load_dwordx4 v[12:15], v8, s[%d:%d], s%d offen sc1' % (R.sWS, R.sWS + 3, R.sT1))
    a('s_waitcnt vmcnt(0)')
    a('v_min3_u32 v12, v12, v13, v14')
    a('v_min_u32 v12, v12, v15')
    a('v_cmp_gt_u32 vcc, 65, v12')
    a('s_cbranch_vccz %s' % Lgd)
    a('s_sleep 4')
    a('s_add_u32 s%d, s%d, 1' % (sSP, sSP))
    a('s_cmp_lt_u32 s%d, 0x%x' % (sSP, SPIN_LIMIT))
    a('s_cbranch_scc1 %s' % Lg)
    a.label(Lgd)
    a('s_mov_b32 s%d, 0x%x' % (R.sT0, IDX_OFF))
    a('buffer_load_dwordx2 v[10:11], v8, s[%d:%d], s%d offen sc1' % (R.sWS, R.sWS + 3, R.sT0))
    a('s_waitcnt vmcnt(0)')
    a('v_readfirstlane_b32 s%d, v10' % G2.sIDX0)
    a('v_readfirstlane_b32 s%d, v11' % G2.sIDX1)
    a('s_mov_b32 s%d, 0' % sNA)
    a('s_mov_b32 s%d, 0' % sNW)
    a('s_barrier')
    if not cfg.get('st2'): stamp(a, cfg, 3)
    if cfg.get('g2prof'):
        for k in range(8): a('s_mov_b32 s%d, 0' % (66 + k))
        a('s_memtime s[76:77]')
        a('s_waitcnt lgkmcnt(0)')
        a('s_mov_b32 s79, s76')
    a.label('g2_loop')
    a('s_mov_b32 s%d, 0' % sDID)
    Lc = a.newlabel('ctl')
    a('s_cmp_lg_u32 s%d, 0' % sGW)
    a.branch('s_cbranch_scc1 %s' % Lc)
    a('v_and_b32 v8, 31, v0')
    a('v_lshlrev_b32 v8, 2, v8')
    a('v_and_b32 v9, 3, v0')
    a('v_lshlrev_b32 v9, 2, v9')
    a('s_lshl_b32 s%d, s%d, 7' % (R.sT0, sGX))
    a('s_add_u32 s%d, s%d, 0x%x' % (R.sT0, R.sT0, AP_OFF))
    a('s_lshl_b32 s%d, s%d, 8' % (R.sT1, sGI))
    a('s_add_u32 s%d, s%d, 0x%x' % (R.sT1, R.sT1, PROG_OFF))
    a('buffer_load_dword v10, v8, s[%d:%d], s%d offen sc1' % (R.sWS, R.sWS + 3, R.sT0))
    a('buffer_load_dword v11, v9, s[%d:%d], s%d offen sc1' % (R.sWS, R.sWS + 3, R.sT1))
    a('s_waitcnt vmcnt(0)')
    for sh in (1, 2, 4, 8):
        a('v_min_u32_dpp v10, v10, v10 row_ror:%d row_mask:0xf bank_mask:0xf' % sh)
        if sh < 4: a('v_min_u32_dpp v11, v11, v11 row_ror:%d row_mask:0xf bank_mask:0xf' % sh)
    a('v_mov_b32 v12, v10')
    a('v_permlane16_swap_b32 v10, v12')
    a('v_min_u32 v10, v10, v12')
    a('v_mov_b32 v12, %d' % LDS_CTL)
    a('ds_write_b64 v12, v[10:11]')
    a('s_waitcnt lgkmcnt(0)')
    a.label(Lc)
    a('s_barrier')
    a('v_mov_b32 v12, %d' % LDS_CTL)
    a('ds_read_b64 v[10:11], v12')
    a('s_waitcnt lgkmcnt(0)')
    a('v_readfirstlane_b32 s%d, v10' % sAA)
    a('v_readfirstlane_b32 s%d, v11' % sAV)
    a('s_barrier')
    g2mark(a, cfg, 0)
    a('s_add_u32 s%d, s%d, 3' % (sAV, sAV))
    a('s_sub_u32 s%d, s%d, s%d' % (sAV, sAV, sGX))
    a('s_lshr_b32 s%d, s%d, 2' % (sAV, sAV))
    Lna = a.newlabel('noattn'); Lnt = a.newlabel('notask'); Lnw = a.newlabel('nowo'); Lpa = a.newlabel('nopub')
    a('s_cmp_le_u32 s%d, s%d' % (sAV, sNA))
    a.branch('s_cbranch_scc1 %s' % Lna)
    a('s_add_u32 s%d, s%d, 4' % (R.sT0, sNA))
    a('s_min_u32 s%d, s%d, s%d' % (sAV, sAV, R.sT0))
    a('s_add_u32 s%d, s%d, s%d' % (R.sT0, sNA, sGW))
    a('s_cmp_ge_u32 s%d, s%d' % (R.sT0, sAV))
    a.branch('s_cbranch_scc1 %s' % Lnt)
    a('s_lshl_b32 s%d, s%d, 2' % (R.sT0, R.sT0))
    a('s_add_u32 s%d, s%d, s%d' % (R.sT0, R.sT0, sGX))
    a('s_lshl_b32 s%d, s%d, 5' % (R.sT0, R.sT0))
    a('s_add_u32 s%d, s%d, s%d' % (G2.sTASK, R.sT0, sGI))
    G2.attn_consts(a, cfg)
    G2.attn_task(a, cfg, all_sc1=True, st_flags=' sc1' if cfg.get('safe') else '')
    a('s_waitcnt vmcnt(0)')
    a.label(Lnt)
    a('s_barrier')
    a('s_mov_b32 s%d, s%d' % (sNA, sAV))
    a('s_mov_b32 s%d, 1' % sDID)
    a('s_cmp_lg_u32 s%d, 0' % sGW)
    a.branch('s_cbranch_scc1 %s' % Lpa)
    a('s_lshl_b32 s%d, s%d, 2' % (R.sT0, sGC))
    a('s_add_u32 s%d, s%d, 0x%x' % (R.sT0, R.sT0, AP_OFF))
    a('v_mov_b32 v10, s%d' % sNA)
    a('v_mov_b32 v11, 0')
    a('s_mov_b64 exec, 1')
    a('buffer_store_dword v10, v11, s[%d:%d], s%d offen sc1' % (R.sWS, R.sWS + 3, R.sT0))
    a('s_mov_b64 exec, -1')
    a.label(Lpa)
    if cfg.get('g2prof'): a('s_add_u32 s70, s70, 1')
    a.label(Lna)
    g2mark(a, cfg, 1)
    a('s_cmp_le_u32 s%d, s%d' % (sAA, sNW))
    a.branch('s_cbranch_scc1 %s' % Lnw)
    a('s_lshl_b32 s%d, s%d, 2' % (R.sT0, sNW))
    a('s_add_u32 s%d, s%d, s%d' % (R.sT0, R.sT0, sGX))
    a('s_lshl_b32 s%d, s%d, 1' % (G2.sTILE, R.sT0))
    a('s_sub_u32 s%d, s%d, s%d' % (G2.sNB, sAA, sNW))
    a('s_min_u32 s%d, s%d, %d' % (G2.sNB, G2.sNB, cfg.get('wob', 4)))
    a('s_lshl_b32 s%d, s%d, 1' % (G2.sTN, sNW))
    a('s_add_u32 s%d, s%d, s%d' % (sNW, sNW, G2.sNB))
    a('s_lshl_b32 s%d, s%d, 1' % (G2.sNT, sNW))
    if cfg.get('wo2', 0): G2.wo2_batch(a, cfg, sGX, sNW, sSP)
    else: G2.wo_batch(a, cfg)
    a('s_mov_b32 s%d, 1' % sDID)
    if cfg.get('g2prof'): a('s_add_u32 s71, s71, 1')
    a.label(Lnw)
    g2mark(a, cfg, 2)
    Lsl = a.newlabel('nosleep')
    a('s_cmp_lg_u32 s%d, 0' % sDID)
    a('s_cbranch_scc1 %s' % Lsl)
    a('s_cmp_lt_u32 s%d, s%d' % (sNW, sNA))
    a('s_cbranch_scc1 %s' % Lsl)
    a('s_sleep %d' % cfg.get('g2sleep', 16))
    a.label(Lsl)
    g2mark(a, cfg, 3)
    a('s_add_u32 s%d, s%d, 1' % (sSP, sSP))
    a('s_cmp_ge_u32 s%d, 0x%x' % (sSP, SPIN_LIMIT))
    a.branch('s_cbranch_scc1 g2_done')
    a('s_cmp_lt_u32 s%d, 16' % sNW)
    a.branch('s_cbranch_scc1 g2_loop')
    a.label('g2_done')
    dbgt(a, cfg, 12)
    if cfg.get('g2prof'):
        a('s_lshl_b32 s45, s95, 7')
        a('s_lshl_b32 s46, s94, 5')
        a('s_add_u32 s45, s45, s46')
        a('s_add_u32 s45, s45, 0x%x' % (MISC_OFF + 131072))
        a('v_mov_b32 v9, 0')
        a('s_mov_b64 exec, 1')
        for k in range(8):
            a('v_mov_b32 v8, s%d' % (66 + k))
            a('buffer_store_dword v8, v9, s[%d:%d], s45 offen offset:%d' % (R.sWS, R.sWS + 3, 4 * k))
        a('s_mov_b64 exec, -1')
    stamp(a, cfg, 4)
    a('s_endpgm')

def g2mark(a, cfg, k):
    if not cfg.get('g2prof'): return
    a('s_memtime s[76:77]')
    a('s_waitcnt lgkmcnt(0)')
    a('s_sub_u32 s78, s76, s79')
    a('s_add_u32 s%d, s%d, s78' % (66 + k, 66 + k))
    a('s_mov_b32 s79, s76')

def stamp(a, cfg, k):
    if not cfg.get('stamp'): return
    L = a.newlabel('stp')
    a('s_cmp_lg_u32 s%d, 0' % sGW)
    a.branch('s_cbranch_scc1 %s' % L)
    a('s_memrealtime s[74:75]')
    a('s_waitcnt lgkmcnt(0)')
    a('v_mov_b32 v250, s74')
    a('s_lshl_b32 s74, s%d, 5' % sGC)
    a('s_add_u32 s74, s74, 0x%x' % (MISC_OFF + 65536 + 4 * k))
    a('v_mov_b32 v251, 0')
    a('s_mov_b64 exec, 1')
    a('buffer_store_dword v250, v251, s[%d:%d], s74 offen' % (R.sWS, R.sWS + 3))
    a('s_mov_b64 exec, -1')
    a.label(L)

def roles(a, cfg):
    a('s_cmp_ge_u32 s%d, 4' % R.sRX)
    a.branch('s_cbranch_scc1 f_grole')
    R.r_body(a, cfg)
    a.label('f_grole')
    a('s_sub_u32 s%d, s%d, 4' % (sGX, R.sRX))
    a('s_mov_b32 s%d, s%d' % (sGI, R.sI))
    a('s_mov_b32 s%d, s%d' % (sGW, R.sW))
    a('s_lshl_b32 s%d, s%d, 5' % (sGC, sGX))
    a('s_add_u32 s%d, s%d, s%d' % (sGC, sGC, sGI))
    stamp(a, cfg, 0)
    g_body(a, cfg)

def common_init(a):
    build_srds(a, dict(ws=R.sWS, wq=R.sWQ, wk=R.sWK, wv=R.sWV, wo=R.sWO, mem0=R.sM0, dbg=R.sDBG))
    a('s_mov_b32 s%d, 0' % R.sSPIN)
    R.lane_consts(a)
    a('v_lshrrev_b32 v%d, 6, v0' % R.vT)
    a('v_readfirstlane_b32 s%d, v%d' % (R.sW, R.vT))

def gen_fused(name, cfg):
    import re
    cfg = dict(cfg); cfg['fused'] = 1; cfg['g1_sc1'] = 1
    sGT = 2
    a = Asm()
    a.raw(kernel_header(name))
    a('s_cmp_ge_u32 s2, 256')
    a('s_cbranch_scc0 f_start')
    a('s_endpgm')
    a.label('f_start')
    if cfg.get('cpf', 1):
        a('s_getpc_b64 s[4:5]')
        a('s_and_b32 s4, s4, 0xffffff00')
        a('s_lshr_b32 s6, s2, 3')
        a('s_lshl_b32 s6, s6, 12')
        a('v_lshlrev_b32 v1, 4, v0')
        a('v_add_u32 v1, s6, v1')
        a('v_mov_b32 v3, s5')
        a('v_add_co_u32 v2, vcc, s4, v1')
        a('v_addc_co_u32 v3, vcc, 0, v3, vcc')
        a('global_load_dwordx4 v[244:247], v[2:3], off')
    common_init(a)
    dbgt(a, cfg, 8, True)
    a('s_getreg_b32 s%d, hwreg(HW_REG_XCC_ID)' % R.sRX)
    a('s_and_b32 s%d, s%d, 7' % (R.sRX, R.sRX))
    vT = R.vT
    Lt = a.newlabel('tk')
    a('s_cmp_lg_u32 s%d, 0' % R.sW)
    a.branch('s_cbranch_scc1 %s' % Lt)
    a('v_mov_b32 v%d, 1' % vT)
    a('s_lshl_b32 s%d, s%d, %d' % (R.sT0, R.sRX, 2))
    a('v_mov_b32 v%d, s%d' % (vT + 2, R.sT0))
    a('s_mov_b64 exec, 1')
    a('buffer_atomic_add v%d, v%d, s[%d:%d], 0 offen sc0 sc1' % (vT, vT + 2, R.sDBG, R.sDBG + 3))
    a('v_mov_b32 v%d, %d' % (vT + 2, R.LDS_TK))
    a('s_waitcnt vmcnt(0)')
    a('ds_write_b32 v%d, v%d' % (vT + 2, vT))
    a('s_waitcnt lgkmcnt(0)')
    a('s_mov_b64 exec, -1')
    a.label(Lt)
    a('s_barrier')
    a('v_mov_b32 v%d, %d' % (vT + 2, R.LDS_TK))
    a('ds_read_b32 v%d, v%d' % (vT, vT + 2))
    a('s_waitcnt lgkmcnt(0)')
    a('v_readfirstlane_b32 s%d, v%d' % (R.sI, vT))
    a('s_cmp_lt_u32 s%d, 32' % R.sI)
    a.branch('s_cbranch_scc1 f_census_ok')
    Lo = a.newlabel('ovf')
    a('s_cmp_lg_u32 s%d, 0' % R.sW)
    a.branch('s_cbranch_scc1 %s' % Lo)
    dbg_arrive(a, R.sDBG, DB_BAD, vT)
    a('s_waitcnt vmcnt(0)')
    dbg_arrive(a, R.sDBG, DB_INIT, vT)
    a.label(Lo)
    init_wait(a, R.sDBG, cfg, vT, R.sSPIN, R.sT0)
    a.branch('s_branch SAFE_ENTRY')
    a.label('f_census_ok')
    head = a.text()
    gl0 = Asm.GL
    a = Asm()
    roles(a, cfg)
    fast = a.text()
    gl1 = Asm.GL
    cfg2 = dict(cfg); cfg2['safe'] = 1; cfg2['stamp'] = 0; cfg2['prof'] = 0; cfg2['tl'] = 0; cfg2['st3'] = 0; cfg2['st2'] = 0; cfg2['gprof'] = 0; cfg2['g2prof'] = 0
    SH = 128 * MB
    saved = (R.MX_OFF, R.QKX_OFF, R.OX_OFF, G1.XF_OFF, P.XF_OFF)
    R.MX_OFF += SH; R.QKX_OFF += SH; R.OX_OFF += SH; G1.XF_OFF += SH; P.XF_OFF += SH; R.SAFE[0] = True
    b = Asm()
    b('s_mov_b64 exec, -1')
    b('s_waitcnt vmcnt(0) lgkmcnt(0)')
    b('s_barrier')
    common_init(b)
    b('s_lshr_b32 s%d, s%d, 5' % (R.sRX, sGT))
    b('s_and_b32 s%d, s%d, 7' % (R.sRX, R.sRX))
    b('s_and_b32 s%d, s%d, 31' % (R.sI, sGT))
    b.fence()
    head2 = b.text()
    dbgbuild = any(cfg.get(k) for k in ('stamp', 'prof', 'tl', 'st3', 'st2', 'gprof', 'g2prof', 'dbgt'))
    if not dbgbuild: Asm.GL = gl0
    b = Asm()
    roles(b, cfg2)
    Asm.GL = max(Asm.GL, gl1)
    R.MX_OFF, R.QKX_OFF, R.OX_OFF, G1.XF_OFF, P.XF_OFF = saved; R.SAFE[0] = False
    safe = b.text()
    import difflib
    labels = set(re.findall(r'^([A-Za-z_][\w]*):', safe + fast, re.M))
    rx = re.compile(r'\b(' + '|'.join(sorted(labels, key=len, reverse=True)) + r')\b')
    fl = [rx.sub(lambda m: m.group(1) + '_\\sf', l.strip()) for l in fast.split('\n') if l.strip()]
    sl = [rx.sub(lambda m: m.group(1) + '_\\sf', l.strip()) for l in safe.split('\n') if l.strip()]
    out = ['.macro ROLES sf']
    if len(fl) == len(sl) or True:
        sm = difflib.SequenceMatcher(None, fl, sl, autojunk=False) if len(fl) != len(sl) else None
        if sm is None:
            ops = []
            i = 0
            while i < len(fl):
                j = i
                same = fl[i] == sl[i]
                while j < len(fl) and (fl[j] == sl[j]) == same: j += 1
                ops.append(('equal' if same else 'replace', i, j, i, j)); i = j
        else:
            ops = sm.get_opcodes()
        for tag, i1, i2, j1, j2 in ops:
            if tag == 'equal': out += fl[i1:i2]
            else:
                out.append('.if \\sf == 0'); out += fl[i1:i2]; out.append('.else'); out += sl[j1:j2]; out.append('.endif')
    out.append('.endm')
    return '\n'.join(out) + '\n' + head + 'ROLES 0\nSAFE_ENTRY:\n' + head2 + 'ROLES 1\n'
```

```python
from common import *
import rrole as R, g1role as G1, prerole as P, g2role as G2, modrole as M

sGX, sGI, sGW, sGC = 92, 93, 94, 95
sNA, sNW, sAV, sAA, sSP = 88, 89, 54, 55, 44
sDBG = 32
sPREO = 91
sDID = 58
LDS_CTL = 98304

def gp_addr(a, dst):
    a('s_lshr_b32 s%d, s%d, 2' % (dst, sGC))
    a('s_lshl_b32 s%d, s%d, 8' % (dst, dst))
    a('s_and_b32 s%d, s%d, 3' % (R.sT3, sGC))
    a('s_lshl_b32 s%d, s%d, 2' % (R.sT3, R.sT3))
    a('s_add_u32 s%d, s%d, s%d' % (dst, dst, R.sT3))
    a('s_add_u32 s%d, s%d, 0x%x' % (dst, dst, GP_OFF))

def g_body(a, cfg):
    Ln = a.newlabel('gi')
    a('s_cmp_lg_u32 s%d, 0' % sGW)
    a.branch('s_cbranch_scc1 %s' % Ln)
    a('s_lshl_b32 s%d, s%d, 2' % (R.sT0, sGC))
    a('s_add_u32 s%d, s%d, 0x%x' % (R.sT2, R.sT0, AP_OFF))
    gp_addr(a, R.sT1)
    a('v_mov_b32 v12, 0')
    a('s_mov_b64 exec, 1')
    a('buffer_store_dword v12, v12, s[%d:%d], s%d offen sc1' % (R.sWS, R.sWS + 3, R.sT1))
    a('buffer_store_dword v12, v12, s[%d:%d], s%d offen sc1' % (R.sWS, R.sWS + 3, R.sT2))
    a('s_and_b32 s%d, s%d, 7' % (R.sT0, sGI))
    a('s_lshl_b32 s%d, s%d, 3' % (R.sT1, sGX))
    a('s_add_u32 s%d, s%d, s%d' % (R.sT0, R.sT0, R.sT1))
    a('s_lshl_b32 s%d, s%d, 7' % (R.sT0, R.sT0))
    a('s_lshr_b32 s%d, s%d, 3' % (R.sT1, sGI))
    a('s_lshl_b32 s%d, s%d, 2' % (R.sT1, R.sT1))
    a('s_add_u32 s%d, s%d, s%d' % (R.sT0, R.sT0, R.sT1))
    a('s_add_u32 s%d, s%d, 0x%x' % (R.sT0, R.sT0, WP_OFF))
    a('buffer_store_dword v12, v12, s[%d:%d], s%d offen sc1' % (R.sWS, R.sWS + 3, R.sT0))
    a('s_mov_b64 exec, -1')
    a('s_waitcnt vmcnt(0)')
    dbg_arrive(a, sDBG, DB_INIT2 if cfg.get('safe') else DB_INIT, 12)
    a.label(Ln)
    a('s_lshl_b32 s%d, s%d, 2' % (sPREO, sGX))
    a('s_add_u32 s%d, s%d, %d' % (sPREO, sPREO, DB_PRE2 if cfg.get('safe') else DB_PRE))
    P.sX, P.sGW, P.sWR = 24, 28, 36
    P.sW, P.sC = sGW, sGC
    build_srds(a, dict(x=P.sX, gw=P.sGW, wr=P.sWR))
    a('s_lshr_b32 s%d, s%d, 2' % (R.sH, sGC))
    a('s_and_b32 s%d, s%d, 3' % (R.sJ, sGC))
    a('s_mov_b32 s%d, s%d' % (R.sW, sGW))
    G1.XFL[0] = ' sc1'
    gp_addr(a, G1.sGPA)
    G1.fast_start(a, cfg)
    if cfg.get('dbgt'):
        a('s_cmp_lg_u32 s94, 0')
        a.branch('s_cbranch_scc1 f_nd4')
        dbgt(a, cfg, 14)
        a.label('f_nd4')
    a('s_mov_b32 s%d, %d' % (G1.sSEG, G1.NPB))
    a('s_mov_b32 s%d, 64' % G1.sEND)
    for w in range(1, 4):
        a('s_cmp_eq_u32 s%d, %d' % (sGW, w))
        a.branch('s_cbranch_scc1 fg1_wave%d' % w)
    for w in range(4):
        a.label('fg1_wave%d' % w)
        G1.g1_wave(a, w, cfg, 'fg1')
        a.branch('s_branch fg1_join')
    G1.g1_side(a, cfg)
    a.label('fg1_join')
    if cfg.get('dbgt'):
        a('s_cmp_lg_u32 s94, 0')
        a.branch('s_cbranch_scc1 f_nd2')
        dbgt(a, cfg, 11)
        a.label('f_nd2')
    if not cfg.get('st2'): stamp(a, cfg, 1)
    build_srds(a, dict(wo=G2.sWO, x=G2.sX, out=G2.sOUT))
    G2.sI, G2.sW = sGI, sGW
    G2.out_consts(a)
    G2.out_load_weights(a, 2)
    dbg_wait_wg(a, sDBG, DB_M2, 128, 8, sSP, sGW)
    Lg = a.newlabel('g65'); Lgd = a.newlabel('g65d')
    a('v_mov_b32 v8, 0')
    a('s_lshl_b32 s%d, s%d, 8' % (R.sT1, sGI))
    a('s_add_u32 s%d, s%d, 0x%x' % (R.sT1, R.sT1, GP_OFF))
    a.label(Lg)
    a('buffer_load_dwordx4 v[12:15], v8, s[%d:%d], s%d offen sc1' % (R.sWS, R.sWS + 3, R.sT1))
    a('s_waitcnt vmcnt(0)')
    a('v_min3_u32 v12, v12, v13, v14')
    a('v_min_u32 v12, v12, v15')
    a('v_cmp_gt_u32 vcc, 65, v12')
    a('s_cbranch_vccz %s' % Lgd)
    a('s_sleep 4')
    a('s_add_u32 s%d, s%d, 1' % (sSP, sSP))
    a('s_cmp_lt_u32 s%d, 0x%x' % (sSP, SPIN_LIMIT))
    a('s_cbranch_scc1 %s' % Lg)
    a.label(Lgd)
    a('s_mov_b32 s%d, 0x%x' % (R.sT0, IDX_OFF))
    a('buffer_load_dwordx2 v[10:11], v8, s[%d:%d], s%d offen sc1' % (R.sWS, R.sWS + 3, R.sT0))
    a('s_waitcnt vmcnt(0)')
    a('v_readfirstlane_b32 s%d, v10' % G2.sIDX0)
    a('v_readfirstlane_b32 s%d, v11' % G2.sIDX1)
    a('s_mov_b32 s%d, 0' % sNA)
    a('s_mov_b32 s%d, 0' % sNW)
    a('s_barrier')
    if not cfg.get('st2'): stamp(a, cfg, 3)
    if cfg.get('g2prof'):
        for k in range(8): a('s_mov_b32 s%d, 0' % (66 + k))
        a('s_memtime s[76:77]')
        a('s_waitcnt lgkmcnt(0)')
        a('s_mov_b32 s79, s76')
    if cfg.get('dbgt'):
        a('s_cmp_lg_u32 s94, 0')
        a.branch('s_cbranch_scc1 f_nd3')
        dbgt(a, cfg, 13)
        a.label('f_nd3')
    a.label('g2_loop')
    a('s_mov_b32 s%d, 0' % sDID)
    Lc = a.newlabel('ctl')
    a('s_cmp_lg_u32 s%d, 0' % sGW)
    a.branch('s_cbranch_scc1 %s' % Lc)
    a('v_and_b32 v8, 31, v0')
    a('v_lshlrev_b32 v8, 2, v8')
    a('v_and_b32 v9, 3, v0')
    a('v_lshlrev_b32 v9, 2, v9')
    a('s_lshl_b32 s%d, s%d, 7' % (R.sT0, sGX))
    a('s_add_u32 s%d, s%d, 0x%x' % (R.sT0, R.sT0, AP_OFF))
    a('s_lshl_b32 s%d, s%d, 8' % (R.sT1, sGI))
    a('s_add_u32 s%d, s%d, 0x%x' % (R.sT1, R.sT1, PROG_OFF))
    a('buffer_load_dword v10, v8, s[%d:%d], s%d offen sc1' % (R.sWS, R.sWS + 3, R.sT0))
    a('buffer_load_dword v11, v9, s[%d:%d], s%d offen sc1' % (R.sWS, R.sWS + 3, R.sT1))
    a('s_waitcnt vmcnt(0)')
    for sh in (1, 2, 4, 8):
        a('v_min_u32_dpp v10, v10, v10 row_ror:%d row_mask:0xf bank_mask:0xf' % sh)
        if sh < 4: a('v_min_u32_dpp v11, v11, v11 row_ror:%d row_mask:0xf bank_mask:0xf' % sh)
    a('v_mov_b32 v12, v10')
    a('v_permlane16_swap_b32 v10, v12')
    a('v_min_u32 v10, v10, v12')
    a('v_mov_b32 v12, %d' % LDS_CTL)
    a('ds_write_b64 v12, v[10:11]')
    a('s_waitcnt lgkmcnt(0)')
    a.label(Lc)
    a('s_barrier')
    a('v_mov_b32 v12, %d' % LDS_CTL)
    a('ds_read_b64 v[10:11], v12')
    a('s_waitcnt lgkmcnt(0)')
    a('v_readfirstlane_b32 s%d, v10' % sAA)
    a('v_readfirstlane_b32 s%d, v11' % sAV)
    a('s_barrier')
    g2mark(a, cfg, 0)
    a('s_add_u32 s%d, s%d, 3' % (sAV, sAV))
    a('s_sub_u32 s%d, s%d, s%d' % (sAV, sAV, sGX))
    a('s_lshr_b32 s%d, s%d, 2' % (sAV, sAV))
    Lna = a.newlabel('noattn'); Lnt = a.newlabel('notask'); Lnw = a.newlabel('nowo'); Lpa = a.newlabel('nopub')
    a('s_cmp_le_u32 s%d, s%d' % (sAV, sNA))
    a.branch('s_cbranch_scc1 %s' % Lna)
    a('s_add_u32 s%d, s%d, 4' % (R.sT0, sNA))
    a('s_min_u32 s%d, s%d, s%d' % (sAV, sAV, R.sT0))
    a('s_add_u32 s%d, s%d, s%d' % (R.sT0, sNA, sGW))
    a('s_cmp_ge_u32 s%d, s%d' % (R.sT0, sAV))
    a.branch('s_cbranch_scc1 %s' % Lnt)
    a('s_lshl_b32 s%d, s%d, 2' % (R.sT0, R.sT0))
    a('s_add_u32 s%d, s%d, s%d' % (R.sT0, R.sT0, sGX))
    a('s_lshl_b32 s%d, s%d, 5' % (R.sT0, R.sT0))
    a('s_add_u32 s%d, s%d, s%d' % (G2.sTASK, R.sT0, sGI))
    G2.attn_consts(a, cfg)
    G2.attn_task(a, cfg, all_sc1=True, st_flags=' sc1' if cfg.get('safe') else '')
    a('s_waitcnt vmcnt(0)')
    a.label(Lnt)
    a('s_barrier')
    a('s_mov_b32 s%d, s%d' % (sNA, sAV))
    a('s_mov_b32 s%d, 1' % sDID)
    a('s_cmp_lg_u32 s%d, 0' % sGW)
    a.branch('s_cbranch_scc1 %s' % Lpa)
    a('s_lshl_b32 s%d, s%d, 2' % (R.sT0, sGC))
    a('s_add_u32 s%d, s%d, 0x%x' % (R.sT0, R.sT0, AP_OFF))
    a('v_mov_b32 v10, s%d' % sNA)
    a('v_mov_b32 v11, 0')
    a('s_mov_b64 exec, 1')
    a('buffer_store_dword v10, v11, s[%d:%d], s%d offen sc1' % (R.sWS, R.sWS + 3, R.sT0))
    a('s_mov_b64 exec, -1')
    a.label(Lpa)
    if cfg.get('g2prof'): a('s_add_u32 s70, s70, 1')
    a.label(Lna)
    g2mark(a, cfg, 1)
    a('s_cmp_le_u32 s%d, s%d' % (sAA, sNW))
    a.branch('s_cbranch_scc1 %s' % Lnw)
    a('s_lshl_b32 s%d, s%d, 2' % (R.sT0, sNW))
    a('s_add_u32 s%d, s%d, s%d' % (R.sT0, R.sT0, sGX))
    a('s_lshl_b32 s%d, s%d, 1' % (G2.sTILE, R.sT0))
    a('s_sub_u32 s%d, s%d, s%d' % (G2.sNB, sAA, sNW))
    a('s_min_u32 s%d, s%d, %d' % (G2.sNB, G2.sNB, cfg.get('wob', 4)))
    a('s_lshl_b32 s%d, s%d, 1' % (G2.sTN, sNW))
    a('s_add_u32 s%d, s%d, s%d' % (sNW, sNW, G2.sNB))
    a('s_lshl_b32 s%d, s%d, 1' % (G2.sNT, sNW))
    if cfg.get('wo2', 0): G2.wo2_batch(a, cfg, sGX, sNW, sSP)
    else: G2.wo_batch(a, cfg)
    a('s_mov_b32 s%d, 1' % sDID)
    if cfg.get('g2prof'): a('s_add_u32 s71, s71, 1')
    a.label(Lnw)
    g2mark(a, cfg, 2)
    Lsl = a.newlabel('nosleep')
    a('s_cmp_lg_u32 s%d, 0' % sDID)
    a('s_cbranch_scc1 %s' % Lsl)
    a('s_cmp_lt_u32 s%d, s%d' % (sNW, sNA))
    a('s_cbranch_scc1 %s' % Lsl)
    a('s_sleep %d' % cfg.get('g2sleep', 16))
    a.label(Lsl)
    g2mark(a, cfg, 3)
    a('s_add_u32 s%d, s%d, 1' % (sSP, sSP))
    a('s_cmp_ge_u32 s%d, 0x%x' % (sSP, SPIN_LIMIT))
    a.branch('s_cbranch_scc1 g2_done')
    a('s_cmp_lt_u32 s%d, 16' % sNW)
    a.branch('s_cbranch_scc1 g2_loop')
    a.label('g2_done')
    dbgt(a, cfg, 12)
    if cfg.get('g2prof'):
        a('s_lshl_b32 s45, s95, 7')
        a('s_lshl_b32 s46, s94, 5')
        a('s_add_u32 s45, s45, s46')
        a('s_add_u32 s45, s45, 0x%x' % (MISC_OFF + 131072))
        a('v_mov_b32 v9, 0')
        a('s_mov_b64 exec, 1')
        for k in range(8):
            a('v_mov_b32 v8, s%d' % (66 + k))
            a('buffer_store_dword v8, v9, s[%d:%d], s45 offen offset:%d' % (R.sWS, R.sWS + 3, 4 * k))
        a('s_mov_b64 exec, -1')
    stamp(a, cfg, 4)
    a('s_endpgm')

def g2mark(a, cfg, k):
    if not cfg.get('g2prof'): return
    a('s_memtime s[76:77]')
    a('s_waitcnt lgkmcnt(0)')
    a('s_sub_u32 s78, s76, s79')
    a('s_add_u32 s%d, s%d, s78' % (66 + k, 66 + k))
    a('s_mov_b32 s79, s76')

def stamp(a, cfg, k):
    if not cfg.get('stamp'): return
    L = a.newlabel('stp')
    a('s_cmp_lg_u32 s%d, 0' % sGW)
    a.branch('s_cbranch_scc1 %s' % L)
    a('s_memrealtime s[74:75]')
    a('s_waitcnt lgkmcnt(0)')
    a('v_mov_b32 v250, s74')
    a('s_lshl_b32 s74, s%d, 5' % sGC)
    a('s_add_u32 s74, s74, 0x%x' % (MISC_OFF + 65536 + 4 * k))
    a('v_mov_b32 v251, 0')
    a('s_mov_b64 exec, 1')
    a('buffer_store_dword v250, v251, s[%d:%d], s74 offen' % (R.sWS, R.sWS + 3))
    a('s_mov_b64 exec, -1')
    a.label(L)

def roles(a, cfg):
    a('s_cmp_ge_u32 s%d, 4' % R.sRX)
    a.branch('s_cbranch_scc1 f_grole')
    R.r_body(a, cfg)
    a.label('f_grole')
    a('s_sub_u32 s%d, s%d, 4' % (sGX, R.sRX))
    a('s_mov_b32 s%d, s%d' % (sGI, R.sI))
    a('s_mov_b32 s%d, s%d' % (sGW, R.sW))
    a('s_lshl_b32 s%d, s%d, 5' % (sGC, sGX))
    a('s_add_u32 s%d, s%d, s%d' % (sGC, sGC, sGI))
    stamp(a, cfg, 0)
    g_body(a, cfg)

def common_init(a):
    build_srds(a, dict(ws=R.sWS, wq=R.sWQ, wk=R.sWK, wv=R.sWV, wo=R.sWO, mem0=R.sM0, dbg=R.sDBG))
    a('s_mov_b32 s%d, 0' % R.sSPIN)
    R.lane_consts(a)
    a('v_lshrrev_b32 v%d, 6, v0' % R.vT)
    a('v_readfirstlane_b32 s%d, v%d' % (R.sW, R.vT))

def gen_fused(name, cfg):
    import re
    cfg = dict(cfg); cfg['fused'] = 1; cfg['g1_sc1'] = 1
    sGT = 2
    a = Asm()
    a.raw(kernel_header(name))
    a('s_cmp_ge_u32 s2, 256')
    a('s_cbranch_scc0 f_start')
    a('s_endpgm')
    a.label('f_start')
    if cfg.get('cpf', 1):
        a('s_getpc_b64 s[4:5]')
        a('s_and_b32 s4, s4, 0xffffff00')
        a('s_lshr_b32 s6, s2, 3')
        a('s_lshl_b32 s6, s6, 12')
        a('v_lshlrev_b32 v1, 4, v0')
        a('v_add_u32 v1, s6, v1')
        a('v_mov_b32 v3, s5')
        a('v_add_co_u32 v2, vcc, s4, v1')
        a('v_addc_co_u32 v3, vcc, 0, v3, vcc')
        a('global_load_dwordx4 v[244:247], v[2:3], off')
    common_init(a)
    if cfg.get('dbgt'):
        a('s_lshl_b32 s97, s%d, 8' % R.sW)
        a('s_add_u32 s97, s97, s2')
        a('s_cmp_ge_u32 s97, 4')
        a.branch('s_cbranch_scc1 f_nodbg')
        dbgt(a, cfg, 8, True)
        a.label('f_nodbg')
    a('s_getreg_b32 s%d, hwreg(HW_REG_XCC_ID)' % R.sRX)
    a('s_and_b32 s%d, s%d, 7' % (R.sRX, R.sRX))
    vT = R.vT
    Lt = a.newlabel('tk')
    a('s_cmp_lg_u32 s%d, 0' % R.sW)
    a.branch('s_cbranch_scc1 %s' % Lt)
    a('v_mov_b32 v%d, 1' % vT)
    a('s_lshl_b32 s%d, s%d, %d' % (R.sT0, R.sRX, 2))
    a('v_mov_b32 v%d, s%d' % (vT + 2, R.sT0))
    a('s_mov_b64 exec, 1')
    a('buffer_atomic_add v%d, v%d, s[%d:%d], 0 offen sc0 sc1' % (vT, vT + 2, R.sDBG, R.sDBG + 3))
    a('v_mov_b32 v%d, %d' % (vT + 2, R.LDS_TK))
    a('s_waitcnt vmcnt(0)')
    a('ds_write_b32 v%d, v%d' % (vT + 2, vT))
    a('s_waitcnt lgkmcnt(0)')
    a('s_mov_b64 exec, -1')
    a.label(Lt)
    a('s_barrier')
    a('v_mov_b32 v%d, %d' % (vT + 2, R.LDS_TK))
    a('ds_read_b32 v%d, v%d' % (vT, vT + 2))
    a('s_waitcnt lgkmcnt(0)')
    a('v_readfirstlane_b32 s%d, v%d' % (R.sI, vT))
    a('s_cmp_lt_u32 s%d, 32' % R.sI)
    a.branch('s_cbranch_scc1 f_census_ok')
    Lo = a.newlabel('ovf')
    a('s_cmp_lg_u32 s%d, 0' % R.sW)
    a.branch('s_cbranch_scc1 %s' % Lo)
    dbg_arrive(a, R.sDBG, DB_BAD, vT)
    a('s_waitcnt vmcnt(0)')
    dbg_arrive(a, R.sDBG, DB_INIT, vT)
    a.label(Lo)
    init_wait(a, R.sDBG, cfg, vT, R.sSPIN, R.sT0)
    a.branch('s_branch SAFE_ENTRY')
    a.label('f_census_ok')
    head = a.text()
    gl0 = Asm.GL
    a = Asm()
    roles(a, cfg)
    fast = a.text()
    gl1 = Asm.GL
    cfg2 = dict(cfg); cfg2['safe'] = 1; cfg2['stamp'] = 0; cfg2['prof'] = 0; cfg2['tl'] = 0; cfg2['st3'] = 0; cfg2['st2'] = 0; cfg2['gprof'] = 0; cfg2['g2prof'] = 0
    SH = 128 * MB
    saved = (R.MX_OFF, R.QKX_OFF, R.OX_OFF, G1.XF_OFF, P.XF_OFF)
    R.MX_OFF += SH; R.QKX_OFF += SH; R.OX_OFF += SH; G1.XF_OFF += SH; P.XF_OFF += SH; R.SAFE[0] = True
    b = Asm()
    b('s_mov_b64 exec, -1')
    b('s_waitcnt vmcnt(0) lgkmcnt(0)')
    b('s_barrier')
    common_init(b)
    b('s_lshr_b32 s%d, s%d, 5' % (R.sRX, sGT))
    b('s_and_b32 s%d, s%d, 7' % (R.sRX, R.sRX))
    b('s_and_b32 s%d, s%d, 31' % (R.sI, sGT))
    b.fence()
    head2 = b.text()
    dbgbuild = any(cfg.get(k) for k in ('stamp', 'prof', 'tl', 'st3', 'st2', 'gprof', 'g2prof', 'dbgt'))
    if not dbgbuild: Asm.GL = gl0
    b = Asm()
    roles(b, cfg2)
    Asm.GL = max(Asm.GL, gl1)
    R.MX_OFF, R.QKX_OFF, R.OX_OFF, G1.XF_OFF, P.XF_OFF = saved; R.SAFE[0] = False
    safe = b.text()
    import difflib
    labels = set(re.findall(r'^([A-Za-z_][\w]*):', safe + fast, re.M))
    rx = re.compile(r'\b(' + '|'.join(sorted(labels, key=len, reverse=True)) + r')\b')
    fl = [rx.sub(lambda m: m.group(1) + '_\\sf', l.strip()) for l in fast.split('\n') if l.strip()]
    sl = [rx.sub(lambda m: m.group(1) + '_\\sf', l.strip()) for l in safe.split('\n') if l.strip()]
    out = ['.macro ROLES sf']
    if len(fl) == len(sl) or True:
        sm = difflib.SequenceMatcher(None, fl, sl, autojunk=False) if len(fl) != len(sl) else None
        if sm is None:
            ops = []
            i = 0
            while i < len(fl):
                j = i
                same = fl[i] == sl[i]
                while j < len(fl) and (fl[j] == sl[j]) == same: j += 1
                ops.append(('equal' if same else 'replace', i, j, i, j)); i = j
        else:
            ops = sm.get_opcodes()
        for tag, i1, i2, j1, j2 in ops:
            if tag == 'equal': out += fl[i1:i2]
            else:
                out.append('.if \\sf == 0'); out += fl[i1:i2]; out.append('.else'); out += sl[j1:j2]; out.append('.endif')
    out.append('.endm')
    return '\n'.join(out) + '\n' + head + 'ROLES 0\nSAFE_ENTRY:\n' + head2 + 'ROLES 1\n'
```

```python
from common import *
import rrole as R
from rrole import sWS, sWQ, sWK, sWV, sDBG, sRX, sI, sW, sT0, sT1, sT2, sT3, sH, sJ, vL, vL16, vT, wq_frag

sX = 24
sSEG, sEND, sXO, sQO, sKO, sVO = 52, 53, 54, 55, 56, 57
vXA = 3
vXB = 16
vAC = 144
vRD = 192
vOUT = 224
LDSP = 0

def xf(buf, tt, T, b): return vXB + buf * 64 + ((tt * 4 + T) * 2 + b) * 4
def ac(tt, tile): return vAC + (tt * 6 + tile) * 4
def lp(buf, wv, tt, tile): return LDSP + buf * 49152 + ((wv * 2 + tt) * 6 + tile) * 1024

XFL = ['']
NOPK = [1]
sGPA, sCNT, sSPIN, sWM = 58, 59, 44, 60
def xloads(buf, soff0, soff1):
    out = []
    for tt in range(2):
        for T in range(4):
            for b in range(2):
                r = xf(buf, tt, T, b)
                n = T * 2 + b
                out.append('buffer_load_dwordx4 v[%d:%d], v%d, s[%d:%d], s%d offen offset:%d' % (r, r + 3, vL16 if n < 4 else 5, sWS, sWS + 3, soff0 if tt == 0 else soff1, (n & 3) * 1024) + XFL[0])
    return out

FRAGS = [('q', 0), ('q', 1), ('k', 0), ('k', 1), ('v', 0), ('v', 1)]
def frag_src(kind, idx):
    if kind == 'q': return [(idx, 0), (idx, 1)]
    if kind == 'k': return [(idx, 2), (idx, 3)]
    return [(0, 4 + idx), (1, 4 + idx)]
ASSIGN = [[[0, 1], [2, 3], [4], [5]], [[0], [1], [2, 3], [4, 5]]]

def reduce_ops(w, par, sc1):
    ops = []
    for n, f in enumerate(ASSIGN[par][w]):
        kind, idx = FRAGS[f]
        o = vOUT + 4 * n
        rd = []
        for h2, (tt, tile) in enumerate(frag_src(kind, idx)):
            for wv in range(4):
                r = vRD + (h2 * 4 + wv) * 4
                off = lp(par, wv, tt, tile)
                rd.append('ds_read_b128 v[%d:%d], v%d offset:%d' % (r, r + 3, vL16 if off < 65536 else 4, off if off < 65536 else off - 49152))
        ops.append(('rd', rd))
        ad = []
        for h2 in range(2):
            b0 = vRD + h2 * 16
            if NOPK[0]:
                for x in range(4):
                    ad.append('v_add_f32 v%d, v%d, v%d' % (b0 + x, b0 + x, b0 + 4 + x))
                    ad.append('v_add_f32 v%d, v%d, v%d' % (b0 + 8 + x, b0 + 8 + x, b0 + 12 + x))
                for x in range(4):
                    ad.append('v_add_f32 v%d, v%d, v%d' % (b0 + x, b0 + x, b0 + 8 + x))
            else:
                for x in (0, 2):
                    ad.append('v_pk_add_f32 v[%d:%d], v[%d:%d], v[%d:%d]' % (b0 + x, b0 + x + 1, b0 + x, b0 + x + 1, b0 + 4 + x, b0 + 5 + x))
                    ad.append('v_pk_add_f32 v[%d:%d], v[%d:%d], v[%d:%d]' % (b0 + 8 + x, b0 + 9 + x, b0 + 8 + x, b0 + 9 + x, b0 + 12 + x, b0 + 13 + x))
                for x in (0, 2):
                    ad.append('v_pk_add_f32 v[%d:%d], v[%d:%d], v[%d:%d]' % (b0 + x, b0 + x + 1, b0 + x, b0 + x + 1, b0 + 8 + x, b0 + 9 + x))
            ad.append('v_cvt_pk_bf16_f32 v%d, v%d, v%d' % (o + 2 * h2, b0, b0 + 1))
            ad.append('v_cvt_pk_bf16_f32 v%d, v%d, v%d' % (o + 2 * h2 + 1, b0 + 2, b0 + 3))
        so = {'q': sQO, 'k': sKO, 'v': sVO}[kind]
        if kind == 'v':
            ad.append('buffer_store_dwordx4 v[%d:%d], v%d, s[%d:%d], s%d offen offset:%d%s' % (o, o + 3, vL16, sWS, sWS + 3, so, idx * 1024, ' sc1' if sc1 else ''))
        else:
            ad.append('buffer_store_dwordx4 v[%d:%d], v%d, s[%d:%d], s%d offen%s' % (o, o + 3, vL16 if idx == 0 else 5, sWS, sWS + 3, so, ' sc1' if sc1 else ''))
        ops.append(('ad', ad))
    return ops

def pub_gp(a, cap=64):
    a('s_min_u32 s%d, s%d, %d' % (sT1, sCNT, cap))
    a('v_mov_b32 v6, s%d' % sT1)
    a('v_mov_b32 v7, 0')
    a('s_mov_b64 exec, 1')
    a('buffer_store_dword v6, v7, s[%d:%d], s%d offen sc1' % (sWS, sWS + 3, sGPA))
    a('s_mov_b64 exec, -1')

sDM, sDS, sDMI, sDSI = 68, 69, 70, 71
sCX, sCD = 61, 62
sXSRD = 24
def seg_plan(w, par, first, cfg, conv=(None, None)):
    sc1 = cfg.get('g1_sc1', 0)
    buf = par
    slots = [[] for _ in range(96)]
    nxt = xloads(1 - buf, sXO, sT0)
    for n, x in enumerate(nxt):
        tt = n // 8
        slots[tt * 48 + (n % 8) * 5 + 1].append(('x%d' % tt, x))
    cl, cs = conv
    if cl is not None:
        for n in range(8):
            r = 192 + 32 * cl + 4 * n
            slots[2 + 4 * n].append(('cv', 'buffer_load_dwordx4 a[%d:%d], v3, s[%d:%d], s%d offen offset:%d' % (r, r + 3, sXSRD, sXSRD + 3, sCX, (n >> 1) * 128 + (n & 1) * 16)))
    if cs is not None:
        for n in range(8):
            r = 192 + 32 * cs + 4 * n
            slots[4 + 4 * n].append(('cv', 'buffer_store_dwordx4 a[%d:%d], v%d, s[%d:%d], s%d offen offset:%d' % (r, r + 3, vL16 if n < 4 else 5, sWS, sWS + 3, sCD, (n & 3) * 1024) + (' sc1' if cfg.get('safe') else '')))
    if cfg.get('fused'):
        for p in (23, 71):
            slots[p - 1].append(('sa', 's_mov_b32 m0, s%d' % sDM))
            slots[p].append(('cv', 'buffer_load_dwordx4 v243, s[12:15], s%d offen lds' % sDS))
            slots[p + 1].append(('sa', 's_add_u32 s%d, s%d, s%d' % (sDM, sDM, sDMI)))
            slots[p + 1].append(('sa', 's_add_u32 s%d, s%d, s%d' % (sDS, sDS, sDSI)))
    if cfg.get('warm', 0) and w == 3:
        for n in range(2):
            slots[20 + 30 * n].append(('x2', 'buffer_load_dwordx4 v[232:235], v%d, s[%d:%d], s%d offen offset:%d%s' % (vL16, sWS, sWS + 3, sWM, n * 1024, XFL[0])))
    tail = []
    for tt in range(2):
        for tile in range(6):
            off = lp(buf, w, tt, tile)
            ins = ('ds', 'ds_write_b128 v%d, v[%d:%d] offset:%d' % (vL16 if off < 65536 else 4, ac(tt, tile), ac(tt, tile) + 3, off if off < 65536 else off - 49152))
            IL = cfg.get('g1il', 2)
            p = (tt * 6 + (tile // IL + 1) * IL) * 8 + 4 + 3 * (tile % IL)
            if p < 96: slots[p].append(ins)
            else: tail.append(ins)
    if not first:
        p = 0
        for kind, lst in reduce_ops(w, 1 - par, sc1):
            if kind == 'rd':
                for x in lst:
                    while len(slots[p]) >= (2 if (cl is not None or cs is not None) else 1): p += 1
                    slots[p].append(('ds', x)); p += 1
                p += 5
            else:
                slots[p].append(('w', 's_waitcnt lgkmcnt(0)'))
                for x in lst:
                    while len(slots[p]) >= 2: p += 1
                    slots[p].append(('st' if x.startswith('buffer_store') else 'va', x))
                p += 1
    return slots, tail

def vm_seq(slots, upto=96, frm=0):
    return [t for sl in slots[frm:upto] for (t, x) in sl if t in ('x0', 'x1', 'x2', 'st', 'cv')]

def count_after(seq, tag):
    idx = max(i for i, t in enumerate(seq) if t == tag)
    return len(seq) - 1 - idx

def gmark(a, cfg, k):
    if not cfg.get('gprof'): return
    a('s_memtime s[76:77]')
    a('s_waitcnt lgkmcnt(0)')
    a('s_sub_u32 s78, s76, s79')
    a('s_add_u32 s%d, s%d, s78' % (80 + k, 80 + k))
    a('s_mov_b32 s79, s76')

def seg_body(a, w, par, first, cfg, preds, conv=(None, None), exact=False):
    buf = par
    slots, tail = seg_plan(w, par, first, cfg, conv)
    a('s_add_u32 s%d, s%d, 0x10000' % (sXO, sXO))
    if cfg.get('fused') and par == 1:
        a('s_cmp_eq_u32 s%d, %d' % (sSEG, 62 - NPB))
        a('s_cselect_b32 s%d, 0x400000, 0' % sT0)
        a('s_sub_u32 s%d, s%d, s%d' % (sXO, sXO, sT0))
    if w == 3: a('s_add_u32 s%d, s%d, 0x10000' % (sWM, sWM))
    a('s_add_u32 s%d, s%d, 0x8000' % (sT0, sXO))
    if preds is None:
        n0 = n1 = None
        a('s_waitcnt vmcnt(0)')
    else:
        n0 = min(count_after(vm_seq(seg_plan(w, p[0], p[1], cfg, *p[2:])[0]), 'x0') for p in preds)
        n1 = min(count_after(vm_seq(seg_plan(w, p[0], p[1], cfg, *p[2:])[0]), 'x1') for p in preds) + len(vm_seq(slots, 48))
        a('s_waitcnt vmcnt(%d)' % n0)
        gmark(a, cfg, 0)
    n = 0
    for tt in range(2):
        if tt == 1 and n1 is not None:
            gmark(a, cfg, 1)
            a('s_waitcnt vmcnt(%d)' % n1)
            gmark(a, cfg, 2)
        IL = cfg.get('g1il', 2)
        for tp in range(0, 6, IL):
            for T in range(4):
                for b in range(2):
                    for tile in range(tp, tp + IL):
                        c = '0' if (T == 0 and b == 0) else vr(ac(tt, tile), 4)
                        W = ar(wq_frag(tile, T, b), 4); X = vr(xf(buf, tt, T, b), 4)
                        if tile < 4: a('v_mfma_f32_16x16x32_bf16 %s, %s, %s, %s' % (vr(ac(tt, tile), 4), W, X, c))
                        else: a('v_mfma_f32_16x16x32_bf16 %s, %s, %s, %s' % (vr(ac(tt, tile), 4), X, W, c))
                        for t, x in slots[n]: a(x)
                        n += 1
    for t, x in tail: a(x)
    gmark(a, cfg, 3)
    if not first:
        for so in (sQO, sKO, sVO): a('s_add_u32 s%d, s%d, 0x40000' % (so, so))
        if cfg.get('fused') and par == 0:
            a('s_cmp_eq_u32 s%d, %d' % (sSEG, 64 - NPB))
            a('s_cselect_b32 s%d, 0x1000000, 0' % sT0)
            for so in (sQO, sKO, sVO): a('s_sub_u32 s%d, s%d, s%d' % (so, so, sT0))
    if conv[0] is not None: a('s_add_u32 s%d, s%d, 0x100000' % (sCX, sCX))
    if conv[1] is not None: a('s_add_u32 s%d, s%d, 0x100000' % (sCD, sCD))
    if cfg.get('fused') and not first:
        a('s_waitcnt vmcnt(%d) lgkmcnt(0)' % (count_after(vm_seq(slots), 'st') if exact else len(vm_seq(slots))))
    else:
        a('s_waitcnt lgkmcnt(0)')
    gmark(a, cfg, 4)
    a('s_barrier')
    gmark(a, cfg, 5)
    if cfg.get('fused') and not first:
        if exact: a('s_add_u32 s%d, s%d, 1' % (sCNT, sCNT))
        if w == 0: pub_gp(a)
        if not exact: a('s_add_u32 s%d, s%d, 1' % (sCNT, sCNT))

NPB = 4
def fast_start(a, cfg):
    sW = R.sW
    save = R.vTR; R.vTR = 236
    vWA, vRA, vRB, vCV = 239, 240, 241, 192
    PB = 65536
    sWQO, sPD = 63, 64
    a('v_and_b32 v%d, 15, v%d' % (vT, vL))
    a('v_lshrrev_b32 v%d, 4, v%d' % (vT + 1, vL))
    a('v_lshlrev_b32 v%d, 5, v%d' % (vT + 1, vT + 1))
    a('v_lshl_add_u32 v%d, v%d, 11, v%d' % (vXA, vT, vT + 1))
    a('v_add_u32 v4, 49152, v%d' % vL16)
    a('v_add_u32 v5, 4096, v%d' % vL16)
    a('v_lshrrev_b32 v%d, 2, v%d' % (vT, vL))
    a('v_and_b32 v%d, 3, v%d' % (vT + 1, vL))
    a('v_lshlrev_b32 v%d, 4, v%d' % (vT + 1, vT + 1))
    a('v_lshl_add_u32 v%d, v%d, 13, v%d' % (vWA, vT, vT + 1))
    def xs(buf):
        a('s_add_u32 s%d, s%d, 0x8000' % (sT0, sXO))
        for tt in range(2):
            for n in range(8):
                r = xf(buf, tt, n >> 1, n & 1)
                a('buffer_load_dwordx4 v[%d:%d], v%d, s[%d:%d], s%d offen offset:%d' % (r, r + 3, vXA, sXSRD, sXSRD + 3, sXO if tt == 0 else sT0, (n >> 1) * 128 + (n & 1) * 16))
        a('s_add_u32 s%d, s%d, 0x10000' % (sXO, sXO))
    a('s_lshl_b32 s%d, s%d, 9' % (sXO, sW))
    xs(0)
    a('s_lshl_b32 s%d, s%d, 21' % (sWQO, sW))
    a('s_lshl_b32 s%d, s%d, 8' % (sT1, sH))
    a('s_add_u32 s%d, s%d, s%d' % (sWQO, sWQO, sT1))
    a('s_lshl_b32 s%d, s%d, 6' % (sT1, sJ))
    a('s_add_u32 s%d, s%d, s%d' % (sWQO, sWQO, sT1))
    for M, srd in ((1, sWK), (2, sWV)):
        a('s_mov_b32 s%d, s%d' % (sT0, sWQO))
        for n in range(16):
            a('buffer_load_dwordx4 a[%d:%d], v%d, s[%d:%d], s%d offen' % (64 * M + 4 * n, 64 * M + 4 * n + 3, vWA, srd, srd + 3, sT0))
            if n < 15: a('s_add_u32 s%d, s%d, 0x20000' % (sT0, sT0))
    a('s_lshl_b32 s%d, s93, 15' % sT0)
    a('s_lshl_b32 s%d, s%d, 9' % (sT1, sW))
    a('s_add_u32 s%d, s%d, s%d' % (sCX, sT0, sT1))
    a('s_lshl_b32 s%d, s%d, 13' % (sT1, sW))
    a('s_add_u32 s%d, s%d, s%d' % (sCD, sT0, sT1))
    a('s_lshl_b32 s%d, s92, 22' % sT1)
    a('s_add_u32 s%d, s%d, s%d' % (sCD, sCD, sT1))
    a('s_add_u32 s%d, s%d, 0x%x' % (sCD, sCD, XF_OFF))
    for n in range(8):
        a('buffer_load_dwordx4 a[%d:%d], v%d, s[%d:%d], s%d offen offset:%d' % (192 + 4 * n, 195 + 4 * n, vXA, sXSRD, sXSRD + 3, sCX, (n >> 1) * 128 + (n & 1) * 16))
    a('s_add_u32 s%d, s%d, 0x100000' % (sCX, sCX))
    xs(1)
    a('s_cmp_lt_u32 s%d, 2' % sW)
    a('s_cselect_b32 s%d, 4, 1' % sT0)
    a('s_mul_i32 s%d, s%d, s%d' % (sT0, sT0, sW))
    a('s_cselect_b32 s%d, 1, 4' % sT1)
    a('s_add_u32 s%d, s%d, s%d' % (sT1, sT1, sT0))
    a('s_lshl_b32 s%d, s%d, 10' % (sT0, sT0))
    a('s_lshl_b32 s%d, s%d, 10' % (sT1, sT1))
    a('s_add_u32 s%d, s%d, %d' % (sT0, sT0, PB))
    a('s_add_u32 s%d, s%d, %d' % (sT1, sT1, PB))
    a('v_add_u32 v%d, s%d, v%d' % (vRA, sT0, vL16))
    a('v_add_u32 v%d, s%d, v%d' % (vRB, sT1, vL16))
    a('s_lshl_b32 s%d, s%d, 13' % (sT0, sW))
    a('s_add_u32 s%d, s%d, %d' % (sT0, sT0, PB))
    a('v_add_u32 v242, s%d, v%d' % (sT0, vL16))
    a('s_lshl_b32 s%d, s%d, 13' % (sT0, sH))
    a('s_lshl_b32 s%d, s%d, 10' % (sT1, sJ))
    a('s_add_u32 s%d, s%d, s%d' % (sT0, sT0, sT1))
    a('s_lshl_b32 s%d, s%d, 12' % (sT2, sW))
    a('s_add_u32 s%d, s%d, s%d' % (sT2, sT2, sT0))
    a('s_add_u32 s%d, s%d, 0x%x' % (sT2, sT2, KF_OFF))
    a('s_add_u32 s%d, s%d, s%d' % (sT0, sT0, sT1))
    a('s_lshl_b32 s%d, s%d, 10' % (sT1, sW))
    a('s_add_u32 s%d, s%d, s%d' % (sT0, sT0, sT1))
    a('s_add_u32 s%d, s%d, 0x%x' % (sT0, sT0, VF_OFF - 2048))
    a('s_cmp_lt_u32 s%d, 2' % sW)
    a('s_cselect_b32 s%d, s%d, s%d' % (sPD, sT2, sT0))
    R.tr_setup(a)
    a('s_waitcnt vmcnt(40)')
    R.tr_matrix(a, 1)
    a('s_waitcnt vmcnt(24)')
    R.tr_matrix(a, 2)
    init_wait(a, sDBG, cfg, 8, sSPIN, sT0)
    a('s_mov_b32 s%d, 0' % sCNT)
    for pb in range(NPB):
        buf = pb & 1
        if pb == 0:
            for n in range(8):
                a('buffer_store_dwordx4 a[%d:%d], v%d, s[%d:%d], s%d offen offset:%d%s' % (192 + 4 * n, 195 + 4 * n, vL16 if n < 4 else 5, sWS, sWS + 3, sCD, (n & 3) * 1024, ' sc1' if cfg.get('safe') else ''))
            a('s_add_u32 s%d, s%d, 0x100000' % (sCD, sCD))
        if pb == 2:
            xs(0); xs(1)
            for n in range(16):
                a('buffer_load_dwordx4 a[%d:%d], v%d, s[%d:%d], s%d offen' % (4 * n, 4 * n + 3, vWA, sWQ, sWQ + 3, sWQO))
                a('s_add_u32 s%d, s%d, 0x20000' % (sWQO, sWQO))
            a('s_waitcnt vmcnt(32)')
        for tt in range(2):
            for t4 in range(4):
                tile = 2 + t4
                for n in range(8):
                    d = vr(ac(tt, tile), 4); W = ar(wq_frag(tile, n >> 1, n & 1), 4); X = vr(xf(buf, tt, n >> 1, n & 1), 4)
                    a('v_mfma_f32_16x16x32_bf16 %s, %s, %s, %s' % (d, W if tile < 4 else X, X if tile < 4 else W, '0' if n == 0 else d))
                    if n == 6 and (tt, t4) != (0, 0):
                        g0 = tt * 4 + t4 - 1
                        a('ds_write_b128 v242, %s offset:%d' % (vr(ac(g0 >> 2, 2 + (g0 & 3)), 4), g0 * 1024))
        a('ds_write_b128 v242, %s offset:%d' % (vr(ac(1, 5), 4), 7 * 1024))
        a('s_waitcnt lgkmcnt(0)')
        a('s_barrier')
        for h2, va in enumerate((vRA, vRB)):
            for wv in range(4):
                r = vRD + (h2 * 4 + wv) * 4
                a('ds_read_b128 v[%d:%d], v%d offset:%d' % (r, r + 3, va, wv * 8192))
        a('s_waitcnt lgkmcnt(0)')
        for h2 in range(2):
            b0 = vRD + h2 * 16
            for x in (0, 2):
                R.pk_add(a, b0 + x, b0 + x, b0 + 4 + x); R.pk_add(a, b0 + 8 + x, b0 + 8 + x, b0 + 12 + x)
            for x in (0, 2): R.pk_add(a, b0 + x, b0 + x, b0 + 8 + x)
            a('v_cvt_pk_bf16_f32 v%d, v%d, v%d' % (vOUT + 2 * h2, b0, b0 + 1))
            a('v_cvt_pk_bf16_f32 v%d, v%d, v%d' % (vOUT + 2 * h2 + 1, b0 + 2, b0 + 3))
        a('buffer_store_dwordx4 v[%d:%d], v%d, s[%d:%d], s%d offen sc1' % (vOUT, vOUT + 3, vL16, sWS, sWS + 3, sPD))
        a('s_add_u32 s%d, s%d, 0x40000' % (sPD, sPD))
        a('s_add_u32 s%d, s%d, 1' % (sCNT, sCNT))
        a('s_waitcnt vmcnt(0)')
        a('s_barrier')
        Lp = a.newlabel('fsp')
        a('s_cmp_lg_u32 s%d, 0' % sW)
        a.branch('s_cbranch_scc1 %s' % Lp)
        pub_gp(a)
        if pb == 0: dbg_arrive(a, sDBG, 's91', 8)
        a.label(Lp)
    R.tr_matrix(a, 0)
    R.vTR = save

def g1_wave(a, w, cfg, pre):
    a('v_and_b32 v%d, 15, v%d' % (vT, vL))
    a('v_lshrrev_b32 v%d, 4, v%d' % (vT + 1, vL))
    a('v_lshlrev_b32 v%d, 5, v%d' % (vT + 1, vT + 1))
    a('v_lshl_add_u32 v%d, v%d, 11, v%d' % (vXA, vT, vT + 1))
    a('v_add_u32 v4, 49152, v%d' % vL16)
    a('v_add_u32 v5, 4096, v%d' % vL16)
    a('s_lshl_b32 s%d, s%d, 16' % (sXO, sSEG))
    if cfg.get('fused'):
        a('s_lshl_b32 s%d, s92, 22' % sT0)
        a('s_add_u32 s%d, s%d, s%d' % (sXO, sXO, sT0))
    if w == 3:
        a('s_lshl_b32 s%d, s%d, 2' % (sT0, sH))
        a('s_add_u32 s%d, s%d, s%d' % (sT0, sT0, sJ))
        a('s_and_b32 s%d, s%d, 31' % (sT0, sT0))
        a('s_lshl_b32 s%d, s%d, 11' % (sT0, sT0))
        a('s_add_u32 s%d, s%d, s%d' % (sWM, sXO, sT0))
        a('s_add_u32 s%d, s%d, 0x%x' % (sWM, sWM, XF_OFF + (cfg.get('warm', 0) - 1) * 0x10000))
    a('s_add_u32 s%d, s%d, 0x%x' % (sXO, sXO, XF_OFF + w * 8192))
    if not cfg.get('fused'):
        a('s_add_u32 s%d, s%d, 0x8000' % (sT0, sXO))
        for x in xloads(0, sXO, sT0): a(x)
    a('s_lshl_b32 s%d, s%d, 5' % (sT0, sSEG))
    a('s_add_u32 s%d, s%d, s%d' % (sT0, sT0, sH))
    a('s_lshl_b32 s%d, s%d, 13' % (sT0, sT0))
    a('s_lshl_b32 s%d, s%d, 10' % (sT1, sJ))
    a('s_add_u32 s%d, s%d, s%d' % (sT2, sT0, sT1))
    a('s_add_u32 s%d, s%d, 0x%x' % (sQO, sT2, QF_OFF))
    a('s_add_u32 s%d, s%d, 0x%x' % (sKO, sT2, KF_OFF))
    a('s_add_u32 s%d, s%d, s%d' % (sT2, sT2, sT1))
    a('s_add_u32 s%d, s%d, 0x%x' % (sVO, sT2, VF_OFF))
    if not cfg.get('fused'): R.transpose_weights(a, with_wo=False)
    if cfg.get('fused'):
        dbg_wait(a, sDBG, 's91', 32, 8, sSPIN)
        a('s_add_u32 s%d, s%d, 0x8000' % (sT0, sXO))
        for x in xloads(0, sXO, sT0): a(x)
        a('s_mov_b32 s%d, 0' % sSEG)
        import modloop
        modloop.trickle_off(a)
        a('v_mov_b32 v243, 0')
    a('s_barrier')
    a('s_memrealtime s[72:73]')
    if cfg.get('fused'):
        import fused
        fused.stamp(a, cfg, 5)
    if cfg.get('gprof'):
        for k in range(8): a('s_mov_b32 s%d, 0' % (80 + k))
        a('s_memtime s[76:77]')
        a('s_waitcnt lgkmcnt(0)')
        a('s_mov_b32 s79, s76')
    L = pre + '_loop_w%d' % w; E = pre + '_done_w%d' % w
    if cfg.get('fused'):
        plan = [(0, True, (0, None)), (1, False, (1, 0)), (0, False, (0, 1)), (1, False, (None, 0)), (0, False, (None, None))]
        for n, (par, first, conv) in enumerate(plan):
            seg_body(a, w, par, first, cfg, None if n == 0 else [plan[n - 1]], conv, exact=(1 <= n <= 3))
            if n == 4:
                if w == 1: dbg_arrive(a, sDBG, 's91', 8)
        a('s_add_u32 s%d, s%d, 4' % (sSEG, sSEG))
        preds_odd = [(0, False)]
    else:
        seg_body(a, w, 0, True, cfg, None)
        preds_odd = [(0, True), (0, False)]
    a.label(L)
    if cfg.get('fused'):
        Lq = a.newlabel('nocv')
        a('s_and_b32 s%d, s%d, 3' % (sT0, sSEG))
        a('s_cmp_lg_u32 s%d, 0' % sT0)
        a.branch('s_cbranch_scc1 %s' % Lq)
        a('s_mov_b32 s90, %d' % w)
        a.branch('s_branch g1_side')
        a.label('g1_back_w%d' % w)
        a.label(Lq)
    seg_body(a, w, 1, False, cfg, preds_odd)
    a('s_add_u32 s%d, s%d, 2' % (sSEG, sSEG))
    a('s_cmp_ge_u32 s%d, s%d' % (sSEG, sEND))
    a.branch('s_cbranch_scc1 %s' % E)
    seg_body(a, w, 0, False, cfg, [(1, False)])
    a.branch('s_branch %s' % L)
    a.label(E)
    if cfg.get('gprof'):
        a('s_lshl_b32 s%d, s95, 7' % sT0)
        a('s_add_u32 s%d, s%d, 0x%x' % (sT0, sT0, MISC_OFF + 131072 + w * 32))
        a('v_mov_b32 v9, 0')
        a('s_mov_b64 exec, 1')
        for k in range(8):
            a('v_mov_b32 v8, s%d' % (80 + k))
            a('buffer_store_dword v8, v9, s[%d:%d], s%d offen offset:%d' % (sWS, sWS + 3, sT0, 4 * k))
        a('s_mov_b64 exec, -1')
    for kind, lst in reduce_ops(w, 1, cfg.get('g1_sc1', 0)):
        if kind == 'ad': a('s_waitcnt lgkmcnt(0)')
        for x in lst: a(x)
    if cfg.get('fused'):
        a('s_waitcnt vmcnt(0)')
        a('s_barrier')
        a('s_mov_b32 s%d, 65' % sCNT)
        if w == 0: pub_gp(a, 65)

def gen_g1_kernel(name, cfg):
    a = Asm()
    a.raw(kernel_header(name))
    a('s_cmp_ge_u32 s2, 256')
    a('s_cbranch_scc1 g1_exit')
    a('s_memrealtime s[70:71]')
    build_srds(a, dict(ws=sWS, wq=sWQ, wk=sWK, wv=sWV))
    a('v_and_b32 v%d, 63, v0' % vL)
    a('v_lshlrev_b32 v%d, 4, v%d' % (vL16, vL))
    a('v_lshrrev_b32 v%d, 6, v0' % vT)
    a('v_readfirstlane_b32 s%d, v%d' % (sW, vT))
    a('s_and_b32 s%d, s2, 127' % sT0)
    a('s_lshr_b32 s%d, s%d, 2' % (sH, sT0))
    a('s_and_b32 s%d, s%d, 3' % (sJ, sT0))
    a('s_lshr_b32 s%d, s2, 7' % sT0)
    a('s_lshl_b32 s%d, s%d, 5' % (sSEG, sT0))
    a('s_add_u32 s%d, s%d, 32' % (sEND, sSEG))
    R.load_weights(a, with_wo=False)
    for w in range(1, 4):
        a('s_cmp_eq_u32 s%d, %d' % (sW, w))
        a.branch('s_cbranch_scc1 g1_wave%d' % w)
    for w in range(4):
        a.label('g1_wave%d' % w)
        g1_wave(a, w, cfg, 'g1')
        if w == 0 and cfg.get('stamp'):
            a('s_memrealtime s[74:75]')
            a('s_waitcnt lgkmcnt(0)')
            a('v_mov_b32 v10, s70'); a('v_mov_b32 v11, s72'); a('v_mov_b32 v12, s74'); a('v_mov_b32 v13, 0')
            a('s_lshl_b32 s%d, s2, 4' % sT0)
            a('s_add_u32 s%d, s%d, 0x%x' % (sT0, sT0, MISC_OFF + 65536))
            a('v_mov_b32 v14, 0')
            a('s_mov_b64 exec, 1')
            a('buffer_store_dwordx4 v[10:13], v14, s[%d:%d], s%d offen' % (sWS, sWS + 3, sT0))
        a('s_endpgm')
    a.label('g1_exit')
    a('s_endpgm')
    return a.text()

def g1_side(a, cfg):
    import prerole, modloop as M
    a.label('g1_side')
    E = a.newlabel('sidee')
    blocks = {8: lambda: (dbg_wait(a, sDBG, 's91', 64, 8, sSPIN), prerole.dots_agpr(a, cfg, 92, 98304), a('s_barrier'), M.setup_gu(a, 'wg')),
              16: lambda: (M.block_gate(a, cfg), M.setup_gu(a, 'wu')),
              24: lambda: (M.block_up(a, cfg), M.setup_down(a, 0)),
              28: lambda: M.setup_down(a, 1),
              32: lambda: M.trickle_off(a),
              36: lambda: (M.block_c(a, cfg), M.setup_wo(a, 3)),
              44: lambda: (M.block_wo3(a), M.setup_wo(a, 2)),
              52: lambda: M.trickle_off(a)}
    Ls = {k: a.newlabel('side') for k in blocks}
    for k in blocks:
        a('s_cmp_eq_u32 s%d, %d' % (sSEG, k))
        a.branch('s_cbranch_scc1 %s' % Ls[k])
    a.branch('s_branch %s' % E)
    for k, fn in blocks.items():
        a.label(Ls[k]); fn(); a.branch('s_branch %s' % E)
    a.label(E)
    for w in range(3):
        a('s_cmp_eq_u32 s90, %d' % w)
        a.branch('s_cbranch_scc1 g1_back_w%d' % w)
    a.branch('s_branch g1_back_w3')
```

```python
from common import *
import rrole as R, g1role as G1, prerole as P, g2role as G2, modrole as M

sGX, sGI, sGW, sGC = 92, 93, 94, 95
sNA, sNW, sAV, sAA, sSP = 88, 89, 54, 55, 44
sDBG = 32
sPREO = 91
sDID = 58
sPRE = 63
LDS_CTL = 98304

def gp_addr(a, dst):
    a('s_lshr_b32 s%d, s%d, 2' % (dst, sGC))
    a('s_lshl_b32 s%d, s%d, 8' % (dst, dst))
    a('s_and_b32 s%d, s%d, 3' % (R.sT3, sGC))
    a('s_lshl_b32 s%d, s%d, 2' % (R.sT3, R.sT3))
    a('s_add_u32 s%d, s%d, s%d' % (dst, dst, R.sT3))
    a('s_add_u32 s%d, s%d, 0x%x' % (dst, dst, GP_OFF))

def g_body(a, cfg):
    Ln = a.newlabel('gi')
    a('s_cmp_lg_u32 s%d, 0' % sGW)
    a.branch('s_cbranch_scc1 %s' % Ln)
    a('s_lshl_b32 s%d, s%d, 2' % (R.sT0, sGC))
    a('s_add_u32 s%d, s%d, 0x%x' % (R.sT2, R.sT0, AP_OFF))
    gp_addr(a, R.sT1)
    a('v_mov_b32 v12, 0')
    a('s_mov_b64 exec, 1')
    a('buffer_store_dword v12, v12, s[%d:%d], s%d offen sc1' % (R.sWS, R.sWS + 3, R.sT1))
    a('buffer_store_dword v12, v12, s[%d:%d], s%d offen sc1' % (R.sWS, R.sWS + 3, R.sT2))
    a('s_and_b32 s%d, s%d, 7' % (R.sT0, sGI))
    a('s_lshl_b32 s%d, s%d, 3' % (R.sT1, sGX))
    a('s_add_u32 s%d, s%d, s%d' % (R.sT0, R.sT0, R.sT1))
    a('s_lshl_b32 s%d, s%d, 7' % (R.sT0, R.sT0))
    a('s_lshr_b32 s%d, s%d, 3' % (R.sT1, sGI))
    a('s_lshl_b32 s%d, s%d, 2' % (R.sT1, R.sT1))
    a('s_add_u32 s%d, s%d, s%d' % (R.sT0, R.sT0, R.sT1))
    a('s_add_u32 s%d, s%d, 0x%x' % (R.sT0, R.sT0, WP_OFF))
    a('buffer_store_dword v12, v12, s[%d:%d], s%d offen sc1' % (R.sWS, R.sWS + 3, R.sT0))
    a('s_mov_b64 exec, -1')
    a('s_waitcnt vmcnt(0)')
    dbg_arrive(a, sDBG, DB_INIT2 if cfg.get('safe') else DB_INIT, 12)
    a.label(Ln)
    a('s_lshl_b32 s%d, s%d, 2' % (sPREO, sGX))
    a('s_add_u32 s%d, s%d, %d' % (sPREO, sPREO, DB_PRE2 if cfg.get('safe') else DB_PRE))
    P.sX, P.sGW, P.sWR = 24, 28, 36
    P.sW, P.sC = sGW, sGC
    build_srds(a, dict(x=P.sX, gw=P.sGW, wr=P.sWR))
    a('s_lshr_b32 s%d, s%d, 2' % (R.sH, sGC))
    a('s_and_b32 s%d, s%d, 3' % (R.sJ, sGC))
    a('s_mov_b32 s%d, s%d' % (R.sW, sGW))
    G1.XFL[0] = ' sc1'
    gp_addr(a, G1.sGPA)
    G1.fast_start(a, cfg)
    if cfg.get('dbgt'):
        a('s_cmp_lg_u32 s94, 0')
        a.branch('s_cbranch_scc1 f_nd4')
        dbgt(a, cfg, 14)
        a.label('f_nd4')
    a('s_mov_b32 s%d, %d' % (G1.sSEG, G1.NPB))
    a('s_mov_b32 s%d, 64' % G1.sEND)
    for w in range(1, 4):
        a('s_cmp_eq_u32 s%d, %d' % (sGW, w))
        a.branch('s_cbranch_scc1 fg1_wave%d' % w)
    for w in range(4):
        a.label('fg1_wave%d' % w)
        G1.g1_wave(a, w, cfg, 'fg1')
        a.branch('s_branch fg1_join')
    G1.g1_side(a, cfg)
    a.label('fg1_join')
    if cfg.get('dbgt'):
        a('s_cmp_lg_u32 s94, 0')
        a.branch('s_cbranch_scc1 f_nd2')
        dbgt(a, cfg, 11)
        a.label('f_nd2')
    if not cfg.get('st2'): stamp(a, cfg, 1)
    build_srds(a, dict(wo=G2.sWO, x=G2.sX, out=G2.sOUT))
    G2.sI, G2.sW = sGI, sGW
    G2.out_consts(a)
    G2.out_load_weights(a, 2)
    dbg_wait_wg(a, sDBG, DB_M2, 128, 8, sSP, sGW)
    Lg = a.newlabel('g65'); Lgd = a.newlabel('g65d')
    a('v_mov_b32 v8, 0')
    a('s_lshl_b32 s%d, s%d, 8' % (R.sT1, sGI))
    a('s_add_u32 s%d, s%d, 0x%x' % (R.sT1, R.sT1, GP_OFF))
    a.label(Lg)
    a('buffer_load_dwordx4 v[12:15], v8, s[%d:%d], s%d offen sc1' % (R.sWS, R.sWS + 3, R.sT1))
    a('s_waitcnt vmcnt(0)')
    a('v_min3_u32 v12, v12, v13, v14')
    a('v_min_u32 v12, v12, v15')
    a('v_cmp_gt_u32 vcc, 65, v12')
    a('s_cbranch_vccz %s' % Lgd)
    a('s_sleep 4')
    a('s_add_u32 s%d, s%d, 1' % (sSP, sSP))
    a('s_cmp_lt_u32 s%d, 0x%x' % (sSP, SPIN_LIMIT))
    a('s_cbranch_scc1 %s' % Lg)
    a.label(Lgd)
    a('s_mov_b32 s%d, 0x%x' % (R.sT0, IDX_OFF))
    a('buffer_load_dwordx2 v[10:11], v8, s[%d:%d], s%d offen sc1' % (R.sWS, R.sWS + 3, R.sT0))
    a('s_waitcnt vmcnt(0)')
    a('v_readfirstlane_b32 s%d, v10' % G2.sIDX0)
    a('v_readfirstlane_b32 s%d, v11' % G2.sIDX1)
    a('s_mov_b32 s%d, 0' % sNA)
    a('s_mov_b32 s%d, 0' % sPRE)
    a('s_mov_b32 s%d, 0' % sNW)
    a('s_barrier')
    if not cfg.get('st2'): stamp(a, cfg, 3)
    if cfg.get('g2prof'):
        for k in range(8): a('s_mov_b32 s%d, 0' % (66 + k))
        a('s_memtime s[76:77]')
        a('s_waitcnt lgkmcnt(0)')
        a('s_mov_b32 s79, s76')
    if cfg.get('dbgt'):
        a('s_cmp_lg_u32 s94, 0')
        a.branch('s_cbranch_scc1 f_nd3')
        dbgt(a, cfg, 13)
        a.label('f_nd3')
    a.label('g2_loop')
    a('s_mov_b32 s%d, 0' % sDID)
    Lc = a.newlabel('ctl')
    a('s_cmp_lg_u32 s%d, 0' % sGW)
    a.branch('s_cbranch_scc1 %s' % Lc)
    a('v_and_b32 v8, 31, v0')
    a('v_lshlrev_b32 v8, 2, v8')
    a('v_and_b32 v9, 3, v0')
    a('v_lshlrev_b32 v9, 2, v9')
    a('s_lshl_b32 s%d, s%d, 7' % (R.sT0, sGX))
    a('s_add_u32 s%d, s%d, 0x%x' % (R.sT0, R.sT0, AP_OFF))
    a('s_lshl_b32 s%d, s%d, 8' % (R.sT1, sGI))
    a('s_add_u32 s%d, s%d, 0x%x' % (R.sT1, R.sT1, PROG_OFF))
    a('buffer_load_dword v10, v8, s[%d:%d], s%d offen sc1' % (R.sWS, R.sWS + 3, R.sT0))
    a('buffer_load_dword v11, v9, s[%d:%d], s%d offen sc1' % (R.sWS, R.sWS + 3, R.sT1))
    a('s_waitcnt vmcnt(0)')
    for sh in (1, 2, 4, 8):
        a('v_min_u32_dpp v10, v10, v10 row_ror:%d row_mask:0xf bank_mask:0xf' % sh)
        if sh < 4: a('v_min_u32_dpp v11, v11, v11 row_ror:%d row_mask:0xf bank_mask:0xf' % sh)
    a('v_mov_b32 v12, v10')
    a('v_permlane16_swap_b32 v10, v12')
    a('v_min_u32 v10, v10, v12')
    a('v_mov_b32 v12, %d' % LDS_CTL)
    a('ds_write_b64 v12, v[10:11]')
    a('s_waitcnt lgkmcnt(0)')
    a.label(Lc)
    a('s_barrier')
    a('v_mov_b32 v12, %d' % LDS_CTL)
    a('ds_read_b64 v[10:11], v12')
    a('s_waitcnt lgkmcnt(0)')
    a('v_readfirstlane_b32 s%d, v10' % sAA)
    a('v_readfirstlane_b32 s%d, v11' % sAV)
    a('s_barrier')
    g2mark(a, cfg, 0)
    a('s_add_u32 s%d, s%d, 3' % (sAV, sAV))
    a('s_sub_u32 s%d, s%d, s%d' % (sAV, sAV, sGX))
    a('s_lshr_b32 s%d, s%d, 2' % (sAV, sAV))
    Lna = a.newlabel('noattn'); Lnt = a.newlabel('notask'); Lnw = a.newlabel('nowo'); Lpa = a.newlabel('nopub')
    a('s_cmp_le_u32 s%d, s%d' % (sAV, sNA))
    a.branch('s_cbranch_scc1 %s' % Lna)
    a('s_add_u32 s%d, s%d, 4' % (R.sT0, sNA))
    a('s_min_u32 s%d, s%d, s%d' % (sAV, sAV, R.sT0))
    a('s_add_u32 s%d, s%d, s%d' % (R.sT0, sNA, sGW))
    a('s_cmp_ge_u32 s%d, s%d' % (R.sT0, sAV))
    a.branch('s_cbranch_scc1 %s' % Lnt)
    a('s_lshl_b32 s%d, s%d, 2' % (R.sT0, R.sT0))
    a('s_add_u32 s%d, s%d, s%d' % (R.sT0, R.sT0, sGX))
    a('s_lshl_b32 s%d, s%d, 5' % (R.sT0, R.sT0))
    a('s_add_u32 s%d, s%d, s%d' % (G2.sTASK, R.sT0, sGI))
    Lpf = a.newlabel('havepf')
    a('s_add_u32 s%d, s%d, 1' % (R.sT0, G2.sTASK))
    a('s_cmp_eq_u32 s%d, s%d' % (R.sT0, sPRE))
    a.branch('s_cbranch_scc1 %s' % Lpf)
    G2.attn_consts(a, cfg)
    G2.attn_task(a, cfg, all_sc1=True, part=1)
    a.label(Lpf)
    G2.attn_task(a, cfg, all_sc1=True, st_flags=' sc1' if cfg.get('safe') else '', part=2)
    a('s_waitcnt vmcnt(0)')
    a.label(Lnt)
    a('s_barrier')
    a('s_mov_b32 s%d, s%d' % (sNA, sAV))
    a('s_mov_b32 s%d, 1' % sDID)
    a('s_cmp_lg_u32 s%d, 0' % sGW)
    a.branch('s_cbranch_scc1 %s' % Lpa)
    a('s_lshl_b32 s%d, s%d, 2' % (R.sT0, sGC))
    a('s_add_u32 s%d, s%d, 0x%x' % (R.sT0, R.sT0, AP_OFF))
    a('v_mov_b32 v10, s%d' % sNA)
    a('v_mov_b32 v11, 0')
    a('s_mov_b64 exec, 1')
    a('buffer_store_dword v10, v11, s[%d:%d], s%d offen%s' % (R.sWS, R.sWS + 3, R.sT0, ' sc1' if cfg.get('safe') else ''))
    a('s_mov_b64 exec, -1')
    a.label(Lpa)
    if cfg.get('g2prof'): a('s_add_u32 s70, s70, 1')
    a.label(Lna)
    g2mark(a, cfg, 1)
    a('s_cmp_le_u32 s%d, s%d' % (sAA, sNW))
    a.branch('s_cbranch_scc1 %s' % Lnw)
    a('s_lshl_b32 s%d, s%d, 2' % (R.sT0, sNW))
    a('s_add_u32 s%d, s%d, s%d' % (R.sT0, R.sT0, sGX))
    a('s_lshl_b32 s%d, s%d, 1' % (G2.sTILE, R.sT0))
    a('s_sub_u32 s%d, s%d, s%d' % (G2.sNB, sAA, sNW))
    a('s_min_u32 s%d, s%d, %d' % (G2.sNB, G2.sNB, cfg.get('wob', 4)))
    a('s_lshl_b32 s%d, s%d, 1' % (G2.sTN, sNW))
    a('s_add_u32 s%d, s%d, s%d' % (sNW, sNW, G2.sNB))
    a('s_lshl_b32 s%d, s%d, 1' % (G2.sNT, sNW))
    if cfg.get('wo2', 0): G2.wo2_batch(a, cfg, sGX, sNW, sSP)
    else: G2.wo_batch(a, cfg)
    a('s_mov_b32 s%d, 0' % sPRE)
    a('s_mov_b32 s%d, 1' % sDID)
    if cfg.get('g2prof'): a('s_add_u32 s71, s71, 1')
    a.label(Lnw)
    g2mark(a, cfg, 2)
    Lsl = a.newlabel('nosleep')
    a('s_cmp_lg_u32 s%d, 0' % sDID)
    a('s_cbranch_scc1 %s' % Lsl)
    a('s_cmp_lt_u32 s%d, s%d' % (sNW, sNA))
    a('s_cbranch_scc1 %s' % Lsl)
    Lnp = a.newlabel('nopf')
    a('s_cmp_lg_u32 s%d, 0' % sGW)
    a('s_cbranch_scc1 %s' % Lnp)
    a('s_lshl_b32 s%d, s%d, 2' % (R.sT0, sNA))
    a('s_add_u32 s%d, s%d, s%d' % (R.sT0, R.sT0, sGX))
    a('s_lshl_b32 s%d, s%d, 5' % (R.sT0, R.sT0))
    a('s_add_u32 s%d, s%d, s%d' % (G2.sTASK, R.sT0, sGI))
    a('s_add_u32 s%d, s%d, 1' % (R.sT0, G2.sTASK))
    a('s_cmp_eq_u32 s%d, s%d' % (R.sT0, sPRE))
    a('s_cbranch_scc1 %s' % Lnp)
    a('s_mov_b32 s%d, s%d' % (sPRE, R.sT0))
    G2.attn_consts(a, cfg)
    G2.attn_task(a, cfg, all_sc1=True, part=1)
    a.label(Lnp)
    a('s_sleep %d' % cfg.get('g2sleep', 8))
    a.label(Lsl)
    g2mark(a, cfg, 3)
    a('s_add_u32 s%d, s%d, 1' % (sSP, sSP))
    a('s_cmp_ge_u32 s%d, 0x%x' % (sSP, SPIN_LIMIT))
    a.branch('s_cbranch_scc1 g2_done')
    a('s_cmp_lt_u32 s%d, 16' % sNW)
    a.branch('s_cbranch_scc1 g2_loop')
    a.label('g2_done')
    dbgt(a, cfg, 12)
    if cfg.get('g2prof'):
        a('s_lshl_b32 s45, s95, 7')
        a('s_lshl_b32 s46, s94, 5')
        a('s_add_u32 s45, s45, s46')
        a('s_add_u32 s45, s45, 0x%x' % (MISC_OFF + 131072))
        a('v_mov_b32 v9, 0')
        a('s_mov_b64 exec, 1')
        for k in range(8):
            a('v_mov_b32 v8, s%d' % (66 + k))
            a('buffer_store_dword v8, v9, s[%d:%d], s45 offen offset:%d' % (R.sWS, R.sWS + 3, 4 * k))
        a('s_mov_b64 exec, -1')
    stamp(a, cfg, 4)
    a('s_endpgm')

def g2mark(a, cfg, k):
    if not cfg.get('g2prof'): return
    a('s_memtime s[76:77]')
    a('s_waitcnt lgkmcnt(0)')
    a('s_sub_u32 s78, s76, s79')
    a('s_add_u32 s%d, s%d, s78' % (66 + k, 66 + k))
    a('s_mov_b32 s79, s76')

def stamp(a, cfg, k):
    if not cfg.get('stamp'): return
    L = a.newlabel('stp')
    a('s_cmp_lg_u32 s%d, 0' % sGW)
    a.branch('s_cbranch_scc1 %s' % L)
    a('s_memrealtime s[74:75]')
    a('s_waitcnt lgkmcnt(0)')
    a('v_mov_b32 v250, s74')
    a('s_lshl_b32 s74, s%d, 5' % sGC)
    a('s_add_u32 s74, s74, 0x%x' % (MISC_OFF + 65536 + 4 * k))
    a('v_mov_b32 v251, 0')
    a('s_mov_b64 exec, 1')
    a('buffer_store_dword v250, v251, s[%d:%d], s74 offen' % (R.sWS, R.sWS + 3))
    a('s_mov_b64 exec, -1')
    a.label(L)

def roles(a, cfg):
    a('s_cmp_ge_u32 s%d, 4' % R.sRX)
    a.branch('s_cbranch_scc1 f_grole')
    R.r_body(a, cfg)
    a.label('f_grole')
    a('s_sub_u32 s%d, s%d, 4' % (sGX, R.sRX))
    a('s_mov_b32 s%d, s%d' % (sGI, R.sI))
    a('s_mov_b32 s%d, s%d' % (sGW, R.sW))
    a('s_lshl_b32 s%d, s%d, 5' % (sGC, sGX))
    a('s_add_u32 s%d, s%d, s%d' % (sGC, sGC, sGI))
    stamp(a, cfg, 0)
    g_body(a, cfg)

def common_init(a):
    build_srds(a, dict(ws=R.sWS, wq=R.sWQ, wk=R.sWK, wv=R.sWV, wo=R.sWO, mem0=R.sM0, dbg=R.sDBG))
    a('s_mov_b32 s%d, 0' % R.sSPIN)
    R.lane_consts(a)
    a('v_lshrrev_b32 v%d, 6, v0' % R.vT)
    a('v_readfirstlane_b32 s%d, v%d' % (R.sW, R.vT))

def gen_fused(name, cfg):
    import re
    cfg = dict(cfg); cfg['fused'] = 1; cfg['g1_sc1'] = 1
    sGT = 2
    a = Asm()
    a.raw(kernel_header(name))
    a('s_cmp_ge_u32 s2, 256')
    a('s_cbranch_scc0 f_start')
    a('s_endpgm')
    a.label('f_start')
    if cfg.get('cpf', 1):
        a('s_getpc_b64 s[4:5]')
        a('s_and_b32 s4, s4, 0xffffff00')
        a('s_lshr_b32 s6, s2, 3')
        a('s_lshl_b32 s6, s6, 12')
        a('v_lshlrev_b32 v1, 4, v0')
        a('v_add_u32 v1, s6, v1')
        a('v_mov_b32 v3, s5')
        a('v_add_co_u32 v2, vcc, s4, v1')
        a('v_addc_co_u32 v3, vcc, 0, v3, vcc')
        a('global_load_dwordx4 v[244:247], v[2:3], off')
    common_init(a)
    if cfg.get('dbgt'):
        a('s_lshl_b32 s97, s%d, 8' % R.sW)
        a('s_add_u32 s97, s97, s2')
        a('s_cmp_ge_u32 s97, 4')
        a.branch('s_cbranch_scc1 f_nodbg')
        dbgt(a, cfg, 8, True)
        a.label('f_nodbg')
    a('s_getreg_b32 s%d, hwreg(HW_REG_XCC_ID)' % R.sRX)
    a('s_and_b32 s%d, s%d, 7' % (R.sRX, R.sRX))
    vT = R.vT
    Lt = a.newlabel('tk')
    a('s_cmp_lg_u32 s%d, 0' % R.sW)
    a.branch('s_cbranch_scc1 %s' % Lt)
    a('v_mov_b32 v%d, 1' % vT)
    a('s_lshl_b32 s%d, s%d, %d' % (R.sT0, R.sRX, 2))
    a('v_mov_b32 v%d, s%d' % (vT + 2, R.sT0))
    a('s_mov_b64 exec, 1')
    a('buffer_atomic_add v%d, v%d, s[%d:%d], 0 offen sc0 sc1' % (vT, vT + 2, R.sDBG, R.sDBG + 3))
    a('v_mov_b32 v%d, %d' % (vT + 2, R.LDS_TK))
    a('s_waitcnt vmcnt(0)')
    a('ds_write_b32 v%d, v%d' % (vT + 2, vT))
    a('s_waitcnt lgkmcnt(0)')
    a('s_mov_b64 exec, -1')
    a.label(Lt)
    a('s_barrier')
    a('v_mov_b32 v%d, %d' % (vT + 2, R.LDS_TK))
    a('ds_read_b32 v%d, v%d' % (vT, vT + 2))
    a('s_waitcnt lgkmcnt(0)')
    a('v_readfirstlane_b32 s%d, v%d' % (R.sI, vT))
    a('s_cmp_lt_u32 s%d, 32' % R.sI)
    a.branch('s_cbranch_scc1 f_census_ok')
    Lo = a.newlabel('ovf')
    a('s_cmp_lg_u32 s%d, 0' % R.sW)
    a.branch('s_cbranch_scc1 %s' % Lo)
    dbg_arrive(a, R.sDBG, DB_BAD, vT)
    a('s_waitcnt vmcnt(0)')
    dbg_arrive(a, R.sDBG, DB_INIT, vT)
    a.label(Lo)
    init_wait(a, R.sDBG, cfg, vT, R.sSPIN, R.sT0)
    a.branch('s_branch SAFE_ENTRY')
    a.label('f_census_ok')
    head = a.text()
    gl0 = Asm.GL
    a = Asm()
    roles(a, cfg)
    fast = a.text()
    gl1 = Asm.GL
    cfg2 = dict(cfg); cfg2['safe'] = 1; cfg2['stamp'] = 0; cfg2['prof'] = 0; cfg2['tl'] = 0; cfg2['st3'] = 0; cfg2['st2'] = 0; cfg2['gprof'] = 0; cfg2['g2prof'] = 0
    SH = 128 * MB
    saved = (R.MX_OFF, R.QKX_OFF, R.OX_OFF, G1.XF_OFF, P.XF_OFF)
    R.MX_OFF += SH; R.QKX_OFF += SH; R.OX_OFF += SH; G1.XF_OFF += SH; P.XF_OFF += SH; R.SAFE[0] = True
    b = Asm()
    b('s_mov_b64 exec, -1')
    b('s_waitcnt vmcnt(0) lgkmcnt(0)')
    b('s_barrier')
    common_init(b)
    b('s_lshr_b32 s%d, s%d, 5' % (R.sRX, sGT))
    b('s_and_b32 s%d, s%d, 7' % (R.sRX, R.sRX))
    b('s_and_b32 s%d, s%d, 31' % (R.sI, sGT))
    b.fence()
    head2 = b.text()
    dbgbuild = any(cfg.get(k) for k in ('stamp', 'prof', 'tl', 'st3', 'st2', 'gprof', 'g2prof', 'dbgt'))
    if not dbgbuild: Asm.GL = gl0
    b = Asm()
    roles(b, cfg2)
    Asm.GL = max(Asm.GL, gl1)
    R.MX_OFF, R.QKX_OFF, R.OX_OFF, G1.XF_OFF, P.XF_OFF = saved; R.SAFE[0] = False
    safe = b.text()
    import difflib
    labels = set(re.findall(r'^([A-Za-z_][\w]*):', safe + fast, re.M))
    rx = re.compile(r'\b(' + '|'.join(sorted(labels, key=len, reverse=True)) + r')\b')
    fl = [rx.sub(lambda m: m.group(1) + '_\\sf', l.strip()) for l in fast.split('\n') if l.strip()]
    sl = [rx.sub(lambda m: m.group(1) + '_\\sf', l.strip()) for l in safe.split('\n') if l.strip()]
    out = ['.macro ROLES sf']
    if len(fl) == len(sl) or True:
        sm = difflib.SequenceMatcher(None, fl, sl, autojunk=False) if len(fl) != len(sl) else None
        if sm is None:
            ops = []
            i = 0
            while i < len(fl):
                j = i
                same = fl[i] == sl[i]
                while j < len(fl) and (fl[j] == sl[j]) == same: j += 1
                ops.append(('equal' if same else 'replace', i, j, i, j)); i = j
        else:
            ops = sm.get_opcodes()
        for tag, i1, i2, j1, j2 in ops:
            if tag == 'equal': out += fl[i1:i2]
            else:
                out.append('.if \\sf == 0'); out += fl[i1:i2]; out.append('.else'); out += sl[j1:j2]; out.append('.endif')
    out.append('.endm')
    return '\n'.join(out) + '\n' + head + 'ROLES 0\nSAFE_ENTRY:\n' + head2 + 'ROLES 1\n'
```

```python
from common import *
import rrole as R

sWS = 8
sT0, sT1, sT2, sT3, sC, sTASK = 45, 46, 47, 48, 65, 41
sMK = 80
NEG = 0xff7fffff

class AV:
    L16, L8, Dup, L16B = 2, 3, 4, 5
    T = 8
    MLO, MHI, FLO, NEGV = 6, 7, 14, 15
    Q = 16
    K = 48
    KM = 80
    V = 96
    VM = 128
    S = 136
    P = 156
    O = 16
    RC = 176

def attn_consts(a, cfg):
    A = AV
    a('v_and_b32 v1, 63, v0')
    a('v_lshlrev_b32 v%d, 4, v1' % A.L16)
    a('v_lshlrev_b32 v%d, 3, v1' % A.L8)
    a('v_add_u32 v%d, 0x1000, v%d' % (A.L16B, A.L16))
    a('v_lshrrev_b32 v%d, 4, v1' % A.T)
    a('v_and_b32 v%d, 7, v1' % (A.T + 1))
    a('v_lshl_add_u32 v%d, v%d, 3, v%d' % (A.Dup, A.T, A.T + 1))
    a('v_lshlrev_b32 v%d, 4, v%d' % (A.Dup, A.Dup))
    a('v_cmp_gt_u32 vcc, 32, v1')
    a('v_cndmask_b32 v%d, 0, -1, vcc' % A.MLO)
    a('v_cndmask_b32 v%d, -1, 0, vcc' % A.MHI)
    a('v_cndmask_b32 v%d, 0, 1.0, vcc' % A.FLO)
    a('v_mov_b32 v%d, 0x%x' % (A.NEGV, NEG))
    a('v_and_b32 v%d, 15, v1' % (A.T + 1))
    a('v_lshlrev_b32 v%d, 2, v%d' % (A.T, A.T))
    for i in range(4):
        a('v_add_u32 v%d, %d, v%d' % (A.T + 2, i, A.T))
        a('v_cmp_le_u32 s[%d:%d], v%d, v%d' % (sMK + 2 * i, sMK + 2 * i + 1, A.T + 2, A.T + 1))
    a('s_mov_b32 s%d, 0x%x' % (sC, cfg['cbits']))

def attn_task(a, cfg, ld_flags='', st_flags='', all_sc1=False, part=0):
    A = AV
    def ld(r, n, va, so, off, fl=''):
        if all_sc1: fl = ' sc1'
        a('buffer_load_dword%s %s, v%d, s[%d:%d], s%d offen offset:%d%s' % ('x%d' % n, vr(r, n), va, sWS, sWS + 3, so, off, fl))
    if part in (0, 1):
        a('s_lshl_b32 s%d, s%d, 13' % (sT0, sTASK))
        a('s_add_u32 s%d, s%d, 0x%x' % (sT1, sT0, KF_OFF))
        a('s_add_u32 s%d, s%d, 0x%x' % (sT2, sT0, VF_OFF))
        if QF_OFF: a('s_add_u32 s%d, s%d, 0x%x' % (sT0, sT0, QF_OFF))
        for n in range(8): ld(A.Q + 4 * n, 4, A.L16 if n < 4 else A.L16B, sT0, (n & 3) * 1024)
        for n in range(8): ld(A.K + 4 * n, 4, A.L16 if n < 4 else A.L16B, sT1, (n & 3) * 1024)
        for n in range(8): ld(A.V + 4 * n, 4, A.L16 if n < 4 else A.L16B, sT2, (n & 3) * 1024)
        if part == 1: return
    a('s_lshl_b32 s%d, s%d, 11' % (sT0, sTASK))
    a('s_add_u32 s%d, s%d, 0x%x' % (sT1, sT0, KM_OFF))
    a('s_add_u32 s%d, s%d, 0x%x' % (sT0, sT0, VM_OFF))
    for c in range(4): ld(A.KM + 4 * c, 4, A.Dup, sT1, c * 512, ld_flags)
    for j in range(4): ld(A.VM + 2 * j, 2, A.L8, sT0, j * 512, ld_flags)
    tiles = {(0, 0): A.S, (0, 2): A.S + 4, (1, 0): A.S + 8, (1, 1): A.S + 12, (1, 2): A.S + 16}
    a('s_waitcnt vmcnt(4)')
    for c in range(4):
        for (u, t), d in tiles.items():
            Aop = (A.K + 16 * t + 4 * c) if t < 2 else (A.KM + 4 * c)
            a('v_mfma_f32_16x16x32_bf16 %s, %s, %s, %s' % (vr(d, 4), vr(Aop, 4), vr(A.Q + 16 * u + 4 * c, 4), '0' if c == 0 else vr(d, 4)))
    a('s_lshr_b32 s%d, s%d, 5' % (sT0, sTASK))
    a('s_lshl_b32 s%d, s%d, 18' % (sT0, sT0))
    a('s_and_b32 s%d, s%d, 31' % (sT1, sTASK))
    a('s_lshl_b32 s%d, s%d, 12' % (sT1, sT1))
    a('s_add_u32 s%d, s%d, s%d' % (sT0, sT0, sT1))
    a('s_add_u32 s%d, s%d, 0x%x' % (sT0, sT0, OF_OFF))
    a('s_add_u32 s%d, s%d, 0x20000' % (sT1, sT0))
    for d in (tiles[(0, 0)], tiles[(1, 1)]):
        for i in range(4):
            a('v_cndmask_b32 v%d, v%d, v%d, s[%d:%d]' % (d + i, A.NEGV, d + i, sMK + 2 * i, sMK + 2 * i + 1))
    for u in range(2):
        regs = [tiles[k] + i for k in sorted(tiles) if k[0] == u for i in range(4)]
        m, t2 = A.T + 2 * u, A.T + 2 * u + 1
        a('v_max3_f32 v%d, v%d, v%d, v%d' % (m, regs[0], regs[1], regs[2]))
        k = 3
        while k + 1 < len(regs):
            a('v_max3_f32 v%d, v%d, v%d, v%d' % (m, m, regs[k], regs[k + 1])); k += 2
        if k < len(regs): a('v_max_f32 v%d, v%d, v%d' % (m, m, regs[k]))
    for sw in ('v_permlane16_swap_b32', 'v_permlane32_swap_b32'):
        for u in range(2): a('v_mov_b32 v%d, v%d' % (A.T + 2 * u + 1, A.T + 2 * u))
        for u in range(2): a('%s v%d, v%d' % (sw, A.T + 2 * u, A.T + 2 * u + 1))
        for u in range(2): a('v_max_f32 v%d, v%d, v%d' % (A.T + 2 * u, A.T + 2 * u, A.T + 2 * u + 1))
    for u in range(2): a('v_mul_f32 v%d, s%d, v%d' % (A.T + 2 * u, sC, A.T + 2 * u))
    for (u, t), d in tiles.items():
        for i in range(4): a('v_fma_f32 v%d, v%d, s%d, -v%d' % (d + i, d + i, sC, A.T + 2 * u))
    for (u, t), d in tiles.items():
        for i in range(4): a('v_exp_f32 v%d, v%d' % (d + i, d + i))
    for u in range(2):
        p = A.P + 10 * u
        d = tiles[(u, 0)]
        a('v_cvt_pk_bf16_f32 v%d, v%d, v%d' % (p, d, d + 1)); a('v_cvt_pk_bf16_f32 v%d, v%d, v%d' % (p + 1, d + 2, d + 3))
        if u == 0:
            a('v_mov_b32 v%d, 0' % (p + 2)); a('v_mov_b32 v%d, 0' % (p + 3))
        else:
            d = tiles[(1, 1)]
            a('v_cvt_pk_bf16_f32 v%d, v%d, v%d' % (p + 2, d, d + 1)); a('v_cvt_pk_bf16_f32 v%d, v%d, v%d' % (p + 3, d + 2, d + 3))
        d = tiles[(u, 2)]
        a('v_cvt_pk_bf16_f32 v%d, v%d, v%d' % (p + 4, d, d + 1)); a('v_cvt_pk_bf16_f32 v%d, v%d, v%d' % (p + 5, d + 2, d + 3))
        a('v_and_b32 v%d, v%d, v%d' % (p + 6, p + 4, A.MLO)); a('v_and_b32 v%d, v%d, v%d' % (p + 7, p + 5, A.MLO))
        a('v_and_b32 v%d, v%d, v%d' % (p + 8, p + 4, A.MHI)); a('v_and_b32 v%d, v%d, v%d' % (p + 9, p + 5, A.MHI))
    a('s_waitcnt vmcnt(0)')
    for u in range(2):
        sA, sB = A.T + 2 * u, A.T + 2 * u + 1
        d2 = tiles[(u, 2)]; d0 = tiles[(u, 0)]
        R.pk_add(a, d2, d2, d2 + 2); R.pk_add(a, d0, d0, d0 + 2)
        if u == 1:
            d1 = tiles[(1, 1)]
            R.pk_add(a, d1, d1, d1 + 2); R.pk_add(a, d0, d0, d1)
        a('v_add_f32 v%d, v%d, v%d' % (sB, d2, d2 + 1))
        a('v_add_f32 v%d, v%d, v%d' % (sA, d0, d0 + 1))
        a('v_fma_f32 v%d, v%d, v%d, v%d' % (sA, sB, A.FLO, sA))
    for u in range(2):
        p = A.P + 10 * u
        for et in range(8):
            o = A.O + 32 * u + 4 * et
            a('v_mfma_f32_16x16x32_bf16 %s, %s, %s, 0' % (vr(o, 4), vr(A.V + 4 * et, 4), vr(p, 4)))
            if u == 0 and et in (0, 3):
                sw = 'v_permlane16_swap_b32' if et == 0 else 'v_permlane32_swap_b32'
                for x in range(2): a('v_mov_b32 v%d, v%d' % (A.T + 2 * x + 1, A.T + 2 * x))
                for x in range(2): a('%s v%d, v%d' % (sw, A.T + 2 * x, A.T + 2 * x + 1))
                for x in range(2): a('v_add_f32 v%d, v%d, v%d' % (A.T + 2 * x, A.T + 2 * x, A.T + 2 * x + 1))
            if u == 0 and et == 6:
                for x in range(2):
                    a('v_rcp_f32 v%d, v%d' % (A.RC + 2 * x, A.T + 2 * x))
                for x in range(2):
                    a('v_mov_b32 v%d, v%d' % (A.RC + 2 * x + 1, A.RC + 2 * x))
        for et in range(8):
            o = A.O + 32 * u + 4 * et
            a('v_mfma_f32_16x16x16_bf16 %s, %s, %s, %s' % (vr(o, 4), vr(A.VM + 2 * (et >> 1), 2), vr(p + 6 + 2 * (et & 1), 2), vr(o, 4)))
    for u in range(2):
        for c in range(4):
            o = A.O + 32 * u + 8 * c
            for i in range(4):
                a('v_pk_mul_f32 v[%d:%d], v[%d:%d], v[%d:%d]' % (o + 2 * i, o + 2 * i + 1, o + 2 * i, o + 2 * i + 1, A.RC + 2 * u, A.RC + 2 * u + 1))
            for i in range(4):
                a('v_cvt_pk_bf16_f32 v%d, v%d, v%d' % (o + i, o + 2 * i, o + 2 * i + 1))
            a('buffer_store_dwordx4 %s, v%d, s[%d:%d], s%d offen offset:%d%s' % (vr(o, 4), A.L16, sWS, sWS + 3, sT0 + u, c * 1024, st_flags))

def gen_attn_kernel(name, cfg):
    a = Asm()
    a.raw(kernel_header(name))
    a('s_cmp_ge_u32 s2, 512')
    a('s_cbranch_scc1 at_exit')
    build_srds(a, dict(ws=sWS))
    attn_consts(a, cfg)
    a('v_lshrrev_b32 v%d, 6, v0' % AV.T)
    a('v_readfirstlane_b32 s%d, v%d' % (sT0, AV.T))
    a('s_lshl_b32 s%d, s2, 2' % sTASK)
    a('s_add_u32 s%d, s%d, s%d' % (sTASK, sTASK, sT0))
    attn_task(a, cfg)
    a.label('at_exit')
    a('s_endpgm')
    return a.text()

sWO, sX, sOUT = 12, 16, 20
sI, sW, sTILE, sTEND, sTSTEP, sOO, sN, sIDX0, sIDX1 = 41, 42, 43, 44, 49, 50, 51, 52, 53
class OV:
    L, L16, L16B, XA, GA = 1, 2, 3, 4, 5
    T = 8
    TR = 12
    B = 16
    AC = 144
    XR = 152
    G = 160
    RD = 164
    E = 188
LDSO = 0

def wof(q, tau, p): return 64 * q + (tau * 8 + p) * 4

def out_load_weights(a, nq=4):
    O = OV
    a('v_lshrrev_b32 v%d, 2, v%d' % (O.T, O.L))
    a('v_and_b32 v%d, 3, v%d' % (O.T + 1, O.L))
    a('v_lshlrev_b32 v%d, 4, v%d' % (O.T + 1, O.T + 1))
    a('v_lshl_add_u32 v%d, v%d, 11, v%d' % (O.T + 3, O.T, O.T + 1))
    a('s_lshl_b32 s%d, s%d, 21' % (sT0, sW))
    a('s_lshl_b32 s%d, s%d, 6' % (sT1, sI))
    a('s_add_u32 s%d, s%d, s%d' % (sT0, sT0, sT1))
    for n in range(16 * nq):
        a('buffer_load_dwordx4 a[%d:%d], v%d, s[%d:%d], s%d offen' % (4 * n, 4 * n + 3, O.T + 3, sWO, sWO + 3, sT0))
        if n < 16 * nq - 1: a('s_add_u32 s%d, s%d, 0x8000' % (sT0, sT0))
    if nq < 4:
        import modloop
        modloop.wo_tr(a, 2)
    a('s_lshl_b32 s%d, s%d, 14' % (sT0, sW))
    a('v_add_u32 v%d, s%d, v%d' % (O.TR, sT0, O.L16))
    a('v_lshrrev_b32 v%d, 4, v%d' % (O.T, O.L))
    a('v_bfe_u32 v%d, v%d, 2, 2' % (O.T + 1, O.L))
    a('v_and_b32 v%d, 3, v%d' % (O.T + 2, O.L))
    a('v_lshl_add_u32 v%d, v%d, 2, v%d' % (O.T + 3, O.T, O.T + 1))
    a('v_lshlrev_b32 v%d, 6, v%d' % (O.T + 3, O.T + 3))
    a('v_lshl_add_u32 v%d, v%d, 4, v%d' % (O.T + 3, O.T + 2, O.T + 3))
    a('v_add_u32 v%d, s%d, v%d' % (O.TR + 1, sT0, O.T + 3))
    for q in range(nq):
        a('s_waitcnt vmcnt(%d)' % (16 * (nq - 1) - 16 * q))
        for n in range(16):
            a('ds_write_b128 v%d, a[%d:%d] offset:%d' % (O.TR, 64 * q + 4 * n, 64 * q + 4 * n + 3, n * 1024))
        a('s_waitcnt lgkmcnt(0)')
        for tau in range(2):
            for p in range(8):
                for half in range(2):
                    r = wof(q, tau, p) + 2 * half
                    a('ds_read_b64_tr_b16 a[%d:%d], v%d offset:%d' % (r, r + 1, O.TR + 1, (32 * p + 16 * half) * 64 + tau * 8))
        a('s_waitcnt lgkmcnt(0)')

def oloads(q, so, fl=''):
    O = OV
    return ['buffer_load_dwordx4 v[%d:%d], v%d, s[%d:%d], s%d offen offset:%d%s' % (O.B + 32 * q + 4 * p, O.B + 32 * q + 4 * p + 3, O.L16 if p < 4 else O.L16B, sWS, sWS + 3, so, (p & 3) * 1024, fl) for p in range(8)]

def epilogue(a, par, tile_s=None, fused=False, lds=True):
    O = OV
    for wv in range(4 if lds else 0):
        for tau in range(2):
            r = O.E + wv * 8 + tau * 4
            a('ds_read_b128 v[%d:%d], v%d offset:%d' % (r, r + 3, O.L16, LDSO + par * 8192 + wv * 2048 + tau * 1024))
    if lds: a('s_waitcnt lgkmcnt(0)')
    for x in range(0, 8, 2):
        R.pk_add(a, O.E + x, O.E + x, O.E + 8 + x); R.pk_add(a, O.E + 16 + x, O.E + 16 + x, O.E + 24 + x)
    for x in range(0, 8, 2):
        R.pk_add(a, O.E + x, O.E + x, O.E + 16 + x)
    for i in range(4): a('v_cvt_pk_bf16_f32 v%d, v%d, v%d' % (O.E + 8 + i, O.E + 2 * i, O.E + 2 * i + 1))
    for i in range(4):
        a('v_lshlrev_b32 v%d, 16, v%d' % (O.E + 2 * i, O.E + 8 + i))
        a('v_and_b32 v%d, 0xffff0000, v%d' % (O.E + 2 * i + 1, O.E + 8 + i))
    xr = O.XR + 4 * par; g = O.G + par
    if lds: a('s_waitcnt vmcnt(34)')
    for i in range(4):
        a('v_lshlrev_b32 v%d, 16, v%d' % (O.E + 16 + 2 * i, xr + i))
        a('v_and_b32 v%d, 0xffff0000, v%d' % (O.E + 17 + 2 * i, xr + i))
    if tile_s is None: a('s_sub_u32 s%d, s%d, s%d' % (sT0, sTILE, sTSTEP))
    else: a('s_mov_b32 s%d, s%d' % (sT0, tile_s))
    Lskip = a.newlabel('nomod')
    a('s_lshr_b32 s%d, s%d, 4' % (sT1, sIDX0))
    a('s_lshr_b32 s%d, s%d, 4' % (sT2, sIDX1))
    a('s_cmp_eq_u32 s%d, s%d' % (sT1, sT0))
    a('s_cselect_b32 s%d, 1, 0' % sT3)
    a('s_cmp_eq_u32 s%d, s%d' % (sT2, sT0))
    a('s_cselect_b32 s%d, 1, s%d' % (sT3, sT3))
    a('s_cmp_eq_u32 s%d, 0' % sT3)
    a.branch('s_cbranch_scc1 %s' % Lskip)
    a('v_and_b32 v%d, 15, v%d' % (O.E + 24, O.L))
    a('s_lshl_b32 s%d, s%d, 4' % (sT1, sT0))
    a('v_add_u32 v%d, s%d, v%d' % (O.E + 24, sT1, O.E + 24))
    a('v_lshrrev_b32 v%d, 4, v%d' % (O.E + 25, O.L))
    a('v_lshlrev_b32 v%d, 5, v%d' % (O.E + 25, O.E + 25))
    for c in range(2):
        Lc = a.newlabel('modc')
        a('v_cmp_eq_u32 vcc, s%d, v%d' % (sIDX0 + c, O.E + 24))
        a('s_and_saveexec_b64 s[90:91], vcc')
        a.branch('s_cbranch_execz %s' % Lc)
        a('s_lshl_b32 s%d, s%d, 7' % (sT1, sI))
        a('s_add_u32 s%d, s%d, 0x%x' % (sT1, sT1, YP_OFF + c * 4096))
        for i in range(8): a('v_mov_b32 v%d, 0' % (O.RD + 16 + i))
        for sp in range(7):
            a('buffer_load_dwordx4 v[%d:%d], v%d, s[%d:%d], s%d offen sc1' % (O.RD, O.RD + 3, O.E + 25, sWS, sWS + 3, sT1))
            a('buffer_load_dwordx4 v[%d:%d], v%d, s[%d:%d], s%d offen offset:16 sc1' % (O.RD + 4, O.RD + 7, O.E + 25, sWS, sWS + 3, sT1))
            a('s_add_u32 s%d, s%d, 8192' % (sT1, sT1))
            a('s_waitcnt vmcnt(0)')
            for x in range(0, 8, 2): R.pk_add(a, O.RD + 16 + x, O.RD + 16 + x, O.RD + x)
        a('s_mov_b32 s%d, 0x%x' % (sT1, IDX_OFF + 8 + 4 * c))
        a('v_mov_b32 v%d, 0' % (O.RD + 8))
        a('buffer_load_dword v%d, v%d, s[%d:%d], s%d offen sc1' % (O.RD + 9, O.RD + 8, sWS, sWS + 3, sT1))
        def rnd(base):
            for i in range(4):
                a('v_cvt_pk_bf16_f32 v%d, v%d, v%d' % (O.RD + i, base + 2 * i, base + 2 * i + 1))
            for i in range(4):
                a('v_lshlrev_b32 v%d, 16, v%d' % (base + 2 * i, O.RD + i))
                a('v_and_b32 v%d, 0xffff0000, v%d' % (base + 2 * i + 1, O.RD + i))
        rnd(O.RD + 16)
        a('s_waitcnt vmcnt(0)')
        for i in range(8): a('v_mul_f32 v%d, v%d, v%d' % (O.RD + 16 + i, O.RD + 16 + i, O.RD + 9))
        rnd(O.RD + 16)
        for i in range(8): a('v_add_f32 v%d, v%d, v%d' % (O.E + 16 + i, O.E + 16 + i, O.RD + 16 + i))
        rnd(O.E + 16)
        a.label(Lc)
        a('s_mov_b64 exec, s[90:91]')
    a.label(Lskip)
    a('v_sub_f32 v%d, 1.0, v%d' % (O.E + 24, g))
    a('v_cvt_pk_bf16_f32 v%d, v%d, v%d' % (O.E + 24, O.E + 24, O.E + 24))
    a('v_and_b32 v%d, 0xffff0000, v%d' % (O.E + 24, O.E + 24))
    for i in range(8): a('v_mul_f32 v%d, v%d, v%d' % (O.E + 16 + i, O.E + 16 + i, O.E + 24))
    for i in range(8): a('v_fma_f32 v%d, v%d, v%d, v%d' % (O.E + i, O.E + i, g, O.E + 16 + i))
    for i in range(4): a('v_cvt_pk_bf16_f32 v%d, v%d, v%d' % (O.E + 8 + i, O.E + 2 * i, O.E + 2 * i + 1))
    a('s_lshl_b32 s%d, s%d, 15' % (sT0, sT0))
    a('s_lshl_b32 s%d, s%d, 6' % (sT1, sI))
    a('s_add_u32 s%d, s%d, s%d' % (sT0, sT0, sT1))
    a('buffer_store_dwordx4 v[%d:%d], v%d, s[%d:%d], s%d offen' % (O.E + 8, O.E + 11, O.XA, sOUT, sOUT + 3, sT0))

def tile_body(a, par, cfg):
    O = OV
    a('s_lshl_b32 s%d, s%d, 15' % (sT0, sTILE))
    a('s_lshl_b32 s%d, s%d, 6' % (sT1, sI))
    a('s_add_u32 s%d, s%d, s%d' % (sT0, sT0, sT1))
    a('buffer_load_dwordx4 v[%d:%d], v%d, s[%d:%d], s%d offen' % (O.XR + 4 * par, O.XR + 4 * par + 3, O.XA, sX, sX + 3, sT0))
    a('s_lshl_b32 s%d, s%d, 6' % (sT0, sTILE))
    a('s_add_u32 s%d, s%d, 0x%x' % (sT0, sT0, GL_OFF))
    a('buffer_load_dword v%d, v%d, s[%d:%d], s%d offen' % (O.G + par, O.GA, sWS, sWS + 3, sT0))
    Ls = a.newlabel('noepi')
    a('s_cmp_eq_u32 s%d, 0' % sN)
    a('s_cbranch_scc1 %s' % Ls)
    a('s_and_b32 s%d, s%d, 3' % (sT0, sN))
    a('s_cmp_lg_u32 s%d, s%d' % (sT0, sW))
    a.branch('s_cbranch_scc1 %s' % Ls)
    epilogue(a, 1 - par)
    a.label(Ls)
    a('s_lshl_b32 s%d, s%d, 17' % (sT3, sTSTEP))
    a('s_add_u32 s%d, s%d, s%d' % (sOO, sOO, sT3))
    for q in range(4):
        a('s_waitcnt vmcnt(26)')
        for p in range(8):
            for tau in range(2):
                c = '0' if (q == 0 and p == 0) else vr(O.AC + 4 * tau, 4)
                a('v_mfma_f32_16x16x32_bf16 %s, %s, %s, %s' % (vr(O.AC + 4 * tau, 4), ar(wof(q, tau, p), 4), vr(O.B + 32 * q + 4 * p, 4), c))
        a('s_add_u32 s%d, s%d, %d' % (sT0, sOO, q * 8192))
        for x in oloads(q, sT0): a(x)
    a('s_lshl_b32 s%d, s%d, 11' % (sT0, sW))
    a('v_add_u32 v%d, s%d, v%d' % (O.T, sT0, O.L16))
    for tau in range(2):
        a('ds_write_b128 v%d, v[%d:%d] offset:%d' % (O.T, O.AC + 4 * tau, O.AC + 4 * tau + 3, LDSO + par * 8192 + tau * 1024))
    a('s_waitcnt lgkmcnt(0)')
    a('s_barrier')
    a('s_add_u32 s%d, s%d, s%d' % (sTILE, sTILE, sTSTEP))
    a('s_add_u32 s%d, s%d, 1' % (sN, sN))

def gen_out_kernel(name, cfg):
    O = OV
    a = Asm()
    a.raw(kernel_header(name))
    a('s_cmp_ge_u32 s2, 256')
    a('s_cbranch_scc1 out_exit')
    build_srds(a, dict(ws=sWS, wo=sWO, x=sX, out=sOUT))
    a('v_and_b32 v%d, 63, v0' % O.L)
    a('v_lshlrev_b32 v%d, 4, v%d' % (O.L16, O.L))
    a('v_add_u32 v%d, 0x1000, v%d' % (O.L16B, O.L16))
    a('v_lshrrev_b32 v%d, 6, v0' % O.T)
    a('v_readfirstlane_b32 s%d, v%d' % (sW, O.T))
    a('v_and_b32 v%d, 15, v%d' % (O.T, O.L))
    a('v_lshlrev_b32 v%d, 2, v%d' % (O.GA, O.T))
    a('v_lshrrev_b32 v%d, 4, v%d' % (O.T + 1, O.L))
    a('v_lshlrev_b32 v%d, 4, v%d' % (O.T + 1, O.T + 1))
    a('v_lshl_add_u32 v%d, v%d, 11, v%d' % (O.XA, O.T, O.T + 1))
    a('s_lshr_b32 s%d, s2, 3' % sI)
    a('s_and_b32 s%d, s2, 7' % sTILE)
    a('s_mov_b32 s%d, 8' % sTSTEP)
    a('s_mov_b32 s%d, 0' % sN)
    a('v_mov_b32 v%d, 0' % O.T)
    a('s_mov_b32 s%d, 0x%x' % (sT0, IDX_OFF))
    a('buffer_load_dwordx2 v[%d:%d], v%d, s[%d:%d], s%d offen' % (O.E, O.E + 1, O.T, sWS, sWS + 3, sT0))
    a('s_waitcnt vmcnt(0)')
    a('v_readfirstlane_b32 s%d, v%d' % (sIDX0, O.E))
    a('v_readfirstlane_b32 s%d, v%d' % (sIDX1, O.E + 1))
    out_load_weights(a)
    a('s_barrier')
    a('s_lshl_b32 s%d, s%d, 17' % (sOO, sTILE))
    a('s_lshl_b32 s%d, s%d, 15' % (sT0, sW))
    a('s_add_u32 s%d, s%d, s%d' % (sOO, sOO, sT0))
    a('s_add_u32 s%d, s%d, 0x%x' % (sOO, sOO, OF_OFF))
    for q in range(4):
        a('s_add_u32 s%d, s%d, %d' % (sT0, sOO, q * 8192))
        for x in oloads(q, sT0): a(x)
    a.label('out_loop')
    tile_body(a, 0, cfg)
    tile_body(a, 1, cfg)
    a('s_cmp_lt_u32 s%d, 16' % sN)
    a.branch('s_cbranch_scc1 out_loop')
    a('s_cmp_lg_u32 s%d, 0' % sW)
    a.branch('s_cbranch_scc1 out_exit')
    a('s_waitcnt vmcnt(0)')
    epilogue(a, 1)
    a.label('out_exit')
    a('s_endpgm')
    return a.text()

def out_consts(a):
    O = OV
    a('v_and_b32 v%d, 63, v0' % O.L)
    a('v_lshlrev_b32 v%d, 4, v%d' % (O.L16, O.L))
    a('v_add_u32 v%d, 0x1000, v%d' % (O.L16B, O.L16))
    a('v_and_b32 v%d, 15, v%d' % (O.T, O.L))
    a('v_lshlrev_b32 v%d, 2, v%d' % (O.GA, O.T))
    a('v_lshrrev_b32 v%d, 4, v%d' % (O.T + 1, O.L))
    a('v_lshlrev_b32 v%d, 4, v%d' % (O.T + 1, O.T + 1))
    a('v_lshl_add_u32 v%d, v%d, 11, v%d' % (O.XA, O.T, O.T + 1))

sPT, sNB = 56, 57
def wo_tile(a, par, pf=True):
    O = OV
    a('s_lshl_b32 s%d, s%d, 15' % (sT0, sTILE))
    a('s_lshl_b32 s%d, s%d, 6' % (sT1, sI))
    a('s_add_u32 s%d, s%d, s%d' % (sT0, sT0, sT1))
    a('buffer_load_dwordx4 v[%d:%d], v%d, s[%d:%d], s%d offen' % (O.XR + 4 * par, O.XR + 4 * par + 3, O.XA, sX, sX + 3, sT0))
    a('s_lshl_b32 s%d, s%d, 6' % (sT0, sTILE))
    a('s_add_u32 s%d, s%d, 0x%x' % (sT0, sT0, GL_OFF))
    a('buffer_load_dword v%d, v%d, s[%d:%d], s%d offen sc1' % (O.G + par, O.GA, sWS, sWS + 3, sT0))
    Ls = a.newlabel('noepi')
    a('s_cmp_eq_u32 s%d, 0' % sN)
    a('s_cbranch_scc1 %s' % Ls)
    a('s_and_b32 s%d, s%d, 3' % (sT0, sN))
    a('s_cmp_lg_u32 s%d, s%d' % (sT0, sW))
    a.branch('s_cbranch_scc1 %s' % Ls)
    epilogue(a, 1 - par, sPT, True)
    a.label(Ls)
    a('s_add_u32 s%d, s%d, 0x%x' % (sOO, sOO, 0x20000 * (1 if par == 0 else 7)))
    for q in range(4):
        a('s_waitcnt vmcnt(%d)' % (26 if pf else 26 - 8 * q))
        for p in range(8):
            for tau in range(2):
                c = '0' if (q == 0 and p == 0) else vr(O.AC + 4 * tau, 4)
                a('v_mfma_f32_16x16x32_bf16 %s, %s, %s, %s' % (vr(O.AC + 4 * tau, 4), ar(wof(q, tau, p), 4), vr(O.B + 32 * q + 4 * p, 4), c))
        if pf:
            a('s_add_u32 s%d, s%d, %d' % (sT0, sOO, q * 8192))
            for x in oloads(q, sT0, ' sc1'): a(x)
    for tau in range(2):
        a('ds_write_b128 v%d, v[%d:%d] offset:%d' % (O.T, O.AC + 4 * tau, O.AC + 4 * tau + 3, LDSO + par * 8192 + tau * 1024))
    a('s_waitcnt lgkmcnt(0)')
    a('s_barrier')
    a('s_mov_b32 s%d, s%d' % (sPT, sTILE))
    a('s_add_u32 s%d, s%d, %d' % (sTILE, sTILE, 1 if par == 0 else 7))
    a('s_add_u32 s%d, s%d, 1' % (sN, sN))

def wo_batch(a, cfg):
    O = OV
    out_consts(a)
    a('s_mov_b32 s%d, 0' % sN)
    a('s_lshl_b32 s%d, s%d, 17' % (sOO, sTILE))
    a('s_lshl_b32 s%d, s%d, 15' % (sT0, sW))
    a('s_add_u32 s%d, s%d, s%d' % (sOO, sOO, sT0))
    a('s_add_u32 s%d, s%d, 0x%x' % (sOO, sOO, OF_OFF))
    for q in range(4):
        a('s_add_u32 s%d, s%d, %d' % (sT0, sOO, q * 8192))
        for x in oloads(q, sT0, ' sc1'): a(x)
    a('s_lshl_b32 s%d, s%d, 11' % (sT0, sW))
    a('v_add_u32 v%d, s%d, v%d' % (O.T, sT0, O.L16))
    L = a.newlabel('wob')
    a.label(L)
    Ll = a.newlabel('wol')
    wo_tile(a, 0)
    a('s_sub_u32 s%d, s%d, 1' % (sNB, sNB))
    a('s_cmp_eq_u32 s%d, 0' % sNB)
    a.branch('s_cbranch_scc1 %s' % Ll)
    wo_tile(a, 1)
    a.branch('s_branch %s' % L)
    a.label(Ll)
    wo_tile(a, 1, pf=False)
    Ls = a.newlabel('noepi')
    a('s_cmp_lg_u32 s%d, 3' % sW)
    a.branch('s_cbranch_scc1 %s' % Ls)
    a('s_waitcnt vmcnt(0)')
    epilogue(a, 1, sPT, True)
    a.label(Ls)

sKQ, sCG, sC32, sSLOT_, sPWO, sNT, sTN = 60, 61, 62, 63, 64, 49, 59
def wo2_load_weights(a):
    global sW, sI
    sw, si = sW, sI
    a('s_lshr_b32 s%d, s%d, 3' % (sKQ, si))
    a('s_and_b32 s%d, s%d, 7' % (sCG, si))
    a('s_lshl_b32 s%d, s%d, 2' % (sC32, sCG))
    a('s_add_u32 s%d, s%d, s%d' % (sC32, sC32, sw))
    O = OV
    a('v_lshrrev_b32 v%d, 2, v%d' % (O.T, O.L))
    a('v_and_b32 v%d, 3, v%d' % (O.T + 1, O.L))
    a('v_lshlrev_b32 v%d, 4, v%d' % (O.T + 1, O.T + 1))
    a('v_lshl_add_u32 v%d, v%d, 11, v%d' % (O.T + 3, O.T, O.T + 1))
    a('s_lshl_b32 s%d, s%d, 21' % (sT0, sKQ))
    a('s_lshl_b32 s%d, s%d, 6' % (sT1, sC32))
    a('s_add_u32 s%d, s%d, s%d' % (sT0, sT0, sT1))
    for n in range(64):
        a('buffer_load_dwordx4 a[%d:%d], v%d, s[%d:%d], s%d offen' % (4 * n, 4 * n + 3, O.T + 3, sWO, sWO + 3, sT0))
        if n < 63: a('s_add_u32 s%d, s%d, 0x8000' % (sT0, sT0))
    a('s_lshl_b32 s%d, s%d, 14' % (sT0, sw))
    a('v_add_u32 v%d, s%d, v%d' % (O.TR, sT0, O.L16))
    a('v_lshrrev_b32 v%d, 4, v%d' % (O.T, O.L))
    a('v_bfe_u32 v%d, v%d, 2, 2' % (O.T + 1, O.L))
    a('v_and_b32 v%d, 3, v%d' % (O.T + 2, O.L))
    a('v_lshl_add_u32 v%d, v%d, 2, v%d' % (O.T + 3, O.T, O.T + 1))
    a('v_lshlrev_b32 v%d, 6, v%d' % (O.T + 3, O.T + 3))
    a('v_lshl_add_u32 v%d, v%d, 4, v%d' % (O.T + 3, O.T + 2, O.T + 3))
    a('v_add_u32 v%d, s%d, v%d' % (O.TR + 1, sT0, O.T + 3))
    for q in range(4):
        a('s_waitcnt vmcnt(%d)' % (48 - 16 * q))
        for n in range(16):
            a('ds_write_b128 v%d, a[%d:%d] offset:%d' % (O.TR, 64 * q + 4 * n, 64 * q + 4 * n + 3, n * 1024))
        a('s_waitcnt lgkmcnt(0)')
        for tau in range(2):
            for p in range(8):
                for half in range(2):
                    r = wof(q, tau, p) + 2 * half
                    a('ds_read_b64_tr_b16 a[%d:%d], v%d offset:%d' % (r, r + 1, O.TR + 1, (32 * p + 16 * half) * 64 + tau * 8))
        a('s_waitcnt lgkmcnt(0)')

def tile_of(a, dst, n_s, sGX):
    a('s_lshr_b32 s%d, s%d, 1' % (dst, n_s))
    a('s_lshl_b32 s%d, s%d, 2' % (dst, dst))
    a('s_add_u32 s%d, s%d, s%d' % (dst, dst, sGX))
    a('s_lshl_b32 s%d, s%d, 1' % (dst, dst))
    a('s_and_b32 s%d, s%d, 1' % (sT3, n_s))
    a('s_add_u32 s%d, s%d, s%d' % (dst, dst, sT3))

sDA, sDL = 74, 75
def wo2_dma_setup(a, n_s, slot_s, sGX):
    tile_of(a, sDA, n_s, sGX)
    a('s_lshl_b32 s%d, s%d, 17' % (sDA, sDA))
    a('s_lshl_b32 s%d, s%d, 15' % (sT1, sKQ))
    a('s_add_u32 s%d, s%d, s%d' % (sDA, sDA, sT1))
    a('s_lshl_b32 s%d, s%d, 13' % (sT1, sW))
    a('s_add_u32 s%d, s%d, s%d' % (sDA, sDA, sT1))
    a('s_add_u32 s%d, s%d, 0x%x' % (sDA, sDA, OF_OFF))
    a('s_lshl_b32 s%d, s%d, 15' % (sDL, slot_s))
    a('s_add_u32 s%d, s%d, s%d' % (sDL, sDL, sT1))

def wo2_dma_one(a, p):
    O = OV
    if p == 0: a('s_mov_b32 m0, s%d' % sDL)
    if p == 4:
        a('s_add_u32 m0, s%d, 4096' % sDL)
        a('s_add_u32 s%d, s%d, 4096' % (sDA, sDA))
    a('buffer_load_dwordx4 v%d, s[%d:%d], s%d offen offset:%d sc1 lds' % (O.L16, sWS, sWS + 3, sDA, (p & 3) * 1024))

def wo2_dma(a, n_s, slot_s, sGX):
    wo2_dma_setup(a, n_s, slot_s, sGX)
    for p in range(8): wo2_dma_one(a, p)

def wo2_batch(a, cfg, sGX, sNW, sSP):
    O = OV
    safe = ' sc1' if cfg.get('safe') else ''
    out_consts(a)
    sN0 = sPT
    a('s_mov_b32 s%d, s%d' % (sN0, sTN))
    a('s_mov_b32 s%d, 0' % sSLOT_)
    wo2_dma(a, sTN, sSLOT_, sGX)
    a('s_add_u32 s%d, s%d, 1' % (sOO, sTN))
    a('s_mov_b32 s%d, 1' % sN)
    wo2_dma(a, sOO, sN, sGX)
    a('s_lshl_b32 s%d, s%d, 23' % (sPWO, sGX))
    a('s_lshl_b32 s%d, s%d, 16' % (sT0, sKQ))
    a('s_add_u32 s%d, s%d, s%d' % (sPWO, sPWO, sT0))
    a('s_lshl_b32 s%d, s%d, 11' % (sT0, sC32))
    a('s_add_u32 s%d, s%d, s%d' % (sPWO, sPWO, sT0))
    a('s_add_u32 s%d, s%d, 0x%x' % (sPWO, sPWO, PW_OFF))
    a('s_waitcnt vmcnt(8)')
    L = a.newlabel('w2l'); Lnd = a.newlabel('w2nd'); Lj = a.newlabel('w2j')
    a.label(L)
    a('s_barrier')
    a('s_lshl_b32 s%d, s%d, 15' % (sT0, sSLOT_))
    a('v_add_u32 v%d, s%d, v%d' % (O.T, sT0, O.L16))
    NPRE = 8
    def rd(k): a('ds_read_b128 v[%d:%d], v%d offset:%d' % (O.B + 4 * (k % 16), O.B + 4 * (k % 16) + 3, O.T, k * 1024))
    for k in range(NPRE): rd(k)
    a('s_add_u32 s%d, s%d, 2' % (sOO, sTN))
    a('s_sub_u32 s%d, s%d, 1' % (sT0, sNT))
    a('s_min_u32 s%d, s%d, s%d' % (sOO, sOO, sT0))
    a('s_add_u32 s%d, s%d, 2' % (sN, sSLOT_))
    a('s_cmp_ge_u32 s%d, 3' % sN)
    a('s_cselect_b32 s%d, 3, 0' % sT0)
    a('s_sub_u32 s%d, s%d, s%d' % (sN, sN, sT0))
    wo2_dma_setup(a, sOO, sN, sGX)
    a('s_and_b32 s%d, s%d, %d' % (sT0, sTN, cfg.get('pwmask', 31)))
    a('s_lshl_b32 s%d, s%d, 18' % (sT0, sT0))
    a('s_add_u32 s%d, s%d, s%d' % (sT0, sT0, sPWO))
    for k in range(32):
        a('s_waitcnt lgkmcnt(%d)' % min(NPRE - 1, 31 - k))
        for tau in range(2):
            c = '0' if k == 0 else vr(O.AC + 4 * tau, 4)
            a('v_mfma_f32_16x16x32_bf16 %s, %s, %s, %s' % (vr(O.AC + 4 * tau, 4), ar(wof(k >> 3, tau, k & 7), 4), vr(O.B + 4 * (k % 16), 4), c))
            if tau == 0 and k + NPRE < 32: rd(k + NPRE)
            if tau == 1 and k % 3 == 1 and k // 3 < 8: wo2_dma_one(a, k // 3)
    a('s_add_u32 s%d, s%d, 1' % (sTN, sTN))
    a('s_add_u32 s%d, s%d, 1' % (sSLOT_, sSLOT_))
    a('s_cmp_ge_u32 s%d, 3' % sSLOT_)
    a('s_cselect_b32 s%d, 0, s%d' % (sSLOT_, sSLOT_))
    for tau in range(2):
        a('buffer_store_dwordx4 v[%d:%d], v%d, s[%d:%d], s%d offen offset:%d%s' % (O.AC + 4 * tau, O.AC + 4 * tau + 3, O.L16, sWS, sWS + 3, sT0, tau * 1024, safe))
    a('s_cmp_ge_u32 s%d, s%d' % (sTN, sNT))
    a('s_cbranch_scc1 %s' % Lj)
    a('s_waitcnt vmcnt(10)')
    a.branch('s_branch %s' % L)
    a.label(Lj)
    a('s_waitcnt vmcnt(0)')
    a('s_barrier')
    import fused
    fused.g2mark(a, cfg, 7)
    a('s_lshl_b32 s%d, s%d, 3' % (sT0, sGX))
    a('s_add_u32 s%d, s%d, s%d' % (sT0, sT0, sCG))
    a('s_lshl_b32 s%d, s%d, 7' % (sT0, sT0))
    a('s_add_u32 s%d, s%d, 0x%x' % (sOO, sT0, WP_OFF))
    Lp = a.newlabel('w2p')
    a('s_cmp_lg_u32 s%d, 0' % sW)
    a.branch('s_cbranch_scc1 %s' % Lp)
    a('s_lshl_b32 s%d, s%d, 2' % (sT0, sKQ))
    a('v_mov_b32 v%d, s%d' % (O.T + 1, sT0))
    a('v_mov_b32 v%d, s%d' % (O.T + 2, sNT))
    a('s_mov_b64 exec, 1')
    a('buffer_store_dword v%d, v%d, s[%d:%d], s%d offen%s' % (O.T + 2, O.T + 1, sWS, sWS + 3, sOO, safe))
    a('s_mov_b64 exec, -1')
    a.label(Lp)
    a('s_add_u32 s%d, s%d, s%d' % (sTN, sN0, sW))
    Lf = a.newlabel('w2f'); Le = a.newlabel('w2e'); Lq = a.newlabel('w2q'); Lqd = a.newlabel('w2qd')
    a('s_cmp_ge_u32 s%d, s%d' % (sTN, sNT))
    a.branch('s_cbranch_scc1 %s' % Le)
    global sI
    si_save = sI
    sFC = sSLOT_
    a('s_lshl_b32 s%d, s%d, 2' % (sFC, sCG))
    a('s_add_u32 s%d, s%d, s%d' % (sFC, sFC, sKQ))
    def xg(n_s, par):
        tile_of(a, sT2, n_s, sGX)
        a('s_lshl_b32 s%d, s%d, 15' % (sT0, sT2))
        a('s_lshl_b32 s%d, s%d, 6' % (sT1, sFC))
        a('s_add_u32 s%d, s%d, s%d' % (sT0, sT0, sT1))
        a('buffer_load_dwordx4 v[%d:%d], v%d, s[%d:%d], s%d offen' % (O.XR + 4 * par, O.XR + 4 * par + 3, O.XA, sX, sX + 3, sT0))
        a('s_lshl_b32 s%d, s%d, 6' % (sT0, sT2))
        a('s_add_u32 s%d, s%d, 0x%x' % (sT0, sT0, GL_OFF))
        a('buffer_load_dword v%d, v%d, s[%d:%d], s%d offen sc1' % (O.G + par, O.GA, sWS, sWS + 3, sT0))
    xg(sTN, 0)
    a('s_add_u32 s%d, s%d, 4' % (sN, sTN))
    xg(sN, 1)
    a('v_mov_b32 v%d, 0' % (O.T + 1))
    a.label(Lq)
    a('buffer_load_dwordx4 v[%d:%d], v%d, s[%d:%d], s%d offen sc1' % (O.T + 4, O.T + 7, O.T + 1, sWS, sWS + 3, sOO))
    a('s_waitcnt vmcnt(0)')
    a('v_min3_u32 v%d, v%d, v%d, v%d' % (O.T + 4, O.T + 4, O.T + 5, O.T + 6))
    a('v_min_u32 v%d, v%d, v%d' % (O.T + 4, O.T + 4, O.T + 7))
    a('v_cmp_gt_u32 vcc, s%d, v%d' % (sNT, O.T + 4))
    a('s_cbranch_vccz %s' % Lqd)
    a('s_sleep 1')
    a('s_add_u32 s%d, s%d, 1' % (sSP, sSP))
    a('s_cmp_lt_u32 s%d, 0x%x' % (sSP, SPIN_LIMIT))
    a('s_cbranch_scc1 %s' % Lq)
    a.label(Lqd)
    fused.g2mark(a, cfg, 6)
    for par in range(2):
        tile_of(a, sTILE, sTN, sGX)
        a('s_lshl_b32 s%d, s%d, 23' % (sT0, sGX))
        a('s_and_b32 s%d, s%d, %d' % (sT1, sTN, cfg.get('pwmask', 31)))
        a('s_lshl_b32 s%d, s%d, 18' % (sT1, sT1))
        a('s_add_u32 s%d, s%d, s%d' % (sT0, sT0, sT1))
        a('s_lshl_b32 s%d, s%d, 11' % (sT1, sFC))
        a('s_add_u32 s%d, s%d, s%d' % (sT0, sT0, sT1))
        a('s_add_u32 s%d, s%d, 0x%x' % (sT0, sT0, PW_OFF))
        for kq in range(4):
            for tau in range(2):
                r = O.E + kq * 8 + tau * 4
                a('buffer_load_dwordx4 v[%d:%d], v%d, s[%d:%d], s%d offen offset:%d sc1' % (r, r + 3, O.L16, sWS, sWS + 3, sT0, tau * 1024))
            a('s_add_u32 s%d, s%d, 0x10000' % (sT0, sT0))
        a('s_waitcnt vmcnt(0)')
        sI = sFC
        epilogue(a, par, sTILE, True, lds=False)
        sI = si_save
        if par == 0:
            a('s_add_u32 s%d, s%d, 4' % (sTN, sTN))
            a('s_cmp_ge_u32 s%d, s%d' % (sTN, sNT))
            a.branch('s_cbranch_scc1 %s' % Le)
    a.label(Le)
```

```python
from common import *
import rrole as R, g1role as G1, prerole as P, g2role as G2, modrole as M

sGX, sGI, sGW, sGC = 92, 93, 94, 95
sNA, sNW, sAV, sAA, sSP = 88, 89, 54, 55, 44
sDBG = 32
sPREO = 91
sDID = 58
sPRE = 63
LDS_CTL = 98304

def gp_addr(a, dst):
    a('s_lshr_b32 s%d, s%d, 2' % (dst, sGC))
    a('s_lshl_b32 s%d, s%d, 8' % (dst, dst))
    a('s_and_b32 s%d, s%d, 3' % (R.sT3, sGC))
    a('s_lshl_b32 s%d, s%d, 2' % (R.sT3, R.sT3))
    a('s_add_u32 s%d, s%d, s%d' % (dst, dst, R.sT3))
    a('s_add_u32 s%d, s%d, 0x%x' % (dst, dst, GP_OFF))

def g_body(a, cfg):
    Ln = a.newlabel('gi')
    a('s_cmp_lg_u32 s%d, 0' % sGW)
    a.branch('s_cbranch_scc1 %s' % Ln)
    a('s_lshl_b32 s%d, s%d, 2' % (R.sT0, sGC))
    a('s_add_u32 s%d, s%d, 0x%x' % (R.sT2, R.sT0, AP_OFF))
    gp_addr(a, R.sT1)
    a('v_mov_b32 v12, 0')
    a('s_mov_b64 exec, 1')
    a('buffer_store_dword v12, v12, s[%d:%d], s%d offen sc1' % (R.sWS, R.sWS + 3, R.sT1))
    a('buffer_store_dword v12, v12, s[%d:%d], s%d offen sc1' % (R.sWS, R.sWS + 3, R.sT2))
    a('s_and_b32 s%d, s%d, 7' % (R.sT0, sGI))
    a('s_lshl_b32 s%d, s%d, 3' % (R.sT1, sGX))
    a('s_add_u32 s%d, s%d, s%d' % (R.sT0, R.sT0, R.sT1))
    a('s_lshl_b32 s%d, s%d, 7' % (R.sT0, R.sT0))
    a('s_lshr_b32 s%d, s%d, 3' % (R.sT1, sGI))
    a('s_lshl_b32 s%d, s%d, 2' % (R.sT1, R.sT1))
    a('s_add_u32 s%d, s%d, s%d' % (R.sT0, R.sT0, R.sT1))
    a('s_add_u32 s%d, s%d, 0x%x' % (R.sT0, R.sT0, WP_OFF))
    a('buffer_store_dword v12, v12, s[%d:%d], s%d offen sc1' % (R.sWS, R.sWS + 3, R.sT0))
    a('s_mov_b64 exec, -1')
    a('s_waitcnt vmcnt(0)')
    dbg_arrive(a, sDBG, DB_INIT2 if cfg.get('safe') else DB_INIT, 12)
    a.label(Ln)
    a('s_lshl_b32 s%d, s%d, 2' % (sPREO, sGX))
    a('s_add_u32 s%d, s%d, %d' % (sPREO, sPREO, DB_PRE2 if cfg.get('safe') else DB_PRE))
    P.sX, P.sGW, P.sWR = 24, 28, 36
    P.sW, P.sC = sGW, sGC
    build_srds(a, dict(x=P.sX, gw=P.sGW, wr=P.sWR))
    a('s_lshr_b32 s%d, s%d, 2' % (R.sH, sGC))
    a('s_and_b32 s%d, s%d, 3' % (R.sJ, sGC))
    a('s_mov_b32 s%d, s%d' % (R.sW, sGW))
    gp_addr(a, G1.sGPA)
    G1.XFL[0] = ' sc1'
    G1.fast_start(a, cfg)
    if cfg.get('dbgt'):
        a('s_cmp_lg_u32 s94, 0')
        a.branch('s_cbranch_scc1 f_nd4')
        dbgt(a, cfg, 14)
        a.label('f_nd4')
    a('s_mov_b32 s%d, %d' % (G1.sSEG, G1.NPB))
    a('s_mov_b32 s%d, %d' % (G1.sEND, 64 - G1.NPB))
    for w in range(1, 4):
        a('s_cmp_eq_u32 s%d, %d' % (sGW, w))
        a.branch('s_cbranch_scc1 fg1_wave%d' % w)
    for w in range(4):
        a.label('fg1_wave%d' % w)
        G1.g1_wave(a, w, cfg, 'fg1')
        a.branch('s_branch fg1_join')
    G1.g1_side(a, cfg)
    a.label('fg1_join')
    G1.q_tail(a, cfg)
    if cfg.get('dbgt'):
        a('s_cmp_lg_u32 s94, 0')
        a.branch('s_cbranch_scc1 f_nd2')
        dbgt(a, cfg, 11)
        a.label('f_nd2')
    if not cfg.get('st2') and not cfg.get('st4'): stamp(a, cfg, 1)
    build_srds(a, dict(wo=G2.sWO, x=G2.sX, out=G2.sOUT))
    G2.sI, G2.sW = sGI, sGW
    G2.out_consts(a)
    G2.out_load_weights(a, 2)
    dbg_wait_wg(a, sDBG, DB_M2, 128, 8, sSP, sGW)
    Lg = a.newlabel('g65'); Lgd = a.newlabel('g65d')
    a('v_mov_b32 v8, 0')
    a('s_lshl_b32 s%d, s%d, 8' % (R.sT1, sGI))
    a('s_add_u32 s%d, s%d, 0x%x' % (R.sT1, R.sT1, GP_OFF))
    a.label(Lg)
    a('buffer_load_dwordx4 v[12:15], v8, s[%d:%d], s%d offen sc1' % (R.sWS, R.sWS + 3, R.sT1))
    a('s_waitcnt vmcnt(0)')
    a('v_min3_u32 v12, v12, v13, v14')
    a('v_min_u32 v12, v12, v15')
    a('v_cmp_gt_u32 vcc, 65, v12')
    a('s_cbranch_vccz %s' % Lgd)
    a('s_sleep 4')
    a('s_add_u32 s%d, s%d, 1' % (sSP, sSP))
    a('s_cmp_lt_u32 s%d, 0x%x' % (sSP, SPIN_LIMIT))
    a('s_cbranch_scc1 %s' % Lg)
    a.label(Lgd)
    a('s_mov_b32 s%d, 0x%x' % (R.sT0, IDX_OFF))
    a('buffer_load_dwordx2 v[10:11], v8, s[%d:%d], s%d offen sc1' % (R.sWS, R.sWS + 3, R.sT0))
    a('s_waitcnt vmcnt(0)')
    a('v_readfirstlane_b32 s%d, v10' % G2.sIDX0)
    a('v_readfirstlane_b32 s%d, v11' % G2.sIDX1)
    a('s_mov_b32 s%d, 0' % sNA)
    a('s_mov_b32 s%d, 0' % sPRE)
    a('s_mov_b32 s%d, 0' % sNW)
    a('s_barrier')
    if not cfg.get('st2') and not cfg.get('st4'): stamp(a, cfg, 3)
    if cfg.get('g2prof'):
        for k in range(8): a('s_mov_b32 s%d, 0' % (66 + k))
        a('s_memtime s[76:77]')
        a('s_waitcnt lgkmcnt(0)')
        a('s_mov_b32 s79, s76')
    if cfg.get('dbgt'):
        a('s_cmp_lg_u32 s94, 0')
        a.branch('s_cbranch_scc1 f_nd3')
        dbgt(a, cfg, 13)
        a.label('f_nd3')
    a.label('g2_loop')
    a('s_mov_b32 s%d, 0' % sDID)
    Lc = a.newlabel('ctl')
    a('s_cmp_lg_u32 s%d, 0' % sGW)
    a.branch('s_cbranch_scc1 %s' % Lc)
    a('v_and_b32 v8, 31, v0')
    a('v_lshlrev_b32 v8, 2, v8')
    a('v_and_b32 v9, 3, v0')
    a('v_lshlrev_b32 v9, 2, v9')
    a('s_lshl_b32 s%d, s%d, 7' % (R.sT0, sGX))
    a('s_add_u32 s%d, s%d, 0x%x' % (R.sT0, R.sT0, AP_OFF))
    a('s_lshl_b32 s%d, s%d, 8' % (R.sT1, sGI))
    a('s_add_u32 s%d, s%d, 0x%x' % (R.sT1, R.sT1, PROG_OFF))
    a('buffer_load_dword v10, v8, s[%d:%d], s%d offen sc1' % (R.sWS, R.sWS + 3, R.sT0))
    a('buffer_load_dword v11, v9, s[%d:%d], s%d offen sc1' % (R.sWS, R.sWS + 3, R.sT1))
    a('s_waitcnt vmcnt(0)')
    for sh in (1, 2, 4, 8):
        a('v_min_u32_dpp v10, v10, v10 row_ror:%d row_mask:0xf bank_mask:0xf' % sh)
        if sh < 4: a('v_min_u32_dpp v11, v11, v11 row_ror:%d row_mask:0xf bank_mask:0xf' % sh)
    a('v_mov_b32 v12, v10')
    a('v_permlane16_swap_b32 v10, v12')
    a('v_min_u32 v10, v10, v12')
    a('v_mov_b32 v12, %d' % LDS_CTL)
    a('ds_write_b64 v12, v[10:11]')
    a('s_waitcnt lgkmcnt(0)')
    a.label(Lc)
    a('s_barrier')
    a('v_mov_b32 v12, %d' % LDS_CTL)
    a('ds_read_b64 v[10:11], v12')
    a('s_waitcnt lgkmcnt(0)')
    a('v_readfirstlane_b32 s%d, v10' % sAA)
    a('v_readfirstlane_b32 s%d, v11' % sAV)
    a('s_barrier')
    g2mark(a, cfg, 0)
    a('s_add_u32 s%d, s%d, 3' % (sAV, sAV))
    a('s_sub_u32 s%d, s%d, s%d' % (sAV, sAV, sGX))
    a('s_lshr_b32 s%d, s%d, 2' % (sAV, sAV))
    Lna = a.newlabel('noattn'); Lnt = a.newlabel('notask'); Lnw = a.newlabel('nowo'); Lpa = a.newlabel('nopub')
    a('s_cmp_le_u32 s%d, s%d' % (sAV, sNA))
    a.branch('s_cbranch_scc1 %s' % Lna)
    a('s_add_u32 s%d, s%d, 4' % (R.sT0, sNA))
    a('s_min_u32 s%d, s%d, s%d' % (sAV, sAV, R.sT0))
    a('s_add_u32 s%d, s%d, s%d' % (R.sT0, sNA, sGW))
    a('s_cmp_ge_u32 s%d, s%d' % (R.sT0, sAV))
    a.branch('s_cbranch_scc1 %s' % Lnt)
    a('s_lshl_b32 s%d, s%d, 2' % (R.sT0, R.sT0))
    a('s_add_u32 s%d, s%d, s%d' % (R.sT0, R.sT0, sGX))
    a('s_lshl_b32 s%d, s%d, 5' % (R.sT0, R.sT0))
    a('s_add_u32 s%d, s%d, s%d' % (G2.sTASK, R.sT0, sGI))
    Lpf = a.newlabel('havepf')
    a('s_add_u32 s%d, s%d, 1' % (R.sT0, G2.sTASK))
    a('s_cmp_eq_u32 s%d, s%d' % (R.sT0, sPRE))
    a.branch('s_cbranch_scc1 %s' % Lpf)
    G2.attn_consts(a, cfg)
    G2.attn_task(a, cfg, all_sc1=True, part=1)
    a.label(Lpf)
    G2.attn_task(a, cfg, all_sc1=True, st_flags=' sc1' if cfg.get('safe') else '', part=2)
    a('s_waitcnt vmcnt(0)')
    a.label(Lnt)
    a('s_barrier')
    a('s_mov_b32 s%d, s%d' % (sNA, sAV))
    a('s_mov_b32 s%d, 1' % sDID)
    a('s_cmp_lg_u32 s%d, 0' % sGW)
    a.branch('s_cbranch_scc1 %s' % Lpa)
    a('s_lshl_b32 s%d, s%d, 2' % (R.sT0, sGC))
    a('s_add_u32 s%d, s%d, 0x%x' % (R.sT0, R.sT0, AP_OFF))
    a('v_mov_b32 v10, s%d' % sNA)
    a('v_mov_b32 v11, 0')
    a('s_mov_b64 exec, 1')
    a('buffer_store_dword v10, v11, s[%d:%d], s%d offen%s' % (R.sWS, R.sWS + 3, R.sT0, ' sc1' if cfg.get('safe') else ''))
    a('s_mov_b64 exec, -1')
    a.label(Lpa)
    if cfg.get('g2prof'): a('s_add_u32 s70, s70, 1')
    a.label(Lna)
    g2mark(a, cfg, 1)
    a('s_cmp_le_u32 s%d, s%d' % (sAA, sNW))
    a.branch('s_cbranch_scc1 %s' % Lnw)
    a('s_lshl_b32 s%d, s%d, 2' % (R.sT0, sNW))
    a('s_add_u32 s%d, s%d, s%d' % (R.sT0, R.sT0, sGX))
    a('s_lshl_b32 s%d, s%d, 1' % (G2.sTILE, R.sT0))
    a('s_sub_u32 s%d, s%d, s%d' % (G2.sNB, sAA, sNW))
    a('s_min_u32 s%d, s%d, %d' % (G2.sNB, G2.sNB, cfg.get('wob', 4)))
    a('s_lshl_b32 s%d, s%d, 1' % (G2.sTN, sNW))
    a('s_add_u32 s%d, s%d, s%d' % (sNW, sNW, G2.sNB))
    a('s_lshl_b32 s%d, s%d, 1' % (G2.sNT, sNW))
    if cfg.get('wo2', 0): G2.wo2_batch(a, cfg, sGX, sNW, sSP)
    else: G2.wo_batch(a, cfg)
    a('s_mov_b32 s%d, 0' % sPRE)
    a('s_mov_b32 s%d, 1' % sDID)
    if cfg.get('g2prof'): a('s_add_u32 s71, s71, 1')
    a.label(Lnw)
    g2mark(a, cfg, 2)
    Lsl = a.newlabel('nosleep')
    a('s_cmp_lg_u32 s%d, 0' % sDID)
    a('s_cbranch_scc1 %s' % Lsl)
    a('s_cmp_lt_u32 s%d, s%d' % (sNW, sNA))
    a('s_cbranch_scc1 %s' % Lsl)
    Lnp = a.newlabel('nopf')
    a('s_cmp_lg_u32 s%d, 0' % sGW)
    a('s_cbranch_scc1 %s' % Lnp)
    a('s_lshl_b32 s%d, s%d, 2' % (R.sT0, sNA))
    a('s_add_u32 s%d, s%d, s%d' % (R.sT0, R.sT0, sGX))
    a('s_lshl_b32 s%d, s%d, 5' % (R.sT0, R.sT0))
    a('s_add_u32 s%d, s%d, s%d' % (G2.sTASK, R.sT0, sGI))
    a('s_add_u32 s%d, s%d, 1' % (R.sT0, G2.sTASK))
    a('s_cmp_eq_u32 s%d, s%d' % (R.sT0, sPRE))
    a('s_cbranch_scc1 %s' % Lnp)
    a('s_mov_b32 s%d, s%d' % (sPRE, R.sT0))
    G2.attn_consts(a, cfg)
    G2.attn_task(a, cfg, all_sc1=True, part=1)
    a.label(Lnp)
    a('s_sleep %d' % cfg.get('g2sleep', 8))
    a.label(Lsl)
    g2mark(a, cfg, 3)
    a('s_add_u32 s%d, s%d, 1' % (sSP, sSP))
    a('s_cmp_ge_u32 s%d, 0x%x' % (sSP, SPIN_LIMIT))
    a.branch('s_cbranch_scc1 g2_done')
    a('s_cmp_lt_u32 s%d, 16' % sNW)
    a.branch('s_cbranch_scc1 g2_loop')
    a.label('g2_done')
    dbgt(a, cfg, 12)
    if cfg.get('g2prof'):
        a('s_lshl_b32 s45, s95, 7')
        a('s_lshl_b32 s46, s94, 5')
        a('s_add_u32 s45, s45, s46')
        a('s_add_u32 s45, s45, 0x%x' % (MISC_OFF + 131072))
        a('v_mov_b32 v9, 0')
        a('s_mov_b64 exec, 1')
        for k in range(8):
            a('v_mov_b32 v8, s%d' % (66 + k))
            a('buffer_store_dword v8, v9, s[%d:%d], s45 offen offset:%d' % (R.sWS, R.sWS + 3, 4 * k))
        a('s_mov_b64 exec, -1')
    if not cfg.get('st4'): stamp(a, cfg, 4)
    a('s_endpgm')

def g2mark(a, cfg, k):
    if not cfg.get('g2prof'): return
    a('s_memtime s[76:77]')
    a('s_waitcnt lgkmcnt(0)')
    a('s_sub_u32 s78, s76, s79')
    a('s_add_u32 s%d, s%d, s78' % (66 + k, 66 + k))
    a('s_mov_b32 s79, s76')

def stamp(a, cfg, k):
    if not cfg.get('stamp'): return
    L = a.newlabel('stp')
    a('s_cmp_lg_u32 s%d, 0' % sGW)
    a.branch('s_cbranch_scc1 %s' % L)
    a('s_memrealtime s[74:75]')
    a('s_waitcnt lgkmcnt(0)')
    a('v_mov_b32 v250, s74')
    a('s_lshl_b32 s74, s%d, 5' % sGC)
    a('s_add_u32 s74, s74, 0x%x' % (MISC_OFF + 65536 + 4 * k))
    a('v_mov_b32 v251, 0')
    a('s_mov_b64 exec, 1')
    a('buffer_store_dword v250, v251, s[%d:%d], s74 offen' % (R.sWS, R.sWS + 3))
    a('s_mov_b64 exec, -1')
    a.label(L)

def roles(a, cfg):
    a('s_cmp_ge_u32 s%d, 4' % R.sRX)
    a.branch('s_cbranch_scc1 f_grole')
    R.r_body(a, cfg)
    a.label('f_grole')
    a('s_sub_u32 s%d, s%d, 4' % (sGX, R.sRX))
    a('s_mov_b32 s%d, s%d' % (sGI, R.sI))
    a('s_mov_b32 s%d, s%d' % (sGW, R.sW))
    a('s_lshl_b32 s%d, s%d, 5' % (sGC, sGX))
    a('s_add_u32 s%d, s%d, s%d' % (sGC, sGC, sGI))
    stamp(a, cfg, 0)
    g_body(a, cfg)

def common_init(a):
    build_srds(a, dict(ws=R.sWS, wq=R.sWQ, wk=R.sWK, wv=R.sWV, wo=R.sWO, mem0=R.sM0, dbg=R.sDBG))
    a('s_mov_b32 s%d, 0' % R.sSPIN)
    R.lane_consts(a)
    a('v_lshrrev_b32 v%d, 6, v0' % R.vT)
    a('v_readfirstlane_b32 s%d, v%d' % (R.sW, R.vT))

def gen_fused(name, cfg):
    import re
    cfg = dict(cfg); cfg['fused'] = 1; cfg['g1_sc1'] = 1
    sGT = 2
    a = Asm()
    a.raw(kernel_header(name))
    a('s_cmp_ge_u32 s2, 256')
    a('s_cbranch_scc0 f_start')
    a('s_endpgm')
    a.label('f_start')
    if cfg.get('cpf', 1):
        a('s_getpc_b64 s[4:5]')
        a('s_and_b32 s4, s4, 0xffffff00')
        a('s_lshr_b32 s6, s2, 3')
        a('s_lshl_b32 s6, s6, 12')
        a('v_lshlrev_b32 v1, 4, v0')
        a('v_add_u32 v1, s6, v1')
        a('v_mov_b32 v3, s5')
        a('v_add_co_u32 v2, vcc, s4, v1')
        a('v_addc_co_u32 v3, vcc, 0, v3, vcc')
        a('global_load_dwordx4 v[244:247], v[2:3], off')
    common_init(a)
    if cfg.get('dbgt'):
        a('s_lshl_b32 s97, s%d, 8' % R.sW)
        a('s_add_u32 s97, s97, s2')
        a('s_cmp_ge_u32 s97, 4')
        a.branch('s_cbranch_scc1 f_nodbg')
        dbgt(a, cfg, 8, True)
        a.label('f_nodbg')
    a('s_getreg_b32 s%d, hwreg(HW_REG_XCC_ID)' % R.sRX)
    a('s_and_b32 s%d, s%d, 7' % (R.sRX, R.sRX))
    vT = R.vT
    Lt = a.newlabel('tk')
    a('s_cmp_lg_u32 s%d, 0' % R.sW)
    a.branch('s_cbranch_scc1 %s' % Lt)
    a('v_mov_b32 v%d, 1' % vT)
    a('s_lshl_b32 s%d, s%d, %d' % (R.sT0, R.sRX, 2))
    a('v_mov_b32 v%d, s%d' % (vT + 2, R.sT0))
    a('s_mov_b64 exec, 1')
    a('buffer_atomic_add v%d, v%d, s[%d:%d], 0 offen sc0 sc1' % (vT, vT + 2, R.sDBG, R.sDBG + 3))
    a('v_mov_b32 v%d, %d' % (vT + 2, R.LDS_TK))
    a('s_waitcnt vmcnt(0)')
    a('ds_write_b32 v%d, v%d' % (vT + 2, vT))
    a('s_waitcnt lgkmcnt(0)')
    a('s_mov_b64 exec, -1')
    a.label(Lt)
    a('s_barrier')
    a('v_mov_b32 v%d, %d' % (vT + 2, R.LDS_TK))
    a('ds_read_b32 v%d, v%d' % (vT, vT + 2))
    a('s_waitcnt lgkmcnt(0)')
    a('v_readfirstlane_b32 s%d, v%d' % (R.sI, vT))
    a('s_cmp_lt_u32 s%d, 32' % R.sI)
    a.branch('s_cbranch_scc1 f_census_ok')
    Lo = a.newlabel('ovf')
    a('s_cmp_lg_u32 s%d, 0' % R.sW)
    a.branch('s_cbranch_scc1 %s' % Lo)
    dbg_arrive(a, R.sDBG, DB_BAD, vT)
    a('s_waitcnt vmcnt(0)')
    dbg_arrive(a, R.sDBG, DB_INIT, vT)
    a.label(Lo)
    init_wait(a, R.sDBG, cfg, vT, R.sSPIN, R.sT0)
    a.branch('s_branch SAFE_ENTRY')
    a.label('f_census_ok')
    head = a.text()
    gl0 = Asm.GL
    a = Asm()
    roles(a, cfg)
    fast = a.text()
    gl1 = Asm.GL
    cfg2 = dict(cfg); cfg2['safe'] = 1; cfg2['stamp'] = 0; cfg2['prof'] = 0; cfg2['tl'] = 0; cfg2['st3'] = 0; cfg2['st2'] = 0; cfg2['gprof'] = 0; cfg2['g2prof'] = 0; cfg2['st4'] = 0; cfg2['sprof'] = 0
    SH = 128 * MB
    saved = (R.MX_OFF, R.QKX_OFF, R.OX_OFF, G1.XF_OFF, P.XF_OFF)
    R.MX_OFF += SH; R.QKX_OFF += SH; R.OX_OFF += SH; G1.XF_OFF += SH; P.XF_OFF += SH; R.SAFE[0] = True
    b = Asm()
    b('s_mov_b64 exec, -1')
    b('s_waitcnt vmcnt(0) lgkmcnt(0)')
    b('s_barrier')
    common_init(b)
    b('s_lshr_b32 s%d, s%d, 5' % (R.sRX, sGT))
    b('s_and_b32 s%d, s%d, 7' % (R.sRX, R.sRX))
    b('s_and_b32 s%d, s%d, 31' % (R.sI, sGT))
    b.fence()
    head2 = b.text()
    dbgbuild = any(cfg.get(k) for k in ('stamp', 'prof', 'tl', 'st3', 'st2', 'gprof', 'g2prof', 'dbgt'))
    if not dbgbuild: Asm.GL = gl0
    b = Asm()
    roles(b, cfg2)
    Asm.GL = max(Asm.GL, gl1)
    R.MX_OFF, R.QKX_OFF, R.OX_OFF, G1.XF_OFF, P.XF_OFF = saved; R.SAFE[0] = False
    safe = b.text()
    import difflib
    labels = set(re.findall(r'^([A-Za-z_][\w]*):', safe + fast, re.M))
    rx = re.compile(r'\b(' + '|'.join(sorted(labels, key=len, reverse=True)) + r')\b')
    fl = [rx.sub(lambda m: m.group(1) + '_\\sf', l.strip()) for l in fast.split('\n') if l.strip()]
    sl = [rx.sub(lambda m: m.group(1) + '_\\sf', l.strip()) for l in safe.split('\n') if l.strip()]
    out = ['.macro ROLES sf']
    if len(fl) == len(sl) or True:
        sm = difflib.SequenceMatcher(None, fl, sl, autojunk=False) if len(fl) != len(sl) else None
        if sm is None:
            ops = []
            i = 0
            while i < len(fl):
                j = i
                same = fl[i] == sl[i]
                while j < len(fl) and (fl[j] == sl[j]) == same: j += 1
                ops.append(('equal' if same else 'replace', i, j, i, j)); i = j
        else:
            ops = sm.get_opcodes()
        for tag, i1, i2, j1, j2 in ops:
            if tag == 'equal': out += fl[i1:i2]
            else:
                out.append('.if \\sf == 0'); out += fl[i1:i2]; out.append('.else'); out += sl[j1:j2]; out.append('.endif')
    out.append('.endm')
    return '\n'.join(out) + '\n' + head + 'ROLES 0\nSAFE_ENTRY:\n' + head2 + 'ROLES 1\n'
```

```python
from common import *
import rrole as R
from rrole import sWS, sWQ, sWK, sWV, sDBG, sRX, sI, sW, sT0, sT1, sT2, sT3, sH, sJ, vL, vL16, vT, wq_frag

sX = 24
sSEG, sEND, sXO, sQO, sKO, sVO = 52, 53, 54, 55, 56, 57
vXA = 3
vXB = 16
vAC = 144
vRD = 192
vOUT = 224
LDSP = 0

def xf(buf, tt, T, b): return vXB + buf * 64 + ((tt * 4 + T) * 2 + b) * 4
def ac(tt, tile): return vAC + (tt * 6 + tile) * 4
def lp(buf, wv, tt, tile): return LDSP + buf * 49152 + ((wv * 2 + tt) * 6 + tile) * 1024

XFL = ['']
NOPK = [1]
sGPA, sCNT, sSPIN, sWM = 58, 59, 44, 60
def xloads(buf, soff0, soff1):
    out = []
    for tt in range(2):
        for T in range(4):
            for b in range(2):
                r = xf(buf, tt, T, b)
                n = T * 2 + b
                out.append('buffer_load_dwordx4 v[%d:%d], v%d, s[%d:%d], s%d offen offset:%d' % (r, r + 3, vL16 if n < 4 else 5, sWS, sWS + 3, soff0 if tt == 0 else soff1, (n & 3) * 1024) + XFL[0])
    return out

FRAGS = [('q', 0), ('q', 1), ('k', 0), ('k', 1), ('v', 0), ('v', 1)]
def frag_src(kind, idx):
    if kind == 'q': return [(idx, 0), (idx, 1)]
    if kind == 'k': return [(idx, 2), (idx, 3)]
    return [(0, 4 + idx), (1, 4 + idx)]
ASSIGN = [[[0, 1], [2, 3], [4], [5]], [[0], [1], [2, 3], [4, 5]]]

def reduce_ops(w, par, sc1):
    ops = []
    for n, f in enumerate(ASSIGN[par][w]):
        kind, idx = FRAGS[f]
        o = vOUT + 4 * n
        rd = []
        for h2, (tt, tile) in enumerate(frag_src(kind, idx)):
            for wv in range(4):
                r = vRD + (h2 * 4 + wv) * 4
                off = lp(par, wv, tt, tile)
                rd.append('ds_read_b128 v[%d:%d], v%d offset:%d' % (r, r + 3, vL16 if off < 65536 else 4, off if off < 65536 else off - 49152))
        ops.append(('rd', rd))
        ad = []
        for h2 in range(2):
            b0 = vRD + h2 * 16
            if NOPK[0]:
                for x in range(4):
                    ad.append('v_add_f32 v%d, v%d, v%d' % (b0 + x, b0 + x, b0 + 4 + x))
                    ad.append('v_add_f32 v%d, v%d, v%d' % (b0 + 8 + x, b0 + 8 + x, b0 + 12 + x))
                for x in range(4):
                    ad.append('v_add_f32 v%d, v%d, v%d' % (b0 + x, b0 + x, b0 + 8 + x))
            else:
                for x in (0, 2):
                    ad.append('v_pk_add_f32 v[%d:%d], v[%d:%d], v[%d:%d]' % (b0 + x, b0 + x + 1, b0 + x, b0 + x + 1, b0 + 4 + x, b0 + 5 + x))
                    ad.append('v_pk_add_f32 v[%d:%d], v[%d:%d], v[%d:%d]' % (b0 + 8 + x, b0 + 9 + x, b0 + 8 + x, b0 + 9 + x, b0 + 12 + x, b0 + 13 + x))
                for x in (0, 2):
                    ad.append('v_pk_add_f32 v[%d:%d], v[%d:%d], v[%d:%d]' % (b0 + x, b0 + x + 1, b0 + x, b0 + x + 1, b0 + 8 + x, b0 + 9 + x))
            ad.append('v_cvt_pk_bf16_f32 v%d, v%d, v%d' % (o + 2 * h2, b0, b0 + 1))
            ad.append('v_cvt_pk_bf16_f32 v%d, v%d, v%d' % (o + 2 * h2 + 1, b0 + 2, b0 + 3))
        so = {'q': sQO, 'k': sKO, 'v': sVO}[kind]
        if kind == 'v':
            ad.append('buffer_store_dwordx4 v[%d:%d], v%d, s[%d:%d], s%d offen offset:%d%s' % (o, o + 3, vL16, sWS, sWS + 3, so, idx * 1024, ' sc1' if sc1 else ''))
        else:
            ad.append('buffer_store_dwordx4 v[%d:%d], v%d, s[%d:%d], s%d offen%s' % (o, o + 3, vL16 if idx == 0 else 5, sWS, sWS + 3, so, ' sc1' if sc1 else ''))
        ops.append(('ad', ad))
    return ops

def pub_gp(a, cap=64):
    a('s_min_u32 s%d, s%d, %d' % (sT1, sCNT, cap))
    a('v_mov_b32 v6, s%d' % sT1)
    a('v_mov_b32 v7, 0')
    a('s_mov_b64 exec, 1')
    a('buffer_store_dword v6, v7, s[%d:%d], s%d offen sc1' % (sWS, sWS + 3, sGPA))
    a('s_mov_b64 exec, -1')

sDM, sDS, sDMI, sDSI = 68, 69, 70, 71
sCX, sCD = 61, 62
sXSRD = 24
def seg_plan(w, par, first, cfg, conv=(None, None)):
    sc1 = cfg.get('g1_sc1', 0)
    buf = par
    slots = [[] for _ in range(96)]
    nxt = xloads(1 - buf, sXO, sT0)
    for n, x in enumerate(nxt):
        tt = n // 8
        slots[tt * 48 + (n % 8) * 5 + 1].append(('x%d' % tt, x))
    cl, cs = conv
    if cl is not None:
        for n in range(8):
            r = 192 + 32 * cl + 4 * n
            slots[2 + 4 * n].append(('cv', 'buffer_load_dwordx4 a[%d:%d], v3, s[%d:%d], s%d offen offset:%d' % (r, r + 3, sXSRD, sXSRD + 3, sCX, (n >> 1) * 128 + (n & 1) * 16)))
    if cs is not None:
        for n in range(8):
            r = 192 + 32 * cs + 4 * n
            slots[4 + 4 * n].append(('cv', 'buffer_store_dwordx4 a[%d:%d], v%d, s[%d:%d], s%d offen offset:%d' % (r, r + 3, vL16 if n < 4 else 5, sWS, sWS + 3, sCD, (n & 3) * 1024) + (' sc1' if cfg.get('safe') else '')))
    if cfg.get('fused'):
        for p in cfg.get('trk', (38, 86)):
            slots[p - 1].append(('sa', 's_mov_b32 m0, s%d' % sDM))
            slots[p].append(('cv', 'buffer_load_dwordx4 v243, s[12:15], s%d offen lds' % sDS))
            slots[p + 1].append(('sa', 's_add_u32 s%d, s%d, s%d' % (sDM, sDM, sDMI)))
            slots[p + 1].append(('sa', 's_add_u32 s%d, s%d, s%d' % (sDS, sDS, sDSI)))
    if cfg.get('warm', 0) and w == 3:
        for n in range(2):
            slots[20 + 30 * n].append(('x2', 'buffer_load_dwordx4 v[232:235], v%d, s[%d:%d], s%d offen offset:%d%s' % (vL16, sWS, sWS + 3, sWM, n * 1024, XFL[0])))
    tail = []
    for tt in range(2):
        for tile in range(6):
            off = lp(buf, w, tt, tile)
            ins = ('ds', 'ds_write_b128 v%d, v[%d:%d] offset:%d' % (vL16 if off < 65536 else 4, ac(tt, tile), ac(tt, tile) + 3, off if off < 65536 else off - 49152))
            IL = cfg.get('g1il', 2)
            p = (tt * 6 + (tile // IL + 1) * IL) * 8 + 4 + 3 * (tile % IL)
            if p < 96: slots[p].append(ins)
            else: tail.append(ins)
    if not first:
        p = 0
        for kind, lst in reduce_ops(w, 1 - par, sc1):
            if kind == 'rd':
                for x in lst:
                    while len(slots[p]) >= (2 if (cl is not None or cs is not None) else 1): p += 1
                    slots[p].append(('ds', x)); p += 1
                p += 5
            else:
                slots[p].append(('w', 's_waitcnt lgkmcnt(0)'))
                for x in lst:
                    while len(slots[p]) >= 2: p += 1
                    slots[p].append(('st' if x.startswith('buffer_store') else 'va', x))
                p += 1
    return slots, tail

def vm_seq(slots, upto=96, frm=0):
    return [t for sl in slots[frm:upto] for (t, x) in sl if t in ('x0', 'x1', 'x2', 'st', 'cv')]

def count_after(seq, tag):
    idx = max(i for i, t in enumerate(seq) if t == tag)
    return len(seq) - 1 - idx

def gmark(a, cfg, k):
    if not cfg.get('gprof'): return
    a('s_memtime s[76:77]')
    a('s_waitcnt lgkmcnt(0)')
    a('s_sub_u32 s78, s76, s79')
    a('s_add_u32 s%d, s%d, s78' % (80 + k, 80 + k))
    a('s_mov_b32 s79, s76')

def seg_body(a, w, par, first, cfg, preds, conv=(None, None), exact=False):
    buf = par
    slots, tail = seg_plan(w, par, first, cfg, conv)
    a('s_add_u32 s%d, s%d, 0x10000' % (sXO, sXO))
    if cfg.get('fused') and par == 1:
        a('s_cmp_eq_u32 s%d, %d' % (sSEG, 62 - NPB))
        a('s_cselect_b32 s%d, 0x400000, 0' % sT0)
        a('s_sub_u32 s%d, s%d, s%d' % (sXO, sXO, sT0))
    if w == 3: a('s_add_u32 s%d, s%d, 0x10000' % (sWM, sWM))
    a('s_add_u32 s%d, s%d, 0x8000' % (sT0, sXO))
    if preds is None:
        n0 = n1 = None
        a('s_waitcnt vmcnt(0)')
    else:
        n0 = min(count_after(vm_seq(seg_plan(w, p[0], p[1], cfg, *p[2:])[0]), 'x0') for p in preds)
        n1 = min(count_after(vm_seq(seg_plan(w, p[0], p[1], cfg, *p[2:])[0]), 'x1') for p in preds) + len(vm_seq(slots, 48))
        a('s_waitcnt vmcnt(%d)' % n0)
        gmark(a, cfg, 0)
    n = 0
    for tt in range(2):
        if tt == 1 and n1 is not None:
            gmark(a, cfg, 1)
            a('s_waitcnt vmcnt(%d)' % n1)
            gmark(a, cfg, 2)
        IL = cfg.get('g1il', 2)
        for tp in range(0, 6, IL):
            for T in range(4):
                for b in range(2):
                    for tile in range(tp, tp + IL):
                        c = '0' if (T == 0 and b == 0) else vr(ac(tt, tile), 4)
                        W = ar(wq_frag(tile, T, b), 4); X = vr(xf(buf, tt, T, b), 4)
                        if tile < 4: a('v_mfma_f32_16x16x32_bf16 %s, %s, %s, %s' % (vr(ac(tt, tile), 4), W, X, c))
                        else: a('v_mfma_f32_16x16x32_bf16 %s, %s, %s, %s' % (vr(ac(tt, tile), 4), X, W, c))
                        for t, x in slots[n]: a(x)
                        n += 1
    for t, x in tail: a(x)
    gmark(a, cfg, 3)
    if not first:
        for so in (sQO, sKO, sVO): a('s_add_u32 s%d, s%d, 0x40000' % (so, so))
        if cfg.get('fused') and par == 0:
            a('s_cmp_eq_u32 s%d, %d' % (sSEG, 64 - NPB))
            a('s_cselect_b32 s%d, 0x1000000, 0' % sT0)
            for so in (sQO, sKO, sVO): a('s_sub_u32 s%d, s%d, s%d' % (so, so, sT0))
    if conv[0] is not None: a('s_add_u32 s%d, s%d, 0x100000' % (sCX, sCX))
    if conv[1] is not None: a('s_add_u32 s%d, s%d, 0x100000' % (sCD, sCD))
    if cfg.get('fused') and not first:
        a('s_waitcnt vmcnt(%d) lgkmcnt(0)' % (count_after(vm_seq(slots), 'st') if exact else len(vm_seq(slots))))
    else:
        a('s_waitcnt lgkmcnt(0)')
    gmark(a, cfg, 4)
    a('s_barrier')
    gmark(a, cfg, 5)
    if cfg.get('fused') and not first:
        if exact: a('s_add_u32 s%d, s%d, 1' % (sCNT, sCNT))
        if w == 0: pub_gp(a)
        if not exact: a('s_add_u32 s%d, s%d, 1' % (sCNT, sCNT))

NPB = 4
def fast_start(a, cfg):
    sW = R.sW
    save = R.vTR; R.vTR = 236
    vWA, vRA, vRB, vCV = 239, 240, 241, 192
    PB = 65536
    sWQO, sPD = 63, 64
    a('v_and_b32 v%d, 15, v%d' % (vT, vL))
    a('v_lshrrev_b32 v%d, 4, v%d' % (vT + 1, vL))
    a('v_lshlrev_b32 v%d, 5, v%d' % (vT + 1, vT + 1))
    a('v_lshl_add_u32 v%d, v%d, 11, v%d' % (vXA, vT, vT + 1))
    a('v_add_u32 v4, 49152, v%d' % vL16)
    a('v_add_u32 v5, 4096, v%d' % vL16)
    a('v_lshrrev_b32 v%d, 2, v%d' % (vT, vL))
    a('v_and_b32 v%d, 3, v%d' % (vT + 1, vL))
    a('v_lshlrev_b32 v%d, 4, v%d' % (vT + 1, vT + 1))
    a('v_lshl_add_u32 v%d, v%d, 13, v%d' % (vWA, vT, vT + 1))
    def xs(buf):
        a('s_add_u32 s%d, s%d, 0x8000' % (sT0, sXO))
        for tt in range(2):
            for n in range(8):
                r = xf(buf, tt, n >> 1, n & 1)
                a('buffer_load_dwordx4 v[%d:%d], v%d, s[%d:%d], s%d offen offset:%d' % (r, r + 3, vXA, sXSRD, sXSRD + 3, sXO if tt == 0 else sT0, (n >> 1) * 128 + (n & 1) * 16))
        a('s_add_u32 s%d, s%d, 0x10000' % (sXO, sXO))
    a('s_lshl_b32 s%d, s93, 15' % sT0)
    a('s_lshl_b32 s%d, s%d, 9' % (sT1, sW))
    a('s_add_u32 s%d, s%d, s%d' % (sCX, sT0, sT1))
    a('s_lshl_b32 s%d, s%d, 13' % (sT1, sW))
    a('s_add_u32 s%d, s%d, s%d' % (sCD, sT0, sT1))
    a('s_lshl_b32 s%d, s92, 22' % sT1)
    a('s_add_u32 s%d, s%d, s%d' % (sCD, sCD, sT1))
    a('s_add_u32 s%d, s%d, 0x%x' % (sCD, sCD, XF_OFF))
    for n in range(8):
        a('buffer_load_dwordx4 a[%d:%d], v%d, s[%d:%d], s%d offen offset:%d' % (192 + 4 * n, 195 + 4 * n, vXA, sXSRD, sXSRD + 3, sCX, (n >> 1) * 128 + (n & 1) * 16))
    a('s_add_u32 s%d, s%d, 0x100000' % (sCX, sCX))
    a('s_lshl_b32 s%d, s%d, 21' % (sWQO, sW))
    a('s_lshl_b32 s%d, s%d, 8' % (sT1, sH))
    a('s_add_u32 s%d, s%d, s%d' % (sWQO, sWQO, sT1))
    a('s_lshl_b32 s%d, s%d, 6' % (sT1, sJ))
    a('s_add_u32 s%d, s%d, s%d' % (sWQO, sWQO, sT1))
    a('s_lshl_b32 s%d, s%d, 9' % (sXO, sW))
    for M, srd in ((1, sWK), (2, sWV)):
        a('s_mov_b32 s%d, s%d' % (sT0, sWQO))
        for n in range(16):
            a('buffer_load_dwordx4 a[%d:%d], v%d, s[%d:%d], s%d offen' % (64 * M + 4 * n, 64 * M + 4 * n + 3, vWA, srd, srd + 3, sT0))
            if n < 15: a('s_add_u32 s%d, s%d, 0x20000' % (sT0, sT0))
            if M == 1 and n == 7:
                a('s_waitcnt vmcnt(8)')
                for q in range(8):
                    a('buffer_store_dwordx4 a[%d:%d], v%d, s[%d:%d], s%d offen offset:%d%s' % (192 + 4 * q, 195 + 4 * q, vL16 if q < 4 else 5, sWS, sWS + 3, sCD, (q & 3) * 1024, ' sc1' if cfg.get('safe') else ''))
                a('s_add_u32 s%d, s%d, 0x100000' % (sCD, sCD))
    xs(0); xs(1)
    a('s_cmp_lt_u32 s%d, 2' % sW)
    a('s_cselect_b32 s%d, 4, 1' % sT0)
    a('s_mul_i32 s%d, s%d, s%d' % (sT0, sT0, sW))
    a('s_cselect_b32 s%d, 1, 4' % sT1)
    a('s_add_u32 s%d, s%d, s%d' % (sT1, sT1, sT0))
    a('s_lshl_b32 s%d, s%d, 10' % (sT0, sT0))
    a('s_lshl_b32 s%d, s%d, 10' % (sT1, sT1))
    a('s_add_u32 s%d, s%d, %d' % (sT0, sT0, PB))
    a('s_add_u32 s%d, s%d, %d' % (sT1, sT1, PB))
    a('v_add_u32 v%d, s%d, v%d' % (vRA, sT0, vL16))
    a('v_add_u32 v%d, s%d, v%d' % (vRB, sT1, vL16))
    a('s_lshl_b32 s%d, s%d, 13' % (sT0, sW))
    a('s_add_u32 s%d, s%d, %d' % (sT0, sT0, PB))
    a('v_add_u32 v242, s%d, v%d' % (sT0, vL16))
    a('s_lshl_b32 s%d, s%d, 13' % (sT0, sH))
    a('s_lshl_b32 s%d, s%d, 10' % (sT1, sJ))
    a('s_add_u32 s%d, s%d, s%d' % (sT0, sT0, sT1))
    a('s_lshl_b32 s%d, s%d, 12' % (sT2, sW))
    a('s_add_u32 s%d, s%d, s%d' % (sT2, sT2, sT0))
    a('s_add_u32 s%d, s%d, 0x%x' % (sT2, sT2, KF_OFF))
    a('s_add_u32 s%d, s%d, s%d' % (sT0, sT0, sT1))
    a('s_lshl_b32 s%d, s%d, 10' % (sT1, sW))
    a('s_add_u32 s%d, s%d, s%d' % (sT0, sT0, sT1))
    a('s_add_u32 s%d, s%d, 0x%x' % (sT0, sT0, VF_OFF - 2048))
    a('s_cmp_lt_u32 s%d, 2' % sW)
    a('s_cselect_b32 s%d, s%d, s%d' % (sPD, sT2, sT0))
    R.tr_setup(a)
    a('s_waitcnt vmcnt(48)')
    a('s_barrier')
    Lpa = a.newlabel('fspa')
    a('s_cmp_lg_u32 s%d, 1' % sW)
    a.branch('s_cbranch_scc1 %s' % Lpa)
    dbg_arrive(a, sDBG, 's91', 8)
    a.label(Lpa)
    R.tr_matrix(a, 1)
    a('s_waitcnt vmcnt(32)')
    R.tr_matrix(a, 2)
    import fused
    if cfg.get('st4'): fused.stamp(a, cfg, 1)
    init_wait(a, sDBG, cfg, 8, sSPIN, sT0)
    if cfg.get('st4'): fused.stamp(a, cfg, 2)
    a('s_mov_b32 s%d, 0' % sCNT)
    for pb in range(NPB):
        buf = pb & 1
        if pb == 2:
            dbg_wait(a, sDBG, 's91', 32, 8, sSPIN)
            a('s_lshl_b32 s%d, s92, 22' % sT0)
            a('s_lshl_b32 s%d, s%d, 13' % (sT1, sW))
            a('s_add_u32 s%d, s%d, s%d' % (sXO, sT0, sT1))
            a('s_add_u32 s%d, s%d, 0x%x' % (sXO, sXO, XF_OFF + 2 * 0x10000))
            for b2 in range(2):
                a('s_add_u32 s%d, s%d, 0x8000' % (sT0, sXO))
                for x in xloads(b2, sXO, sT0): a(x)
                a('s_add_u32 s%d, s%d, 0x10000' % (sXO, sXO))
        if pb >= 2:
            for n in range(8 * (pb - 2), 8 * (pb - 2) + 8):
                a('buffer_load_dwordx4 a[%d:%d], v%d, s[%d:%d], s%d offen' % (4 * n, 4 * n + 3, vWA, sWQ, sWQ + 3, sWQO))
                a('s_add_u32 s%d, s%d, 0x20000' % (sWQO, sWQO))
        if pb == 2: a('s_waitcnt vmcnt(24)')
        for tt in range(2):
            for t4 in range(4):
                tile = 2 + t4
                for n in range(8):
                    d = vr(ac(tt, tile), 4); W = ar(wq_frag(tile, n >> 1, n & 1), 4); X = vr(xf(buf, tt, n >> 1, n & 1), 4)
                    a('v_mfma_f32_16x16x32_bf16 %s, %s, %s, %s' % (d, W if tile < 4 else X, X if tile < 4 else W, '0' if n == 0 else d))
                    if n == 6 and (tt, t4) != (0, 0):
                        g0 = tt * 4 + t4 - 1
                        a('ds_write_b128 v242, %s offset:%d' % (vr(ac(g0 >> 2, 2 + (g0 & 3)), 4), g0 * 1024))
        a('ds_write_b128 v242, %s offset:%d' % (vr(ac(1, 5), 4), 7 * 1024))
        a('s_waitcnt lgkmcnt(0)')
        a('s_barrier')
        for h2, va in enumerate((vRA, vRB)):
            for wv in range(4):
                r = vRD + (h2 * 4 + wv) * 4
                a('ds_read_b128 v[%d:%d], v%d offset:%d' % (r, r + 3, va, wv * 8192))
        a('s_waitcnt lgkmcnt(0)')
        for h2 in range(2):
            b0 = vRD + h2 * 16
            for x in (0, 2):
                R.pk_add(a, b0 + x, b0 + x, b0 + 4 + x); R.pk_add(a, b0 + 8 + x, b0 + 8 + x, b0 + 12 + x)
            for x in (0, 2): R.pk_add(a, b0 + x, b0 + x, b0 + 8 + x)
            a('v_cvt_pk_bf16_f32 v%d, v%d, v%d' % (vOUT + 2 * h2, b0, b0 + 1))
            a('v_cvt_pk_bf16_f32 v%d, v%d, v%d' % (vOUT + 2 * h2 + 1, b0 + 2, b0 + 3))
        a('buffer_store_dwordx4 v[%d:%d], v%d, s[%d:%d], s%d offen sc1' % (vOUT, vOUT + 3, vL16, sWS, sWS + 3, sPD))
        a('s_add_u32 s%d, s%d, 0x40000' % (sPD, sPD))
        a('s_add_u32 s%d, s%d, 1' % (sCNT, sCNT))
        a('s_waitcnt vmcnt(0)')
        a('s_barrier')
        Lp = a.newlabel('fsp')
        a('s_cmp_lg_u32 s%d, 0' % sW)
        a.branch('s_cbranch_scc1 %s' % Lp)
        pub_gp(a)
        a.label(Lp)
        if cfg.get('st4') and pb == 1: fused.stamp(a, cfg, 3)
        if cfg.get('st4') and pb == 2: fused.stamp(a, cfg, 4)
    R.tr_matrix(a, 0)
    R.vTR = save

def g1_wave(a, w, cfg, pre):
    a('v_and_b32 v%d, 15, v%d' % (vT, vL))
    a('v_lshrrev_b32 v%d, 4, v%d' % (vT + 1, vL))
    a('v_lshlrev_b32 v%d, 5, v%d' % (vT + 1, vT + 1))
    a('v_lshl_add_u32 v%d, v%d, 11, v%d' % (vXA, vT, vT + 1))
    a('v_add_u32 v4, 49152, v%d' % vL16)
    a('v_add_u32 v5, 4096, v%d' % vL16)
    a('s_lshl_b32 s%d, s%d, 16' % (sXO, sSEG))
    if cfg.get('fused'):
        a('s_lshl_b32 s%d, s92, 22' % sT0)
        a('s_add_u32 s%d, s%d, s%d' % (sXO, sXO, sT0))
    if w == 3:
        a('s_lshl_b32 s%d, s%d, 2' % (sT0, sH))
        a('s_add_u32 s%d, s%d, s%d' % (sT0, sT0, sJ))
        a('s_and_b32 s%d, s%d, 31' % (sT0, sT0))
        a('s_lshl_b32 s%d, s%d, 11' % (sT0, sT0))
        a('s_add_u32 s%d, s%d, s%d' % (sWM, sXO, sT0))
        a('s_add_u32 s%d, s%d, 0x%x' % (sWM, sWM, XF_OFF + (cfg.get('warm', 0) - 1) * 0x10000))
    a('s_add_u32 s%d, s%d, 0x%x' % (sXO, sXO, XF_OFF + w * 8192))
    if not cfg.get('fused'):
        a('s_add_u32 s%d, s%d, 0x8000' % (sT0, sXO))
        for x in xloads(0, sXO, sT0): a(x)
    a('s_lshl_b32 s%d, s%d, 5' % (sT0, sSEG))
    a('s_add_u32 s%d, s%d, s%d' % (sT0, sT0, sH))
    a('s_lshl_b32 s%d, s%d, 13' % (sT0, sT0))
    a('s_lshl_b32 s%d, s%d, 10' % (sT1, sJ))
    a('s_add_u32 s%d, s%d, s%d' % (sT2, sT0, sT1))
    a('s_add_u32 s%d, s%d, 0x%x' % (sQO, sT2, QF_OFF))
    a('s_add_u32 s%d, s%d, 0x%x' % (sKO, sT2, KF_OFF))
    a('s_add_u32 s%d, s%d, s%d' % (sT2, sT2, sT1))
    a('s_add_u32 s%d, s%d, 0x%x' % (sVO, sT2, VF_OFF))
    if not cfg.get('fused'): R.transpose_weights(a, with_wo=False)
    if cfg.get('fused'):
        dbg_wait(a, sDBG, 's91', 32, 8, sSPIN)
        a('s_add_u32 s%d, s%d, 0x8000' % (sT0, sXO))
        for x in xloads(0, sXO, sT0): a(x)
        a('s_mov_b32 s%d, 0' % sSEG)
        import modloop
        modloop.trickle_off(a)
        a('v_mov_b32 v243, 0')
    a('s_barrier')
    if not cfg.get('fused'): a('s_memrealtime s[72:73]')
    if cfg.get('fused'):
        import fused
        fused.stamp(a, cfg, 5)
    if cfg.get('gprof'):
        for k in range(8): a('s_mov_b32 s%d, 0' % (80 + k))
        a('s_memtime s[76:77]')
        a('s_waitcnt lgkmcnt(0)')
        a('s_mov_b32 s79, s76')
    L = pre + '_loop_w%d' % w; E = pre + '_done_w%d' % w
    if cfg.get('fused'):
        plan = [(0, True, (0, None)), (1, False, (1, 0)), (0, False, (0, 1)), (1, False, (None, 0)), (0, False, (None, None))]
        for n, (par, first, conv) in enumerate(plan):
            seg_body(a, w, par, first, cfg, None if n == 0 else [plan[n - 1]], conv, exact=(1 <= n <= 3))
            if n == 4:
                if w == 1: dbg_arrive(a, sDBG, 's91', 8)
        a('s_add_u32 s%d, s%d, 4' % (sSEG, sSEG))
        preds_odd = [(0, False)]
    else:
        seg_body(a, w, 0, True, cfg, None)
        preds_odd = [(0, True), (0, False)]
    a.label(L)
    if cfg.get('fused'):
        Lq = a.newlabel('nocv')
        a('s_and_b32 s%d, s%d, 3' % (sT0, sSEG))
        a('s_cmp_lg_u32 s%d, 0' % sT0)
        a.branch('s_cbranch_scc1 %s' % Lq)
        a('s_mov_b32 s90, %d' % w)
        a.branch('s_branch g1_side')
        a.label('g1_back_w%d' % w)
        a.label(Lq)
    seg_body(a, w, 1, False, cfg, preds_odd)
    a('s_add_u32 s%d, s%d, 2' % (sSEG, sSEG))
    a('s_cmp_ge_u32 s%d, s%d' % (sSEG, sEND))
    a.branch('s_cbranch_scc1 %s' % E)
    seg_body(a, w, 0, False, cfg, [(1, False)])
    a.branch('s_branch %s' % L)
    a.label(E)
    if cfg.get('gprof') or cfg.get('sprof'):
        a('s_lshl_b32 s%d, s95, 7' % sT0)
        a('s_add_u32 s%d, s%d, 0x%x' % (sT0, sT0, MISC_OFF + 131072 + w * 32))
        a('v_mov_b32 v9, 0')
        a('s_mov_b64 exec, 1')
        for k in range(8):
            a('v_mov_b32 v8, s%d' % (80 + k))
            a('buffer_store_dword v8, v9, s[%d:%d], s%d offen offset:%d' % (sWS, sWS + 3, sT0, 4 * k))
        a('s_mov_b64 exec, -1')
    for kind, lst in reduce_ops(w, 1, cfg.get('g1_sc1', 0)):
        if kind == 'ad': a('s_waitcnt lgkmcnt(0)')
        for x in lst: a(x)

def gen_g1_kernel(name, cfg):
    a = Asm()
    a.raw(kernel_header(name))
    a('s_cmp_ge_u32 s2, 256')
    a('s_cbranch_scc1 g1_exit')
    a('s_memrealtime s[70:71]')
    build_srds(a, dict(ws=sWS, wq=sWQ, wk=sWK, wv=sWV))
    a('v_and_b32 v%d, 63, v0' % vL)
    a('v_lshlrev_b32 v%d, 4, v%d' % (vL16, vL))
    a('v_lshrrev_b32 v%d, 6, v0' % vT)
    a('v_readfirstlane_b32 s%d, v%d' % (sW, vT))
    a('s_and_b32 s%d, s2, 127' % sT0)
    a('s_lshr_b32 s%d, s%d, 2' % (sH, sT0))
    a('s_and_b32 s%d, s%d, 3' % (sJ, sT0))
    a('s_lshr_b32 s%d, s2, 7' % sT0)
    a('s_lshl_b32 s%d, s%d, 5' % (sSEG, sT0))
    a('s_add_u32 s%d, s%d, 32' % (sEND, sSEG))
    R.load_weights(a, with_wo=False)
    for w in range(1, 4):
        a('s_cmp_eq_u32 s%d, %d' % (sW, w))
        a.branch('s_cbranch_scc1 g1_wave%d' % w)
    for w in range(4):
        a.label('g1_wave%d' % w)
        g1_wave(a, w, cfg, 'g1')
        if w == 0 and cfg.get('stamp'):
            a('s_memrealtime s[74:75]')
            a('s_waitcnt lgkmcnt(0)')
            a('v_mov_b32 v10, s70'); a('v_mov_b32 v11, s72'); a('v_mov_b32 v12, s74'); a('v_mov_b32 v13, 0')
            a('s_lshl_b32 s%d, s2, 4' % sT0)
            a('s_add_u32 s%d, s%d, 0x%x' % (sT0, sT0, MISC_OFF + 65536))
            a('v_mov_b32 v14, 0')
            a('s_mov_b64 exec, 1')
            a('buffer_store_dwordx4 v[10:13], v14, s[%d:%d], s%d offen' % (sWS, sWS + 3, sT0))
        a('s_endpgm')
    a.label('g1_exit')
    a('s_endpgm')
    return a.text()

def g1_side(a, cfg):
    import prerole, modloop as M
    a.label('g1_side')
    E = a.newlabel('sidee')
    blocks = {8: lambda: (dbg_wait(a, sDBG, 's91', 64, 8, sSPIN), prerole.dots_agpr(a, cfg, 92, 98304), a('s_barrier'), M.setup_gu(a, 'wg')),
              12: lambda: M.arrive(a, DB_RR),
              16: lambda: (M.trickle_off(a), M.block_top2(a, cfg)),
              20: lambda: (M.block_gate(a, cfg), M.setup_gu(a, 'wu')),
              28: lambda: (M.block_up(a, cfg), M.setup_down(a, 0)),
              32: lambda: (M.arrive(a, DB_M1, True), M.setup_down(a, 1)),
              36: lambda: M.trickle_off(a),
              40: lambda: (M.block_c(a, cfg), M.setup_wo(a, 3)),
              44: lambda: M.arrive(a, DB_M2),
              48: lambda: (M.block_wo3(a), M.setup_wo(a, 2)),
              56: lambda: M.trickle_off(a)}
    Ls = {k: a.newlabel('side') for k in blocks}
    for k in blocks:
        a('s_cmp_eq_u32 s%d, %d' % (sSEG, k))
        a.branch('s_cbranch_scc1 %s' % Ls[k])
    a.branch('s_branch %s' % E)
    for n, (k, fn) in enumerate(blocks.items()):
        a.label(Ls[k])
        if cfg.get('sprof'):
            a('s_memrealtime s[76:77]'); a('s_waitcnt lgkmcnt(0)'); a('s_mov_b32 s79, s76')
        fn()
        if cfg.get('sprof'):
            a('s_memrealtime s[76:77]'); a('s_waitcnt lgkmcnt(0)'); a('s_sub_u32 s%d, s76, s79' % (80 + min(n, 7)))
        a.branch('s_branch %s' % E)
    a.label(E)
    for w in range(3):
        a('s_cmp_eq_u32 s90, %d' % w)
        a.branch('s_cbranch_scc1 g1_back_w%d' % w)
    a.branch('s_branch g1_back_w3')

def q_tail(a, cfg):
    sW = R.sW
    PB = 0
    a('s_lshl_b32 s%d, s%d, 13' % (sT0, sW))
    a('v_add_u32 v242, s%d, v%d' % (sT0, vL16))
    a('s_lshl_b32 s%d, s%d, 11' % (sT0, sW))
    a('v_add_u32 v240, s%d, v%d' % (sT0, vL16))
    a('s_lshr_b32 s%d, s%d, 1' % (sT0, sW))
    a('s_lshl_b32 s%d, s%d, 18' % (sT0, sT0))
    a('s_lshl_b32 s%d, s%d, 13' % (sT1, sH))
    a('s_add_u32 s%d, s%d, s%d' % (sT0, sT0, sT1))
    a('s_and_b32 s%d, s%d, 1' % (sT1, sW))
    a('s_lshl_b32 s%d, s%d, 12' % (sT1, sT1))
    a('s_add_u32 s%d, s%d, s%d' % (sT0, sT0, sT1))
    a('s_lshl_b32 s%d, s%d, 10' % (sT1, sJ))
    a('s_add_u32 s%d, s%d, s%d' % (sQO, sT0, sT1))
    if QF_OFF: a('s_add_u32 s%d, s%d, 0x%x' % (sQO, sQO, QF_OFF))
    def xl(buf):
        a('s_add_u32 s%d, s%d, 0x10000' % (sXO, sXO))
        a('s_add_u32 s%d, s%d, 0x8000' % (sT0, sXO))
        for x in xloads(buf, sXO, sT0): a(x)
    xl(1)
    a('s_barrier')
    for rnd in range(NPB // 2):
        for buf in range(2):
            a('s_waitcnt vmcnt(%d)' % (16 if (buf == 0 or rnd + 1 < NPB // 2) else 0))
            for tt in range(2):
                for n in range(8):
                    for tile in range(2):
                        d = vr(vAC + ((buf * 2 + tt) * 2 + tile) * 4, 4)
                        a('v_mfma_f32_16x16x32_bf16 %s, %s, %s, %s' % (d, ar(wq_frag(tile, n >> 1, n & 1), 4), vr(xf(buf, tt, n >> 1, n & 1), 4), '0' if n == 0 else d))
            if rnd + 1 < NPB // 2: xl(buf)
        for q in range(8): a('ds_write_b128 v242, %s offset:%d' % (vr(vAC + 4 * q, 4), PB + q * 1024))
        a('s_waitcnt lgkmcnt(0)')
        a('s_barrier')
        for h2 in range(2):
            for wv in range(4):
                r = vRD + (h2 * 4 + wv) * 4
                a('ds_read_b128 v[%d:%d], v240 offset:%d' % (r, r + 3, PB + wv * 8192 + h2 * 1024))
        a('s_waitcnt lgkmcnt(0)')
        a('s_barrier')
        for h2 in range(2):
            b0 = vRD + h2 * 16
            for x in (0, 2):
                R.pk_add(a, b0 + x, b0 + x, b0 + 4 + x); R.pk_add(a, b0 + 8 + x, b0 + 8 + x, b0 + 12 + x)
            for x in (0, 2): R.pk_add(a, b0 + x, b0 + x, b0 + 8 + x)
            a('v_cvt_pk_bf16_f32 v%d, v%d, v%d' % (vOUT + 2 * h2, b0, b0 + 1))
            a('v_cvt_pk_bf16_f32 v%d, v%d, v%d' % (vOUT + 2 * h2 + 1, b0 + 2, b0 + 3))
        a('buffer_store_dwordx4 v[%d:%d], v%d, s[%d:%d], s%d offen sc1' % (vOUT, vOUT + 3, vL16, sWS, sWS + 3, sQO))
        a('s_add_u32 s%d, s%d, 0x80000' % (sQO, sQO))
    a('s_waitcnt vmcnt(0)')
    a('s_barrier')
    a('s_mov_b32 s%d, 65' % sCNT)
    L = a.newlabel('qtp')
    a('s_cmp_lg_u32 s%d, 0' % sW)
    a.branch('s_cbranch_scc1 %s' % L)
    pub_gp(a, 65)
    a.label(L)
```

```python
from common import *
import rrole as R
sWS, sDBG = 8, 32
sTR = 12
sDM, sDS, sDMI, sDSI = 68, 69, 70, 71
sGI = 93
sX = 24
sT0, sT1, sT2, sT3 = 45, 46, 47, 48
sK0, sK1, sSP = 66, 67, 44
sW, sB = 94, 95
D0 = 98304
vL, vL16 = 1, 2
vT = 6
vK = 144
vXS = 160
vF = 192
vAC = 224
vR = 240

def waddr(a, stride):
    a('v_lshrrev_b32 v%d, 2, v%d' % (vT, vL))
    a('v_mul_u32_u24 v%d, %d, v%d' % (vT, stride, vT))
    a('v_and_b32 v%d, 3, v%d' % (vT + 1, vL))
    a('v_lshl_add_u32 v%d, v%d, 4, v%d' % (vT + 2, vT + 1, vT))

def tr_addrs(a):
    a('s_lshl_b32 s%d, s%d, 14' % (sT0, sW))
    a('s_add_u32 s%d, s%d, %d' % (sT0, sT0, D0))
    a('v_add_u32 v%d, s%d, v%d' % (vT + 6, sT0, vL16))
    a('v_lshrrev_b32 v%d, 4, v%d' % (vT, vL))
    a('v_bfe_u32 v%d, v%d, 2, 2' % (vT + 1, vL))
    a('v_and_b32 v%d, 3, v%d' % (vT + 2, vL))
    a('v_lshl_add_u32 v%d, v%d, 4, v%d' % (vT + 3, vT, vT + 1))
    a('v_lshlrev_b32 v%d, 6, v%d' % (vT + 3, vT + 3))
    a('v_lshl_add_u32 v%d, v%d, 3, v%d' % (vT + 3, vT + 2, vT + 3))
    a('v_add_u32 v%d, s%d, v%d' % (vT + 7, sT0, vT + 3))

def tile_mma(a, d, tau, nT, ldsoff):
    for T in range(nT):
        for b in range(2):
            for half in range(2):
                r = vF + (T * 2 + b) * 4 + 2 * half
                a('ds_read_b64_tr_b16 v[%d:%d], v%d offset:%d' % (r, r + 1, vT + 7, ldsoff + (64 * T + 8 * b + 4 * half) * 64 + tau * 32))
    a('s_waitcnt lgkmcnt(0)')
    for n in range(2 * nT):
        a('v_mfma_f32_16x16x32_bf16 %s, %s, %s, %s' % (vr(d, 4), vr(vF + 4 * n, 4), vr(vXS + 4 * n, 4), '0' if n == 0 else vr(d, 4)))

def wave_max(a, v, t):
    for sh in (1, 2, 4, 8):
        a('v_max_u32_dpp v%d, v%d, v%d row_ror:%d row_mask:0xf bank_mask:0xf' % (v, v, v, sh))
    for sw in ('v_permlane16_swap_b32', 'v_permlane32_swap_b32'):
        a('v_mov_b32 v%d, v%d' % (t, v))
        a('%s v%d, v%d' % (sw, v, t))
        a('v_max_u32 v%d, v%d, v%d' % (v, v, t))

def top2(a):
    k = vXS
    a('v_lshlrev_b32 v%d, 7, v%d' % (vT, vL))
    a('s_mov_b32 s%d, 0x%x' % (sT0, RR_OFF))
    for n in range(8):
        a('buffer_load_dwordx4 v[%d:%d], v%d, s[%d:%d], s%d offen offset:%d sc1' % (k + 4 * n, k + 4 * n + 3, vT, sWS, sWS + 3, sT0, 16 * n))
    a('v_lshlrev_b32 v%d, 5, v%d' % (vT + 1, vL))
    a('v_sub_u32 v%d, 0xffff, v%d' % (vT + 1, vT + 1))
    a('s_waitcnt vmcnt(0)')
    for i in range(32):
        r = k + i
        a('v_ashrrev_i32 v%d, 31, v%d' % (vT + 2, r))
        a('v_or_b32 v%d, 0x80000000, v%d' % (vT + 2, vT + 2))
        a('v_cmp_u_f32 vcc, v%d, v%d' % (r, r))
        a('v_xor_b32 v%d, v%d, v%d' % (r, r, vT + 2))
        a('v_subrev_u32 v%d, %d, v%d' % (vT + 3, i, vT + 1))
        a('v_cndmask_b32 v%d, v%d, 0, vcc' % (r, r))
        a('v_and_or_b32 v%d, v%d, s%d, v%d' % (r, r, sT2, vT + 3))
    for rnd in range(2):
        m = vK
        a('v_max3_u32 v%d, v%d, v%d, v%d' % (m, k, k + 1, k + 2))
        for i in range(3, 31, 2): a('v_max3_u32 v%d, v%d, v%d, v%d' % (m, m, k + i, k + i + 1))
        a('v_max_u32 v%d, v%d, v%d' % (m, m, k + 31))
        wave_max(a, m, m + 1)
        a('v_readfirstlane_b32 s%d, v%d' % (sK0 + rnd, m))
        if rnd == 0:
            for i in range(32):
                a('v_cmp_eq_u32 vcc, v%d, v%d' % (k + i, m))
                a('v_cndmask_b32 v%d, v%d, 0, vcc' % (k + i, k + i))

def rnd4(a, base, t):
    a('v_cvt_pk_bf16_f32 v%d, v%d, v%d' % (t, base, base + 1)); a('v_cvt_pk_bf16_f32 v%d, v%d, v%d' % (t + 1, base + 2, base + 3))
    for i in range(2):
        a('v_lshlrev_b32 v%d, 16, v%d' % (base + 2 * i, t + i)); a('v_and_b32 v%d, 0xffff0000, v%d' % (base + 2 * i + 1, t + i))

def block_top2(a, cfg):
    L = a.newlabel('mb')
    a('s_cmp_ge_u32 s%d, 112' % sB)
    a.branch('s_cbranch_scc1 %s' % L)
    dbg_wait(a, sDBG, DB_RR, 128, vT, sSP, 1)
    a('s_mov_b32 s%d, 0xffff0000' % sT2)
    top2(a)
    for c in range(2):
        a('s_and_b32 s%d, s%d, 0xffff' % (sT0 + c, sK0 + c))
        a('s_sub_u32 s%d, 0xffff, s%d' % (sT0 + c, sT0 + c))
    a('v_and_b32 v%d, 1, v%d' % (vT, vL))
    a('v_cmp_eq_u32 vcc, 1, v%d' % vT)
    a('v_mov_b32 v%d, s%d' % (vT + 1, sT0))
    a('v_mov_b32 v%d, s%d' % (vT + 2, sT1))
    a('v_cndmask_b32 v%d, v%d, v%d, vcc' % (vT + 1, vT + 1, vT + 2))
    a('v_lshrrev_b32 v%d, 4, v%d' % (vT + 2, vL))
    a('v_lshlrev_b32 v%d, 5, v%d' % (vT + 2, vT + 2))
    a('v_lshl_add_u32 v%d, v%d, 11, v%d' % (vT + 4, vT + 1, vT + 2))
    a('s_lshl_b32 s%d, s%d, 9' % (sT2, sW))
    for n in range(8):
        a('buffer_load_dwordx4 a[%d:%d], v%d, s[%d:%d], s%d offen offset:%d' % (200 + 4 * n, 203 + 4 * n, vT + 4, sX, sX + 3, sT2, (n >> 1) * 128 + (n & 1) * 16))
    Ln = a.newlabel('m1np')
    a('s_or_b32 s%d, s%d, s%d' % (sT2, sB, sW))
    a('s_cmp_lg_u32 s%d, 0' % sT2)
    a.branch('s_cbranch_scc1 %s' % Ln)
    a('v_mov_b32 v%d, s%d' % (vK, sT0)); a('v_mov_b32 v%d, s%d' % (vK + 1, sT1))
    for c in range(2):
        r = vK + 2 + c
        a('s_and_b32 s%d, s%d, 0xffff0000' % (sT2, sK0 + c))
        a('s_xor_b32 s%d, s%d, 0x80000000' % (sT3, sT2))
        a('s_not_b32 s%d, s%d' % (sT2, sT2))
        a('s_and_b32 s%d, s%d, 0xffff0000' % (sT2, sT2))
        a('s_bitcmp1_b32 s%d, 31' % (sK0 + c))
        a('s_cselect_b32 s%d, s%d, s%d' % (sT2, sT3, sT2))
        a('v_mov_b32 v%d, s%d' % (r, sT2))
        a('v_mul_f32 v%d, 0xbfb8aa3b, v%d' % (r, r))
        a('v_exp_f32 v%d, v%d' % (r, r))
        a('v_add_f32 v%d, 1.0, v%d' % (r, r))
        a('v_rcp_f32 v%d, v%d' % (r, r))
        a('v_cvt_pk_bf16_f32 v%d, v%d, v%d' % (r, r, r))
        a('v_lshlrev_b32 v%d, 16, v%d' % (r, r))
    a('v_mov_b32 v%d, 0' % (vK + 4))
    a('s_mov_b32 s%d, 0x%x' % (sT2, IDX_OFF))
    a('s_mov_b64 exec, 1')
    a('buffer_store_dwordx4 v[%d:%d], v%d, s[%d:%d], s%d offen sc1' % (vK, vK + 3, vK + 4, sWS, sWS + 3, sT2))
    a('s_mov_b64 exec, -1')
    a.label(Ln)
    a.label(L)

def block_gate(a, cfg):
    L = a.newlabel('mg')
    a('s_cmp_ge_u32 s%d, 112' % sB)
    a.branch('s_cbranch_scc1 %s' % L)
    tr_addrs(a)
    for i in range(32): a('v_accvgpr_read_b32 v%d, a%d' % (vXS + i, 200 + i))
    for tau in range(2): tile_mma(a, vAC + 4 * tau, tau, 4, 0)
    for i in range(8): a('v_accvgpr_write_b32 a%d, v%d' % (192 + i, vAC + i))
    a.label(L)

def arrive(a, off, only112=False):
    Lw = a.newlabel('arr')
    a('s_cmp_lg_u32 s%d, 0' % sW)
    a.branch('s_cbranch_scc1 %s' % Lw)
    if only112:
        a('s_cmp_ge_u32 s%d, 112' % sB)
        a.branch('s_cbranch_scc1 %s' % Lw)
    dbg_arrive(a, sDBG, off, vT)
    a.label(Lw)

def block_up(a, cfg):
    L = a.newlabel('mu')
    a('s_cmp_ge_u32 s%d, 112' % sB)
    a.branch('s_cbranch_scc1 %s' % L)
    tr_addrs(a)
    for i in range(32): a('v_accvgpr_read_b32 v%d, a%d' % (vXS + i, 200 + i))
    for i in range(8): a('v_accvgpr_read_b32 v%d, a%d' % (vAC + i, 192 + i))
    a('s_waitcnt vmcnt(0)')
    for tau in range(2): tile_mma(a, vAC + 8 + 4 * tau, tau, 4, 0)
    for q in range(4): a('ds_write_b128 v%d, v[%d:%d] offset:%d' % (vT + 6, vAC + 4 * q, vAC + 4 * q + 3, q * 1024))
    a('s_waitcnt lgkmcnt(0)')
    a('s_barrier')
    Ld = a.newlabel('m1done')
    a('s_cmp_gt_u32 s%d, 1' % sW)
    a.branch('s_cbranch_scc1 %s' % Ld)
    a('s_lshl_b32 s%d, s%d, 10' % (sT0, sW))
    a('s_add_u32 s%d, s%d, %d' % (sT0, sT0, D0))
    a('v_add_u32 v%d, s%d, v%d' % (vT, sT0, vL16))
    for M in range(2):
        for wv in range(4):
            r = vF + (M * 4 + wv) * 4
            a('ds_read_b128 v[%d:%d], v%d offset:%d' % (r, r + 3, vT, wv * 16384 + M * 2048))
    a('s_waitcnt lgkmcnt(0)')
    for M in range(2):
        b0 = vF + M * 16
        for x in (0, 2):
            R.pk_add(a, b0 + x, b0 + x, b0 + 4 + x); R.pk_add(a, b0 + 8 + x, b0 + 8 + x, b0 + 12 + x)
        for x in (0, 2): R.pk_add(a, b0 + x, b0 + x, b0 + 8 + x)
    G, U = vF, vF + 16
    rnd4(a, G, vR); rnd4(a, U, vR + 2)
    for i in range(4):
        a('v_mul_f32 v%d, 0xbfb8aa3b, v%d' % (vR + 4 + i, G + i))
        a('v_exp_f32 v%d, v%d' % (vR + 4 + i, vR + 4 + i))
        a('v_add_f32 v%d, 1.0, v%d' % (vR + 4 + i, vR + 4 + i))
        a('v_rcp_f32 v%d, v%d' % (vR + 4 + i, vR + 4 + i))
        a('v_mul_f32 v%d, v%d, v%d' % (G + i, G + i, vR + 4 + i))
    rnd4(a, G, vR)
    for i in range(4): a('v_mul_f32 v%d, v%d, v%d' % (G + i, G + i, U + i))
    a('v_cvt_pk_bf16_f32 v%d, v%d, v%d' % (vR, G, G + 1)); a('v_cvt_pk_bf16_f32 v%d, v%d, v%d' % (vR + 1, G + 2, G + 3))
    a('v_and_b32 v%d, 15, v%d' % (vT, vL))
    a('v_lshrrev_b32 v%d, 4, v%d' % (vT + 1, vL))
    a('v_mul_u32_u24 v%d, 7168, v%d' % (vT + 2, vT))
    a('v_lshl_add_u32 v%d, v%d, 3, v%d' % (vT + 2, vT + 1, vT + 2))
    a('s_lshl_b32 s%d, s%d, 6' % (sT0, sB))
    a('s_lshl_b32 s%d, s%d, 5' % (sT1, sW))
    a('s_add_u32 s%d, s%d, s%d' % (sT0, sT0, sT1))
    a('s_add_u32 s%d, s%d, 0x%x' % (sT0, sT0, HB_OFF))
    a('v_cmp_gt_u32 vcc, 2, v%d' % vT)
    a('s_mov_b64 exec, vcc')
    a('buffer_store_dwordx2 v[%d:%d], v%d, s[%d:%d], s%d offen sc1' % (vR, vR + 1, vT + 2, sWS, sWS + 3, sT0))
    a('s_mov_b64 exec, -1')
    a.label(Ld)
    a('s_barrier')
    a.label(L)

def block_c(a, cfg):
    dbg_wait(a, sDBG, DB_M1, 112, vT, sSP, 1)
    tr_addrs(a)
    a('v_and_b32 v%d, 1, v%d' % (vT, vL))
    a('v_mul_u32_u24 v%d, 7168, v%d' % (vT, vT))
    a('v_lshrrev_b32 v%d, 4, v%d' % (vT + 1, vL))
    a('v_lshl_add_u32 v%d, v%d, 5, v%d' % (vT + 4, vT + 1, vT))
    for t in range(2):
        a('s_add_u32 s%d, s%d, %d' % (sT3, sB, 128 * t))
        a('s_min_u32 s%d, s%d, 223' % (sT3, sT3))
        a('s_lshr_b32 s%d, s%d, 5' % (sT2, sT3))
        a('s_lshl_b32 s%d, s%d, 2' % (sT0, sT2))
        a('s_add_u32 s%d, s%d, s%d' % (sT0, sT0, sW))
        a('s_lshl_b32 s%d, s%d, 8' % (sT0, sT0))
        a('s_add_u32 s%d, s%d, 0x%x' % (sT0, sT0, HB_OFF))
        for n in range(4):
            a('buffer_load_dwordx4 v[%d:%d], v%d, s[%d:%d], s%d offen offset:%d sc1' % (vXS + 4 * n, vXS + 4 * n + 3, vT + 4, sWS, sWS + 3, sT0, (n >> 1) * 128 + (n & 1) * 16))
        a('s_waitcnt vmcnt(0)')
        for tau in range(2): tile_mma(a, vAC + 8 * t + 4 * tau, tau, 2, t * 8192)
    for q in range(4): a('ds_write_b128 v%d, v[%d:%d] offset:%d' % (vT + 6, vAC + 4 * q, vAC + 4 * q + 3, q * 1024))
    a('s_waitcnt lgkmcnt(0)')
    a('s_barrier')
    Ld = a.newlabel('m2done')
    a('s_lshr_b32 s%d, s%d, 1' % (sT3, sW))
    a('s_lshl_b32 s%d, s%d, 7' % (sT3, sT3))
    a('s_add_u32 s%d, s%d, s%d' % (sT3, sT3, sB))
    a('s_cmp_ge_u32 s%d, 224' % sT3)
    a.branch('s_cbranch_scc1 %s' % Ld)
    a('s_lshl_b32 s%d, s%d, 10' % (sT0, sW))
    a('s_add_u32 s%d, s%d, %d' % (sT0, sT0, D0))
    a('v_add_u32 v%d, s%d, v%d' % (vT, sT0, vL16))
    for wv in range(4):
        a('ds_read_b128 v[%d:%d], v%d offset:%d' % (vF + 4 * wv, vF + 4 * wv + 3, vT, wv * 16384))
    a('s_waitcnt lgkmcnt(0)')
    for x in (0, 2):
        R.pk_add(a, vF + x, vF + x, vF + 4 + x); R.pk_add(a, vF + 8 + x, vF + 8 + x, vF + 12 + x)
    for x in (0, 2): R.pk_add(a, vF + x, vF + x, vF + 8 + x)
    a('v_and_b32 v%d, 15, v%d' % (vT, vL))
    a('v_lshrrev_b32 v%d, 4, v%d' % (vT + 1, vL))
    a('v_lshlrev_b32 v%d, 12, v%d' % (vT + 2, vT))
    a('v_lshl_add_u32 v%d, v%d, 4, v%d' % (vT + 2, vT + 1, vT + 2))
    a('s_lshr_b32 s%d, s%d, 5' % (sT2, sT3))
    a('s_lshl_b32 s%d, s%d, 13' % (sT0, sT2))
    a('s_and_b32 s%d, s%d, 31' % (sT1, sT3))
    a('s_lshl_b32 s%d, s%d, 7' % (sT1, sT1))
    a('s_add_u32 s%d, s%d, s%d' % (sT0, sT0, sT1))
    a('s_and_b32 s%d, s%d, 1' % (sT1, sW))
    a('s_lshl_b32 s%d, s%d, 6' % (sT1, sT1))
    a('s_add_u32 s%d, s%d, s%d' % (sT0, sT0, sT1))
    a('s_add_u32 s%d, s%d, 0x%x' % (sT0, sT0, YP_OFF))
    a('v_cmp_gt_u32 vcc, 2, v%d' % vT)
    a('s_mov_b64 exec, vcc')
    a('buffer_store_dwordx4 v[%d:%d], v%d, s[%d:%d], s%d offen sc1' % (vF, vF + 3, vT + 2, sWS, sWS + 3, sT0))
    a('s_mov_b64 exec, -1')
    a.label(Ld)
    a('s_barrier')

def trickle_off(a):
    build_srds(a, dict(wd=sTR))
    a('s_mov_b32 s%d, 0' % (sTR + 2))
    a('s_mov_b32 s%d, 0x30000' % sDM)
    a('s_mov_b32 s%d, 0' % sDS)
    a('s_mov_b32 s%d, 0' % sDMI)
    a('s_mov_b32 s%d, 0' % sDSI)

def trickle_common(a, name, stride, ldsadd):
    build_srds(a, {name: sTR})
    waddr(a, stride)
    a('v_mov_b32 v243, v%d' % (vT + 2))
    a('s_lshl_b32 s%d, s%d, 14' % (sDM, sW))
    a('s_add_u32 s%d, s%d, %d' % (sDM, sDM, D0 + ldsadd))
    a('s_mov_b32 s%d, 1024' % sDMI)
    a('s_mov_b32 s%d, %d' % (sDSI, 16 * stride))

def setup_gu(a, name):
    trickle_common(a, name, 7168, 0)
    a('s_mul_i32 s%d, s%d, %d' % (sDS, sW, 256 * 7168))
    a('s_min_u32 s%d, s%d, 111' % (sT1, sB))
    a('s_lshl_b32 s%d, s%d, 6' % (sT1, sT1))
    a('s_add_u32 s%d, s%d, s%d' % (sDS, sDS, sT1))

def setup_down(a, t):
    trickle_common(a, 'wd', 2048, t * 8192)
    a('s_add_u32 s%d, s%d, %d' % (sT3, sB, 128 * t))
    a('s_min_u32 s%d, s%d, 223' % (sT3, sT3))
    a('s_lshr_b32 s%d, s%d, 5' % (sT2, sT3))
    a('s_lshl_b32 s%d, s%d, 2' % (sT0, sT2))
    a('s_add_u32 s%d, s%d, s%d' % (sT0, sT0, sW))
    a('s_lshl_b32 s%d, s%d, 18' % (sDS, sT0))
    a('s_and_b32 s%d, s%d, 31' % (sT1, sT3))
    a('s_lshl_b32 s%d, s%d, 6' % (sT1, sT1))
    a('s_add_u32 s%d, s%d, s%d' % (sDS, sDS, sT1))

def setup_wo(a, q):
    trickle_common(a, 'wo', 2048, 0)
    a('s_lshl_b32 s%d, s%d, 21' % (sDS, sW))
    a('s_add_u32 s%d, s%d, 0x%x' % (sDS, sDS, q << 19))
    a('s_lshl_b32 s%d, s%d, 6' % (sT1, sGI))
    a('s_add_u32 s%d, s%d, s%d' % (sDS, sDS, sT1))

def wo_tr(a, q):
    a('s_lshl_b32 s%d, s%d, 14' % (sT0, sW))
    a('s_add_u32 s%d, s%d, %d' % (sT0, sT0, D0))
    a('v_lshrrev_b32 v%d, 4, v%d' % (vT, vL))
    a('v_bfe_u32 v%d, v%d, 2, 2' % (vT + 1, vL))
    a('v_and_b32 v%d, 3, v%d' % (vT + 2, vL))
    a('v_lshl_add_u32 v%d, v%d, 2, v%d' % (vT + 3, vT, vT + 1))
    a('v_lshlrev_b32 v%d, 6, v%d' % (vT + 3, vT + 3))
    a('v_lshl_add_u32 v%d, v%d, 4, v%d' % (vT + 3, vT + 2, vT + 3))
    a('v_add_u32 v%d, s%d, v%d' % (vT + 7, sT0, vT + 3))
    for tau in range(2):
        for p in range(8):
            for half in range(2):
                r = 64 * q + (tau * 8 + p) * 4 + 2 * half
                a('ds_read_b64_tr_b16 a[%d:%d], v%d offset:%d' % (r, r + 1, vT + 7, (32 * p + 16 * half) * 64 + tau * 8))
    a('s_waitcnt lgkmcnt(0)')

def block_wo3(a):
    a('s_waitcnt vmcnt(0)')
    wo_tr(a, 3)
```

```python
from common import *
import rrole as R, g1role as G1, prerole as P, g2role as G2, modrole as M

sGX, sGI, sGW, sGC = 92, 93, 94, 95
sNA, sNW, sAV, sAA, sSP = 88, 89, 54, 55, 44
sDBG = 32
sPREO = 91
sDID = 58
sPRE = 73
LDS_CTL = 147456

def gp_addr(a, dst):
    a('s_lshr_b32 s%d, s%d, 2' % (dst, sGC))
    a('s_lshl_b32 s%d, s%d, 8' % (dst, dst))
    a('s_and_b32 s%d, s%d, 3' % (R.sT3, sGC))
    a('s_lshl_b32 s%d, s%d, 2' % (R.sT3, R.sT3))
    a('s_add_u32 s%d, s%d, s%d' % (dst, dst, R.sT3))
    a('s_add_u32 s%d, s%d, 0x%x' % (dst, dst, GP_OFF))

def g_body(a, cfg):
    Ln = a.newlabel('gi')
    a('s_cmp_lg_u32 s%d, 0' % sGW)
    a.branch('s_cbranch_scc1 %s' % Ln)
    a('s_lshl_b32 s%d, s%d, 2' % (R.sT0, sGC))
    a('s_add_u32 s%d, s%d, 0x%x' % (R.sT2, R.sT0, AP_OFF))
    gp_addr(a, R.sT1)
    a('v_mov_b32 v12, 0')
    a('s_mov_b64 exec, 1')
    a('buffer_store_dword v12, v12, s[%d:%d], s%d offen sc1' % (R.sWS, R.sWS + 3, R.sT1))
    a('buffer_store_dword v12, v12, s[%d:%d], s%d offen sc1' % (R.sWS, R.sWS + 3, R.sT2))
    a('s_and_b32 s%d, s%d, 7' % (R.sT0, sGI))
    a('s_lshl_b32 s%d, s%d, 3' % (R.sT1, sGX))
    a('s_add_u32 s%d, s%d, s%d' % (R.sT0, R.sT0, R.sT1))
    a('s_lshl_b32 s%d, s%d, 7' % (R.sT0, R.sT0))
    a('s_lshr_b32 s%d, s%d, 3' % (R.sT1, sGI))
    a('s_lshl_b32 s%d, s%d, 2' % (R.sT1, R.sT1))
    a('s_add_u32 s%d, s%d, s%d' % (R.sT0, R.sT0, R.sT1))
    a('s_add_u32 s%d, s%d, 0x%x' % (R.sT0, R.sT0, WP_OFF))
    a('buffer_store_dword v12, v12, s[%d:%d], s%d offen sc1' % (R.sWS, R.sWS + 3, R.sT0))
    a('s_mov_b64 exec, -1')
    a('s_waitcnt vmcnt(0)')
    dbg_arrive(a, sDBG, DB_INIT2 if cfg.get('safe') else DB_INIT, 12)
    a.label(Ln)
    a('s_lshl_b32 s%d, s%d, 2' % (sPREO, sGX))
    a('s_add_u32 s%d, s%d, %d' % (sPREO, sPREO, DB_PRE2 if cfg.get('safe') else DB_PRE))
    P.sX, P.sGW, P.sWR = 24, 28, 36
    P.sW, P.sC = sGW, sGC
    build_srds(a, dict(x=P.sX, gw=P.sGW, wr=P.sWR))
    a('s_lshr_b32 s%d, s%d, 2' % (R.sH, sGC))
    a('s_and_b32 s%d, s%d, 3' % (R.sJ, sGC))
    a('s_mov_b32 s%d, s%d' % (R.sW, sGW))
    gp_addr(a, G1.sGPA)
    G1.XFL[0] = ' sc1'
    G1.fast_start(a, cfg)
    if cfg.get('dbgt'):
        a('s_cmp_lg_u32 s94, 0')
        a.branch('s_cbranch_scc1 f_nd4')
        dbgt(a, cfg, 14)
        a.label('f_nd4')
    a('s_mov_b32 s%d, %d' % (G1.sSEG, G1.NPB))
    a('s_mov_b32 s%d, %d' % (G1.sEND, 64 - G1.NPB))
    for w in range(1, 4):
        a('s_cmp_eq_u32 s%d, %d' % (sGW, w))
        a.branch('s_cbranch_scc1 fg1_wave%d' % w)
    for w in range(4):
        a.label('fg1_wave%d' % w)
        G1.g1_wave(a, w, cfg, 'fg1')
        a.branch('s_branch fg1_join')
    G1.g1_side(a, cfg)
    a.label('fg1_join')
    G1.q_tail(a, cfg)
    if cfg.get('dbgt'):
        a('s_cmp_lg_u32 s94, 0')
        a.branch('s_cbranch_scc1 f_nd2')
        dbgt(a, cfg, 11)
        a.label('f_nd2')
    if not cfg.get('st2') and not cfg.get('st4'): stamp(a, cfg, 1)
    build_srds(a, dict(wo=G2.sWO, x=G2.sX, out=G2.sOUT))
    G2.sI, G2.sW = sGI, sGW
    G2.out_consts(a)
    (G2.wo2_load_weights if cfg.get('wo2', 0) else G2.out_load_weights)(a, 2)
    dbg_wait_wg(a, sDBG, DB_M2, 128, 8, sSP, sGW)
    Lg = a.newlabel('g65'); Lgd = a.newlabel('g65d')
    a('v_mov_b32 v8, 0')
    a('s_lshl_b32 s%d, s%d, 8' % (R.sT1, sGI))
    a('s_add_u32 s%d, s%d, 0x%x' % (R.sT1, R.sT1, GP_OFF))
    a.label(Lg)
    a('buffer_load_dwordx4 v[12:15], v8, s[%d:%d], s%d offen sc1' % (R.sWS, R.sWS + 3, R.sT1))
    a('s_waitcnt vmcnt(0)')
    a('v_min3_u32 v12, v12, v13, v14')
    a('v_min_u32 v12, v12, v15')
    a('v_cmp_gt_u32 vcc, 65, v12')
    a('s_cbranch_vccz %s' % Lgd)
    a('s_sleep 4')
    a('s_add_u32 s%d, s%d, 1' % (sSP, sSP))
    a('s_cmp_lt_u32 s%d, 0x%x' % (sSP, SPIN_LIMIT))
    a('s_cbranch_scc1 %s' % Lg)
    a.label(Lgd)
    a('s_mov_b32 s%d, 0x%x' % (R.sT0, IDX_OFF))
    a('buffer_load_dwordx2 v[10:11], v8, s[%d:%d], s%d offen sc1' % (R.sWS, R.sWS + 3, R.sT0))
    a('s_waitcnt vmcnt(0)')
    a('v_readfirstlane_b32 s%d, v10' % G2.sIDX0)
    a('v_readfirstlane_b32 s%d, v11' % G2.sIDX1)
    a('s_mov_b32 s%d, 0' % sNA)
    a('s_mov_b32 s%d, 0' % sPRE)
    a('s_mov_b32 s%d, 0' % sNW)
    a('s_barrier')
    if not cfg.get('st2') and not cfg.get('st4'): stamp(a, cfg, 3)
    if cfg.get('g2prof'):
        for k in range(8): a('s_mov_b32 s%d, 0' % (66 + k))
        a('s_memtime s[76:77]')
        a('s_waitcnt lgkmcnt(0)')
        a('s_mov_b32 s79, s76')
    if cfg.get('dbgt'):
        a('s_cmp_lg_u32 s94, 0')
        a.branch('s_cbranch_scc1 f_nd3')
        dbgt(a, cfg, 13)
        a.label('f_nd3')
    a.label('g2_loop')
    a('s_mov_b32 s%d, 0' % sDID)
    Lc = a.newlabel('ctl')
    a('s_cmp_lg_u32 s%d, 0' % sGW)
    a.branch('s_cbranch_scc1 %s' % Lc)
    a('v_and_b32 v8, 31, v0')
    a('v_lshlrev_b32 v8, 2, v8')
    a('v_and_b32 v9, 3, v0')
    a('v_lshlrev_b32 v9, 2, v9')
    a('s_lshl_b32 s%d, s%d, 7' % (R.sT0, sGX))
    a('s_add_u32 s%d, s%d, 0x%x' % (R.sT0, R.sT0, AP_OFF))
    a('s_lshl_b32 s%d, s%d, 8' % (R.sT1, sGI))
    a('s_add_u32 s%d, s%d, 0x%x' % (R.sT1, R.sT1, PROG_OFF))
    a('buffer_load_dword v10, v8, s[%d:%d], s%d offen sc1' % (R.sWS, R.sWS + 3, R.sT0))
    a('buffer_load_dword v11, v9, s[%d:%d], s%d offen sc1' % (R.sWS, R.sWS + 3, R.sT1))
    a('s_waitcnt vmcnt(0)')
    for sh in (1, 2, 4, 8):
        a('v_min_u32_dpp v10, v10, v10 row_ror:%d row_mask:0xf bank_mask:0xf' % sh)
        if sh < 4: a('v_min_u32_dpp v11, v11, v11 row_ror:%d row_mask:0xf bank_mask:0xf' % sh)
    a('v_mov_b32 v12, v10')
    a('v_permlane16_swap_b32 v10, v12')
    a('v_min_u32 v10, v10, v12')
    a('v_mov_b32 v12, %d' % LDS_CTL)
    a('ds_write_b64 v12, v[10:11]')
    a('s_waitcnt lgkmcnt(0)')
    a.label(Lc)
    a('s_barrier')
    a('v_mov_b32 v12, %d' % LDS_CTL)
    a('ds_read_b64 v[10:11], v12')
    a('s_waitcnt lgkmcnt(0)')
    a('v_readfirstlane_b32 s%d, v10' % sAA)
    a('v_readfirstlane_b32 s%d, v11' % sAV)
    a('s_barrier')
    g2mark(a, cfg, 0)
    a('s_add_u32 s%d, s%d, 3' % (sAV, sAV))
    a('s_sub_u32 s%d, s%d, s%d' % (sAV, sAV, sGX))
    a('s_lshr_b32 s%d, s%d, 2' % (sAV, sAV))
    Lna = a.newlabel('noattn'); Lnt = a.newlabel('notask'); Lnw = a.newlabel('nowo'); Lpa = a.newlabel('nopub')
    a('s_cmp_le_u32 s%d, s%d' % (sAV, sNA))
    a.branch('s_cbranch_scc1 %s' % Lna)
    a('s_add_u32 s%d, s%d, 4' % (R.sT0, sNA))
    a('s_min_u32 s%d, s%d, s%d' % (sAV, sAV, R.sT0))
    a('s_add_u32 s%d, s%d, s%d' % (R.sT0, sNA, sGW))
    a('s_cmp_ge_u32 s%d, s%d' % (R.sT0, sAV))
    a.branch('s_cbranch_scc1 %s' % Lnt)
    a('s_lshl_b32 s%d, s%d, 2' % (R.sT0, R.sT0))
    a('s_add_u32 s%d, s%d, s%d' % (R.sT0, R.sT0, sGX))
    a('s_lshl_b32 s%d, s%d, 5' % (R.sT0, R.sT0))
    a('s_add_u32 s%d, s%d, s%d' % (G2.sTASK, R.sT0, sGI))
    Lpf = a.newlabel('havepf')
    a('s_add_u32 s%d, s%d, 1' % (R.sT0, G2.sTASK))
    a('s_cmp_eq_u32 s%d, s%d' % (R.sT0, sPRE))
    a.branch('s_cbranch_scc1 %s' % Lpf)
    G2.attn_consts(a, cfg)
    G2.attn_task(a, cfg, all_sc1=True, part=1)
    a.label(Lpf)
    G2.attn_task(a, cfg, all_sc1=True, st_flags=' sc1' if cfg.get('safe') else '', part=2)
    a('s_waitcnt vmcnt(0)')
    a.label(Lnt)
    a('s_barrier')
    a('s_mov_b32 s%d, s%d' % (sNA, sAV))
    a('s_mov_b32 s%d, 1' % sDID)
    a('s_cmp_lg_u32 s%d, 0' % sGW)
    a.branch('s_cbranch_scc1 %s' % Lpa)
    a('s_lshl_b32 s%d, s%d, 2' % (R.sT0, sGC))
    a('s_add_u32 s%d, s%d, 0x%x' % (R.sT0, R.sT0, AP_OFF))
    a('v_mov_b32 v10, s%d' % sNA)
    a('v_mov_b32 v11, 0')
    a('s_mov_b64 exec, 1')
    a('buffer_store_dword v10, v11, s[%d:%d], s%d offen%s' % (R.sWS, R.sWS + 3, R.sT0, ' sc1' if cfg.get('safe') else ''))
    a('s_mov_b64 exec, -1')
    a.label(Lpa)
    if cfg.get('g2prof'): a('s_add_u32 s70, s70, 1')
    a.label(Lna)
    g2mark(a, cfg, 1)
    a('s_cmp_le_u32 s%d, s%d' % (sAA, sNW))
    a.branch('s_cbranch_scc1 %s' % Lnw)
    a('s_lshl_b32 s%d, s%d, 2' % (R.sT0, sNW))
    a('s_add_u32 s%d, s%d, s%d' % (R.sT0, R.sT0, sGX))
    a('s_lshl_b32 s%d, s%d, 1' % (G2.sTILE, R.sT0))
    a('s_sub_u32 s%d, s%d, s%d' % (G2.sNB, sAA, sNW))
    a('s_min_u32 s%d, s%d, %d' % (G2.sNB, G2.sNB, cfg.get('wob', 4)))
    a('s_lshl_b32 s%d, s%d, 1' % (G2.sTN, sNW))
    a('s_add_u32 s%d, s%d, s%d' % (sNW, sNW, G2.sNB))
    a('s_lshl_b32 s%d, s%d, 1' % (G2.sNT, sNW))
    if cfg.get('wo2', 0): G2.wo2_batch(a, cfg, sGX, sNW, sSP)
    else: G2.wo_batch(a, cfg)
    a('s_mov_b32 s%d, 0' % sPRE)
    if cfg.get('wbl2', 0):
        Lwb = a.newlabel('nowb')
        a('s_lshl_b32 s%d, s%d, 2' % (R.sT0, sGI))
        a('s_add_u32 s%d, s%d, s%d' % (R.sT0, R.sT0, sGW))
        a('s_cmp_lg_u32 s%d, 2' % R.sT0)
        a('s_cbranch_scc1 %s' % Lwb)
        a('s_cmp_lt_u32 s%d, %d' % (sNW, cfg['wbl2']))
        a('s_cbranch_scc1 %s' % Lwb)
        a('s_cmp_ge_u32 s%d, 16' % sNW)
        a('s_cbranch_scc1 %s' % Lwb)
        a('buffer_wbl2 sc1')
        a.label(Lwb)
    a('s_mov_b32 s%d, 1' % sDID)
    if cfg.get('g2prof'): a('s_add_u32 s71, s71, 1')
    a.label(Lnw)
    g2mark(a, cfg, 2)
    Lsl = a.newlabel('nosleep')
    a('s_cmp_lg_u32 s%d, 0' % sDID)
    a('s_cbranch_scc1 %s' % Lsl)
    a('s_cmp_lt_u32 s%d, s%d' % (sNW, sNA))
    a('s_cbranch_scc1 %s' % Lsl)
    Lnp = a.newlabel('nopf')
    a('s_cmp_lg_u32 s%d, 0' % sGW)
    a('s_cbranch_scc1 %s' % Lnp)
    a('s_lshl_b32 s%d, s%d, 2' % (R.sT0, sNA))
    a('s_add_u32 s%d, s%d, s%d' % (R.sT0, R.sT0, sGX))
    a('s_lshl_b32 s%d, s%d, 5' % (R.sT0, R.sT0))
    a('s_add_u32 s%d, s%d, s%d' % (G2.sTASK, R.sT0, sGI))
    a('s_add_u32 s%d, s%d, 1' % (R.sT0, G2.sTASK))
    a('s_cmp_eq_u32 s%d, s%d' % (R.sT0, sPRE))
    a('s_cbranch_scc1 %s' % Lnp)
    a('s_mov_b32 s%d, s%d' % (sPRE, R.sT0))
    G2.attn_consts(a, cfg)
    G2.attn_task(a, cfg, all_sc1=True, part=1)
    a.label(Lnp)
    a('s_sleep %d' % cfg.get('g2sleep', 8))
    a.label(Lsl)
    g2mark(a, cfg, 3)
    a('s_add_u32 s%d, s%d, 1' % (sSP, sSP))
    a('s_cmp_ge_u32 s%d, 0x%x' % (sSP, SPIN_LIMIT))
    a.branch('s_cbranch_scc1 g2_done')
    a('s_cmp_lt_u32 s%d, 16' % sNW)
    a.branch('s_cbranch_scc1 g2_loop')
    a.label('g2_done')
    dbgt(a, cfg, 12)
    if cfg.get('g2prof'):
        a('s_lshl_b32 s45, s95, 7')
        a('s_lshl_b32 s46, s94, 5')
        a('s_add_u32 s45, s45, s46')
        a('s_add_u32 s45, s45, 0x%x' % (MISC_OFF + 131072))
        a('v_mov_b32 v9, 0')
        a('s_mov_b64 exec, 1')
        for k in range(8):
            a('v_mov_b32 v8, s%d' % (66 + k))
            a('buffer_store_dword v8, v9, s[%d:%d], s45 offen offset:%d' % (R.sWS, R.sWS + 3, 4 * k))
        a('s_mov_b64 exec, -1')
    if not cfg.get('st4'): stamp(a, cfg, 4)
    a('s_endpgm')

def g2mark(a, cfg, k):
    if not cfg.get('g2prof'): return
    a('s_memtime s[76:77]')
    a('s_waitcnt lgkmcnt(0)')
    a('s_sub_u32 s78, s76, s79')
    a('s_add_u32 s%d, s%d, s78' % (66 + k, 66 + k))
    a('s_mov_b32 s79, s76')

def stamp(a, cfg, k):
    if not cfg.get('stamp'): return
    L = a.newlabel('stp')
    a('s_cmp_lg_u32 s%d, 0' % sGW)
    a.branch('s_cbranch_scc1 %s' % L)
    a('s_memrealtime s[74:75]')
    a('s_waitcnt lgkmcnt(0)')
    a('v_mov_b32 v250, s74')
    a('s_lshl_b32 s74, s%d, 5' % sGC)
    a('s_add_u32 s74, s74, 0x%x' % (MISC_OFF + 65536 + 4 * k))
    a('v_mov_b32 v251, 0')
    a('s_mov_b64 exec, 1')
    a('buffer_store_dword v250, v251, s[%d:%d], s74 offen' % (R.sWS, R.sWS + 3))
    a('s_mov_b64 exec, -1')
    a.label(L)

def roles(a, cfg):
    a('s_cmp_ge_u32 s%d, 4' % R.sRX)
    a.branch('s_cbranch_scc1 f_grole')
    R.r_body(a, cfg)
    a.label('f_grole')
    a('s_sub_u32 s%d, s%d, 4' % (sGX, R.sRX))
    a('s_mov_b32 s%d, s%d' % (sGI, R.sI))
    a('s_mov_b32 s%d, s%d' % (sGW, R.sW))
    a('s_lshl_b32 s%d, s%d, 5' % (sGC, sGX))
    a('s_add_u32 s%d, s%d, s%d' % (sGC, sGC, sGI))
    stamp(a, cfg, 0)
    g_body(a, cfg)

def common_init(a):
    build_srds(a, dict(ws=R.sWS, wq=R.sWQ, wk=R.sWK, wv=R.sWV, wo=R.sWO, mem0=R.sM0, dbg=R.sDBG))
    a('s_mov_b32 s%d, 0' % R.sSPIN)
    R.lane_consts(a)
    a('v_lshrrev_b32 v%d, 6, v0' % R.vT)
    a('v_readfirstlane_b32 s%d, v%d' % (R.sW, R.vT))

def gen_fused(name, cfg):
    import re
    cfg = dict(cfg); cfg['fused'] = 1; cfg['g1_sc1'] = 1
    sGT = 2
    a = Asm()
    a.raw(kernel_header(name))
    a('s_cmp_ge_u32 s2, 256')
    a('s_cbranch_scc0 f_start')
    a('s_endpgm')
    a.label('f_start')
    if cfg.get('cpf', 1):
        a('s_getpc_b64 s[4:5]')
        a('s_and_b32 s4, s4, 0xffffff00')
        a('s_lshr_b32 s6, s2, 3')
        a('s_lshl_b32 s6, s6, 12')
        a('v_lshlrev_b32 v1, 4, v0')
        a('v_add_u32 v1, s6, v1')
        a('v_mov_b32 v3, s5')
        a('v_add_co_u32 v2, vcc, s4, v1')
        a('v_addc_co_u32 v3, vcc, 0, v3, vcc')
        a('global_load_dwordx4 v[244:247], v[2:3], off')
    common_init(a)
    if cfg.get('dbgt'):
        a('s_lshl_b32 s97, s%d, 8' % R.sW)
        a('s_add_u32 s97, s97, s2')
        a('s_cmp_ge_u32 s97, 4')
        a.branch('s_cbranch_scc1 f_nodbg')
        dbgt(a, cfg, 8, True)
        a.label('f_nodbg')
    a('s_getreg_b32 s%d, hwreg(HW_REG_XCC_ID)' % R.sRX)
    a('s_and_b32 s%d, s%d, 7' % (R.sRX, R.sRX))
    vT = R.vT
    Lt = a.newlabel('tk')
    a('s_cmp_lg_u32 s%d, 0' % R.sW)
    a.branch('s_cbranch_scc1 %s' % Lt)
    a('v_mov_b32 v%d, 1' % vT)
    a('s_lshl_b32 s%d, s%d, %d' % (R.sT0, R.sRX, 2))
    a('v_mov_b32 v%d, s%d' % (vT + 2, R.sT0))
    a('s_mov_b64 exec, 1')
    a('buffer_atomic_add v%d, v%d, s[%d:%d], 0 offen sc0 sc1' % (vT, vT + 2, R.sDBG, R.sDBG + 3))
    a('v_mov_b32 v%d, %d' % (vT + 2, R.LDS_TK))
    a('s_waitcnt vmcnt(0)')
    a('ds_write_b32 v%d, v%d' % (vT + 2, vT))
    a('s_waitcnt lgkmcnt(0)')
    a('s_mov_b64 exec, -1')
    a.label(Lt)
    a('s_barrier')
    a('v_mov_b32 v%d, %d' % (vT + 2, R.LDS_TK))
    a('ds_read_b32 v%d, v%d' % (vT, vT + 2))
    a('s_waitcnt lgkmcnt(0)')
    a('v_readfirstlane_b32 s%d, v%d' % (R.sI, vT))
    a('s_cmp_lt_u32 s%d, 32' % R.sI)
    a.branch('s_cbranch_scc1 f_census_ok')
    Lo = a.newlabel('ovf')
    a('s_cmp_lg_u32 s%d, 0' % R.sW)
    a.branch('s_cbranch_scc1 %s' % Lo)
    dbg_arrive(a, R.sDBG, DB_BAD, vT)
    a('s_waitcnt vmcnt(0)')
    dbg_arrive(a, R.sDBG, DB_INIT, vT)
    a.label(Lo)
    init_wait(a, R.sDBG, cfg, vT, R.sSPIN, R.sT0)
    a.branch('s_branch SAFE_ENTRY')
    a.label('f_census_ok')
    head = a.text()
    gl0 = Asm.GL
    a = Asm()
    roles(a, cfg)
    fast = a.text()
    gl1 = Asm.GL
    cfg2 = dict(cfg); cfg2['safe'] = 1; cfg2['stamp'] = 0; cfg2['prof'] = 0; cfg2['tl'] = 0; cfg2['st3'] = 0; cfg2['st2'] = 0; cfg2['gprof'] = 0; cfg2['g2prof'] = 0; cfg2['st4'] = 0; cfg2['sprof'] = 0
    SH = 128 * MB
    saved = (R.MX_OFF, R.QKX_OFF, R.OX_OFF, G1.XF_OFF, P.XF_OFF)
    R.MX_OFF += SH; R.QKX_OFF += SH; R.OX_OFF += SH; G1.XF_OFF += SH; P.XF_OFF += SH; R.SAFE[0] = True
    b = Asm()
    b('s_mov_b64 exec, -1')
    b('s_waitcnt vmcnt(0) lgkmcnt(0)')
    b('s_barrier')
    common_init(b)
    b('s_lshr_b32 s%d, s%d, 5' % (R.sRX, sGT))
    b('s_and_b32 s%d, s%d, 7' % (R.sRX, R.sRX))
    b('s_and_b32 s%d, s%d, 31' % (R.sI, sGT))
    b.fence()
    head2 = b.text()
    dbgbuild = any(cfg.get(k) for k in ('stamp', 'prof', 'tl', 'st3', 'st2', 'gprof', 'g2prof', 'dbgt'))
    if not dbgbuild: Asm.GL = gl0
    b = Asm()
    roles(b, cfg2)
    Asm.GL = max(Asm.GL, gl1)
    R.MX_OFF, R.QKX_OFF, R.OX_OFF, G1.XF_OFF, P.XF_OFF = saved; R.SAFE[0] = False
    safe = b.text()
    import difflib
    labels = set(re.findall(r'^([A-Za-z_][\w]*):', safe + fast, re.M))
    rx = re.compile(r'\b(' + '|'.join(sorted(labels, key=len, reverse=True)) + r')\b')
    fl = [rx.sub(lambda m: m.group(1) + '_\\sf', l.strip()) for l in fast.split('\n') if l.strip()]
    sl = [rx.sub(lambda m: m.group(1) + '_\\sf', l.strip()) for l in safe.split('\n') if l.strip()]
    out = ['.macro ROLES sf']
    if len(fl) == len(sl) or True:
        sm = difflib.SequenceMatcher(None, fl, sl, autojunk=False) if len(fl) != len(sl) else None
        if sm is None:
            ops = []
            i = 0
            while i < len(fl):
                j = i
                same = fl[i] == sl[i]
                while j < len(fl) and (fl[j] == sl[j]) == same: j += 1
                ops.append(('equal' if same else 'replace', i, j, i, j)); i = j
        else:
            ops = sm.get_opcodes()
        for tag, i1, i2, j1, j2 in ops:
            if tag == 'equal': out += fl[i1:i2]
            else:
                out.append('.if \\sf == 0'); out += fl[i1:i2]; out.append('.else'); out += sl[j1:j2]; out.append('.endif')
    out.append('.endm')
    return '\n'.join(out) + '\n' + head + 'ROLES 0\nSAFE_ENTRY:\n' + head2 + 'ROLES 1\n'
```

```python
from common import *

sWS, sWQ, sWK, sWV, sWO, sM0, sDBG = 8, 12, 16, 20, 24, 28, 32
sRX, sI, sW, sSTEP, sSPIN, sT0, sT1, sT2, sT3, sH, sJ = 40, 41, 42, 43, 44, 45, 46, 47, 48, 49, 50
sMXR, sMXW, sQKW, sQKR, sOXR, sOXW, sPXR, sPXW, sARC, sKF, sVF = 52, 53, 54, 55, 56, 57, 58, 59, 60, 61, 62
sSLOT, sSLOT2, sC, sA0, sA1, sA2, sA3, sP0, sP1 = 63, 64, 65, 66, 67, 68, 69, 74, 75
vL, vL16, vP8, vDup, vOD, vL8 = 1, 2, 3, 4, 5, 6
vSENT = 8
vT = 12
vSET = 16
vM = 64
vACC = 80
vZ = 128
vR = 144
vMLO, vMHI, vFLO = 156, 157, 158
vTR = 144
vKX = 160
vVX = 192
vS = 200
vP = 212
vVZ = 222
vO = 224
vX = 160
vXR = 224
vXA, vXM, vZERO = 232, 233, 234
sXB = 36
sPX1, sP2, sP3 = 51, 72, 73
sGP = 59
sMP0, sMP1 = 4, 5
vL16B, vXAB = 7, 236
LDS_B = 0
LDS_D = 12288
LDS_KV = 16384
LDS_TK = 65536
SWITCH = 5

def acc(tile, b): return vACC + (tile * 2 + b) * 4
def wq_frag(tile, T, b): return ((tile * 4 + T) * 2 + b) * 4
def wo_frag(tau, u, b): return 192 + ((tau * 4 + u) * 2 + b) * 4

def check_sent(a, regs, tmp):
    regs = list(regs)
    h = len(regs) // 2
    chains = [(regs[:h], tmp), (regs[h:], tmp + 1)]
    outs = []
    for rg, t in chains:
        seq = ['v_max3_u32 v%d, v%d, v%d, v%d' % (t, rg[0], rg[1], rg[2])]
        k = 3
        while k + 1 < len(rg):
            seq.append('v_max3_u32 v%d, v%d, v%d, v%d' % (t, t, rg[k], rg[k + 1])); k += 2
        if k < len(rg): seq.append('v_max_u32 v%d, v%d, v%d' % (t, t, rg[k]))
        outs.append(seq)
    for x, y in zip(outs[0], outs[1]):
        a(x); a(y)
    a('v_max_u32 v%d, v%d, v%d' % (tmp, tmp, tmp + 1))
    a('v_cmp_eq_u32 vcc, -1, v%d' % tmp)

def delay(a, n):
    if n <= 0: return
    if n >= 4: a('s_sleep %d' % (n // 4))
    for _ in range(n % 4): a('s_nop 3')

def spoll_issue(a, nsets, loads, gap):
    for k in range(nsets):
        for ld in loads(k): a(ld)
        if k < nsets - 1: delay(a, gap)

def spoll(a, nsets, loads, regs, consume, first=0, gap=0, issued=False):
    L = a.newlabel('sp'); J = a.newlabel('spj')
    C = [a.newlabel('spc') for _ in range(nsets)]
    nl = len(loads(0))
    if not issued:
        delay(a, first)
        spoll_issue(a, nsets, loads, gap)
    a.label(L)
    for k in range(nsets):
        a('s_waitcnt vmcnt(%d)' % (nl * (nsets - 1)))
        check_sent(a, regs(k), vT)
        a('s_cbranch_vccz %s' % C[k])
        for ld in loads(k): a(ld)
    a('s_add_u32 s%d, s%d, 1' % (sSPIN, sSPIN))
    a('s_cmp_lt_u32 s%d, 0x%x' % (sSPIN, SPIN_LIMIT))
    a('s_cbranch_scc1 %s' % L)
    a('s_waitcnt vmcnt(0)')
    for k in range(nsets):
        a.label(C[k], fence=False); a.hist = []
        consume(k)
        if k < nsets - 1: a.branch('s_branch %s' % J)
    a.label(J)

def ppoll(a, nb, loads, regs, consume, first=0, issued=False):
    nl = len(loads(0))
    if not issued:
        delay(a, first)
        for T in range(nb):
            for ld in loads(T): a(ld)
    for T in range(nb):
        C = a.newlabel('ppc'); Rr = a.newlabel('ppr'); OK = a.newlabel('ppo')
        a('s_waitcnt vmcnt(%d)' % (nl * (nb - 1 - T)))
        rg = list(regs(T))
        def chk():
            if len(rg) == 4:
                a('v_max3_u32 v%d, v%d, v%d, v%d' % (vT, rg[0], rg[1], rg[2]))
                a('v_max_u32 v%d, v%d, v%d' % (vT, vT, rg[3]))
                a('v_cmp_eq_u32 vcc, -1, v%d' % vT)
            else:
                check_sent(a, rg, vT)
        chk()
        a('s_cbranch_vccz %s' % OK)
        saved = list(a.hist)
        a.label(Rr)
        for T2 in range(T, nb):
            for ld in loads(T2): a(ld)
        a('s_add_u32 s%d, s%d, 1' % (sSPIN, sSPIN))
        a('s_waitcnt vmcnt(%d)' % (nl * (nb - 1 - T)))
        chk()
        a('s_cbranch_vccz %s' % OK)
        a('s_cmp_lt_u32 s%d, 0x%x' % (sSPIN, SPIN_LIMIT))
        a('s_cbranch_scc1 %s' % Rr)
        a.label(OK, fence=False); a.hist = saved
        consume(T)

COLD = []
def chk_list(rg):
    rg = list(rg)
    if len(rg) == 4:
        return ['v_max3_u32 v%d, v%d, v%d, v%d' % (vT, rg[0], rg[1], rg[2]), 'v_max_u32 v%d, v%d, v%d' % (vT, vT, rg[3]), 'v_cmp_eq_u32 vcc, -1, v%d' % vT]
    assert len(rg) == 8
    return ['v_max3_u32 v%d, v%d, v%d, v%d' % (vT, rg[0], rg[1], rg[2]), 'v_max3_u32 v%d, v%d, v%d, v%d' % (vT + 1, rg[3], rg[4], rg[5]),
            'v_max3_u32 v%d, v%d, v%d, v%d' % (vT, vT, rg[6], rg[7]), 'v_max_u32 v%d, v%d, v%d' % (vT, vT, vT + 1), 'v_cmp_eq_u32 vcc, -1, v%d' % vT]

def ppoll2(a, nb, loads, regs, mfmas, first=0, issued=False, at=1):
    nl = len(loads(0))
    if not issued:
        delay(a, first)
        for T in range(nb):
            for ld in loads(T): a(ld)
    a('s_waitcnt vmcnt(%d)' % (nl * (nb - 1)))
    for x in chk_list(regs(0)): a(x)
    for T in range(nb):
        Rr = a.newlabel('ppr'); OK = a.newlabel('ppo')
        a('s_cbranch_vccnz %s' % Rr)
        a.label(OK, fence=False)
        def cold(T=T, Rr=Rr, OK=OK):
            a.label(Rr)
            a('s_nop 7')
            for T2 in range(T, nb):
                for ld in loads(T2): a(ld)
            a('s_add_u32 s%d, s%d, 1' % (sSPIN, sSPIN))
            a('s_waitcnt vmcnt(%d)' % (nl * (nb - 1 - T)))
            for x in chk_list(regs(T)): a(x)
            a('s_cbranch_vccz %s' % OK)
            a('s_cmp_lt_u32 s%d, 0x%x' % (sSPIN, SPIN_LIMIT))
            a('s_cbranch_scc1 %s' % Rr)
            a('s_branch %s' % OK)
        COLD.append(cold)
        ms = mfmas(T)
        fill = []
        if T + 1 < nb: fill = ['s_waitcnt vmcnt(%d)' % (nl * (nb - 2 - T))] + chk_list(regs(T + 1))
        slots = len(ms) - at
        per = -(-len(fill) // slots) if fill else 0
        for n, x in enumerate(ms):
            a(x)
            if n >= at - 1 and n < len(ms) - 1 or (n == len(ms) - 1):
                k = per if n < len(ms) - 1 else len(fill)
                for y in fill[:k]: a(y)
                fill = fill[k:]

def combine_pair(a, z, t0, t1):
    for i in range(4):
        a('v_add_f32_dpp v%d, v%d, v%d row_ror:8 row_mask:0xf bank_mask:0x3' % (z + i, acc(t0, 1) + i, acc(t0, 0) + i))
        a('v_add_f32_dpp v%d, v%d, v%d row_ror:8 row_mask:0xf bank_mask:0xc' % (z + i, acc(t1, 0) + i, acc(t1, 1) + i))

def pk_add(a, d, x, y):
    a('v_pk_add_f32 v[%d:%d], v[%d:%d], v[%d:%d]' % (d, d + 1, x, x + 1, y, y + 1))

def reduce3(a, z, ldsbase, w):
    others = [x for x in range(4) if x != w]
    for n, o in enumerate(others):
        a('ds_read_b128 v[%d:%d], v%d offset:%d' % (vR + 4 * n, vR + 4 * n + 3, vL16, ldsbase + o * 1024))
    a('s_waitcnt lgkmcnt(2)')
    pk_add(a, z, z, vR); pk_add(a, z + 2, z + 2, vR + 2)
    a('s_waitcnt lgkmcnt(0)')
    pk_add(a, vR + 4, vR + 4, vR + 8); pk_add(a, vR + 6, vR + 6, vR + 10)
    pk_add(a, z, z, vR + 4); pk_add(a, z + 2, z + 2, vR + 6)

LW = dict(order=0, rdelay=0)
def load_weights(a, with_wo=True, hook=None):
    a('v_lshrrev_b32 v%d, 2, v%d' % (vT, vL))
    a('v_and_b32 v%d, 3, v%d' % (vT + 1, vL))
    a('v_lshlrev_b32 v%d, 4, v%d' % (vT + 1, vT + 1))
    a('v_lshl_add_u32 v%d, v%d, 13, v%d' % (vT + 2, vT, vT + 1))
    a('v_lshl_add_u32 v%d, v%d, 11, v%d' % (vT + 3, vT, vT + 1))
    def wo():
        a('s_lshl_b32 s%d, s%d, 21' % (sT0, sRX))
        a('s_lshl_b32 s%d, s%d, 19' % (sT1, sW))
        a('s_add_u32 s%d, s%d, s%d' % (sT0, sT0, sT1))
        a('s_lshl_b32 s%d, s%d, 6' % (sT1, sI))
        a('s_add_u32 s%d, s%d, s%d' % (sT0, sT0, sT1))
        for n in range(16):
            a('buffer_load_dwordx4 a[%d:%d], v%d, s[%d:%d], s%d offen' % (192 + 4 * n, 192 + 4 * n + 3, vT + 3, sWO, sWO + 3, sT0))
            if n < 15: a('s_add_u32 s%d, s%d, 0x8000' % (sT0, sT0))
    if with_wo and LW['order'] & 1:
        wo()
        if hook: hook()
        for _ in range(LW['rdelay']): a('s_sleep 32')
    a('s_lshl_b32 s%d, s%d, 21' % (sT2, sW))
    a('s_lshl_b32 s%d, s%d, 8' % (sT1, sH))
    a('s_add_u32 s%d, s%d, s%d' % (sT2, sT2, sT1))
    a('s_lshl_b32 s%d, s%d, 6' % (sT1, sJ))
    a('s_add_u32 s%d, s%d, s%d' % (sT2, sT2, sT1))
    if LW['order'] & 2:
        for M, srd in ((1, sWK), (2, sWV), (0, sWQ)):
            a('s_mov_b32 s%d, s%d' % (sT0, sT2))
            for n in range(16):
                a('buffer_load_dwordx4 a[%d:%d], v%d, s[%d:%d], s%d offen' % (64 * M + 4 * n, 64 * M + 4 * n + 3, vT + 2, srd, srd + 3, sT0))
                if n < 15: a('s_add_u32 s%d, s%d, 0x20000' % (sT0, sT0))
    else:
        a('s_mov_b32 s%d, s%d' % (sT0, sT2))
        for n in range(16):
            for M, srd in enumerate((sWQ, sWK, sWV)):
                a('buffer_load_dwordx4 a[%d:%d], v%d, s[%d:%d], s%d offen' % (64 * M + 4 * n, 64 * M + 4 * n + 3, vT + 2, srd, srd + 3, sT0))
            if n < 15: a('s_add_u32 s%d, s%d, 0x20000' % (sT0, sT0))
    if with_wo and not (LW['order'] & 1): wo()

def rstamp(a, k):
    a('s_memrealtime s[%d:%d]' % (80 + 2 * k, 81 + 2 * k))

def tr_setup(a):
    a('s_lshl_b32 s%d, s%d, 14' % (sT0, sW))
    a('v_add_u32 v%d, s%d, v%d' % (vTR, sT0, vL16))
    a('v_lshrrev_b32 v%d, 4, v%d' % (vT, vL))
    a('v_bfe_u32 v%d, v%d, 2, 2' % (vT + 1, vL))
    a('v_and_b32 v%d, 3, v%d' % (vT + 2, vL))
    a('v_lshl_add_u32 v%d, v%d, 4, v%d' % (vT + 3, vT, vT + 1))
    a('v_lshlrev_b32 v%d, 6, v%d' % (vT + 3, vT + 3))
    a('v_lshl_add_u32 v%d, v%d, 3, v%d' % (vT + 3, vT + 2, vT + 3))
    a('v_add_u32 v%d, s%d, v%d' % (vTR + 1, sT0, vT + 3))
    a('v_lshl_add_u32 v%d, v%d, 2, v%d' % (vT + 3, vT, vT + 1))
    a('v_lshlrev_b32 v%d, 6, v%d' % (vT + 3, vT + 3))
    a('v_lshl_add_u32 v%d, v%d, 4, v%d' % (vT + 3, vT + 2, vT + 3))
    a('v_add_u32 v%d, s%d, v%d' % (vTR + 2, sT0, vT + 3))

def tr_matrix(a, M):
    for n in range(16):
        a('ds_write_b128 v%d, a[%d:%d] offset:%d' % (vTR, 64 * M + 4 * n, 64 * M + 4 * n + 3, n * 1024))
    a('s_waitcnt lgkmcnt(0)')
    for tau in range(2):
        for T in range(4):
            for b in range(2):
                for half in range(2):
                    if M < 3:
                        r = wq_frag(2 * M + tau, T, b) + 2 * half
                        off = (64 * T + 8 * b + 4 * half) * 64 + tau * 32
                        a('ds_read_b64_tr_b16 a[%d:%d], v%d offset:%d' % (r, r + 1, vTR + 1, off))
                    else:
                        r = wo_frag(tau, T, b) + 2 * half
                        off = (32 * (2 * T + b) + 16 * half) * 64 + tau * 8
                        a('ds_read_b64_tr_b16 a[%d:%d], v%d offset:%d' % (r, r + 1, vTR + 2, off))
    a('s_waitcnt lgkmcnt(0)')

def transpose_weights(a, with_wo=True, st=False):
    tr_setup(a)
    if LW['order'] == 3 and with_wo:
        for n, M in enumerate((3, 1, 2, 0)):
            a('s_waitcnt vmcnt(%d)' % (48 - 16 * n))
            if st and n == 3: rstamp(a, 1)
            tr_matrix(a, M)
        return
    a('s_waitcnt vmcnt(0)')
    if st: rstamp(a, 1)
    for M in range(4 if with_wo else 3): tr_matrix(a, M)

def lane_consts(a):
    a('v_and_b32 v%d, 63, v0' % vL)
    a('v_lshlrev_b32 v%d, 4, v%d' % (vL16, vL))
    a('v_lshlrev_b32 v%d, 3, v%d' % (vL8, vL))
    a('v_lshrrev_b32 v%d, 4, v%d' % (vT, vL))
    a('v_and_b32 v%d, 7, v%d' % (vT + 1, vL))
    a('v_bfe_u32 v%d, v%d, 3, 1' % (vT + 2, vL))
    a('v_lshl_add_u32 v%d, v%d, 3, v%d' % (vT + 3, vT, vT + 1))
    a('v_lshlrev_b32 v%d, 4, v%d' % (vDup, vT + 3))
    a('v_lshl_add_u32 v%d, v%d, 3, v%d' % (vP8, vT + 2, vDup))
    a('v_lshl_add_u32 v%d, v%d, 9, v%d' % (vOD, vT + 2, vDup))
    for i in range(4): a('v_mov_b32 v%d, -1' % (vSENT + i))
    a('v_cmp_gt_u32 vcc, 32, v%d' % vL)
    a('v_cndmask_b32 v%d, 0, -1, vcc' % vMLO)
    a('v_cndmask_b32 v%d, -1, 0, vcc' % vMHI)
    a('v_cndmask_b32 v%d, 0, 1.0, vcc' % vFLO)

def mark(a, cfg, k):
    if not cfg.get('prof'): return
    if cfg['prof'] == 3:
        if k not in (1, 2, 9, 100, 101, 102, 103, 104, 105, 106, 107): return
        if k >= 100: k = k - 100 + 3 if k < 104 else k - 104 + 10
        a('s_memtime s[76:77]')
        a('s_cmp_eq_u32 s%d, %d' % (sSTEP, cfg.get('pstep', 21)))
        a('s_waitcnt lgkmcnt(0)')
        a('s_cselect_b32 s%d, s76, s%d' % (80 + k, 80 + k))
        return
    if k >= 100: return
    if cfg['prof'] == 2:
        a('s_memrealtime s[76:77]')
        a('s_cmp_eq_u32 s%d, %d' % (sSTEP, 20 if k > 1 else 21))
        a('s_waitcnt lgkmcnt(0)')
        a('s_cselect_b32 s%d, s76, s%d' % (80 + k, 80 + k))
        return
    a('s_memtime s[76:77]')
    a('s_waitcnt lgkmcnt(0)')
    a('s_sub_u32 s78, s76, s79')
    a('s_add_u32 s%d, s%d, s78' % (80 + k, 80 + k))
    a('s_mov_b32 s79, s76')

def px_slot(a, dst, slotreg, base):
    a('s_lshr_b32 s%d, s%d, 1' % (sT3, slotreg))
    a('s_lshl_b32 s%d, s%d, 14' % (sT3, sT3))
    a('s_add_u32 s%d, s%d, s%d' % (sT3, sT3, base))
    a('s_and_b32 s%d, s%d, 1' % (dst, slotreg))
    a('s_lshl_b32 s%d, s%d, 12' % (dst, dst))
    a('s_add_u32 s%d, s%d, s%d' % (dst, dst, sT3))

def slot_off(a, dst, slotreg, shift, base):
    a('s_lshl_b32 s%d, s%d, %d' % (dst, slotreg, shift))
    a('s_add_u32 s%d, s%d, s%d' % (dst, dst, base))

SAFE = [False]
def st(a, regs, n, vaddr, soff, sc1=False):
    sc1 = sc1 or SAFE[0]
    a('buffer_store_dword%s %s, v%d, s[%d:%d], s%d offen%s' % ('x%d' % n if n > 1 else '', vr(regs, n), vaddr, sWS, sWS + 3, soff, ' sc1' if sc1 else ''))

def read_choice(a, cfg, bases):
    L = a.newlabel('ch'); D = a.newlabel('chd')
    a('v_mov_b32 v%d, 132' % (vT + 1))
    a.label(L)
    a('buffer_load_dword v%d, v%d, s[%d:%d], 0 offen sc1' % (vT, vT + 1, sDBG, sDBG + 3))
    a('s_waitcnt vmcnt(0)')
    a('v_readfirstlane_b32 s%d, v%d' % (sT0, vT))
    a('s_cmp_lg_u32 s%d, 0' % sT0)
    a('s_cbranch_scc1 %s' % D)
    a('s_add_u32 s%d, s%d, 1' % (sSPIN, sSPIN))
    a('s_cmp_lt_u32 s%d, 0x%x' % (sSPIN, SPIN_LIMIT))
    a('s_cbranch_scc1 %s' % L)
    a.label(D)
    if 'forcesel' in cfg: a('s_mov_b32 s%d, %d' % (sT0, cfg['forcesel']))
    a('s_and_b32 s%d, s%d, 1' % (sT1, sT0))
    a('s_lshl_b32 s%d, s%d, 13' % (sT1, sT1))
    a('s_add_u32 s%d, s%d, s%d' % (sPXR, sPXR, sT1))
    a('s_and_b32 s%d, s%d, 2' % (sT1, sT0))
    a('s_lshl_b32 s%d, s%d, 12' % (sT1, sT1))
    a('s_add_u32 s%d, s%d, s%d' % (sPX1, sPX1, sT1))

def phase_bc_old(a, w, cfg, Lend):
    g = cfg.get
    fused = g('fused', 0)
    mb = vSET + 64
    mb = vM
    def ml(T): return ['buffer_load_dwordx4 v[%d:%d], v%d, s[%d:%d], s%d offen offset:%d sc1' % (mb + 4 * T, mb + 4 * T + 3, vL16, sWS, sWS + 3, sA0, T * 1024)]
    def mc(T):
        if T == 3: mark(a, cfg, 3)
        mark(a, cfg, 100 + T)
        for tile in range(4):
            for b in range(2):
                c = '0' if T == 0 else vr(acc(tile, b), 4)
                a('v_mfma_f32_16x16x32_bf16 %s, %s, %s, %s' % (vr(acc(tile, b), 4), ar(wq_frag(tile, T, b), 4), vr(mb + 4 * T, 4), c))
    if g('pp2', 1):
        def m1(tile, T, b): return 'v_mfma_f32_16x16x32_bf16 %s, %s, %s, %s' % (vr(acc(tile, b), 4), ar(wq_frag(tile, T, b), 4), vr(mb + 4 * T, 4), '0' if T == 0 else vr(acc(tile, b), 4))
        def mm(T):
            if T < 2: return [m1(tile, T, b) for tile in range(4) for b in range(2)]
            if T == 2: return [m1(tile, 2, b) for tile in range(3) for b in range(2)]
            return [m1(tile, 3, b) for tile in range(2) for b in range(2)]
        ppoll2(a, 4, ml, lambda T: range(mb + 4 * T, mb + 4 * T + 4), mm, g('dly_m', 0), at=g('at_m', 2))
        rest = [m1(3, 2, 0), m1(3, 2, 1), m1(2, 3, 0), m1(2, 3, 1), m1(3, 3, 0), m1(3, 3, 1)]
        dq = ['v_add_f32_dpp v%d, v%d, v%d row_ror:8 row_mask:0xf bank_mask:0x3' % (vZ + i, acc(0, 1) + i, acc(0, 0) + i) for i in range(4)]
        dq += ['v_add_f32_dpp v%d, v%d, v%d row_ror:8 row_mask:0xf bank_mask:0xc' % (vZ + i, acc(1, 0) + i, acc(1, 1) + i) for i in range(4)]
        for n, x in enumerate(rest):
            a(x)
            if n >= 2:
                a(dq.pop(0)); a(dq.pop(0))
        if w != 0: a('ds_write_b128 v%d, v[%d:%d] offset:%d' % (vL16, vZ, vZ + 3, LDS_B + w * 1024))
    else:
        ppoll(a, 4, ml, lambda T: range(mb + 4 * T, mb + 4 * T + 4), mc, g('dly_m', 0))
        for i in range(4):
            a('v_add_f32_dpp v%d, v%d, v%d row_ror:8 row_mask:0xf bank_mask:0x3' % (vZ + i, acc(0, 1) + i, acc(0, 0) + i))
        for i in range(4):
            a('v_add_f32_dpp v%d, v%d, v%d row_ror:8 row_mask:0xf bank_mask:0xc' % (vZ + i, acc(1, 0) + i, acc(1, 1) + i))
        if w != 0: a('ds_write_b128 v%d, v[%d:%d] offset:%d' % (vL16, vZ, vZ + 3, LDS_B + w * 1024))
    for i in range(4):
        a('v_add_f32_dpp v%d, v%d, v%d row_ror:8 row_mask:0xf bank_mask:0x3' % (vZ + 4 + i, acc(2, 1) + i, acc(2, 0) + i))
    for i in range(4):
        a('v_add_f32_dpp v%d, v%d, v%d row_ror:8 row_mask:0xf bank_mask:0xc' % (vZ + 4 + i, acc(3, 0) + i, acc(3, 1) + i))
    if w != 1: a('ds_write_b128 v%d, v[%d:%d] offset:%d' % (vL16, vZ + 4, vZ + 7, LDS_B + 4096 + w * 1024))
    a('s_waitcnt lgkmcnt(0)')
    mark(a, cfg, 4)
    a('s_barrier')
    mark(a, cfg, 5)
    if w in (0, 1):
        z = vZ + 4 * w
        reduce3(a, z, LDS_B + 4096 * w, w)
        a('v_cvt_pk_bf16_f32 v%d, v%d, v%d' % (z, z, z + 1))
        a('v_cvt_pk_bf16_f32 v%d, v%d, v%d' % (z + 1, z + 2, z + 3))
        a('v_min_u32 v%d, -2, v%d' % (z, z))
        a('v_min_u32 v%d, -2, v%d' % (z + 1, z + 1))
        st(a, z, 2, vP8, sA2)
        st(a, vSENT, 2, vL8, sA3)
        if w == 1:
            slot_off(a, sT0, sSTEP, 16, sARC)
            st(a, z, 2, vP8, sT0, True)
    if w in (1, 2): st(a, vSENT, 1, vXM, sMP1)
    def qkl(c):
        return ['buffer_load_dwordx4 v[%d:%d], v%d, s[%d:%d], s%d offen offset:%d sc1' % (vSET + 8 * c + 4 * x, vSET + 8 * c + 4 * x + 3, vDup, sWS, sWS + 3, sT2, x * 2048 + c * 512) for x in range(2)]
    n = 0
    qk_at = g('qk_at', 16)
    for tile in (4, 5):
        for T in range(4):
            for b in range(2):
                if w == 3 and n >= qk_at and (n - qk_at) < 8 and (n - qk_at) % 2 == 0:
                    for ld in qkl((n - qk_at) // 2): a(ld)
                c = '0' if T == 0 else vr(acc(tile, b), 4)
                a('v_mfma_f32_16x16x32_bf16 %s, %s, %s, %s' % (vr(acc(tile, b), 4), vr(mb + 4 * T, 4), ar(wq_frag(tile, T, b), 4), c))
                n += 1
    qk_done = max(0, min(4, (16 - qk_at + 1) // 2))
    for i in range(4):
        a('v_permlane32_swap_b32 v%d, v%d' % (acc(4, 0) + i, acc(5, 0) + i))
        a('v_permlane32_swap_b32 v%d, v%d' % (acc(4, 1) + i, acc(5, 1) + i))
    for i in range(4):
        a('v_add_f32 v%d, v%d, v%d' % (vZ + 8 + i, acc(4, 0) + i, acc(5, 1) + i))
    a('ds_write_b128 v%d, v[%d:%d] offset:%d' % (vL16, vZ + 8, vZ + 11, LDS_B + 8192 + w * 1024))
    if w == 3:
        if qk_done < 4: delay(a, g('dly_qk', 0))
        for c in range(qk_done, 4):
            for ld in qkl(c): a(ld)
    a('s_waitcnt lgkmcnt(0)')
    mark(a, cfg, 6)
    a('s_barrier')
    mark(a, cfg, 7)
    if w in (2, 3):
        reduce3(a, vZ + 8, LDS_B + 8192, w)
        a('v_cvt_pk_bf16_f32 v%d, v%d, v%d' % (vZ + 8 if w == 2 else vVZ, vZ + 8, vZ + 9))
        a('v_cvt_pk_bf16_f32 v%d, v%d, v%d' % (vZ + 9 if w == 2 else vVZ + 1, vZ + 10, vZ + 11))
    if w == 2:
        slot_off(a, sT0, sSTEP, 16, sARC)
        st(a, vZ + 8, 2, vL8, sT0, True)
    a('s_cmp_eq_u32 s%d, 63' % sSTEP)
    a.branch('s_cbranch_scc1 %s' % Lend)
    if w == 2:
        a('s_add_u32 s%d, s%d, 0x40000' % (sKF, sKF))
        a('s_add_u32 s%d, s%d, 0x40000' % (sVF, sVF))
        if fused: ensure_gp(a, sSTEP, 2)
        prefetch_dma(a, fused)
    if w == 3:
        if fused:
            L0 = a.newlabel('kv0')
            a('s_cmp_lg_u32 s%d, 0' % sSTEP)
            a.branch('s_cbranch_scc1 %s' % L0)
            a('s_mov_b32 s%d, s%d' % (sP0, sT2))
            ensure_gp(a, None, 1)
            prefetch_kv(a, True)
            a('s_mov_b32 s%d, s%d' % (sT2, sP0))
            a('s_waitcnt vmcnt(0)')
            a.label(L0)
        def qkc(c):
            qb = vSET + 8 * c; ka = qb + 4
            if c == 3: mark(a, cfg, 8)
            for t, A in ((0, vKX + 4 * c), (1, vKX + 16 + 4 * c), (2, ka)):
                cc = '0' if c == 0 else vr(vS + 4 * t, 4)
                a('v_mfma_f32_16x16x32_bf16 %s, %s, %s, %s' % (vr(vS + 4 * t, 4), vr(A, 4), vr(qb, 4), cc))
        if g('pp2', 1):
            def qm(c): return ['v_mfma_f32_16x16x32_bf16 %s, %s, %s, %s' % (vr(vS + 4 * t, 4), vr(A, 4), vr(vSET + 8 * c, 4), '0' if c == 0 else vr(vS + 4 * t, 4)) for t, A in ((0, vKX + 4 * c), (1, vKX + 16 + 4 * c), (2, vSET + 8 * c + 4))]
            ppoll2(a, 4, qkl, lambda c: range(vSET + 8 * c, vSET + 8 * c + 8), qm, issued=True, at=1)
        else:
            ppoll(a, 4, qkl, lambda c: range(vSET + 8 * c, vSET + 8 * c + 8), qkc, issued=True)
        m, t2 = vT, vT + 1
        a('v_max3_f32 v%d, v%d, v%d, v%d' % (m, vS, vS + 1, vS + 2))
        a('v_max3_f32 v%d, v%d, v%d, v%d' % (t2, vS + 3, vS + 4, vS + 5))
        a('v_max3_f32 v%d, v%d, v%d, v%d' % (m, m, vS + 6, vS + 7))
        a('v_max3_f32 v%d, v%d, v%d, v%d' % (t2, t2, vS + 8, vS + 9))
        a('v_max3_f32 v%d, v%d, v%d, v%d' % (m, m, vS + 10, vS + 11))
        a('v_max_f32 v%d, v%d, v%d' % (m, m, t2))
        a('v_mov_b32 v%d, v%d' % (t2, m))
        a('v_permlane16_swap_b32 v%d, v%d' % (m, t2))
        a('v_max_f32 v%d, v%d, v%d' % (m, m, t2))
        a('v_mov_b32 v%d, v%d' % (t2, m))
        a('v_permlane32_swap_b32 v%d, v%d' % (m, t2))
        a('v_max_f32 v%d, v%d, v%d' % (m, m, t2))
        a('v_mul_f32 v%d, s%d, v%d' % (m, sC, m))
        for i in range(8):
            a('v_fma_f32 v%d, v%d, s%d, -v%d' % (vS + i, vS + i, sC, m))
            if i >= 1: a('v_exp_f32 v%d, v%d' % (vS + i - 1, vS + i - 1))
        a('v_fma_f32 v%d, v%d, s%d, -v%d' % (vS + 8, vS + 8, sC, m))
        a('v_exp_f32 v%d, v%d' % (vS + 7, vS + 7))
        for i in range(9, 12): a('v_fma_f32 v%d, v%d, s%d, -v%d' % (vS + i, vS + i, sC, m))
        for i in range(4):
            a('v_cvt_pk_bf16_f32 v%d, v%d, v%d' % (vP + i, vS + 2 * i, vS + 2 * i + 1))
        a('v_exp_f32 v%d, v%d' % (vS + 8, vS + 8))
        a('v_exp_f32 v%d, v%d' % (vS + 9, vS + 9))
        a('v_mfma_f32_16x16x32_bf16 %s, %s, %s, 0' % (vr(vO, 4), vr(vVX, 4), vr(vP, 4)))
        a('v_exp_f32 v%d, v%d' % (vS + 10, vS + 10))
        a('v_mfma_f32_16x16x32_bf16 %s, %s, %s, 0' % (vr(vO + 4, 4), vr(vVX + 4, 4), vr(vP, 4)))
        a('v_exp_f32 v%d, v%d' % (vS + 11, vS + 11))
        a('v_cvt_pk_bf16_f32 v%d, v%d, v%d' % (vP + 4, vS + 8, vS + 9))
        a('v_cvt_pk_bf16_f32 v%d, v%d, v%d' % (vP + 5, vS + 10, vS + 11))
        a('v_and_b32 v%d, v%d, v%d' % (vP + 6, vP + 4, vMLO))
        a('v_and_b32 v%d, v%d, v%d' % (vP + 7, vP + 5, vMLO))
        a('v_and_b32 v%d, v%d, v%d' % (vP + 8, vP + 4, vMHI))
        a('v_and_b32 v%d, v%d, v%d' % (vP + 9, vP + 5, vMHI))
        a('v_mfma_f32_16x16x16_bf16 %s, %s, %s, %s' % (vr(vO, 4), vr(vVZ, 2), vr(vP + 6, 2), vr(vO, 4)))
        sA, sB = vT, vT + 1
        pk_add(a, vS + 8, vS + 8, vS + 10)
        pk_add(a, vS, vS, vS + 2)
        a('v_mfma_f32_16x16x16_bf16 %s, %s, %s, %s' % (vr(vO + 4, 4), vr(vVZ, 2), vr(vP + 8, 2), vr(vO + 4, 4)))
        pk_add(a, vS + 4, vS + 4, vS + 6)
        a('v_add_f32 v%d, v%d, v%d' % (sB, vS + 8, vS + 9))
        pk_add(a, vS, vS, vS + 4)
        a('v_add_f32 v%d, v%d, v%d' % (sA, vS, vS + 1))
        a('v_fma_f32 v%d, v%d, v%d, v%d' % (sA, sB, vFLO, sA))
        a('v_mov_b32 v%d, v%d' % (sB, sA))
        a('v_permlane16_swap_b32 v%d, v%d' % (sA, sB))
        a('v_add_f32 v%d, v%d, v%d' % (sA, sA, sB))
        a('v_mov_b32 v%d, v%d' % (sB, sA))
        a('v_permlane32_swap_b32 v%d, v%d' % (sA, sB))
        a('v_add_f32 v%d, v%d, v%d' % (sA, sA, sB))
        a('v_rcp_f32 v%d, v%d' % (sA, sA))
        a('v_mov_b32 v%d, v%d' % (sB, sA))
        for i in range(4):
            a('v_pk_mul_f32 v[%d:%d], v[%d:%d], v[%d:%d]' % (vO + 2 * i, vO + 2 * i + 1, vO + 2 * i, vO + 2 * i + 1, sA, sB))
        for i in range(4):
            a('v_cvt_pk_bf16_f32 v%d, v%d, v%d' % (vO + i, vO + 2 * i, vO + 2 * i + 1))
        for i in range(4):
            a('v_min_u32 v%d, -2, v%d' % (vO + i, vO + i))
        st(a, vO, 4, vDup, sA2)

def phase_bc_eq(a, w, cfg, Lend):
    g = cfg.get
    fused = g('fused', 0)
    mb = vM
    vMX, vSX = 237, 238
    def ml(T): return ['buffer_load_dwordx4 v[%d:%d], v%d, s[%d:%d], s%d offen offset:%d sc1' % (mb + 4 * T, mb + 4 * T + 3, vL16, sWS, sWS + 3, sA0, T * 1024)]
    def mf(tile, T, b):
        c = '0' if T == 0 else vr(acc(tile, b), 4)
        W = ar(wq_frag(tile, T, b), 4); M = vr(mb + 4 * T, 4)
        return 'v_mfma_f32_16x16x32_bf16 %s, %s, %s, %s' % (vr(acc(tile, b), 4), W if tile < 4 else M, M if tile < 4 else W, c)
    def mc(T):
        if T == 3: mark(a, cfg, 3)
        for tile in range(2):
            for b in range(2): a(mf(tile, T, b))
    ppoll(a, 4, ml, lambda T: range(mb + 4 * T, mb + 4 * T + 4), mc, g('dly_m', 0))
    def qkl(n):
        return ['buffer_load_dwordx4 v[%d:%d], v%d, s[%d:%d], s%d offen offset:%d sc1' % (vSET + 4 * n, vSET + 4 * n + 3, vDup, sWS, sWS + 3, sT2, n * 512)]
    def stream(t0, pt0, z, ldsoff, red_wave, extra):
        fill = {k: [] for k in range(16)}
        dpp = []
        for i in range(4): dpp.append('v_add_f32_dpp v%d, v%d, v%d row_ror:8 row_mask:0xf bank_mask:0x3' % (z + i, acc(pt0, 1) + i, acc(pt0, 0) + i))
        for i in range(4): dpp.append('v_add_f32_dpp v%d, v%d, v%d row_ror:8 row_mask:0xf bank_mask:0xc' % (z + i, acc(pt0 + 1, 0) + i, acc(pt0 + 1, 1) + i))
        for n, x in enumerate(dpp): fill[1 + n // 3].append(x)
        if w != red_wave: fill[4].append('ds_write_b128 v%d, v[%d:%d] offset:%d' % (vL16, z, z + 3, ldsoff + w * 1024))
        fill[6] += ['s_waitcnt lgkmcnt(0)', 's_barrier']
        if w == red_wave:
            others = [x for x in range(4) if x != w]
            for n, o in enumerate(others):
                fill[6].append('ds_read_b128 v[%d:%d], v%d offset:%d' % (vR + 4 * n, vR + 4 * n + 3, vL16, ldsoff + o * 1024))
            pk = lambda d, x, y: 'v_pk_add_f32 v[%d:%d], v[%d:%d], v[%d:%d]' % (d, d + 1, x, x + 1, y, y + 1)
            fill[9] += ['s_waitcnt lgkmcnt(0)', pk(z, z, vR), pk(z + 2, z + 2, vR + 2), pk(vR + 4, vR + 4, vR + 8), pk(vR + 6, vR + 6, vR + 10)]
            fill[10] += [pk(z, z, vR + 4), pk(z + 2, z + 2, vR + 6), 'v_cvt_pk_bf16_f32 v%d, v%d, v%d' % (z, z, z + 1), 'v_cvt_pk_bf16_f32 v%d, v%d, v%d' % (z + 1, z + 2, z + 3)]
            fill[11] += ['v_min_u32 v%d, -2, v%d' % (z, z), 'v_min_u32 v%d, -2, v%d' % (z + 1, z + 1), ('st', z)]
        for k, x in extra.items(): fill[k] += x
        n = 0
        for T in range(4):
            for tile in (t0, t0 + 1):
                for b in range(2):
                    a(mf(tile, T, b))
                    for x in fill[n]:
                        if isinstance(x, tuple):
                            st(a, z, 2, vP8, sA2); st(a, vSENT, 2, vL8, sA3)
                            if w == 1:
                                slot_off(a, sT0, sSTEP, 16, sARC)
                                st(a, z, 2, vP8, sT0, True)
                        else: a(x)
                    n += 1
    stream(2, 0, vZ, LDS_B, 0, {})
    mark(a, cfg, 5)
    q_at = g('q_at', 8)
    ex = {}
    if w == 3:
        for c in range(4): ex.setdefault(min(15, q_at + c), []).extend(qkl(c))
    stream(4, 2, vZ + 4, LDS_B + 4096, 1, ex)
    for i in range(4):
        a('v_permlane32_swap_b32 v%d, v%d' % (acc(4, 0) + i, acc(5, 0) + i))
        a('v_permlane32_swap_b32 v%d, v%d' % (acc(4, 1) + i, acc(5, 1) + i))
    for i in range(4):
        a('v_add_f32 v%d, v%d, v%d' % (vZ + 8 + i, acc(4, 0) + i, acc(5, 1) + i))
    a('ds_write_b128 v%d, v[%d:%d] offset:%d' % (vL16, vZ + 8, vZ + 11, LDS_B + 8192 + w * 1024))
    a('s_waitcnt lgkmcnt(0)')
    mark(a, cfg, 6)
    a('s_barrier')
    mark(a, cfg, 7)
    if w == 3:
        delay(a, g('dly_k', 0))
        for c in range(4, 8):
            for ld in qkl(c): a(ld)
    if w in (2, 3):
        reduce3(a, vZ + 8, LDS_B + 8192, w)
        a('v_cvt_pk_bf16_f32 v%d, v%d, v%d' % (vZ + 8 if w == 2 else vVZ, vZ + 8, vZ + 9))
        a('v_cvt_pk_bf16_f32 v%d, v%d, v%d' % (vZ + 9 if w == 2 else vVZ + 1, vZ + 10, vZ + 11))
    if w == 2:
        slot_off(a, sT0, sSTEP, 16, sARC)
        st(a, vZ + 8, 2, vL8, sT0, True)
    a('s_cmp_eq_u32 s%d, 63' % sSTEP)
    a.branch('s_cbranch_scc1 %s' % Lend)
    if w == 2:
        a('s_add_u32 s%d, s%d, 0x40000' % (sKF, sKF))
        a('s_add_u32 s%d, s%d, 0x40000' % (sVF, sVF))
        if fused: ensure_gp(a, sSTEP, 2)
        prefetch_dma(a, fused)
    if w != 3: return
    if fused:
        L0 = a.newlabel('kv0')
        a('s_cmp_lg_u32 s%d, 0' % sSTEP)
        a.branch('s_cbranch_scc1 %s' % L0)
        a('s_mov_b32 s%d, s%d' % (sP0, sT2))
        ensure_gp(a, None, 1)
        prefetch_kv(a, True)
        a('s_mov_b32 s%d, s%d' % (sT2, sP0))
        a('s_waitcnt vmcnt(0)')
        a.label(L0)
    t2 = vT + 2; t3 = vT + 3
    def qkc(n):
        if n < 4:
            for t, A in ((0, vKX + 4 * n), (1, vKX + 16 + 4 * n)):
                a('v_mfma_f32_16x16x32_bf16 %s, %s, %s, %s' % (vr(vS + 4 * t, 4), vr(A, 4), vr(vSET + 4 * n, 4), '0' if n == 0 else vr(vS + 4 * t, 4)))
        else:
            c = n - 4
            if c == 3: mark(a, cfg, 8)
            a('v_mfma_f32_16x16x32_bf16 %s, %s, %s, %s' % (vr(vS + 8, 4), vr(vSET + 4 * n, 4), vr(vSET + 4 * c, 4), '0' if c == 0 else vr(vS + 8, 4)))
        if n == 3:
            a('v_max3_f32 v%d, v%d, v%d, v%d' % (vMX, vS, vS + 1, vS + 2))
            a('v_max3_f32 v%d, v%d, v%d, v%d' % (t2, vS + 3, vS + 4, vS + 5))
            a('v_max3_f32 v%d, v%d, v%d, v%d' % (vMX, vMX, vS + 6, vS + 7))
            a('v_max_f32 v%d, v%d, v%d' % (vMX, vMX, t2))
            for sw in ('v_permlane16_swap_b32', 'v_permlane32_swap_b32'):
                a('v_mov_b32 v%d, v%d' % (t2, vMX))
                a('%s v%d, v%d' % (sw, vMX, t2))
                a('v_max_f32 v%d, v%d, v%d' % (vMX, vMX, t2))
            a('v_mul_f32 v%d, s%d, v%d' % (vMX, sC, vMX))
            for i in range(8):
                a('v_fma_f32 v%d, v%d, s%d, -v%d' % (vS + i, vS + i, sC, vMX))
                if i >= 1: a('v_exp_f32 v%d, v%d' % (vS + i - 1, vS + i - 1))
            a('v_exp_f32 v%d, v%d' % (vS + 7, vS + 7))
            for i in range(4): a('v_cvt_pk_bf16_f32 v%d, v%d, v%d' % (vP + i, vS + 2 * i, vS + 2 * i + 1))
            pk_add(a, vS, vS, vS + 2)
            a('v_mfma_f32_16x16x32_bf16 %s, %s, %s, 0' % (vr(vO, 4), vr(vVX, 4), vr(vP, 4)))
            pk_add(a, vS + 4, vS + 4, vS + 6)
            a('v_mfma_f32_16x16x32_bf16 %s, %s, %s, 0' % (vr(vO + 4, 4), vr(vVX + 4, 4), vr(vP, 4)))
            pk_add(a, vS, vS, vS + 4)
            a('v_add_f32 v%d, v%d, v%d' % (vSX, vS, vS + 1))
            for sw in ('v_permlane16_swap_b32', 'v_permlane32_swap_b32'):
                a('v_mov_b32 v%d, v%d' % (t2, vSX))
                a('%s v%d, v%d' % (sw, vSX, t2))
                a('v_add_f32 v%d, v%d, v%d' % (vSX, vSX, t2))
    ppoll(a, 8, qkl, lambda n: range(vSET + 4 * n, vSET + 4 * n + 4), qkc, issued=True)
    m = vT; al = vT + 1
    a('v_max3_f32 v%d, v%d, v%d, v%d' % (m, vS + 8, vS + 9, vS + 10))
    a('v_max_f32 v%d, v%d, v%d' % (m, m, vS + 11))
    a('v_mov_b32 v%d, v%d' % (t2, m))
    a('v_permlane16_swap_b32 v%d, v%d' % (m, t2))
    a('v_max_f32 v%d, v%d, v%d' % (m, m, t2))
    a('v_mul_f32 v%d, s%d, v%d' % (m, sC, m))
    a('v_max_f32 v%d, v%d, v%d' % (m, m, vMX))
    for i in range(4): a('v_fma_f32 v%d, v%d, s%d, -v%d' % (vS + 8 + i, vS + 8 + i, sC, m))
    a('v_sub_f32 v%d, v%d, v%d' % (al, vMX, m))
    for i in range(4): a('v_exp_f32 v%d, v%d' % (vS + 8 + i, vS + 8 + i))
    a('v_exp_f32 v%d, v%d' % (al, al))
    a('v_cvt_pk_bf16_f32 v%d, v%d, v%d' % (vP + 4, vS + 8, vS + 9))
    a('v_cvt_pk_bf16_f32 v%d, v%d, v%d' % (vP + 5, vS + 10, vS + 11))
    a('v_and_b32 v%d, v%d, v%d' % (vP + 6, vP + 4, vMLO))
    a('v_and_b32 v%d, v%d, v%d' % (vP + 7, vP + 5, vMLO))
    a('v_and_b32 v%d, v%d, v%d' % (vP + 8, vP + 4, vMHI))
    a('v_and_b32 v%d, v%d, v%d' % (vP + 9, vP + 5, vMHI))
    a('v_mfma_f32_16x16x16_bf16 %s, %s, %s, 0' % (vr(vS, 4), vr(vVZ, 2), vr(vP + 6, 2)))
    pk_add(a, vS + 8, vS + 8, vS + 10)
    a('v_mfma_f32_16x16x16_bf16 %s, %s, %s, 0' % (vr(vS + 4, 4), vr(vVZ, 2), vr(vP + 8, 2)))
    a('v_add_f32 v%d, v%d, v%d' % (m, vS + 8, vS + 9))
    a('v_mov_b32 v%d, v%d' % (t2, m))
    a('v_permlane16_swap_b32 v%d, v%d' % (m, t2))
    a('v_add_f32 v%d, v%d, v%d' % (m, m, t2))
    a('v_fma_f32 v%d, v%d, v%d, v%d' % (m, vSX, al, m))
    a('v_rcp_f32 v%d, v%d' % (t2, m))
    a('v_mul_f32 v%d, v%d, v%d' % (m, al, t2))
    a('v_mov_b32 v%d, v%d' % (t3, t2))
    a('v_mov_b32 v%d, v%d' % (al, m))
    for i in range(4):
        a('v_pk_mul_f32 v[%d:%d], v[%d:%d], v[%d:%d]' % (vO + 2 * i, vO + 2 * i + 1, vO + 2 * i, vO + 2 * i + 1, m, al))
    for i in range(4):
        a('v_pk_fma_f32 v[%d:%d], v[%d:%d], v[%d:%d], v[%d:%d]' % (vO + 2 * i, vO + 2 * i + 1, vS + 2 * i, vS + 2 * i + 1, t2, t3, vO + 2 * i, vO + 2 * i + 1))
    for i in range(4): a('v_cvt_pk_bf16_f32 v%d, v%d, v%d' % (vO + i, vO + 2 * i, vO + 2 * i + 1))
    for i in range(4): a('v_min_u32 v%d, -2, v%d' % (vO + i, vO + i))
    st(a, vO, 4, vDup, sA2)
    st(a, vSENT, 2, vL8, sA3)

def wave_loop(a, w, cfg):
    Lloop = 'r_loop_w%d' % w
    Lend = 'r_end_w%d' % w
    g = cfg.get
    a('s_lshl_b32 s%d, s%d, 16' % (sT0, sRX))
    a('s_add_u32 s%d, s%d, 0x%x' % (sMXR, sT0, MX_OFF + w * 4096))
    a('s_lshl_b32 s%d, s%d, 9' % (sT1, sI))
    a('s_add_u32 s%d, s%d, s%d' % (sT2, sT0, sT1))
    a('s_add_u32 s%d, s%d, 0x%x' % (sMXW, sT2, MX_OFF))
    a('s_add_u32 s%d, s%d, 0x%x' % (sOXR, sT0, OX_OFF + w * 4096))
    a('s_add_u32 s%d, s%d, 0x%x' % (sOXW, sT2, OX_OFF))
    a('s_lshl_b32 s%d, s%d, 17' % (sT0, sRX))
    a('s_lshr_b32 s%d, s%d, 2' % (sT1, sI))
    a('s_lshl_b32 s%d, s%d, 12' % (sT1, sT1))
    a('s_add_u32 s%d, s%d, s%d' % (sT0, sT0, sT1))
    a('s_add_u32 s%d, s%d, 0x%x' % (sQKR, sT0, QKX_OFF))
    a('s_lshl_b32 s%d, s%d, 9' % (sT1, sJ))
    a('s_add_u32 s%d, s%d, s%d' % (sQKW, sQKR, sT1))
    if w == 1: a('s_add_u32 s%d, s%d, 2048' % (sQKW, sQKW))
    a('s_lshl_b32 s%d, s%d, 16' % (sT0, sI))
    a('s_add_u32 s%d, s%d, 0x%x' % (sPXR, sT0, PX_OFF))
    if w == 0:
        a('s_lshl_b32 s%d, s%d, 10' % (sT1, sRX))
        a('s_add_u32 s%d, s%d, s%d' % (sPXR, sPXR, sT1))
    a('s_add_u32 s%d, s%d, 0x%x' % (sPX1, sPXR, 2 * MB))
    a('v_add_u32 v%d, 0x1000, v%d' % (vL16B, vL16))
    a('s_lshl_b32 s%d, s%d, 11' % (sT0, sH))
    a('s_lshl_b32 s%d, s%d, 9' % (sT1, sJ))
    a('s_add_u32 s%d, s%d, s%d' % (sT0, sT0, sT1))
    a('s_add_u32 s%d, s%d, 0x%x' % (sARC, sT0, KM_OFF if w == 1 else VM_OFF))
    a('s_lshl_b32 s%d, s%d, 13' % (sT0, sH))
    a('s_add_u32 s%d, s%d, 0x%x' % (sKF, sT0, KF_OFF))
    a('s_lshl_b32 s%d, s%d, 11' % (sT1, sJ))
    a('s_add_u32 s%d, s%d, s%d' % (sT0, sT0, sT1))
    a('s_add_u32 s%d, s%d, 0x%x' % (sVF, sT0, VF_OFF))
    a('s_mov_b32 s%d, 0x%x' % (sC, cfg['cbits']))
    a('s_mov_b32 s%d, 0x7fffffff' % sP0)
    a('s_mov_b32 s%d, 0x7fffffff' % sP1)
    a('s_mov_b32 s%d, 0x7fffffff' % sP2)
    a('s_mov_b32 s%d, 0x7fffffff' % sP3)
    for slot in range(4):
        if w == 0:
            a('s_add_u32 s%d, s%d, 0x%x' % (sT0, sQKW, slot * 32768)); st(a, vSENT, 2, vL8, sT0)
            a('s_add_u32 s%d, s%d, 0x%x' % (sT0, sQKW, slot * 32768 + 2048)); st(a, vSENT, 2, vL8, sT0)
            for reg in range(2 if g('xcopy', 1) else 1):
                for q4 in (range(4) if g('xcopy', 1) else (0, 2)):
                    a('s_add_u32 s%d, s%d, 0x%x' % (sT0, sPXR, reg * 2 * MB + slot * 16384 + q4 * 4096)); st(a, vSENT, 4, vL16, sT0, True)
            a('s_add_u32 s%d, s%d, 0x%x' % (sT0, sMXW, slot * 16384)); st(a, vSENT, 2, vL8, sT0)
            a('s_add_u32 s%d, s%d, 0x%x' % (sT0, sOXW, slot * 16384)); st(a, vSENT, 2, vL8, sT0)
    fused = g('fused', 0)
    if w == 3 and not fused:
        prefetch_kv(a)
    if w == 0 and fused:
        a('s_lshl_b32 s%d, s%d, 8' % (sT0, sH))
        a('s_lshl_b32 s%d, s%d, 2' % (sT1, sJ))
        a('s_add_u32 s%d, s%d, s%d' % (sT0, sT0, sT1))
        a('s_add_u32 s%d, s%d, 0x%x' % (sARC, sT0, PROG_OFF))
        publish_prog(a, None, 0)
    if w in (1, 2):
        xa = w - 1
        a('v_add_u32 v%d, %d, v%d' % (vT, 64 * xa, vL))
        a('v_lshlrev_b32 v%d, 3, v%d' % (vXA, vT))
        a('v_add_u32 v%d, 0x1000, v%d' % (vXAB, vXA))
        a('v_lshrrev_b32 v%d, 1, v%d' % (vT + 1, vT))
        a('v_and_b32 v%d, 7, v%d' % (vT + 2, vT + 1))
        a('v_lshrrev_b32 v%d, 4, v%d' % (vT + 3, vT + 1))
        a('v_lshl_add_u32 v%d, v%d, 3, v%d' % (vXM, vT + 3, vT + 2))
        a('v_lshlrev_b32 v%d, 4, v%d' % (vXM, vXM))
        a('v_bfe_u32 v%d, v%d, 3, 1' % (vT + 3, vT + 1))
        a('v_lshl_add_u32 v%d, v%d, 3, v%d' % (vXM, vT + 3, vXM))
        a('v_and_b32 v%d, 1, v%d' % (vT + 3, vL))
        a('v_lshl_add_u32 v%d, v%d, 2, v%d' % (vXM, vT + 3, vXM))
        a('v_lshrrev_b32 v%d, 3, v%d' % (vT + 1, vT + 1))
        a('v_lshlrev_b32 v%d, 3, v%d' % (vT + 1, vT + 1))
        a('v_lshl_add_u32 v%d, v%d, 2, v%d' % (vT + 1, vT + 3, vT + 1))
        a('v_lshl_add_u32 v%d, v%d, 11, v%d' % (vT, vT + 2, vT + 1))
        a('s_lshl_b32 s%d, s%d, 6' % (sT0, sI))
        a('buffer_load_dword v%d, v%d, s[%d:%d], s%d offen' % (vXR, vT, sM0, sM0 + 3, sT0))
        a('v_mov_b32 v%d, 0' % vZERO)
        a('v_mov_b32 v%d, 0' % (vZERO + 1))
    def arr():
        if w == 0:
            a('s_waitcnt vmcnt(16)')
            dbg_arrive(a, sDBG, DB_INIT2 if g('safe') else DB_INIT, vR)
    if g('st3'): rstamp(a, 0)
    load_weights(a, hook=arr)
    if g('st3'): rstamp(a, 4)
    transpose_weights(a, st=g('st3'))
    if g('st3'): rstamp(a, 2)
    a('s_barrier')
    if fused:
        init_wait(a, sDBG, cfg, vT, sSPIN, sT0)
    elif w == 0:
        dbg_wait(a, sDBG, DB_INIT, 128, vT, sSPIN)
    a('s_mov_b32 s%d, 0' % sGP)
    a('s_barrier')
    a('s_mov_b32 s%d, 0' % sSTEP)
    if g('stamp'): a('s_memrealtime s[70:71]')
    if w == 3: dbgt(a, cfg, 9)
    if g('prof'):
        for k in range(16): a('s_mov_b32 s%d, 0' % (80 + k))
        a('s_memtime s[76:77]')
        a('s_waitcnt lgkmcnt(0)')
        a('s_mov_b32 s79, s76')
    a.label(Lloop)
    a('s_and_b32 s%d, s%d, 3' % (sSLOT, sSTEP))
    a('s_add_u32 s%d, s%d, 2' % (sSLOT2, sSTEP))
    a('s_and_b32 s%d, s%d, 3' % (sSLOT2, sSLOT2))
    slot_off(a, sA0, sSLOT, 14, sMXR)
    slot_off(a, sA1, sSLOT, 14, sOXR)
    if w in (1, 2):
        Lpub = a.newlabel('apub'); Lns = a.newlabel('nosw')
        slot_off(a, sMP0, sSLOT, 14, sMXW)
        slot_off(a, sMP1, sSLOT2, 14, sMXW)
        if w == 1:
            slot_off(a, sA2, sSLOT, 15, sQKW)
            slot_off(a, sA3, sSLOT2, 15, sQKW)
        a('s_cmp_eq_u32 s%d, 0' % sSTEP)
        a.branch('s_cbranch_scc1 %s' % Lpub)
        a('s_cmp_lg_u32 s%d, %d' % (sSTEP, SWITCH))
        a.branch('s_cbranch_scc1 %s' % Lns)
        read_choice(a, cfg, None)
        a.label(Lns)
        for reg, base in ((0, sPXR), (1, sPX1)):
            slot_off(a, sT0, sSLOT, 14, base)
            a('s_add_u32 s%d, s%d, s%d' % (sXB + 2 * reg, sWS, sT0))
            a('s_addc_u32 s%d, s%d, 0' % (sXB + 2 * reg + 1, sWS + 1))
        def xl(k):
            cp = k if g('xcopy', 1) else 0
            return ['global_load_dwordx2 v[%d:%d], v%d, s[%d:%d] offset:%d sc1' % (vX + 8 * k + 2 * p, vX + 8 * k + 2 * p + 1, vXAB if cp & 1 else vXA, sXB + 2 * (cp >> 1), sXB + 2 * (cp >> 1) + 1, p * 1024) for p in range(4)]
        def xc(k):
            b = vX + 8 * k
            pk_add(a, b, b, b + 2); pk_add(a, b + 4, b + 4, b + 6)
            pk_add(a, b, b, b + 4)
            a('v_cvt_pk_bf16_f32 v%d, v%d, v%d' % (vXR, b, b + 1))
        if g('fa', 1):
            XR = a.newlabel('xr'); XW = a.newlabel('xw')
            delay(a, g('dly_x', 0))
            for ld in xl(0): a(ld)
            a.label(XW, fence=False)
            b = vX; t = vX + 8
            a('s_waitcnt vmcnt(0)')
            a('v_max3_u32 v%d, v%d, v%d, v%d' % (vT, b, b + 1, b + 2))
            pk_add(a, t, b, b + 2)
            a('v_max3_u32 v%d, v%d, v%d, v%d' % (vT + 1, b + 3, b + 4, b + 5))
            pk_add(a, t + 2, b + 4, b + 6)
            a('v_max3_u32 v%d, v%d, v%d, v%d' % (vT, vT, b + 6, b + 7))
            pk_add(a, t, t, t + 2)
            a('v_max_u32 v%d, v%d, v%d' % (vT, vT, vT + 1))
            a('v_cvt_pk_bf16_f32 v%d, v%d, v%d' % (vXR, t, t + 1))
            a('v_cmp_eq_u32 vcc, -1, v%d' % vT)
            a('s_cbranch_vccnz %s' % XR)
            def xcold():
                a.label(XR)
                for ld in xl(0): a(ld)
                a('s_add_u32 s%d, s%d, 1' % (sSPIN, sSPIN))
                a('s_cmp_lt_u32 s%d, 0x%x' % (sSPIN, SPIN_LIMIT))
                a('s_cbranch_scc1 %s' % XW)
                a('s_branch %s' % Lpub)
            COLD.append(xcold)
            mark(a, cfg, 0)
            a.label(Lpub, fence=False)
        else:
            spoll(a, g('ns_x', 4), xl, lambda k: range(vX + 8 * k, vX + 8 * k + 8), xc, g('dly_x', 0), g('gap_x', 8))
            mark(a, cfg, 0)
            a.label(Lpub)
        a('v_min_u32 v%d, -2, v%d' % (vXR, vXR))
        st(a, vXR, 1, vXM, sMP0)
    if w == 0:
        slot_off(a, sA2, sSLOT, 15, sQKW)
        slot_off(a, sA3, sSLOT2, 15, sQKW)
    if w == 3:
        slot_off(a, sA2, sSLOT, 14, sOXW)
        slot_off(a, sA3, sSLOT2, 14, sOXW)
        slot_off(a, sT2, sSLOT, 15, sQKR)
    mark(a, cfg, 1)
    a('s_barrier')
    mark(a, cfg, 2)
    mb = vM
    if g('eq', 0):
        phase_bc_eq(a, w, cfg, Lend)
    else:
        phase_bc_old(a, w, cfg, Lend)
    if w == 0:
        if fused: publish_prog(a, sSTEP, 0)
        Lns = a.newlabel('nosw')
        a('s_cmp_lg_u32 s%d, %d' % (sSTEP, SWITCH - 1))
        a.branch('s_cbranch_scc1 %s' % Lns)
        read_choice(a, cfg, None)
        a.label(Lns)
        a('s_add_u32 s%d, s%d, 1' % (sT2, sSTEP))
        a('s_and_b32 s%d, s%d, 3' % (sT2, sT2))
        slot_off(a, sA2, sT2, 14, sPXR)
        slot_off(a, sA3, sT2, 14, sPX1)
        a('s_add_u32 s%d, s%d, 3' % (sT2, sSTEP))
        a('s_and_b32 s%d, s%d, 3' % (sT2, sT2))
        slot_off(a, sXB, sT2, 14, sPXR)
        slot_off(a, sXB + 1, sT2, 14, sPX1)
        K = g('ns_x', 4) if g('xcopy', 1) else 1
        for cp in range(K): st(a, vSENT, 4, vL16B if cp & 1 else vL16, sXB + (cp >> 1), True)
    mark(a, cfg, 9)
    a('s_barrier')
    mark(a, cfg, 10)
    def ol(u): return ['buffer_load_dwordx4 v[%d:%d], v%d, s[%d:%d], s%d offen offset:%d sc1' % (mb + 4 * u, mb + 4 * u + 3, vOD, sWS, sWS + 3, sA1, u * 1024)]
    def oc(u):
        if u == 3: mark(a, cfg, 11)
        mark(a, cfg, 104 + u)
        for tau in range(2):
            for b in range(2):
                c = '0' if u == 0 else vr(acc(tau, b), 4)
                a('v_mfma_f32_16x16x32_bf16 %s, %s, %s, %s' % (vr(acc(tau, b), 4), ar(wo_frag(tau, u, b), 4), vr(mb + 4 * u, 4), c))
    if g('pp2', 1):
        def o1(tau, u, b): return 'v_mfma_f32_16x16x32_bf16 %s, %s, %s, %s' % (vr(acc(tau, b), 4), ar(wo_frag(tau, u, b), 4), vr(mb + 4 * u, 4), '0' if u == 0 else vr(acc(tau, b), 4))
        def om(u): return [o1(tau, u, b) for tau in range(2) for b in range(2)]
        ppoll2(a, 4, ol, lambda u: range(mb + 4 * u, mb + 4 * u + 4), om, g('dly_o', 0), at=g('at_o', 1))
    else:
        ppoll(a, 4, ol, lambda u: range(mb + 4 * u, mb + 4 * u + 4), oc, g('dly_o', 0))
    if w == 3 and not g('eq', 0): st(a, vSENT, 2, vL8, sA3)
    for i in range(4):
        a('v_add_f32_dpp v%d, v%d, v%d row_ror:8 row_mask:0xf bank_mask:0x3' % (vZ + 12 + i, acc(0, 1) + i, acc(0, 0) + i))
    for i in range(4):
        a('v_add_f32_dpp v%d, v%d, v%d row_ror:8 row_mask:0xf bank_mask:0xc' % (vZ + 12 + i, acc(1, 0) + i, acc(1, 1) + i))
    if w != 0: a('ds_write_b128 v%d, v[%d:%d] offset:%d' % (vL16, vZ + 12, vZ + 15, LDS_D + w * 1024))
    a('s_waitcnt lgkmcnt(0)')
    mark(a, cfg, 12)
    a('s_barrier')
    mark(a, cfg, 13)
    if w == 0:
        z = vZ + 12
        reduce3(a, z, LDS_D, 0)
        for i in range(4): a('v_min_u32 v%d, -2, v%d' % (z + i, z + i))
        K = g('ns_x', 4) if g('xcopy', 1) else 1
        for cp in range(K): st(a, z, 4, vL16B if cp & 1 else vL16, sA2 + (cp >> 1), True)
    if w == 0:
        Lnp = a.newlabel('noprobe'); Lpb = a.newlabel('pubch')
        a('s_or_b32 s%d, s%d, s%d' % (sT0, sRX, sI))
        a('s_cmp_lg_u32 s%d, 0' % sT0)
        a.branch('s_cbranch_scc1 %s' % Lnp)
        a('s_cmp_gt_u32 s%d, 3' % sSTEP)
        a.branch('s_cbranch_scc1 %s' % Lnp)
        a('s_cmp_eq_u32 s%d, 3' % sSTEP)
        a.branch('s_cbranch_scc1 %s' % Lpb)
        a('s_waitcnt vmcnt(0)')
        a('s_sleep 2')
        a('s_mov_b32 s%d, s%d' % (sA2, sXB))
        for n in range(2):
            a('s_add_u32 s%d, s%d, %d' % (sT1, sSTEP, n))
            a('s_and_b32 s%d, s%d, 1' % (sT1, sT1))
            a('s_lshl_b32 s%d, s%d, 13' % (sT0, sT1))
            a('s_add_u32 s%d, s%d, s%d' % (sT0, sT0, sA2))
            a('s_memtime s[96:97]')
            a('s_waitcnt lgkmcnt(0)')
            st(a, vSENT, 4, vL16, sT0, True)
            a('s_waitcnt vmcnt(0)')
            a('s_memtime s[98:99]')
            a('s_waitcnt lgkmcnt(0)')
            a('s_sub_u32 s%d, s98, s96' % sT3)
            for cnd, reg in enumerate((sP0, sP1, sP2, sP3)):
                a('s_min_u32 s%d, s%d, s%d' % (sT0, reg, sT3))
                a('s_cmp_eq_u32 s%d, %d' % (sT1, cnd))
                a('s_cselect_b32 s%d, s%d, s%d' % (reg, sT0, reg))
        a.branch('s_branch %s' % Lnp)
        a.label(Lpb)
        a('s_cmp_lt_u32 s%d, s%d' % (sP1, sP0))
        a('s_cselect_b32 s%d, 5, 4' % sT0)
        a('s_cmp_lt_u32 s%d, s%d' % (sP3, sP2))
        a('s_cselect_b32 s%d, 2, 0' % sT1)
        a('s_or_b32 s%d, s%d, s%d' % (sT0, sT0, sT1))
        a('v_mov_b32 v%d, s%d' % (vT, sT0))
        a('v_mov_b32 v%d, 132' % (vT + 1))
        a('s_mov_b64 exec, 1')
        a('buffer_store_dword v%d, v%d, s[%d:%d], 0 offen sc1' % (vT, vT + 1, sDBG, sDBG + 3))
        a('s_mov_b64 exec, -1')
        a.label(Lnp)
    if w == 3:
        for n in range(10):
            a('ds_read_b128 v[%d:%d], v%d offset:%d' % (vKX + 4 * n, vKX + 4 * n + 3, vL16, LDS_KV + n * 1024))
    if g('tl') and w == 3:
        Lt = a.newlabel('tl')
        a('s_or_b32 s%d, s%d, s%d' % (sT0, sRX, sI))
        a('s_cmp_lg_u32 s%d, 0' % sT0)
        a.branch('s_cbranch_scc1 %s' % Lt)
        a('s_memrealtime s[96:97]')
        a('s_memtime s[98:99]')
        a('s_waitcnt lgkmcnt(0)')
        a('v_mov_b32 v%d, s96' % vT)
        a('v_mov_b32 v%d, s98' % (vT + 1))
        a('v_mov_b32 v%d, 0' % (vT + 2))
        a('s_lshl_b32 s%d, s%d, 3' % (sT0, sSTEP))
        a('s_add_u32 s%d, s%d, 0x%x' % (sT0, sT0, MISC_OFF + 196608))
        a('s_mov_b64 exec, 1')
        a('buffer_store_dwordx2 v[%d:%d], v%d, s[%d:%d], s%d offen' % (vT, vT + 1, vT + 2, sWS, sWS + 3, sT0))
        a('s_mov_b64 exec, -1')
        a.label(Lt)
    a('s_add_u32 s%d, s%d, 1' % (sSTEP, sSTEP))
    mark(a, cfg, 14)
    a.branch('s_branch %s' % Lloop)
    while COLD: COLD.pop(0)()
    a.label(Lend)
    if w == 3: dbgt(a, cfg, 10)
    if fused:
        a('s_waitcnt vmcnt(0)')
        a('s_barrier')
        if w == 0: publish_prog(a, None, 64)
    if g('prof'):
        a('s_mov_b32 s95, s%d' % sSPIN)
        a('s_lshl_b32 s%d, s%d, 5' % (sT0, sRX))
        a('s_add_u32 s%d, s%d, s%d' % (sT0, sT0, sI))
        a('s_lshl_b32 s%d, s%d, 8' % (sT0, sT0))
        a('s_add_u32 s%d, s%d, 0x%x' % (sT0, sT0, MISC_OFF + 4096 + w * 64))
        a('v_mov_b32 v%d, 0' % (vT + 2))
        a('s_mov_b64 exec, 1')
        for k in range(16):
            a('v_mov_b32 v%d, s%d' % (vT, 80 + k))
            a('buffer_store_dword v%d, v%d, s[%d:%d], s%d offen offset:%d' % (vT, vT + 2, sWS, sWS + 3, sT0, 4 * k))
        a('s_mov_b64 exec, -1')
    if g('st3') and w == 0:
        a('s_lshl_b32 s%d, s%d, 5' % (sT0, sRX))
        a('s_add_u32 s%d, s%d, s%d' % (sT0, sT0, sI))
        a('s_lshl_b32 s%d, s%d, 5' % (sT0, sT0))
        a('s_add_u32 s%d, s%d, 0x%x' % (sT0, sT0, MISC_OFF + 262144))
        a('v_mov_b32 v%d, 0' % (vT + 2))
        a('s_mov_b64 exec, 1')
        for k in range(5):
            a('v_mov_b32 v%d, s%d' % (vT, 80 + 2 * k))
            a('buffer_store_dword v%d, v%d, s[%d:%d], s%d offen offset:%d' % (vT, vT + 2, sWS, sWS + 3, sT0, 4 * k))
        a('s_mov_b64 exec, -1')
    if g('stamp') and w == 0:
        a('s_memrealtime s[72:73]')
        a('s_waitcnt lgkmcnt(0)')
        a('s_sub_u32 s72, s72, s70')
        a('v_mov_b32 v%d, s72' % vT)
        a('v_mov_b32 v%d, s70' % (vT + 1))
        a('s_lshl_b32 s%d, s%d, 5' % (sT0, sRX))
        a('s_add_u32 s%d, s%d, s%d' % (sT0, sT0, sI))
        a('s_lshl_b32 s%d, s%d, 3' % (sT0, sT0))
        a('s_add_u32 s%d, s%d, 0x%x' % (sT0, sT0, MISC_OFF))
        a('v_mov_b32 v%d, 0' % (vT + 2))
        a('s_mov_b64 exec, 1')
        a('buffer_store_dwordx2 v[%d:%d], v%d, s[%d:%d], s%d offen' % (vT, vT + 1, vT + 2, sWS, sWS + 3, sT0))
    a('s_endpgm')

def archive_v(a):
    slot_off(a, sT0, sSTEP, 16, sARC)
    st(a, vVZ, 2, vL8, sT0, True)

def publish_prog(a, sreg, add):
    if sreg is None: a('v_mov_b32 v%d, %d' % (vT, add))
    else:
        a('s_add_u32 s%d, s%d, %d' % (sT0, sreg, add))
        a('v_mov_b32 v%d, s%d' % (vT, sT0))
    a('v_mov_b32 v%d, 0' % (vT + 1))
    a('s_mov_b64 exec, 1')
    a('buffer_store_dword v%d, v%d, s[%d:%d], s%d offen sc1' % (vT, vT + 1, sWS, sWS + 3, sARC))
    a('s_mov_b64 exec, -1')

def ensure_gp(a, sreg, add):
    L = a.newlabel('gp'); D = a.newlabel('gpd')
    if sreg is None: a('s_mov_b32 s%d, %d' % (sT2, add))
    else: a('s_add_u32 s%d, s%d, %d' % (sT2, sreg, add))
    a('s_min_u32 s%d, s%d, 64' % (sT2, sT2))
    a('s_lshl_b32 s%d, s%d, 8' % (sT1, sH))
    a('s_add_u32 s%d, s%d, 0x%x' % (sT1, sT1, GP_OFF))
    a('v_mov_b32 v%d, 0' % vT)
    a.label(L)
    a('s_cmp_ge_u32 s%d, s%d' % (sGP, sT2))
    a('s_cbranch_scc1 %s' % D)
    a('buffer_load_dwordx4 v[%d:%d], v%d, s[%d:%d], s%d offen sc1' % (vR, vR + 3, vT, sWS, sWS + 3, sT1))
    a('s_waitcnt vmcnt(0)')
    a('v_min3_u32 v%d, v%d, v%d, v%d' % (vR, vR, vR + 1, vR + 2))
    a('v_min_u32 v%d, v%d, v%d' % (vR, vR, vR + 3))
    a('v_readfirstlane_b32 s%d, v%d' % (sGP, vR))
    a('s_add_u32 s%d, s%d, 1' % (sSPIN, sSPIN))
    a('s_cmp_lt_u32 s%d, 0x%x' % (sSPIN, SPIN_LIMIT))
    a('s_cbranch_scc1 %s' % L)
    a.label(D)

def prefetch_dma(a, sc1=False):
    a('s_add_u32 s%d, s%d, 4096' % (sT0, sKF))
    for grp, (so, n) in enumerate(((sKF, 4), (sT0, 4), (sVF, 2))):
        a('s_mov_b32 m0, %d' % (LDS_KV + grp * 4096))
        for c in range(n):
            a('buffer_load_dwordx4 v%d, s[%d:%d], s%d offen offset:%d%s lds' % (vL16, sWS, sWS + 3, so, c * 1024, ' sc1' if sc1 else ''))

def prefetch_kv(a, sc1=False):
    a('s_add_u32 s%d, s%d, 4096' % (sT0, sKF))
    for tt in range(2):
        for c in range(4):
            r = vKX + 16 * tt + 4 * c
            a('buffer_load_dwordx4 v[%d:%d], v%d, s[%d:%d], s%d offen offset:%d%s' % (r, r + 3, vL16, sWS, sWS + 3, sKF if tt == 0 else sT0, c * 1024, ' sc1' if sc1 else ''))
    for e in range(2):
        a('buffer_load_dwordx4 v[%d:%d], v%d, s[%d:%d], s%d offen offset:%d%s' % (vVX + 4 * e, vVX + 4 * e + 3, vL16, sWS, sWS + 3, sVF, e * 1024, ' sc1' if sc1 else ''))

def r_body(a, cfg):
    a('s_lshr_b32 s%d, s%d, 2' % (sH, sI))
    a('s_lshl_b32 s%d, s%d, 3' % (sT0, sRX))
    a('s_add_u32 s%d, s%d, s%d' % (sH, sH, sT0))
    a('s_and_b32 s%d, s%d, 3' % (sJ, sI))
    for w in range(1, 4):
        a('s_cmp_eq_u32 s%d, %d' % (sW, w))
        a.branch('s_cbranch_scc1 r_wave%d' % w)
    for w in range(4):
        a.label('r_wave%d' % w)
        wave_loop(a, w, cfg)

def gen_r_kernel(name, cfg):
    a = Asm()
    a.raw(kernel_header(name))
    Lexit = 'r_exit'
    a('s_cmp_ge_u32 s2, 256')
    a('s_cbranch_scc1 %s' % Lexit)
    build_srds(a, dict(ws=sWS, wq=sWQ, wk=sWK, wv=sWV, wo=sWO, mem0=sM0, dbg=sDBG))
    a('s_getreg_b32 s%d, hwreg(HW_REG_XCC_ID)' % sRX)
    a('s_and_b32 s%d, s%d, 7' % (sRX, sRX))
    a('s_cmp_ge_u32 s%d, 4' % sRX)
    a('s_cbranch_scc1 %s' % Lexit)
    a('s_mov_b32 s%d, 0' % sSPIN)
    lane_consts(a)
    a('v_lshrrev_b32 v%d, 6, v0' % vT)
    a('v_readfirstlane_b32 s%d, v%d' % (sW, vT))
    Lt = a.newlabel('tk')
    a('s_cmp_lg_u32 s%d, 0' % sW)
    a.branch('s_cbranch_scc1 %s' % Lt)
    a('v_mov_b32 v%d, 1' % vT)
    a('s_lshl_b32 s%d, s%d, 2' % (sT0, sRX))
    a('v_mov_b32 v%d, s%d' % (vT + 1, sT0))
    a('v_mov_b32 v%d, %d' % (vT + 2, LDS_TK))
    a('s_mov_b64 exec, 1')
    a('buffer_atomic_add v%d, v%d, s[%d:%d], 0 offen sc0 sc1' % (vT, vT + 1, sDBG, sDBG + 3))
    a('s_waitcnt vmcnt(0)')
    a('ds_write_b32 v%d, v%d' % (vT + 2, vT))
    a('s_waitcnt lgkmcnt(0)')
    a('s_mov_b64 exec, -1')
    a.label(Lt)
    a('s_barrier')
    a('v_mov_b32 v%d, %d' % (vT + 2, LDS_TK))
    a('ds_read_b32 v%d, v%d' % (vT, vT + 2))
    a('s_waitcnt lgkmcnt(0)')
    a('v_readfirstlane_b32 s%d, v%d' % (sI, vT))
    a('s_cmp_ge_u32 s%d, 32' % sI)
    a.branch('s_cbranch_scc1 %s' % Lexit)
    r_body(a, cfg)
    a.label(Lexit)
    a('s_endpgm')
    return a.text()
```

```python
from common import *
import rrole as R

sWS = 8
sT0, sT1, sT2, sT3, sC, sTASK = 45, 46, 47, 48, 65, 41
sMK = 80
NEG = 0xff7fffff

class AV:
    L16, L8, Dup, L16B = 2, 3, 4, 5
    T = 8
    MLO, MHI, FLO, NEGV = 6, 7, 14, 15
    Q = 16
    K = 48
    KM = 80
    V = 96
    VM = 128
    S = 136
    P = 156
    O = 16
    RC = 176

def attn_consts(a, cfg):
    A = AV
    a('v_and_b32 v1, 63, v0')
    a('v_lshlrev_b32 v%d, 4, v1' % A.L16)
    a('v_lshlrev_b32 v%d, 3, v1' % A.L8)
    a('v_add_u32 v%d, 0x1000, v%d' % (A.L16B, A.L16))
    a('v_lshrrev_b32 v%d, 4, v1' % A.T)
    a('v_and_b32 v%d, 7, v1' % (A.T + 1))
    a('v_lshl_add_u32 v%d, v%d, 3, v%d' % (A.Dup, A.T, A.T + 1))
    a('v_lshlrev_b32 v%d, 4, v%d' % (A.Dup, A.Dup))
    a('v_cmp_gt_u32 vcc, 32, v1')
    a('v_cndmask_b32 v%d, 0, -1, vcc' % A.MLO)
    a('v_cndmask_b32 v%d, -1, 0, vcc' % A.MHI)
    a('v_cndmask_b32 v%d, 0, 1.0, vcc' % A.FLO)
    a('v_mov_b32 v%d, 0x%x' % (A.NEGV, NEG))
    a('v_and_b32 v%d, 15, v1' % (A.T + 1))
    a('v_lshlrev_b32 v%d, 2, v%d' % (A.T, A.T))
    for i in range(4):
        a('v_add_u32 v%d, %d, v%d' % (A.T + 2, i, A.T))
        a('v_cmp_le_u32 s[%d:%d], v%d, v%d' % (sMK + 2 * i, sMK + 2 * i + 1, A.T + 2, A.T + 1))
    a('s_mov_b32 s%d, 0x%x' % (sC, cfg['cbits']))

def attn_task(a, cfg, ld_flags='', st_flags='', all_sc1=False, part=0):
    A = AV
    def ld(r, n, va, so, off, fl=''):
        if all_sc1: fl = ' sc1'
        a('buffer_load_dword%s %s, v%d, s[%d:%d], s%d offen offset:%d%s' % ('x%d' % n, vr(r, n), va, sWS, sWS + 3, so, off, fl))
    if part in (0, 1):
        a('s_lshl_b32 s%d, s%d, 13' % (sT0, sTASK))
        a('s_add_u32 s%d, s%d, 0x%x' % (sT1, sT0, KF_OFF))
        a('s_add_u32 s%d, s%d, 0x%x' % (sT2, sT0, VF_OFF))
        if QF_OFF: a('s_add_u32 s%d, s%d, 0x%x' % (sT0, sT0, QF_OFF))
        for n in range(8): ld(A.Q + 4 * n, 4, A.L16 if n < 4 else A.L16B, sT0, (n & 3) * 1024)
        for n in range(8): ld(A.K + 4 * n, 4, A.L16 if n < 4 else A.L16B, sT1, (n & 3) * 1024)
        for n in range(8): ld(A.V + 4 * n, 4, A.L16 if n < 4 else A.L16B, sT2, (n & 3) * 1024)
        if part == 1: return
    a('s_lshl_b32 s%d, s%d, 11' % (sT0, sTASK))
    a('s_add_u32 s%d, s%d, 0x%x' % (sT1, sT0, KM_OFF))
    a('s_add_u32 s%d, s%d, 0x%x' % (sT0, sT0, VM_OFF))
    for c in range(4): ld(A.KM + 4 * c, 4, A.Dup, sT1, c * 512, ld_flags)
    for j in range(4): ld(A.VM + 2 * j, 2, A.L8, sT0, j * 512, ld_flags)
    tiles = {(0, 0): A.S, (0, 2): A.S + 4, (1, 0): A.S + 8, (1, 1): A.S + 12, (1, 2): A.S + 16}
    a('s_waitcnt vmcnt(4)')
    for c in range(4):
        for (u, t), d in tiles.items():
            Aop = (A.K + 16 * t + 4 * c) if t < 2 else (A.KM + 4 * c)
            a('v_mfma_f32_16x16x32_bf16 %s, %s, %s, %s' % (vr(d, 4), vr(Aop, 4), vr(A.Q + 16 * u + 4 * c, 4), '0' if c == 0 else vr(d, 4)))
    a('s_lshr_b32 s%d, s%d, 5' % (sT0, sTASK))
    a('s_lshl_b32 s%d, s%d, 18' % (sT0, sT0))
    a('s_and_b32 s%d, s%d, 31' % (sT1, sTASK))
    a('s_lshl_b32 s%d, s%d, 12' % (sT1, sT1))
    a('s_add_u32 s%d, s%d, s%d' % (sT0, sT0, sT1))
    a('s_add_u32 s%d, s%d, 0x%x' % (sT0, sT0, OF_OFF))
    a('s_add_u32 s%d, s%d, 0x20000' % (sT1, sT0))
    for d in (tiles[(0, 0)], tiles[(1, 1)]):
        for i in range(4):
            a('v_cndmask_b32 v%d, v%d, v%d, s[%d:%d]' % (d + i, A.NEGV, d + i, sMK + 2 * i, sMK + 2 * i + 1))
    for u in range(2):
        regs = [tiles[k] + i for k in sorted(tiles) if k[0] == u for i in range(4)]
        m, t2 = A.T + 2 * u, A.T + 2 * u + 1
        a('v_max3_f32 v%d, v%d, v%d, v%d' % (m, regs[0], regs[1], regs[2]))
        k = 3
        while k + 1 < len(regs):
            a('v_max3_f32 v%d, v%d, v%d, v%d' % (m, m, regs[k], regs[k + 1])); k += 2
        if k < len(regs): a('v_max_f32 v%d, v%d, v%d' % (m, m, regs[k]))
    for sw in ('v_permlane16_swap_b32', 'v_permlane32_swap_b32'):
        for u in range(2): a('v_mov_b32 v%d, v%d' % (A.T + 2 * u + 1, A.T + 2 * u))
        for u in range(2): a('%s v%d, v%d' % (sw, A.T + 2 * u, A.T + 2 * u + 1))
        for u in range(2): a('v_max_f32 v%d, v%d, v%d' % (A.T + 2 * u, A.T + 2 * u, A.T + 2 * u + 1))
    for u in range(2): a('v_mul_f32 v%d, s%d, v%d' % (A.T + 2 * u, sC, A.T + 2 * u))
    for (u, t), d in tiles.items():
        for i in range(4): a('v_fma_f32 v%d, v%d, s%d, -v%d' % (d + i, d + i, sC, A.T + 2 * u))
    for (u, t), d in tiles.items():
        for i in range(4): a('v_exp_f32 v%d, v%d' % (d + i, d + i))
    for u in range(2):
        p = A.P + 10 * u
        d = tiles[(u, 0)]
        a('v_cvt_pk_bf16_f32 v%d, v%d, v%d' % (p, d, d + 1)); a('v_cvt_pk_bf16_f32 v%d, v%d, v%d' % (p + 1, d + 2, d + 3))
        if u == 0:
            a('v_mov_b32 v%d, 0' % (p + 2)); a('v_mov_b32 v%d, 0' % (p + 3))
        else:
            d = tiles[(1, 1)]
            a('v_cvt_pk_bf16_f32 v%d, v%d, v%d' % (p + 2, d, d + 1)); a('v_cvt_pk_bf16_f32 v%d, v%d, v%d' % (p + 3, d + 2, d + 3))
        d = tiles[(u, 2)]
        a('v_cvt_pk_bf16_f32 v%d, v%d, v%d' % (p + 4, d, d + 1)); a('v_cvt_pk_bf16_f32 v%d, v%d, v%d' % (p + 5, d + 2, d + 3))
        a('v_and_b32 v%d, v%d, v%d' % (p + 6, p + 4, A.MLO)); a('v_and_b32 v%d, v%d, v%d' % (p + 7, p + 5, A.MLO))
        a('v_and_b32 v%d, v%d, v%d' % (p + 8, p + 4, A.MHI)); a('v_and_b32 v%d, v%d, v%d' % (p + 9, p + 5, A.MHI))
    a('s_waitcnt vmcnt(0)')
    for u in range(2):
        sA, sB = A.T + 2 * u, A.T + 2 * u + 1
        d2 = tiles[(u, 2)]; d0 = tiles[(u, 0)]
        R.pk_add(a, d2, d2, d2 + 2); R.pk_add(a, d0, d0, d0 + 2)
        if u == 1:
            d1 = tiles[(1, 1)]
            R.pk_add(a, d1, d1, d1 + 2); R.pk_add(a, d0, d0, d1)
        a('v_add_f32 v%d, v%d, v%d' % (sB, d2, d2 + 1))
        a('v_add_f32 v%d, v%d, v%d' % (sA, d0, d0 + 1))
        a('v_fma_f32 v%d, v%d, v%d, v%d' % (sA, sB, A.FLO, sA))
    for u in range(2):
        p = A.P + 10 * u
        for et in range(8):
            o = A.O + 32 * u + 4 * et
            a('v_mfma_f32_16x16x32_bf16 %s, %s, %s, 0' % (vr(o, 4), vr(A.V + 4 * et, 4), vr(p, 4)))
            if u == 0 and et in (0, 3):
                sw = 'v_permlane16_swap_b32' if et == 0 else 'v_permlane32_swap_b32'
                for x in range(2): a('v_mov_b32 v%d, v%d' % (A.T + 2 * x + 1, A.T + 2 * x))
                for x in range(2): a('%s v%d, v%d' % (sw, A.T + 2 * x, A.T + 2 * x + 1))
                for x in range(2): a('v_add_f32 v%d, v%d, v%d' % (A.T + 2 * x, A.T + 2 * x, A.T + 2 * x + 1))
            if u == 0 and et == 6:
                for x in range(2):
                    a('v_rcp_f32 v%d, v%d' % (A.RC + 2 * x, A.T + 2 * x))
                for x in range(2):
                    a('v_mov_b32 v%d, v%d' % (A.RC + 2 * x + 1, A.RC + 2 * x))
        for et in range(8):
            o = A.O + 32 * u + 4 * et
            a('v_mfma_f32_16x16x16_bf16 %s, %s, %s, %s' % (vr(o, 4), vr(A.VM + 2 * (et >> 1), 2), vr(p + 6 + 2 * (et & 1), 2), vr(o, 4)))
    for u in range(2):
        for c in range(4):
            o = A.O + 32 * u + 8 * c
            for i in range(4):
                a('v_pk_mul_f32 v[%d:%d], v[%d:%d], v[%d:%d]' % (o + 2 * i, o + 2 * i + 1, o + 2 * i, o + 2 * i + 1, A.RC + 2 * u, A.RC + 2 * u + 1))
            for i in range(4):
                a('v_cvt_pk_bf16_f32 v%d, v%d, v%d' % (o + i, o + 2 * i, o + 2 * i + 1))
            a('buffer_store_dwordx4 %s, v%d, s[%d:%d], s%d offen offset:%d%s' % (vr(o, 4), A.L16, sWS, sWS + 3, sT0 + u, c * 1024, st_flags))

def gen_attn_kernel(name, cfg):
    a = Asm()
    a.raw(kernel_header(name))
    a('s_cmp_ge_u32 s2, 512')
    a('s_cbranch_scc1 at_exit')
    build_srds(a, dict(ws=sWS))
    attn_consts(a, cfg)
    a('v_lshrrev_b32 v%d, 6, v0' % AV.T)
    a('v_readfirstlane_b32 s%d, v%d' % (sT0, AV.T))
    a('s_lshl_b32 s%d, s2, 2' % sTASK)
    a('s_add_u32 s%d, s%d, s%d' % (sTASK, sTASK, sT0))
    attn_task(a, cfg)
    a.label('at_exit')
    a('s_endpgm')
    return a.text()

sWO, sX, sOUT = 12, 16, 20
sI, sW, sTILE, sTEND, sTSTEP, sOO, sN, sIDX0, sIDX1 = 41, 42, 43, 44, 49, 50, 51, 52, 53
class OV:
    AC1 = 144
    L, L16, L16B, XA, GA = 1, 2, 3, 4, 5
    T = 8
    TR = 12
    B = 16
    AC = 96
    XR = 152
    G = 160
    RD = 164
    E = 188
LDSO = 0

def wof(q, tau, p): return 64 * q + (tau * 8 + p) * 4

def out_load_weights(a, nq=4):
    O = OV
    a('v_lshrrev_b32 v%d, 2, v%d' % (O.T, O.L))
    a('v_and_b32 v%d, 3, v%d' % (O.T + 1, O.L))
    a('v_lshlrev_b32 v%d, 4, v%d' % (O.T + 1, O.T + 1))
    a('v_lshl_add_u32 v%d, v%d, 11, v%d' % (O.T + 3, O.T, O.T + 1))
    a('s_lshl_b32 s%d, s%d, 21' % (sT0, sW))
    a('s_lshl_b32 s%d, s%d, 6' % (sT1, sI))
    a('s_add_u32 s%d, s%d, s%d' % (sT0, sT0, sT1))
    for n in range(16 * nq):
        a('buffer_load_dwordx4 a[%d:%d], v%d, s[%d:%d], s%d offen' % (4 * n, 4 * n + 3, O.T + 3, sWO, sWO + 3, sT0))
        if n < 16 * nq - 1: a('s_add_u32 s%d, s%d, 0x8000' % (sT0, sT0))
    if nq < 4:
        import modloop
        modloop.wo_tr(a, 2)
    a('s_lshl_b32 s%d, s%d, 14' % (sT0, sW))
    a('v_add_u32 v%d, s%d, v%d' % (O.TR, sT0, O.L16))
    a('v_lshrrev_b32 v%d, 4, v%d' % (O.T, O.L))
    a('v_bfe_u32 v%d, v%d, 2, 2' % (O.T + 1, O.L))
    a('v_and_b32 v%d, 3, v%d' % (O.T + 2, O.L))
    a('v_lshl_add_u32 v%d, v%d, 2, v%d' % (O.T + 3, O.T, O.T + 1))
    a('v_lshlrev_b32 v%d, 6, v%d' % (O.T + 3, O.T + 3))
    a('v_lshl_add_u32 v%d, v%d, 4, v%d' % (O.T + 3, O.T + 2, O.T + 3))
    a('v_add_u32 v%d, s%d, v%d' % (O.TR + 1, sT0, O.T + 3))
    for q in range(nq):
        a('s_waitcnt vmcnt(%d)' % (16 * (nq - 1) - 16 * q))
        for n in range(16):
            a('ds_write_b128 v%d, a[%d:%d] offset:%d' % (O.TR, 64 * q + 4 * n, 64 * q + 4 * n + 3, n * 1024))
        a('s_waitcnt lgkmcnt(0)')
        for tau in range(2):
            for p in range(8):
                for half in range(2):
                    r = wof(q, tau, p) + 2 * half
                    a('ds_read_b64_tr_b16 a[%d:%d], v%d offset:%d' % (r, r + 1, O.TR + 1, (32 * p + 16 * half) * 64 + tau * 8))
        a('s_waitcnt lgkmcnt(0)')

def oloads(q, so, fl=''):
    O = OV
    return ['buffer_load_dwordx4 v[%d:%d], v%d, s[%d:%d], s%d offen offset:%d%s' % (O.B + 32 * q + 4 * p, O.B + 32 * q + 4 * p + 3, O.L16 if p < 4 else O.L16B, sWS, sWS + 3, so, (p & 3) * 1024, fl) for p in range(8)]

def epilogue(a, par, tile_s=None, fused=False, lds=True):
    O = OV
    for wv in range(4 if lds else 0):
        for tau in range(2):
            r = O.E + wv * 8 + tau * 4
            a('ds_read_b128 v[%d:%d], v%d offset:%d' % (r, r + 3, O.L16, LDSO + par * 8192 + wv * 2048 + tau * 1024))
    if lds: a('s_waitcnt lgkmcnt(0)')
    for x in range(0, 8, 2):
        R.pk_add(a, O.E + x, O.E + x, O.E + 8 + x); R.pk_add(a, O.E + 16 + x, O.E + 16 + x, O.E + 24 + x)
    for x in range(0, 8, 2):
        R.pk_add(a, O.E + x, O.E + x, O.E + 16 + x)
    for i in range(4): a('v_cvt_pk_bf16_f32 v%d, v%d, v%d' % (O.E + 8 + i, O.E + 2 * i, O.E + 2 * i + 1))
    for i in range(4):
        a('v_lshlrev_b32 v%d, 16, v%d' % (O.E + 2 * i, O.E + 8 + i))
        a('v_and_b32 v%d, 0xffff0000, v%d' % (O.E + 2 * i + 1, O.E + 8 + i))
    xr = O.XR + 4 * par; g = O.G + par
    if lds: a('s_waitcnt vmcnt(34)')
    for i in range(4):
        a('v_lshlrev_b32 v%d, 16, v%d' % (O.E + 16 + 2 * i, xr + i))
        a('v_and_b32 v%d, 0xffff0000, v%d' % (O.E + 17 + 2 * i, xr + i))
    if tile_s is None: a('s_sub_u32 s%d, s%d, s%d' % (sT0, sTILE, sTSTEP))
    else: a('s_mov_b32 s%d, s%d' % (sT0, tile_s))
    Lskip = a.newlabel('nomod')
    a('s_lshr_b32 s%d, s%d, 4' % (sT1, sIDX0))
    a('s_lshr_b32 s%d, s%d, 4' % (sT2, sIDX1))
    a('s_cmp_eq_u32 s%d, s%d' % (sT1, sT0))
    a('s_cselect_b32 s%d, 1, 0' % sT3)
    a('s_cmp_eq_u32 s%d, s%d' % (sT2, sT0))
    a('s_cselect_b32 s%d, 1, s%d' % (sT3, sT3))
    a('s_cmp_eq_u32 s%d, 0' % sT3)
    a.branch('s_cbranch_scc1 %s' % Lskip)
    a('v_and_b32 v%d, 15, v%d' % (O.E + 24, O.L))
    a('s_lshl_b32 s%d, s%d, 4' % (sT1, sT0))
    a('v_add_u32 v%d, s%d, v%d' % (O.E + 24, sT1, O.E + 24))
    a('v_lshrrev_b32 v%d, 4, v%d' % (O.E + 25, O.L))
    a('v_lshlrev_b32 v%d, 5, v%d' % (O.E + 25, O.E + 25))
    for c in range(2):
        Lc = a.newlabel('modc')
        a('v_cmp_eq_u32 vcc, s%d, v%d' % (sIDX0 + c, O.E + 24))
        a('s_and_saveexec_b64 s[90:91], vcc')
        a.branch('s_cbranch_execz %s' % Lc)
        a('s_lshl_b32 s%d, s%d, 7' % (sT1, sI))
        a('s_add_u32 s%d, s%d, 0x%x' % (sT1, sT1, YP_OFF + c * 4096))
        for i in range(8): a('v_mov_b32 v%d, 0' % (O.RD + 16 + i))
        for sp in range(7):
            a('buffer_load_dwordx4 v[%d:%d], v%d, s[%d:%d], s%d offen sc1' % (O.RD, O.RD + 3, O.E + 25, sWS, sWS + 3, sT1))
            a('buffer_load_dwordx4 v[%d:%d], v%d, s[%d:%d], s%d offen offset:16 sc1' % (O.RD + 4, O.RD + 7, O.E + 25, sWS, sWS + 3, sT1))
            a('s_add_u32 s%d, s%d, 8192' % (sT1, sT1))
            a('s_waitcnt vmcnt(0)')
            for x in range(0, 8, 2): R.pk_add(a, O.RD + 16 + x, O.RD + 16 + x, O.RD + x)
        a('s_mov_b32 s%d, 0x%x' % (sT1, IDX_OFF + 8 + 4 * c))
        a('v_mov_b32 v%d, 0' % (O.RD + 8))
        a('buffer_load_dword v%d, v%d, s[%d:%d], s%d offen sc1' % (O.RD + 9, O.RD + 8, sWS, sWS + 3, sT1))
        def rnd(base):
            for i in range(4):
                a('v_cvt_pk_bf16_f32 v%d, v%d, v%d' % (O.RD + i, base + 2 * i, base + 2 * i + 1))
            for i in range(4):
                a('v_lshlrev_b32 v%d, 16, v%d' % (base + 2 * i, O.RD + i))
                a('v_and_b32 v%d, 0xffff0000, v%d' % (base + 2 * i + 1, O.RD + i))
        rnd(O.RD + 16)
        a('s_waitcnt vmcnt(0)')
        for i in range(8): a('v_mul_f32 v%d, v%d, v%d' % (O.RD + 16 + i, O.RD + 16 + i, O.RD + 9))
        rnd(O.RD + 16)
        for i in range(8): a('v_add_f32 v%d, v%d, v%d' % (O.E + 16 + i, O.E + 16 + i, O.RD + 16 + i))
        rnd(O.E + 16)
        a.label(Lc)
        a('s_mov_b64 exec, s[90:91]')
    a.label(Lskip)
    a('v_sub_f32 v%d, 1.0, v%d' % (O.E + 24, g))
    a('v_cvt_pk_bf16_f32 v%d, v%d, v%d' % (O.E + 24, O.E + 24, O.E + 24))
    a('v_and_b32 v%d, 0xffff0000, v%d' % (O.E + 24, O.E + 24))
    for i in range(8): a('v_mul_f32 v%d, v%d, v%d' % (O.E + 16 + i, O.E + 16 + i, O.E + 24))
    for i in range(8): a('v_fma_f32 v%d, v%d, v%d, v%d' % (O.E + i, O.E + i, g, O.E + 16 + i))
    for i in range(4): a('v_cvt_pk_bf16_f32 v%d, v%d, v%d' % (O.E + 8 + i, O.E + 2 * i, O.E + 2 * i + 1))
    a('s_lshl_b32 s%d, s%d, 15' % (sT0, sT0))
    a('s_lshl_b32 s%d, s%d, 6' % (sT1, sI))
    a('s_add_u32 s%d, s%d, s%d' % (sT0, sT0, sT1))
    a('buffer_store_dwordx4 v[%d:%d], v%d, s[%d:%d], s%d offen' % (O.E + 8, O.E + 11, O.XA, sOUT, sOUT + 3, sT0))

def tile_body(a, par, cfg):
    O = OV
    a('s_lshl_b32 s%d, s%d, 15' % (sT0, sTILE))
    a('s_lshl_b32 s%d, s%d, 6' % (sT1, sI))
    a('s_add_u32 s%d, s%d, s%d' % (sT0, sT0, sT1))
    a('buffer_load_dwordx4 v[%d:%d], v%d, s[%d:%d], s%d offen' % (O.XR + 4 * par, O.XR + 4 * par + 3, O.XA, sX, sX + 3, sT0))
    a('s_lshl_b32 s%d, s%d, 6' % (sT0, sTILE))
    a('s_add_u32 s%d, s%d, 0x%x' % (sT0, sT0, GL_OFF))
    a('buffer_load_dword v%d, v%d, s[%d:%d], s%d offen' % (O.G + par, O.GA, sWS, sWS + 3, sT0))
    Ls = a.newlabel('noepi')
    a('s_cmp_eq_u32 s%d, 0' % sN)
    a('s_cbranch_scc1 %s' % Ls)
    a('s_and_b32 s%d, s%d, 3' % (sT0, sN))
    a('s_cmp_lg_u32 s%d, s%d' % (sT0, sW))
    a.branch('s_cbranch_scc1 %s' % Ls)
    epilogue(a, 1 - par)
    a.label(Ls)
    a('s_lshl_b32 s%d, s%d, 17' % (sT3, sTSTEP))
    a('s_add_u32 s%d, s%d, s%d' % (sOO, sOO, sT3))
    for q in range(4):
        a('s_waitcnt vmcnt(26)')
        for p in range(8):
            for tau in range(2):
                c = '0' if (q == 0 and p == 0) else vr(O.AC1 + 4 * tau, 4)
                a('v_mfma_f32_16x16x32_bf16 %s, %s, %s, %s' % (vr(O.AC1 + 4 * tau, 4), ar(wof(q, tau, p), 4), vr(O.B + 32 * q + 4 * p, 4), c))
        a('s_add_u32 s%d, s%d, %d' % (sT0, sOO, q * 8192))
        for x in oloads(q, sT0): a(x)
    a('s_lshl_b32 s%d, s%d, 11' % (sT0, sW))
    a('v_add_u32 v%d, s%d, v%d' % (O.T, sT0, O.L16))
    for tau in range(2):
        a('ds_write_b128 v%d, v[%d:%d] offset:%d' % (O.T, O.AC1 + 4 * tau, O.AC1 + 4 * tau + 3, LDSO + par * 8192 + tau * 1024))
    a('s_waitcnt lgkmcnt(0)')
    a('s_barrier')
    a('s_add_u32 s%d, s%d, s%d' % (sTILE, sTILE, sTSTEP))
    a('s_add_u32 s%d, s%d, 1' % (sN, sN))

def gen_out_kernel(name, cfg):
    O = OV
    a = Asm()
    a.raw(kernel_header(name))
    a('s_cmp_ge_u32 s2, 256')
    a('s_cbranch_scc1 out_exit')
    build_srds(a, dict(ws=sWS, wo=sWO, x=sX, out=sOUT))
    a('v_and_b32 v%d, 63, v0' % O.L)
    a('v_lshlrev_b32 v%d, 4, v%d' % (O.L16, O.L))
    a('v_add_u32 v%d, 0x1000, v%d' % (O.L16B, O.L16))
    a('v_lshrrev_b32 v%d, 6, v0' % O.T)
    a('v_readfirstlane_b32 s%d, v%d' % (sW, O.T))
    a('v_and_b32 v%d, 15, v%d' % (O.T, O.L))
    a('v_lshlrev_b32 v%d, 2, v%d' % (O.GA, O.T))
    a('v_lshrrev_b32 v%d, 4, v%d' % (O.T + 1, O.L))
    a('v_lshlrev_b32 v%d, 4, v%d' % (O.T + 1, O.T + 1))
    a('v_lshl_add_u32 v%d, v%d, 11, v%d' % (O.XA, O.T, O.T + 1))
    a('s_lshr_b32 s%d, s2, 3' % sI)
    a('s_and_b32 s%d, s2, 7' % sTILE)
    a('s_mov_b32 s%d, 8' % sTSTEP)
    a('s_mov_b32 s%d, 0' % sN)
    a('v_mov_b32 v%d, 0' % O.T)
    a('s_mov_b32 s%d, 0x%x' % (sT0, IDX_OFF))
    a('buffer_load_dwordx2 v[%d:%d], v%d, s[%d:%d], s%d offen' % (O.E, O.E + 1, O.T, sWS, sWS + 3, sT0))
    a('s_waitcnt vmcnt(0)')
    a('v_readfirstlane_b32 s%d, v%d' % (sIDX0, O.E))
    a('v_readfirstlane_b32 s%d, v%d' % (sIDX1, O.E + 1))
    out_load_weights(a)
    a('s_barrier')
    a('s_lshl_b32 s%d, s%d, 17' % (sOO, sTILE))
    a('s_lshl_b32 s%d, s%d, 15' % (sT0, sW))
    a('s_add_u32 s%d, s%d, s%d' % (sOO, sOO, sT0))
    a('s_add_u32 s%d, s%d, 0x%x' % (sOO, sOO, OF_OFF))
    for q in range(4):
        a('s_add_u32 s%d, s%d, %d' % (sT0, sOO, q * 8192))
        for x in oloads(q, sT0): a(x)
    a.label('out_loop')
    tile_body(a, 0, cfg)
    tile_body(a, 1, cfg)
    a('s_cmp_lt_u32 s%d, 16' % sN)
    a.branch('s_cbranch_scc1 out_loop')
    a('s_cmp_lg_u32 s%d, 0' % sW)
    a.branch('s_cbranch_scc1 out_exit')
    a('s_waitcnt vmcnt(0)')
    epilogue(a, 1)
    a.label('out_exit')
    a('s_endpgm')
    return a.text()

def out_consts(a):
    O = OV
    a('v_and_b32 v%d, 63, v0' % O.L)
    a('v_lshlrev_b32 v%d, 4, v%d' % (O.L16, O.L))
    a('v_add_u32 v%d, 0x1000, v%d' % (O.L16B, O.L16))
    a('v_and_b32 v%d, 15, v%d' % (O.T, O.L))
    a('v_lshlrev_b32 v%d, 2, v%d' % (O.GA, O.T))
    a('v_lshrrev_b32 v%d, 4, v%d' % (O.T + 1, O.L))
    a('v_lshlrev_b32 v%d, 4, v%d' % (O.T + 1, O.T + 1))
    a('v_lshl_add_u32 v%d, v%d, 11, v%d' % (O.XA, O.T, O.T + 1))

sPT, sNB = 56, 57
def wo_tile(a, par, pf=True):
    O = OV
    a('s_lshl_b32 s%d, s%d, 15' % (sT0, sTILE))
    a('s_lshl_b32 s%d, s%d, 6' % (sT1, sI))
    a('s_add_u32 s%d, s%d, s%d' % (sT0, sT0, sT1))
    a('buffer_load_dwordx4 v[%d:%d], v%d, s[%d:%d], s%d offen' % (O.XR + 4 * par, O.XR + 4 * par + 3, O.XA, sX, sX + 3, sT0))
    a('s_lshl_b32 s%d, s%d, 6' % (sT0, sTILE))
    a('s_add_u32 s%d, s%d, 0x%x' % (sT0, sT0, GL_OFF))
    a('buffer_load_dword v%d, v%d, s[%d:%d], s%d offen sc1' % (O.G + par, O.GA, sWS, sWS + 3, sT0))
    Ls = a.newlabel('noepi')
    a('s_cmp_eq_u32 s%d, 0' % sN)
    a('s_cbranch_scc1 %s' % Ls)
    a('s_and_b32 s%d, s%d, 3' % (sT0, sN))
    a('s_cmp_lg_u32 s%d, s%d' % (sT0, sW))
    a.branch('s_cbranch_scc1 %s' % Ls)
    epilogue(a, 1 - par, sPT, True)
    a.label(Ls)
    a('s_add_u32 s%d, s%d, 0x%x' % (sOO, sOO, 0x20000 * (1 if par == 0 else 7)))
    for q in range(4):
        a('s_waitcnt vmcnt(%d)' % (26 if pf else 26 - 8 * q))
        for p in range(8):
            for tau in range(2):
                c = '0' if (q == 0 and p == 0) else vr(O.AC1 + 4 * tau, 4)
                a('v_mfma_f32_16x16x32_bf16 %s, %s, %s, %s' % (vr(O.AC1 + 4 * tau, 4), ar(wof(q, tau, p), 4), vr(O.B + 32 * q + 4 * p, 4), c))
        if pf:
            a('s_add_u32 s%d, s%d, %d' % (sT0, sOO, q * 8192))
            for x in oloads(q, sT0, ' sc1'): a(x)
    for tau in range(2):
        a('ds_write_b128 v%d, v[%d:%d] offset:%d' % (O.T, O.AC1 + 4 * tau, O.AC1 + 4 * tau + 3, LDSO + par * 8192 + tau * 1024))
    a('s_waitcnt lgkmcnt(0)')
    a('s_barrier')
    a('s_mov_b32 s%d, s%d' % (sPT, sTILE))
    a('s_add_u32 s%d, s%d, %d' % (sTILE, sTILE, 1 if par == 0 else 7))
    a('s_add_u32 s%d, s%d, 1' % (sN, sN))

def wo_batch(a, cfg):
    O = OV
    out_consts(a)
    a('s_mov_b32 s%d, 0' % sN)
    a('s_lshl_b32 s%d, s%d, 17' % (sOO, sTILE))
    a('s_lshl_b32 s%d, s%d, 15' % (sT0, sW))
    a('s_add_u32 s%d, s%d, s%d' % (sOO, sOO, sT0))
    a('s_add_u32 s%d, s%d, 0x%x' % (sOO, sOO, OF_OFF))
    for q in range(4):
        a('s_add_u32 s%d, s%d, %d' % (sT0, sOO, q * 8192))
        for x in oloads(q, sT0, ' sc1'): a(x)
    a('s_lshl_b32 s%d, s%d, 11' % (sT0, sW))
    a('v_add_u32 v%d, s%d, v%d' % (O.T, sT0, O.L16))
    L = a.newlabel('wob')
    a.label(L)
    Ll = a.newlabel('wol')
    wo_tile(a, 0)
    a('s_sub_u32 s%d, s%d, 1' % (sNB, sNB))
    a('s_cmp_eq_u32 s%d, 0' % sNB)
    a.branch('s_cbranch_scc1 %s' % Ll)
    wo_tile(a, 1)
    a.branch('s_branch %s' % L)
    a.label(Ll)
    wo_tile(a, 1, pf=False)
    Ls = a.newlabel('noepi')
    a('s_cmp_lg_u32 s%d, 3' % sW)
    a.branch('s_cbranch_scc1 %s' % Ls)
    a('s_waitcnt vmcnt(0)')
    epilogue(a, 1, sPT, True)
    a.label(Ls)

sKQ, sCG, sC32, sSLOT_, sPWO, sNT, sTN = 60, 61, 62, 63, 64, 49, 59
def wo2_load_weights(a, nq=4):
    global sW, sI
    sw, si = sW, sI
    a('s_lshr_b32 s%d, s%d, 3' % (sKQ, si))
    a('s_and_b32 s%d, s%d, 7' % (sCG, si))
    a('s_lshl_b32 s%d, s%d, 2' % (sC32, sCG))
    a('s_add_u32 s%d, s%d, s%d' % (sC32, sC32, sw))
    O = OV
    a('v_lshrrev_b32 v%d, 2, v%d' % (O.T, O.L))
    a('v_and_b32 v%d, 3, v%d' % (O.T + 1, O.L))
    a('v_lshlrev_b32 v%d, 4, v%d' % (O.T + 1, O.T + 1))
    a('v_lshl_add_u32 v%d, v%d, 11, v%d' % (O.T + 3, O.T, O.T + 1))
    a('s_lshl_b32 s%d, s%d, 21' % (sT0, sKQ))
    a('s_lshl_b32 s%d, s%d, 6' % (sT1, sC32))
    a('s_add_u32 s%d, s%d, s%d' % (sT0, sT0, sT1))
    for n in range(16 * nq):
        a('buffer_load_dwordx4 a[%d:%d], v%d, s[%d:%d], s%d offen' % (4 * n, 4 * n + 3, O.T + 3, sWO, sWO + 3, sT0))
        if n < 16 * nq - 1: a('s_add_u32 s%d, s%d, 0x8000' % (sT0, sT0))
    if nq < 4:
        import modloop
        modloop.wo_tr(a, 2)
    a('s_lshl_b32 s%d, s%d, 14' % (sT0, sw))
    a('v_add_u32 v%d, s%d, v%d' % (O.TR, sT0, O.L16))
    a('v_lshrrev_b32 v%d, 4, v%d' % (O.T, O.L))
    a('v_bfe_u32 v%d, v%d, 2, 2' % (O.T + 1, O.L))
    a('v_and_b32 v%d, 3, v%d' % (O.T + 2, O.L))
    a('v_lshl_add_u32 v%d, v%d, 2, v%d' % (O.T + 3, O.T, O.T + 1))
    a('v_lshlrev_b32 v%d, 6, v%d' % (O.T + 3, O.T + 3))
    a('v_lshl_add_u32 v%d, v%d, 4, v%d' % (O.T + 3, O.T + 2, O.T + 3))
    a('v_add_u32 v%d, s%d, v%d' % (O.TR + 1, sT0, O.T + 3))
    for q in range(nq):
        a('s_waitcnt vmcnt(%d)' % (16 * (nq - 1) - 16 * q))
        for n in range(16):
            a('ds_write_b128 v%d, a[%d:%d] offset:%d' % (O.TR, 64 * q + 4 * n, 64 * q + 4 * n + 3, n * 1024))
        a('s_waitcnt lgkmcnt(0)')
        for tau in range(2):
            for p in range(8):
                for half in range(2):
                    r = wof(q, tau, p) + 2 * half
                    a('ds_read_b64_tr_b16 a[%d:%d], v%d offset:%d' % (r, r + 1, O.TR + 1, (32 * p + 16 * half) * 64 + tau * 8))
        a('s_waitcnt lgkmcnt(0)')

def tile_of(a, dst, n_s, sGX):
    a('s_lshr_b32 s%d, s%d, 1' % (dst, n_s))
    a('s_lshl_b32 s%d, s%d, 2' % (dst, dst))
    a('s_add_u32 s%d, s%d, s%d' % (dst, dst, sGX))
    a('s_lshl_b32 s%d, s%d, 1' % (dst, dst))
    a('s_and_b32 s%d, s%d, 1' % (sT3, n_s))
    a('s_add_u32 s%d, s%d, s%d' % (dst, dst, sT3))

sDA, sDL = 74, 75
def wo2_dma_setup(a, n_s, slot_s, sGX):
    tile_of(a, sDA, n_s, sGX)
    a('s_lshl_b32 s%d, s%d, 17' % (sDA, sDA))
    a('s_lshl_b32 s%d, s%d, 15' % (sT1, sKQ))
    a('s_add_u32 s%d, s%d, s%d' % (sDA, sDA, sT1))
    a('s_lshl_b32 s%d, s%d, 13' % (sT1, sW))
    a('s_add_u32 s%d, s%d, s%d' % (sDA, sDA, sT1))
    a('s_add_u32 s%d, s%d, 0x%x' % (sDA, sDA, OF_OFF))
    a('s_lshl_b32 s%d, s%d, 15' % (sDL, slot_s))
    a('s_add_u32 s%d, s%d, s%d' % (sDL, sDL, sT1))

def wo2_dma_one(a, p):
    O = OV
    if p == 0: a('s_mov_b32 m0, s%d' % sDL)
    if p == 4:
        a('s_add_u32 m0, s%d, 4096' % sDL)
        a('s_add_u32 s%d, s%d, 4096' % (sDA, sDA))
    a('buffer_load_dwordx4 v%d, s[%d:%d], s%d offen offset:%d sc1 lds' % (O.L16, sWS, sWS + 3, sDA, (p & 3) * 1024))

def wo2_dma(a, n_s, slot_s, sGX):
    wo2_dma_setup(a, n_s, slot_s, sGX)
    for p in range(8): wo2_dma_one(a, p)

def wo2_batch(a, cfg, sGX, sNW, sSP):
    O = OV
    safe = ' sc1' if cfg.get('safe') else ''
    out_consts(a)
    sN0 = sPT
    a('s_mov_b32 s%d, s%d' % (sN0, sTN))
    a('s_mov_b32 s%d, 0' % sSLOT_)
    wo2_dma(a, sTN, sSLOT_, sGX)
    a('s_add_u32 s%d, s%d, 1' % (sOO, sTN))
    a('s_mov_b32 s%d, 1' % sN)
    wo2_dma(a, sOO, sN, sGX)
    a('s_lshl_b32 s%d, s%d, 23' % (sPWO, sGX))
    a('s_lshl_b32 s%d, s%d, 16' % (sT0, sKQ))
    a('s_add_u32 s%d, s%d, s%d' % (sPWO, sPWO, sT0))
    a('s_lshl_b32 s%d, s%d, 11' % (sT0, sC32))
    a('s_add_u32 s%d, s%d, s%d' % (sPWO, sPWO, sT0))
    a('s_add_u32 s%d, s%d, 0x%x' % (sPWO, sPWO, PW_OFF))
    a('s_waitcnt vmcnt(0)')
    L = a.newlabel('w2l'); Ll = a.newlabel('w2last'); Lj = a.newlabel('w2j')
    NPRE = 8
    def seg(dma):
        a('s_lshl_b32 s%d, s%d, 15' % (sT0, sSLOT_))
        a('v_add_u32 v%d, s%d, v%d' % (O.T, sT0, O.L16))
        def rd(k): a('ds_read_b128 v[%d:%d], v%d offset:%d' % (O.B + 4 * (k % 16), O.B + 4 * (k % 16) + 3, O.T, k * 1024))
        for k in range(NPRE): rd(k)
        if dma:
            a('s_add_u32 s%d, s%d, 2' % (sOO, sTN))
            a('s_xor_b32 s%d, s%d, 2' % (sN, sSLOT_))
            wo2_dma_setup(a, sOO, sN, sGX)
        a('s_lshl_b32 s%d, s%d, 18' % (sT2, sTN))
        a('s_add_u32 s%d, s%d, s%d' % (sT2, sT2, sPWO))
        a('s_add_u32 s%d, s%d, 0x40000' % (sT0, sT2))
        for kk in range(64):
            t, k = kk >> 5, kk & 31
            ac = O.AC + 8 * t
            a('s_waitcnt lgkmcnt(%d)' % min(NPRE - 1, 63 - kk))
            for tau in range(2):
                c = '0' if k == 0 else vr(ac + 4 * tau, 4)
                a('v_mfma_f32_16x16x32_bf16 %s, %s, %s, %s' % (vr(ac + 4 * tau, 4), ar(wof(k >> 3, tau, k & 7), 4), vr(O.B + 4 * (kk % 16), 4), c))
                if tau == 0 and kk + NPRE < 64: rd(kk + NPRE)
                if dma and tau == 1 and kk % 2 == 1 and kk // 2 < 16:
                    p = kk // 2
                    if p == 8:
                        a('s_add_u32 s%d, s%d, 0x%x' % (sDA, sDA, 0x20000 - 4096))
                        a('s_add_u32 s%d, s%d, 0x8000' % (sDL, sDL))
                    wo2_dma_one(a, p & 7)
            if kk == 37:
                for tau in range(2):
                    a('buffer_store_dwordx4 v[%d:%d], v%d, s[%d:%d], s%d offen offset:%d%s' % (O.AC + 4 * tau, O.AC + 4 * tau + 3, O.L16, sWS, sWS + 3, sT2, tau * 1024, safe))
        a('s_add_u32 s%d, s%d, 2' % (sTN, sTN))
        a('s_xor_b32 s%d, s%d, 2' % (sSLOT_, sSLOT_))
        for tau in range(2):
            a('buffer_store_dwordx4 v[%d:%d], v%d, s[%d:%d], s%d offen offset:%d%s' % (O.AC + 8 + 4 * tau, O.AC + 8 + 4 * tau + 3, O.L16, sWS, sWS + 3, sT0, tau * 1024, safe))
    a.label(L)
    a('s_barrier')
    a('s_add_u32 s%d, s%d, 2' % (sOO, sTN))
    a('s_cmp_ge_u32 s%d, s%d' % (sOO, sNT))
    a.branch('s_cbranch_scc1 %s' % Ll)
    seg(True)
    a('s_waitcnt vmcnt(4)')
    a.branch('s_branch %s' % L)
    a.label(Ll)
    seg(False)
    a.label(Lj)
    a('s_waitcnt vmcnt(0)')
    a('s_barrier')
    import fused
    fused.g2mark(a, cfg, 7)
    a('s_lshl_b32 s%d, s%d, 3' % (sT0, sGX))
    a('s_add_u32 s%d, s%d, s%d' % (sT0, sT0, sCG))
    a('s_lshl_b32 s%d, s%d, 7' % (sT0, sT0))
    a('s_add_u32 s%d, s%d, 0x%x' % (sOO, sT0, WP_OFF))
    Lp = a.newlabel('w2p')
    a('s_cmp_lg_u32 s%d, 0' % sW)
    a.branch('s_cbranch_scc1 %s' % Lp)
    a('s_lshl_b32 s%d, s%d, 2' % (sT0, sKQ))
    a('v_mov_b32 v%d, s%d' % (O.T + 1, sT0))
    a('v_mov_b32 v%d, s%d' % (O.T + 2, sNT))
    a('s_mov_b64 exec, 1')
    a('buffer_store_dword v%d, v%d, s[%d:%d], s%d offen%s' % (O.T + 2, O.T + 1, sWS, sWS + 3, sOO, safe))
    a('s_mov_b64 exec, -1')
    a.label(Lp)
    a('s_add_u32 s%d, s%d, s%d' % (sTN, sN0, sW))
    Lf = a.newlabel('w2f'); Le = a.newlabel('w2e'); Lq = a.newlabel('w2q'); Lqd = a.newlabel('w2qd')
    a('s_cmp_ge_u32 s%d, s%d' % (sTN, sNT))
    a.branch('s_cbranch_scc1 %s' % Le)
    global sI
    si_save = sI
    sFC = sSLOT_
    a('s_lshl_b32 s%d, s%d, 2' % (sFC, sCG))
    a('s_add_u32 s%d, s%d, s%d' % (sFC, sFC, sKQ))
    def xg(n_s, par):
        tile_of(a, sT2, n_s, sGX)
        a('s_lshl_b32 s%d, s%d, 15' % (sT0, sT2))
        a('s_lshl_b32 s%d, s%d, 6' % (sT1, sFC))
        a('s_add_u32 s%d, s%d, s%d' % (sT0, sT0, sT1))
        a('buffer_load_dwordx4 v[%d:%d], v%d, s[%d:%d], s%d offen' % (O.XR + 4 * par, O.XR + 4 * par + 3, O.XA, sX, sX + 3, sT0))
        a('s_lshl_b32 s%d, s%d, 6' % (sT0, sT2))
        a('s_add_u32 s%d, s%d, 0x%x' % (sT0, sT0, GL_OFF))
        a('buffer_load_dword v%d, v%d, s[%d:%d], s%d offen sc1' % (O.G + par, O.GA, sWS, sWS + 3, sT0))
    xg(sTN, 0)
    a('s_add_u32 s%d, s%d, 4' % (sN, sTN))
    xg(sN, 1)
    a('v_mov_b32 v%d, 0' % (O.T + 1))
    a.label(Lq)
    a('buffer_load_dwordx4 v[%d:%d], v%d, s[%d:%d], s%d offen sc1' % (O.T + 4, O.T + 7, O.T + 1, sWS, sWS + 3, sOO))
    a('s_waitcnt vmcnt(0)')
    a('v_min3_u32 v%d, v%d, v%d, v%d' % (O.T + 4, O.T + 4, O.T + 5, O.T + 6))
    a('v_min_u32 v%d, v%d, v%d' % (O.T + 4, O.T + 4, O.T + 7))
    a('v_cmp_gt_u32 vcc, s%d, v%d' % (sNT, O.T + 4))
    a('s_cbranch_vccz %s' % Lqd)
    a('s_sleep 1')
    a('s_add_u32 s%d, s%d, 1' % (sSP, sSP))
    a('s_cmp_lt_u32 s%d, 0x%x' % (sSP, SPIN_LIMIT))
    a('s_cbranch_scc1 %s' % Lq)
    a.label(Lqd)
    fused.g2mark(a, cfg, 6)
    for par in range(2):
        tile_of(a, sTILE, sTN, sGX)
        a('s_lshl_b32 s%d, s%d, 23' % (sT0, sGX))
        a('s_lshl_b32 s%d, s%d, 18' % (sT1, sTN))
        a('s_add_u32 s%d, s%d, s%d' % (sT0, sT0, sT1))
        a('s_lshl_b32 s%d, s%d, 11' % (sT1, sFC))
        a('s_add_u32 s%d, s%d, s%d' % (sT0, sT0, sT1))
        a('s_add_u32 s%d, s%d, 0x%x' % (sT0, sT0, PW_OFF))
        for kq in range(4):
            for tau in range(2):
                r = O.E + kq * 8 + tau * 4
                a('buffer_load_dwordx4 v[%d:%d], v%d, s[%d:%d], s%d offen offset:%d sc1' % (r, r + 3, O.L16, sWS, sWS + 3, sT0, tau * 1024))
            a('s_add_u32 s%d, s%d, 0x10000' % (sT0, sT0))
        a('s_waitcnt vmcnt(0)')
        sI = sFC
        epilogue(a, par, sTILE, True, lds=False)
        sI = si_save
        if par == 0:
            a('s_add_u32 s%d, s%d, 4' % (sTN, sTN))
            a('s_cmp_ge_u32 s%d, s%d' % (sTN, sNT))
            a.branch('s_cbranch_scc1 %s' % Le)
    a.label(Le)
```

```python
from common import *
import rrole as R
sWS, sDBG = 8, 32
sTR = 12
sDM, sDS, sDMI, sDSI = 68, 69, 70, 71
sGI = 93
sX = 24
sT0, sT1, sT2, sT3 = 45, 46, 47, 48
sK0, sK1, sSP = 66, 67, 44
sW, sB = 94, 95
WO2 = [0]
D0 = 98304
vL, vL16 = 1, 2
vT = 6
vK = 144
vXS = 160
vF = 192
vAC = 224
vR = 240

def waddr(a, stride):
    a('v_lshrrev_b32 v%d, 2, v%d' % (vT, vL))
    a('v_mul_u32_u24 v%d, %d, v%d' % (vT, stride, vT))
    a('v_and_b32 v%d, 3, v%d' % (vT + 1, vL))
    a('v_lshl_add_u32 v%d, v%d, 4, v%d' % (vT + 2, vT + 1, vT))

def tr_addrs(a):
    a('s_lshl_b32 s%d, s%d, 14' % (sT0, sW))
    a('s_add_u32 s%d, s%d, %d' % (sT0, sT0, D0))
    a('v_add_u32 v%d, s%d, v%d' % (vT + 6, sT0, vL16))
    a('v_lshrrev_b32 v%d, 4, v%d' % (vT, vL))
    a('v_bfe_u32 v%d, v%d, 2, 2' % (vT + 1, vL))
    a('v_and_b32 v%d, 3, v%d' % (vT + 2, vL))
    a('v_lshl_add_u32 v%d, v%d, 4, v%d' % (vT + 3, vT, vT + 1))
    a('v_lshlrev_b32 v%d, 6, v%d' % (vT + 3, vT + 3))
    a('v_lshl_add_u32 v%d, v%d, 3, v%d' % (vT + 3, vT + 2, vT + 3))
    a('v_add_u32 v%d, s%d, v%d' % (vT + 7, sT0, vT + 3))

def tile_mma(a, d, tau, nT, ldsoff):
    for T in range(nT):
        for b in range(2):
            for half in range(2):
                r = vF + (T * 2 + b) * 4 + 2 * half
                a('ds_read_b64_tr_b16 v[%d:%d], v%d offset:%d' % (r, r + 1, vT + 7, ldsoff + (64 * T + 8 * b + 4 * half) * 64 + tau * 32))
    a('s_waitcnt lgkmcnt(0)')
    for n in range(2 * nT):
        a('v_mfma_f32_16x16x32_bf16 %s, %s, %s, %s' % (vr(d, 4), vr(vF + 4 * n, 4), vr(vXS + 4 * n, 4), '0' if n == 0 else vr(d, 4)))

def wave_max(a, v, t):
    for sh in (1, 2, 4, 8):
        a('v_max_u32_dpp v%d, v%d, v%d row_ror:%d row_mask:0xf bank_mask:0xf' % (v, v, v, sh))
    for sw in ('v_permlane16_swap_b32', 'v_permlane32_swap_b32'):
        a('v_mov_b32 v%d, v%d' % (t, v))
        a('%s v%d, v%d' % (sw, v, t))
        a('v_max_u32 v%d, v%d, v%d' % (v, v, t))

def top2(a):
    k = vXS
    a('v_lshlrev_b32 v%d, 7, v%d' % (vT, vL))
    a('s_mov_b32 s%d, 0x%x' % (sT0, RR_OFF))
    for n in range(8):
        a('buffer_load_dwordx4 v[%d:%d], v%d, s[%d:%d], s%d offen offset:%d sc1' % (k + 4 * n, k + 4 * n + 3, vT, sWS, sWS + 3, sT0, 16 * n))
    a('v_lshlrev_b32 v%d, 5, v%d' % (vT + 1, vL))
    a('v_sub_u32 v%d, 0xffff, v%d' % (vT + 1, vT + 1))
    a('s_waitcnt vmcnt(0)')
    for i in range(32):
        r = k + i
        a('v_ashrrev_i32 v%d, 31, v%d' % (vT + 2, r))
        a('v_or_b32 v%d, 0x80000000, v%d' % (vT + 2, vT + 2))
        a('v_cmp_u_f32 vcc, v%d, v%d' % (r, r))
        a('v_xor_b32 v%d, v%d, v%d' % (r, r, vT + 2))
        a('v_subrev_u32 v%d, %d, v%d' % (vT + 3, i, vT + 1))
        a('v_cndmask_b32 v%d, v%d, 0, vcc' % (r, r))
        a('v_and_or_b32 v%d, v%d, s%d, v%d' % (r, r, sT2, vT + 3))
    for rnd in range(2):
        m = vK
        a('v_max3_u32 v%d, v%d, v%d, v%d' % (m, k, k + 1, k + 2))
        for i in range(3, 31, 2): a('v_max3_u32 v%d, v%d, v%d, v%d' % (m, m, k + i, k + i + 1))
        a('v_max_u32 v%d, v%d, v%d' % (m, m, k + 31))
        wave_max(a, m, m + 1)
        a('v_readfirstlane_b32 s%d, v%d' % (sK0 + rnd, m))
        if rnd == 0:
            for i in range(32):
                a('v_cmp_eq_u32 vcc, v%d, v%d' % (k + i, m))
                a('v_cndmask_b32 v%d, v%d, 0, vcc' % (k + i, k + i))

def rnd4(a, base, t):
    a('v_cvt_pk_bf16_f32 v%d, v%d, v%d' % (t, base, base + 1)); a('v_cvt_pk_bf16_f32 v%d, v%d, v%d' % (t + 1, base + 2, base + 3))
    for i in range(2):
        a('v_lshlrev_b32 v%d, 16, v%d' % (base + 2 * i, t + i)); a('v_and_b32 v%d, 0xffff0000, v%d' % (base + 2 * i + 1, t + i))

def block_top2(a, cfg):
    L = a.newlabel('mb')
    a('s_cmp_ge_u32 s%d, 112' % sB)
    a.branch('s_cbranch_scc1 %s' % L)
    dbg_wait(a, sDBG, DB_RR, 128, vT, sSP, 1)
    a('s_mov_b32 s%d, 0xffff0000' % sT2)
    top2(a)
    for c in range(2):
        a('s_and_b32 s%d, s%d, 0xffff' % (sT0 + c, sK0 + c))
        a('s_sub_u32 s%d, 0xffff, s%d' % (sT0 + c, sT0 + c))
    a('v_and_b32 v%d, 1, v%d' % (vT, vL))
    a('v_cmp_eq_u32 vcc, 1, v%d' % vT)
    a('v_mov_b32 v%d, s%d' % (vT + 1, sT0))
    a('v_mov_b32 v%d, s%d' % (vT + 2, sT1))
    a('v_cndmask_b32 v%d, v%d, v%d, vcc' % (vT + 1, vT + 1, vT + 2))
    a('v_lshrrev_b32 v%d, 4, v%d' % (vT + 2, vL))
    a('v_lshlrev_b32 v%d, 5, v%d' % (vT + 2, vT + 2))
    a('v_lshl_add_u32 v%d, v%d, 11, v%d' % (vT + 4, vT + 1, vT + 2))
    a('s_lshl_b32 s%d, s%d, 9' % (sT2, sW))
    for n in range(8):
        a('buffer_load_dwordx4 a[%d:%d], v%d, s[%d:%d], s%d offen offset:%d' % (200 + 4 * n, 203 + 4 * n, vT + 4, sX, sX + 3, sT2, (n >> 1) * 128 + (n & 1) * 16))
    Ln = a.newlabel('m1np')
    a('s_or_b32 s%d, s%d, s%d' % (sT2, sB, sW))
    a('s_cmp_lg_u32 s%d, 0' % sT2)
    a.branch('s_cbranch_scc1 %s' % Ln)
    a('v_mov_b32 v%d, s%d' % (vK, sT0)); a('v_mov_b32 v%d, s%d' % (vK + 1, sT1))
    for c in range(2):
        r = vK + 2 + c
        a('s_and_b32 s%d, s%d, 0xffff0000' % (sT2, sK0 + c))
        a('s_xor_b32 s%d, s%d, 0x80000000' % (sT3, sT2))
        a('s_not_b32 s%d, s%d' % (sT2, sT2))
        a('s_and_b32 s%d, s%d, 0xffff0000' % (sT2, sT2))
        a('s_bitcmp1_b32 s%d, 31' % (sK0 + c))
        a('s_cselect_b32 s%d, s%d, s%d' % (sT2, sT3, sT2))
        a('v_mov_b32 v%d, s%d' % (r, sT2))
        a('v_mul_f32 v%d, 0xbfb8aa3b, v%d' % (r, r))
        a('v_exp_f32 v%d, v%d' % (r, r))
        a('v_add_f32 v%d, 1.0, v%d' % (r, r))
        a('v_rcp_f32 v%d, v%d' % (r, r))
        a('v_cvt_pk_bf16_f32 v%d, v%d, v%d' % (r, r, r))
        a('v_lshlrev_b32 v%d, 16, v%d' % (r, r))
    a('v_mov_b32 v%d, 0' % (vK + 4))
    a('s_mov_b32 s%d, 0x%x' % (sT2, IDX_OFF))
    a('s_mov_b64 exec, 1')
    a('buffer_store_dwordx4 v[%d:%d], v%d, s[%d:%d], s%d offen sc1' % (vK, vK + 3, vK + 4, sWS, sWS + 3, sT2))
    a('s_mov_b64 exec, -1')
    a.label(Ln)
    a.label(L)

def block_gate(a, cfg):
    L = a.newlabel('mg')
    a('s_cmp_ge_u32 s%d, 112' % sB)
    a.branch('s_cbranch_scc1 %s' % L)
    tr_addrs(a)
    for i in range(32): a('v_accvgpr_read_b32 v%d, a%d' % (vXS + i, 200 + i))
    for tau in range(2): tile_mma(a, vAC + 4 * tau, tau, 4, 0)
    for i in range(8): a('v_accvgpr_write_b32 a%d, v%d' % (192 + i, vAC + i))
    a.label(L)

def arrive(a, off, only112=False):
    Lw = a.newlabel('arr')
    a('s_cmp_lg_u32 s%d, 0' % sW)
    a.branch('s_cbranch_scc1 %s' % Lw)
    if only112:
        a('s_cmp_ge_u32 s%d, 112' % sB)
        a.branch('s_cbranch_scc1 %s' % Lw)
    dbg_arrive(a, sDBG, off, vT)
    a.label(Lw)

def block_up(a, cfg):
    L = a.newlabel('mu')
    a('s_cmp_ge_u32 s%d, 112' % sB)
    a.branch('s_cbranch_scc1 %s' % L)
    tr_addrs(a)
    for i in range(32): a('v_accvgpr_read_b32 v%d, a%d' % (vXS + i, 200 + i))
    for i in range(8): a('v_accvgpr_read_b32 v%d, a%d' % (vAC + i, 192 + i))
    a('s_waitcnt vmcnt(0)')
    for tau in range(2): tile_mma(a, vAC + 8 + 4 * tau, tau, 4, 0)
    for q in range(4): a('ds_write_b128 v%d, v[%d:%d] offset:%d' % (vT + 6, vAC + 4 * q, vAC + 4 * q + 3, q * 1024))
    a('s_waitcnt lgkmcnt(0)')
    a('s_barrier')
    Ld = a.newlabel('m1done')
    a('s_cmp_gt_u32 s%d, 1' % sW)
    a.branch('s_cbranch_scc1 %s' % Ld)
    a('s_lshl_b32 s%d, s%d, 10' % (sT0, sW))
    a('s_add_u32 s%d, s%d, %d' % (sT0, sT0, D0))
    a('v_add_u32 v%d, s%d, v%d' % (vT, sT0, vL16))
    for M in range(2):
        for wv in range(4):
            r = vF + (M * 4 + wv) * 4
            a('ds_read_b128 v[%d:%d], v%d offset:%d' % (r, r + 3, vT, wv * 16384 + M * 2048))
    a('s_waitcnt lgkmcnt(0)')
    for M in range(2):
        b0 = vF + M * 16
        for x in (0, 2):
            R.pk_add(a, b0 + x, b0 + x, b0 + 4 + x); R.pk_add(a, b0 + 8 + x, b0 + 8 + x, b0 + 12 + x)
        for x in (0, 2): R.pk_add(a, b0 + x, b0 + x, b0 + 8 + x)
    G, U = vF, vF + 16
    rnd4(a, G, vR); rnd4(a, U, vR + 2)
    for i in range(4):
        a('v_mul_f32 v%d, 0xbfb8aa3b, v%d' % (vR + 4 + i, G + i))
        a('v_exp_f32 v%d, v%d' % (vR + 4 + i, vR + 4 + i))
        a('v_add_f32 v%d, 1.0, v%d' % (vR + 4 + i, vR + 4 + i))
        a('v_rcp_f32 v%d, v%d' % (vR + 4 + i, vR + 4 + i))
        a('v_mul_f32 v%d, v%d, v%d' % (G + i, G + i, vR + 4 + i))
    rnd4(a, G, vR)
    for i in range(4): a('v_mul_f32 v%d, v%d, v%d' % (G + i, G + i, U + i))
    a('v_cvt_pk_bf16_f32 v%d, v%d, v%d' % (vR, G, G + 1)); a('v_cvt_pk_bf16_f32 v%d, v%d, v%d' % (vR + 1, G + 2, G + 3))
    a('v_and_b32 v%d, 15, v%d' % (vT, vL))
    a('v_lshrrev_b32 v%d, 4, v%d' % (vT + 1, vL))
    a('v_mul_u32_u24 v%d, 7168, v%d' % (vT + 2, vT))
    a('v_lshl_add_u32 v%d, v%d, 3, v%d' % (vT + 2, vT + 1, vT + 2))
    a('s_lshl_b32 s%d, s%d, 6' % (sT0, sB))
    a('s_lshl_b32 s%d, s%d, 5' % (sT1, sW))
    a('s_add_u32 s%d, s%d, s%d' % (sT0, sT0, sT1))
    a('s_add_u32 s%d, s%d, 0x%x' % (sT0, sT0, HB_OFF))
    a('v_cmp_gt_u32 vcc, 2, v%d' % vT)
    a('s_mov_b64 exec, vcc')
    a('buffer_store_dwordx2 v[%d:%d], v%d, s[%d:%d], s%d offen sc1' % (vR, vR + 1, vT + 2, sWS, sWS + 3, sT0))
    a('s_mov_b64 exec, -1')
    a.label(Ld)
    a('s_barrier')
    a.label(L)

def block_c(a, cfg):
    dbg_wait(a, sDBG, DB_M1, 112, vT, sSP, 1)
    tr_addrs(a)
    a('v_and_b32 v%d, 1, v%d' % (vT, vL))
    a('v_mul_u32_u24 v%d, 7168, v%d' % (vT, vT))
    a('v_lshrrev_b32 v%d, 4, v%d' % (vT + 1, vL))
    a('v_lshl_add_u32 v%d, v%d, 5, v%d' % (vT + 4, vT + 1, vT))
    for t in range(2):
        a('s_add_u32 s%d, s%d, %d' % (sT3, sB, 128 * t))
        a('s_min_u32 s%d, s%d, 223' % (sT3, sT3))
        a('s_lshr_b32 s%d, s%d, 5' % (sT2, sT3))
        a('s_lshl_b32 s%d, s%d, 2' % (sT0, sT2))
        a('s_add_u32 s%d, s%d, s%d' % (sT0, sT0, sW))
        a('s_lshl_b32 s%d, s%d, 8' % (sT0, sT0))
        a('s_add_u32 s%d, s%d, 0x%x' % (sT0, sT0, HB_OFF))
        for n in range(4):
            a('buffer_load_dwordx4 v[%d:%d], v%d, s[%d:%d], s%d offen offset:%d sc1' % (vXS + 4 * n, vXS + 4 * n + 3, vT + 4, sWS, sWS + 3, sT0, (n >> 1) * 128 + (n & 1) * 16))
        a('s_waitcnt vmcnt(0)')
        for tau in range(2): tile_mma(a, vAC + 8 * t + 4 * tau, tau, 2, t * 8192)
    for q in range(4): a('ds_write_b128 v%d, v[%d:%d] offset:%d' % (vT + 6, vAC + 4 * q, vAC + 4 * q + 3, q * 1024))
    a('s_waitcnt lgkmcnt(0)')
    a('s_barrier')
    Ld = a.newlabel('m2done')
    a('s_lshr_b32 s%d, s%d, 1' % (sT3, sW))
    a('s_lshl_b32 s%d, s%d, 7' % (sT3, sT3))
    a('s_add_u32 s%d, s%d, s%d' % (sT3, sT3, sB))
    a('s_cmp_ge_u32 s%d, 224' % sT3)
    a.branch('s_cbranch_scc1 %s' % Ld)
    a('s_lshl_b32 s%d, s%d, 10' % (sT0, sW))
    a('s_add_u32 s%d, s%d, %d' % (sT0, sT0, D0))
    a('v_add_u32 v%d, s%d, v%d' % (vT, sT0, vL16))
    for wv in range(4):
        a('ds_read_b128 v[%d:%d], v%d offset:%d' % (vF + 4 * wv, vF + 4 * wv + 3, vT, wv * 16384))
    a('s_waitcnt lgkmcnt(0)')
    for x in (0, 2):
        R.pk_add(a, vF + x, vF + x, vF + 4 + x); R.pk_add(a, vF + 8 + x, vF + 8 + x, vF + 12 + x)
    for x in (0, 2): R.pk_add(a, vF + x, vF + x, vF + 8 + x)
    a('v_and_b32 v%d, 15, v%d' % (vT, vL))
    a('v_lshrrev_b32 v%d, 4, v%d' % (vT + 1, vL))
    a('v_lshlrev_b32 v%d, 12, v%d' % (vT + 2, vT))
    a('v_lshl_add_u32 v%d, v%d, 4, v%d' % (vT + 2, vT + 1, vT + 2))
    a('s_lshr_b32 s%d, s%d, 5' % (sT2, sT3))
    a('s_lshl_b32 s%d, s%d, 13' % (sT0, sT2))
    a('s_and_b32 s%d, s%d, 31' % (sT1, sT3))
    a('s_lshl_b32 s%d, s%d, 7' % (sT1, sT1))
    a('s_add_u32 s%d, s%d, s%d' % (sT0, sT0, sT1))
    a('s_and_b32 s%d, s%d, 1' % (sT1, sW))
    a('s_lshl_b32 s%d, s%d, 6' % (sT1, sT1))
    a('s_add_u32 s%d, s%d, s%d' % (sT0, sT0, sT1))
    a('s_add_u32 s%d, s%d, 0x%x' % (sT0, sT0, YP_OFF))
    a('v_cmp_gt_u32 vcc, 2, v%d' % vT)
    a('s_mov_b64 exec, vcc')
    a('buffer_store_dwordx4 v[%d:%d], v%d, s[%d:%d], s%d offen sc1' % (vF, vF + 3, vT + 2, sWS, sWS + 3, sT0))
    a('s_mov_b64 exec, -1')
    a.label(Ld)
    a('s_barrier')

def trickle_off(a):
    build_srds(a, dict(wd=sTR))
    a('s_mov_b32 s%d, 0' % (sTR + 2))
    a('s_mov_b32 s%d, 0x30000' % sDM)
    a('s_mov_b32 s%d, 0' % sDS)
    a('s_mov_b32 s%d, 0' % sDMI)
    a('s_mov_b32 s%d, 0' % sDSI)

def trickle_common(a, name, stride, ldsadd):
    build_srds(a, {name: sTR})
    waddr(a, stride)
    a('v_mov_b32 v243, v%d' % (vT + 2))
    a('s_lshl_b32 s%d, s%d, 14' % (sDM, sW))
    a('s_add_u32 s%d, s%d, %d' % (sDM, sDM, D0 + ldsadd))
    a('s_mov_b32 s%d, 1024' % sDMI)
    a('s_mov_b32 s%d, %d' % (sDSI, 16 * stride))

def setup_gu(a, name):
    trickle_common(a, name, 7168, 0)
    a('s_mul_i32 s%d, s%d, %d' % (sDS, sW, 256 * 7168))
    a('s_min_u32 s%d, s%d, 111' % (sT1, sB))
    a('s_lshl_b32 s%d, s%d, 6' % (sT1, sT1))
    a('s_add_u32 s%d, s%d, s%d' % (sDS, sDS, sT1))

def setup_down(a, t):
    trickle_common(a, 'wd', 2048, t * 8192)
    a('s_add_u32 s%d, s%d, %d' % (sT3, sB, 128 * t))
    a('s_min_u32 s%d, s%d, 223' % (sT3, sT3))
    a('s_lshr_b32 s%d, s%d, 5' % (sT2, sT3))
    a('s_lshl_b32 s%d, s%d, 2' % (sT0, sT2))
    a('s_add_u32 s%d, s%d, s%d' % (sT0, sT0, sW))
    a('s_lshl_b32 s%d, s%d, 18' % (sDS, sT0))
    a('s_and_b32 s%d, s%d, 31' % (sT1, sT3))
    a('s_lshl_b32 s%d, s%d, 6' % (sT1, sT1))
    a('s_add_u32 s%d, s%d, s%d' % (sDS, sDS, sT1))

def setup_wo(a, q):
    trickle_common(a, 'wo', 2048, 0)
    if WO2[0]:
        a('s_lshr_b32 s%d, s%d, 3' % (sDS, sGI))
        a('s_lshl_b32 s%d, s%d, 21' % (sDS, sDS))
        a('s_and_b32 s%d, s%d, 7' % (sT1, sGI))
        a('s_lshl_b32 s%d, s%d, 2' % (sT1, sT1))
        a('s_add_u32 s%d, s%d, s%d' % (sT1, sT1, sW))
        a('s_lshl_b32 s%d, s%d, 6' % (sT1, sT1))
    else:
        a('s_lshl_b32 s%d, s%d, 21' % (sDS, sW))
        a('s_lshl_b32 s%d, s%d, 6' % (sT1, sGI))
    a('s_add_u32 s%d, s%d, 0x%x' % (sDS, sDS, q << 19))
    a('s_add_u32 s%d, s%d, s%d' % (sDS, sDS, sT1))

def wo_tr(a, q):
    a('s_lshl_b32 s%d, s%d, 14' % (sT0, sW))
    a('s_add_u32 s%d, s%d, %d' % (sT0, sT0, D0))
    a('v_lshrrev_b32 v%d, 4, v%d' % (vT, vL))
    a('v_bfe_u32 v%d, v%d, 2, 2' % (vT + 1, vL))
    a('v_and_b32 v%d, 3, v%d' % (vT + 2, vL))
    a('v_lshl_add_u32 v%d, v%d, 2, v%d' % (vT + 3, vT, vT + 1))
    a('v_lshlrev_b32 v%d, 6, v%d' % (vT + 3, vT + 3))
    a('v_lshl_add_u32 v%d, v%d, 4, v%d' % (vT + 3, vT + 2, vT + 3))
    a('v_add_u32 v%d, s%d, v%d' % (vT + 7, sT0, vT + 3))
    for tau in range(2):
        for p in range(8):
            for half in range(2):
                r = 64 * q + (tau * 8 + p) * 4 + 2 * half
                a('ds_read_b64_tr_b16 a[%d:%d], v%d offset:%d' % (r, r + 1, vT + 7, (32 * p + 16 * half) * 64 + tau * 8))
    a('s_waitcnt lgkmcnt(0)')

def block_wo3(a):
    a('s_waitcnt vmcnt(0)')
    wo_tr(a, 3)
```

```python
from common import *
import rrole as R, g1role as G1, prerole as P, g2role as G2, modrole as M

sGX, sGI, sGW, sGC = 92, 93, 94, 95
sNA, sNW, sAV, sAA, sSP = 88, 89, 54, 55, 44
sDBG = 32
sPREO = 91
sDID = 58
sPRE = 73
LDS_CTL = 147456

def gp_addr(a, dst):
    a('s_lshr_b32 s%d, s%d, 2' % (dst, sGC))
    a('s_lshl_b32 s%d, s%d, 8' % (dst, dst))
    a('s_and_b32 s%d, s%d, 3' % (R.sT3, sGC))
    a('s_lshl_b32 s%d, s%d, 2' % (R.sT3, R.sT3))
    a('s_add_u32 s%d, s%d, s%d' % (dst, dst, R.sT3))
    a('s_add_u32 s%d, s%d, 0x%x' % (dst, dst, GP_OFF))

def g_body(a, cfg):
    Ln = a.newlabel('gi')
    a('s_cmp_lg_u32 s%d, 0' % sGW)
    a.branch('s_cbranch_scc1 %s' % Ln)
    a('s_lshl_b32 s%d, s%d, 2' % (R.sT0, sGC))
    a('s_add_u32 s%d, s%d, 0x%x' % (R.sT2, R.sT0, AP_OFF))
    gp_addr(a, R.sT1)
    a('v_mov_b32 v12, 0')
    a('s_mov_b64 exec, 1')
    a('buffer_store_dword v12, v12, s[%d:%d], s%d offen sc1' % (R.sWS, R.sWS + 3, R.sT1))
    a('buffer_store_dword v12, v12, s[%d:%d], s%d offen sc1' % (R.sWS, R.sWS + 3, R.sT2))
    a('s_and_b32 s%d, s%d, 7' % (R.sT0, sGI))
    a('s_lshl_b32 s%d, s%d, 3' % (R.sT1, sGX))
    a('s_add_u32 s%d, s%d, s%d' % (R.sT0, R.sT0, R.sT1))
    a('s_lshl_b32 s%d, s%d, 7' % (R.sT0, R.sT0))
    a('s_lshr_b32 s%d, s%d, 3' % (R.sT1, sGI))
    a('s_lshl_b32 s%d, s%d, 2' % (R.sT1, R.sT1))
    a('s_add_u32 s%d, s%d, s%d' % (R.sT0, R.sT0, R.sT1))
    a('s_add_u32 s%d, s%d, 0x%x' % (R.sT0, R.sT0, WP_OFF))
    a('buffer_store_dword v12, v12, s[%d:%d], s%d offen sc1' % (R.sWS, R.sWS + 3, R.sT0))
    a('s_mov_b64 exec, -1')
    a('s_waitcnt vmcnt(0)')
    dbg_arrive(a, sDBG, DB_INIT2 if cfg.get('safe') else DB_INIT, 12)
    a.label(Ln)
    a('s_lshl_b32 s%d, s%d, 2' % (sPREO, sGX))
    a('s_add_u32 s%d, s%d, %d' % (sPREO, sPREO, DB_PRE2 if cfg.get('safe') else DB_PRE))
    P.sX, P.sGW, P.sWR = 24, 28, 36
    P.sW, P.sC = sGW, sGC
    build_srds(a, dict(x=P.sX, gw=P.sGW, wr=P.sWR))
    a('s_lshr_b32 s%d, s%d, 2' % (R.sH, sGC))
    a('s_and_b32 s%d, s%d, 3' % (R.sJ, sGC))
    a('s_mov_b32 s%d, s%d' % (R.sW, sGW))
    gp_addr(a, G1.sGPA)
    G1.XFL[0] = ' sc1'
    G1.fast_start(a, cfg)
    if cfg.get('dbgt'):
        a('s_cmp_lg_u32 s94, 0')
        a.branch('s_cbranch_scc1 f_nd4')
        dbgt(a, cfg, 14)
        a.label('f_nd4')
    a('s_mov_b32 s%d, %d' % (G1.sSEG, G1.NPB))
    a('s_mov_b32 s%d, %d' % (G1.sEND, 64 - G1.NPB))
    for w in range(1, 4):
        a('s_cmp_eq_u32 s%d, %d' % (sGW, w))
        a.branch('s_cbranch_scc1 fg1_wave%d' % w)
    for w in range(4):
        a.label('fg1_wave%d' % w)
        G1.g1_wave(a, w, cfg, 'fg1')
        a.branch('s_branch fg1_join')
    G1.g1_side(a, cfg)
    a.label('fg1_join')
    G1.q_tail(a, cfg)
    if cfg.get('dbgt'):
        a('s_cmp_lg_u32 s94, 0')
        a.branch('s_cbranch_scc1 f_nd2')
        dbgt(a, cfg, 11)
        a.label('f_nd2')
    if not cfg.get('st2') and not cfg.get('st4') and not cfg.get('tail'): stamp(a, cfg, 1)
    build_srds(a, dict(wo=G2.sWO, x=G2.sX, out=G2.sOUT))
    G2.sI, G2.sW = sGI, sGW
    G2.out_consts(a)
    (G2.wo2_load_weights if cfg.get('wo2', 0) else G2.out_load_weights)(a, 2)
    dbg_wait_wg(a, sDBG, DB_M2, 128, 8, sSP, sGW)
    Lg = a.newlabel('g65'); Lgd = a.newlabel('g65d')
    a('v_mov_b32 v8, 0')
    a('s_lshl_b32 s%d, s%d, 8' % (R.sT1, sGI))
    a('s_add_u32 s%d, s%d, 0x%x' % (R.sT1, R.sT1, GP_OFF))
    a.label(Lg)
    a('buffer_load_dwordx4 v[12:15], v8, s[%d:%d], s%d offen sc1' % (R.sWS, R.sWS + 3, R.sT1))
    a('s_waitcnt vmcnt(0)')
    a('v_min3_u32 v12, v12, v13, v14')
    a('v_min_u32 v12, v12, v15')
    a('v_cmp_gt_u32 vcc, 65, v12')
    a('s_cbranch_vccz %s' % Lgd)
    a('s_sleep 4')
    a('s_add_u32 s%d, s%d, 1' % (sSP, sSP))
    a('s_cmp_lt_u32 s%d, 0x%x' % (sSP, SPIN_LIMIT))
    a('s_cbranch_scc1 %s' % Lg)
    a.label(Lgd)
    a('s_mov_b32 s%d, 0x%x' % (R.sT0, IDX_OFF))
    a('buffer_load_dwordx2 v[10:11], v8, s[%d:%d], s%d offen sc1' % (R.sWS, R.sWS + 3, R.sT0))
    a('s_waitcnt vmcnt(0)')
    a('v_readfirstlane_b32 s%d, v10' % G2.sIDX0)
    a('v_readfirstlane_b32 s%d, v11' % G2.sIDX1)
    a('s_mov_b32 s%d, 0' % sNA)
    a('s_mov_b32 s%d, 0' % sPRE)
    a('s_mov_b32 s%d, 0' % sNW)
    a('s_barrier')
    if not cfg.get('st2') and not cfg.get('st4') and not cfg.get('tail'): stamp(a, cfg, 3)
    if cfg.get('g2prof'):
        for k in range(8): a('s_mov_b32 s%d, 0' % (66 + k))
        a('s_memtime s[76:77]')
        a('s_waitcnt lgkmcnt(0)')
        a('s_mov_b32 s79, s76')
    if cfg.get('dbgt'):
        a('s_cmp_lg_u32 s94, 0')
        a.branch('s_cbranch_scc1 f_nd3')
        dbgt(a, cfg, 13)
        a.label('f_nd3')
    a.label('g2_loop')
    a('s_mov_b32 s%d, 0' % sDID)
    Lc = a.newlabel('ctl')
    a('s_cmp_lg_u32 s%d, 0' % sGW)
    a.branch('s_cbranch_scc1 %s' % Lc)
    a('v_and_b32 v8, 31, v0')
    a('v_lshlrev_b32 v8, 2, v8')
    a('v_and_b32 v9, 3, v0')
    a('v_lshlrev_b32 v9, 2, v9')
    a('s_lshl_b32 s%d, s%d, 7' % (R.sT0, sGX))
    a('s_add_u32 s%d, s%d, 0x%x' % (R.sT0, R.sT0, AP_OFF))
    a('s_lshl_b32 s%d, s%d, 8' % (R.sT1, sGI))
    a('s_add_u32 s%d, s%d, 0x%x' % (R.sT1, R.sT1, PROG_OFF))
    a('buffer_load_dword v10, v8, s[%d:%d], s%d offen sc1' % (R.sWS, R.sWS + 3, R.sT0))
    Lnl = a.newlabel('noprog')
    a('v_mov_b32 v11, 64')
    a('s_cmp_ge_u32 s%d, 16' % sNA)
    a('s_cbranch_scc1 %s' % Lnl)
    a('buffer_load_dword v11, v9, s[%d:%d], s%d offen sc1' % (R.sWS, R.sWS + 3, R.sT1))
    a.label(Lnl)
    a('s_waitcnt vmcnt(0)')
    for sh in (1, 2, 4, 8):
        a('v_min_u32_dpp v10, v10, v10 row_ror:%d row_mask:0xf bank_mask:0xf' % sh)
        if sh < 4: a('v_min_u32_dpp v11, v11, v11 row_ror:%d row_mask:0xf bank_mask:0xf' % sh)
    a('v_mov_b32 v12, v10')
    a('v_permlane16_swap_b32 v10, v12')
    a('v_min_u32 v10, v10, v12')
    a('v_mov_b32 v12, %d' % LDS_CTL)
    a('ds_write_b64 v12, v[10:11]')
    a('s_waitcnt lgkmcnt(0)')
    a.label(Lc)
    a('s_barrier')
    a('v_mov_b32 v12, %d' % LDS_CTL)
    a('ds_read_b64 v[10:11], v12')
    a('s_waitcnt lgkmcnt(0)')
    a('v_readfirstlane_b32 s%d, v10' % sAA)
    a('v_readfirstlane_b32 s%d, v11' % sAV)
    a('s_barrier')
    g2mark(a, cfg, 0)
    a('s_add_u32 s%d, s%d, 3' % (sAV, sAV))
    a('s_sub_u32 s%d, s%d, s%d' % (sAV, sAV, sGX))
    a('s_lshr_b32 s%d, s%d, 2' % (sAV, sAV))
    Lna = a.newlabel('noattn'); Lnt = a.newlabel('notask'); Lnw = a.newlabel('nowo'); Lpa = a.newlabel('nopub')
    a('s_cmp_le_u32 s%d, s%d' % (sAV, sNA))
    a.branch('s_cbranch_scc1 %s' % Lna)
    if cfg.get('tail'): stamp(a, cfg, 1)
    a('s_add_u32 s%d, s%d, 4' % (R.sT0, sNA))
    a('s_min_u32 s%d, s%d, s%d' % (sAV, sAV, R.sT0))
    a('s_add_u32 s%d, s%d, s%d' % (R.sT0, sNA, sGW))
    a('s_cmp_ge_u32 s%d, s%d' % (R.sT0, sAV))
    a.branch('s_cbranch_scc1 %s' % Lnt)
    a('s_lshl_b32 s%d, s%d, 2' % (R.sT0, R.sT0))
    a('s_add_u32 s%d, s%d, s%d' % (R.sT0, R.sT0, sGX))
    a('s_lshl_b32 s%d, s%d, 5' % (R.sT0, R.sT0))
    a('s_add_u32 s%d, s%d, s%d' % (G2.sTASK, R.sT0, sGI))
    Lpf = a.newlabel('havepf')
    a('s_add_u32 s%d, s%d, 1' % (R.sT0, G2.sTASK))
    a('s_cmp_eq_u32 s%d, s%d' % (R.sT0, sPRE))
    a.branch('s_cbranch_scc1 %s' % Lpf)
    G2.attn_consts(a, cfg)
    G2.attn_task(a, cfg, all_sc1=True, part=1)
    a.label(Lpf)
    G2.attn_task(a, cfg, all_sc1=True, st_flags=' sc1' if cfg.get('safe') else '', part=2)
    a('s_waitcnt vmcnt(0)')
    a.label(Lnt)
    a('s_barrier')
    if cfg.get('tail'): stamp(a, cfg, 2)
    a('s_mov_b32 s%d, s%d' % (sNA, sAV))
    a('s_mov_b32 s%d, 1' % sDID)
    a('s_cmp_lg_u32 s%d, 0' % sGW)
    a.branch('s_cbranch_scc1 %s' % Lpa)
    a('s_lshl_b32 s%d, s%d, 2' % (R.sT0, sGC))
    a('s_add_u32 s%d, s%d, 0x%x' % (R.sT0, R.sT0, AP_OFF))
    a('v_mov_b32 v10, s%d' % sNA)
    a('v_mov_b32 v11, 0')
    a('s_mov_b64 exec, 1')
    a('buffer_store_dword v10, v11, s[%d:%d], s%d offen%s' % (R.sWS, R.sWS + 3, R.sT0, ' sc1' if cfg.get('safe') else ''))
    a('s_mov_b64 exec, -1')
    a.label(Lpa)
    if cfg.get('g2prof'): a('s_add_u32 s70, s70, 1')
    a.label(Lna)
    g2mark(a, cfg, 1)
    a('s_cmp_le_u32 s%d, s%d' % (sAA, sNW))
    a.branch('s_cbranch_scc1 %s' % Lnw)
    a('s_lshl_b32 s%d, s%d, 2' % (R.sT0, sNW))
    a('s_add_u32 s%d, s%d, s%d' % (R.sT0, R.sT0, sGX))
    a('s_lshl_b32 s%d, s%d, 1' % (G2.sTILE, R.sT0))
    if cfg.get('tail'): stamp(a, cfg, 3)
    a('s_sub_u32 s%d, s%d, s%d' % (G2.sNB, sAA, sNW))
    a('s_min_u32 s%d, s%d, %d' % (G2.sNB, G2.sNB, cfg.get('wob', 4)))
    a('s_lshl_b32 s%d, s%d, 1' % (G2.sTN, sNW))
    a('s_add_u32 s%d, s%d, s%d' % (sNW, sNW, G2.sNB))
    a('s_lshl_b32 s%d, s%d, 1' % (G2.sNT, sNW))
    if cfg.get('wo2', 0): G2.wo2_batch(a, cfg, sGX, sNW, sSP)
    else: G2.wo_batch(a, cfg)
    a('s_mov_b32 s%d, 0' % sPRE)
    if cfg.get('wbl2', 0):
        Lwb = a.newlabel('nowb')
        a('s_lshl_b32 s%d, s%d, 2' % (R.sT0, sGI))
        a('s_add_u32 s%d, s%d, s%d' % (R.sT0, R.sT0, sGW))
        a('s_cmp_lg_u32 s%d, 2' % R.sT0)
        a('s_cbranch_scc1 %s' % Lwb)
        a('s_cmp_lt_u32 s%d, %d' % (sNW, cfg['wbl2']))
        a('s_cbranch_scc1 %s' % Lwb)
        a('s_cmp_ge_u32 s%d, 16' % sNW)
        a('s_cbranch_scc1 %s' % Lwb)
        a('buffer_wbl2 sc1')
        a.label(Lwb)
    a('s_mov_b32 s%d, 1' % sDID)
    if cfg.get('g2prof'): a('s_add_u32 s71, s71, 1')
    a.label(Lnw)
    g2mark(a, cfg, 2)
    Lsl = a.newlabel('nosleep')
    a('s_cmp_lg_u32 s%d, 0' % sDID)
    a('s_cbranch_scc1 %s' % Lsl)
    a('s_cmp_lt_u32 s%d, s%d' % (sNW, sNA))
    a('s_cbranch_scc1 %s' % Lsl)
    Lnp = a.newlabel('nopf')
    a('s_cmp_lg_u32 s%d, 0' % sGW)
    a('s_cbranch_scc1 %s' % Lnp)
    a('s_lshl_b32 s%d, s%d, 2' % (R.sT0, sNA))
    a('s_add_u32 s%d, s%d, s%d' % (R.sT0, R.sT0, sGX))
    a('s_lshl_b32 s%d, s%d, 5' % (R.sT0, R.sT0))
    a('s_add_u32 s%d, s%d, s%d' % (G2.sTASK, R.sT0, sGI))
    a('s_add_u32 s%d, s%d, 1' % (R.sT0, G2.sTASK))
    a('s_cmp_eq_u32 s%d, s%d' % (R.sT0, sPRE))
    a('s_cbranch_scc1 %s' % Lnp)
    a('s_mov_b32 s%d, s%d' % (sPRE, R.sT0))
    G2.attn_consts(a, cfg)
    G2.attn_task(a, cfg, all_sc1=True, part=1)
    a.label(Lnp)
    a('s_sleep %d' % cfg.get('g2sleep', 8))
    a.label(Lsl)
    g2mark(a, cfg, 3)
    a('s_add_u32 s%d, s%d, 1' % (sSP, sSP))
    a('s_cmp_ge_u32 s%d, 0x%x' % (sSP, SPIN_LIMIT))
    a.branch('s_cbranch_scc1 g2_done')
    a('s_cmp_lt_u32 s%d, 16' % sNW)
    a.branch('s_cbranch_scc1 g2_loop')
    a.label('g2_done')
    dbgt(a, cfg, 12)
    if cfg.get('g2prof'):
        a('s_lshl_b32 s45, s95, 7')
        a('s_lshl_b32 s46, s94, 5')
        a('s_add_u32 s45, s45, s46')
        a('s_add_u32 s45, s45, 0x%x' % (MISC_OFF + 131072))
        a('v_mov_b32 v9, 0')
        a('s_mov_b64 exec, 1')
        for k in range(8):
            a('v_mov_b32 v8, s%d' % (66 + k))
            a('buffer_store_dword v8, v9, s[%d:%d], s45 offen offset:%d' % (R.sWS, R.sWS + 3, 4 * k))
        a('s_mov_b64 exec, -1')
    if not cfg.get('st4'): stamp(a, cfg, 4)
    a('s_endpgm')

def g2mark(a, cfg, k):
    if not cfg.get('g2prof'): return
    a('s_memtime s[76:77]')
    a('s_waitcnt lgkmcnt(0)')
    a('s_sub_u32 s78, s76, s79')
    a('s_add_u32 s%d, s%d, s78' % (66 + k, 66 + k))
    a('s_mov_b32 s79, s76')

def stamp(a, cfg, k):
    if not cfg.get('stamp'): return
    L = a.newlabel('stp')
    a('s_cmp_lg_u32 s%d, 0' % sGW)
    a.branch('s_cbranch_scc1 %s' % L)
    a('s_memrealtime s[74:75]')
    a('s_waitcnt lgkmcnt(0)')
    a('v_mov_b32 v250, s74')
    a('s_lshl_b32 s74, s%d, 5' % sGC)
    a('s_add_u32 s74, s74, 0x%x' % (MISC_OFF + 65536 + 4 * k))
    a('v_mov_b32 v251, 0')
    a('s_mov_b64 exec, 1')
    a('buffer_store_dword v250, v251, s[%d:%d], s74 offen' % (R.sWS, R.sWS + 3))
    a('s_mov_b64 exec, -1')
    a.label(L)

def roles(a, cfg):
    a('s_cmp_ge_u32 s%d, 4' % R.sRX)
    a.branch('s_cbranch_scc1 f_grole')
    R.r_body(a, cfg)
    a.label('f_grole')
    a('s_sub_u32 s%d, s%d, 4' % (sGX, R.sRX))
    a('s_mov_b32 s%d, s%d' % (sGI, R.sI))
    a('s_mov_b32 s%d, s%d' % (sGW, R.sW))
    a('s_lshl_b32 s%d, s%d, 5' % (sGC, sGX))
    a('s_add_u32 s%d, s%d, s%d' % (sGC, sGC, sGI))
    stamp(a, cfg, 0)
    g_body(a, cfg)

def common_init(a):
    build_srds(a, dict(ws=R.sWS, wq=R.sWQ, wk=R.sWK, wv=R.sWV, wo=R.sWO, mem0=R.sM0, dbg=R.sDBG))
    a('s_mov_b32 s%d, 0' % R.sSPIN)
    R.lane_consts(a)
    a('v_lshrrev_b32 v%d, 6, v0' % R.vT)
    a('v_readfirstlane_b32 s%d, v%d' % (R.sW, R.vT))

def gen_fused(name, cfg):
    import re
    cfg = dict(cfg); cfg['fused'] = 1; cfg['g1_sc1'] = 1
    sGT = 2
    a = Asm()
    a.raw(kernel_header(name))
    a('s_cmp_ge_u32 s2, 256')
    a('s_cbranch_scc0 f_start')
    a('s_endpgm')
    a.label('f_start')
    if cfg.get('cpf', 1):
        a('s_getpc_b64 s[4:5]')
        a('s_and_b32 s4, s4, 0xffffff00')
        a('s_lshr_b32 s6, s2, 3')
        a('s_lshl_b32 s6, s6, 12')
        a('v_lshlrev_b32 v1, 4, v0')
        a('v_add_u32 v1, s6, v1')
        a('v_mov_b32 v3, s5')
        a('v_add_co_u32 v2, vcc, s4, v1')
        a('v_addc_co_u32 v3, vcc, 0, v3, vcc')
        a('global_load_dwordx4 v[244:247], v[2:3], off')
    common_init(a)
    if cfg.get('dbgt'):
        a('s_lshl_b32 s97, s%d, 8' % R.sW)
        a('s_add_u32 s97, s97, s2')
        a('s_cmp_ge_u32 s97, 4')
        a.branch('s_cbranch_scc1 f_nodbg')
        dbgt(a, cfg, 8, True)
        a.label('f_nodbg')
    a('s_getreg_b32 s%d, hwreg(HW_REG_XCC_ID)' % R.sRX)
    a('s_and_b32 s%d, s%d, 7' % (R.sRX, R.sRX))
    vT = R.vT
    Lt = a.newlabel('tk')
    a('s_cmp_lg_u32 s%d, 0' % R.sW)
    a.branch('s_cbranch_scc1 %s' % Lt)
    a('v_mov_b32 v%d, 1' % vT)
    a('s_lshl_b32 s%d, s%d, %d' % (R.sT0, R.sRX, 2))
    a('v_mov_b32 v%d, s%d' % (vT + 2, R.sT0))
    a('s_mov_b64 exec, 1')
    a('buffer_atomic_add v%d, v%d, s[%d:%d], 0 offen sc0 sc1' % (vT, vT + 2, R.sDBG, R.sDBG + 3))
    a('v_mov_b32 v%d, %d' % (vT + 2, R.LDS_TK))
    a('s_waitcnt vmcnt(0)')
    a('ds_write_b32 v%d, v%d' % (vT + 2, vT))
    a('s_waitcnt lgkmcnt(0)')
    a('s_mov_b64 exec, -1')
    a.label(Lt)
    a('s_barrier')
    a('v_mov_b32 v%d, %d' % (vT + 2, R.LDS_TK))
    a('ds_read_b32 v%d, v%d' % (vT, vT + 2))
    a('s_waitcnt lgkmcnt(0)')
    a('v_readfirstlane_b32 s%d, v%d' % (R.sI, vT))
    a('s_cmp_lt_u32 s%d, 32' % R.sI)
    a.branch('s_cbranch_scc1 f_census_ok')
    Lo = a.newlabel('ovf')
    a('s_cmp_lg_u32 s%d, 0' % R.sW)
    a.branch('s_cbranch_scc1 %s' % Lo)
    dbg_arrive(a, R.sDBG, DB_BAD, vT)
    a('s_waitcnt vmcnt(0)')
    dbg_arrive(a, R.sDBG, DB_INIT, vT)
    a.label(Lo)
    init_wait(a, R.sDBG, cfg, vT, R.sSPIN, R.sT0)
    a.branch('s_branch SAFE_ENTRY')
    a.label('f_census_ok')
    head = a.text()
    gl0 = Asm.GL
    a = Asm()
    roles(a, cfg)
    fast = a.text()
    gl1 = Asm.GL
    cfg2 = dict(cfg); cfg2['safe'] = 1; cfg2['stamp'] = 0; cfg2['prof'] = 0; cfg2['tl'] = 0; cfg2['st3'] = 0; cfg2['st2'] = 0; cfg2['gprof'] = 0; cfg2['g2prof'] = 0; cfg2['st4'] = 0; cfg2['sprof'] = 0; cfg2['tail'] = 0
    SH = 128 * MB
    saved = (R.MX_OFF, R.QKX_OFF, R.OX_OFF, G1.XF_OFF, P.XF_OFF)
    R.MX_OFF += SH; R.QKX_OFF += SH; R.OX_OFF += SH; G1.XF_OFF += SH; P.XF_OFF += SH; R.SAFE[0] = True
    b = Asm()
    b('s_mov_b64 exec, -1')
    b('s_waitcnt vmcnt(0) lgkmcnt(0)')
    b('s_barrier')
    common_init(b)
    b('s_lshr_b32 s%d, s%d, 5' % (R.sRX, sGT))
    b('s_and_b32 s%d, s%d, 7' % (R.sRX, R.sRX))
    b('s_and_b32 s%d, s%d, 31' % (R.sI, sGT))
    b.fence()
    head2 = b.text()
    dbgbuild = any(cfg.get(k) for k in ('stamp', 'prof', 'tl', 'st3', 'st2', 'gprof', 'g2prof', 'dbgt'))
    if not dbgbuild: Asm.GL = gl0
    b = Asm()
    roles(b, cfg2)
    Asm.GL = max(Asm.GL, gl1)
    R.MX_OFF, R.QKX_OFF, R.OX_OFF, G1.XF_OFF, P.XF_OFF = saved; R.SAFE[0] = False
    safe = b.text()
    import difflib
    labels = set(re.findall(r'^([A-Za-z_][\w]*):', safe + fast, re.M))
    rx = re.compile(r'\b(' + '|'.join(sorted(labels, key=len, reverse=True)) + r')\b')
    fl = [rx.sub(lambda m: m.group(1) + '_\\sf', l.strip()) for l in fast.split('\n') if l.strip()]
    sl = [rx.sub(lambda m: m.group(1) + '_\\sf', l.strip()) for l in safe.split('\n') if l.strip()]
    out = ['.macro ROLES sf']
    if len(fl) == len(sl) or True:
        sm = difflib.SequenceMatcher(None, fl, sl, autojunk=False) if len(fl) != len(sl) else None
        if sm is None:
            ops = []
            i = 0
            while i < len(fl):
                j = i
                same = fl[i] == sl[i]
                while j < len(fl) and (fl[j] == sl[j]) == same: j += 1
                ops.append(('equal' if same else 'replace', i, j, i, j)); i = j
        else:
            ops = sm.get_opcodes()
        for tag, i1, i2, j1, j2 in ops:
            if tag == 'equal': out += fl[i1:i2]
            else:
                out.append('.if \\sf == 0'); out += fl[i1:i2]; out.append('.else'); out += sl[j1:j2]; out.append('.endif')
    out.append('.endm')
    return '\n'.join(out) + '\n' + head + 'ROLES 0\nSAFE_ENTRY:\n' + head2 + 'ROLES 1\n'
```

```python
from common import *
import rrole as R

sWS = 8
sT0, sT1, sT2, sT3, sC, sTASK = 45, 46, 47, 48, 65, 41
sMK = 80
NEG = 0xff7fffff

class AV:
    L16, L8, Dup, L16B = 2, 3, 4, 5
    T = 8
    MLO, MHI, FLO, NEGV = 6, 7, 14, 15
    Q = 16
    K = 48
    KM = 80
    V = 96
    VM = 128
    S = 136
    P = 156
    O = 16
    RC = 176

def attn_consts(a, cfg):
    A = AV
    a('v_and_b32 v1, 63, v0')
    a('v_lshlrev_b32 v%d, 4, v1' % A.L16)
    a('v_lshlrev_b32 v%d, 3, v1' % A.L8)
    a('v_add_u32 v%d, 0x1000, v%d' % (A.L16B, A.L16))
    a('v_lshrrev_b32 v%d, 4, v1' % A.T)
    a('v_and_b32 v%d, 7, v1' % (A.T + 1))
    a('v_lshl_add_u32 v%d, v%d, 3, v%d' % (A.Dup, A.T, A.T + 1))
    a('v_lshlrev_b32 v%d, 4, v%d' % (A.Dup, A.Dup))
    a('v_cmp_gt_u32 vcc, 32, v1')
    a('v_cndmask_b32 v%d, 0, -1, vcc' % A.MLO)
    a('v_cndmask_b32 v%d, -1, 0, vcc' % A.MHI)
    a('v_cndmask_b32 v%d, 0, 1.0, vcc' % A.FLO)
    a('v_mov_b32 v%d, 0x%x' % (A.NEGV, NEG))
    a('v_and_b32 v%d, 15, v1' % (A.T + 1))
    a('v_lshlrev_b32 v%d, 2, v%d' % (A.T, A.T))
    for i in range(4):
        a('v_add_u32 v%d, %d, v%d' % (A.T + 2, i, A.T))
        a('v_cmp_le_u32 s[%d:%d], v%d, v%d' % (sMK + 2 * i, sMK + 2 * i + 1, A.T + 2, A.T + 1))
    a('s_mov_b32 s%d, 0x%x' % (sC, cfg['cbits']))

def attn_task(a, cfg, ld_flags='', st_flags='', all_sc1=False, part=0):
    A = AV
    def ld(r, n, va, so, off, fl=''):
        if all_sc1: fl = ' sc1'
        a('buffer_load_dword%s %s, v%d, s[%d:%d], s%d offen offset:%d%s' % ('x%d' % n, vr(r, n), va, sWS, sWS + 3, so, off, fl))
    if part in (0, 1):
        a('s_lshl_b32 s%d, s%d, 13' % (sT0, sTASK))
        a('s_add_u32 s%d, s%d, 0x%x' % (sT1, sT0, KF_OFF))
        a('s_add_u32 s%d, s%d, 0x%x' % (sT2, sT0, VF_OFF))
        if QF_OFF: a('s_add_u32 s%d, s%d, 0x%x' % (sT0, sT0, QF_OFF))
        for n in range(8): ld(A.Q + 4 * n, 4, A.L16 if n < 4 else A.L16B, sT0, (n & 3) * 1024)
        for n in range(8): ld(A.K + 4 * n, 4, A.L16 if n < 4 else A.L16B, sT1, (n & 3) * 1024)
        for n in range(8): ld(A.V + 4 * n, 4, A.L16 if n < 4 else A.L16B, sT2, (n & 3) * 1024)
        if part == 1: return
    a('s_lshl_b32 s%d, s%d, 11' % (sT0, sTASK))
    a('s_add_u32 s%d, s%d, 0x%x' % (sT1, sT0, KM_OFF))
    a('s_add_u32 s%d, s%d, 0x%x' % (sT0, sT0, VM_OFF))
    for c in range(4): ld(A.KM + 4 * c, 4, A.Dup, sT1, c * 512, ld_flags)
    for j in range(4): ld(A.VM + 2 * j, 2, A.L8, sT0, j * 512, ld_flags)
    tiles = {(0, 0): A.S, (0, 2): A.S + 4, (1, 0): A.S + 8, (1, 1): A.S + 12, (1, 2): A.S + 16}
    a('s_waitcnt vmcnt(4)')
    for c in range(4):
        for (u, t), d in tiles.items():
            Aop = (A.K + 16 * t + 4 * c) if t < 2 else (A.KM + 4 * c)
            a('v_mfma_f32_16x16x32_bf16 %s, %s, %s, %s' % (vr(d, 4), vr(Aop, 4), vr(A.Q + 16 * u + 4 * c, 4), '0' if c == 0 else vr(d, 4)))
    a('s_lshr_b32 s%d, s%d, 5' % (sT0, sTASK))
    a('s_lshl_b32 s%d, s%d, 18' % (sT0, sT0))
    a('s_and_b32 s%d, s%d, 31' % (sT1, sTASK))
    a('s_lshl_b32 s%d, s%d, 12' % (sT1, sT1))
    a('s_add_u32 s%d, s%d, s%d' % (sT0, sT0, sT1))
    a('s_add_u32 s%d, s%d, 0x%x' % (sT0, sT0, OF_OFF))
    a('s_add_u32 s%d, s%d, 0x20000' % (sT1, sT0))
    for d in (tiles[(0, 0)], tiles[(1, 1)]):
        for i in range(4):
            a('v_cndmask_b32 v%d, v%d, v%d, s[%d:%d]' % (d + i, A.NEGV, d + i, sMK + 2 * i, sMK + 2 * i + 1))
    for u in range(2):
        regs = [tiles[k] + i for k in sorted(tiles) if k[0] == u for i in range(4)]
        m, t2 = A.T + 2 * u, A.T + 2 * u + 1
        a('v_max3_f32 v%d, v%d, v%d, v%d' % (m, regs[0], regs[1], regs[2]))
        k = 3
        while k + 1 < len(regs):
            a('v_max3_f32 v%d, v%d, v%d, v%d' % (m, m, regs[k], regs[k + 1])); k += 2
        if k < len(regs): a('v_max_f32 v%d, v%d, v%d' % (m, m, regs[k]))
    for sw in ('v_permlane16_swap_b32', 'v_permlane32_swap_b32'):
        for u in range(2): a('v_mov_b32 v%d, v%d' % (A.T + 2 * u + 1, A.T + 2 * u))
        for u in range(2): a('%s v%d, v%d' % (sw, A.T + 2 * u, A.T + 2 * u + 1))
        for u in range(2): a('v_max_f32 v%d, v%d, v%d' % (A.T + 2 * u, A.T + 2 * u, A.T + 2 * u + 1))
    for u in range(2): a('v_mul_f32 v%d, s%d, v%d' % (A.T + 2 * u, sC, A.T + 2 * u))
    for (u, t), d in tiles.items():
        for i in range(4): a('v_fma_f32 v%d, v%d, s%d, -v%d' % (d + i, d + i, sC, A.T + 2 * u))
    for (u, t), d in tiles.items():
        for i in range(4): a('v_exp_f32 v%d, v%d' % (d + i, d + i))
    for u in range(2):
        p = A.P + 10 * u
        d = tiles[(u, 0)]
        a('v_cvt_pk_bf16_f32 v%d, v%d, v%d' % (p, d, d + 1)); a('v_cvt_pk_bf16_f32 v%d, v%d, v%d' % (p + 1, d + 2, d + 3))
        if u == 0:
            a('v_mov_b32 v%d, 0' % (p + 2)); a('v_mov_b32 v%d, 0' % (p + 3))
        else:
            d = tiles[(1, 1)]
            a('v_cvt_pk_bf16_f32 v%d, v%d, v%d' % (p + 2, d, d + 1)); a('v_cvt_pk_bf16_f32 v%d, v%d, v%d' % (p + 3, d + 2, d + 3))
        d = tiles[(u, 2)]
        a('v_cvt_pk_bf16_f32 v%d, v%d, v%d' % (p + 4, d, d + 1)); a('v_cvt_pk_bf16_f32 v%d, v%d, v%d' % (p + 5, d + 2, d + 3))
        a('v_and_b32 v%d, v%d, v%d' % (p + 6, p + 4, A.MLO)); a('v_and_b32 v%d, v%d, v%d' % (p + 7, p + 5, A.MLO))
        a('v_and_b32 v%d, v%d, v%d' % (p + 8, p + 4, A.MHI)); a('v_and_b32 v%d, v%d, v%d' % (p + 9, p + 5, A.MHI))
    a('s_waitcnt vmcnt(0)')
    for u in range(2):
        sA, sB = A.T + 2 * u, A.T + 2 * u + 1
        d2 = tiles[(u, 2)]; d0 = tiles[(u, 0)]
        R.pk_add(a, d2, d2, d2 + 2); R.pk_add(a, d0, d0, d0 + 2)
        if u == 1:
            d1 = tiles[(1, 1)]
            R.pk_add(a, d1, d1, d1 + 2); R.pk_add(a, d0, d0, d1)
        a('v_add_f32 v%d, v%d, v%d' % (sB, d2, d2 + 1))
        a('v_add_f32 v%d, v%d, v%d' % (sA, d0, d0 + 1))
        a('v_fma_f32 v%d, v%d, v%d, v%d' % (sA, sB, A.FLO, sA))
    for u in range(2):
        p = A.P + 10 * u
        for et in range(8):
            o = A.O + 32 * u + 4 * et
            a('v_mfma_f32_16x16x32_bf16 %s, %s, %s, 0' % (vr(o, 4), vr(A.V + 4 * et, 4), vr(p, 4)))
            if u == 0 and et in (0, 3):
                sw = 'v_permlane16_swap_b32' if et == 0 else 'v_permlane32_swap_b32'
                for x in range(2): a('v_mov_b32 v%d, v%d' % (A.T + 2 * x + 1, A.T + 2 * x))
                for x in range(2): a('%s v%d, v%d' % (sw, A.T + 2 * x, A.T + 2 * x + 1))
                for x in range(2): a('v_add_f32 v%d, v%d, v%d' % (A.T + 2 * x, A.T + 2 * x, A.T + 2 * x + 1))
            if u == 0 and et == 6:
                for x in range(2):
                    a('v_rcp_f32 v%d, v%d' % (A.RC + 2 * x, A.T + 2 * x))
                for x in range(2):
                    a('v_mov_b32 v%d, v%d' % (A.RC + 2 * x + 1, A.RC + 2 * x))
        for et in range(8):
            o = A.O + 32 * u + 4 * et
            a('v_mfma_f32_16x16x16_bf16 %s, %s, %s, %s' % (vr(o, 4), vr(A.VM + 2 * (et >> 1), 2), vr(p + 6 + 2 * (et & 1), 2), vr(o, 4)))
    for u in range(2):
        for c in range(4):
            o = A.O + 32 * u + 8 * c
            for i in range(4):
                a('v_pk_mul_f32 v[%d:%d], v[%d:%d], v[%d:%d]' % (o + 2 * i, o + 2 * i + 1, o + 2 * i, o + 2 * i + 1, A.RC + 2 * u, A.RC + 2 * u + 1))
            for i in range(4):
                a('v_cvt_pk_bf16_f32 v%d, v%d, v%d' % (o + i, o + 2 * i, o + 2 * i + 1))
            a('buffer_store_dwordx4 %s, v%d, s[%d:%d], s%d offen offset:%d%s' % (vr(o, 4), A.L16, sWS, sWS + 3, sT0 + u, c * 1024, st_flags))

def gen_attn_kernel(name, cfg):
    a = Asm()
    a.raw(kernel_header(name))
    a('s_cmp_ge_u32 s2, 512')
    a('s_cbranch_scc1 at_exit')
    build_srds(a, dict(ws=sWS))
    attn_consts(a, cfg)
    a('v_lshrrev_b32 v%d, 6, v0' % AV.T)
    a('v_readfirstlane_b32 s%d, v%d' % (sT0, AV.T))
    a('s_lshl_b32 s%d, s2, 2' % sTASK)
    a('s_add_u32 s%d, s%d, s%d' % (sTASK, sTASK, sT0))
    attn_task(a, cfg)
    a.label('at_exit')
    a('s_endpgm')
    return a.text()

sWO, sX, sOUT = 12, 16, 20
sI, sW, sTILE, sTEND, sTSTEP, sOO, sN, sIDX0, sIDX1 = 41, 42, 43, 44, 49, 50, 51, 52, 53
class OV:
    AC1 = 144
    L, L16, L16B, XA, GA = 1, 2, 3, 4, 5
    T = 8
    TR = 12
    B = 16
    AC = 96
    XR = 152
    G = 160
    RD = 164
    E = 188
LDSO = 0

def wof(q, tau, p): return 64 * q + (tau * 8 + p) * 4

def out_load_weights(a, nq=4):
    O = OV
    a('v_lshrrev_b32 v%d, 2, v%d' % (O.T, O.L))
    a('v_and_b32 v%d, 3, v%d' % (O.T + 1, O.L))
    a('v_lshlrev_b32 v%d, 4, v%d' % (O.T + 1, O.T + 1))
    a('v_lshl_add_u32 v%d, v%d, 11, v%d' % (O.T + 3, O.T, O.T + 1))
    a('s_lshl_b32 s%d, s%d, 21' % (sT0, sW))
    a('s_lshl_b32 s%d, s%d, 6' % (sT1, sI))
    a('s_add_u32 s%d, s%d, s%d' % (sT0, sT0, sT1))
    for n in range(16 * nq):
        a('buffer_load_dwordx4 a[%d:%d], v%d, s[%d:%d], s%d offen' % (4 * n, 4 * n + 3, O.T + 3, sWO, sWO + 3, sT0))
        if n < 16 * nq - 1: a('s_add_u32 s%d, s%d, 0x8000' % (sT0, sT0))
    if nq < 4:
        import modloop
        modloop.wo_tr(a, 2)
    a('s_lshl_b32 s%d, s%d, 14' % (sT0, sW))
    a('v_add_u32 v%d, s%d, v%d' % (O.TR, sT0, O.L16))
    a('v_lshrrev_b32 v%d, 4, v%d' % (O.T, O.L))
    a('v_bfe_u32 v%d, v%d, 2, 2' % (O.T + 1, O.L))
    a('v_and_b32 v%d, 3, v%d' % (O.T + 2, O.L))
    a('v_lshl_add_u32 v%d, v%d, 2, v%d' % (O.T + 3, O.T, O.T + 1))
    a('v_lshlrev_b32 v%d, 6, v%d' % (O.T + 3, O.T + 3))
    a('v_lshl_add_u32 v%d, v%d, 4, v%d' % (O.T + 3, O.T + 2, O.T + 3))
    a('v_add_u32 v%d, s%d, v%d' % (O.TR + 1, sT0, O.T + 3))
    for q in range(nq):
        a('s_waitcnt vmcnt(%d)' % (16 * (nq - 1) - 16 * q))
        for n in range(16):
            a('ds_write_b128 v%d, a[%d:%d] offset:%d' % (O.TR, 64 * q + 4 * n, 64 * q + 4 * n + 3, n * 1024))
        a('s_waitcnt lgkmcnt(0)')
        for tau in range(2):
            for p in range(8):
                for half in range(2):
                    r = wof(q, tau, p) + 2 * half
                    a('ds_read_b64_tr_b16 a[%d:%d], v%d offset:%d' % (r, r + 1, O.TR + 1, (32 * p + 16 * half) * 64 + tau * 8))
        a('s_waitcnt lgkmcnt(0)')

def oloads(q, so, fl=''):
    O = OV
    return ['buffer_load_dwordx4 v[%d:%d], v%d, s[%d:%d], s%d offen offset:%d%s' % (O.B + 32 * q + 4 * p, O.B + 32 * q + 4 * p + 3, O.L16 if p < 4 else O.L16B, sWS, sWS + 3, so, (p & 3) * 1024, fl) for p in range(8)]

def epilogue(a, par, tile_s=None, fused=False, lds=True):
    O = OV
    for wv in range(4 if lds else 0):
        for tau in range(2):
            r = O.E + wv * 8 + tau * 4
            a('ds_read_b128 v[%d:%d], v%d offset:%d' % (r, r + 3, O.L16, LDSO + par * 8192 + wv * 2048 + tau * 1024))
    if lds: a('s_waitcnt lgkmcnt(0)')
    for x in range(0, 8, 2):
        R.pk_add(a, O.E + x, O.E + x, O.E + 8 + x); R.pk_add(a, O.E + 16 + x, O.E + 16 + x, O.E + 24 + x)
    for x in range(0, 8, 2):
        R.pk_add(a, O.E + x, O.E + x, O.E + 16 + x)
    for i in range(4): a('v_cvt_pk_bf16_f32 v%d, v%d, v%d' % (O.E + 8 + i, O.E + 2 * i, O.E + 2 * i + 1))
    for i in range(4):
        a('v_lshlrev_b32 v%d, 16, v%d' % (O.E + 2 * i, O.E + 8 + i))
        a('v_and_b32 v%d, 0xffff0000, v%d' % (O.E + 2 * i + 1, O.E + 8 + i))
    xr = O.XR + 4 * par; g = O.G + par
    if lds: a('s_waitcnt vmcnt(34)')
    for i in range(4):
        a('v_lshlrev_b32 v%d, 16, v%d' % (O.E + 16 + 2 * i, xr + i))
        a('v_and_b32 v%d, 0xffff0000, v%d' % (O.E + 17 + 2 * i, xr + i))
    if tile_s is None: a('s_sub_u32 s%d, s%d, s%d' % (sT0, sTILE, sTSTEP))
    else: a('s_mov_b32 s%d, s%d' % (sT0, tile_s))
    Lskip = a.newlabel('nomod')
    a('s_lshr_b32 s%d, s%d, 4' % (sT1, sIDX0))
    a('s_lshr_b32 s%d, s%d, 4' % (sT2, sIDX1))
    a('s_cmp_eq_u32 s%d, s%d' % (sT1, sT0))
    a('s_cselect_b32 s%d, 1, 0' % sT3)
    a('s_cmp_eq_u32 s%d, s%d' % (sT2, sT0))
    a('s_cselect_b32 s%d, 1, s%d' % (sT3, sT3))
    a('s_cmp_eq_u32 s%d, 0' % sT3)
    a.branch('s_cbranch_scc1 %s' % Lskip)
    a('v_and_b32 v%d, 15, v%d' % (O.E + 24, O.L))
    a('s_lshl_b32 s%d, s%d, 4' % (sT1, sT0))
    a('v_add_u32 v%d, s%d, v%d' % (O.E + 24, sT1, O.E + 24))
    a('v_lshrrev_b32 v%d, 4, v%d' % (O.E + 25, O.L))
    a('v_lshlrev_b32 v%d, 5, v%d' % (O.E + 25, O.E + 25))
    for c in range(2):
        Lc = a.newlabel('modc')
        a('v_cmp_eq_u32 vcc, s%d, v%d' % (sIDX0 + c, O.E + 24))
        a('s_and_saveexec_b64 s[90:91], vcc')
        a.branch('s_cbranch_execz %s' % Lc)
        a('s_lshl_b32 s%d, s%d, 7' % (sT1, sI))
        a('s_add_u32 s%d, s%d, 0x%x' % (sT1, sT1, YP_OFF + c * 4096))
        for i in range(8): a('v_mov_b32 v%d, 0' % (O.RD + 16 + i))
        for sp in range(7):
            a('buffer_load_dwordx4 v[%d:%d], v%d, s[%d:%d], s%d offen sc1' % (O.RD, O.RD + 3, O.E + 25, sWS, sWS + 3, sT1))
            a('buffer_load_dwordx4 v[%d:%d], v%d, s[%d:%d], s%d offen offset:16 sc1' % (O.RD + 4, O.RD + 7, O.E + 25, sWS, sWS + 3, sT1))
            a('s_add_u32 s%d, s%d, 8192' % (sT1, sT1))
            a('s_waitcnt vmcnt(0)')
            for x in range(0, 8, 2): R.pk_add(a, O.RD + 16 + x, O.RD + 16 + x, O.RD + x)
        a('s_mov_b32 s%d, 0x%x' % (sT1, IDX_OFF + 8 + 4 * c))
        a('v_mov_b32 v%d, 0' % (O.RD + 8))
        a('buffer_load_dword v%d, v%d, s[%d:%d], s%d offen sc1' % (O.RD + 9, O.RD + 8, sWS, sWS + 3, sT1))
        def rnd(base):
            for i in range(4):
                a('v_cvt_pk_bf16_f32 v%d, v%d, v%d' % (O.RD + i, base + 2 * i, base + 2 * i + 1))
            for i in range(4):
                a('v_lshlrev_b32 v%d, 16, v%d' % (base + 2 * i, O.RD + i))
                a('v_and_b32 v%d, 0xffff0000, v%d' % (base + 2 * i + 1, O.RD + i))
        rnd(O.RD + 16)
        a('s_waitcnt vmcnt(0)')
        for i in range(8): a('v_mul_f32 v%d, v%d, v%d' % (O.RD + 16 + i, O.RD + 16 + i, O.RD + 9))
        rnd(O.RD + 16)
        for i in range(8): a('v_add_f32 v%d, v%d, v%d' % (O.E + 16 + i, O.E + 16 + i, O.RD + 16 + i))
        rnd(O.E + 16)
        a.label(Lc)
        a('s_mov_b64 exec, s[90:91]')
    a.label(Lskip)
    a('v_sub_f32 v%d, 1.0, v%d' % (O.E + 24, g))
    a('v_cvt_pk_bf16_f32 v%d, v%d, v%d' % (O.E + 24, O.E + 24, O.E + 24))
    a('v_and_b32 v%d, 0xffff0000, v%d' % (O.E + 24, O.E + 24))
    for i in range(8): a('v_mul_f32 v%d, v%d, v%d' % (O.E + 16 + i, O.E + 16 + i, O.E + 24))
    for i in range(8): a('v_fma_f32 v%d, v%d, v%d, v%d' % (O.E + i, O.E + i, g, O.E + 16 + i))
    for i in range(4): a('v_cvt_pk_bf16_f32 v%d, v%d, v%d' % (O.E + 8 + i, O.E + 2 * i, O.E + 2 * i + 1))
    a('s_lshl_b32 s%d, s%d, 15' % (sT0, sT0))
    a('s_lshl_b32 s%d, s%d, 6' % (sT1, sI))
    a('s_add_u32 s%d, s%d, s%d' % (sT0, sT0, sT1))
    a('buffer_store_dwordx4 v[%d:%d], v%d, s[%d:%d], s%d offen' % (O.E + 8, O.E + 11, O.XA, sOUT, sOUT + 3, sT0))

def tile_body(a, par, cfg):
    O = OV
    a('s_lshl_b32 s%d, s%d, 15' % (sT0, sTILE))
    a('s_lshl_b32 s%d, s%d, 6' % (sT1, sI))
    a('s_add_u32 s%d, s%d, s%d' % (sT0, sT0, sT1))
    a('buffer_load_dwordx4 v[%d:%d], v%d, s[%d:%d], s%d offen' % (O.XR + 4 * par, O.XR + 4 * par + 3, O.XA, sX, sX + 3, sT0))
    a('s_lshl_b32 s%d, s%d, 6' % (sT0, sTILE))
    a('s_add_u32 s%d, s%d, 0x%x' % (sT0, sT0, GL_OFF))
    a('buffer_load_dword v%d, v%d, s[%d:%d], s%d offen' % (O.G + par, O.GA, sWS, sWS + 3, sT0))
    Ls = a.newlabel('noepi')
    a('s_cmp_eq_u32 s%d, 0' % sN)
    a('s_cbranch_scc1 %s' % Ls)
    a('s_and_b32 s%d, s%d, 3' % (sT0, sN))
    a('s_cmp_lg_u32 s%d, s%d' % (sT0, sW))
    a.branch('s_cbranch_scc1 %s' % Ls)
    epilogue(a, 1 - par)
    a.label(Ls)
    a('s_lshl_b32 s%d, s%d, 17' % (sT3, sTSTEP))
    a('s_add_u32 s%d, s%d, s%d' % (sOO, sOO, sT3))
    for q in range(4):
        a('s_waitcnt vmcnt(26)')
        for p in range(8):
            for tau in range(2):
                c = '0' if (q == 0 and p == 0) else vr(O.AC1 + 4 * tau, 4)
                a('v_mfma_f32_16x16x32_bf16 %s, %s, %s, %s' % (vr(O.AC1 + 4 * tau, 4), ar(wof(q, tau, p), 4), vr(O.B + 32 * q + 4 * p, 4), c))
        a('s_add_u32 s%d, s%d, %d' % (sT0, sOO, q * 8192))
        for x in oloads(q, sT0): a(x)
    a('s_lshl_b32 s%d, s%d, 11' % (sT0, sW))
    a('v_add_u32 v%d, s%d, v%d' % (O.T, sT0, O.L16))
    for tau in range(2):
        a('ds_write_b128 v%d, v[%d:%d] offset:%d' % (O.T, O.AC1 + 4 * tau, O.AC1 + 4 * tau + 3, LDSO + par * 8192 + tau * 1024))
    a('s_waitcnt lgkmcnt(0)')
    a('s_barrier')
    a('s_add_u32 s%d, s%d, s%d' % (sTILE, sTILE, sTSTEP))
    a('s_add_u32 s%d, s%d, 1' % (sN, sN))

def gen_out_kernel(name, cfg):
    O = OV
    a = Asm()
    a.raw(kernel_header(name))
    a('s_cmp_ge_u32 s2, 256')
    a('s_cbranch_scc1 out_exit')
    build_srds(a, dict(ws=sWS, wo=sWO, x=sX, out=sOUT))
    a('v_and_b32 v%d, 63, v0' % O.L)
    a('v_lshlrev_b32 v%d, 4, v%d' % (O.L16, O.L))
    a('v_add_u32 v%d, 0x1000, v%d' % (O.L16B, O.L16))
    a('v_lshrrev_b32 v%d, 6, v0' % O.T)
    a('v_readfirstlane_b32 s%d, v%d' % (sW, O.T))
    a('v_and_b32 v%d, 15, v%d' % (O.T, O.L))
    a('v_lshlrev_b32 v%d, 2, v%d' % (O.GA, O.T))
    a('v_lshrrev_b32 v%d, 4, v%d' % (O.T + 1, O.L))
    a('v_lshlrev_b32 v%d, 4, v%d' % (O.T + 1, O.T + 1))
    a('v_lshl_add_u32 v%d, v%d, 11, v%d' % (O.XA, O.T, O.T + 1))
    a('s_lshr_b32 s%d, s2, 3' % sI)
    a('s_and_b32 s%d, s2, 7' % sTILE)
    a('s_mov_b32 s%d, 8' % sTSTEP)
    a('s_mov_b32 s%d, 0' % sN)
    a('v_mov_b32 v%d, 0' % O.T)
    a('s_mov_b32 s%d, 0x%x' % (sT0, IDX_OFF))
    a('buffer_load_dwordx2 v[%d:%d], v%d, s[%d:%d], s%d offen' % (O.E, O.E + 1, O.T, sWS, sWS + 3, sT0))
    a('s_waitcnt vmcnt(0)')
    a('v_readfirstlane_b32 s%d, v%d' % (sIDX0, O.E))
    a('v_readfirstlane_b32 s%d, v%d' % (sIDX1, O.E + 1))
    out_load_weights(a)
    a('s_barrier')
    a('s_lshl_b32 s%d, s%d, 17' % (sOO, sTILE))
    a('s_lshl_b32 s%d, s%d, 15' % (sT0, sW))
    a('s_add_u32 s%d, s%d, s%d' % (sOO, sOO, sT0))
    a('s_add_u32 s%d, s%d, 0x%x' % (sOO, sOO, OF_OFF))
    for q in range(4):
        a('s_add_u32 s%d, s%d, %d' % (sT0, sOO, q * 8192))
        for x in oloads(q, sT0): a(x)
    a.label('out_loop')
    tile_body(a, 0, cfg)
    tile_body(a, 1, cfg)
    a('s_cmp_lt_u32 s%d, 16' % sN)
    a.branch('s_cbranch_scc1 out_loop')
    a('s_cmp_lg_u32 s%d, 0' % sW)
    a.branch('s_cbranch_scc1 out_exit')
    a('s_waitcnt vmcnt(0)')
    epilogue(a, 1)
    a.label('out_exit')
    a('s_endpgm')
    return a.text()

def out_consts(a):
    O = OV
    a('v_and_b32 v%d, 63, v0' % O.L)
    a('v_lshlrev_b32 v%d, 4, v%d' % (O.L16, O.L))
    a('v_add_u32 v%d, 0x1000, v%d' % (O.L16B, O.L16))
    a('v_and_b32 v%d, 15, v%d' % (O.T, O.L))
    a('v_lshlrev_b32 v%d, 2, v%d' % (O.GA, O.T))
    a('v_lshrrev_b32 v%d, 4, v%d' % (O.T + 1, O.L))
    a('v_lshlrev_b32 v%d, 4, v%d' % (O.T + 1, O.T + 1))
    a('v_lshl_add_u32 v%d, v%d, 11, v%d' % (O.XA, O.T, O.T + 1))

sPT, sNB = 56, 57
def wo_tile(a, par, pf=True):
    O = OV
    a('s_lshl_b32 s%d, s%d, 15' % (sT0, sTILE))
    a('s_lshl_b32 s%d, s%d, 6' % (sT1, sI))
    a('s_add_u32 s%d, s%d, s%d' % (sT0, sT0, sT1))
    a('buffer_load_dwordx4 v[%d:%d], v%d, s[%d:%d], s%d offen' % (O.XR + 4 * par, O.XR + 4 * par + 3, O.XA, sX, sX + 3, sT0))
    a('s_lshl_b32 s%d, s%d, 6' % (sT0, sTILE))
    a('s_add_u32 s%d, s%d, 0x%x' % (sT0, sT0, GL_OFF))
    a('buffer_load_dword v%d, v%d, s[%d:%d], s%d offen sc1' % (O.G + par, O.GA, sWS, sWS + 3, sT0))
    Ls = a.newlabel('noepi')
    a('s_cmp_eq_u32 s%d, 0' % sN)
    a('s_cbranch_scc1 %s' % Ls)
    a('s_and_b32 s%d, s%d, 3' % (sT0, sN))
    a('s_cmp_lg_u32 s%d, s%d' % (sT0, sW))
    a.branch('s_cbranch_scc1 %s' % Ls)
    epilogue(a, 1 - par, sPT, True)
    a.label(Ls)
    a('s_add_u32 s%d, s%d, 0x%x' % (sOO, sOO, 0x20000 * (1 if par == 0 else 7)))
    for q in range(4):
        a('s_waitcnt vmcnt(%d)' % (26 if pf else 26 - 8 * q))
        for p in range(8):
            for tau in range(2):
                c = '0' if (q == 0 and p == 0) else vr(O.AC1 + 4 * tau, 4)
                a('v_mfma_f32_16x16x32_bf16 %s, %s, %s, %s' % (vr(O.AC1 + 4 * tau, 4), ar(wof(q, tau, p), 4), vr(O.B + 32 * q + 4 * p, 4), c))
        if pf:
            a('s_add_u32 s%d, s%d, %d' % (sT0, sOO, q * 8192))
            for x in oloads(q, sT0, ' sc1'): a(x)
    for tau in range(2):
        a('ds_write_b128 v%d, v[%d:%d] offset:%d' % (O.T, O.AC1 + 4 * tau, O.AC1 + 4 * tau + 3, LDSO + par * 8192 + tau * 1024))
    a('s_waitcnt lgkmcnt(0)')
    a('s_barrier')
    a('s_mov_b32 s%d, s%d' % (sPT, sTILE))
    a('s_add_u32 s%d, s%d, %d' % (sTILE, sTILE, 1 if par == 0 else 7))
    a('s_add_u32 s%d, s%d, 1' % (sN, sN))

def wo_batch(a, cfg):
    O = OV
    out_consts(a)
    a('s_mov_b32 s%d, 0' % sN)
    a('s_lshl_b32 s%d, s%d, 17' % (sOO, sTILE))
    a('s_lshl_b32 s%d, s%d, 15' % (sT0, sW))
    a('s_add_u32 s%d, s%d, s%d' % (sOO, sOO, sT0))
    a('s_add_u32 s%d, s%d, 0x%x' % (sOO, sOO, OF_OFF))
    for q in range(4):
        a('s_add_u32 s%d, s%d, %d' % (sT0, sOO, q * 8192))
        for x in oloads(q, sT0, ' sc1'): a(x)
    a('s_lshl_b32 s%d, s%d, 11' % (sT0, sW))
    a('v_add_u32 v%d, s%d, v%d' % (O.T, sT0, O.L16))
    L = a.newlabel('wob')
    a.label(L)
    Ll = a.newlabel('wol')
    wo_tile(a, 0)
    a('s_sub_u32 s%d, s%d, 1' % (sNB, sNB))
    a('s_cmp_eq_u32 s%d, 0' % sNB)
    a.branch('s_cbranch_scc1 %s' % Ll)
    wo_tile(a, 1)
    a.branch('s_branch %s' % L)
    a.label(Ll)
    wo_tile(a, 1, pf=False)
    Ls = a.newlabel('noepi')
    a('s_cmp_lg_u32 s%d, 3' % sW)
    a.branch('s_cbranch_scc1 %s' % Ls)
    a('s_waitcnt vmcnt(0)')
    epilogue(a, 1, sPT, True)
    a.label(Ls)

sKQ, sCG, sC32, sSLOT_, sPWO, sNT, sTN = 60, 61, 62, 63, 64, 49, 59
def wo2_load_weights(a, nq=4):
    global sW, sI
    sw, si = sW, sI
    a('s_lshr_b32 s%d, s%d, 3' % (sKQ, si))
    a('s_and_b32 s%d, s%d, 7' % (sCG, si))
    a('s_lshl_b32 s%d, s%d, 2' % (sC32, sCG))
    a('s_add_u32 s%d, s%d, s%d' % (sC32, sC32, sw))
    O = OV
    a('v_lshrrev_b32 v%d, 2, v%d' % (O.T, O.L))
    a('v_and_b32 v%d, 3, v%d' % (O.T + 1, O.L))
    a('v_lshlrev_b32 v%d, 4, v%d' % (O.T + 1, O.T + 1))
    a('v_lshl_add_u32 v%d, v%d, 11, v%d' % (O.T + 3, O.T, O.T + 1))
    a('s_lshl_b32 s%d, s%d, 21' % (sT0, sKQ))
    a('s_lshl_b32 s%d, s%d, 6' % (sT1, sC32))
    a('s_add_u32 s%d, s%d, s%d' % (sT0, sT0, sT1))
    for n in range(16 * nq):
        a('buffer_load_dwordx4 a[%d:%d], v%d, s[%d:%d], s%d offen' % (4 * n, 4 * n + 3, O.T + 3, sWO, sWO + 3, sT0))
        if n < 16 * nq - 1: a('s_add_u32 s%d, s%d, 0x8000' % (sT0, sT0))
    if nq < 4:
        import modloop
        modloop.wo_tr(a, 2)
    a('s_lshl_b32 s%d, s%d, 14' % (sT0, sw))
    a('v_add_u32 v%d, s%d, v%d' % (O.TR, sT0, O.L16))
    a('v_lshrrev_b32 v%d, 4, v%d' % (O.T, O.L))
    a('v_bfe_u32 v%d, v%d, 2, 2' % (O.T + 1, O.L))
    a('v_and_b32 v%d, 3, v%d' % (O.T + 2, O.L))
    a('v_lshl_add_u32 v%d, v%d, 2, v%d' % (O.T + 3, O.T, O.T + 1))
    a('v_lshlrev_b32 v%d, 6, v%d' % (O.T + 3, O.T + 3))
    a('v_lshl_add_u32 v%d, v%d, 4, v%d' % (O.T + 3, O.T + 2, O.T + 3))
    a('v_add_u32 v%d, s%d, v%d' % (O.TR + 1, sT0, O.T + 3))
    for q in range(nq):
        a('s_waitcnt vmcnt(%d)' % (16 * (nq - 1) - 16 * q))
        for n in range(16):
            a('ds_write_b128 v%d, a[%d:%d] offset:%d' % (O.TR, 64 * q + 4 * n, 64 * q + 4 * n + 3, n * 1024))
        a('s_waitcnt lgkmcnt(0)')
        for tau in range(2):
            for p in range(8):
                for half in range(2):
                    r = wof(q, tau, p) + 2 * half
                    a('ds_read_b64_tr_b16 a[%d:%d], v%d offset:%d' % (r, r + 1, O.TR + 1, (32 * p + 16 * half) * 64 + tau * 8))
        a('s_waitcnt lgkmcnt(0)')

def tile_of(a, dst, n_s, sGX):
    a('s_lshr_b32 s%d, s%d, 1' % (dst, n_s))
    a('s_lshl_b32 s%d, s%d, 2' % (dst, dst))
    a('s_add_u32 s%d, s%d, s%d' % (dst, dst, sGX))
    a('s_lshl_b32 s%d, s%d, 1' % (dst, dst))
    a('s_and_b32 s%d, s%d, 1' % (sT3, n_s))
    a('s_add_u32 s%d, s%d, s%d' % (dst, dst, sT3))

sDA, sDL = 74, 75
def wo2_dma_setup(a, n_s, slot_s, sGX):
    tile_of(a, sDA, n_s, sGX)
    a('s_lshl_b32 s%d, s%d, 17' % (sDA, sDA))
    a('s_lshl_b32 s%d, s%d, 15' % (sT1, sKQ))
    a('s_add_u32 s%d, s%d, s%d' % (sDA, sDA, sT1))
    a('s_lshl_b32 s%d, s%d, 13' % (sT1, sW))
    a('s_add_u32 s%d, s%d, s%d' % (sDA, sDA, sT1))
    a('s_add_u32 s%d, s%d, 0x%x' % (sDA, sDA, OF_OFF))
    a('s_lshl_b32 s%d, s%d, 15' % (sDL, slot_s))
    a('s_add_u32 s%d, s%d, s%d' % (sDL, sDL, sT1))

def wo2_dma_one(a, p):
    O = OV
    if p == 0: a('s_mov_b32 m0, s%d' % sDL)
    if p == 4:
        a('s_add_u32 m0, s%d, 4096' % sDL)
        a('s_add_u32 s%d, s%d, 4096' % (sDA, sDA))
    a('buffer_load_dwordx4 v%d, s[%d:%d], s%d offen offset:%d sc1 lds' % (O.L16, sWS, sWS + 3, sDA, (p & 3) * 1024))

def wo2_dma(a, n_s, slot_s, sGX):
    wo2_dma_setup(a, n_s, slot_s, sGX)
    for p in range(8): wo2_dma_one(a, p)

def wo2_batch(a, cfg, sGX, sNW, sSP):
    O = OV
    safe = ' sc1' if cfg.get('safe') else ''
    out_consts(a)
    sN0 = sPT
    a('s_mov_b32 s%d, s%d' % (sN0, sTN))
    a('s_mov_b32 s%d, 0' % sSLOT_)
    wo2_dma(a, sTN, sSLOT_, sGX)
    a('s_add_u32 s%d, s%d, 1' % (sOO, sTN))
    a('s_mov_b32 s%d, 1' % sN)
    wo2_dma(a, sOO, sN, sGX)
    a('s_lshl_b32 s%d, s%d, 23' % (sPWO, sGX))
    a('s_lshl_b32 s%d, s%d, 16' % (sT0, sKQ))
    a('s_add_u32 s%d, s%d, s%d' % (sPWO, sPWO, sT0))
    a('s_lshl_b32 s%d, s%d, 11' % (sT0, sC32))
    a('s_add_u32 s%d, s%d, s%d' % (sPWO, sPWO, sT0))
    a('s_add_u32 s%d, s%d, 0x%x' % (sPWO, sPWO, PW_OFF))
    global sI
    si_save = sI
    sFC = sNB
    a('s_lshl_b32 s%d, s%d, 2' % (sFC, sCG))
    a('s_add_u32 s%d, s%d, s%d' % (sFC, sFC, sKQ))
    def xg(n_s, par):
        tile_of(a, sT2, n_s, sGX)
        a('s_lshl_b32 s%d, s%d, 15' % (sT0, sT2))
        a('s_lshl_b32 s%d, s%d, 6' % (sT1, sFC))
        a('s_add_u32 s%d, s%d, s%d' % (sT0, sT0, sT1))
        a('buffer_load_dwordx4 v[%d:%d], v%d, s[%d:%d], s%d offen' % (O.XR + 4 * par, O.XR + 4 * par + 3, O.XA, sX, sX + 3, sT0))
        a('s_lshl_b32 s%d, s%d, 6' % (sT0, sT2))
        a('s_add_u32 s%d, s%d, 0x%x' % (sT0, sT0, GL_OFF))
        a('buffer_load_dword v%d, v%d, s[%d:%d], s%d offen sc1' % (O.G + par, O.GA, sWS, sWS + 3, sT0))
    a('s_add_u32 s%d, s%d, s%d' % (sN, sTN, sW))
    xg(sN, 0)
    a('s_add_u32 s%d, s%d, 4' % (sN, sN))
    xg(sN, 1)
    a('s_waitcnt vmcnt(4)')
    L = a.newlabel('w2l'); Ll = a.newlabel('w2last'); Lj = a.newlabel('w2j')
    NPRE = 8
    def seg(dma):
        a('s_lshl_b32 s%d, s%d, 15' % (sT0, sSLOT_))
        a('v_add_u32 v%d, s%d, v%d' % (O.T, sT0, O.L16))
        def rd(k): a('ds_read_b128 v[%d:%d], v%d offset:%d' % (O.B + 4 * (k % 16), O.B + 4 * (k % 16) + 3, O.T, k * 1024))
        for k in range(NPRE): rd(k)
        if dma:
            a('s_add_u32 s%d, s%d, 2' % (sOO, sTN))
            a('s_xor_b32 s%d, s%d, 2' % (sN, sSLOT_))
            wo2_dma_setup(a, sOO, sN, sGX)
        a('s_lshl_b32 s%d, s%d, 18' % (sT2, sTN))
        a('s_add_u32 s%d, s%d, s%d' % (sT2, sT2, sPWO))
        a('s_add_u32 s%d, s%d, 0x40000' % (sT0, sT2))
        for kk in range(64):
            t, k = kk >> 5, kk & 31
            ac = O.AC + 8 * t
            a('s_waitcnt lgkmcnt(%d)' % min(NPRE - 1, 63 - kk))
            for tau in range(2):
                c = '0' if k == 0 else vr(ac + 4 * tau, 4)
                a('v_mfma_f32_16x16x32_bf16 %s, %s, %s, %s' % (vr(ac + 4 * tau, 4), ar(wof(k >> 3, tau, k & 7), 4), vr(O.B + 4 * (kk % 16), 4), c))
                if tau == 0 and kk + NPRE < 64: rd(kk + NPRE)
                if dma and tau == 1 and kk % 2 == 1 and kk // 2 < 16:
                    p = kk // 2
                    if p == 8:
                        a('s_add_u32 s%d, s%d, 0x%x' % (sDA, sDA, 0x20000 - 4096))
                        a('s_add_u32 s%d, s%d, 0x8000' % (sDL, sDL))
                    wo2_dma_one(a, p & 7)
            if kk == 37:
                for tau in range(2):
                    a('buffer_store_dwordx4 v[%d:%d], v%d, s[%d:%d], s%d offen offset:%d%s' % (O.AC + 4 * tau, O.AC + 4 * tau + 3, O.L16, sWS, sWS + 3, sT2, tau * 1024, safe))
        a('s_add_u32 s%d, s%d, 2' % (sTN, sTN))
        a('s_xor_b32 s%d, s%d, 2' % (sSLOT_, sSLOT_))
        for tau in range(2):
            a('buffer_store_dwordx4 v[%d:%d], v%d, s[%d:%d], s%d offen offset:%d%s' % (O.AC + 8 + 4 * tau, O.AC + 8 + 4 * tau + 3, O.L16, sWS, sWS + 3, sT0, tau * 1024, safe))
    a.label(L)
    a('s_barrier')
    a('s_add_u32 s%d, s%d, 2' % (sOO, sTN))
    a('s_cmp_ge_u32 s%d, s%d' % (sOO, sNT))
    a.branch('s_cbranch_scc1 %s' % Ll)
    seg(True)
    a('s_waitcnt vmcnt(4)')
    a.branch('s_branch %s' % L)
    a.label(Ll)
    seg(False)
    a.label(Lj)
    a('s_waitcnt vmcnt(0)')
    a('s_barrier')
    import fused
    fused.g2mark(a, cfg, 7)
    a('s_lshl_b32 s%d, s%d, 3' % (sT0, sGX))
    a('s_add_u32 s%d, s%d, s%d' % (sT0, sT0, sCG))
    a('s_lshl_b32 s%d, s%d, 7' % (sT0, sT0))
    a('s_add_u32 s%d, s%d, 0x%x' % (sOO, sT0, WP_OFF))
    Lp = a.newlabel('w2p')
    a('s_cmp_lg_u32 s%d, 0' % sW)
    a.branch('s_cbranch_scc1 %s' % Lp)
    a('s_lshl_b32 s%d, s%d, 2' % (sT0, sKQ))
    a('v_mov_b32 v%d, s%d' % (O.T + 1, sT0))
    a('v_mov_b32 v%d, s%d' % (O.T + 2, sNT))
    a('s_mov_b64 exec, 1')
    a('buffer_store_dword v%d, v%d, s[%d:%d], s%d offen%s' % (O.T + 2, O.T + 1, sWS, sWS + 3, sOO, safe))
    a('s_mov_b64 exec, -1')
    a.label(Lp)
    a('s_add_u32 s%d, s%d, s%d' % (sTN, sN0, sW))
    Lf = a.newlabel('w2f'); Le = a.newlabel('w2e'); Lq = a.newlabel('w2q'); Lqd = a.newlabel('w2qd')
    a('s_cmp_ge_u32 s%d, s%d' % (sTN, sNT))
    a.branch('s_cbranch_scc1 %s' % Le)
    a('v_mov_b32 v%d, 0' % (O.T + 1))
    a.label(Lq)
    a('buffer_load_dwordx4 v[%d:%d], v%d, s[%d:%d], s%d offen sc1' % (O.T + 4, O.T + 7, O.T + 1, sWS, sWS + 3, sOO))
    a('s_waitcnt vmcnt(0)')
    a('v_min3_u32 v%d, v%d, v%d, v%d' % (O.T + 4, O.T + 4, O.T + 5, O.T + 6))
    a('v_min_u32 v%d, v%d, v%d' % (O.T + 4, O.T + 4, O.T + 7))
    a('v_cmp_gt_u32 vcc, s%d, v%d' % (sNT, O.T + 4))
    a('s_cbranch_vccz %s' % Lqd)
    a('s_sleep 1')
    a('s_add_u32 s%d, s%d, 1' % (sSP, sSP))
    a('s_cmp_lt_u32 s%d, 0x%x' % (sSP, SPIN_LIMIT))
    a('s_cbranch_scc1 %s' % Lq)
    a.label(Lqd)
    fused.g2mark(a, cfg, 6)
    for par in range(2):
        tile_of(a, sTILE, sTN, sGX)
        a('s_lshl_b32 s%d, s%d, 23' % (sT0, sGX))
        a('s_lshl_b32 s%d, s%d, 18' % (sT1, sTN))
        a('s_add_u32 s%d, s%d, s%d' % (sT0, sT0, sT1))
        a('s_lshl_b32 s%d, s%d, 11' % (sT1, sFC))
        a('s_add_u32 s%d, s%d, s%d' % (sT0, sT0, sT1))
        a('s_add_u32 s%d, s%d, 0x%x' % (sT0, sT0, PW_OFF))
        for kq in range(4):
            for tau in range(2):
                r = O.E + kq * 8 + tau * 4
                a('buffer_load_dwordx4 v[%d:%d], v%d, s[%d:%d], s%d offen offset:%d sc1' % (r, r + 3, O.L16, sWS, sWS + 3, sT0, tau * 1024))
            a('s_add_u32 s%d, s%d, 0x10000' % (sT0, sT0))
        a('s_waitcnt vmcnt(0)')
        sI = sFC
        epilogue(a, par, sTILE, True, lds=False)
        sI = si_save
        if par == 0:
            a('s_add_u32 s%d, s%d, 4' % (sTN, sTN))
            a('s_cmp_ge_u32 s%d, s%d' % (sTN, sNT))
            a.branch('s_cbranch_scc1 %s' % Le)
    a.label(Le)
```

```python
from common import *

sWS, sWQ, sWK, sWV, sWO, sM0, sDBG = 8, 12, 16, 20, 24, 28, 32
sRX, sI, sW, sSTEP, sSPIN, sT0, sT1, sT2, sT3, sH, sJ = 40, 41, 42, 43, 44, 45, 46, 47, 48, 49, 50
sMXR, sMXW, sQKW, sQKR, sOXR, sOXW, sPXR, sPXW, sARC, sKF, sVF = 52, 53, 54, 55, 56, 57, 58, 59, 60, 61, 62
sSLOT, sSLOT2, sC, sA0, sA1, sA2, sA3, sP0, sP1 = 63, 64, 65, 66, 67, 68, 69, 74, 75
vL, vL16, vP8, vDup, vOD, vL8 = 1, 2, 3, 4, 5, 6
vSENT = 8
vT = 12
vSET = 16
vM = 64
vACC = 80
vZ = 128
vR = 144
vMLO, vMHI, vFLO = 156, 157, 158
vTR = 144
vKX = 160
vVX = 192
vS = 200
vP = 212
vVZ = 222
vO = 224
vX = 160
vXR = 224
vXA, vXM, vZERO = 232, 233, 234
sXB = 36
sPX1, sP2, sP3 = 51, 72, 73
sGP = 59
sMP0, sMP1, sXD = 4, 5, 6
vL16B, vXAB = 7, 236
LDS_B = 0
LDS_D = 12288
LDS_KV = 16384
LDS_TK = 65536
SWITCH = 5

def acc(tile, b): return vACC + (tile * 2 + b) * 4
def wq_frag(tile, T, b): return ((tile * 4 + T) * 2 + b) * 4
def wo_frag(tau, u, b): return 192 + ((tau * 4 + u) * 2 + b) * 4

def check_sent(a, regs, tmp):
    regs = list(regs)
    h = len(regs) // 2
    chains = [(regs[:h], tmp), (regs[h:], tmp + 1)]
    outs = []
    for rg, t in chains:
        seq = ['v_max3_u32 v%d, v%d, v%d, v%d' % (t, rg[0], rg[1], rg[2])]
        k = 3
        while k + 1 < len(rg):
            seq.append('v_max3_u32 v%d, v%d, v%d, v%d' % (t, t, rg[k], rg[k + 1])); k += 2
        if k < len(rg): seq.append('v_max_u32 v%d, v%d, v%d' % (t, t, rg[k]))
        outs.append(seq)
    for x, y in zip(outs[0], outs[1]):
        a(x); a(y)
    a('v_max_u32 v%d, v%d, v%d' % (tmp, tmp, tmp + 1))
    a('v_cmp_eq_u32 vcc, -1, v%d' % tmp)

def delay(a, n):
    if n <= 0: return
    if n >= 4: a('s_sleep %d' % (n // 4))
    for _ in range(n % 4): a('s_nop 3')

def spoll_issue(a, nsets, loads, gap):
    for k in range(nsets):
        for ld in loads(k): a(ld)
        if k < nsets - 1: delay(a, gap)

def spoll(a, nsets, loads, regs, consume, first=0, gap=0, issued=False):
    L = a.newlabel('sp'); J = a.newlabel('spj')
    C = [a.newlabel('spc') for _ in range(nsets)]
    nl = len(loads(0))
    if not issued:
        delay(a, first)
        spoll_issue(a, nsets, loads, gap)
    a.label(L)
    for k in range(nsets):
        a('s_waitcnt vmcnt(%d)' % (nl * (nsets - 1)))
        check_sent(a, regs(k), vT)
        a('s_cbranch_vccz %s' % C[k])
        for ld in loads(k): a(ld)
    a('s_add_u32 s%d, s%d, 1' % (sSPIN, sSPIN))
    a('s_cmp_lt_u32 s%d, 0x%x' % (sSPIN, SPIN_LIMIT))
    a('s_cbranch_scc1 %s' % L)
    a('s_waitcnt vmcnt(0)')
    for k in range(nsets):
        a.label(C[k], fence=False); a.hist = []
        consume(k)
        if k < nsets - 1: a.branch('s_branch %s' % J)
    a.label(J)

def ppoll(a, nb, loads, regs, consume, first=0, issued=False):
    nl = len(loads(0))
    if not issued:
        delay(a, first)
        for T in range(nb):
            for ld in loads(T): a(ld)
    for T in range(nb):
        C = a.newlabel('ppc'); Rr = a.newlabel('ppr'); OK = a.newlabel('ppo')
        a('s_waitcnt vmcnt(%d)' % (nl * (nb - 1 - T)))
        rg = list(regs(T))
        def chk():
            if len(rg) == 4:
                a('v_max3_u32 v%d, v%d, v%d, v%d' % (vT, rg[0], rg[1], rg[2]))
                a('v_max_u32 v%d, v%d, v%d' % (vT, vT, rg[3]))
                a('v_cmp_eq_u32 vcc, -1, v%d' % vT)
            else:
                check_sent(a, rg, vT)
        chk()
        a('s_cbranch_vccz %s' % OK)
        saved = list(a.hist)
        a.label(Rr)
        for T2 in range(T, nb):
            for ld in loads(T2): a(ld)
        a('s_add_u32 s%d, s%d, 1' % (sSPIN, sSPIN))
        a('s_waitcnt vmcnt(%d)' % (nl * (nb - 1 - T)))
        chk()
        a('s_cbranch_vccz %s' % OK)
        a('s_cmp_lt_u32 s%d, 0x%x' % (sSPIN, SPIN_LIMIT))
        a('s_cbranch_scc1 %s' % Rr)
        a.label(OK, fence=False); a.hist = saved
        consume(T)

COLD = []
def chk_list(rg):
    rg = list(rg)
    if len(rg) == 4:
        return ['v_max3_u32 v%d, v%d, v%d, v%d' % (vT, rg[0], rg[1], rg[2]), 'v_max_u32 v%d, v%d, v%d' % (vT, vT, rg[3]), 'v_cmp_eq_u32 vcc, -1, v%d' % vT]
    assert len(rg) == 8
    return ['v_max3_u32 v%d, v%d, v%d, v%d' % (vT, rg[0], rg[1], rg[2]), 'v_max3_u32 v%d, v%d, v%d, v%d' % (vT + 1, rg[3], rg[4], rg[5]),
            'v_max3_u32 v%d, v%d, v%d, v%d' % (vT, vT, rg[6], rg[7]), 'v_max_u32 v%d, v%d, v%d' % (vT, vT, vT + 1), 'v_cmp_eq_u32 vcc, -1, v%d' % vT]

def ppoll2(a, nb, loads, regs, mfmas, first=0, issued=False, at=1):
    nl = len(loads(0))
    if not issued:
        delay(a, first)
        for T in range(nb):
            for ld in loads(T): a(ld)
    a('s_waitcnt vmcnt(%d)' % (nl * (nb - 1)))
    for x in chk_list(regs(0)): a(x)
    for T in range(nb):
        Rr = a.newlabel('ppr'); OK = a.newlabel('ppo')
        a('s_cbranch_vccnz %s' % Rr)
        a.label(OK, fence=False)
        def cold(T=T, Rr=Rr, OK=OK):
            a.label(Rr)
            a('s_nop 7')
            for T2 in range(T, nb):
                for ld in loads(T2): a(ld)
            a('s_add_u32 s%d, s%d, 1' % (sSPIN, sSPIN))
            a('s_waitcnt vmcnt(%d)' % (nl * (nb - 1 - T)))
            for x in chk_list(regs(T)): a(x)
            a('s_cbranch_vccz %s' % OK)
            a('s_cmp_lt_u32 s%d, 0x%x' % (sSPIN, SPIN_LIMIT))
            a('s_cbranch_scc1 %s' % Rr)
            a('s_branch %s' % OK)
        COLD.append(cold)
        ms = mfmas(T)
        fill = []
        if T + 1 < nb: fill = ['s_waitcnt vmcnt(%d)' % (nl * (nb - 2 - T))] + chk_list(regs(T + 1))
        slots = len(ms) - at
        per = -(-len(fill) // slots) if fill else 0
        for n, x in enumerate(ms):
            a(x)
            if n >= at - 1 and n < len(ms) - 1 or (n == len(ms) - 1):
                k = per if n < len(ms) - 1 else len(fill)
                for y in fill[:k]: a(y)
                fill = fill[k:]

def combine_pair(a, z, t0, t1):
    for i in range(4):
        a('v_add_f32_dpp v%d, v%d, v%d row_ror:8 row_mask:0xf bank_mask:0x3' % (z + i, acc(t0, 1) + i, acc(t0, 0) + i))
        a('v_add_f32_dpp v%d, v%d, v%d row_ror:8 row_mask:0xf bank_mask:0xc' % (z + i, acc(t1, 0) + i, acc(t1, 1) + i))

def pk_add(a, d, x, y):
    a('v_pk_add_f32 v[%d:%d], v[%d:%d], v[%d:%d]' % (d, d + 1, x, x + 1, y, y + 1))

def reduce3(a, z, ldsbase, w):
    others = [x for x in range(4) if x != w]
    for n, o in enumerate(others):
        a('ds_read_b128 v[%d:%d], v%d offset:%d' % (vR + 4 * n, vR + 4 * n + 3, vL16, ldsbase + o * 1024))
    a('s_waitcnt lgkmcnt(2)')
    pk_add(a, z, z, vR); pk_add(a, z + 2, z + 2, vR + 2)
    a('s_waitcnt lgkmcnt(0)')
    pk_add(a, vR + 4, vR + 4, vR + 8); pk_add(a, vR + 6, vR + 6, vR + 10)
    pk_add(a, z, z, vR + 4); pk_add(a, z + 2, z + 2, vR + 6)

LW = dict(order=0, rdelay=0)
def load_weights(a, with_wo=True, hook=None):
    a('v_lshrrev_b32 v%d, 2, v%d' % (vT, vL))
    a('v_and_b32 v%d, 3, v%d' % (vT + 1, vL))
    a('v_lshlrev_b32 v%d, 4, v%d' % (vT + 1, vT + 1))
    a('v_lshl_add_u32 v%d, v%d, 13, v%d' % (vT + 2, vT, vT + 1))
    a('v_lshl_add_u32 v%d, v%d, 11, v%d' % (vT + 3, vT, vT + 1))
    def wo():
        a('s_lshl_b32 s%d, s%d, 21' % (sT0, sRX))
        a('s_lshl_b32 s%d, s%d, 19' % (sT1, sW))
        a('s_add_u32 s%d, s%d, s%d' % (sT0, sT0, sT1))
        a('s_lshl_b32 s%d, s%d, 6' % (sT1, sI))
        a('s_add_u32 s%d, s%d, s%d' % (sT0, sT0, sT1))
        for n in range(16):
            a('buffer_load_dwordx4 a[%d:%d], v%d, s[%d:%d], s%d offen' % (192 + 4 * n, 192 + 4 * n + 3, vT + 3, sWO, sWO + 3, sT0))
            if n < 15: a('s_add_u32 s%d, s%d, 0x8000' % (sT0, sT0))
    if with_wo and LW['order'] & 1:
        wo()
        if hook: hook()
        for _ in range(LW['rdelay']): a('s_sleep 32')
    a('s_lshl_b32 s%d, s%d, 21' % (sT2, sW))
    a('s_lshl_b32 s%d, s%d, 8' % (sT1, sH))
    a('s_add_u32 s%d, s%d, s%d' % (sT2, sT2, sT1))
    a('s_lshl_b32 s%d, s%d, 6' % (sT1, sJ))
    a('s_add_u32 s%d, s%d, s%d' % (sT2, sT2, sT1))
    if LW['order'] & 2:
        for M, srd in ((1, sWK), (2, sWV), (0, sWQ)):
            a('s_mov_b32 s%d, s%d' % (sT0, sT2))
            for n in range(16):
                a('buffer_load_dwordx4 a[%d:%d], v%d, s[%d:%d], s%d offen' % (64 * M + 4 * n, 64 * M + 4 * n + 3, vT + 2, srd, srd + 3, sT0))
                if n < 15: a('s_add_u32 s%d, s%d, 0x20000' % (sT0, sT0))
    else:
        a('s_mov_b32 s%d, s%d' % (sT0, sT2))
        for n in range(16):
            for M, srd in enumerate((sWQ, sWK, sWV)):
                a('buffer_load_dwordx4 a[%d:%d], v%d, s[%d:%d], s%d offen' % (64 * M + 4 * n, 64 * M + 4 * n + 3, vT + 2, srd, srd + 3, sT0))
            if n < 15: a('s_add_u32 s%d, s%d, 0x20000' % (sT0, sT0))
    if with_wo and not (LW['order'] & 1): wo()

def rstamp(a, k):
    a('s_memrealtime s[%d:%d]' % (80 + 2 * k, 81 + 2 * k))

def tr_setup(a):
    a('s_lshl_b32 s%d, s%d, 14' % (sT0, sW))
    a('v_add_u32 v%d, s%d, v%d' % (vTR, sT0, vL16))
    a('v_lshrrev_b32 v%d, 4, v%d' % (vT, vL))
    a('v_bfe_u32 v%d, v%d, 2, 2' % (vT + 1, vL))
    a('v_and_b32 v%d, 3, v%d' % (vT + 2, vL))
    a('v_lshl_add_u32 v%d, v%d, 4, v%d' % (vT + 3, vT, vT + 1))
    a('v_lshlrev_b32 v%d, 6, v%d' % (vT + 3, vT + 3))
    a('v_lshl_add_u32 v%d, v%d, 3, v%d' % (vT + 3, vT + 2, vT + 3))
    a('v_add_u32 v%d, s%d, v%d' % (vTR + 1, sT0, vT + 3))
    a('v_lshl_add_u32 v%d, v%d, 2, v%d' % (vT + 3, vT, vT + 1))
    a('v_lshlrev_b32 v%d, 6, v%d' % (vT + 3, vT + 3))
    a('v_lshl_add_u32 v%d, v%d, 4, v%d' % (vT + 3, vT + 2, vT + 3))
    a('v_add_u32 v%d, s%d, v%d' % (vTR + 2, sT0, vT + 3))

def tr_matrix(a, M):
    for n in range(16):
        a('ds_write_b128 v%d, a[%d:%d] offset:%d' % (vTR, 64 * M + 4 * n, 64 * M + 4 * n + 3, n * 1024))
    a('s_waitcnt lgkmcnt(0)')
    for tau in range(2):
        for T in range(4):
            for b in range(2):
                for half in range(2):
                    if M < 3:
                        r = wq_frag(2 * M + tau, T, b) + 2 * half
                        off = (64 * T + 8 * b + 4 * half) * 64 + tau * 32
                        a('ds_read_b64_tr_b16 a[%d:%d], v%d offset:%d' % (r, r + 1, vTR + 1, off))
                    else:
                        r = wo_frag(tau, T, b) + 2 * half
                        off = (32 * (2 * T + b) + 16 * half) * 64 + tau * 8
                        a('ds_read_b64_tr_b16 a[%d:%d], v%d offset:%d' % (r, r + 1, vTR + 2, off))
    a('s_waitcnt lgkmcnt(0)')

def transpose_weights(a, with_wo=True, st=False):
    tr_setup(a)
    if LW['order'] == 3 and with_wo:
        for n, M in enumerate((3, 1, 2, 0)):
            a('s_waitcnt vmcnt(%d)' % (48 - 16 * n))
            if st and n == 3: rstamp(a, 1)
            tr_matrix(a, M)
        return
    a('s_waitcnt vmcnt(0)')
    if st: rstamp(a, 1)
    for M in range(4 if with_wo else 3): tr_matrix(a, M)

def lane_consts(a):
    a('v_and_b32 v%d, 63, v0' % vL)
    a('v_lshlrev_b32 v%d, 4, v%d' % (vL16, vL))
    a('v_lshlrev_b32 v%d, 3, v%d' % (vL8, vL))
    a('v_lshrrev_b32 v%d, 4, v%d' % (vT, vL))
    a('v_and_b32 v%d, 7, v%d' % (vT + 1, vL))
    a('v_bfe_u32 v%d, v%d, 3, 1' % (vT + 2, vL))
    a('v_lshl_add_u32 v%d, v%d, 3, v%d' % (vT + 3, vT, vT + 1))
    a('v_lshlrev_b32 v%d, 4, v%d' % (vDup, vT + 3))
    a('v_lshl_add_u32 v%d, v%d, 3, v%d' % (vP8, vT + 2, vDup))
    a('v_lshl_add_u32 v%d, v%d, 9, v%d' % (vOD, vT + 2, vDup))
    for i in range(4): a('v_mov_b32 v%d, -1' % (vSENT + i))
    a('v_cmp_gt_u32 vcc, 32, v%d' % vL)
    a('v_cndmask_b32 v%d, 0, -1, vcc' % vMLO)
    a('v_cndmask_b32 v%d, -1, 0, vcc' % vMHI)
    a('v_cndmask_b32 v%d, 0, 1.0, vcc' % vFLO)

def mark(a, cfg, k):
    if not cfg.get('prof'): return
    if cfg['prof'] == 3:
        if k not in (1, 2, 9, 100, 101, 102, 103, 104, 105, 106, 107): return
        if k >= 100: k = k - 100 + 3 if k < 104 else k - 104 + 10
        a('s_memtime s[76:77]')
        a('s_cmp_eq_u32 s%d, %d' % (sSTEP, cfg.get('pstep', 21)))
        a('s_waitcnt lgkmcnt(0)')
        a('s_cselect_b32 s%d, s76, s%d' % (80 + k, 80 + k))
        return
    if k >= 100: return
    if cfg['prof'] == 2:
        a('s_memrealtime s[76:77]')
        a('s_cmp_eq_u32 s%d, %d' % (sSTEP, 20 if k > 1 else 21))
        a('s_waitcnt lgkmcnt(0)')
        a('s_cselect_b32 s%d, s76, s%d' % (80 + k, 80 + k))
        return
    a('s_memtime s[76:77]')
    a('s_waitcnt lgkmcnt(0)')
    a('s_sub_u32 s78, s76, s79')
    a('s_add_u32 s%d, s%d, s78' % (80 + k, 80 + k))
    a('s_mov_b32 s79, s76')

def px_slot(a, dst, slotreg, base):
    a('s_lshr_b32 s%d, s%d, 1' % (sT3, slotreg))
    a('s_lshl_b32 s%d, s%d, 14' % (sT3, sT3))
    a('s_add_u32 s%d, s%d, s%d' % (sT3, sT3, base))
    a('s_and_b32 s%d, s%d, 1' % (dst, slotreg))
    a('s_lshl_b32 s%d, s%d, 12' % (dst, dst))
    a('s_add_u32 s%d, s%d, s%d' % (dst, dst, sT3))

def slot_off(a, dst, slotreg, shift, base):
    a('s_lshl_b32 s%d, s%d, %d' % (dst, slotreg, shift))
    a('s_add_u32 s%d, s%d, s%d' % (dst, dst, base))

SAFE = [False]
def st(a, regs, n, vaddr, soff, sc1=False):
    sc1 = sc1 or SAFE[0]
    a('buffer_store_dword%s %s, v%d, s[%d:%d], s%d offen%s' % ('x%d' % n if n > 1 else '', vr(regs, n), vaddr, sWS, sWS + 3, soff, ' sc1' if sc1 else ''))

def read_choice(a, cfg, bases):
    L = a.newlabel('ch'); D = a.newlabel('chd')
    a('v_mov_b32 v%d, 132' % (vT + 1))
    a.label(L)
    a('buffer_load_dword v%d, v%d, s[%d:%d], 0 offen sc1' % (vT, vT + 1, sDBG, sDBG + 3))
    a('s_waitcnt vmcnt(0)')
    a('v_readfirstlane_b32 s%d, v%d' % (sT0, vT))
    a('s_cmp_lg_u32 s%d, 0' % sT0)
    a('s_cbranch_scc1 %s' % D)
    a('s_add_u32 s%d, s%d, 1' % (sSPIN, sSPIN))
    a('s_cmp_lt_u32 s%d, 0x%x' % (sSPIN, SPIN_LIMIT))
    a('s_cbranch_scc1 %s' % L)
    a.label(D)
    if 'forcesel' in cfg: a('s_mov_b32 s%d, %d' % (sT0, cfg['forcesel']))
    a('s_and_b32 s%d, s%d, 1' % (sT1, sT0))
    a('s_lshl_b32 s%d, s%d, 13' % (sT1, sT1))
    a('s_add_u32 s%d, s%d, s%d' % (sPXR, sPXR, sT1))
    a('s_and_b32 s%d, s%d, 2' % (sT1, sT0))
    a('s_lshl_b32 s%d, s%d, 12' % (sT1, sT1))
    a('s_add_u32 s%d, s%d, s%d' % (sPX1, sPX1, sT1))

def phase_bc_old(a, w, cfg, Lend):
    g = cfg.get
    fused = g('fused', 0)
    mb = vSET + 64
    mb = vM
    def ml(T): return ['buffer_load_dwordx4 v[%d:%d], v%d, s[%d:%d], s%d offen offset:%d sc1' % (mb + 4 * T, mb + 4 * T + 3, vL16, sWS, sWS + 3, sA0, T * 1024)]
    def mc(T):
        if T == 3: mark(a, cfg, 3)
        mark(a, cfg, 100 + T)
        for tile in range(4):
            for b in range(2):
                c = '0' if T == 0 else vr(acc(tile, b), 4)
                a('v_mfma_f32_16x16x32_bf16 %s, %s, %s, %s' % (vr(acc(tile, b), 4), ar(wq_frag(tile, T, b), 4), vr(mb + 4 * T, 4), c))
    if g('pp2', 1):
        def m1(tile, T, b): return 'v_mfma_f32_16x16x32_bf16 %s, %s, %s, %s' % (vr(acc(tile, b), 4), ar(wq_frag(tile, T, b), 4), vr(mb + 4 * T, 4), '0' if T == 0 else vr(acc(tile, b), 4))
        def mm(T):
            if T < 2: return [m1(tile, T, b) for tile in range(4) for b in range(2)]
            if T == 2: return [m1(tile, 2, b) for tile in range(3) for b in range(2)]
            return [m1(tile, 3, b) for tile in range(2) for b in range(2)]
        ppoll2(a, 4, ml, lambda T: range(mb + 4 * T, mb + 4 * T + 4), mm, g('dly_m', 0), at=g('at_m', 2))
        rest = [m1(3, 2, 0), m1(3, 2, 1), m1(2, 3, 0), m1(2, 3, 1), m1(3, 3, 0), m1(3, 3, 1)]
        dq = ['v_add_f32_dpp v%d, v%d, v%d row_ror:8 row_mask:0xf bank_mask:0x3' % (vZ + i, acc(0, 1) + i, acc(0, 0) + i) for i in range(4)]
        dq += ['v_add_f32_dpp v%d, v%d, v%d row_ror:8 row_mask:0xf bank_mask:0xc' % (vZ + i, acc(1, 0) + i, acc(1, 1) + i) for i in range(4)]
        for n, x in enumerate(rest):
            a(x)
            if n >= 2:
                a(dq.pop(0)); a(dq.pop(0))
        if w != 0: a('ds_write_b128 v%d, v[%d:%d] offset:%d' % (vL16, vZ, vZ + 3, LDS_B + w * 1024))
    else:
        ppoll(a, 4, ml, lambda T: range(mb + 4 * T, mb + 4 * T + 4), mc, g('dly_m', 0))
        for i in range(4):
            a('v_add_f32_dpp v%d, v%d, v%d row_ror:8 row_mask:0xf bank_mask:0x3' % (vZ + i, acc(0, 1) + i, acc(0, 0) + i))
        for i in range(4):
            a('v_add_f32_dpp v%d, v%d, v%d row_ror:8 row_mask:0xf bank_mask:0xc' % (vZ + i, acc(1, 0) + i, acc(1, 1) + i))
        if w != 0: a('ds_write_b128 v%d, v[%d:%d] offset:%d' % (vL16, vZ, vZ + 3, LDS_B + w * 1024))
    for i in range(4):
        a('v_add_f32_dpp v%d, v%d, v%d row_ror:8 row_mask:0xf bank_mask:0x3' % (vZ + 4 + i, acc(2, 1) + i, acc(2, 0) + i))
    for i in range(4):
        a('v_add_f32_dpp v%d, v%d, v%d row_ror:8 row_mask:0xf bank_mask:0xc' % (vZ + 4 + i, acc(3, 0) + i, acc(3, 1) + i))
    if w != 1: a('ds_write_b128 v%d, v[%d:%d] offset:%d' % (vL16, vZ + 4, vZ + 7, LDS_B + 4096 + w * 1024))
    a('s_waitcnt lgkmcnt(0)')
    mark(a, cfg, 4)
    a('s_barrier')
    mark(a, cfg, 5)
    if w in (0, 1):
        z = vZ + 4 * w
        reduce3(a, z, LDS_B + 4096 * w, w)
        a('v_cvt_pk_bf16_f32 v%d, v%d, v%d' % (z, z, z + 1))
        a('v_cvt_pk_bf16_f32 v%d, v%d, v%d' % (z + 1, z + 2, z + 3))
        a('v_min_u32 v%d, -2, v%d' % (z, z))
        a('v_min_u32 v%d, -2, v%d' % (z + 1, z + 1))
        st(a, z, 2, vP8, sA2)
        st(a, vSENT, 2, vL8, sA3)
        if w == 1:
            slot_off(a, sT0, sSTEP, 16, sARC)
            st(a, z, 2, vP8, sT0, True)
    if w in (1, 2): st(a, vSENT, 1, vXM, sMP1)
    def qkl(c):
        return ['buffer_load_dwordx4 v[%d:%d], v%d, s[%d:%d], s%d offen offset:%d sc1' % (vSET + 8 * c + 4 * x, vSET + 8 * c + 4 * x + 3, vDup, sWS, sWS + 3, sT2, x * 2048 + c * 512) for x in range(2)]
    n = 0
    qk_at = g('qk_at', 16)
    for tile in (4, 5):
        for T in range(4):
            for b in range(2):
                if w == 3 and n >= qk_at and (n - qk_at) < 8 and (n - qk_at) % 2 == 0:
                    for ld in qkl((n - qk_at) // 2): a(ld)
                c = '0' if T == 0 else vr(acc(tile, b), 4)
                a('v_mfma_f32_16x16x32_bf16 %s, %s, %s, %s' % (vr(acc(tile, b), 4), vr(mb + 4 * T, 4), ar(wq_frag(tile, T, b), 4), c))
                n += 1
    qk_done = max(0, min(4, (16 - qk_at + 1) // 2))
    for i in range(4):
        a('v_permlane32_swap_b32 v%d, v%d' % (acc(4, 0) + i, acc(5, 0) + i))
        a('v_permlane32_swap_b32 v%d, v%d' % (acc(4, 1) + i, acc(5, 1) + i))
    for i in range(4):
        a('v_add_f32 v%d, v%d, v%d' % (vZ + 8 + i, acc(4, 0) + i, acc(5, 1) + i))
    a('ds_write_b128 v%d, v[%d:%d] offset:%d' % (vL16, vZ + 8, vZ + 11, LDS_B + 8192 + w * 1024))
    if w == 3:
        if qk_done < 4: delay(a, g('dly_qk', 0))
        for c in range(qk_done, 4):
            for ld in qkl(c): a(ld)
    a('s_waitcnt lgkmcnt(0)')
    mark(a, cfg, 6)
    a('s_barrier')
    mark(a, cfg, 7)
    if w in (2, 3):
        reduce3(a, vZ + 8, LDS_B + 8192, w)
        a('v_cvt_pk_bf16_f32 v%d, v%d, v%d' % (vZ + 8 if w == 2 else vVZ, vZ + 8, vZ + 9))
        a('v_cvt_pk_bf16_f32 v%d, v%d, v%d' % (vZ + 9 if w == 2 else vVZ + 1, vZ + 10, vZ + 11))
    if w == 2:
        slot_off(a, sT0, sSTEP, 16, sARC)
        st(a, vZ + 8, 2, vL8, sT0, True)
    a('s_cmp_eq_u32 s%d, 63' % sSTEP)
    a.branch('s_cbranch_scc1 %s' % Lend)
    if w == 2:
        a('s_add_u32 s%d, s%d, 0x40000' % (sKF, sKF))
        a('s_add_u32 s%d, s%d, 0x40000' % (sVF, sVF))
        if fused: ensure_gp(a, sSTEP, 2)
        prefetch_dma(a, fused)
    if w == 3:
        if fused:
            L0 = a.newlabel('kv0')
            a('s_cmp_lg_u32 s%d, 0' % sSTEP)
            a.branch('s_cbranch_scc1 %s' % L0)
            a('s_mov_b32 s%d, s%d' % (sP0, sT2))
            ensure_gp(a, None, 1)
            prefetch_kv(a, True)
            a('s_mov_b32 s%d, s%d' % (sT2, sP0))
            a('s_waitcnt vmcnt(0)')
            a.label(L0)
        def qkc(c):
            qb = vSET + 8 * c; ka = qb + 4
            if c == 3: mark(a, cfg, 8)
            for t, A in ((0, vKX + 4 * c), (1, vKX + 16 + 4 * c), (2, ka)):
                cc = '0' if c == 0 else vr(vS + 4 * t, 4)
                a('v_mfma_f32_16x16x32_bf16 %s, %s, %s, %s' % (vr(vS + 4 * t, 4), vr(A, 4), vr(qb, 4), cc))
        if g('pp2', 1):
            def qm(c): return ['v_mfma_f32_16x16x32_bf16 %s, %s, %s, %s' % (vr(vS + 4 * t, 4), vr(A, 4), vr(vSET + 8 * c, 4), '0' if c == 0 else vr(vS + 4 * t, 4)) for t, A in ((0, vKX + 4 * c), (1, vKX + 16 + 4 * c), (2, vSET + 8 * c + 4))]
            ppoll2(a, 4, qkl, lambda c: range(vSET + 8 * c, vSET + 8 * c + 8), qm, issued=True, at=1)
        else:
            ppoll(a, 4, qkl, lambda c: range(vSET + 8 * c, vSET + 8 * c + 8), qkc, issued=True)
        m, t2 = vT, vT + 1
        a('v_max3_f32 v%d, v%d, v%d, v%d' % (m, vS, vS + 1, vS + 2))
        a('v_max3_f32 v%d, v%d, v%d, v%d' % (t2, vS + 3, vS + 4, vS + 5))
        a('v_max3_f32 v%d, v%d, v%d, v%d' % (m, m, vS + 6, vS + 7))
        a('v_max3_f32 v%d, v%d, v%d, v%d' % (t2, t2, vS + 8, vS + 9))
        a('v_max3_f32 v%d, v%d, v%d, v%d' % (m, m, vS + 10, vS + 11))
        a('v_max_f32 v%d, v%d, v%d' % (m, m, t2))
        a('v_mov_b32 v%d, v%d' % (t2, m))
        a('v_permlane16_swap_b32 v%d, v%d' % (m, t2))
        a('v_max_f32 v%d, v%d, v%d' % (m, m, t2))
        a('v_mov_b32 v%d, v%d' % (t2, m))
        a('v_permlane32_swap_b32 v%d, v%d' % (m, t2))
        a('v_max_f32 v%d, v%d, v%d' % (m, m, t2))
        a('v_mul_f32 v%d, s%d, v%d' % (m, sC, m))
        for i in range(8):
            a('v_fma_f32 v%d, v%d, s%d, -v%d' % (vS + i, vS + i, sC, m))
            if i >= 1: a('v_exp_f32 v%d, v%d' % (vS + i - 1, vS + i - 1))
        a('v_fma_f32 v%d, v%d, s%d, -v%d' % (vS + 8, vS + 8, sC, m))
        a('v_exp_f32 v%d, v%d' % (vS + 7, vS + 7))
        for i in range(9, 12): a('v_fma_f32 v%d, v%d, s%d, -v%d' % (vS + i, vS + i, sC, m))
        for i in range(4):
            a('v_cvt_pk_bf16_f32 v%d, v%d, v%d' % (vP + i, vS + 2 * i, vS + 2 * i + 1))
        a('v_exp_f32 v%d, v%d' % (vS + 8, vS + 8))
        a('v_exp_f32 v%d, v%d' % (vS + 9, vS + 9))
        a('v_mfma_f32_16x16x32_bf16 %s, %s, %s, 0' % (vr(vO, 4), vr(vVX, 4), vr(vP, 4)))
        a('v_exp_f32 v%d, v%d' % (vS + 10, vS + 10))
        a('v_mfma_f32_16x16x32_bf16 %s, %s, %s, 0' % (vr(vO + 4, 4), vr(vVX + 4, 4), vr(vP, 4)))
        a('v_exp_f32 v%d, v%d' % (vS + 11, vS + 11))
        a('v_cvt_pk_bf16_f32 v%d, v%d, v%d' % (vP + 4, vS + 8, vS + 9))
        a('v_cvt_pk_bf16_f32 v%d, v%d, v%d' % (vP + 5, vS + 10, vS + 11))
        a('v_and_b32 v%d, v%d, v%d' % (vP + 6, vP + 4, vMLO))
        a('v_and_b32 v%d, v%d, v%d' % (vP + 7, vP + 5, vMLO))
        a('v_and_b32 v%d, v%d, v%d' % (vP + 8, vP + 4, vMHI))
        a('v_and_b32 v%d, v%d, v%d' % (vP + 9, vP + 5, vMHI))
        a('v_mfma_f32_16x16x16_bf16 %s, %s, %s, %s' % (vr(vO, 4), vr(vVZ, 2), vr(vP + 6, 2), vr(vO, 4)))
        sA, sB = vT, vT + 1
        pk_add(a, vS + 8, vS + 8, vS + 10)
        pk_add(a, vS, vS, vS + 2)
        a('v_mfma_f32_16x16x16_bf16 %s, %s, %s, %s' % (vr(vO + 4, 4), vr(vVZ, 2), vr(vP + 8, 2), vr(vO + 4, 4)))
        pk_add(a, vS + 4, vS + 4, vS + 6)
        a('v_add_f32 v%d, v%d, v%d' % (sB, vS + 8, vS + 9))
        pk_add(a, vS, vS, vS + 4)
        a('v_add_f32 v%d, v%d, v%d' % (sA, vS, vS + 1))
        a('v_fma_f32 v%d, v%d, v%d, v%d' % (sA, sB, vFLO, sA))
        a('v_mov_b32 v%d, v%d' % (sB, sA))
        a('v_permlane16_swap_b32 v%d, v%d' % (sA, sB))
        a('v_add_f32 v%d, v%d, v%d' % (sA, sA, sB))
        a('v_mov_b32 v%d, v%d' % (sB, sA))
        a('v_permlane32_swap_b32 v%d, v%d' % (sA, sB))
        a('v_add_f32 v%d, v%d, v%d' % (sA, sA, sB))
        a('v_rcp_f32 v%d, v%d' % (sA, sA))
        a('v_mov_b32 v%d, v%d' % (sB, sA))
        for i in range(4):
            a('v_pk_mul_f32 v[%d:%d], v[%d:%d], v[%d:%d]' % (vO + 2 * i, vO + 2 * i + 1, vO + 2 * i, vO + 2 * i + 1, sA, sB))
        for i in range(4):
            a('v_cvt_pk_bf16_f32 v%d, v%d, v%d' % (vO + i, vO + 2 * i, vO + 2 * i + 1))
        for i in range(4):
            a('v_min_u32 v%d, -2, v%d' % (vO + i, vO + i))
        st(a, vO, 4, vDup, sA2)

def phase_bc_eq(a, w, cfg, Lend):
    g = cfg.get
    fused = g('fused', 0)
    mb = vM
    vMX, vSX = 237, 238
    def ml(T): return ['buffer_load_dwordx4 v[%d:%d], v%d, s[%d:%d], s%d offen offset:%d sc1' % (mb + 4 * T, mb + 4 * T + 3, vL16, sWS, sWS + 3, sA0, T * 1024)]
    def mf(tile, T, b):
        c = '0' if T == 0 else vr(acc(tile, b), 4)
        W = ar(wq_frag(tile, T, b), 4); M = vr(mb + 4 * T, 4)
        return 'v_mfma_f32_16x16x32_bf16 %s, %s, %s, %s' % (vr(acc(tile, b), 4), W if tile < 4 else M, M if tile < 4 else W, c)
    def mc(T):
        if T == 3: mark(a, cfg, 3)
        for tile in range(2):
            for b in range(2): a(mf(tile, T, b))
    ppoll(a, 4, ml, lambda T: range(mb + 4 * T, mb + 4 * T + 4), mc, g('dly_m', 0))
    def qkl(n):
        return ['buffer_load_dwordx4 v[%d:%d], v%d, s[%d:%d], s%d offen offset:%d sc1' % (vSET + 4 * n, vSET + 4 * n + 3, vDup, sWS, sWS + 3, sT2, n * 512)]
    def stream(t0, pt0, z, ldsoff, red_wave, extra):
        fill = {k: [] for k in range(16)}
        dpp = []
        for i in range(4): dpp.append('v_add_f32_dpp v%d, v%d, v%d row_ror:8 row_mask:0xf bank_mask:0x3' % (z + i, acc(pt0, 1) + i, acc(pt0, 0) + i))
        for i in range(4): dpp.append('v_add_f32_dpp v%d, v%d, v%d row_ror:8 row_mask:0xf bank_mask:0xc' % (z + i, acc(pt0 + 1, 0) + i, acc(pt0 + 1, 1) + i))
        for n, x in enumerate(dpp): fill[1 + n // 3].append(x)
        if w != red_wave: fill[4].append('ds_write_b128 v%d, v[%d:%d] offset:%d' % (vL16, z, z + 3, ldsoff + w * 1024))
        fill[6] += ['s_waitcnt lgkmcnt(0)', 's_barrier']
        if w == red_wave:
            others = [x for x in range(4) if x != w]
            for n, o in enumerate(others):
                fill[6].append('ds_read_b128 v[%d:%d], v%d offset:%d' % (vR + 4 * n, vR + 4 * n + 3, vL16, ldsoff + o * 1024))
            pk = lambda d, x, y: 'v_pk_add_f32 v[%d:%d], v[%d:%d], v[%d:%d]' % (d, d + 1, x, x + 1, y, y + 1)
            fill[9] += ['s_waitcnt lgkmcnt(0)', pk(z, z, vR), pk(z + 2, z + 2, vR + 2), pk(vR + 4, vR + 4, vR + 8), pk(vR + 6, vR + 6, vR + 10)]
            fill[10] += [pk(z, z, vR + 4), pk(z + 2, z + 2, vR + 6), 'v_cvt_pk_bf16_f32 v%d, v%d, v%d' % (z, z, z + 1), 'v_cvt_pk_bf16_f32 v%d, v%d, v%d' % (z + 1, z + 2, z + 3)]
            fill[11] += ['v_min_u32 v%d, -2, v%d' % (z, z), 'v_min_u32 v%d, -2, v%d' % (z + 1, z + 1), ('st', z)]
        for k, x in extra.items(): fill[k] += x
        n = 0
        for T in range(4):
            for tile in (t0, t0 + 1):
                for b in range(2):
                    a(mf(tile, T, b))
                    for x in fill[n]:
                        if isinstance(x, tuple):
                            st(a, z, 2, vP8, sA2); st(a, vSENT, 2, vL8, sA3)
                            if w == 1:
                                slot_off(a, sT0, sSTEP, 16, sARC)
                                st(a, z, 2, vP8, sT0, True)
                        else: a(x)
                    n += 1
    stream(2, 0, vZ, LDS_B, 0, {})
    mark(a, cfg, 5)
    q_at = g('q_at', 8)
    ex = {}
    if w == 3:
        for c in range(4): ex.setdefault(min(15, q_at + c), []).extend(qkl(c))
    stream(4, 2, vZ + 4, LDS_B + 4096, 1, ex)
    for i in range(4):
        a('v_permlane32_swap_b32 v%d, v%d' % (acc(4, 0) + i, acc(5, 0) + i))
        a('v_permlane32_swap_b32 v%d, v%d' % (acc(4, 1) + i, acc(5, 1) + i))
    for i in range(4):
        a('v_add_f32 v%d, v%d, v%d' % (vZ + 8 + i, acc(4, 0) + i, acc(5, 1) + i))
    a('ds_write_b128 v%d, v[%d:%d] offset:%d' % (vL16, vZ + 8, vZ + 11, LDS_B + 8192 + w * 1024))
    a('s_waitcnt lgkmcnt(0)')
    mark(a, cfg, 6)
    a('s_barrier')
    mark(a, cfg, 7)
    if w == 3:
        delay(a, g('dly_k', 0))
        for c in range(4, 8):
            for ld in qkl(c): a(ld)
    if w in (2, 3):
        reduce3(a, vZ + 8, LDS_B + 8192, w)
        a('v_cvt_pk_bf16_f32 v%d, v%d, v%d' % (vZ + 8 if w == 2 else vVZ, vZ + 8, vZ + 9))
        a('v_cvt_pk_bf16_f32 v%d, v%d, v%d' % (vZ + 9 if w == 2 else vVZ + 1, vZ + 10, vZ + 11))
    if w == 2:
        slot_off(a, sT0, sSTEP, 16, sARC)
        st(a, vZ + 8, 2, vL8, sT0, True)
    a('s_cmp_eq_u32 s%d, 63' % sSTEP)
    a.branch('s_cbranch_scc1 %s' % Lend)
    if w == 2:
        a('s_add_u32 s%d, s%d, 0x40000' % (sKF, sKF))
        a('s_add_u32 s%d, s%d, 0x40000' % (sVF, sVF))
        if fused: ensure_gp(a, sSTEP, 2)
        prefetch_dma(a, fused)
    if w != 3: return
    if fused:
        L0 = a.newlabel('kv0')
        a('s_cmp_lg_u32 s%d, 0' % sSTEP)
        a.branch('s_cbranch_scc1 %s' % L0)
        a('s_mov_b32 s%d, s%d' % (sP0, sT2))
        ensure_gp(a, None, 1)
        prefetch_kv(a, True)
        a('s_mov_b32 s%d, s%d' % (sT2, sP0))
        a('s_waitcnt vmcnt(0)')
        a.label(L0)
    t2 = vT + 2; t3 = vT + 3
    def qkc(n):
        if n < 4:
            for t, A in ((0, vKX + 4 * n), (1, vKX + 16 + 4 * n)):
                a('v_mfma_f32_16x16x32_bf16 %s, %s, %s, %s' % (vr(vS + 4 * t, 4), vr(A, 4), vr(vSET + 4 * n, 4), '0' if n == 0 else vr(vS + 4 * t, 4)))
        else:
            c = n - 4
            if c == 3: mark(a, cfg, 8)
            a('v_mfma_f32_16x16x32_bf16 %s, %s, %s, %s' % (vr(vS + 8, 4), vr(vSET + 4 * n, 4), vr(vSET + 4 * c, 4), '0' if c == 0 else vr(vS + 8, 4)))
        if n == 3:
            a('v_max3_f32 v%d, v%d, v%d, v%d' % (vMX, vS, vS + 1, vS + 2))
            a('v_max3_f32 v%d, v%d, v%d, v%d' % (t2, vS + 3, vS + 4, vS + 5))
            a('v_max3_f32 v%d, v%d, v%d, v%d' % (vMX, vMX, vS + 6, vS + 7))
            a('v_max_f32 v%d, v%d, v%d' % (vMX, vMX, t2))
            for sw in ('v_permlane16_swap_b32', 'v_permlane32_swap_b32'):
                a('v_mov_b32 v%d, v%d' % (t2, vMX))
                a('%s v%d, v%d' % (sw, vMX, t2))
                a('v_max_f32 v%d, v%d, v%d' % (vMX, vMX, t2))
            a('v_mul_f32 v%d, s%d, v%d' % (vMX, sC, vMX))
            for i in range(8):
                a('v_fma_f32 v%d, v%d, s%d, -v%d' % (vS + i, vS + i, sC, vMX))
                if i >= 1: a('v_exp_f32 v%d, v%d' % (vS + i - 1, vS + i - 1))
            a('v_exp_f32 v%d, v%d' % (vS + 7, vS + 7))
            for i in range(4): a('v_cvt_pk_bf16_f32 v%d, v%d, v%d' % (vP + i, vS + 2 * i, vS + 2 * i + 1))
            pk_add(a, vS, vS, vS + 2)
            a('v_mfma_f32_16x16x32_bf16 %s, %s, %s, 0' % (vr(vO, 4), vr(vVX, 4), vr(vP, 4)))
            pk_add(a, vS + 4, vS + 4, vS + 6)
            a('v_mfma_f32_16x16x32_bf16 %s, %s, %s, 0' % (vr(vO + 4, 4), vr(vVX + 4, 4), vr(vP, 4)))
            pk_add(a, vS, vS, vS + 4)
            a('v_add_f32 v%d, v%d, v%d' % (vSX, vS, vS + 1))
            for sw in ('v_permlane16_swap_b32', 'v_permlane32_swap_b32'):
                a('v_mov_b32 v%d, v%d' % (t2, vSX))
                a('%s v%d, v%d' % (sw, vSX, t2))
                a('v_add_f32 v%d, v%d, v%d' % (vSX, vSX, t2))
    ppoll(a, 8, qkl, lambda n: range(vSET + 4 * n, vSET + 4 * n + 4), qkc, issued=True)
    m = vT; al = vT + 1
    a('v_max3_f32 v%d, v%d, v%d, v%d' % (m, vS + 8, vS + 9, vS + 10))
    a('v_max_f32 v%d, v%d, v%d' % (m, m, vS + 11))
    a('v_mov_b32 v%d, v%d' % (t2, m))
    a('v_permlane16_swap_b32 v%d, v%d' % (m, t2))
    a('v_max_f32 v%d, v%d, v%d' % (m, m, t2))
    a('v_mul_f32 v%d, s%d, v%d' % (m, sC, m))
    a('v_max_f32 v%d, v%d, v%d' % (m, m, vMX))
    for i in range(4): a('v_fma_f32 v%d, v%d, s%d, -v%d' % (vS + 8 + i, vS + 8 + i, sC, m))
    a('v_sub_f32 v%d, v%d, v%d' % (al, vMX, m))
    for i in range(4): a('v_exp_f32 v%d, v%d' % (vS + 8 + i, vS + 8 + i))
    a('v_exp_f32 v%d, v%d' % (al, al))
    a('v_cvt_pk_bf16_f32 v%d, v%d, v%d' % (vP + 4, vS + 8, vS + 9))
    a('v_cvt_pk_bf16_f32 v%d, v%d, v%d' % (vP + 5, vS + 10, vS + 11))
    a('v_and_b32 v%d, v%d, v%d' % (vP + 6, vP + 4, vMLO))
    a('v_and_b32 v%d, v%d, v%d' % (vP + 7, vP + 5, vMLO))
    a('v_and_b32 v%d, v%d, v%d' % (vP + 8, vP + 4, vMHI))
    a('v_and_b32 v%d, v%d, v%d' % (vP + 9, vP + 5, vMHI))
    a('v_mfma_f32_16x16x16_bf16 %s, %s, %s, 0' % (vr(vS, 4), vr(vVZ, 2), vr(vP + 6, 2)))
    pk_add(a, vS + 8, vS + 8, vS + 10)
    a('v_mfma_f32_16x16x16_bf16 %s, %s, %s, 0' % (vr(vS + 4, 4), vr(vVZ, 2), vr(vP + 8, 2)))
    a('v_add_f32 v%d, v%d, v%d' % (m, vS + 8, vS + 9))
    a('v_mov_b32 v%d, v%d' % (t2, m))
    a('v_permlane16_swap_b32 v%d, v%d' % (m, t2))
    a('v_add_f32 v%d, v%d, v%d' % (m, m, t2))
    a('v_fma_f32 v%d, v%d, v%d, v%d' % (m, vSX, al, m))
    a('v_rcp_f32 v%d, v%d' % (t2, m))
    a('v_mul_f32 v%d, v%d, v%d' % (m, al, t2))
    a('v_mov_b32 v%d, v%d' % (t3, t2))
    a('v_mov_b32 v%d, v%d' % (al, m))
    for i in range(4):
        a('v_pk_mul_f32 v[%d:%d], v[%d:%d], v[%d:%d]' % (vO + 2 * i, vO + 2 * i + 1, vO + 2 * i, vO + 2 * i + 1, m, al))
    for i in range(4):
        a('v_pk_fma_f32 v[%d:%d], v[%d:%d], v[%d:%d], v[%d:%d]' % (vO + 2 * i, vO + 2 * i + 1, vS + 2 * i, vS + 2 * i + 1, t2, t3, vO + 2 * i, vO + 2 * i + 1))
    for i in range(4): a('v_cvt_pk_bf16_f32 v%d, v%d, v%d' % (vO + i, vO + 2 * i, vO + 2 * i + 1))
    for i in range(4): a('v_min_u32 v%d, -2, v%d' % (vO + i, vO + i))
    st(a, vO, 4, vDup, sA2)
    st(a, vSENT, 2, vL8, sA3)

def wave_loop(a, w, cfg):
    Lloop = 'r_loop_w%d' % w
    Lend = 'r_end_w%d' % w
    g = cfg.get
    a('s_lshl_b32 s%d, s%d, 16' % (sT0, sRX))
    a('s_add_u32 s%d, s%d, 0x%x' % (sMXR, sT0, MX_OFF + w * 4096))
    a('s_lshl_b32 s%d, s%d, 9' % (sT1, sI))
    a('s_add_u32 s%d, s%d, s%d' % (sT2, sT0, sT1))
    a('s_add_u32 s%d, s%d, 0x%x' % (sMXW, sT2, MX_OFF))
    a('s_add_u32 s%d, s%d, 0x%x' % (sOXR, sT0, OX_OFF + w * 4096))
    a('s_add_u32 s%d, s%d, 0x%x' % (sOXW, sT2, OX_OFF))
    a('s_lshl_b32 s%d, s%d, 17' % (sT0, sRX))
    a('s_lshr_b32 s%d, s%d, 2' % (sT1, sI))
    a('s_lshl_b32 s%d, s%d, 12' % (sT1, sT1))
    a('s_add_u32 s%d, s%d, s%d' % (sT0, sT0, sT1))
    a('s_add_u32 s%d, s%d, 0x%x' % (sQKR, sT0, QKX_OFF))
    a('s_lshl_b32 s%d, s%d, 9' % (sT1, sJ))
    a('s_add_u32 s%d, s%d, s%d' % (sQKW, sQKR, sT1))
    if w == 1: a('s_add_u32 s%d, s%d, 2048' % (sQKW, sQKW))
    a('s_lshl_b32 s%d, s%d, 16' % (sT0, sI))
    a('s_add_u32 s%d, s%d, 0x%x' % (sPXR, sT0, PX_OFF))
    if w == 0:
        a('s_lshl_b32 s%d, s%d, 10' % (sT1, sRX))
        a('s_add_u32 s%d, s%d, s%d' % (sPXR, sPXR, sT1))
    a('s_add_u32 s%d, s%d, 0x%x' % (sPX1, sPXR, 2 * MB))
    a('v_add_u32 v%d, 0x1000, v%d' % (vL16B, vL16))
    a('s_lshl_b32 s%d, s%d, 11' % (sT0, sH))
    a('s_lshl_b32 s%d, s%d, 9' % (sT1, sJ))
    a('s_add_u32 s%d, s%d, s%d' % (sT0, sT0, sT1))
    a('s_add_u32 s%d, s%d, 0x%x' % (sARC, sT0, KM_OFF if w == 1 else VM_OFF))
    a('s_lshl_b32 s%d, s%d, 13' % (sT0, sH))
    a('s_add_u32 s%d, s%d, 0x%x' % (sKF, sT0, KF_OFF))
    a('s_lshl_b32 s%d, s%d, 11' % (sT1, sJ))
    a('s_add_u32 s%d, s%d, s%d' % (sT0, sT0, sT1))
    a('s_add_u32 s%d, s%d, 0x%x' % (sVF, sT0, VF_OFF))
    a('s_mov_b32 s%d, 0x%x' % (sC, cfg['cbits']))
    a('s_mov_b32 s%d, 0x7fffffff' % sP0)
    a('s_mov_b32 s%d, 0x7fffffff' % sP1)
    a('s_mov_b32 s%d, 0x7fffffff' % sP2)
    a('s_mov_b32 s%d, 0x7fffffff' % sP3)
    for slot in range(4):
        if w == 0:
            a('s_add_u32 s%d, s%d, 0x%x' % (sT0, sQKW, slot * 32768)); st(a, vSENT, 2, vL8, sT0)
            a('s_add_u32 s%d, s%d, 0x%x' % (sT0, sQKW, slot * 32768 + 2048)); st(a, vSENT, 2, vL8, sT0)
            for reg in range(2 if g('xcopy', 1) else 1):
                for q4 in (range(4) if g('xcopy', 1) else (0, 2)):
                    a('s_add_u32 s%d, s%d, 0x%x' % (sT0, sPXR, reg * 2 * MB + slot * 16384 + q4 * 4096)); st(a, vSENT, 4, vL16, sT0, True)
            a('s_add_u32 s%d, s%d, 0x%x' % (sT0, sMXW, slot * 16384)); st(a, vSENT, 2, vL8, sT0)
            a('s_add_u32 s%d, s%d, 0x%x' % (sT0, sOXW, slot * 16384)); st(a, vSENT, 2, vL8, sT0)
    fused = g('fused', 0)
    if w == 3 and not fused:
        prefetch_kv(a)
    if w == 0 and fused:
        a('s_lshl_b32 s%d, s%d, 8' % (sT0, sH))
        a('s_lshl_b32 s%d, s%d, 2' % (sT1, sJ))
        a('s_add_u32 s%d, s%d, s%d' % (sT0, sT0, sT1))
        a('s_add_u32 s%d, s%d, 0x%x' % (sARC, sT0, PROG_OFF))
        publish_prog(a, None, 0)
    if w in (1, 2):
        xa = w - 1
        a('v_add_u32 v%d, %d, v%d' % (vT, 64 * xa, vL))
        a('v_lshlrev_b32 v%d, 3, v%d' % (vXA, vT))
        a('v_add_u32 v%d, 0x1000, v%d' % (vXAB, vXA))
        a('v_lshrrev_b32 v%d, 1, v%d' % (vT + 1, vT))
        a('v_and_b32 v%d, 7, v%d' % (vT + 2, vT + 1))
        a('v_lshrrev_b32 v%d, 4, v%d' % (vT + 3, vT + 1))
        a('v_lshl_add_u32 v%d, v%d, 3, v%d' % (vXM, vT + 3, vT + 2))
        a('v_lshlrev_b32 v%d, 4, v%d' % (vXM, vXM))
        a('v_bfe_u32 v%d, v%d, 3, 1' % (vT + 3, vT + 1))
        a('v_lshl_add_u32 v%d, v%d, 3, v%d' % (vXM, vT + 3, vXM))
        a('v_and_b32 v%d, 1, v%d' % (vT + 3, vL))
        a('v_lshl_add_u32 v%d, v%d, 2, v%d' % (vXM, vT + 3, vXM))
        a('v_lshrrev_b32 v%d, 3, v%d' % (vT + 1, vT + 1))
        a('v_lshlrev_b32 v%d, 3, v%d' % (vT + 1, vT + 1))
        a('v_lshl_add_u32 v%d, v%d, 2, v%d' % (vT + 1, vT + 3, vT + 1))
        a('v_lshl_add_u32 v%d, v%d, 11, v%d' % (vT, vT + 2, vT + 1))
        a('s_lshl_b32 s%d, s%d, 6' % (sT0, sI))
        a('buffer_load_dword v%d, v%d, s[%d:%d], s%d offen' % (vXR, vT, sM0, sM0 + 3, sT0))
        a('v_mov_b32 v%d, 0' % vZERO)
        a('v_mov_b32 v%d, 0' % (vZERO + 1))
    def arr():
        if w == 0:
            a('s_waitcnt vmcnt(16)')
            dbg_arrive(a, sDBG, DB_INIT2 if g('safe') else DB_INIT, vR)
    if g('st3'): rstamp(a, 0)
    load_weights(a, hook=arr)
    if g('st3'): rstamp(a, 4)
    transpose_weights(a, st=g('st3'))
    if g('st3'): rstamp(a, 2)
    a('s_barrier')
    if fused:
        init_wait(a, sDBG, cfg, vT, sSPIN, sT0)
    elif w == 0:
        dbg_wait(a, sDBG, DB_INIT, 128, vT, sSPIN)
    a('s_mov_b32 s%d, 0' % sGP)
    a('s_mov_b32 s%d, %d' % (sXD, g('adx_init', 160)))
    a('s_barrier')
    a('s_mov_b32 s%d, 0' % sSTEP)
    if g('stamp'): a('s_memrealtime s[70:71]')
    if w == 3: dbgt(a, cfg, 9)
    if g('prof'):
        for k in range(16): a('s_mov_b32 s%d, 0' % (80 + k))
        a('s_memtime s[76:77]')
        a('s_waitcnt lgkmcnt(0)')
        a('s_mov_b32 s79, s76')
    a.label(Lloop)
    a('s_and_b32 s%d, s%d, 3' % (sSLOT, sSTEP))
    a('s_add_u32 s%d, s%d, 2' % (sSLOT2, sSTEP))
    a('s_and_b32 s%d, s%d, 3' % (sSLOT2, sSLOT2))
    slot_off(a, sA0, sSLOT, 14, sMXR)
    slot_off(a, sA1, sSLOT, 14, sOXR)
    if w in (1, 2):
        Lpub = a.newlabel('apub'); Lns = a.newlabel('nosw')
        slot_off(a, sMP0, sSLOT, 14, sMXW)
        slot_off(a, sMP1, sSLOT2, 14, sMXW)
        if w == 1:
            slot_off(a, sA2, sSLOT, 15, sQKW)
            slot_off(a, sA3, sSLOT2, 15, sQKW)
        a('s_cmp_eq_u32 s%d, 0' % sSTEP)
        a.branch('s_cbranch_scc1 %s' % Lpub)
        a('s_cmp_lg_u32 s%d, %d' % (sSTEP, SWITCH))
        a.branch('s_cbranch_scc1 %s' % Lns)
        read_choice(a, cfg, None)
        a.label(Lns)
        for reg, base in ((0, sPXR), (1, sPX1)):
            slot_off(a, sT0, sSLOT, 14, base)
            a('s_add_u32 s%d, s%d, s%d' % (sXB + 2 * reg, sWS, sT0))
            a('s_addc_u32 s%d, s%d, 0' % (sXB + 2 * reg + 1, sWS + 1))
        def xl(k):
            cp = k if g('xcopy', 1) else 0
            return ['global_load_dwordx2 v[%d:%d], v%d, s[%d:%d] offset:%d sc1' % (vX + 8 * k + 2 * p, vX + 8 * k + 2 * p + 1, vXAB if cp & 1 else vXA, sXB + 2 * (cp >> 1), sXB + 2 * (cp >> 1) + 1, p * 1024) for p in range(4)]
        def xc(k):
            b = vX + 8 * k
            pk_add(a, b, b, b + 2); pk_add(a, b + 4, b + 4, b + 6)
            pk_add(a, b, b, b + 4)
            a('v_cvt_pk_bf16_f32 v%d, v%d, v%d' % (vXR, b, b + 1))
        if g('fa', 1):
            XR = a.newlabel('xr'); XW = a.newlabel('xw')
            if g('adx', 0):
                XD = a.newlabel('xd')
                a('s_sub_u32 s%d, s%d, %d' % (sXD, sXD, g('adx_dn', 1)))
                a('s_max_u32 s%d, s%d, %d' % (sXD, sXD, g('adx_min', 64)))
                a('s_lshr_b32 s%d, s%d, 4' % (sT1, sXD))
                a.label(XD, fence=False)
                a('s_nop 7')
                a('s_sub_u32 s%d, s%d, 1' % (sT1, sT1))
                a('s_cbranch_scc0 %s' % XD)
                a('s_mov_b32 s%d, 1' % sT2)
            else:
                delay(a, g('dly_x', 0))
            for ld in xl(0): a(ld)
            a.label(XW, fence=False)
            b = vX; t = vX + 8
            a('s_waitcnt vmcnt(0)')
            a('v_max3_u32 v%d, v%d, v%d, v%d' % (vT, b, b + 1, b + 2))
            pk_add(a, t, b, b + 2)
            a('v_max3_u32 v%d, v%d, v%d, v%d' % (vT + 1, b + 3, b + 4, b + 5))
            pk_add(a, t + 2, b + 4, b + 6)
            a('v_max3_u32 v%d, v%d, v%d, v%d' % (vT, vT, b + 6, b + 7))
            pk_add(a, t, t, t + 2)
            a('v_max_u32 v%d, v%d, v%d' % (vT, vT, vT + 1))
            a('v_cvt_pk_bf16_f32 v%d, v%d, v%d' % (vXR, t, t + 1))
            a('v_cmp_eq_u32 vcc, -1, v%d' % vT)
            a('s_cbranch_vccnz %s' % XR)
            def xcold():
                a.label(XR)
                for ld in xl(0): a(ld)
                if g('adx', 0):
                    a('s_mul_i32 s%d, s%d, %d' % (sT1, sT2, g('adx_up', 16)))
                    a('s_add_u32 s%d, s%d, s%d' % (sXD, sXD, sT1))
                    a('s_min_u32 s%d, s%d, %d' % (sXD, sXD, g('adx_max', 400)))
                    a('s_mov_b32 s%d, 0' % sT2)
                a('s_add_u32 s%d, s%d, 1' % (sSPIN, sSPIN))
                a('s_cmp_lt_u32 s%d, 0x%x' % (sSPIN, SPIN_LIMIT))
                a('s_cbranch_scc1 %s' % XW)
                a('s_branch %s' % Lpub)
            COLD.append(xcold)
            mark(a, cfg, 0)
            a.label(Lpub, fence=False)
        else:
            spoll(a, g('ns_x', 4), xl, lambda k: range(vX + 8 * k, vX + 8 * k + 8), xc, g('dly_x', 0), g('gap_x', 8))
            mark(a, cfg, 0)
            a.label(Lpub)
        a('v_min_u32 v%d, -2, v%d' % (vXR, vXR))
        st(a, vXR, 1, vXM, sMP0)
    if w == 0:
        slot_off(a, sA2, sSLOT, 15, sQKW)
        slot_off(a, sA3, sSLOT2, 15, sQKW)
    if w == 3:
        slot_off(a, sA2, sSLOT, 14, sOXW)
        slot_off(a, sA3, sSLOT2, 14, sOXW)
        slot_off(a, sT2, sSLOT, 15, sQKR)
    mark(a, cfg, 1)
    a('s_barrier')
    mark(a, cfg, 2)
    mb = vM
    if g('eq', 0):
        phase_bc_eq(a, w, cfg, Lend)
    else:
        phase_bc_old(a, w, cfg, Lend)
    if w == 0:
        if fused: publish_prog(a, sSTEP, 0)
        Lns = a.newlabel('nosw')
        a('s_cmp_lg_u32 s%d, %d' % (sSTEP, SWITCH - 1))
        a.branch('s_cbranch_scc1 %s' % Lns)
        read_choice(a, cfg, None)
        a.label(Lns)
        a('s_add_u32 s%d, s%d, 1' % (sT2, sSTEP))
        a('s_and_b32 s%d, s%d, 3' % (sT2, sT2))
        slot_off(a, sA2, sT2, 14, sPXR)
        slot_off(a, sA3, sT2, 14, sPX1)
        a('s_add_u32 s%d, s%d, 3' % (sT2, sSTEP))
        a('s_and_b32 s%d, s%d, 3' % (sT2, sT2))
        slot_off(a, sXB, sT2, 14, sPXR)
        slot_off(a, sXB + 1, sT2, 14, sPX1)
        K = g('ns_x', 4) if g('xcopy', 1) else 1
        for cp in range(K): st(a, vSENT, 4, vL16B if cp & 1 else vL16, sXB + (cp >> 1), True)
    mark(a, cfg, 9)
    a('s_barrier')
    mark(a, cfg, 10)
    def ol(u): return ['buffer_load_dwordx4 v[%d:%d], v%d, s[%d:%d], s%d offen offset:%d sc1' % (mb + 4 * u, mb + 4 * u + 3, vOD, sWS, sWS + 3, sA1, u * 1024)]
    def oc(u):
        if u == 3: mark(a, cfg, 11)
        mark(a, cfg, 104 + u)
        for tau in range(2):
            for b in range(2):
                c = '0' if u == 0 else vr(acc(tau, b), 4)
                a('v_mfma_f32_16x16x32_bf16 %s, %s, %s, %s' % (vr(acc(tau, b), 4), ar(wo_frag(tau, u, b), 4), vr(mb + 4 * u, 4), c))
    if g('pp2', 1):
        def o1(tau, u, b): return 'v_mfma_f32_16x16x32_bf16 %s, %s, %s, %s' % (vr(acc(tau, b), 4), ar(wo_frag(tau, u, b), 4), vr(mb + 4 * u, 4), '0' if u == 0 else vr(acc(tau, b), 4))
        def om(u): return [o1(tau, u, b) for tau in range(2) for b in range(2)]
        ppoll2(a, 4, ol, lambda u: range(mb + 4 * u, mb + 4 * u + 4), om, g('dly_o', 0), at=g('at_o', 1))
    else:
        ppoll(a, 4, ol, lambda u: range(mb + 4 * u, mb + 4 * u + 4), oc, g('dly_o', 0))
    if w == 3 and not g('eq', 0): st(a, vSENT, 2, vL8, sA3)
    for i in range(4):
        a('v_add_f32_dpp v%d, v%d, v%d row_ror:8 row_mask:0xf bank_mask:0x3' % (vZ + 12 + i, acc(0, 1) + i, acc(0, 0) + i))
    for i in range(4):
        a('v_add_f32_dpp v%d, v%d, v%d row_ror:8 row_mask:0xf bank_mask:0xc' % (vZ + 12 + i, acc(1, 0) + i, acc(1, 1) + i))
    if w != 0: a('ds_write_b128 v%d, v[%d:%d] offset:%d' % (vL16, vZ + 12, vZ + 15, LDS_D + w * 1024))
    a('s_waitcnt lgkmcnt(0)')
    mark(a, cfg, 12)
    a('s_barrier')
    mark(a, cfg, 13)
    if w == 0:
        z = vZ + 12
        reduce3(a, z, LDS_D, 0)
        for i in range(4): a('v_min_u32 v%d, -2, v%d' % (z + i, z + i))
        K = g('ns_x', 4) if g('xcopy', 1) else 1
        for cp in range(K): st(a, z, 4, vL16B if cp & 1 else vL16, sA2 + (cp >> 1), True)
    if w == 0:
        Lnp = a.newlabel('noprobe'); Lpb = a.newlabel('pubch')
        a('s_or_b32 s%d, s%d, s%d' % (sT0, sRX, sI))
        a('s_cmp_lg_u32 s%d, 0' % sT0)
        a.branch('s_cbranch_scc1 %s' % Lnp)
        a('s_cmp_gt_u32 s%d, 3' % sSTEP)
        a.branch('s_cbranch_scc1 %s' % Lnp)
        a('s_cmp_eq_u32 s%d, 3' % sSTEP)
        a.branch('s_cbranch_scc1 %s' % Lpb)
        a('s_waitcnt vmcnt(0)')
        a('s_sleep 2')
        a('s_mov_b32 s%d, s%d' % (sA2, sXB))
        for n in range(2):
            a('s_add_u32 s%d, s%d, %d' % (sT1, sSTEP, n))
            a('s_and_b32 s%d, s%d, 1' % (sT1, sT1))
            a('s_lshl_b32 s%d, s%d, 13' % (sT0, sT1))
            a('s_add_u32 s%d, s%d, s%d' % (sT0, sT0, sA2))
            a('s_memtime s[96:97]')
            a('s_waitcnt lgkmcnt(0)')
            st(a, vSENT, 4, vL16, sT0, True)
            a('s_waitcnt vmcnt(0)')
            a('s_memtime s[98:99]')
            a('s_waitcnt lgkmcnt(0)')
            a('s_sub_u32 s%d, s98, s96' % sT3)
            for cnd, reg in enumerate((sP0, sP1, sP2, sP3)):
                a('s_min_u32 s%d, s%d, s%d' % (sT0, reg, sT3))
                a('s_cmp_eq_u32 s%d, %d' % (sT1, cnd))
                a('s_cselect_b32 s%d, s%d, s%d' % (reg, sT0, reg))
        a.branch('s_branch %s' % Lnp)
        a.label(Lpb)
        a('s_cmp_lt_u32 s%d, s%d' % (sP1, sP0))
        a('s_cselect_b32 s%d, 5, 4' % sT0)
        a('s_cmp_lt_u32 s%d, s%d' % (sP3, sP2))
        a('s_cselect_b32 s%d, 2, 0' % sT1)
        a('s_or_b32 s%d, s%d, s%d' % (sT0, sT0, sT1))
        a('v_mov_b32 v%d, s%d' % (vT, sT0))
        a('v_mov_b32 v%d, 132' % (vT + 1))
        a('s_mov_b64 exec, 1')
        a('buffer_store_dword v%d, v%d, s[%d:%d], 0 offen sc1' % (vT, vT + 1, sDBG, sDBG + 3))
        a('s_mov_b64 exec, -1')
        a.label(Lnp)
    if w == 3:
        for n in range(10):
            a('ds_read_b128 v[%d:%d], v%d offset:%d' % (vKX + 4 * n, vKX + 4 * n + 3, vL16, LDS_KV + n * 1024))
    if g('tl') and w == 3:
        Lt = a.newlabel('tl')
        a('s_or_b32 s%d, s%d, s%d' % (sT0, sRX, sI))
        a('s_cmp_lg_u32 s%d, 0' % sT0)
        a.branch('s_cbranch_scc1 %s' % Lt)
        a('s_memrealtime s[96:97]')
        a('s_memtime s[98:99]')
        a('s_waitcnt lgkmcnt(0)')
        a('v_mov_b32 v%d, s96' % vT)
        a('v_mov_b32 v%d, s98' % (vT + 1))
        a('v_mov_b32 v%d, 0' % (vT + 2))
        a('s_lshl_b32 s%d, s%d, 3' % (sT0, sSTEP))
        a('s_add_u32 s%d, s%d, 0x%x' % (sT0, sT0, MISC_OFF + 196608))
        a('s_mov_b64 exec, 1')
        a('buffer_store_dwordx2 v[%d:%d], v%d, s[%d:%d], s%d offen' % (vT, vT + 1, vT + 2, sWS, sWS + 3, sT0))
        a('s_mov_b64 exec, -1')
        a.label(Lt)
    a('s_add_u32 s%d, s%d, 1' % (sSTEP, sSTEP))
    mark(a, cfg, 14)
    a.branch('s_branch %s' % Lloop)
    while COLD: COLD.pop(0)()
    a.label(Lend)
    if w == 3: dbgt(a, cfg, 10)
    if fused:
        a('s_waitcnt vmcnt(0)')
        a('s_barrier')
        if w == 0: publish_prog(a, None, 64)
    if g('prof'):
        a('s_mov_b32 s95, s%d' % sSPIN)
        a('s_lshl_b32 s%d, s%d, 5' % (sT0, sRX))
        a('s_add_u32 s%d, s%d, s%d' % (sT0, sT0, sI))
        a('s_lshl_b32 s%d, s%d, 8' % (sT0, sT0))
        a('s_add_u32 s%d, s%d, 0x%x' % (sT0, sT0, MISC_OFF + 4096 + w * 64))
        a('v_mov_b32 v%d, 0' % (vT + 2))
        a('s_mov_b64 exec, 1')
        for k in range(16):
            a('v_mov_b32 v%d, s%d' % (vT, 80 + k))
            a('buffer_store_dword v%d, v%d, s[%d:%d], s%d offen offset:%d' % (vT, vT + 2, sWS, sWS + 3, sT0, 4 * k))
        a('s_mov_b64 exec, -1')
    if g('st3') and w == 0:
        a('s_lshl_b32 s%d, s%d, 5' % (sT0, sRX))
        a('s_add_u32 s%d, s%d, s%d' % (sT0, sT0, sI))
        a('s_lshl_b32 s%d, s%d, 5' % (sT0, sT0))
        a('s_add_u32 s%d, s%d, 0x%x' % (sT0, sT0, MISC_OFF + 262144))
        a('v_mov_b32 v%d, 0' % (vT + 2))
        a('s_mov_b64 exec, 1')
        for k in range(5):
            a('v_mov_b32 v%d, s%d' % (vT, 80 + 2 * k))
            a('buffer_store_dword v%d, v%d, s[%d:%d], s%d offen offset:%d' % (vT, vT + 2, sWS, sWS + 3, sT0, 4 * k))
        a('s_mov_b64 exec, -1')
    if g('stamp') and w == 0:
        a('s_memrealtime s[72:73]')
        a('s_waitcnt lgkmcnt(0)')
        a('s_sub_u32 s72, s72, s70')
        a('v_mov_b32 v%d, s72' % vT)
        a('v_mov_b32 v%d, s70' % (vT + 1))
        a('s_lshl_b32 s%d, s%d, 5' % (sT0, sRX))
        a('s_add_u32 s%d, s%d, s%d' % (sT0, sT0, sI))
        a('s_lshl_b32 s%d, s%d, 3' % (sT0, sT0))
        a('s_add_u32 s%d, s%d, 0x%x' % (sT0, sT0, MISC_OFF))
        a('v_mov_b32 v%d, 0' % (vT + 2))
        a('s_mov_b64 exec, 1')
        a('buffer_store_dwordx2 v[%d:%d], v%d, s[%d:%d], s%d offen' % (vT, vT + 1, vT + 2, sWS, sWS + 3, sT0))
    a('s_endpgm')

def archive_v(a):
    slot_off(a, sT0, sSTEP, 16, sARC)
    st(a, vVZ, 2, vL8, sT0, True)

def publish_prog(a, sreg, add):
    if sreg is None: a('v_mov_b32 v%d, %d' % (vT, add))
    else:
        a('s_add_u32 s%d, s%d, %d' % (sT0, sreg, add))
        a('v_mov_b32 v%d, s%d' % (vT, sT0))
    a('v_mov_b32 v%d, 0' % (vT + 1))
    a('s_mov_b64 exec, 1')
    a('buffer_store_dword v%d, v%d, s[%d:%d], s%d offen sc1' % (vT, vT + 1, sWS, sWS + 3, sARC))
    a('s_mov_b64 exec, -1')

def ensure_gp(a, sreg, add):
    L = a.newlabel('gp'); D = a.newlabel('gpd')
    if sreg is None: a('s_mov_b32 s%d, %d' % (sT2, add))
    else: a('s_add_u32 s%d, s%d, %d' % (sT2, sreg, add))
    a('s_min_u32 s%d, s%d, 64' % (sT2, sT2))
    a('s_lshl_b32 s%d, s%d, 8' % (sT1, sH))
    a('s_add_u32 s%d, s%d, 0x%x' % (sT1, sT1, GP_OFF))
    a('v_mov_b32 v%d, 0' % vT)
    a.label(L)
    a('s_cmp_ge_u32 s%d, s%d' % (sGP, sT2))
    a('s_cbranch_scc1 %s' % D)
    a('buffer_load_dwordx4 v[%d:%d], v%d, s[%d:%d], s%d offen sc1' % (vR, vR + 3, vT, sWS, sWS + 3, sT1))
    a('s_waitcnt vmcnt(0)')
    a('v_min3_u32 v%d, v%d, v%d, v%d' % (vR, vR, vR + 1, vR + 2))
    a('v_min_u32 v%d, v%d, v%d' % (vR, vR, vR + 3))
    a('v_readfirstlane_b32 s%d, v%d' % (sGP, vR))
    a('s_add_u32 s%d, s%d, 1' % (sSPIN, sSPIN))
    a('s_cmp_lt_u32 s%d, 0x%x' % (sSPIN, SPIN_LIMIT))
    a('s_cbranch_scc1 %s' % L)
    a.label(D)

def prefetch_dma(a, sc1=False):
    a('s_add_u32 s%d, s%d, 4096' % (sT0, sKF))
    for grp, (so, n) in enumerate(((sKF, 4), (sT0, 4), (sVF, 2))):
        a('s_mov_b32 m0, %d' % (LDS_KV + grp * 4096))
        for c in range(n):
            a('buffer_load_dwordx4 v%d, s[%d:%d], s%d offen offset:%d%s lds' % (vL16, sWS, sWS + 3, so, c * 1024, ' sc1' if sc1 else ''))

def prefetch_kv(a, sc1=False):
    a('s_add_u32 s%d, s%d, 4096' % (sT0, sKF))
    for tt in range(2):
        for c in range(4):
            r = vKX + 16 * tt + 4 * c
            a('buffer_load_dwordx4 v[%d:%d], v%d, s[%d:%d], s%d offen offset:%d%s' % (r, r + 3, vL16, sWS, sWS + 3, sKF if tt == 0 else sT0, c * 1024, ' sc1' if sc1 else ''))
    for e in range(2):
        a('buffer_load_dwordx4 v[%d:%d], v%d, s[%d:%d], s%d offen offset:%d%s' % (vVX + 4 * e, vVX + 4 * e + 3, vL16, sWS, sWS + 3, sVF, e * 1024, ' sc1' if sc1 else ''))

def r_body(a, cfg):
    a('s_lshr_b32 s%d, s%d, 2' % (sH, sI))
    a('s_lshl_b32 s%d, s%d, 3' % (sT0, sRX))
    a('s_add_u32 s%d, s%d, s%d' % (sH, sH, sT0))
    a('s_and_b32 s%d, s%d, 3' % (sJ, sI))
    for w in range(1, 4):
        a('s_cmp_eq_u32 s%d, %d' % (sW, w))
        a.branch('s_cbranch_scc1 r_wave%d' % w)
    for w in range(4):
        a.label('r_wave%d' % w)
        wave_loop(a, w, cfg)

def gen_r_kernel(name, cfg):
    a = Asm()
    a.raw(kernel_header(name))
    Lexit = 'r_exit'
    a('s_cmp_ge_u32 s2, 256')
    a('s_cbranch_scc1 %s' % Lexit)
    build_srds(a, dict(ws=sWS, wq=sWQ, wk=sWK, wv=sWV, wo=sWO, mem0=sM0, dbg=sDBG))
    a('s_getreg_b32 s%d, hwreg(HW_REG_XCC_ID)' % sRX)
    a('s_and_b32 s%d, s%d, 7' % (sRX, sRX))
    a('s_cmp_ge_u32 s%d, 4' % sRX)
    a('s_cbranch_scc1 %s' % Lexit)
    a('s_mov_b32 s%d, 0' % sSPIN)
    lane_consts(a)
    a('v_lshrrev_b32 v%d, 6, v0' % vT)
    a('v_readfirstlane_b32 s%d, v%d' % (sW, vT))
    Lt = a.newlabel('tk')
    a('s_cmp_lg_u32 s%d, 0' % sW)
    a.branch('s_cbranch_scc1 %s' % Lt)
    a('v_mov_b32 v%d, 1' % vT)
    a('s_lshl_b32 s%d, s%d, 2' % (sT0, sRX))
    a('v_mov_b32 v%d, s%d' % (vT + 1, sT0))
    a('v_mov_b32 v%d, %d' % (vT + 2, LDS_TK))
    a('s_mov_b64 exec, 1')
    a('buffer_atomic_add v%d, v%d, s[%d:%d], 0 offen sc0 sc1' % (vT, vT + 1, sDBG, sDBG + 3))
    a('s_waitcnt vmcnt(0)')
    a('ds_write_b32 v%d, v%d' % (vT + 2, vT))
    a('s_waitcnt lgkmcnt(0)')
    a('s_mov_b64 exec, -1')
    a.label(Lt)
    a('s_barrier')
    a('v_mov_b32 v%d, %d' % (vT + 2, LDS_TK))
    a('ds_read_b32 v%d, v%d' % (vT, vT + 2))
    a('s_waitcnt lgkmcnt(0)')
    a('v_readfirstlane_b32 s%d, v%d' % (sI, vT))
    a('s_cmp_ge_u32 s%d, 32' % sI)
    a.branch('s_cbranch_scc1 %s' % Lexit)
    r_body(a, cfg)
    a.label(Lexit)
    a('s_endpgm')
    return a.text()
```
